```python
import torch

def _softmax(x, axis=-1):
    return torch.softmax(x, dim=axis)
def _gelu(x):
    return torch.nn.functional.gelu(x, approximate="tanh")
def _silu(x):
    return torch.nn.functional.silu(x)
def _sigmoid(x):
    return torch.sigmoid(x)
def _layernorm(x, axis=-1, eps=1e-5):
    m = x.mean(dim=axis, keepdim=True)
    v = x.var(dim=axis, keepdim=True, unbiased=False)
    return (x - m) / torch.sqrt(v + eps)
def _scatter_add(tgt, idx, src, axis=0):
    return tgt.clone().index_add_(axis, idx, src)
def _segment_sum(src, seg, n):
    out = torch.zeros((n,) + src.shape[1:], dtype=src.dtype)
    return out.index_add_(0, seg, src)
def _pad(x, pw):
    flat = tuple(v for pair in reversed(pw) for v in pair)
    return torch.nn.functional.pad(x, flat)

kernel_name = 'recurrent_scan__linear_attn_block__dense_activation_gelu__prompt'

def setup_inputs():

    _w = (lambda a: (lambda t: t.to(torch.bfloat16) if t.is_floating_point() else t)(torch.as_tensor(a)))
    def _A_setup():
        B, S, D = 1, 2048, 512
        return {
            "x": _w((lambda *s: torch.randn(*s, dtype=torch.bfloat16) * 0.05)(B, S, D)),
            "wqkv": _w((lambda *s: torch.randn(*s, dtype=torch.bfloat16) * 0.2)(D, 3 * D)),
            "wo": _w((lambda *s: torch.randn(*s, dtype=torch.bfloat16) * 0.2)(D, D)),
        }
    _A_in = _A_setup()

    def _B_setup():
        B, S, D, F = 1, 2048, 512, 1376
        return {
            "x": _w((lambda *s: torch.randn(*s, dtype=torch.bfloat16) * 0.05)(B, S, D)),
            "w1": _w((lambda *s: torch.randn(*s, dtype=torch.bfloat16) * 0.4)(D, F) * (D ** -0.5)),
            "b1": _w((lambda *s: torch.randn(*s, dtype=torch.bfloat16) * 12.8)(F) * 0.01),
            "w2": _w((lambda *s: torch.randn(*s, dtype=torch.bfloat16) * 0.2)(F, D) * (F ** -0.5)),
            "b2": _w((lambda *s: torch.randn(*s, dtype=torch.bfloat16) * 3.2)(D) * 0.01),
        }
    _B_in = _B_setup()

    return {
        "A_x": _A_in["x"],
        "A_wqkv": _A_in["wqkv"],
        "A_wo": _A_in["wo"],
        "B_x": _B_in["x"],
        "B_w1": _B_in["w1"],
        "B_b1": _B_in["b1"],
        "B_w2": _B_in["w2"],
        "B_b2": _B_in["b2"],
    }

def reference(A_x, A_wqkv, A_wo, B_x, B_w1, B_b1, B_w2, B_b2):
    def _A_ref(x, wqkv, wo):
        B, S, D = x.shape
        H = 32; Dh = D // H
        qkv = (lambda x, *d: x.permute(*d))((x @ wqkv).reshape(B, S, 3, H, Dh), 2, 0, 3, 1, 4)
        q, k, v = qkv[0], qkv[1], qkv[2]
        phi = lambda t: torch.where(t > 0, t + 1, torch.exp(t)) + 1e-6
        pq, pk = phi(q), phi(k)
        kv = torch.einsum("bhsd,bhse->bhde", pk, v)
        z = torch.einsum("bhsd->bhd", pk)
        num = torch.einsum("bhqd,bhde->bhqe", pq, kv)
        den = torch.einsum("bhqd,bhd->bhq", pq, z)[..., None] + 1e-6
        o = num / den
        return (lambda x, *d: x.permute(*d))(o, 0, 2, 1, 3).reshape(B, S, D) @ wo

    def _B_ref(x, w1, b1, w2, b2):
        h = torch.einsum("bsd,df->bsf", x, w1) + b1
        h = _gelu(h)
        return torch.einsum("bsf,fd->bsd", h, w2) + b2

    x = A_x
    xn = _layernorm(x, axis=-1)
    s = _A_ref(xn, A_wqkv, A_wo)
    g = _silu(_B_ref(xn, B_w1, B_b1, B_w2, B_b2))
    return x + s * g
```

```python
import re

TRANS = ("v_exp_f32", "v_log_f32", "v_rcp_f32", "v_rsq_f32", "v_sqrt_f32", "v_sin_f32", "v_cos_f32")


def regs_of(tok):
    tok = tok.strip()
    if tok.startswith("-"):
        tok = tok[1:]
    if tok.startswith("abs(") or tok.startswith("neg("):
        tok = tok[4:-1]
    m = re.fullmatch(r"([vs])\[(\d+):(\d+)\]", tok)
    if m:
        return {(m.group(1), i) for i in range(int(m.group(2)), int(m.group(3)) + 1)}
    m = re.fullmatch(r"([vs])(\d+)", tok)
    if m:
        return {(m.group(1), int(m.group(2)))}
    if tok in ("vcc", "vcc_lo", "vcc_hi"):
        return {("vcc", 0)}
    if tok == "m0":
        return {("m0", 0)}
    if tok in ("exec", "exec_lo", "exec_hi"):
        return {("exec", 0)}
    return set()


class Ins:
    def __init__(self, text):
        self.text = text
        t = text.split(";")[0].strip()
        self.label = None
        self.op = None
        self.dst = set()
        self.src = set()
        self.srcC = set()
        self.srcAB = set()
        if not t:
            return
        if t.endswith(":"):
            self.label = t[:-1]
            return
        if t.startswith("."):
            return
        parts = t.split(None, 1)
        self.op = op = parts[0]
        rest = parts[1] if len(parts) > 1 else ""
        ops = [o.strip() for o in re.split(r",(?![^\[]*\])", rest)] if rest else []
        toks = []
        mods = []
        for o in ops:
            sp = o.split()
            if not sp:
                continue
            toks.append(sp[0])
            mods += sp[1:]
        self.toks = toks
        self.mods = mods
        R = [regs_of(x) for x in toks]
        U = lambda l: set().union(*l) if l else set()
        self.is_mfma = op.startswith("v_mfma")
        self.is_valu = op.startswith("v_") and not self.is_mfma
        self.is_vmem = op.startswith("buffer_") or op.startswith("global_")
        self.is_ds = op.startswith("ds_")
        self.is_salu = op.startswith("s_")
        self.is_dpp = "_dpp" in op or any(m.startswith("row_") or m.startswith("quad_perm") for m in mods)
        self.is_trans = op.replace("_e32", "").replace("_e64", "") in TRANS
        self.is_perml = op.startswith("v_permlane")
        self.lds_dma = self.is_vmem and "lds" in mods
        if self.is_mfma:
            self.dst = R[0]
            self.srcAB = R[1] | R[2]
            self.srcC = R[3]
            self.src = self.srcAB | self.srcC
            self.passes = 4 if "16x16" in op else 8
        elif self.is_perml:
            self.dst = R[0] | R[1]
            self.src = R[0] | R[1]
        elif op.startswith("v_cmp"):
            self.dst = R[0]
            self.src = U(R[1:])
            if op.startswith("v_cmpx"):
                self.dst |= {("exec", 0)}
        elif op.startswith("v_add_co") or op.startswith("v_addc_co") or op.startswith("v_sub_co"):
            self.dst = R[0] | R[1]
            self.src = U(R[2:])
        elif self.is_valu:
            self.dst = R[0]
            self.src = U(R[1:])
            if op.startswith("v_fmac") or op.startswith("v_dot2c") or self.is_dpp:
                self.src |= R[0]
            if op.startswith("v_cndmask") and len(toks) == 3:
                self.src |= {("vcc", 0)}
        elif self.is_ds:
            if op.startswith("ds_read"):
                self.dst = R[0]
                self.src = U(R[1:])
            else:
                self.src = U(R)
        elif self.is_vmem:
            if op.startswith("buffer_load") and not self.lds_dma:
                self.dst = R[0]
                self.src = U(R[1:])
            elif op.startswith("buffer_atomic") and "sc0" in mods:
                self.dst = R[0]
                self.src = U(R)
            else:
                self.src = U(R)
            if self.lds_dma:
                self.src |= {("m0", 0)}
            self.wide_store = op in ("buffer_store_dwordx4", "buffer_store_dwordx3")
            self.store_data = R[0] if op.startswith("buffer_store") else set()
        elif self.is_salu:
            if op.startswith("s_cmp") or op.startswith("s_cbranch") or op in (
                "s_branch", "s_waitcnt", "s_nop", "s_barrier", "s_endpgm", "s_sleep", "s_setprio"):
                self.src = U(R)
            else:
                self.dst = R[0] if R else set()
                self.src = U(R[1:])
                if "saveexec" in op:
                    self.dst |= {("exec", 0)}

    def states(self):
        if self.op is None:
            return 0
        if self.op == "s_nop":
            return int(self.toks[0]) + 1
        return 1


def need(p, c):
    n = 0
    V = lambda s: {r for r in s if r[0] == "v"}
    SG = lambda s: {r for r in s if r[0] in ("s", "vcc")}
    if p.is_valu:
        vd = V(p.dst)
        if c.is_mfma and vd & c.src:
            n = max(n, 2)
        if c.is_valu and (c.is_dpp or c.is_perml) and vd & c.src:
            n = max(n, 2)
        if c.op.startswith("v_readfirstlane") or c.op.startswith("v_readlane"):
            if vd & c.src:
                n = max(n, 1)
        if p.is_trans and c.is_valu and not c.is_trans and vd & c.src:
            n = max(n, 1)
        if p.is_trans and (c.is_vmem or c.is_ds) and vd & c.src:
            n = max(n, 1)
        sd = SG(p.dst)
        if sd:
            if c.is_valu and sd & c.src:
                n = max(n, 2)
            if c.is_vmem and sd & c.src:
                n = max(n, 5)
            if c.is_salu and (sd & c.src or (("vcc", 0) in sd and "vcc" in c.op)):
                n = max(n, 2)
        if ("exec", 0) in p.dst:
            if c.is_mfma or c.is_perml or c.op.startswith("v_read"):
                n = max(n, 4)
            if c.is_valu and c.is_dpp:
                n = max(n, 5)
    if p.is_mfma:
        big = p.passes == 8
        if c.is_mfma:
            if p.dst & c.srcAB:
                n = max(n, 12 if big else 8)
            if p.dst & c.srcC and not (p.dst == c.srcC and p.passes == c.passes):
                n = max(n, 10 if big else 6)
            if p.dst & c.dst and not (p.dst == c.srcC):
                n = max(n, 12 if big else 8)
        elif c.is_valu or c.is_vmem or c.is_ds:
            if p.dst & (c.src | c.dst):
                n = max(n, 12 if big else 8)
            if c.is_valu and p.srcC & c.dst:
                n = max(n, 7 if big else 3)
    if p.is_salu and ("m0", 0) in p.dst and c.is_vmem and c.lds_dma:
        n = max(n, 1)
    if p.is_vmem and getattr(p, "wide_store", False):
        if p.store_data & c.dst:
            n = max(n, 2)
    return n


class Prog:
    def __init__(self):
        self.lines = []

    def __call__(self, text):
        for l in text.split("\n"):
            l = l.strip()
            if l:
                self.lines.append(l)

    def label(self, name):
        self.lines.append(name + ":")

    def finish(self):
        out = []
        npad = 0
        for l in self.lines:
            c = Ins(l)
            if c.op is not None:
                dist = 0
                req = 0
                for p in reversed(out):
                    if p.op is None:
                        continue
                    if p.op in ("s_branch", "s_endpgm"):
                        break
                    r = need(p, c) - dist
                    req = max(req, r)
                    dist += p.states()
                    if dist > 24:
                        break
                if req > 0:
                    npad += req
                    out.append(Ins("s_nop %d" % (req - 1)))
            out.append(c)
        pos = {i.label: k for k, i in enumerate(out) if i.label}
        for k, b in enumerate(out):
            if b.op and (b.op.startswith("s_cbranch") or b.op == "s_branch"):
                t = pos[b.toks[0]]
                head = [i for i in out[max(0, k - 40):k + 1] if i.op]
                tail = []
                for i in out[t:t + 60]:
                    if i.op:
                        tail.append(i)
                        if i.op in ("s_branch", "s_endpgm"):
                            break
                for ci, c in enumerate(tail[:24]):
                    dist = sum(x.states() for x in tail[:ci])
                    for p in reversed(head):
                        if p is not b and p.op in ("s_branch", "s_endpgm"):
                            break
                        if need(p, c) > dist:
                            raise Exception("hazard across branch %s: %s -> %s" % (b.text, p.text, c.text))
                        dist += p.states()
                        if dist > 24:
                            break
        self.npad = npad
        txt = []
        for i in out:
            txt.append(i.text if (i.label or i.op is None) else "  " + i.text)
        return "\n".join(txt)


def v(a, n=1):
    return "v%d" % a if n == 1 else "v[%d:%d]" % (a, a + n - 1)


def s(a, n=1):
    return "s%d" % a if n == 1 else "s[%d:%d]" % (a, a + n - 1)
```

```python
import sys, os, struct, math
from asmlib import Prog, v, s

KNAME = "recurrent_scan__linear_attn_block__dense_activation_gelu__prompt_kernel"
OPT = dict(diag=0, outaux="", map1="24", spin=16, rot=1, codepf=1)
for a in sys.argv[1:]:
    k, val = a.split("=")
    OPT[k] = val if not val.lstrip("-").isdigit() else int(val)
DIAG = OPT["diag"]


def f2u(x):
    return struct.unpack("<I", struct.pack("<f", x))[0]


K = 1024
WS_STATS = 0x1000
WS_FLAGS = 0x8000
FL_HB, FL_HA, FL_O, FL_KV = 0, 64, 128, 192
WS_KVP = 0x10000
KVP_STR = 4352
WS_HA = 0x100000
TG_STR = 59 * 1024
WS_DIAG = 0x900000
WS_SIZE = 0xA00000
def CH(q):
    return 96 * K + 8 * K * q if q < 7 else 88 * K
TB = 52 * K
TB_STR = 272
L_EX1 = 152 * K
L_EX2 = 156 * K
L_KT = 156 * K
L_PQ = 140 * K
L_E = 128 * K
def slot_of(p):
    if p < 40:
        return (p % 32) * 4 * K
    if p < 43:
        return L_E + (p - 40) * 4 * K
    return ((p - 3) % 32) * 4 * K

SRD_X, SRD_P1, SRD_P2, SRD_WS, SRD_W2, SRD_WO, SRD_A, SRD_B = 4, 8, 12, 16, 20, 24, 28, 32
P_X, P_QKV, P_WO, P_W1, P_B1, P_W2, P_B2, P_OUT, P_WS = 36, 38, 40, 44, 46, 48, 50, 52, 56
NONCE, W, I_, J_, C_, TYPE, RHO, TB2, CT, RHO2 = 58, 59, 60, 61, 62, 63, 64, 65, 66, 67
T0, T1, T2, T3 = 68, 69, 70, 71

P = Prog()


class Q:
    def __init__(self, name, mx):
        self.q = []
        self.name = name
        self.mx = mx

    def add(self, tag=None):
        self.q.append(tag)

    def wait(self, tag):
        idx = max(i for i, t in enumerate(self.q) if t == tag) if tag in self.q else -1
        if idx < 0:
            return
        n = len(self.q) - 1 - idx
        assert n <= self.mx, (self.name, n)
        P("s_waitcnt %s(%d)" % (self.name, n))
        self.q = self.q[idx + 1:]

    def drain(self, force=False):
        if self.q or force:
            P("s_waitcnt %s(0)" % self.name)
        self.q = []


nstamp = [0, 0]
def stamp(role, name):
    if not DIAG:
        return
    n = nstamp[role]
    P("s_memrealtime s[96:97]\ns_waitcnt lgkmcnt(0)\ns_mov_b32 s%d, s96 ; stamp %s" % (80 + n, name))
    nstamp[role] += 1
    assert nstamp[role] <= 16


def srd(r, ptr, size):
    P("s_mov_b32 %s, %s\ns_mov_b32 %s, %s\ns_mov_b32 %s, 0x%x\ns_mov_b32 %s, 0x20000" % (
        s(r), s(ptr), s(r + 1), s(ptr + 1), s(r + 2), size, s(r + 3)))


def sel2(dst, a, b):
    P("s_mov_b32 %s, 0x%x\ns_cmov_b32 %s, 0x%x" % (s(dst), b, s(dst), a))


def spin(lbl, load, vdata, cnt=T3):
    P("s_mov_b32 %s, %d" % (s(cnt), 1 << OPT["spin"]))
    P.label(lbl)
    P(load)
    P("s_waitcnt vmcnt(0)")
    P("v_cmp_ne_u32 vcc, %s, %s" % (s(NONCE), v(vdata)))
    P("s_sub_u32 %s, %s, 1" % (s(cnt), s(cnt)))
    P("s_cbranch_scc1 %s_x" % lbl)
    P("s_cbranch_vccnz %s" % lbl)
    P.label(lbl + "_x")


P("s_cmp_ge_u32 s2, 256")
P("s_cbranch_scc1 L_end")
P("s_load_dwordx16 s[36:51], s[0:1], 0")
P("s_load_dwordx4 s[52:55], s[0:1], 64")
P("s_load_dwordx2 s[56:57], s[0:1], 80")
P("v_lshrrev_b32 v1, 6, v0")
P("v_and_b32 v0, 63, v0")
P("s_lshr_b32 %s, s2, 3" % s(T0))
P("v_readfirstlane_b32 %s, v1" % s(T2))
if OPT["codepf"]:
    P("s_getpc_b64 s[32:33]")
    P.label("L_pc")
    P("s_mov_b32 s34, L_codeend-L_pc")
    P("s_mov_b32 s35, 0x20000")
    P("s_lshl_b32 %s, %s, 3" % (s(T1), s(T0)))
    P("s_add_u32 %s, %s, %s" % (s(T1), s(T1), s(T2)))
    P("s_lshl_b32 %s, %s, 7" % (s(T1), s(T1)))
    P("v_mov_b32 v2, %s" % s(T1))
    P("buffer_load_dword v31, v2, s[32:35], 0 offen")
P("s_and_b32 %s, s2, 7" % s(T1))
if OPT["map1"] == "24" or OPT["map1"] == 24:
    P("s_lshr_b32 %s, %s, 2\ns_lshl_b32 %s, %s, 3\ns_lshr_b32 %s, %s, 2\ns_add_u32 %s, %s, %s" % (
        s(I_), s(T1), s(I_), s(I_), s(T3), s(T0), s(I_), s(I_), s(T3)))
    P("s_and_b32 %s, %s, 3\ns_lshl_b32 %s, %s, 2\ns_and_b32 %s, %s, 3\ns_add_u32 %s, %s, %s" % (
        s(J_), s(T1), s(J_), s(J_), s(RHO), s(T0), s(J_), s(J_), s(RHO)))
    P("s_lshl_b32 %s, %s, 1\ns_add_u32 %s, %s, %s\ns_and_b32 %s, %s, 1\ns_add_u32 %s, %s, %s\ns_and_b32 %s, %s, 7" % (
        s(RHO), s(RHO), s(RHO), s(RHO), s(T3), s(T3), s(T1), s(RHO), s(RHO), s(T3), s(RHO), s(RHO)))
else:
    P("s_lshr_b32 %s, %s, 1\ns_lshl_b32 %s, %s, 2\ns_lshr_b32 %s, %s, 3\ns_add_u32 %s, %s, %s" % (
        s(I_), s(T1), s(I_), s(I_), s(T3), s(T0), s(I_), s(I_), s(T3)))
    P("s_and_b32 %s, %s, 1\ns_lshl_b32 %s, %s, 3\ns_and_b32 %s, %s, 7\ns_add_u32 %s, %s, %s" % (
        s(J_), s(T1), s(J_), s(J_), s(RHO), s(T0), s(J_), s(J_), s(RHO)))
    P("s_lshl_b32 %s, %s, 1\ns_add_u32 %s, %s, %s\ns_bfe_u32 %s, %s, 0x10001\ns_add_u32 %s, %s, %s\ns_and_b32 %s, %s, 7" % (
        s(T3), s(T3), s(RHO), s(RHO), s(T3), s(T3), s(T1), s(RHO), s(RHO), s(T3), s(RHO), s(RHO)))
P("s_lshr_b32 %s, %s, 1" % (s(C_), s(J_)))
P("s_and_b32 %s, %s, 1" % (s(TYPE), s(J_)))
P("s_lshr_b32 %s, %s, 3" % (s(T3), s(T0)))
P("s_lshl_b32 %s, %s, 2\ns_add_u32 %s, %s, %s" % (s(TB2), s(T1), s(TB2), s(TB2), s(T3)))
P("s_and_b32 %s, %s, 7" % (s(CT), s(T0)))
P("s_lshl_b32 %s, %s, 1\ns_add_u32 %s, %s, %s\ns_and_b32 %s, %s, 7" % (
    s(RHO2), s(T3), s(RHO2), s(RHO2), s(CT), s(RHO2), s(RHO2)))
if not OPT["rot"]:
    P("s_mov_b32 %s, 0\ns_mov_b32 %s, 0" % (s(RHO), s(RHO2)))
P("s_and_b32 %s, %s, 3" % (s(W), s(T2)))
P("s_cmp_ge_u32 %s, 4" % s(T2))
P("s_cbranch_scc1 L_loader")


def hblock0(dst):
    P("s_lshl_b32 %s, %s, 2" % (s(dst), s(C_)))
    P("s_mul_i32 %s, %s, 3\ns_add_u32 %s, %s, 2" % (s(T3), s(C_), s(T3), s(T3)))
    P("s_min_u32 %s, %s, %s" % (s(dst), s(dst), s(T3)))
    P("s_lshl_b32 %s, %s, 1\ns_add_u32 %s, %s, 27" % (s(T3), s(C_), s(T3), s(T3)))
    P("s_cmp_eq_u32 %s, 0" % s(TYPE))
    P("s_cselect_b32 %s, %s, %s" % (s(dst), s(T3), s(dst)))


def voffH(dst, t1, t2):
    P("v_bfe_u32 %s, v0, 4, 1" % v(t1))
    P("v_mul_u32_u24 %s, 0x%x, %s" % (v(dst), TG_STR, v(t1)))
    P("v_lshrrev_b32 %s, 5, v0" % v(t1))
    P("v_and_b32 %s, 15, v0" % v(t2))
    P("v_lshl_or_b32 %s, %s, 4, %s" % (v(t1), v(t1), v(t2)))
    P("v_lshl_add_u32 %s, %s, 4, %s" % (v(dst), v(t1), v(dst)))


def waddr(dst, t1, t2):
    P("v_lshrrev_b32 %s, 5, v0" % v(t1))
    P("v_bfe_u32 %s, v0, 2, 2" % v(t2))
    P("v_lshl_add_u32 %s, %s, 3, %s" % (v(t1), v(t1), v(t2)))
    P("v_lshlrev_b32 %s, 7, %s" % (v(dst), v(t1)))
    P("v_bfe_u32 %s, v0, 3, 1" % v(t1))
    P("v_lshl_or_b32 %s, %s, 6, %s" % (v(dst), v(t1), v(dst)))
    P("v_bfe_u32 %s, v0, 4, 1" % v(t1))
    P("v_lshl_or_b32 %s, %s, 5, %s" % (v(dst), v(t1), v(dst)))
    P("v_and_b32 %s, 3, v0" % v(t1))
    P("v_lshl_or_b32 %s, %s, 3, %s" % (v(dst), v(t1), v(dst)))


def seg_regs(base_expr_reg, unit, rB, rA, rO, offA, offO):
    P("s_mul_i32 %s, %s, %d" % (s(rB), s(RHO2), 3 * unit))
    P("s_add_u32 %s, %s, %s" % (s(rB), s(rB), s(base_expr_reg)))
    P("s_mul_i32 %s, %s, %d" % (s(rO), s(RHO2), 2 * unit))
    P("s_add_u32 %s, %s, %s" % (s(rO), s(rO), s(base_expr_reg)))
    P("s_add_u32 %s, %s, %d" % (s(rA), s(rO), offA))
    if offO:
        P("s_add_u32 %s, %s, %d" % (s(rO), s(rO), offO))


XR, ACC, WR = 128, 64, 32
VH, GR, XE, KK, SD, RL = 1, 2, 4, 6, 8, 10
XA, WA = 12, 20
HB0 = 72
SH = 73
EPS2 = 74
lg = Q("lgkmcnt", 15)

stamp(0, "start")
P("s_lshl_b32 %s, %s, 4\ns_add_u32 %s, %s, %s\ns_lshl_b32 %s, %s, 2\ns_add_u32 %s, %s, %s\ns_lshl_b32 %s, %s, 1" % (
    s(T0), s(I_), s(T0), s(T0), s(J_), s(T0), s(T0), s(T0), s(T0), s(W), s(T0), s(T0)))
P("s_lshl_b32 %s, %s, 10" % (s(T1), s(T0)))
P("v_lshrrev_b32 v26, 5, v0\nv_and_b32 v27, 31, v0\nv_lshlrev_b32 v28, 4, v27\nv_lshl_or_b32 v28, v26, 10, v28")
P("s_waitcnt lgkmcnt(0)")
srd(SRD_X, P_X, 2 * K * K)
P("s_load_dword %s, %s, 0" % (s(NONCE), s(P_WS, 2)))
P("buffer_load_dwordx4 v[32:35], v28, %s, %s offen" % (s(SRD_X, 4), s(T1)))
P("buffer_load_dwordx4 v[36:39], v28, %s, %s offen offset:512" % (s(SRD_X, 4), s(T1)))
srd(SRD_WS, P_WS, WS_SIZE)
srd(SRD_A, P_OUT, 2 * K * K)
srd(SRD_B, P_B2, 1024)
voffH(VH, 29, 30)
waddr(WA, 29, 30)
P("v_xor_b32 %s, 64, %s" % (v(WA + 1), v(WA)))
for k, off in ((2, 64 * K), (4, 88 * K)):
    P("v_add_u32 %s, 0x%x, %s\nv_add_u32 %s, 0x%x, %s" % (v(WA + k), off, v(WA), v(WA + k + 1), off, v(WA + 1)))
P("v_bfe_u32 v29, v0, 1, 3\nv_xor_b32 v29, v29, v26\nv_lshlrev_b32 v29, 4, v29\nv_lshl_or_b32 v29, v27, 7, v29")
P("s_lshl_b32 %s, %s, 12" % (s(T2), s(W)))
P("v_add_u32 %s, %s, v29" % (v(XA), s(T2)))
for t in range(1, 4):
    P("v_xor_b32 %s, %d, %s" % (v(XA + t), 32 * t, v(XA)))
for t in range(4):
    P("v_add_u32 %s, 0x10000, %s" % (v(XA + 4 + t), v(XA + t)))
hblock0(HB0)
P("s_lshl_b32 %s, %s, 2\ns_add_u32 %s, %s, %s\ns_mul_i32 %s, %s, %d\ns_add_u32 %s, %s, 0x%x" % (
    s(SH), s(I_), s(SH), s(SH), s(W), s(SH), s(SH), 2 * TG_STR, s(SH), s(SH), WS_HA))
P("s_mov_b32 %s, 0x%x\ns_mov_b32 %s, 0x%x" % (s(EPS2), f2u(1e-6), s(EPS2 + 1), f2u(1e-6)))
P("s_mov_b32 %s, 0x3f803f80" % s(T2))
P("v_mov_b32 v40, 0\nv_mov_b32 v41, 0\nv_mov_b32 v42, 0\nv_mov_b32 v43, 0")
P("s_waitcnt vmcnt(0)")
for n in range(8):
    P("v_dot2_f32_bf16 %s, %s, %s, %s" % (v(40 + (n & 1)), v(32 + n), s(T2), v(40 + (n & 1))))
    P("v_dot2_f32_bf16 %s, %s, %s, %s" % (v(42 + (n & 1)), v(32 + n), v(32 + n), v(42 + (n & 1))))
P("s_nop 2")
P("v_add_f32 v40, v40, v41\nv_add_f32 v42, v42, v43")
for r in (8, 4, 2, 1):
    P("v_add_f32_dpp v40, v40, v40 row_ror:%d row_mask:0xf bank_mask:0xf" % r)
    P("v_add_f32_dpp v42, v42, v42 row_ror:%d row_mask:0xf bank_mask:0xf" % r)
P("v_mov_b32 v41, v40\nv_mov_b32 v43, v42")
P("v_permlane16_swap_b32 v40, v41\nv_permlane16_swap_b32 v42, v43")
P("v_add_f32 v40, v40, v41\nv_add_f32 v42, v42, v43")
P("v_mul_f32 v40, 0x%x, v40\nv_mul_f32 v42, 0x%x, v42" % (f2u(1 / 512), f2u(1 / 512)))
P("v_fma_f32 v42, -v40, v40, v42\nv_max_f32 v42, 0, v42")
P("v_cvt_pk_bf16_f32 v42, v42, v42\nv_and_b32 v42, 0xffff0000, v42\nv_add_f32 v42, 0x%x, v42" % f2u(1e-5))
P("v_cvt_pk_bf16_f32 v42, v42, v42\nv_and_b32 v42, 0xffff0000, v42\nv_sqrt_f32 v42, v42")
P("v_cvt_pk_bf16_f32 v44, v40, v42")
P("v_lshlrev_b32 v28, 3, v26")
P("s_lshl_b32 %s, %s, 3\ns_add_u32 %s, %s, 0x%x" % (s(T0), s(T0), s(T0), s(T0), WS_STATS))
P("s_waitcnt lgkmcnt(0)")
P("s_add_u32 %s, %s, 1" % (s(NONCE), s(NONCE)))
P("v_mov_b32 v45, %s" % s(NONCE))
P("s_mov_b32 exec_lo, 1\ns_mov_b32 exec_hi, 1")
P("buffer_store_dwordx2 v[44:45], v28, %s, %s offen sc1" % (s(SRD_WS, 4), s(T0)))
P("s_mov_b64 exec, -1")
P("v_lshlrev_b32 v26, 3, v27")
SG = 76
P("s_lshl_b32 %s, %s, 2\ns_add_u32 %s, %s, %s\ns_lshl_b32 %s, %s, 8\ns_add_u32 %s, %s, 0x%x" % (
    s(SG), s(I_), s(SG), s(SG), s(W), s(SG), s(SG), s(SG), s(SG), WS_STATS))
GLOAD = "buffer_load_dwordx2 %s, v26, %s, %s offen sc1" % (v(GR, 2), s(SRD_WS, 4), s(SG))
stamp(0, "stats")


def tr(dst, addr, off, tag):
    P("ds_read_b64_tr_b16 %s, %s offset:%d" % (v(dst, 2), v(addr), off))
    lg.add(tag)


def p1_x(st, t):
    sl = st % 3
    P("ds_read_b128 %s, %s offset:%d" % (v(XR + 16 * st + 4 * t, 4), v(XA + t + (4 if sl == 2 else 0)), (sl % 2) * 32 * K))
    lg.add(("x", st, t))


def p1_w(st, t, b):
    sl = st % 3
    a = WA + (b & 1) + (2 if sl == 2 else 0)
    off = (sl % 2) * 32 * K + 16 * K + (b >> 1) * 8 * K + t * 2048
    f = WR + ((t & 1) * 4 + b) * 4
    tr(f, a, off, None)
    tr(f + 2, a, off + 512, ("w", st, t, b))


def p1_m(st, t, b):
    lg.wait(("x", st, t))
    lg.wait(("w", st, t, b))
    f = WR + ((t & 1) * 4 + b) * 4
    c = "0" if (st == 0 and t == 0) else v(ACC + 16 * b, 16)
    P("v_mfma_f32_32x32x16_bf16 %s, %s, %s, %s" % (v(ACC + 16 * b, 16), v(f, 4), v(XR + 16 * st + 4 * t, 4), c))


P("s_barrier ; b0")
stamp(0, "b0")
p1_x(0, 0)
for b in range(4):
    p1_w(0, 0, b)
for st in range(8):
    for t in range(3):
        for b in range(4):
            p1_m(st, t, b)
            if b == 0:
                p1_x(st, t + 1)
            p1_w(st, t + 1, b)
    p1_m(st, 3, 0)
    p1_m(st, 3, 1)
    if st == 6:
        P(GLOAD)
    lg.drain()
    P("s_barrier ; b%d" % (st + 1))
    if st < 7:
        p1_x(st + 1, 0)
        p1_w(st + 1, 0, 0)
        p1_w(st + 1, 0, 1)
        p1_m(st, 3, 2)
        p1_w(st + 1, 0, 2)
        p1_w(st + 1, 0, 3)
        p1_m(st, 3, 3)
    else:
        P("v_lshlrev_b32 v27, 3, v0")
        P("v_add_u32 v27, 0x%x, v27" % L_EX1)
        for b in range(4):
            P("ds_read_b64 %s, v27 offset:%d" % (v(WR + 2 * b, 2), 512 * b))
            lg.add(("ex", b))
        p1_m(st, 3, 2)
        p1_m(st, 3, 3)
stamp(0, "b8")
P("s_waitcnt vmcnt(0)")
P("v_cmp_ne_u32 vcc, %s, %s" % (s(NONCE), v(GR + 1)))
P("s_cbranch_vccz L_gr_x")
spin("L_gr", GLOAD, GR + 1)
P("s_mov_b32 %s, 0x01000100" % s(T0))
P("v_perm_b32 %s, %s, %s, %s" % (v(XE), v(GR), v(GR), s(T0)))
P("v_xor_b32 %s, 0x80008000, %s" % (v(XE), v(XE)))
P("v_lshrrev_b32 %s, 16, %s" % (v(XE + 1), v(GR)))
P("v_and_b32 %s, 0xffff0000, %s" % (v(SD), v(GR)))
P("v_rcp_f32 %s, %s" % (v(SD + 1), v(SD)))
for b in range(4):
    lg.wait(("ex", b))
    P("v_mfma_f32_32x32x8bf16_1k %s, %s, %s, %s" % (v(ACC + 16 * b, 16), v(WR + 2 * b, 2), v(XE, 2), v(ACC + 16 * b, 16)))
LOG2E = 1.4426950408889634
C1 = -2 * LOG2E * math.sqrt(2 / math.pi)
C2 = C1 * 0.044715
P("v_mul_f32 %s, 0x%x, %s" % (v(KK), f2u(C1), v(SD + 1)))
P("v_mul_f32 %s, %s, %s" % (v(KK + 1), v(SD + 1), v(SD + 1)))
P("v_mul_f32 %s, %s, %s" % (v(KK + 1), v(KK + 1), v(SD + 1)))
P("v_mul_f32 %s, 0x%x, %s" % (v(KK + 1), f2u(C2), v(KK + 1)))
P("v_mul_f32 %s, 0x%x, %s" % (v(RL), f2u(LOG2E), v(SD + 1)))
stamp(0, "ex1")

TT, UU = 32, 48


def pairs(fmt, a):
    for p in range(8):
        P(fmt.format(T=v(TT + 2 * p, 2), A=v(a + 2 * p, 2), U=v(UU + 2 * p, 2)))


def singles(fmt):
    for r in range(16):
        P(fmt.format(T=v(TT + r), U=v(UU + r)))


def cvt(dst):
    for p in range(8):
        P("v_cvt_pk_bf16_f32 %s, %s, %s" % (v(dst + p), v(TT + 2 * p), v(TT + 2 * p + 1)))


def epi_gelu(b):
    a = ACC + 16 * b
    pairs("v_pk_mul_f32 {T}, {A}, {A}", a)
    pairs("v_pk_fma_f32 {T}, {T}, %s, %s op_sel:[0,1,0] op_sel_hi:[1,1,0]" % (v(KK, 2), v(KK, 2)), a)
    pairs("v_pk_mul_f32 {T}, {T}, {A}", a)
    singles("v_exp_f32 {T}, {T}")
    pairs("v_pk_fma_f32 {T}, {T}, %s, %s op_sel_hi:[1,0,0]" % (v(SD, 2), v(SD, 2)), a)
    singles("v_rcp_f32 {T}, {T}")
    pairs("v_pk_mul_f32 {T}, {T}, {A}", a)
    u = UU + 8 * (b & 1)
    cvt(u)
    P("s_add_u32 %s, %s, %d\ns_lshl_b32 %s, %s, 10\ns_add_u32 %s, %s, %s" % (
        s(T0), s(HB0), b, s(T0), s(T0), s(T0), s(T0), s(SH)))
    for h in range(2):
        P("buffer_store_dwordx4 %s, %s, %s, %s offen offset:%d sc1" % (v(u + 4 * h, 4), v(VH), s(SRD_WS, 4), s(T0), 512 * h))


def epi_phi(b, dst):
    a = ACC + 16 * b
    pairs("v_pk_mul_f32 {T}, {A}, %s op_sel_hi:[1,0]" % v(RL, 2), a)
    singles("v_exp_f32 {T}, {T}")
    pairs("v_pk_fma_f32 {A}, {A}, %s, 1.0 op_sel:[0,1,0] op_sel_hi:[1,1,0]" % v(SD, 2), a)
    for r in range(16):
        P("v_med3_f32 %s, %s, %s, 1.0" % (v(TT + r), v(TT + r), v(a + r)))
    pairs("v_pk_add_f32 {T}, {T}, %s" % s(EPS2, 2), a)
    cvt(dst)


def epi_lin(b, dst):
    a = ACC + 16 * b
    pairs("v_pk_mul_f32 {T}, {A}, %s op_sel:[0,1] op_sel_hi:[1,1]" % v(SD, 2), a)
    cvt(dst)


def flag_store(line_reg_expr):
    P("v_mov_b32 v26, %s\nv_mov_b32 v27, 0" % s(NONCE))
    P("s_mov_b64 exec, 1")
    P("buffer_store_dword v26, v27, %s, %s offen sc1" % (s(SRD_WS, 4), s(T0)))
    P("s_mov_b64 exec, -1")


def pass2():
    def rd(m):
        if m >= 64:
            return
        step, b = m >> 1, m & 1
        off = CH(step >> 2) - 88 * K + (step & 3) * 2048
        f = WR + (m % 8) * 4
        tr(f, WA + 4 + b, off, None)
        tr(f + 2, WA + 4 + b, off + 512, ("p2", m))
    for m in range(7):
        rd(m)
    for m in range(64):
        step, b = m >> 1, m & 1
        lg.wait(("p2", m))
        c = "0" if step == 0 else v(ACC + 16 * b, 16)
        P("v_mfma_f32_32x32x16_bf16 %s, %s, %s, %s" % (v(ACC + 16 * b, 16), v(WR + (m % 8) * 4, 4), v(XR + 4 * step, 4), c))
        rd(m + 7)
    P("v_lshlrev_b32 v27, 3, v0")
    P("v_add_u32 v27, 0x%x, v27" % L_EX2)
    P("s_barrier ; b11")
    for b in range(4):
        P("ds_read_b64 %s, v27 offset:%d" % (v(WR + 2 * b, 2), 512 * b))
        lg.add(("ex2", b))
    for b in range(4):
        lg.wait(("ex2", b))
        P("v_mfma_f32_32x32x8bf16_1k %s, %s, %s, %s" % (v(ACC + 16 * (b & 1), 16), v(WR + 2 * b, 2), v(XE, 2), v(ACC + 16 * (b & 1), 16)))


XRES, BRES, XF = 128, 136, 144
VO = 23
SO = 77


def resid_loads():
    P("v_and_b32 v28, 15, v0\nv_lshrrev_b32 v29, 4, v0\nv_lshlrev_b32 v29, 3, v29\nv_lshl_or_b32 %s, v28, 10, v29" % v(VO))
    P("s_lshl_b32 %s, %s, 2\ns_add_u32 %s, %s, %s\ns_lshl_b32 %s, %s, 14\ns_lshl_b32 %s, %s, 7\ns_add_u32 %s, %s, %s" % (
        s(SO), s(TB2), s(SO), s(SO), s(W), s(SO), s(SO), s(T1), s(CT), s(SO), s(SO), s(T1)))
    for t in range(4):
        P("buffer_load_dwordx2 %s, v29, %s, %s offen offset:%d" % (v(BRES + 2 * t, 2), s(SRD_B, 4), s(T1), 32 * t))
    for t in range(4):
        P("buffer_load_dwordx2 %s, %s, %s, %s offen offset:%d" % (v(XRES + 2 * t, 2), v(VO), s(SRD_X, 4), s(SO), 32 * t))


P("s_cmp_eq_u32 %s, 0" % s(TYPE))
P("s_cbranch_scc0 L_cB")
P("v_and_b32 v26, 31, v0\nv_lshrrev_b32 v27, 5, v0")
P("s_lshl_b32 %s, %s, 5" % (s(T0), s(W)))
P("v_add_u32 v26, %s, v26" % s(T0))
P("v_mul_u32_u24 v26, %d, v26" % TB_STR)
P("v_lshl_add_u32 v26, v27, 3, v26")
P("v_add_u32 v26, 0x%x, v26" % TB)
for b in range(4):
    u = UU + 8 * (b & 1)
    (epi_phi if b < 2 else epi_lin)(b, u)
    for q in range(4):
        P("ds_write_b64 v26, %s offset:%d" % (v(u + 2 * q, 2), 64 * b + 16 * q))
P("v_lshrrev_b32 v26, 2, v0\nv_mul_u32_u24 v26, %d, v26\nv_and_b32 v27, 3, v0\nv_lshl_add_u32 v26, v27, 3, v26" % TB_STR)
P("s_lshl_b32 %s, %s, 5\ns_add_u32 %s, %s, 0x%x" % (s(T0), s(W), s(T0), s(T0), TB))
P("v_add_u32 v26, %s, v26" % s(T0))
for r in range(4):
    P("v_mov_b32 %s, 0x3f803f80" % v(28 + r))
P("s_waitcnt lgkmcnt(0)")
P("s_barrier ; b10")
stamp(0, "A_b10")
for m in range(4):
    for o in range(2):
        f = ACC + 8 * m + 4 * o
        tr(f, 26, m * 32 * TB_STR + 128 * o, None)
        tr(f + 2, 26, (m * 32 + 16) * TB_STR + 128 * o, ("kv", m, o))
    if m == 1:
        pass
    if m >= 1:
        mm = m - 1
        lg.wait(("kv", mm, 1))
        P("v_mfma_f32_16x16x32_bf16 v[96:99], %s, %s, %s" % (v(ACC + 8 * mm, 4), v(ACC + 8 * mm + 4, 4), "0" if mm == 0 else "v[96:99]"))
        P("v_mfma_f32_16x16x32_bf16 v[100:103], %s, v[28:31], %s" % (v(ACC + 8 * mm, 4), "0" if mm == 0 else "v[100:103]"))
lg.wait(("kv", 3, 1))
P("v_mfma_f32_16x16x32_bf16 v[96:99], %s, %s, v[96:99]" % (v(ACC + 24, 4), v(ACC + 28, 4)))
P("v_mfma_f32_16x16x32_bf16 v[100:103], %s, v[28:31], v[100:103]" % v(ACC + 24, 4))
P("s_lshl_b32 %s, %s, 4\ns_add_u32 %s, %s, %s\ns_mul_i32 %s, %s, %d\ns_add_u32 %s, %s, 0x%x" % (
    s(T0), s(C_), s(T0), s(T0), s(I_), s(T0), s(T0), KVP_STR, s(T0), s(T0), WS_KVP))
P("s_lshl_b32 %s, %s, 10\ns_add_u32 %s, %s, %s" % (s(T1), s(W), s(T1), s(T1), s(T0)))
P("s_lshl_b32 %s, %s, 6\ns_add_u32 %s, %s, %s\ns_add_u32 %s, %s, 4096" % (s(T2), s(W), s(T2), s(T2), s(T0), s(T2), s(T2)))
P("v_lshlrev_b32 v26, 4, v0")
P("buffer_store_dwordx4 v[96:99], v26, %s, %s offen sc1" % (s(SRD_WS, 4), s(T1)))
P("s_mov_b32 exec_lo, 0x00010001\ns_mov_b32 exec_hi, 0x00010001")
P("buffer_store_dwordx4 v[100:103], v0, %s, %s offen sc1" % (s(SRD_WS, 4), s(T2)))
P("s_mov_b64 exec, -1")
stamp(0, "A_kv")
pass2()
stamp(0, "A_p2")
P("s_lshl_b32 %s, %s, 2\ns_add_u32 %s, %s, %s\ns_lshl_b32 %s, %s, 5\ns_add_u32 %s, %s, %s\ns_lshl_b32 %s, %s, 2\ns_add_u32 %s, %s, 0x%x" % (
    s(T0), s(C_), s(T0), s(T0), s(W), s(T0), s(T0), s(T0), s(T0), s(I_), s(T0), s(T0), s(T0), s(T0), WS_FLAGS + FL_KV * 128))
P("s_waitcnt vmcnt(0)")
flag_store(None)
resid_loads()
for b in range(2):
    epi_gelu(b)
P("s_mov_b32 %s, 0x%x" % (s(T2), WS_FLAGS + FL_HA * 128))
stamp(0, "A_e2")
P("s_branch L_c2")
P.label("L_cB")
if DIAG:
    nstamp[0] -= 4
P("s_cmp_ge_u32 %s, 3" % s(C_))
P("s_cbranch_scc1 L_cB1")
epi_gelu(0)
P.label("L_cB1")
epi_gelu(1)
P("s_barrier ; b10")
stamp(0, "B_b10")
epi_gelu(2)
epi_gelu(3)
stamp(0, "B_e1")
pass2()
stamp(0, "B_p2")
resid_loads()
P("s_lshl_b32 %s, %s, 12\ns_add_u32 %s, %s, 0x%x" % (s(T0), s(W), s(T0), s(T0), L_PQ))
P("v_lshl_add_u32 v26, v0, 4, %s" % s(T0))
for b in range(2):
    epi_phi(b, UU + 8 * b)
    for h in range(2):
        P("ds_write_b128 v26, %s offset:%d" % (v(UU + 8 * b + 4 * h, 4), (2 * b + h) * 1024))
P("s_waitcnt lgkmcnt(0)")
P("s_barrier ; b12")
P("s_mov_b32 %s, 0x%x" % (s(T2), WS_FLAGS + FL_HB * 128))
stamp(0, "B_e2")
P.label("L_c2")
AY, AS, AR = 64, 80, 96
CUR, NXT, VA, FD, VF, VF32 = 12, 16, 20, 21, 22, 24
SA, SST, SEN, SFL, IT = 72, 73, 74, 75, 76
SB0, SA0, SO0, SBASE, SFHB = 68, 69, 70, 78, 79
P("s_lshl_b32 %s, %s, 2\ns_add_u32 %s, %s, %s\ns_lshl_b32 %s, %s, 5\ns_add_u32 %s, %s, %s\ns_lshl_b32 %s, %s, 2\ns_add_u32 %s, %s, %s" % (
    s(T0), s(I_), s(T0), s(T0), s(W), s(T0), s(T0), s(T0), s(T0), s(C_), s(T0), s(T0), s(T0), s(T0), s(T2)))
P("s_waitcnt vmcnt(0)")
flag_store(None)
stamp(0, "hflag")
for t in range(4):
    for h in range(2):
        P("v_lshlrev_b32 %s, 16, %s" % (v(AY + 4 * t + 2 * h), v(BRES + 2 * t + h)))
        P("v_and_b32 %s, 0xffff0000, %s" % (v(AY + 4 * t + 2 * h + 1), v(BRES + 2 * t + h)))
        P("v_lshlrev_b32 %s, 16, %s" % (v(XF + 4 * t + 2 * h), v(XRES + 2 * t + h)))
        P("v_and_b32 %s, 0xffff0000, %s" % (v(XF + 4 * t + 2 * h + 1), v(XRES + 2 * t + h)))
P("v_lshrrev_b32 v26, 5, v0\nv_lshlrev_b32 v26, 4, v26\nv_bfe_u32 v27, v0, 2, 3\nv_add_u32 v26, v26, v27\nv_lshlrev_b32 v26, 7, v26")
P("v_bfe_u32 v27, v0, 3, 2\nv_lshl_or_b32 v26, v27, 5, v26\nv_and_b32 v27, 3, v0\nv_lshl_or_b32 %s, v27, 3, v26" % v(CUR))
for t in range(1, 4):
    P("v_xor_b32 %s, %d, %s" % (v(CUR + t), 32 * t, v(CUR)))
for t in range(4):
    P("v_add_u32 %s, 0x8000, %s" % (v(NXT + t), v(CUR + t)))
    P("v_mov_b32 %s, %s" % (v(28 + t), v(CUR + t)))
P("v_lshlrev_b32 %s, 4, v0" % v(VA))
P("v_and_b32 %s, 31, v0\nv_lshlrev_b32 %s, 2, %s\nv_and_b32 %s, 28, %s" % (v(VF32), v(VF32), v(VF32), v(VF), v(VF32)))
P("s_lshl_b32 %s, %s, 2\ns_add_u32 %s, %s, %s" % (s(T3), s(TB2), s(T3), s(T3), s(W)))
P("s_mul_i32 %s, %s, %d\ns_add_u32 %s, %s, 0x%x" % (s(SBASE), s(T3), TG_STR, s(SBASE), s(SBASE), WS_HA))
P("s_lshr_b32 %s, %s, 1\ns_lshl_b32 %s, %s, 7\ns_add_u32 %s, %s, 0x%x" % (
    s(SFHB), s(T3), s(SFHB), s(SFHB), s(SFHB), s(SFHB), WS_FLAGS + FL_HB * 128))
seg_regs(SBASE, 1024, SB0, SA0, SO0, 27 * K, 43 * K)
P("s_mov_b32 %s, %s\ns_mov_b32 %s, %s\ns_add_u32 %s, %s, %d\ns_mov_b32 %s, %s" % (
    s(SA), s(SB0), s(SST), s(SBASE), s(SEN), s(SBASE), 27 * K, s(SFL), s(SFHB)))
FLOAD = "buffer_load_dword %s, %s, %s, %s offen sc1" % (v(FD), v(VF), s(SRD_WS, 4), s(SFL))
spin("L_hb", FLOAD, FD)
stamp(0, "hb_seen")
vm = Q("vmcnt", 63)


def aload(p):
    P("buffer_load_dwordx4 %s, %s, %s, %s offen sc1" % (v(AR + 4 * (p % 8), 4), v(VA), s(SRD_WS, 4), s(SA)))
    vm.add(("a", p))
    P("s_add_u32 %s, %s, 1024\ns_cmp_eq_u32 %s, %s\ns_cselect_b32 %s, %s, %s" % (
        s(SA), s(SA), s(SA), s(SEN), s(SA), s(SST), s(SA)))


def wrd(m, mode):
    p, t = m >> 2, m & 3
    if mode == "loop":
        a, off = (CUR + t, p * 4 * K) if p < 8 else (NXT + t, (p - 8) * 4 * K)
    else:
        if p >= 59:
            return
        so = slot_of(p)
        if so >= L_E:
            a, off = NXT + t, so - L_E
        elif so < 64 * K:
            a, off = 28 + t, so
        else:
            a, off = CUR + t, so - 64 * K
    f = WR + (m % 8) * 4
    tr(f, a, off, None)
    tr(f + 2, a, off + 1024, ("w2", m))


def step2(p, mode, acc, first=False):
    vm.wait(("a", p))
    for t in range(4):
        m = 4 * p + t
        lg.wait(("w2", m))
        c = "0" if first else v(acc + 4 * t, 4)
        P("v_mfma_f32_16x16x32_bf16 %s, %s, %s, %s" % (v(acc + 4 * t, 4), v(WR + (m % 8) * 4, 4), v(AR + 4 * (p % 8), 4), c))
        nm = m + 7
        np_ = nm >> 2
        if (nm & 3) == 0 and ((mode == "loop" and np_ % 4 == 0) or (mode == "abs" and np_ in (43, 47, 51, 55))):
            P("s_barrier ; beta")
        wrd(nm, mode)


for p in range(8):
    if p == 3:
        P(FLOAD)
        vm.add("f")
    aload(p)
P("s_mov_b32 %s, 0" % s(IT))
P("s_barrier ; beta0")
for m in range(7):
    wrd(m, "loop")
P.label("L_y")
vm0 = list(vm.q)
lg0 = list(lg.q)
for j in range(8):
    step2(j, "loop", AY)
    if j == 3:
        vm.wait("f")
        P("v_cmp_ne_u32 vcc, %s, %s" % (s(NONCE), v(FD)))
        P("s_cbranch_vccz L_fl_x")
        spin("L_fl", FLOAD, FD)
        P("s_cmp_eq_u32 %s, 2" % s(IT))
        P("s_cbranch_scc0 L_sw1")
        P("s_mov_b32 %s, %s\ns_add_u32 %s, %s, %d\ns_add_u32 %s, %s, %d" % (
            s(SA), s(SA0), s(SST), s(SBASE), 27 * K, s(SEN), s(SBASE), 43 * K))
        P.label("L_sw1")
        P("s_cmp_eq_u32 %s, 4" % s(IT))
        P("s_cbranch_scc0 L_sw2")
        P("s_mov_b32 %s, %s\ns_add_u32 %s, %s, %d\ns_add_u32 %s, %s, %d" % (
            s(SA), s(SO0), s(SST), s(SBASE), 43 * K, s(SEN), s(SBASE), 59 * K))
        P.label("L_sw2")
        P("s_cmp_eq_u32 %s, 1" % s(IT))
        P("s_cselect_b32 %s, %d, 0" % (s(SFL), (FL_HA - FL_HB) * 128))
        P("s_add_u32 %s, %s, %s" % (s(SFL), s(SFL), s(SFHB)))
        P("s_cmp_eq_u32 %s, 3" % s(IT))
        P("s_cbranch_scc0 L_sw3")
        P("s_lshr_b32 %s, %s, 1\ns_lshl_b32 %s, %s, 7\ns_add_u32 %s, %s, 0x%x" % (
            s(SFL), s(TB2), s(SFL), s(SFL), s(SFL), s(SFL), WS_FLAGS + FL_O * 128))
        P("v_mov_b32 %s, %s" % (v(VF), v(VF32)))
        P.label("L_sw3")
        P(FLOAD)
        vm.add("f")
    aload(j + 8)
P("s_add_u32 %s, %s, 1" % (s(IT), s(IT)))
P("s_add_u32 %s, %s, 1\ns_and_b32 %s, %s, 3\ns_lshl_b32 %s, %s, 15" % (s(T3), s(IT), s(T3), s(T3), s(T3), s(T3)))
P("s_cmp_eq_u32 %s, 4" % s(IT))
P("s_cselect_b32 %s, 0x%x, %s" % (s(T3), L_E, s(T3)))
for t in range(4):
    P("v_mov_b32 %s, %s" % (v(CUR + t), v(NXT + t)))
    P("v_add_u32 %s, %s, %s" % (v(NXT + t), s(T3), v(28 + t)))
P("s_cmp_lt_u32 %s, 5" % s(IT))
P("s_cbranch_scc1 L_y")
sh = lambda q, d: [((t[0], t[1] - d) if isinstance(t, tuple) else t) for t in q]
assert sh(vm.q, 8) == vm0, (vm.q, vm0)
assert sh(lg.q, 32) == lg0, (lg.q, lg0)
vm.q = sh(vm0, -40)
lg.q = sh(lg0, -160)
stamp(0, "yloop")
for t in range(4):
    P("v_mov_b32 %s, %s" % (v(NXT + t), v(CUR + t)))
    P("v_add_u32 %s, 0x10000, %s" % (v(CUR + t), v(28 + t)))
for p in range(40, 59):
    step2(p, "abs", AY if p < 43 else AS, first=(p == 43))
    if p + 8 < 59:
        aload(p + 8)
stamp(0, "sdone")
P("s_mov_b32 %s, 0x%x\ns_mov_b32 %s, 0x%x" % (s(74), f2u(-LOG2E), s(75), f2u(-LOG2E)))
pairs("v_pk_mul_f32 {T}, {A}, %s" % s(74, 2), AY)
singles("v_exp_f32 {T}, {T}")
pairs("v_pk_add_f32 {T}, {T}, 1.0 op_sel_hi:[1,0]", AY)
singles("v_rcp_f32 {T}, {T}")
pairs("v_pk_mul_f32 {T}, {T}, {A}", AY)
for p in range(8):
    P("v_pk_fma_f32 %s, %s, %s, %s" % (v(TT + 2 * p, 2), v(TT + 2 * p, 2), v(AS + 2 * p, 2), v(XF + 2 * p, 2)))
cvt(UU)
for t in range(4):
    P("buffer_store_dwordx2 %s, %s, %s, %s offen offset:%d %s" % (v(UU + 2 * t, 2), v(VO), s(SRD_A, 4), s(SO), 32 * t, OPT["outaux"]))
P("s_or_b32 %s, s2, %s" % (s(T0), s(W)))
P("s_cmp_eq_u32 %s, 0" % s(T0))
P("s_cbranch_scc0 L_cend")
flag_store(None)
P.label("L_cend")


def dump(role):
    if not DIAG:
        return
    P("s_waitcnt vmcnt(0)")
    stamp(role, "end")
    for n in range(16):
        P("v_mov_b32 %s, %s" % (v(32 + n), s(80 + n) if n < nstamp[role] else "0"))
    P("s_lshl_b32 %s, s2, 3\ns_add_u32 %s, %s, %s\ns_lshl_b32 %s, %s, 6\ns_add_u32 %s, %s, 0x%x" % (
        s(T0), s(T0), s(T0), s(W), s(T0), s(T0), s(T0), s(T0), WS_DIAG + role * 256))
    P("v_mov_b32 v26, 0")
    P("s_mov_b64 exec, 1")
    for n in range(4):
        P("buffer_store_dwordx4 %s, v26, %s, %s offen offset:%d" % (v(32 + 4 * n, 4), s(SRD_WS, 4), s(T0), 16 * n))


dump(0)
P("s_endpgm")

P.label("L_loader")
lg = Q("lgkmcnt", 15)
vm = Q("vmcnt", 63)
VX, VP1, VP2, VW2, VB1, VB2, LWA, LWB, SEL, CS = 1, 2, 3, 4, 5, 6, 7, 8, 12, 16
RS1, RS2, SX0, SW0, DCOL, SP20, SM = 72, 73, 74, 75, 76, 77, 78
stamp(1, "start")
P("s_setprio 3")
P("s_cmp_eq_u32 %s, 0" % s(TYPE))
sel2(RS1, 3072, 2752)
sel2(RS2, 2752, 3072)
sel2(DCOL, 1024, 128)
P("v_lshrrev_b32 v20, 3, v0\nv_and_b32 v21, 7, v0\nv_lshrrev_b32 v22, 4, v0")
P("s_and_b32 %s, %s, 1\ns_lshl_b32 %s, %s, 2" % (s(T0), s(W), s(T0), s(T0)))
P("v_add_u32 v23, %s, v22\nv_xor_b32 v23, v23, v21\nv_lshlrev_b32 v23, 4, v23\nv_lshl_or_b32 %s, v20, 10, v23" % (s(T0), v(VX)))
P("v_and_b32 v23, 1, v22\nv_lshlrev_b32 v23, 2, v23\nv_xor_b32 v23, v23, v21\nv_lshlrev_b32 v23, 4, v23")
P("v_mad_u32_u24 %s, v20, %s, v23\nv_mad_u32_u24 %s, v20, %s, v23" % (v(VP1), s(RS1), v(VP2), s(RS2)))
hblock0(79)
HB0L = 79
P("s_lshl_b32 %s, %s, 4\ns_add_u32 %s, %s, %s\ns_lshl_b32 %s, %s, 13" % (s(SX0), s(I_), s(SX0), s(SX0), s(W), s(SX0), s(SX0)))
P("s_lshl_b32 %s, %s, 6" % (s(T0), s(HB0L)))
P("s_lshl_b32 %s, %s, 7" % (s(T1), s(C_)))
P("s_add_u32 %s, %s, 1024" % (s(T2), s(T1)))
P("s_cmp_eq_u32 %s, 0" % s(TYPE))
P("s_cselect_b32 %s, %s, %s\ns_cselect_b32 %s, %s, %s" % (s(SW0), s(T2), s(T0), s(SP20), s(T0), s(T1)))
P("s_lshl_b32 %s, %s, 3" % (s(T3), s(W)))
P("s_mul_i32 %s, %s, %s\ns_add_u32 %s, %s, %s" % (s(T0), s(T3), s(RS1), s(SW0), s(SW0), s(T0)))
P("s_mul_i32 %s, %s, %s\ns_add_u32 %s, %s, %s" % (s(T0), s(T3), s(RS2), s(SP20), s(SP20), s(T0)))
P("s_lshl_b32 %s, %s, 10" % (s(SM), s(W)))
P("s_waitcnt lgkmcnt(0)")
srd(SRD_X, P_X, 2 * K * K)
P("s_cmp_eq_u32 %s, 0" % s(TYPE))
SZQ, SZ1 = 512 * 3072, 512 * 2752
P("s_cselect_b32 %s, %s, %s\ns_cselect_b32 %s, %s, %s\ns_mov_b32 %s, 0x20000" % (
    s(SRD_P1), s(P_QKV), s(P_W1), s(SRD_P1 + 1), s(P_QKV + 1), s(P_W1 + 1), s(SRD_P1 + 3)))
sel2(SRD_P1 + 2, SZQ, SZ1)
P("s_load_dword %s, %s, 0" % (s(NONCE), s(P_WS, 2)))


def dma(voff, srdr, soff, m0c, tag):
    P("buffer_load_dwordx4 %s, %s, %s offen lds" % (v(voff), s(srdr, 4), s(soff)))
    vm.add(tag)


def ks_reg(q):
    P("s_add_u32 %s, %s, %d\ns_and_b32 %s, %s, 7" % (s(T0), s(RHO), q, s(T0), s(T0)))


def stage(q):
    sl = (q % 3) * 32 * K
    ks_reg(q)
    P("s_lshl_b32 %s, %s, 7\ns_add_u32 %s, %s, %s" % (s(T1), s(T0), s(T1), s(T1), s(SX0)))
    P("s_lshl_b32 %s, %s, 6\ns_mul_i32 %s, %s, %s\ns_add_u32 %s, %s, %s" % (s(T0), s(T0), s(T0), s(T0), s(RS1), s(T0), s(T0), s(SW0)))
    for m in range(4):
        P("s_add_u32 m0, %s, %d" % (s(SM), sl + 4 * K * m))
        if m:
            P("s_add_u32 %s, %s, 32768" % (s(T1), s(T1)))
        dma(VX, SRD_X, T1, None, ("st", q))
    for h in range(2):
        if h:
            P("s_lshl_b32 %s, %s, 5\ns_add_u32 %s, %s, %s" % (s(T2), s(RS1), s(T0), s(T0), s(T2)))
        P("s_add_u32 m0, %s, %d" % (s(SM), sl + 16 * K + 4 * K * h))
        P("s_add_u32 %s, %s, %s" % (s(T1), s(T0), s(DCOL)))
        dma(VP1, SRD_P1, T0, None, ("st", q))
        P("s_add_u32 m0, %s, %d" % (s(SM), sl + 24 * K + 4 * K * h))
        dma(VP1, SRD_P1, T1, None, ("st", q))


def chunk(q):
    ks_reg(q)
    P("s_lshl_b32 %s, %s, 6\ns_mul_i32 %s, %s, %s\ns_add_u32 %s, %s, %s" % (s(T0), s(T0), s(T0), s(T0), s(RS2), s(T0), s(T0), s(SP20)))
    P("s_add_u32 m0, %s, %d" % (s(SM), CH(q)))
    P("s_lshl_b32 %s, %s, 5" % (s(T2), s(RS2)))
    dma(VP2, SRD_P2, T0, None, "ch")
    P("s_add_u32 m0, %s, %d" % (s(SM), CH(q) + 4 * K))
    P("s_add_u32 %s, %s, %s" % (s(T0), s(T0), s(T2)))
    dma(VP2, SRD_P2, T0, None, "ch")


LB0, LA0, LO0, LBL, LAL, LOL = 36, 37, 38, 39, 42, 43


def page(p):
    if p < 27:
        r0, lim, n, ln, sr = LB0, LBL, p, 27, SRD_W2
    elif p < 43:
        r0, lim, n, ln, sr = LA0, LAL, p - 27, 16, SRD_W2
    else:
        r0, lim, n, ln, sr = LO0, LOL, p - 43, 16, SRD_WO
    P("s_add_u32 %s, %s, %d" % (s(T0), s(r0), n * 32768))
    P("s_cmp_ge_u32 %s, %s" % (s(T0), s(lim)))
    P("s_cselect_b32 %s, %d, 0" % (s(T1), ln * 32768))
    P("s_add_u32 m0, %s, %d" % (s(SM), slot_of(p)))
    P("s_sub_u32 %s, %s, %s" % (s(T0), s(T0), s(T1)))
    dma(VW2, sr, T0, None, ("pg", p))


for q in range(3):
    stage(q)
stamp(1, "issued")
P("s_cmp_eq_u32 %s, 0" % s(TYPE))
P("s_cselect_b32 %s, %s, %s\ns_cselect_b32 %s, %s, %s\ns_mov_b32 %s, 0x20000" % (
    s(SRD_P2), s(P_W1), s(P_QKV), s(SRD_P2 + 1), s(P_W1 + 1), s(P_QKV + 1), s(SRD_P2 + 3)))
sel2(SRD_P2 + 2, SZ1, SZQ)
srd(SRD_WS, P_WS, WS_SIZE)
srd(SRD_W2, P_W2, 1376 * 1024)
srd(SRD_WO, P_WO, 512 * 1024)
srd(SRD_A, P_B1, 2752)
P("v_lshrrev_b32 v23, 5, v0\nv_lshlrev_b32 v23, 20, v23\nv_and_b32 v24, 31, v0\nv_lshl_or_b32 v23, v24, 1, v23")
P("s_add_u32 %s, %s, %s\ns_lshl_b32 %s, %s, 6" % (s(T0), s(HB0L), s(W), s(T0), s(T0)))
P("s_cmp_eq_u32 %s, 0\ns_cselect_b32 %s, 0x100000, %s" % (s(TYPE), s(T1), s(T0)))
P("s_cselect_b32 %s, %s, 0x100000" % (s(T2), s(T0)))
P("s_cmp_lt_u32 %s, 2\ns_cselect_b32 %s, %s, 0x100000" % (s(W), s(T2), s(T2)))
P("buffer_load_ushort %s, v23, %s, %s offen" % (v(VB1), s(SRD_A, 4), s(T1)))
vm.add("b1")
P("buffer_load_ushort %s, v23, %s, %s offen" % (v(VB2), s(SRD_A, 4), s(T2)))
vm.add("b2")
P("v_lshrrev_b32 v23, 1, v21\nv_xor_b32 v23, v23, v22\nv_and_b32 v24, 1, v0\nv_lshl_or_b32 v23, v23, 1, v24\nv_lshlrev_b32 v23, 4, v23")
P("v_lshl_or_b32 %s, v20, 10, v23" % v(VW2))
waddr(LWA, 23, 24)
P("s_and_b32 %s, %s, 1\ns_lshl_b32 %s, %s, 6" % (s(T0), s(W), s(T0), s(T0)))
P("v_xor_b32 %s, %s, %s" % (v(LWA), s(T0), v(LWA)))
P("s_lshr_b32 %s, %s, 1" % (s(T0), s(W)))
P("s_lshl_b32 %s, %s, 13\ns_add_u32 %s, %s, %d" % (s(T1), s(T0), s(T1), s(T1), 16 * K))
P("v_add_u32 v9, %s, %s" % (s(T1), v(LWA)))
P("v_add_u32 v10, 0x10000, v9")
P("s_lshl_b32 %s, %s, 15\ns_add_u32 %s, %s, %d" % (s(T1), s(T0), s(T1), s(T1), 96 * K))
P("v_add_u32 %s, %s, %s" % (v(LWB), s(T1), v(LWA)))
P("s_cmp_eq_u32 %s, 0" % s(T0))
sel2(T1, 120 * K, 88 * K)
P("v_add_u32 v11, %s, %s" % (s(T1), v(LWA)))
P("v_and_b32 v23, 15, v0\nv_lshlrev_b32 v24, 2, v22\nv_cmp_eq_u32 vcc, v23, v24\nv_mov_b32 v23, 0x3f803f80")
for r in range(4):
    P("v_cndmask_b32 %s, 0, v23, vcc" % v(SEL + r))
P("s_lshl_b32 %s, %s, 13\ns_lshl_b32 %s, %s, 7\ns_add_u32 %s, %s, %s" % (s(T2), s(W), s(T1), s(CT), s(T2), s(T2), s(T1)))
seg_regs(T2, 32768, LB0, LA0, LO0, 27 * 32768, 0)
P("s_add_u32 %s, %s, %d\ns_add_u32 %s, %s, %d\ns_add_u32 %s, %s, %d" % (
    s(LBL), s(T2), 27 * 32768, s(LAL), s(T2), 43 * 32768, s(LOL), s(T2), 16 * 32768))
P("s_waitcnt lgkmcnt(0)")
P("s_add_u32 %s, %s, 1" % (s(NONCE), s(NONCE)))
vm.wait(("st", 0))
P("s_barrier ; b0")
stamp(1, "b0")
FR = 32


def cs_reads(a, off):
    for t in range(4):
        tr(FR + 4 * t, a, off + t * 2048, None)
        tr(FR + 4 * t + 2, a, off + t * 2048 + 512, ("cs", t))


def cs_mfma(first):
    for t in range(4):
        lg.wait(("cs", t))
        P("v_mfma_f32_16x16x32_bf16 %s, %s, %s, %s" % (v(CS, 4), v(SEL, 4), v(FR + 4 * t, 4), "0" if (first and t == 0) else v(CS, 4)))


def ex_write(base, vb):
    P("v_lshlrev_b32 v23, 3, v0")
    P("s_lshl_b32 %s, %s, 9\ns_add_u32 %s, %s, 0x%x" % (s(T0), s(W), s(T0), s(T0), base))
    P("v_add_u32 v23, %s, v23" % s(T0))
    P("v_cvt_pk_bf16_f32 v24, %s, %s" % (v(CS), v(CS)))
    P("v_lshlrev_b32 v24, 16, v24\nv_sub_f32 v25, %s, v24\nv_cvt_pk_bf16_f32 v24, v24, v25" % v(CS))
    P("v_mov_b32 v25, %s" % v(vb))
    P("ds_write_b64 v23, v[24:25]")
    P("s_waitcnt lgkmcnt(0)")


for st in range(8):
    sl = st % 3
    cs_reads(10 if sl == 2 else 9, (sl % 2) * 32 * K)
    if 1 <= st <= 5:
        stage(st + 2)
    if st >= 6:
        for q in range(4 * (st - 6), 4 * (st - 6) + 4):
            chunk(q)
    cs_mfma(st == 0)
    if st < 7:
        vm.wait(("st", st + 1))
    else:
        ex_write(L_EX1, VB1)
    P("s_barrier ; b%d" % (st + 1))
stamp(1, "b8")
for p in range(13):
    page(p)
vm.wait("ch")
P("s_barrier ; b10")
stamp(1, "b10")
P("s_cmp_eq_u32 %s, 0" % s(TYPE))
P("s_cbranch_scc1 L_l1")
for p in range(13, 22):
    page(p)
P.label("L_l1")
for n in range(4):
    cs_reads(LWB if n < 3 else 11, n * 8 * K if n < 3 else 0)
    cs_mfma(n == 0)
ex_write(L_EX2, VB2)
P("s_barrier ; b11")
stamp(1, "b11")
P("s_cmp_eq_u32 %s, 0" % s(TYPE))
P("s_cbranch_scc0 L_l2")
for p in range(13, 22):
    page(p)
P.label("L_l2")
for p in list(range(22, 32)) + [40, 41, 42]:
    page(p)
P("s_cmp_eq_u32 %s, 0" % s(TYPE))
P("s_cbranch_scc0 L_lB")
P("s_waitcnt vmcnt(0)")
if DIAG:
    for n in range(3):
        stamp(1, "pad")
    nstamp[1] -= 3
P("s_branch L_l3")
P.label("L_lB")
P("s_barrier ; b12")
P("s_lshl_b32 %s, %s, 2\ns_add_u32 %s, %s, %s\ns_lshl_b32 %s, %s, 7\ns_add_u32 %s, %s, 0x%x" % (
    s(T0), s(C_), s(T0), s(T0), s(W), s(T0), s(T0), s(T0), s(T0), WS_FLAGS + FL_KV * 128))
P("v_and_b32 v23, 15, v0\nv_lshlrev_b32 v24, 2, v23")
spin("L_kv", "buffer_load_dword v25, v24, %s, %s offen sc1" % (s(SRD_WS, 4), s(T0)), 25)
stamp(1, "kv_seen")
P("s_mul_i32 %s, %s, %d\ns_add_u32 %s, %s, 0x%x" % (s(T0), s(C_), 16 * KVP_STR, s(T0), s(T0), WS_KVP))
P("s_lshl_b32 %s, %s, 6\ns_add_u32 %s, %s, %s\ns_add_u32 %s, %s, 4096" % (s(T1), s(W), s(T1), s(T1), s(T0), s(T1), s(T1)))
P("s_add_u32 %s, %s, %s" % (s(T0), s(T0), s(SM)))
P("v_lshrrev_b32 v24, 2, v0\nv_mul_u32_u24 v25, %d, v24\nv_and_b32 v26, 3, v0\nv_lshl_add_u32 v25, v26, 4, v25" % KVP_STR)
P("v_lshlrev_b32 v27, 4, v0")
P("buffer_load_dwordx4 v[28:31], v25, %s, %s offen sc1" % (s(SRD_WS, 4), s(T1)))
for n in range(16):
    P("buffer_load_dwordx4 %s, v27, %s, %s offen sc1" % (v(64 + 4 * n, 4), s(SRD_WS, 4), s(T0)))
    if n < 15:
        P("s_add_u32 %s, %s, %d" % (s(T0), s(T0), KVP_STR))
P("s_add_u32 %s, %s, 0x%x" % (s(T0), s(SM), L_PQ))
P("v_add_u32 v27, %s, v27" % s(T0))
for tb in range(4):
    P("ds_read_b128 %s, v27 offset:%d" % (v(128 + 4 * tb, 4), tb * 4096))
P("s_add_u32 %s, %s, 0x%x" % (s(T0), s(SM), L_KT))
P("v_and_b32 v20, 1, v26\nv_lshlrev_b32 v20, 4, v20\nv_lshrrev_b32 v26, 1, v26\nv_lshl_or_b32 v20, v26, 3, v20")
P("v_lshl_or_b32 v20, v24, 5, v20\nv_add_u32 v20, %s, v20" % s(T0))
P("v_bfe_u32 v21, v0, 4, 1\nv_lshlrev_b32 v21, 4, v21\nv_lshrrev_b32 v26, 5, v0\nv_lshl_or_b32 v21, v26, 3, v21")
P("v_lshl_or_b32 v21, v23, 5, v21\nv_add_u32 v21, %s, v21" % s(T0))
P("v_and_b32 v22, 31, v0\nv_lshlrev_b32 v22, 5, v22\nv_lshl_or_b32 v22, v26, 4, v22\nv_add_u32 v22, %s, v22" % s(T0))
voffH(VX, 24, 25)
P("s_waitcnt vmcnt(16)")
for r in (4, 8):
    for n in range(4):
        P("v_add_f32_dpp %s, %s, %s row_ror:%d row_mask:0xf bank_mask:0xf" % (v(28 + n), v(28 + n), v(28 + n), r))
for op in ("v_permlane16_swap_b32", "v_permlane32_swap_b32"):
    for n in range(4):
        P("v_mov_b32 %s, %s" % (v(32 + n), v(28 + n)))
    for n in range(4):
        P("%s %s, %s" % (op, v(28 + n), v(32 + n)))
    for n in range(4):
        P("v_add_f32 %s, %s, %s" % (v(28 + n), v(28 + n), v(32 + n)))
P("v_cvt_pk_bf16_f32 v28, v28, v29\nv_cvt_pk_bf16_f32 v29, v30, v31")
P("ds_write_b64 v20, v[28:29] offset:512")
for n in range(1, 16):
    P("s_waitcnt vmcnt(%d)" % (15 - n))
    for h in range(2):
        P("v_pk_add_f32 %s, %s, %s" % (v(64 + 2 * h, 2), v(64 + 2 * h, 2), v(64 + 4 * n + 2 * h, 2)))
P("v_cvt_pk_bf16_f32 v64, v64, v65\nv_cvt_pk_bf16_f32 v65, v66, v67")
P("ds_write_b64 v21, v[64:65]")
P("s_waitcnt lgkmcnt(0)")
P("ds_read_b128 v[28:31], v22")
P("s_lshl_b32 %s, %s, 3\ns_mul_i32 %s, %s, %d" % (s(T0), s(I_), s(T0), s(T0), TG_STR))
P("s_lshl_b32 %s, %s, 11\ns_add_u32 %s, %s, %s" % (s(T1), s(C_), s(T0), s(T0), s(T1)))
P("s_lshl_b32 %s, %s, 9\ns_add_u32 %s, %s, %s\ns_add_u32 %s, %s, 0x%x" % (s(T1), s(W), s(T0), s(T0), s(T1), s(T0), s(T0), WS_HA + 43 * K))
P("s_waitcnt lgkmcnt(0)")
stamp(1, "kv_tab")
for tb in range(4):
    P("v_mfma_f32_32x32x16_bf16 %s, v[28:31], %s, 0" % (v(64 + 16 * tb, 16), v(128 + 4 * tb, 4)))
for tb in range(4):
    d = 64 + 16 * tb
    P("v_add_f32 %s, 0x%x, %s" % (v(d + 8), f2u(1e-6), v(d + 8)))
    P("v_rcp_f32 %s, %s" % (v(d + 8), v(d + 8)))
    for p in range(4):
        P("v_pk_mul_f32 %s, %s, %s op_sel_hi:[1,0]" % (v(d + 2 * p, 2), v(d + 2 * p, 2), v(d + 8, 2)))
    for p in range(4):
        P("v_cvt_pk_bf16_f32 %s, %s, %s" % (v(d + 12 + p), v(d + 2 * p), v(d + 2 * p + 1)))
    P("buffer_store_dwordx4 %s, %s, %s, %s offen sc1" % (v(d + 12, 4), v(VX), s(SRD_WS, 4), s(T0)))
    if tb < 3:
        P("s_add_u32 %s, %s, %d" % (s(T0), s(T0), 2 * TG_STR))
stamp(1, "o_st")
P.label("L_l3")
vm.q = ["o"]
late = {2: range(32, 36), 3: range(36, 40), 4: range(43, 47), 5: range(47, 51), 6: range(51, 55), 7: range(55, 59)}
need_by = {8: 35, 9: 39, 11: 46, 12: 50, 13: 54, 14: 58}
OFL = OPT.get("oflag", 5)
for g in range(15):
    if g in need_by:
        vm.wait(("pg", need_by[g]))
    if g == OFL:
        vm.wait("o")
        P("s_cmp_eq_u32 %s, 0" % s(TYPE))
        P("s_cbranch_scc1 L_l4")
        P("s_lshl_b32 %s, %s, 5\ns_lshl_b32 %s, %s, 2\ns_add_u32 %s, %s, %s\ns_add_u32 %s, %s, %s\ns_lshl_b32 %s, %s, 2\ns_add_u32 %s, %s, 0x%x" % (
            s(T0), s(I_), s(T1), s(C_), s(T0), s(T0), s(T1), s(T0), s(T0), s(W), s(T0), s(T0), s(T0), s(T0), WS_FLAGS + FL_O * 128))
        flag_store(None)
        P.label("L_l4")
        stamp(1, "oflag")
    P("s_barrier ; beta%d" % g)
    if g == 0:
        stamp(1, "beta0")
    if g in late:
        for p in late[g]:
            page(p)
dump(1)
P.label("L_end")
P("s_endpgm")
P.label("L_codeend")

body = P.finish()
hdr = """; Fused LayerNorm + linear attention + GELU FFN block, one persistent launch (256 workgroups, one per CU).
; Generated by work/gen.py.  Waves 0-3 compute, waves 4-7 stream operands into LDS.
; @launch grid=(256,1,1) block=(512,1,1) lds=163840
.amdgcn_target "amdgcn-amd-amdhsa--gfx950"
.text
.globl {k}
.p2align 8
.type {k},@function
{k}:
""".format(k=KNAME)
tail = """
.section .rodata,"a"
.p2align 6
.amdhsa_kernel {k}
  .amdhsa_next_free_vgpr 256
  .amdhsa_next_free_sgpr 102
  .amdhsa_accum_offset 256
  .amdhsa_group_segment_fixed_size 0
  .amdhsa_kernarg_size 88
  .amdhsa_user_sgpr_count 2
  .amdhsa_user_sgpr_kernarg_segment_ptr 1
  .amdhsa_system_sgpr_workgroup_id_x 1
  .amdhsa_float_denorm_mode_32 3
.end_amdhsa_kernel
""".format(k=KNAME)
sys.stdout.write(hdr + body + tail)
sys.stderr.write("pads %d stamps %s\n" % (P.npad, nstamp))
```

```python
import sys, os, struct, math
from asmlib import Prog, v, s

KNAME = "recurrent_scan__linear_attn_block__dense_activation_gelu__prompt_kernel"
OPT = dict(diag=0, outaux="", map1=24, spin=16, codepf=1, ldfirst=1, prio=3,
           nA9=4, nA10=9, nB10=10, mf=52, stdiag=0)
for a in sys.argv[1:]:
    k, val = a.split("=")
    OPT[k] = val if not val.lstrip("-").isdigit() else int(val)
DIAG = OPT["diag"]


def f2u(x):
    return struct.unpack("<I", struct.pack("<f", x))[0]


K = 1024
WS_STATS = 0x1000
WS_FLAGS = 0x8000
FL_HB, FL_HA, FL_O, FL_KV = 0, 64, 128, 192
WS_KVP = 0x10000
KVP_STR = 4352
WS_CS = 0xA0000
WS_HA = 0x140000
TB_STRIDE = 118 * K
WS_DIAG = 0x900000
WS_SIZE = 0xA00000
def CH(q):
    return 96 * K + 8 * K * q if q < 7 else 88 * K
TBUF = 52 * K
TROW = 272
L_EX1 = 152 * K
L_CSX = 154 * K
L_EX2 = 156 * K
L_KT = 156 * K
L_PQ = 128 * K
L_XY = 96 * K
L_XS = 128 * K
def slot_of(p):
    if p < 32:
        return p * 4 * K
    if p < 38:
        return 128 * K + (p - 32) * 4 * K
    return (p - 38) * 4 * K

rX, rP1, rP2, rWS, rW2, rWO, rA, rB = (s(n, 4) for n in (4, 8, 12, 16, 20, 24, 28, 32))
P_X, P_QKV, P_WO, P_W1, P_B1, P_W2, P_B2, P_OUT, P_WS = 36, 38, 40, 44, 46, 48, 50, 52, 56
NONCE, W, I_, J_, C_, TYPE, RHO, TB2, CT, RHO2 = (s(n) for n in range(58, 68))
T0, T1, T2, T3 = (s(n) for n in range(68, 72))

P = Prog()


class Q:
    def __init__(self, name, mx):
        self.q, self.name, self.mx = [], name, mx

    def room(self):
        if len(self.q) >= self.mx:
            P(f"s_waitcnt {self.name}({self.mx - 1})")
            self.q = self.q[len(self.q) - (self.mx - 1):]

    def add(self, tag=None):
        self.q.append(tag)

    def wait(self, tag):
        if tag not in self.q:
            return
        idx = max(i for i, t in enumerate(self.q) if t == tag)
        n = len(self.q) - 1 - idx
        assert n <= self.mx, (self.name, n)
        P(f"s_waitcnt {self.name}({n})")
        self.q = self.q[idx + 1:]

    def drain(self, force=False):
        if self.q or force:
            P(f"s_waitcnt {self.name}(0)")
        self.q = []


nstamp = [0, 0]
def stamp(role, name):
    if not DIAG:
        return
    n = nstamp[role]
    P(f"{'s_memtime' if DIAG == 2 else 's_memrealtime'} s[96:97]\ns_waitcnt lgkmcnt(0)\ns_mov_b32 s{80 + n}, s96")
    nstamp[role] += 1
    assert nstamp[role] <= 16


def sreg(r):
    return int(r[2:r.index(":")])


def srd(r, ptr, size):
    n = sreg(r)
    P(f"s_mov_b32 s{n}, s{ptr}\ns_mov_b32 s{n+1}, s{ptr+1}\ns_mov_b32 s{n+2}, 0x{size:x}\ns_mov_b32 s{n+3}, 0x20000")


def sel2(dst, a, b):
    P(f"s_mov_b32 {dst}, 0x{b:x}\ns_cmov_b32 {dst}, 0x{a:x}")


def spin(lbl, load, check):
    P(f"s_mov_b32 {T3}, {1 << OPT['spin']}")
    P.label(lbl)
    P(load)
    P("s_waitcnt vmcnt(0)")
    P(check)
    P(f"s_sub_u32 {T3}, {T3}, 1")
    P(f"s_cbranch_scc1 {lbl}_x")
    P(f"s_cbranch_vccnz {lbl}")
    P.label(lbl + "_x")


def flag_store(sreg_off, va=26):
    P(f"v_mov_b32 {v(va)}, {NONCE}\nv_mov_b32 {v(va+1)}, 0")
    P("s_mov_b64 exec, 1")
    P(f"buffer_store_dword {v(va)}, {v(va+1)}, {rWS}, {sreg_off} offen sc1")
    P("s_mov_b64 exec, -1")


def hblock0(dst):
    P(f"s_lshl_b32 {dst}, {C_}, 1\ns_add_u32 {T3}, {C_}, 3\ns_min_u32 {dst}, {dst}, {T3}\ns_add_u32 {dst}, {dst}, 32")
    P(f"s_lshl_b32 {T3}, {C_}, 2\ns_cmp_eq_u32 {TYPE}, 0\ns_cselect_b32 {dst}, {dst}, {T3}")


def waddr(dst, t1, t2, hshift):
    P(f"v_lshrrev_b32 {v(t1)}, 5, v0\nv_bfe_u32 {v(t2)}, v0, 2, 2\nv_lshl_add_u32 {v(t1)}, {v(t1)}, {hshift}, {v(t2)}")
    P(f"v_lshlrev_b32 {v(dst)}, 7, {v(t1)}")
    P(f"v_bfe_u32 {v(t1)}, v0, 3, 1\nv_lshl_or_b32 {v(dst)}, {v(t1)}, 6, {v(dst)}")
    P(f"v_bfe_u32 {v(t1)}, v0, 4, 1\nv_lshl_or_b32 {v(dst)}, {v(t1)}, 5, {v(dst)}")
    P(f"v_and_b32 {v(t1)}, 3, v0\nv_lshl_or_b32 {v(dst)}, {v(t1)}, 3, {v(dst)}")


def tr(dst, addr, off, tag):
    assert 0 <= off < 65536, off
    lg.room()
    P(f"ds_read_b64_tr_b16 {v(dst, 2)}, {v(addr)} offset:{off}")
    lg.add(tag)


def dump(role):
    if not DIAG:
        return
    P("s_waitcnt vmcnt(0)")
    stamp(role, "end")
    for n in range(16):
        P(f"v_mov_b32 {v(32 + n)}, {s(80 + n) if n < nstamp[role] else 0}")
    P(f"s_lshl_b32 {T0}, s2, 3\ns_add_u32 {T0}, {T0}, {W}\ns_lshl_b32 {T0}, {T0}, 6\ns_add_u32 {T0}, {T0}, 0x{WS_DIAG + role * 256:x}")
    P("v_mov_b32 v26, 0\ns_mov_b64 exec, 1")
    for n in range(4):
        P(f"buffer_store_dwordx4 {v(32 + 4 * n, 4)}, v26, {rWS}, {T0} offen offset:{16 * n}")


P("s_cmp_ge_u32 s2, 256")
P("s_cbranch_scc1 L_end")
P("s_load_dwordx16 s[36:51], s[0:1], 0")
P("s_load_dwordx4 s[52:55], s[0:1], 64")
P("s_load_dwordx2 s[56:57], s[0:1], 80")
P("v_lshrrev_b32 v1, 6, v0")
P("v_and_b32 v0, 63, v0")
P(f"s_lshr_b32 {T0}, s2, 3")
P(f"v_readfirstlane_b32 {T2}, v1")
if OPT["codepf"]:
    P("s_getpc_b64 s[32:33]")
    P.label("L_pc")
    P("s_mov_b32 s34, L_codeend-L_pc\ns_mov_b32 s35, 0x20000")
    P(f"s_lshl_b32 {T1}, {T0}, 3\ns_add_u32 {T1}, {T1}, {T2}\ns_lshl_b32 {T1}, {T1}, 7\nv_mov_b32 v2, {T1}")
    P("buffer_load_dword v31, v2, s[32:35], 0 offen")
P(f"s_and_b32 {T1}, s2, 7")
if OPT["map1"] == 24:
    P(f"s_lshr_b32 {I_}, {T1}, 2\ns_lshl_b32 {I_}, {I_}, 3\ns_lshr_b32 {T3}, {T0}, 2\ns_add_u32 {I_}, {I_}, {T3}")
    P(f"s_and_b32 {J_}, {T1}, 3\ns_lshl_b32 {J_}, {J_}, 2\ns_and_b32 {RHO}, {T0}, 3\ns_add_u32 {J_}, {J_}, {RHO}")
    P(f"s_lshl_b32 {RHO}, {RHO}, 1\ns_add_u32 {RHO}, {RHO}, {T3}\ns_and_b32 {T3}, {T1}, 1\ns_add_u32 {RHO}, {RHO}, {T3}\ns_and_b32 {RHO}, {RHO}, 7")
else:
    P(f"s_lshr_b32 {I_}, {T1}, 1\ns_lshl_b32 {I_}, {I_}, 2\ns_lshr_b32 {T3}, {T0}, 3\ns_add_u32 {I_}, {I_}, {T3}")
    P(f"s_and_b32 {J_}, {T1}, 1\ns_lshl_b32 {J_}, {J_}, 3\ns_and_b32 {RHO}, {T0}, 7\ns_add_u32 {J_}, {J_}, {RHO}")
    P(f"s_lshl_b32 {T3}, {T3}, 1\ns_add_u32 {RHO}, {RHO}, {T3}\ns_bfe_u32 {T3}, {T1}, 0x10001\ns_add_u32 {RHO}, {RHO}, {T3}\ns_and_b32 {RHO}, {RHO}, 7")
P(f"s_lshr_b32 {C_}, {J_}, 1\ns_and_b32 {TYPE}, {J_}, 1\ns_and_b32 {W}, {T2}, 3")


def tile2():
    P(f"s_lshr_b32 {T3}, s2, 6\ns_and_b32 {TB2}, s2, 7\ns_lshl_b32 {TB2}, {TB2}, 2\ns_add_u32 {TB2}, {TB2}, {T3}")
    P(f"s_bfe_u32 {CT}, s2, 0x30003\ns_lshl_b32 {RHO2}, {T3}, 1\ns_add_u32 {RHO2}, {RHO2}, {CT}\ns_and_b32 {RHO2}, {RHO2}, 7")


P(f"s_cmp_ge_u32 {T2}, 4")
P("s_cbranch_scc1 L_compute" if OPT["ldfirst"] else "s_cbranch_scc0 L_compute")

lg = Q("lgkmcnt", 15)
vm = Q("vmcnt", 63)
VX, VP1, VP2, VW2, VBI, LWA, LWB, VL16, SEL, CS, CS2 = 1, 2, 3, 4, 5, 6, 7, 8, 12, 16, 20
RS1, RS2, SX0, SW0, DCOL, SP20, SM, HB0L = (s(n) for n in range(72, 80))
stamp(1, "start")
P(f"s_setprio {OPT['prio']}")
P(f"s_cmp_eq_u32 {TYPE}, 0")
sel2(RS1, 3072, 2752)
sel2(DCOL, 1024, 128)
P("v_lshrrev_b32 v24, 3, v0\nv_and_b32 v25, 7, v0\nv_lshrrev_b32 v26, 4, v0")
P(f"s_and_b32 {T0}, {W}, 1\ns_lshl_b32 {T0}, {T0}, 2")
P(f"v_add_u32 v27, {T0}, v26\nv_xor_b32 v27, v27, v25\nv_lshlrev_b32 v27, 4, v27\nv_lshl_or_b32 {v(VX)}, v24, 10, v27")
P("v_and_b32 v27, 1, v26\nv_lshlrev_b32 v27, 2, v27\nv_xor_b32 v27, v27, v25\nv_lshlrev_b32 v27, 4, v27")
P(f"v_mad_u32_u24 {v(VP1)}, v24, {RS1}, v27")
hblock0(HB0L)
P(f"s_lshl_b32 {SX0}, {I_}, 4\ns_add_u32 {SX0}, {SX0}, {W}\ns_lshl_b32 {SX0}, {SX0}, 13")
P(f"s_lshl_b32 {T0}, {HB0L}, 6\ns_lshl_b32 {T1}, {C_}, 7\ns_add_u32 {T2}, {T1}, 1024")
P(f"s_cmp_eq_u32 {TYPE}, 0")
P(f"s_cselect_b32 {SW0}, {T2}, {T0}\ns_cselect_b32 {SP20}, {T0}, {T1}")
sel2(RS2, 2752, 3072)
P(f"s_lshl_b32 {T3}, {W}, 3\ns_mul_i32 {T0}, {T3}, {RS1}\ns_add_u32 {SW0}, {SW0}, {T0}")
P(f"s_mul_i32 {T0}, {T3}, {RS2}\ns_add_u32 {SP20}, {SP20}, {T0}")
P(f"s_lshl_b32 {SM}, {W}, 10")
P(f"v_mad_u32_u24 {v(VP2)}, v24, {RS2}, v27\nv_lshl_or_b32 {v(VW2)}, v24, 10, v27")
SZQ, SZ1 = 512 * 3072, 512 * 2752
P(f"s_cmp_eq_u32 {TYPE}, 0")
sel2("s10", SZQ, SZ1)
P("s_mov_b32 s11, 0x20000\ns_mov_b32 s6, 0x200000\ns_mov_b32 s7, 0x20000")
P("s_waitcnt lgkmcnt(0)")
P(f"s_mov_b32 s4, s{P_X}\ns_mov_b32 s5, s{P_X+1}")
P(f"s_cselect_b32 s8, s{P_QKV}, s{P_W1}\ns_cselect_b32 s9, s{P_QKV+1}, s{P_W1+1}")


def dma(voff, srdr, soff, tag):
    P(f"buffer_load_dwordx4 {v(voff)}, {srdr}, {soff} offen lds")
    vm.add(tag)


def ks_reg(q):
    P(f"s_add_u32 {T0}, {RHO}, {q}\ns_and_b32 {T0}, {T0}, 7")


def stage(q):
    sl = (q % 3) * 32 * K
    ks_reg(q)
    P(f"s_lshl_b32 {T1}, {T0}, 7\ns_add_u32 {T1}, {T1}, {SX0}")
    for m in range(4):
        P(f"s_add_u32 m0, {SM}, {sl + 4 * K * m}")
        if m:
            P(f"s_add_u32 {T1}, {T1}, 32768")
        else:
            P(f"s_lshl_b32 {T0}, {T0}, 6")
        dma(VX, rX, T1, ("st", q))
    P(f"s_mul_i32 {T0}, {T0}, {RS1}\ns_add_u32 {T0}, {T0}, {SW0}")
    for h in range(2):
        if h:
            P(f"s_lshl_b32 {T2}, {RS1}, 5\ns_add_u32 {T0}, {T0}, {T2}")
        P(f"s_add_u32 m0, {SM}, {sl + 16 * K + 4 * K * h}")
        P(f"s_add_u32 {T1}, {T0}, {DCOL}")
        dma(VP1, rP1, T0, ("st", q))
        P(f"s_add_u32 m0, {SM}, {sl + 24 * K + 4 * K * h}")
        dma(VP1, rP1, T1, ("st", q))


def chunk(q):
    ks_reg(q)
    P(f"s_lshl_b32 {T0}, {T0}, 6\ns_mul_i32 {T0}, {T0}, {RS2}\ns_add_u32 {T0}, {T0}, {SP20}")
    P(f"s_add_u32 m0, {SM}, {CH(q)}\ns_lshl_b32 {T2}, {RS2}, 5")
    dma(VP2, rP2, T0, "ch")
    P(f"s_add_u32 m0, {SM}, {CH(q) + 4 * K}\ns_add_u32 {T0}, {T0}, {T2}")
    dma(VP2, rP2, T0, "ch")


LPB, LGB, SCS = "s36", "s37", "s38"
STG = 64


def page_addr(p):
    if p < 32:
        g, mask, sr, add = p >> 2, 7, rW2, 0
    elif p < 44:
        P(f"s_add_u32 {T0}, {LPB}, {p * 32768}")
        return rW2
    else:
        g, mask, sr, add = (p - 44) >> 2, 3, rWO, 0
    if p % 4 == 0 or page_addr.last != (p >> 2):
        P(f"s_add_u32 {LGB}, {RHO2}, {g}\ns_and_b32 {LGB}, {LGB}, {mask}\ns_lshl_b32 {LGB}, {LGB}, 17\ns_add_u32 {LGB}, {LGB}, {LPB}")
        page_addr.last = p >> 2
    P(f"s_add_u32 {T0}, {LGB}, {(p % 4) * 32768}")
    return sr
page_addr.last = None


def page(p):
    P(f"s_add_u32 m0, {SM}, {slot_of(p)}")
    sr = page_addr(p)
    dma(VW2, sr, T0, ("pg", p))


def page_stage(p):
    sr = page_addr(p)
    P(f"buffer_load_dwordx4 {v(STG + 4 * (p - 22), 4)}, {v(VW2)}, {sr}, {T0} offen")
    vm.add(("pg", p))


def page_write(p):
    so = slot_of(p)
    a, off = (VL16, so) if so < 64 * K else ((VL16 + 1, so - 64 * K) if so < 128 * K else (VL16 + 2, so - 128 * K))
    P(f"ds_write_b128 {v(a)}, {v(STG + 4 * (p - 22), 4)} offset:{off}")


stage(0)
P(f"s_load_dword {NONCE}, s[{P_WS}:{P_WS+1}], 0")
stage(1)
stamp(1, "issued")
P(f"s_cmp_eq_u32 {TYPE}, 0")
P(f"s_cselect_b32 s12, s{P_W1}, s{P_QKV}\ns_cselect_b32 s13, s{P_W1+1}, s{P_QKV+1}\ns_mov_b32 s15, 0x20000")
sel2("s14", SZ1, SZQ)
srd(rWS, P_WS, WS_SIZE)
srd(rW2, P_W2, 1376 * 1024)
srd(rWO, P_WO, 512 * 1024)
srd(rA, P_B1, 2752)
tile2()
waddr(LWA, 27, 28, 3)
P(f"s_and_b32 {T0}, {W}, 1\ns_lshl_b32 {T0}, {T0}, 6")
P(f"v_xor_b32 {v(LWA)}, {T0}, {v(LWA)}")
P(f"v_add_u32 {v(LWB)}, 0x{CH(0):x}, {v(LWA)}")
P(f"s_lshr_b32 {T0}, {W}, 1\ns_lshl_b32 {T0}, {T0}, 13\ns_add_u32 {T0}, {T0}, {16 * K}")
P(f"v_add_u32 {v(LWA)}, {T0}, {v(LWA)}")
P("v_and_b32 v27, 15, v0\nv_lshlrev_b32 v28, 2, v26\nv_cmp_eq_u32 vcc, v27, v28\nv_mov_b32 v27, 0x3f803f80")
for r in range(4):
    P(f"v_cndmask_b32 {v(SEL + r)}, 0, v27, vcc")
P(f"v_lshl_add_u32 {v(VL16)}, v0, 4, {SM}")
P(f"v_add_u32 {v(VL16+1)}, 0x10000, {v(VL16)}\nv_add_u32 {v(VL16+2)}, 0x20000, {v(VL16)}")
P(f"s_lshl_b32 {LPB}, {W}, 13\ns_lshl_b32 {T1}, {CT}, 7\ns_add_u32 {LPB}, {LPB}, {T1}")
P(f"s_lshl_b32 {SCS}, {J_}, 1\ns_lshr_b32 {T0}, {I_}, 3\ns_add_u32 {SCS}, {SCS}, {T0}\ns_lshl_b32 {SCS}, {SCS}, 2")
P(f"s_add_u32 {SCS}, {SCS}, {W}\ns_lshl_b32 {SCS}, {SCS}, 12\ns_add_u32 {SCS}, {SCS}, 0x{WS_CS:x}")
P(f"s_add_u32 {T0}, {HB0L}, {W}\ns_lshl_b32 {T0}, {T0}, 6")
P(f"s_and_b32 {T1}, {W}, 1\ns_add_u32 {T1}, {T1}, {HB0L}\ns_lshl_b32 {T1}, {T1}, 6")
P(f"s_cmp_eq_u32 {TYPE}, 0\ns_cselect_b32 {T0}, 0x100000, {T0}\ns_cselect_b32 {T1}, {T1}, 0x100000")
P(f"v_mov_b32 v27, {T0}\nv_mov_b32 v28, {T1}\nv_cmp_gt_u32 vcc, 32, v0\nv_and_b32 v29, 31, v0")
P(f"v_cndmask_b32 v27, v28, v27, vcc\nv_lshl_add_u32 v30, v29, 1, v27")
P("s_waitcnt lgkmcnt(0)")
P(f"s_add_u32 {NONCE}, {NONCE}, 1")
vm.wait(("st", 0))
P("s_barrier ; b0")
stamp(1, "b0")
FR = 32


def cs_reads(a):
    for t in range(4):
        tr(FR + 4 * t, a, t * 2048, None)
        tr(FR + 4 * t + 2, a, t * 2048 + 512, ("cs", t))


def cs_mfma(acc):
    for t in range(4):
        lg.wait(("cs", t))
        P(f"v_mfma_f32_16x16x32_bf16 {v(acc, 4)}, {v(SEL, 4)}, {v(FR + 4 * t, 4)}, {'0' if t == 0 else v(acc, 4)}")


CSL = "\n".join(f"buffer_load_dwordx2 {v(32 + 2 * n, 2)}, v29, {rWS}, {SCS} offen offset:{512 * n} sc1" for n in range(8))
CSC = "\n".join([f"v_xor_b32 {v(48 + n)}, {NONCE}, {v(33 + 2 * n)}" for n in range(8)] +
                ["v_or3_b32 v48, v48, v49, v50", "v_or3_b32 v51, v51, v52, v53", "v_or3_b32 v48, v48, v54, v55",
                 "v_or_b32 v48, v48, v51", "v_cmp_ne_u32 vcc, 0, v48"])
for st in range(8):
    if st == 0:
        cs_reads(LWA)
        chunk(0)
        P(f"buffer_load_ushort {v(VBI)}, v30, {rA}, 0 offen")
        vm.add("bias")
    if st == 2:
        cs_reads(LWB)
    if st <= 5:
        stage(st + 2)
    if st == 0:
        cs_mfma(CS)
    if st == 2:
        cs_mfma(CS2)
        P(f"s_lshl_b32 {T0}, {W}, 8\ns_add_u32 {T0}, {T0}, 0x{L_CSX:x}")
        P(f"v_lshl_add_u32 v27, v0, 2, {T0}")
        P(f"v_permlane32_swap_b32 {v(CS)}, {v(CS2)}")
        P(f"v_add_f32 {v(CS)}, {v(CS)}, {v(CS2)}")
        P(f"ds_write_b32 v27, {v(CS)}")
        P("s_waitcnt lgkmcnt(0)")
    if st == 6:
        P("v_lshlrev_b32 v29, 3, v0")
        P(CSL)
        for n in range(8):
            vm.add("cs")
        for q in range(1, 4):
            chunk(q)
    if st == 7:
        vm.wait("cs")
        P(CSC)
        P("s_cbranch_vccz L_cs_x")
        spin("L_cs", CSL, CSC)
        for q in range(4, 8):
            chunk(q)
        P("v_add_f32 v32, v32, v34\nv_add_f32 v36, v36, v38\nv_add_f32 v40, v40, v42\nv_add_f32 v44, v44, v46")
        P("v_add_f32 v32, v32, v36\nv_add_f32 v40, v40, v44\nv_add_f32 v32, v32, v40")
        P("v_cvt_pk_bf16_f32 v33, v32, v32\nv_lshlrev_b32 v33, 16, v33\nv_sub_f32 v32, v32, v33\nv_cvt_pk_bf16_f32 v32, v33, v32")
        P("v_cmp_gt_u32 vcc, 32, v0")
        P(f"s_lshl_b32 {T0}, {W}, 9\ns_add_u32 {T0}, {T0}, 0x{L_EX1:x}")
        P(f"v_add_u32 v29, {T0}, v29")
        P(f"v_cndmask_b32 v34, 0, v32, vcc\nv_cndmask_b32 v35, 0, {v(VBI)}, vcc")
        P(f"v_cndmask_b32 v36, v32, 0, vcc\nv_cndmask_b32 v37, {v(VBI)}, 0, vcc")
        P(f"ds_write_b64 v29, v[34:35]\nds_write_b64 v29, v[36:37] offset:{L_EX2 - L_EX1}")
        P("s_waitcnt lgkmcnt(0)")
    else:
        vm.wait(("st", st + 1))
    P(f"s_barrier ; b{st + 1}")
    if OPT["stdiag"] and st in (1, 3, 5):
        stamp(1, f"b{st+1}")
stamp(1, "b8")
vq8 = list(vm.q)
P(f"s_cmp_eq_u32 {TYPE}, 0")
P("s_cbranch_scc0 L_lB8")
for p in range(OPT["nA9"]):
    page(p)
P("s_barrier ; b9")
for p in range(OPT["nA9"], OPT["nA10"]):
    page(p)
vm.wait("ch")
P("s_barrier ; b10")
stamp(1, "b10")
for p in range(OPT["nA10"], 22):
    page(p)
P("s_branch L_l10")
P.label("L_lB8")
nstamp[1] -= 1 if DIAG else 0
vm.q = list(vq8)
page_addr.last = None
for p in range(OPT["nB10"]):
    page(p)
vm.wait("ch")
P("s_barrier ; b10")
stamp(1, "b10")
for p in range(OPT["nB10"], 22):
    page(p)
P.label("L_l10")
vm.q = []
page_addr.last = None
for p in range(22, 43):
    page_stage(p)
stamp(1, "staged")
P("s_barrier ; b11")
stamp(1, "b11")
for p in range(22, 32):
    vm.wait(("pg", p))
    page_write(p)
P("s_waitcnt lgkmcnt(0)")
P("s_barrier ; g0")
stamp(1, "g0")
P(f"s_cmp_eq_u32 {TYPE}, 0")
P("s_cbranch_scc0 L_lB")
P("s_waitcnt vmcnt(0)")
if DIAG:
    for n in range(3):
        stamp(1, "pad")
    nstamp[1] -= 3
P("s_branch L_l3")
P.label("L_lB")
G = 160
PQR = 224
P(f"s_lshl_b32 {T0}, {C_}, 2\ns_add_u32 {T0}, {T0}, {W}\ns_lshl_b32 {T0}, {T0}, 7\ns_add_u32 {T0}, {T0}, 0x{WS_FLAGS + FL_KV * 128:x}")
P("v_and_b32 v23, 15, v0\nv_lshlrev_b32 v24, 2, v23\nv_lshlrev_b32 v27, 4, v0")
P(f"v_add_u32 v28, 0x{L_PQ:x}, {v(VL16)}")
for tb in range(4):
    P(f"ds_read_b128 {v(PQR + 4 * tb, 4)}, v28 offset:{tb * 4096}")
P(f"v_lshrrev_b32 v22, 2, v0\nv_mul_u32_u24 v25, {KVP_STR}, v22\nv_and_b32 v26, 3, v0\nv_lshl_add_u32 v25, v26, 4, v25")
spin("L_kv", f"buffer_load_dword v20, v24, {rWS}, {T0} offen sc1", f"v_cmp_ne_u32 vcc, {NONCE}, v20")
stamp(1, "kv_seen")
P(f"s_mul_i32 {T0}, {C_}, {16 * KVP_STR}\ns_add_u32 {T0}, {T0}, 0x{WS_KVP:x}")
P(f"s_lshl_b32 {T1}, {W}, 6\ns_add_u32 {T1}, {T1}, {T0}\ns_add_u32 {T1}, {T1}, 4096")
P(f"buffer_load_dwordx4 v[28:31], v25, {rWS}, {T1} offen sc1")
P(f"s_add_u32 {T0}, {T0}, {SM}\ns_add_u32 {T2}, {T0}, {16 * KVP_STR}")
P(f"s_lshl_b32 {T1}, {I_}, 1\ns_and_b32 {T1}, {T1}, 15\ns_mul_i32 {T1}, {T1}, {KVP_STR}\ns_add_u32 {T1}, {T1}, {T0}")
for n in range(16):
    P(f"buffer_load_dwordx4 {v(G + 4 * n, 4)}, v27, {rWS}, {T1} offen sc1")
    if n < 15:
        P(f"s_add_u32 {T1}, {T1}, {KVP_STR}")
        if n % 2 == 1:
            P(f"s_cmp_eq_u32 {T1}, {T2}\ns_cselect_b32 {T1}, {T0}, {T1}")
P(f"s_add_u32 {T0}, {SM}, 0x{L_KT:x}")
P("v_and_b32 v20, 1, v26\nv_lshlrev_b32 v20, 4, v20\nv_lshrrev_b32 v26, 1, v26\nv_lshl_or_b32 v20, v26, 3, v20")
P(f"v_lshl_or_b32 v20, v22, 5, v20\nv_add_u32 v20, {T0}, v20")
P("v_bfe_u32 v21, v0, 4, 1\nv_lshlrev_b32 v21, 4, v21\nv_lshrrev_b32 v26, 5, v0\nv_lshl_or_b32 v21, v26, 3, v21")
P(f"v_lshl_or_b32 v21, v23, 5, v21\nv_add_u32 v21, {T0}, v21")
P(f"v_and_b32 v22, 31, v0\nv_lshlrev_b32 v22, 5, v22\nv_lshl_or_b32 v22, v26, 4, v22\nv_add_u32 v22, {T0}, v22")
P("s_waitcnt vmcnt(16)")
for r in (4, 8):
    for n in range(4):
        P(f"v_add_f32_dpp {v(28 + n)}, {v(28 + n)}, {v(28 + n)} row_ror:{r} row_mask:0xf bank_mask:0xf")
for op in ("v_permlane16_swap_b32", "v_permlane32_swap_b32"):
    for n in range(4):
        P(f"v_mov_b32 {v(32 + n)}, {v(28 + n)}")
    for n in range(4):
        P(f"{op} {v(28 + n)}, {v(32 + n)}")
    for n in range(4):
        P(f"v_add_f32 {v(28 + n)}, {v(28 + n)}, {v(32 + n)}")
P("v_cvt_pk_bf16_f32 v28, v28, v29\nv_cvt_pk_bf16_f32 v29, v30, v31")
P("ds_write_b64 v20, v[28:29] offset:512")
for n in range(1, 16):
    P(f"s_waitcnt vmcnt({15 - n})")
    for h in range(4):
        P(f"v_add_f32 {v(G + h)}, {v(G + h)}, {v(G + 4 * n + h)}")
P(f"v_cvt_pk_bf16_f32 {v(G)}, {v(G)}, {v(G+1)}\nv_cvt_pk_bf16_f32 {v(G+1)}, {v(G+2)}, {v(G+3)}")
P(f"ds_write_b64 v21, {v(G, 2)}")
P("s_waitcnt lgkmcnt(0)")
P("ds_read_b128 v[28:31], v22")
P(f"s_mul_i32 {T0}, {I_}, {4 * TB_STRIDE}\ns_lshl_b32 {T1}, {C_}, 12\ns_add_u32 {T0}, {T0}, {T1}")
P(f"s_add_u32 {T0}, {T0}, {SM}\ns_add_u32 {T0}, {T0}, 0x{WS_HA + 86 * K:x}")
P("s_waitcnt lgkmcnt(0)")
stamp(1, "kv_tab")
for tb in range(4):
    P(f"v_mfma_f32_32x32x16_bf16 {v(G + 16 * tb, 16)}, v[28:31], {v(PQR + 4 * tb, 4)}, 0")
for tb in range(4):
    d = G + 16 * tb
    P(f"v_add_f32 {v(d + 8)}, 0x{f2u(1e-6):x}, {v(d + 8)}")
    P(f"v_rcp_f32 {v(d + 8)}, {v(d + 8)}")
    for r in range(8):
        P(f"v_mul_f32 {v(d + r)}, {v(d + r)}, {v(d + 8)}")
    for p in range(4):
        P(f"v_cvt_pk_bf16_f32 {v(d + 12 + p)}, {v(d + 2 * p)}, {v(d + 2 * p + 1)}")
    P(f"buffer_store_dwordx4 {v(d + 12, 4)}, v27, {rWS}, {T0} offen sc1")
    if tb < 3:
        P(f"s_add_u32 {T0}, {T0}, {TB_STRIDE}")
stamp(1, "o_st")
P.label("L_l3")
vm.q = ["o"]
page_addr.last = None
for p in range(32, 38):
    page_write(p)
P("s_barrier ; g5")
for p in range(38, 43):
    page_write(p)
for p in range(44, 54):
    page(p)
P("s_waitcnt lgkmcnt(0)")
P("s_barrier ; g8")
stamp(1, "g8")
for p in range(54, 60):
    page(p)
vm.wait("o")
P(f"s_cmp_eq_u32 {TYPE}, 0")
P("s_cbranch_scc1 L_l4")
P(f"s_lshl_b32 {T0}, {I_}, 5\ns_lshl_b32 {T1}, {C_}, 2\ns_add_u32 {T0}, {T0}, {T1}\ns_add_u32 {T0}, {T0}, {W}")
P(f"s_lshl_b32 {T0}, {T0}, 2\ns_add_u32 {T0}, {T0}, 0x{WS_FLAGS + FL_O * 128:x}")
flag_store(T0)
P("s_waitcnt vmcnt(1)")
P("s_branch L_l5")
P.label("L_l4")
P("s_waitcnt vmcnt(0)")
P.label("L_l5")
stamp(1, "oflag")
P("s_barrier ; g11")
dump(1)
P.label("L_end")
P("s_endpgm")

P.label("L_compute")
XR, ACC, WR = 128, 64, 32
VH, GR, XE, K1, K2, SD, RS, RL = 1, 2, 4, 6, 8, 10, 12, 14
XA, WA = 12, 20
HB0, SH, EPS2, SG, SFL1, SFL2, SCS2 = "s72", "s73", "s[74:75]", "s76", "s77", "s78", "s79"
lg = Q("lgkmcnt", 15)

stamp(0, "start")
P(f"s_lshl_b32 {T0}, {I_}, 4\ns_add_u32 {T0}, {T0}, {J_}\ns_lshl_b32 {T0}, {T0}, 2\ns_add_u32 {T0}, {T0}, {W}\ns_lshl_b32 {T0}, {T0}, 1")
P(f"s_lshl_b32 {T1}, {T0}, 10")
P("v_lshrrev_b32 v26, 5, v0\nv_and_b32 v27, 31, v0\nv_lshlrev_b32 v28, 4, v27\nv_lshl_or_b32 v28, v26, 10, v28")
P("s_waitcnt lgkmcnt(0)")
srd(rX, P_X, 2 * K * K)
P(f"s_load_dword {NONCE}, s[{P_WS}:{P_WS+1}], 0")
P(f"buffer_load_dwordx4 v[32:35], v28, {rX}, {T1} offen")
P(f"buffer_load_dwordx4 v[36:39], v28, {rX}, {T1} offen offset:512")
srd(rWS, P_WS, WS_SIZE)
srd(rA, P_OUT, 2 * K * K)
srd(rB, P_B2, 1024)
tile2()
P(f"v_lshlrev_b32 {v(VH)}, 4, v0")
waddr(WA, 29, 30, 3)
P(f"v_xor_b32 {v(WA + 1)}, 64, {v(WA)}")
for k, off in ((2, 64 * K), (4, 88 * K)):
    P(f"v_add_u32 {v(WA + k)}, 0x{off:x}, {v(WA)}\nv_add_u32 {v(WA + k + 1)}, 0x{off:x}, {v(WA + 1)}")
P("v_bfe_u32 v29, v0, 1, 3\nv_xor_b32 v29, v29, v26\nv_lshlrev_b32 v29, 4, v29\nv_lshl_or_b32 v29, v27, 7, v29")
P(f"s_lshl_b32 {T2}, {W}, 12")
P(f"v_add_u32 {v(XA)}, {T2}, v29")
for t in range(1, 4):
    P(f"v_xor_b32 {v(XA + t)}, {32 * t}, {v(XA)}")
for t in range(4):
    P(f"v_add_u32 {v(XA + 4 + t)}, 0x10000, {v(XA + t)}")
hblock0(HB0)
P(f"s_lshl_b32 {SG}, {I_}, 2\ns_add_u32 {SG}, {SG}, {W}")
P(f"s_mul_i32 {SH}, {SG}, {TB_STRIDE}\ns_lshl_b32 {HB0}, {HB0}, 11\ns_add_u32 {SH}, {SH}, {HB0}\ns_add_u32 {SH}, {SH}, 0x{WS_HA:x}")
P(f"s_lshl_b32 {SFL2}, {SG}, 5\ns_add_u32 {SFL2}, {SFL2}, {C_}\ns_lshl_b32 {SFL2}, {SFL2}, 2")
P(f"s_lshl_b32 {SFL1}, {C_}, 2\ns_add_u32 {SFL1}, {SFL1}, {W}\ns_lshl_b32 {SFL1}, {SFL1}, 5\ns_add_u32 {SFL1}, {SFL1}, {I_}\ns_lshl_b32 {SFL1}, {SFL1}, 2")
P(f"s_add_u32 {SFL1}, {SFL1}, 0x{WS_FLAGS + FL_KV * 128:x}\ns_add_u32 {T2}, {SFL2}, 0x{WS_FLAGS + FL_HB * 128:x}")
P(f"s_add_u32 {SFL2}, {SFL2}, 0x{WS_FLAGS + FL_HA * 128:x}")
P(f"s_cmp_eq_u32 {TYPE}, 0\ns_cselect_b32 {SFL1}, {SFL1}, {T2}")
P(f"s_lshl_b32 {SG}, {SG}, 8\ns_add_u32 {SG}, {SG}, 0x{WS_STATS:x}")
P(f"s_lshl_b32 {SCS2}, {J_}, 1\ns_lshr_b32 {T2}, {I_}, 3\ns_add_u32 {SCS2}, {SCS2}, {T2}\ns_lshl_b32 {SCS2}, {SCS2}, 2")
P(f"s_add_u32 {SCS2}, {SCS2}, {W}\ns_lshl_b32 {SCS2}, {SCS2}, 3\ns_and_b32 {T2}, {I_}, 7\ns_add_u32 {SCS2}, {SCS2}, {T2}")
P(f"s_lshl_b32 {SCS2}, {SCS2}, 9\ns_add_u32 {SCS2}, {SCS2}, 0x{WS_CS:x}")
P(f"s_mov_b32 s74, 0x{f2u(1e-6):x}\ns_mov_b32 s75, 0x{f2u(1e-6):x}")
P(f"s_mov_b32 {T2}, 0x3f803f80")
P("v_mov_b32 v40, 0\nv_mov_b32 v41, 0\nv_mov_b32 v42, 0\nv_mov_b32 v43, 0")
P("s_waitcnt vmcnt(0)")
for n in range(8):
    P(f"v_dot2_f32_bf16 {v(40 + (n & 1))}, {v(32 + n)}, {T2}, {v(40 + (n & 1))}")
    P(f"v_dot2_f32_bf16 {v(42 + (n & 1))}, {v(32 + n)}, {v(32 + n)}, {v(42 + (n & 1))}")
P("s_nop 2")
P("v_add_f32 v40, v40, v41\nv_add_f32 v42, v42, v43")
for r in (8, 4, 2, 1):
    P(f"v_add_f32_dpp v40, v40, v40 row_ror:{r} row_mask:0xf bank_mask:0xf")
    P(f"v_add_f32_dpp v42, v42, v42 row_ror:{r} row_mask:0xf bank_mask:0xf")
P("v_mov_b32 v41, v40\nv_mov_b32 v43, v42")
P("v_permlane16_swap_b32 v40, v41\nv_permlane16_swap_b32 v42, v43")
P("v_add_f32 v40, v40, v41\nv_add_f32 v42, v42, v43")
P(f"v_mul_f32 v40, 0x{f2u(1 / 512):x}, v40\nv_mul_f32 v42, 0x{f2u(1 / 512):x}, v42")
P("v_fma_f32 v42, -v40, v40, v42\nv_max_f32 v42, 0, v42")
P(f"v_cvt_pk_bf16_f32 v42, v42, v42\nv_and_b32 v42, 0xffff0000, v42\nv_add_f32 v42, 0x{f2u(1e-5):x}, v42")
P("v_cvt_pk_bf16_f32 v42, v42, v42\nv_and_b32 v42, 0xffff0000, v42\nv_sqrt_f32 v42, v42")
P("v_cvt_pk_bf16_f32 v44, v40, v42")
P("v_lshlrev_b32 v28, 3, v26")
P(f"s_lshl_b32 {T0}, {T0}, 3\ns_add_u32 {T0}, {T0}, 0x{WS_STATS:x}")
P("s_waitcnt lgkmcnt(0)")
P(f"s_add_u32 {NONCE}, {NONCE}, 1")
P(f"v_mov_b32 v45, {NONCE}\nv_mov_b32 v5, {NONCE}")
P("s_mov_b32 exec_lo, 1\ns_mov_b32 exec_hi, 1")
P(f"buffer_store_dwordx2 v[44:45], v28, {rWS}, {T0} offen sc1")
P("s_mov_b64 exec, -1")
P("v_lshlrev_b32 v26, 3, v27\nv_lshlrev_b32 v27, 3, v0")
P(f"s_lshl_b32 {T0}, {W}, 8\ns_add_u32 {T0}, {T0}, 0x{L_CSX:x}")
P(f"v_lshl_add_u32 v28, v0, 2, {T0}")
P(f"v_add_u32 v29, 0x{L_EX1:x}, v27")
GLOAD = f"buffer_load_dwordx2 {v(GR, 2)}, v26, {rWS}, {SG} offen sc1"
stamp(0, "stats")


def p1_x(st, t):
    sl = st % 3
    P(f"ds_read_b128 {v(XR + 16 * st + 4 * t, 4)}, {v(XA + t + (4 if sl == 2 else 0))} offset:{(sl % 2) * 32 * K}")
    lg.add(("x", st, t))


def p1_w(st, t, b):
    sl = st % 3
    a = WA + (b & 1) + (2 if sl == 2 else 0)
    off = (sl % 2) * 32 * K + 16 * K + (b >> 1) * 8 * K + t * 2048
    f = WR + ((t & 1) * 4 + b) * 4
    tr(f, a, off, None)
    tr(f + 2, a, off + 512, ("w", st, t, b))


def p1_m(st, t, b):
    lg.wait(("x", st, t))
    lg.wait(("w", st, t, b))
    f = WR + ((t & 1) * 4 + b) * 4
    c = "0" if (st == 0 and t == 0) else v(ACC + 16 * b, 16)
    P(f"v_mfma_f32_32x32x16_bf16 {v(ACC + 16 * b, 16)}, {v(f, 4)}, {v(XR + 16 * st + 4 * t, 4)}, {c}")


P("s_barrier ; b0")
stamp(0, "b0")
p1_x(0, 0)
for b in range(4):
    p1_w(0, 0, b)
for st in range(8):
    for t in range(3):
        for b in range(4):
            p1_m(st, t, b)
            if b == 0:
                p1_x(st, t + 1)
            p1_w(st, t + 1, b)
    p1_m(st, 3, 0)
    if st == 3:
        P("ds_read_b32 v4, v28")
        lg.add(None)
    p1_m(st, 3, 1)
    if st == 6:
        P(GLOAD)
    lg.drain()
    P(f"s_barrier ; b{st + 1}")
    if st < 7:
        p1_x(st + 1, 0)
        p1_w(st + 1, 0, 0)
        p1_w(st + 1, 0, 1)
        p1_m(st, 3, 2)
        if st == 3:
            P(f"buffer_store_dwordx2 v[4:5], v27, {rWS}, {SCS2} offen sc1")
        p1_w(st + 1, 0, 2)
        p1_w(st + 1, 0, 3)
        p1_m(st, 3, 3)
    else:
        for b in range(4):
            P(f"ds_read_b64 {v(WR + 2 * b, 2)}, v29 offset:{512 * b}")
            lg.add(("ex", b))
        p1_m(st, 3, 2)
        p1_m(st, 3, 3)
stamp(0, "b8")
GCHK = f"v_cmp_ne_u32 vcc, {NONCE}, {v(GR + 1)}"
P("s_waitcnt vmcnt(0)")
P(GCHK)
P("s_cbranch_vccz L_gr_x")
spin("L_gr", GLOAD, GCHK)
P(f"s_mov_b32 {T0}, 0x01000100")
P(f"v_perm_b32 {v(XE)}, {v(GR)}, {v(GR)}, {T0}")
P(f"v_xor_b32 {v(XE)}, 0x80008000, {v(XE)}")
P(f"v_lshrrev_b32 {v(XE + 1)}, 16, {v(GR)}")
P(f"v_and_b32 {v(SD)}, 0xffff0000, {v(GR)}")
P(f"v_rcp_f32 {v(RS)}, {v(SD)}")
for b in range(4):
    lg.wait(("ex", b))
    P(f"v_mfma_f32_32x32x8bf16_1k {v(ACC + 16 * b, 16)}, {v(WR + 2 * b, 2)}, {v(XE, 2)}, {v(ACC + 16 * b, 16)}")
LOG2E = 1.4426950408889634
C1 = -2 * LOG2E * math.sqrt(2 / math.pi)
C2 = C1 * 0.044715
P(f"v_mul_f32 {v(K1)}, 0x{f2u(C1):x}, {v(RS)}")
P(f"v_mul_f32 {v(K2)}, {v(RS)}, {v(RS)}\nv_mul_f32 {v(K2)}, {v(K2)}, {v(RS)}\nv_mul_f32 {v(K2)}, 0x{f2u(C2):x}, {v(K2)}")
P(f"v_mul_f32 {v(RL)}, 0x{f2u(LOG2E):x}, {v(RS)}")
for r in (K1, K2, SD, RS, RL):
    P(f"v_mov_b32 {v(r + 1)}, {v(r)}")
stamp(0, "ex1")

TT, UU = 32, 48


def pairs(fmt, a):
    for p in range(8):
        P(fmt.format(T=v(TT + 2 * p, 2), A=v(a + 2 * p, 2)))


def singles(fmt):
    for r in range(16):
        P(fmt.format(T=v(TT + r)))


def cvt(dst, src=TT):
    for p in range(8):
        P(f"v_cvt_pk_bf16_f32 {v(dst + p)}, {v(src + 2 * p)}, {v(src + 2 * p + 1)}")


def epi_gelu(b):
    a = ACC + 16 * b
    pairs("v_pk_mul_f32 {T}, {A}, {A}", a)
    pairs("v_pk_fma_f32 {T}, {T}, %s, %s" % (v(K2, 2), v(K1, 2)), a)
    pairs("v_pk_mul_f32 {T}, {T}, {A}", a)
    singles("v_exp_f32 {T}, {T}")
    pairs("v_pk_fma_f32 {T}, {T}, %s, %s" % (v(SD, 2), v(SD, 2)), a)
    singles("v_rcp_f32 {T}, {T}")
    pairs("v_pk_mul_f32 {T}, {T}, {A}", a)
    cvt(a)
    if b == 2:
        P(f"s_add_u32 {SH}, {SH}, 4096")
    for h in range(2):
        P(f"buffer_store_dwordx4 {v(a + 4 * h, 4)}, {v(VH)}, {rWS}, {SH} offen offset:{2048 * (b & 1) + 1024 * h} sc1")


def epi_phi(b, dst):
    a = ACC + 16 * b
    pairs("v_pk_mul_f32 {T}, {A}, %s" % v(RL, 2), a)
    singles("v_exp_f32 {T}, {T}")
    pairs("v_pk_fma_f32 {A}, {A}, %s, 1.0 op_sel_hi:[1,1,0]" % v(RS, 2), a)
    for r in range(16):
        P(f"v_med3_f32 {v(TT + r)}, {v(TT + r)}, {v(a + r)}, 1.0")
    pairs("v_pk_add_f32 {T}, {T}, %s" % EPS2, a)
    cvt(dst)


def epi_lin(b, dst):
    a = ACC + 16 * b
    pairs("v_pk_mul_f32 {T}, {A}, %s" % v(RS, 2), a)
    cvt(dst)


def pass2(nb):
    n = 32 * nb
    def rd(m):
        if m >= n:
            return
        step, b = divmod(m, nb)
        off = CH(step >> 2) - 88 * K + (step & 3) * 2048
        f = WR + (m % 8) * 4
        tr(f, WA + 4 + b, off, None)
        tr(f + 2, WA + 4 + b, off + 512, ("p2", m))
    for m in range(7):
        rd(m)
    for m in range(n):
        step, b = divmod(m, nb)
        lg.wait(("p2", m))
        c = "0" if step == 0 else v(ACC + 16 * b, 16)
        P(f"v_mfma_f32_32x32x16_bf16 {v(ACC + 16 * b, 16)}, {v(WR + (m % 8) * 4, 4)}, {v(XR + 4 * step, 4)}, {c}")
        rd(m + 7)
        if m == n - 6:
            for bb in range(nb):
                lg.room()
                P(f"ds_read_b64 {v(16 + 2 * bb, 2)}, v29 offset:{L_EX2 - L_EX1 + 512 * bb}")
                lg.add(("ex2", bb))
        if m == min(OPT["mf"], n - 1):
            P("s_waitcnt vmcnt(0)")
            flag_store(SFL1)
    lg.drain()
    P("s_barrier ; b11")
    for b in range(nb):
        P(f"v_mfma_f32_32x32x8bf16_1k {v(ACC + 16 * b, 16)}, {v(16 + 2 * b, 2)}, {v(XE, 2)}, {v(ACC + 16 * b, 16)}")


XRES, BRES = 128, 136
VO, SO = 23, "s76"


def resid_loads():
    P(f"v_and_b32 v28, 7, v0\nv_lshlrev_b32 v28, 4, v28\nv_lshrrev_b32 v30, 3, v0\nv_lshl_or_b32 {v(VO)}, v30, 10, v28")
    P(f"s_lshl_b32 {SO}, {TB2}, 2\ns_add_u32 {SO}, {SO}, {W}\ns_lshl_b32 {SO}, {SO}, 14\ns_lshl_b32 {T1}, {CT}, 7\ns_add_u32 {SO}, {SO}, {T1}")
    P(f"s_add_u32 {T2}, {SO}, 8192")
    P(f"buffer_load_dwordx4 {v(BRES, 4)}, v28, {rB}, {T1} offen")
    P(f"buffer_load_dwordx4 {v(XRES, 4)}, {v(VO)}, {rX}, {SO} offen")
    P(f"buffer_load_dwordx4 {v(XRES + 4, 4)}, {v(VO)}, {rX}, {T2} offen")


P(f"s_cmp_eq_u32 {TYPE}, 0")
P("s_cbranch_scc0 L_cB")
P(f"v_and_b32 v26, 31, v0\nv_lshrrev_b32 v27, 5, v0\ns_lshl_b32 {T0}, {W}, 5")
P(f"v_add_u32 v26, {T0}, v26\nv_mul_u32_u24 v26, {TROW}, v26\nv_lshl_add_u32 v26, v27, 3, v26\nv_add_u32 v26, 0x{TBUF:x}, v26")
for b in range(4):
    u = UU + 8 * (b & 1)
    (epi_phi if b < 2 else epi_lin)(b, u)
    for q in range(4):
        P(f"ds_write_b64 v26, {v(u + 2 * q, 2)} offset:{64 * b + 16 * q}")
P(f"v_lshrrev_b32 v26, 2, v0\nv_mul_u32_u24 v26, {TROW}, v26\nv_and_b32 v27, 3, v0\nv_lshl_add_u32 v26, v27, 3, v26")
P(f"s_add_u32 {T0}, {T0}, 0x{TBUF:x}")
P(f"v_add_u32 v26, {T0}, v26")
for r in range(4):
    P(f"v_mov_b32 {v(104 + r)}, 0x3f803f80")
P(f"s_lshl_b32 {T0}, {C_}, 4\ns_add_u32 {T0}, {T0}, {I_}\ns_mul_i32 {T0}, {T0}, {KVP_STR}\ns_add_u32 {T0}, {T0}, 0x{WS_KVP:x}")
P(f"s_lshl_b32 {T1}, {W}, 10\ns_add_u32 {T1}, {T1}, {T0}")
P(f"s_lshl_b32 {T2}, {W}, 6\ns_add_u32 {T2}, {T2}, {T0}\ns_add_u32 {T2}, {T2}, 4096")
P("s_waitcnt lgkmcnt(0)")
P("s_barrier ; b9")
stamp(0, "A_b9")
def kvm(mm):
    lg.wait(("kv", mm, 1))
    P(f"v_mfma_f32_16x16x32_bf16 v[96:99], {v(ACC + 8 * mm, 4)}, {v(ACC + 8 * mm + 4, 4)}, {'0' if mm == 0 else 'v[96:99]'}")
    P(f"v_mfma_f32_16x16x32_bf16 v[100:103], {v(ACC + 8 * mm, 4)}, v[104:107], {'0' if mm == 0 else 'v[100:103]'}")
for m in range(4):
    for o in range(2):
        f = ACC + 8 * m + 4 * o
        tr(f, 26, m * 32 * TROW + 128 * o, None)
        tr(f + 2, 26, (m * 32 + 16) * TROW + 128 * o, ("kv", m, o))
    if m >= 2:
        kvm(m - 2)
kvm(2)
kvm(3)
P(f"buffer_store_dwordx4 v[96:99], {v(VH)}, {rWS}, {T1} offen sc1")
P("s_mov_b32 exec_lo, 0x00010001\ns_mov_b32 exec_hi, 0x00010001")
P(f"buffer_store_dwordx4 v[100:103], v0, {rWS}, {T2} offen sc1")
P("s_mov_b64 exec, -1")
P("s_barrier ; b10")
stamp(0, "A_b10")
P(f"s_cmp_lt_u32 {C_}, 3")
P("s_cbranch_scc1 L_p2")
pass2(1)
stamp(0, "p2")
P("s_branch L_cA2")
P.label("L_cB")
if DIAG:
    nstamp[0] -= 3
for b in range(4):
    epi_gelu(b)
stamp(0, "B_e1")
P("s_barrier ; b10")
stamp(0, "B_b10")
P.label("L_p2")
pass2(2)
stamp(0, "p2")
P(f"s_cmp_eq_u32 {TYPE}, 0")
P("s_cbranch_scc1 L_cA2")
resid_loads()
P(f"s_lshl_b32 {T0}, {W}, 12\ns_add_u32 {T0}, {T0}, 0x{L_PQ:x}")
P(f"v_add_u32 v26, {T0}, {v(VH)}")
for b in range(2):
    epi_phi(b, UU + 8 * b)
    for h in range(2):
        P(f"ds_write_b128 v26, {v(UU + 8 * b + 4 * h, 4)} offset:{(2 * b + h) * 1024}")
P("s_waitcnt lgkmcnt(0)")
P("s_barrier ; g0")
stamp(0, "B_e2")
P("s_branch L_c2")
P.label("L_cA2")
if DIAG:
    nstamp[0] -= 1
resid_loads()
epi_gelu(0)
P(f"s_cmp_lt_u32 {C_}, 3")
P("s_cbranch_scc0 L_cA3")
epi_gelu(1)
P.label("L_cA3")
P("s_barrier ; g0")
P("s_waitcnt vmcnt(0)")
flag_store(SFL2)
stamp(0, "A_e2")
P.label("L_c2")
AY, AS, AR = 64, 96, 144
WB, VA, FD, VF, XW, XRD = 2, 8, 10, 12, 14, 18
GG, XF, BF, YR = 176, 192, 208, 216
SBASE, SGB, SFHB, SFO, KH = "s72", "s73", "s74", "s75", "s77"
waddr(WB, 26, 27, 2)
P(f"s_lshr_b32 {KH}, {W}, 1\ns_lshl_b32 {T0}, {KH}, 12")
P(f"v_add_u32 {v(WB)}, {T0}, {v(WB)}\nv_xor_b32 {v(WB + 1)}, 64, {v(WB)}")
for k in (1, 2):
    P(f"v_add_u32 {v(WB + 2 * k)}, 0x{64 * K * k:x}, {v(WB)}\nv_add_u32 {v(WB + 2 * k + 1)}, 0x{64 * K * k:x}, {v(WB + 1)}")
P(f"s_lshl_b32 {T0}, {KH}, 11")
P(f"v_add_u32 {v(VA)}, {T0}, {v(VH)}\nv_add_u32 {v(VA + 1)}, 0x1000, {v(VA)}")
P(f"v_and_b32 {v(VF + 1)}, 31, v0\nv_lshlrev_b32 {v(VF + 1)}, 2, {v(VF + 1)}\nv_and_b32 {v(VF)}, 28, {v(VF + 1)}")
P(f"s_lshl_b32 {T3}, {TB2}, 1\ns_and_b32 {T0}, {W}, 1\ns_add_u32 {T3}, {T3}, {T0}")
P(f"s_mul_i32 {SBASE}, {T3}, {TB_STRIDE}\ns_add_u32 {SBASE}, {SBASE}, 0x{WS_HA:x}")
P(f"s_lshl_b32 {SFHB}, {T3}, 7\ns_add_u32 {SFHB}, {SFHB}, 0x{WS_FLAGS + FL_HB * 128:x}")
P(f"s_lshr_b32 {SFO}, {TB2}, 1\ns_lshl_b32 {SFO}, {SFO}, 7\ns_add_u32 {SFO}, {SFO}, 0x{WS_FLAGS + FL_O * 128:x}")
P(f"s_lshl_b32 {T0}, {T0}, 13\ns_lshl_b32 {T1}, {KH}, 14\ns_add_u32 {T0}, {T0}, {T1}\ns_add_u32 {T0}, {T0}, 0x{L_XY:x}")
P("v_lshrrev_b32 v26, 5, v0\nv_and_b32 v27, 7, v0\nv_xor_b32 v26, v26, v27\nv_lshlrev_b32 v26, 4, v26\nv_and_b32 v28, 31, v0\nv_lshl_or_b32 v26, v28, 8, v26")
P(f"v_add_u32 {v(XW)}, {T0}, v26")
for q in range(1, 4):
    P(f"v_xor_b32 {v(XW + q)}, {32 * q}, {v(XW)}")
P("v_lshrrev_b32 v26, 3, v0\nv_lshlrev_b32 v27, 1, v27\nv_xor_b32 v27, v27, v26\nv_lshlrev_b32 v27, 4, v27\nv_lshl_or_b32 v26, v26, 8, v27")
P(f"s_lshl_b32 {T0}, {W}, 12\ns_add_u32 {T0}, {T0}, 0x{L_XY:x}")
P(f"v_add_u32 {v(XRD)}, {T0}, v26\nv_xor_b32 {v(XRD + 1)}, 16, {v(XRD)}")
FHB = f"buffer_load_dword {v(FD)}, {v(VF)}, {rWS}, {SFHB} offen sc1"
FHA = f"buffer_load_dword {v(FD)}, {v(VF)}, {rWS}, {SFHB} offen offset:0 sc1"
FO = f"buffer_load_dword {v(FD + 1)}, {v(VF + 1)}, {rWS}, {SFO} offen sc1"
spin("L_hb", FHB, f"v_cmp_ne_u32 vcc, {NONCE}, {v(FD)}")
stamp(0, "hb_seen")
P(f"s_add_u32 {SFHB}, {SFHB}, {(FL_HA - FL_HB) * 128}")
vm = Q("vmcnt", 63)
NST = 30


def aload(n):
    if n >= NST:
        return
    g = n >> 1
    if n % 2 == 0:
        if g < 8:
            P(f"s_add_u32 {SGB}, {RHO2}, {g}\ns_and_b32 {SGB}, {SGB}, 7\ns_lshl_b32 {SGB}, {SGB}, 13\ns_add_u32 {SGB}, {SGB}, {SBASE}")
        elif g < 11:
            P(f"s_add_u32 {SGB}, {SBASE}, {g * 8192}")
        else:
            P(f"s_add_u32 {SGB}, {RHO2}, {g - 11}\ns_and_b32 {SGB}, {SGB}, 3\ns_lshl_b32 {SGB}, {SGB}, 13\ns_add_u32 {SGB}, {SGB}, {SBASE}")
            P(f"s_add_u32 {SGB}, {SGB}, {86 * K}")
    for ks in range(2):
        P(f"buffer_load_dwordx4 {v(AR + 8 * (n % 4) + 4 * ks, 4)}, {v(VA + n % 2)}, {rWS}, {SGB} offen offset:{1024 * ks} sc1")
        vm.add(("a", n, ks))


def wrd(m):
    n, ks, ct = m >> 2, (m >> 1) & 1, m & 1
    if n >= NST:
        return
    if m % 8 == 0 and (m >> 3) in (5, 8, 11):
        P(f"s_barrier ; g{m >> 3}")
    so = slot_of(2 * n) + ks * 2048
    k = so // (64 * K)
    f = WR + (m % 8) * 4
    tr(f, WB + 2 * k + ct, so - 64 * K * k, None)
    tr(f + 2, WB + 2 * k + ct, so - 64 * K * k + 1024, ("w2", m))


def unpack(dst, src, n):
    for r in range(n):
        P(f"v_lshlrev_b32 {v(dst + 2 * r)}, 16, {v(src + r)}\nv_and_b32 {v(dst + 2 * r + 1)}, 0xffff0000, {v(src + r)}")


def xwrite(acc, base):
    for ct in range(2):
        for q in range(4):
            lg.room()
            P(f"ds_write_b128 {v(XW + q)}, {v(acc + 16 * ct + 4 * q, 4)} offset:{base + 128 * ct}")
            lg.add(("xw", acc))


def xread(dst, base):
    for kh in range(2):
        for h in range(2):
            for j in range(2):
                lg.room()
                P(f"ds_read_b128 {v(dst + 16 * kh + 8 * h + 4 * j, 4)}, {v(XRD + j)} offset:{base + 16 * K * kh + 2048 * h}")
                lg.add(("xr", dst))


for n in range(4):
    aload(n)
for m in range(7):
    wrd(m)
unpack(XF, XRES, 8)
unpack(BF, BRES, 4)
side = []
for n in range(NST):
    acc = AY if n < 22 else AS
    if n == 21:
        P(f"s_cmp_eq_u32 {KH}, 0")
    for k4 in range(4):
        m = 4 * n + k4
        ks, ct = k4 >> 1, k4 & 1
        vm.wait(("a", n, ks))
        lg.wait(("w2", m))
        c = "0" if (n in (0, 22) and ks == 0) else v(acc + 16 * ct, 16)
        if n == 21:
            P(f"s_cbranch_scc0 L_null{k4}")
        P(f"v_mfma_f32_32x32x16_bf16 {v(acc + 16 * ct, 16)}, {v(WR + (m % 8) * 4, 4)}, {v(AR + 8 * (n % 4) + 4 * ks, 4)}, {c}")
        if n == 21:
            P.label(f"L_null{k4}")
        wrd(m + 7)
        if n == 22 and k4 == 3:
            xwrite(AY, 0)
        if n == 23 and k4 == 2:
            lg.wait(("xw", AY))
            P("s_barrier ; dY")
            xread(YR, 0)
        for _ in range(5):
            if side:
                P(side.pop(0))
    if n == 8:
        P(FHA)
        vm.add("f")
    if n == 14:
        P(FO)
        vm.add("f")
    if n == 12:
        vm.wait("f")
        P(f"v_cmp_ne_u32 vcc, {NONCE}, {v(FD)}")
        P("s_cbranch_vccz L_ha_x")
        spin("L_ha", FHA, f"v_cmp_ne_u32 vcc, {NONCE}, {v(FD)}")
        stamp(0, "ha_seen")
    if n == 18:
        vm.wait("f")
        P(f"v_cmp_ne_u32 vcc, {NONCE}, {v(FD + 1)}")
        P("s_cbranch_vccz L_o_x")
        spin("L_o", FO, f"v_cmp_ne_u32 vcc, {NONCE}, {v(FD + 1)}")
        stamp(0, "o_seen")
    aload(n + 4)
    if n == 24:
        lg.wait(("xr", YR))
        for r in range(16):
            side.append(f"v_add_f32 {v(YR + r)}, {v(YR + r)}, {v(YR + 16 + r)}")
        for r in range(16):
            side.append(f"v_add_f32 {v(YR + r)}, {v(YR + r)}, {v(BF + r % 8)}")
        for r in range(16):
            side.append(f"v_mul_f32 {v(GG + r)}, 0x{f2u(-LOG2E):x}, {v(YR + r)}")
        for r in range(16):
            side.append(f"v_exp_f32 {v(GG + r)}, {v(GG + r)}")
        for r in range(16):
            side.append(f"v_add_f32 {v(GG + r)}, 1.0, {v(GG + r)}")
        for r in range(16):
            side.append(f"v_rcp_f32 {v(GG + r)}, {v(GG + r)}")
        for r in range(16):
            side.append(f"v_mul_f32 {v(GG + r)}, {v(GG + r)}, {v(YR + r)}")
while side:
    P(side.pop(0))
stamp(0, "sdone")
lg.drain()
xwrite(AS, L_XS - L_XY)
lg.drain()
P("s_barrier ; dS")
xread(YR, L_XS - L_XY)
P(f"s_add_u32 {T2}, {SO}, 8192")
lg.drain()
for p in range(8):
    P(f"v_pk_add_f32 {v(YR + 2 * p, 2)}, {v(YR + 2 * p, 2)}, {v(YR + 16 + 2 * p, 2)}")
for p in range(8):
    P(f"v_pk_fma_f32 {v(YR + 2 * p, 2)}, {v(YR + 2 * p, 2)}, {v(GG + 2 * p, 2)}, {v(XF + 2 * p, 2)}")
cvt(UU, YR)
P(f"buffer_store_dwordx4 {v(UU, 4)}, {v(VO)}, {rA}, {SO} offen {OPT['outaux']}")
P(f"buffer_store_dwordx4 {v(UU + 4, 4)}, {v(VO)}, {rA}, {T2} offen {OPT['outaux']}")
P(f"s_or_b32 {T0}, s2, {W}\ns_cmp_eq_u32 {T0}, 0")
P("s_cbranch_scc0 L_cend")
flag_store(T0)
P.label("L_cend")
dump(0)
P("s_endpgm")
P.label("L_codeend")

body = P.finish()
hdr = f"""; Fused LayerNorm + linear attention + GELU FFN block, one persistent launch (256 workgroups, one per CU).
; @launch grid=(256,1,1) block=(512,1,1) lds=163840
.amdgcn_target "amdgcn-amd-amdhsa--gfx950"
.text
.globl {KNAME}
.p2align 8
.type {KNAME},@function
{KNAME}:
"""
tail = f"""
.section .rodata,"a"
.p2align 6
.amdhsa_kernel {KNAME}
  .amdhsa_next_free_vgpr 256
  .amdhsa_next_free_sgpr 102
  .amdhsa_accum_offset 256
  .amdhsa_group_segment_fixed_size 0
  .amdhsa_kernarg_size 88
  .amdhsa_user_sgpr_count 2
  .amdhsa_user_sgpr_kernarg_segment_ptr 1
  .amdhsa_system_sgpr_workgroup_id_x 1
  .amdhsa_float_denorm_mode_32 3
.end_amdhsa_kernel
"""
sys.stdout.write(hdr + body + tail)
sys.stderr.write(f"pads {P.npad} stamps {nstamp}\n")
```

```python
import re

TRANS = ("v_exp_f32", "v_log_f32", "v_rcp_f32", "v_rsq_f32", "v_sqrt_f32", "v_sin_f32", "v_cos_f32")


def regs_of(tok):
    tok = tok.strip()
    if tok.startswith("-"):
        tok = tok[1:]
    if tok.startswith("abs(") or tok.startswith("neg("):
        tok = tok[4:-1]
    m = re.fullmatch(r"([vs])\[(\d+):(\d+)\]", tok)
    if m:
        return {(m.group(1), i) for i in range(int(m.group(2)), int(m.group(3)) + 1)}
    m = re.fullmatch(r"([vs])(\d+)", tok)
    if m:
        return {(m.group(1), int(m.group(2)))}
    if tok in ("vcc", "vcc_lo", "vcc_hi"):
        return {("vcc", 0)}
    if tok == "m0":
        return {("m0", 0)}
    if tok in ("exec", "exec_lo", "exec_hi"):
        return {("exec", 0)}
    return set()


class Ins:
    def __init__(self, text):
        self.text = text
        t = text.split(";")[0].strip()
        self.label = None
        self.op = None
        self.dst = set()
        self.src = set()
        self.srcC = set()
        self.srcAB = set()
        if not t:
            return
        if t.endswith(":"):
            self.label = t[:-1]
            return
        if t.startswith("."):
            return
        parts = t.split(None, 1)
        self.op = op = parts[0]
        rest = parts[1] if len(parts) > 1 else ""
        ops = [o.strip() for o in re.split(r",(?![^\[]*\])", rest)] if rest else []
        toks = []
        mods = []
        for o in ops:
            sp = o.split()
            if not sp:
                continue
            toks.append(sp[0])
            mods += sp[1:]
        self.toks = toks
        self.mods = mods
        R = [regs_of(x) for x in toks]
        U = lambda l: set().union(*l) if l else set()
        self.is_mfma = op.startswith("v_mfma")
        self.is_valu = op.startswith("v_") and not self.is_mfma
        self.is_vmem = op.startswith("buffer_") or op.startswith("global_")
        self.is_ds = op.startswith("ds_")
        self.is_salu = op.startswith("s_")
        self.is_dpp = "_dpp" in op or any(m.startswith("row_") or m.startswith("quad_perm") for m in mods)
        self.is_trans = op.replace("_e32", "").replace("_e64", "") in TRANS
        self.is_perml = op.startswith("v_permlane")
        self.lds_dma = self.is_vmem and "lds" in mods
        if self.is_mfma:
            self.dst = R[0]
            self.srcAB = R[1] | R[2]
            self.srcC = R[3]
            self.src = self.srcAB | self.srcC
            self.passes = 4 if "16x16" in op else 8
        elif self.is_perml:
            self.dst = R[0] | R[1]
            self.src = R[0] | R[1]
        elif op.startswith("v_cmp"):
            self.dst = R[0]
            self.src = U(R[1:])
            if op.startswith("v_cmpx"):
                self.dst |= {("exec", 0)}
        elif op.startswith("v_add_co") or op.startswith("v_addc_co") or op.startswith("v_sub_co"):
            self.dst = R[0] | R[1]
            self.src = U(R[2:])
        elif self.is_valu:
            self.dst = R[0]
            self.src = U(R[1:])
            if op.startswith("v_fmac") or op.startswith("v_dot2c") or self.is_dpp:
                self.src |= R[0]
            if op.startswith("v_cndmask") and len(toks) == 3:
                self.src |= {("vcc", 0)}
        elif self.is_ds:
            if op.startswith("ds_read"):
                self.dst = R[0]
                self.src = U(R[1:])
            else:
                self.src = U(R)
        elif self.is_vmem:
            if op.startswith("buffer_load") and not self.lds_dma:
                self.dst = R[0]
                self.src = U(R[1:])
            elif op.startswith("buffer_atomic") and "sc0" in mods:
                self.dst = R[0]
                self.src = U(R)
            else:
                self.src = U(R)
            if self.lds_dma:
                self.src |= {("m0", 0)}
            self.wide_store = op in ("buffer_store_dwordx4", "buffer_store_dwordx3")
            self.store_data = R[0] if op.startswith("buffer_store") else set()
        elif self.is_salu:
            if op.startswith("s_cmp") or op.startswith("s_cbranch") or op in (
                "s_branch", "s_waitcnt", "s_nop", "s_barrier", "s_endpgm", "s_sleep", "s_setprio"):
                self.src = U(R)
            else:
                self.dst = R[0] if R else set()
                self.src = U(R[1:])
                if "saveexec" in op:
                    self.dst |= {("exec", 0)}

    def states(self):
        if self.op is None:
            return 0
        if self.op == "s_nop":
            return int(self.toks[0]) + 1
        return 1


def need(p, c):
    n = 0
    V = lambda s: {r for r in s if r[0] == "v"}
    SG = lambda s: {r for r in s if r[0] in ("s", "vcc")}
    if p.is_valu:
        vd = V(p.dst)
        if c.is_mfma and vd & c.src:
            n = max(n, 2)
        if c.is_valu and (c.is_dpp or c.is_perml) and vd & c.src:
            n = max(n, 2)
        if c.op.startswith("v_readfirstlane") or c.op.startswith("v_readlane"):
            if vd & c.src:
                n = max(n, 1)
        if p.is_trans and c.is_valu and not c.is_trans and vd & c.src:
            n = max(n, 1)
        if p.is_trans and (c.is_vmem or c.is_ds) and vd & c.src:
            n = max(n, 1)
        sd = SG(p.dst)
        if sd:
            if c.is_valu and sd & c.src:
                n = max(n, 2)
            if c.is_vmem and sd & c.src:
                n = max(n, 5)
            if c.is_salu and (sd & c.src or (("vcc", 0) in sd and "vcc" in c.op)):
                n = max(n, 2)
        if ("exec", 0) in p.dst:
            if c.is_mfma or c.is_perml or c.op.startswith("v_read"):
                n = max(n, 4)
            if c.is_valu and c.is_dpp:
                n = max(n, 5)
    if p.is_mfma:
        big = p.passes == 8
        if c.is_mfma:
            if p.dst & c.srcAB:
                n = max(n, 12 if big else 8)
            if p.dst & c.srcC and not (p.dst == c.srcC and p.passes == c.passes):
                n = max(n, 10 if big else 6)
            if p.dst & c.dst and not (p.dst == c.srcC):
                n = max(n, 12 if big else 8)
        elif c.is_valu or c.is_vmem or c.is_ds:
            if p.dst & (c.src | c.dst):
                n = max(n, 12 if big else 8)
            if c.is_valu and p.srcC & c.dst:
                n = max(n, 7 if big else 3)
    if p.is_salu and ("m0", 0) in p.dst and c.is_vmem and c.lds_dma:
        n = max(n, 1)
    if p.is_vmem and getattr(p, "wide_store", False):
        if p.store_data & c.dst:
            n = max(n, 2)
    return n


class Prog:
    def __init__(self):
        self.lines = []

    def __call__(self, text):
        for l in text.split("\n"):
            l = l.strip()
            if l:
                self.lines.append(l)

    def label(self, name):
        self.lines.append(name + ":")

    def finish(self):
        out = []
        npad = 0
        for l in self.lines:
            c = Ins(l)
            if c.op is not None:
                dist = 0
                req = 0
                for p in reversed(out):
                    if p.op is None:
                        continue
                    if p.op in ("s_branch", "s_endpgm"):
                        break
                    r = need(p, c) - dist
                    req = max(req, r)
                    dist += p.states()
                    if dist > 24:
                        break
                if req > 0:
                    npad += req
                    out.append(Ins("s_nop %d" % (req - 1)))
            out.append(c)
        def edge_need(k, b, pos):
            t = pos[b.toks[0]]
            head = [i for i in out[max(0, k - 40):k + 1] if i.op]
            tail = []
            for i in out[t:t + 60]:
                if i.op:
                    tail.append(i)
                    if i.op in ("s_branch", "s_endpgm"):
                        break
            worst = 0
            for ci, c in enumerate(tail[:24]):
                dist = sum(x.states() for x in tail[:ci])
                for p in reversed(head):
                    if p is not b and p.op in ("s_branch", "s_endpgm"):
                        break
                    worst = max(worst, need(p, c) - dist)
                    dist += p.states()
                    if dist > 24:
                        break
            return worst
        k = 0
        while k < len(out):
            b = out[k]
            if b.op and (b.op.startswith("s_cbranch") or b.op == "s_branch"):
                pos = {i.label: n for n, i in enumerate(out) if i.label}
                w = edge_need(k, b, pos)
                if w > 0:
                    out.insert(k, Ins("s_nop %d" % (w - 1)))
                    npad += w
                    k += 1
                    pos = {i.label: n for n, i in enumerate(out) if i.label}
                    assert edge_need(k, b, pos) <= 0
            k += 1
        self.npad = npad
        txt = []
        for i in out:
            txt.append(i.text if (i.label or i.op is None) else "  " + i.text)
        return "\n".join(txt)


def v(a, n=1):
    return "v%d" % a if n == 1 else "v[%d:%d]" % (a, a + n - 1)


def s(a, n=1):
    return "s%d" % a if n == 1 else "s[%d:%d]" % (a, a + n - 1)
```

```python
import sys, os, struct, math
from asmlib import Prog, v, s

KNAME = "recurrent_scan__linear_attn_block__dense_activation_gelu__prompt_kernel"
OPT = dict(diag=0, outaux="sc1", map1=81, spin=16, codepf=1, ldfirst=1, prio=1,
           nA9=3, nA10=7, nB10=8, mf=56, cprio=3, gx=36, n6=2, n7=1, kA=12, lag=8, sp=0, sp0=0, nost=0, slp=4, kvw=0, gprio=3, sA=4, xB=0, fast=1, kA0=12, kA1=8, kA2=0, rotx=1, spx=0, pB=4, iB=0, ring=4, nods=0, lsl=0, yB=12, zB=4, yB1=2, zB1=4, aaux="sc1", ahot=0, g2=52, rot2=1, pace=0, pace1=0, dy=4, ys=2, w2=1, p2only=0, plain=0, stouch=0, nst=0, saux="sc1", csprio=3, early=1, map2=81, smp=28, noa=0, now=0, la=7, touch=5, stdiag=0, p1only=0, nocomp=0, norot=0, noload=0, nocs=0)
for a in sys.argv[1:]:
    k, val = a.split("=")
    OPT[k] = val if not val.lstrip("-").isdigit() else int(val)
DIAG = OPT["diag"]


def f2u(x):
    return struct.unpack("<I", struct.pack("<f", x))[0]


K = 1024
WS_STATS = 0x1000
WS_FLAGS = 0x8000
FL_HB, FL_HA, FL_O, FL_KV = 0, 64, 128, 192
WS_KVP = 0x10000
KVP_STR = 4352
WS_CS = 0xA0000
WS_HA = 0x140000
TB_STRIDE = 118 * K
WS_DIAG = 0x900000
WS_SIZE = 0xA00000
def CH(q):
    return 96 * K + 8 * K * q if q < 7 else 88 * K
TBUF = 52 * K
TROW = 272
L_EX1 = 152 * K
L_CSX = 156 * K
L_RDY = 154 * K
L_PRG = L_RDY + 16
L_TAG = L_RDY + 32
L_FAST = L_RDY + 48
L_EX2 = 155 * K
L_KT = 156 * K
L_PQ = 72 * K
L_HS = 52 * K
L_XY = 96 * K
L_XS = 128 * K
def slot_of(p):
    if p < 32:
        return p * 4 * K
    if p < 38:
        return 128 * K + (p - 32) * 4 * K
    return (p - 38) * 4 * K

rX, rP1, rP2, rWS, rW2, rWO, rA, rB = (s(n, 4) for n in (4, 8, 12, 16, 20, 24, 28, 32))
P_X, P_QKV, P_WO, P_W1, P_B1, P_W2, P_B2, P_OUT, P_WS = 36, 38, 40, 44, 46, 48, 50, 52, 56
NONCE, W, I_, J_, C_, TYPE, RHO, TB2, CT, RHO2 = (s(n) for n in range(58, 68))
T0, T1, T2, T3 = (s(n) for n in range(68, 72))

P = Prog()


class Q:
    def __init__(self, name, mx):
        self.q, self.name, self.mx = [], name, mx

    def room(self):
        if len(self.q) >= self.mx:
            P(f"s_waitcnt {self.name}({self.mx - 1})")
            self.q = self.q[len(self.q) - (self.mx - 1):]

    def add(self, tag=None):
        self.q.append(tag)

    def need(self, tag):
        if tag not in self.q:
            return ""
        idx = max(i for i, t in enumerate(self.q) if t == tag)
        n = len(self.q) - 1 - idx
        assert n <= self.mx, (self.name, n)
        self.q = self.q[idx + 1:]
        return f"{self.name}({n})"

    def wait(self, tag):
        t = self.need(tag)
        if t:
            P("s_waitcnt " + t)

    def drain(self, force=False):
        if self.q or force:
            P(f"s_waitcnt {self.name}(0)")
        self.q = []


slots = [{}, {}]
def stamp(role, name):
    if not DIAG:
        return
    want = str(OPT.get(f"st{role}", "")).split(",")
    if want != [""] and name not in want and name not in ("start", "end"):
        return
    n = slots[role].setdefault(name, len(slots[role]))
    if DIAG >= 3:
        assert n < 9, (role, name)
        P(f"{'s_memtime' if DIAG == 4 else 's_memrealtime'} s[{80 + 2 * n}:{81 + 2 * n}]")
        return
    assert n < 16, (role, name)
    P(f"{'s_memtime' if DIAG == 2 else 's_memrealtime'} s[96:97]\ns_waitcnt lgkmcnt(0)\ns_mov_b32 s{80 + n}, s96")


def sreg(r):
    return int(r[2:r.index(":")])


def srd(r, ptr, size):
    n = sreg(r)
    P(f"s_mov_b32 s{n}, s{ptr}\ns_mov_b32 s{n+1}, s{ptr+1}\ns_mov_b32 s{n+2}, 0x{size:x}\ns_mov_b32 s{n+3}, 0x20000")


def sel2(dst, a, b):
    P(f"s_mov_b32 {dst}, 0x{b:x}\ns_cmov_b32 {dst}, 0x{a:x}")


cold = []


def flush_cold():
    for t in cold:
        P(t)
    cold.clear()


def spin_text(lbl, load, check):
    t = f"s_mov_b32 {T3}, {1 << OPT['spin']}\n{lbl}:\n{load}\ns_waitcnt vmcnt(0)\n{check}\n"
    t += f"s_sub_u32 {T3}, {T3}, 1\ns_cbranch_scc1 {lbl}_x\ns_cbranch_vccz {lbl}_x\n"
    if OPT["slp"]:
        t += f"s_sleep {OPT['slp']}\n"
    return t + f"s_branch {lbl}"


def spin(lbl, load, check):
    P(spin_text(lbl, load, check))
    P.label(lbl + "_x")


def retry(lbl, load, check):
    P(f"s_cbranch_vccnz {lbl}_s")
    P.label(lbl + "_x")
    cold.append(f"{lbl}_s:\n" + spin_text(lbl, load, check))


HX = "row"
FAR = "s46"
nrow = [0]
def row_store(text):
    if not OPT["fast"]:
        P(text + " sc1")
        return
    nrow[0] += 1
    l = f"L_r{nrow[0]}"
    P(f"s_cmp_lg_u32 {FAR}, 0\ns_cbranch_scc1 {l}\n{text}\n{l}_x:")
    cold.append(f"{l}:\n{text} sc1\ns_branch {l}_x")


def flag_store(sreg_off, va=26, aux="sc1"):
    P(f"v_mov_b32 {v(va)}, {NONCE}\nv_mov_b32 {v(va+1)}, 0")
    P("s_mov_b64 exec, 1")
    if aux == "row":
        row_store(f"buffer_store_dword {v(va)}, {v(va+1)}, {rWS}, {sreg_off} offen")
    else:
        P(f"buffer_store_dword {v(va)}, {v(va+1)}, {rWS}, {sreg_off} offen {aux}")
    P("s_mov_b64 exec, -1")


def signal(vaddr, vtmp, k):
    P(f"v_mov_b32 {v(vtmp)}, {k}\ns_mov_b64 exec, 1\nds_write_b32 {v(vaddr)}, {v(vtmp)}\ns_mov_b64 exec, -1")
    lg.add(None)


nwait = [0]
def peek(vaddr, vd):
    lg.room()
    P(f"ds_read_b32 {v(vd)}, {v(vaddr)}")
    lg.add(("peek", vd))


def await_(vaddr, vd, k, peeked=False):
    nwait[0] += 1
    lbl = f"L_w{nwait[0]}"
    if not peeked:
        peek(vaddr, vd)
    lg.wait(("peek", vd))
    P(f"v_cmp_gt_u32 vcc, {k}, {v(vd)}")
    P(f"s_cbranch_vccnz {lbl}_s")
    P.label(lbl + "_x")
    cold.append(f"{lbl}_s:\ns_mov_b32 {T3}, {1 << 20}\n{lbl}:\nds_read_b32 {v(vd)}, {v(vaddr)}\ns_waitcnt lgkmcnt(0)\n"
                f"v_cmp_gt_u32 vcc, {k}, {v(vd)}\ns_sub_u32 {T3}, {T3}, 1\ns_cbranch_scc1 {lbl}_x\ns_cbranch_vccz {lbl}_x\n"
                + (f"s_sleep {OPT['lsl']}\n" if OPT["lsl"] else "") + f"s_branch {lbl}")


def hblock2(dst):
    P(f"s_lshl_b32 {dst}, {C_}, 1\ns_add_u32 {T3}, {C_}, 3\ns_min_u32 {dst}, {dst}, {T3}\ns_add_u32 {dst}, {dst}, 32")


def waddr(dst, t1, t2, hshift):
    P(f"v_lshrrev_b32 {v(t1)}, 5, v0\nv_bfe_u32 {v(t2)}, v0, 2, 2\nv_lshl_add_u32 {v(t1)}, {v(t1)}, {hshift}, {v(t2)}")
    P(f"v_lshlrev_b32 {v(dst)}, 7, {v(t1)}")
    P(f"v_bfe_u32 {v(t1)}, v0, 3, 1\nv_lshl_or_b32 {v(dst)}, {v(t1)}, 6, {v(dst)}")
    P(f"v_bfe_u32 {v(t1)}, v0, 4, 1\nv_lshl_or_b32 {v(dst)}, {v(t1)}, 5, {v(dst)}")
    P(f"v_and_b32 {v(t1)}, 3, v0\nv_lshl_or_b32 {v(dst)}, {v(t1)}, 3, {v(dst)}")


def tr(dst, addr, off, tag):
    assert 0 <= off < 65536, off
    lg.room()
    P(f"ds_read_b64_tr_b16 {v(dst, 2)}, {v(addr)} offset:{off}")
    lg.add(tag)


def dump(role):
    if not DIAG:
        return
    P("s_waitcnt vmcnt(0)")
    stamp(role, "end")
    P("s_waitcnt lgkmcnt(0)")
    for n in range(16):
        P(f"v_mov_b32 {v(32 + n)}, {s(80 + n) if DIAG < 3 else (s(80 + 2 * n) if n < 10 else ('s100' if n == 15 else 0))}")
    P(f"s_lshl_b32 {T0}, s2, 3\ns_add_u32 {T0}, {T0}, {W}\ns_lshl_b32 {T0}, {T0}, 6\ns_add_u32 {T0}, {T0}, 0x{WS_DIAG + role * 256:x}")
    P("v_mov_b32 v26, 0\ns_mov_b64 exec, 1")
    for n in range(4):
        P(f"buffer_store_dwordx4 {v(32 + 4 * n, 4)}, v26, {rWS}, {T0} offen offset:{16 * n}")


P("s_cmp_ge_u32 s2, 256")
P("s_cbranch_scc1 L_end")
if DIAG >= 3:
    P("s_memrealtime s[100:101]")
P("s_load_dwordx16 s[36:51], s[0:1], 0")
P("s_load_dwordx4 s[52:55], s[0:1], 64")
P("s_load_dwordx2 s[56:57], s[0:1], 80")
P("v_lshrrev_b32 v1, 6, v0")
P("v_and_b32 v0, 63, v0")
P(f"s_lshr_b32 {T0}, s2, 3")
P(f"v_readfirstlane_b32 {T2}, v1")
if OPT["codepf"]:
    P("s_getpc_b64 s[32:33]")
    P.label("L_pc")
    P("s_mov_b32 s34, L_codeend-L_pc\ns_mov_b32 s35, 0x20000")
    P(f"s_lshl_b32 {T1}, {T0}, 3\ns_add_u32 {T1}, {T1}, {T2}\ns_lshl_b32 {T1}, {T1}, 7\nv_mov_b32 v2, {T1}")
    P("buffer_load_dword v31, v2, s[32:35], 0 offen")
P(f"s_and_b32 {T1}, s2, 7")
if OPT["map1"] == 24:
    P(f"s_lshr_b32 {I_}, {T1}, 2\ns_lshl_b32 {I_}, {I_}, 3\ns_lshr_b32 {T3}, {T0}, 2\ns_add_u32 {I_}, {I_}, {T3}")
    P(f"s_and_b32 {J_}, {T1}, 3\ns_lshl_b32 {J_}, {J_}, 2\ns_and_b32 {RHO}, {T0}, 3\ns_add_u32 {J_}, {J_}, {RHO}")
    P(f"s_lshl_b32 {RHO}, {RHO}, 1\ns_add_u32 {RHO}, {RHO}, {T3}\ns_and_b32 {T3}, {T1}, 1\ns_add_u32 {RHO}, {RHO}, {T3}\ns_and_b32 {RHO}, {RHO}, 7")
elif OPT["map1"] == 81:
    P(f"s_lshl_b32 {I_}, {T1}, 1\ns_lshr_b32 {T3}, {T0}, 4\ns_add_u32 {I_}, {I_}, {T3}\ns_and_b32 {J_}, {T0}, 15")
    P(f"s_lshl_b32 {RHO}, {T3}, 2\ns_add_u32 {RHO}, {RHO}, {J_}\ns_and_b32 {T3}, {T1}, 3\ns_add_u32 {RHO}, {RHO}, {T3}\ns_and_b32 {RHO}, {RHO}, 7")
else:
    P(f"s_lshr_b32 {I_}, {T1}, 1\ns_lshl_b32 {I_}, {I_}, 2\ns_lshr_b32 {T3}, {T0}, 3\ns_add_u32 {I_}, {I_}, {T3}")
    P(f"s_and_b32 {J_}, {T1}, 1\ns_lshl_b32 {J_}, {J_}, 3\ns_and_b32 {RHO}, {T0}, 7\ns_add_u32 {J_}, {J_}, {RHO}")
    P(f"s_lshl_b32 {T3}, {T3}, 1\ns_add_u32 {RHO}, {RHO}, {T3}\ns_bfe_u32 {T3}, {T1}, 0x10001\ns_add_u32 {RHO}, {RHO}, {T3}\ns_and_b32 {RHO}, {RHO}, 7")
P(f"s_lshr_b32 {C_}, {J_}, 1\ns_and_b32 {TYPE}, {J_}, 1\ns_and_b32 {W}, {T2}, 3")
if OPT["norot"] == 1:
    P(f"s_mov_b32 {RHO}, 0")
if OPT["norot"] == 2:
    P(f"s_and_b32 {RHO}, {T1}, 3\ns_lshl_b32 {RHO}, {RHO}, 1\ns_lshr_b32 {T3}, {T1}, 2\ns_mul_i32 {T3}, {T3}, 5\ns_add_u32 {RHO}, {RHO}, {T3}\ns_and_b32 {RHO}, {RHO}, 7")
if OPT["norot"] == 3:
    P(f"s_and_b32 {RHO}, {T1}, 3\ns_lshl_b32 {RHO}, {RHO}, 1\ns_lshr_b32 {T3}, {T1}, 2\ns_add_u32 {RHO}, {RHO}, {T3}\ns_bfe_u32 {T3}, {T0}, 0x10002\ns_lshl_b32 {T3}, {T3}, 2\ns_add_u32 {RHO}, {RHO}, {T3}\ns_and_b32 {RHO}, {RHO}, 7")
if OPT["norot"] == 4:
    P(f"s_and_b32 {RHO}, {T1}, 3\ns_lshl_b32 {RHO}, {RHO}, 1\ns_lshr_b32 {T3}, {T1}, 2\ns_add_u32 {RHO}, {RHO}, {T3}\ns_bfe_u32 {T3}, {T0}, 0x20002\ns_lshl_b32 {T3}, {T3}, 1\ns_add_u32 {RHO}, {RHO}, {T3}\ns_and_b32 {RHO}, {RHO}, 7")
if OPT["norot"] == 5:
    P(f"s_lshr_b32 {RHO}, {T0}, 2\ns_and_b32 {T3}, {T1}, 3\ns_lshl_b32 {T3}, {T3}, 1\ns_add_u32 {RHO}, {RHO}, {T3}\ns_and_b32 {RHO}, {RHO}, 7")
if OPT["norot"] == 6:
    P(f"s_and_b32 {RHO}, {T0}, 3\ns_lshl_b32 {RHO}, {RHO}, 1\ns_and_b32 {T3}, {T1}, 1\ns_add_u32 {RHO}, {RHO}, {T3}\ns_lshr_b32 {T3}, {T1}, 2\ns_lshl_b32 {T3}, {T3}, 2\ns_add_u32 {RHO}, {RHO}, {T3}\ns_and_b32 {RHO}, {RHO}, 7")


RHOS, RHOA = "s3", "s47"
def tile2():
    if OPT["map2"] == 42:
        P(f"s_lshr_b32 {T3}, s2, 5\ns_bfe_u32 {TB2}, s2, 0x20001\ns_lshl_b32 {TB2}, {TB2}, 3\ns_add_u32 {TB2}, {TB2}, {T3}")
        P(f"s_bfe_u32 {RHO2}, s2, 0x20003\ns_and_b32 {CT}, s2, 1\ns_lshl_b32 {CT}, {CT}, 2\ns_add_u32 {CT}, {CT}, {RHO2}")
        P(f"s_lshl_b32 {RHO2}, {RHO2}, 1\ns_add_u32 {RHO2}, {RHO2}, {T3}\ns_and_b32 {RHO2}, {RHO2}, 7")
        return
    P(f"s_lshr_b32 {T3}, s2, 6\ns_and_b32 {TB2}, s2, 7\ns_lshl_b32 {TB2}, {TB2}, 2\ns_add_u32 {TB2}, {TB2}, {T3}")
    P(f"s_bfe_u32 {CT}, s2, 0x30003\ns_lshl_b32 {RHO2}, {T3}, 1\ns_add_u32 {RHO2}, {RHO2}, {CT}\ns_and_b32 {RHO2}, {RHO2}, 7")
    P(f"s_add_u32 {RHOS}, {T3}, {CT}\ns_mul_i32 {RHOA}, {T3}, 3\ns_and_b32 {T3}, {CT}, 1\ns_add_u32 {RHOA}, {RHOA}, {T3}")
    if not OPT["rotx"]:
        P(f"s_mov_b32 {RHOS}, {RHO2}\ns_mov_b32 {RHOA}, 0")


if DIAG:
    for n in range(20):
        P(f"s_mov_b32 s{80 + n}, 0")
P(f"s_cmp_ge_u32 {T2}, 4")
P("s_cbranch_scc1 L_compute" if OPT["ldfirst"] else "s_cbranch_scc0 L_compute")

lg = Q("lgkmcnt", 15)
vm = Q("vmcnt", 63)
VX, VP1, VP2, VW2, VBI, LWA, LWB, VL16, SEL, CS, CS2 = 1, 2, 3, 4, 5, 6, 7, 8, 12, 16, 20
RS1, RS32, SX0, SW0, DCOL, SP20, SM, HB0L = (s(n) for n in range(72, 80))
stamp(1, "start")
P(f"s_setprio {OPT['prio']}")
P(f"s_cmp_eq_u32 {TYPE}, 0")
sel2(RS1, 3072, 2752)
sel2(DCOL, 1024, 128)
P("v_lshrrev_b32 v24, 3, v0\nv_and_b32 v25, 7, v0\nv_lshrrev_b32 v26, 4, v0")
P(f"s_and_b32 {T0}, {W}, 1\ns_lshl_b32 {T0}, {T0}, 2")
P(f"v_add_u32 v27, {T0}, v26\nv_xor_b32 v27, v27, v25\nv_lshlrev_b32 v27, 4, v27\nv_lshl_or_b32 {v(VX)}, v24, 10, v27")
P("v_and_b32 v27, 1, v26\nv_lshlrev_b32 v27, 2, v27\nv_xor_b32 v27, v27, v25\nv_lshlrev_b32 v27, 4, v27")
P(f"v_mad_u32_u24 {v(VP1)}, v24, {RS1}, v27")
hblock2(HB0L)
P(f"s_lshl_b32 {SX0}, {I_}, 4\ns_add_u32 {SX0}, {SX0}, {W}\ns_lshl_b32 {SX0}, {SX0}, 13")
P(f"s_lshl_b32 {T0}, {HB0L}, 6\ns_lshl_b32 {T1}, {C_}, 7\ns_add_u32 {T2}, {T1}, 1024\ns_lshl_b32 {SW0}, {C_}, 8")
P(f"s_cmp_eq_u32 {TYPE}, 0")
P(f"s_cselect_b32 {SW0}, {T2}, {SW0}\ns_cselect_b32 {SP20}, {T1}, {T0}")
SZQ, SZ1 = 512 * 3072, 512 * 2752
sel2("s10", SZQ, SZ1)
P(f"s_lshl_b32 {T3}, {W}, 3\ns_mul_i32 {T0}, {T3}, {RS1}\ns_add_u32 {SW0}, {SW0}, {T0}\ns_add_u32 {SP20}, {SP20}, {T0}")
P(f"s_lshl_b32 {SM}, {W}, 10\ns_lshl_b32 {RS32}, {RS1}, 5")
P(f"v_lshl_or_b32 {v(VW2)}, v24, 10, v27")
P("s_mov_b32 s11, 0x20000\ns_mov_b32 s6, 0x200000\ns_mov_b32 s7, 0x20000")
P(f"s_cmp_eq_u32 {TYPE}, 0")
stamp(1, "pre")
P("s_waitcnt lgkmcnt(0)")
stamp(1, "karg")
P(f"s_mov_b32 s4, s{P_X}\ns_mov_b32 s5, s{P_X+1}")
P(f"s_cselect_b32 s8, s{P_QKV}, s{P_W1}\ns_cselect_b32 s9, s{P_QKV+1}, s{P_W1+1}")


def dma(voff, srdr, soff, tag):
    if OPT["noload"]:
        return
    P(f"buffer_load_dwordx4 {v(voff)}, {srdr}, {soff} offen lds")
    vm.add(tag)


def ks_reg(q):
    P(f"s_add_u32 {T0}, {RHO}, {q}\ns_and_b32 {T0}, {T0}, 7")


def stage(q, mid=None):
    sl = (q % 3) * 32 * K
    ks_reg(q)
    P(f"s_lshl_b32 {T1}, {T0}, 7\ns_add_u32 {T1}, {T1}, {SX0}")
    for m in range(4):
        P(f"s_add_u32 m0, {SM}, {sl + 4 * K * m}")
        if m:
            P(f"s_add_u32 {T1}, {T1}, 32768")
        else:
            P(f"s_lshl_b32 {T0}, {T0}, 6")
        dma(VX, rX, T1, ("st", q))
    if mid:
        mid()
    P(f"s_mul_i32 {T0}, {T0}, {RS1}\ns_add_u32 {T0}, {T0}, {SW0}")
    for h in range(2):
        if h:
            P(f"s_add_u32 {T0}, {T0}, {RS32}")
        P(f"s_add_u32 m0, {SM}, {sl + 16 * K + 4 * K * h}")
        P(f"s_add_u32 {T1}, {T0}, {DCOL}")
        dma(VP1, rP1, T0, ("st", q))
        P(f"s_add_u32 m0, {SM}, {sl + 24 * K + 4 * K * h}")
        dma(VP1, rP1, T1, ("st", q))


def chunk(q, tag="ch"):
    ks_reg(q)
    P(f"s_lshl_b32 {T0}, {T0}, 6\ns_mul_i32 {T0}, {T0}, {RS1}")
    P(f"s_add_u32 m0, {SM}, {CH(q)}\ns_add_u32 {T0}, {T0}, {SP20}")
    dma(VP1, rP1, T0, tag)
    P(f"s_add_u32 m0, {SM}, {CH(q) + 4 * K}\ns_add_u32 {T0}, {T0}, {RS32}")
    dma(VP1, rP1, T0, tag)


LPA, LPL = "s48", "s49"
LPB, LGB, SCS = "s36", "s37", "s38"
STG, G, PQR, D0, D1 = 48, 148, 212, 32, 228


def page_addr(p):
    if p < 32:
        g, mask, sr, add = p >> 2, 7, rW2, 0
    elif p < 44:
        P(f"s_add_u32 {T0}, {LPA}, {(p - 32) * 32768}\ns_cmp_ge_u32 {T0}, {LPL}\ns_cselect_b32 {T1}, {11 * 32768}, 0\ns_sub_u32 {T0}, {T0}, {T1}")
        return rW2
    else:
        g, mask, sr, add = (p - 44) >> 2, 3, rWO, 0
    if p % 4 == 0 or page_addr.last != (p >> 2):
        P(f"s_add_u32 {LGB}, {RHO2 if p < 32 else RHOS}, {g}\ns_and_b32 {LGB}, {LGB}, {mask}\ns_lshl_b32 {LGB}, {LGB}, 17\ns_add_u32 {LGB}, {LGB}, {LPB}")
        page_addr.last = p >> 2
    P(f"s_add_u32 {T0}, {LGB}, {(p % 4) * 32768}")
    return sr
page_addr.last = None


def page(p):
    P(f"s_add_u32 m0, {SM}, {slot_of(p)}")
    sr = page_addr(p)
    dma(VW2, sr, T0, ("pg", p))


def stg_reg(p):
    return STG + 4 * (p - 18) if p < 44 else G + 4 * (p - 44)


def page_stage(p):
    sr = page_addr(p)
    P(f"buffer_load_dwordx4 {v(stg_reg(p), 4)}, {v(VW2)}, {sr}, {T0} offen")
    vm.add(("pg", p))


def page_write(p, pace=0):
    so = slot_of(p)
    a, off = (VL16, so) if so < 64 * K else ((VL16 + 1, so - 64 * K) if so < 128 * K else (VL16 + 2, so - 128 * K))
    P(f"ds_write_b128 {v(a)}, {v(stg_reg(p), 4)} offset:{off}")
    if pace:
        P("s_waitcnt lgkmcnt(0)")


stage(0)
stamp(1, "st0")
chunk(0, "ch0")
srd(rWS, P_WS, WS_SIZE)
srd(rW2, P_W2, 1376 * 1024)
srd(rWO, P_WO, 512 * 1024)
srd(rA, P_B1, 2752)
tile2()
waddr(LWA, 27, 28, 3)
P(f"s_and_b32 {T0}, {W}, 1\ns_lshl_b32 {T0}, {T0}, 6")
P(f"v_xor_b32 {v(LWA)}, {T0}, {v(LWA)}")
P(f"v_add_u32 {v(LWB)}, 0x{CH(0):x}, {v(LWA)}")
P(f"s_lshr_b32 {T0}, {W}, 1\ns_lshl_b32 {T0}, {T0}, 13\ns_add_u32 {T0}, {T0}, {16 * K}")
P(f"v_add_u32 {v(LWA)}, {T0}, {v(LWA)}")
P("v_and_b32 v27, 15, v0\nv_lshlrev_b32 v28, 2, v26\nv_cmp_eq_u32 vcc, v27, v28\nv_mov_b32 v27, 0x3f803f80")
for r in range(4):
    P(f"v_cndmask_b32 {v(SEL + r)}, 0, v27, vcc")
P(f"v_lshl_add_u32 {v(VL16)}, v0, 4, {SM}")
P(f"v_add_u32 {v(VL16+1)}, 0x10000, {v(VL16)}\nv_add_u32 {v(VL16+2)}, 0x20000, {v(VL16)}")
P(f"s_lshl_b32 {LPB}, {W}, 13\ns_lshl_b32 {T1}, {CT}, 7\ns_add_u32 {LPB}, {LPB}, {T1}")
P(f"s_lshl_b32 {LPA}, {RHOA}, 15\ns_add_u32 {LPA}, {LPA}, {LPB}\ns_add_u32 {LPA}, {LPA}, {32 * 32768}\ns_add_u32 {LPL}, {LPB}, {43 * 32768}")
P(f"s_lshl_b32 {SCS}, {J_}, 1\ns_lshr_b32 {T0}, {I_}, 3\ns_add_u32 {SCS}, {SCS}, {T0}\ns_lshl_b32 {SCS}, {SCS}, 2")
P(f"s_add_u32 {SCS}, {SCS}, {W}\ns_lshl_b32 {SCS}, {SCS}, 12\ns_add_u32 {SCS}, {SCS}, 0x{WS_CS:x}")
P(f"s_lshl_b32 {T0}, {C_}, 2\ns_add_u32 {T0}, {T0}, {W}\ns_lshl_b32 {T0}, {T0}, 6")
P(f"s_and_b32 {T1}, {W}, 1\ns_add_u32 {T1}, {T1}, {HB0L}\ns_lshl_b32 {T1}, {T1}, 6")
P(f"s_cmp_eq_u32 {TYPE}, 0\ns_cselect_b32 {T0}, 0x100000, {T0}\ns_cselect_b32 {T1}, 0x100000, {T1}")
P(f"v_mov_b32 v27, {T0}\nv_mov_b32 v28, {T1}\nv_cmp_gt_u32 vcc, 32, v0\nv_and_b32 v29, 31, v0")
P(f"v_cndmask_b32 v27, v28, v27, vcc\nv_lshl_add_u32 v30, v29, 1, v27")
STW, STO = "s40", "s41"
P(f"s_lshr_b32 {T0}, s2, 3\ns_lshl_b32 {T0}, {T0}, 2\ns_add_u32 {T0}, {T0}, {W}\ns_and_b32 {T1}, s2, 7")
P(f"s_mul_i32 {STW}, {T0}, 86\ns_mul_i32 {T2}, {T1}, 5\ns_add_u32 {STW}, {STW}, {T2}\ns_lshl_b32 {STW}, {STW}, 7")
P(f"s_lshl_b32 {STO}, {T0}, 4\ns_add_u32 {STO}, {STO}, {T1}\ns_lshl_b32 {STO}, {STO}, 8")
if OPT["stouch"]:
    P(f"s_lshl_b32 {T0}, s2, 2\ns_add_u32 {T0}, {T0}, {W}\ns_mul_i32 {STW}, {T0}, {11 * 128}\ns_lshl_b32 {STO}, {T0}, 9")
ntouch = [0]
def touches(n):
    for _ in range(n):
        t = ntouch[0]
        ntouch[0] += 1
        if t % 4 != 3:
            P(f"s_buffer_load_dword s44, {rW2}, {STW} offset:{(t - t // 4) * 128}")
        elif t // 4 < 32:
            P(f"s_buffer_load_dword s44, {rWO}, {STO} offset:{(t // 4) * 128}")
VSIG, VPK = 11, 24
P(f"s_lshl_b32 {T0}, {W}, 2\ns_add_u32 {T0}, {T0}, 0x{L_RDY:x}\nv_mov_b32 {v(VSIG)}, {T0}")
P(f"v_and_b32 {v(VPK)}, 3, v0\nv_lshlrev_b32 {v(VPK)}, 2, {v(VPK)}\nv_add_u32 {v(VPK)}, 0x{L_PRG:x}, {v(VPK)}")
signal(VSIG, 27, 0)
lg.drain()
stamp(1, "setup")
stage(1)
stamp(1, "issued")
vm.wait("ch0")
vm.wait(("st", 0))
stamp(1, "land")
if OPT["p2only"]:
    P("s_waitcnt vmcnt(0)\ns_barrier")
    signal(VSIG, 27, 6)
    P("s_barrier\ns_barrier")
    dump(1)
    P("s_endpgm")
    lg.q = []
P("s_barrier ; b0")
stamp(1, "b0")
FR = 32


def cs_reads(a, f):
    for t in range(4):
        P(f"ds_read_b64_tr_b16 {v(f + 4 * t, 2)}, {v(a)} offset:{t * 2048}")
        P(f"ds_read_b64_tr_b16 {v(f + 4 * t + 2, 2)}, {v(a)} offset:{t * 2048 + 512}")


def cs_mfma(acc, f):
    for t in range(4):
        P(f"v_mfma_f32_16x16x32_bf16 {v(acc, 4)}, {v(SEL, 4)}, {v(f + 4 * t, 4)}, {'0' if t == 0 else v(acc, 4)}")


CSL = "\n".join(f"buffer_load_dwordx2 {v(32 + 2 * n, 2)}, v29, {rWS}, {SCS} offen offset:{512 * n} sc1" for n in range(8))
CSC = "\n".join([f"v_xor_b32 {v(48 + n)}, {NONCE}, {v(33 + 2 * n)}" for n in range(8)] +
                ["v_or3_b32 v48, v48, v49, v50", "v_or3_b32 v51, v51, v52, v53", "v_or3_b32 v48, v48, v54, v55",
                 "v_or_b32 v48, v48, v51", "v_cmp_ne_u32 vcc, 0, v48"])
nch = 1
for st in range(8):
    if st == 0:
        def mid():
            P(f"s_setprio {OPT['csprio']}")
            P("s_waitcnt lgkmcnt(0)")
            cs_reads(LWB, FR + 16)
            cs_mfma(CS, FR)
        P(f"v_mov_b32 v29, 0x{L_TAG:x}")
        cs_reads(LWA, FR)
        P("ds_read_b32 v29, v29")
        stage(2, mid)
        P(f"buffer_load_ushort {v(VBI)}, v30, {rA}, 0 offen")
        vm.add("bias")
        P(f"v_readfirstlane_b32 {NONCE}, v29")
        P(f"s_lshl_b32 {T0}, {W}, 8\ns_add_u32 {T0}, {T0}, 0x{L_CSX:x}")
        P(f"v_lshl_add_u32 v27, v0, 2, {T0}")
        P("s_waitcnt lgkmcnt(0)")
        cs_mfma(CS2, FR + 16)
    elif st <= 5:
        stage(st + 2)
    if st == 0:
        P(f"v_permlane32_swap_b32 {v(CS)}, {v(CS2)}")
        P(f"v_add_f32 {v(CS)}, {v(CS)}, {v(CS2)}")
        P(f"ds_write_b32 v27, {v(CS)}")
        P(f"s_setprio {OPT['prio']}")
        P("s_waitcnt lgkmcnt(0)")
    if OPT["sp0"] <= st < 7 and st > 0:
        touches(OPT["sp"])
    if OPT["spx"] and 1 <= st <= 6:
        if st == 1:
            P(f"s_lshl_b32 {STW}, {RHO2}, 17\ns_add_u32 {STW}, {STW}, {LPB}\ns_add_u32 {STO}, {RHO2}, 1\ns_and_b32 {STO}, {STO}, 7\ns_lshl_b32 {STO}, {STO}, 17\ns_add_u32 {STO}, {STO}, {LPB}")
        for t in range((st - 1) * OPT["spx"], min(64, st * OPT["spx"])):
            P(f"s_buffer_load_dword s44, {rW2}, {STW if t < 32 else STO} offset:{((t % 32) >> 3) * 32768 + (t & 7) * 1024}")
    if OPT["stouch"] and st in (OPT["stouch"], OPT["stouch"] + 1):
        for t in range(8 * (st - OPT["stouch"]), min(15, 8 * (st - OPT["stouch"]) + 8)):
            P(f"s_buffer_load_dword s44, {rW2}, {STW} offset:{t * 128}" if t < 11 else f"s_buffer_load_dword s44, {rWO}, {STO} offset:{(t - 11) * 128}")
    if st == 6:
        P("v_lshlrev_b32 v29, 3, v0")
        if not OPT["nocs"]:
            P(CSL)
            for n in range(8):
                vm.add("cs")
        for q in range(nch, nch + OPT["n6"]):
            chunk(q)
        nch += OPT["n6"]
    if st == 7:
        if not OPT["nocs"]:
            vm.wait("cs")
            P(CSC)
            retry("L_cs", CSL, CSC)
        P("v_add_f32 v32, v32, v34\nv_add_f32 v36, v36, v38\nv_add_f32 v40, v40, v42\nv_add_f32 v44, v44, v46")
        P("v_add_f32 v32, v32, v36\nv_add_f32 v40, v40, v44\nv_add_f32 v32, v32, v40")
        P("v_cvt_pk_bf16_f32 v33, v32, v32\nv_lshlrev_b32 v33, 16, v33\nv_sub_f32 v32, v32, v33\nv_cvt_pk_bf16_f32 v32, v33, v32")
        P("v_cmp_gt_u32 vcc, 32, v0")
        P(f"s_lshl_b32 {T0}, {W}, 9\ns_add_u32 {T0}, {T0}, 0x{L_EX1:x}")
        P(f"v_add_u32 v29, {T0}, v29")
        P(f"v_cndmask_b32 v34, 0, v32, vcc\nv_cndmask_b32 v35, 0, {v(VBI)}, vcc")
        P(f"v_cndmask_b32 v36, v32, 0, vcc\nv_cndmask_b32 v37, {v(VBI)}, 0, vcc")
        P(f"ds_write_b64 v29, v[34:35]\nds_write_b64 v29, v[36:37] offset:{L_EX2 - L_EX1}")
        for q in range(nch, nch + OPT["n7"]):
            chunk(q)
        nch += OPT["n7"]
        P("s_waitcnt lgkmcnt(0)")
    else:
        vm.wait(("st", st + 1))
    P(f"s_barrier ; b{st + 1}")
    if "st1" in OPT and st < 7:
        stamp(1, f"b{st+1}")
stamp(1, "b8")
if OPT["p1only"]:
    dump(1)
    P("s_endpgm")
    DIAG = 0
for q in range(nch, 8):
    chunk(q)
XRES, BRES, VO, SO = 244, 252, 19, "s45"
srd(rB, P_B2, 1024)
srd(rP2, P_OUT, 2 * K * K)
P(f"v_and_b32 v28, 7, v0\nv_lshlrev_b32 v28, 4, v28\nv_lshrrev_b32 v29, 3, v0\nv_lshl_or_b32 {v(VO)}, v29, 10, v28")
P(f"s_lshl_b32 {SO}, {TB2}, 2\ns_add_u32 {SO}, {SO}, {W}\ns_lshl_b32 {SO}, {SO}, 14\ns_lshl_b32 {T1}, {CT}, 7\ns_add_u32 {SO}, {SO}, {T1}")
P(f"s_add_u32 {T2}, {SO}, 8192")
P(f"buffer_load_dwordx4 {v(BRES, 4)}, v28, {rB}, {T1} offen")
P(f"buffer_load_dwordx4 {v(XRES, 4)}, {v(VO)}, {rX}, {SO} offen")
P(f"buffer_load_dwordx4 {v(XRES + 4, 4)}, {v(VO)}, {rX}, {T2} offen")
for _ in range(3):
    vm.add("res")
vq8 = list(vm.q)


def stream(seq, events):
    pend, n = [], 0
    for tag in events:
        if tag in vm.q:
            pend.append([tag, len(vm.q) - 1 - max(i for i, t in enumerate(vm.q) if t == tag)])
    for p in seq:
        (page if p < 18 else page_stage)(p)
        if "st1" in OPT:
            stamp(1, f"p{p}")
        for e in pend:
            e[1] += 1
        if ("pg", p) in events:
            pend.append([("pg", p), 0])
        while pend and pend[0][1] >= OPT["lag"]:
            tag = pend.pop(0)[0]
            vm.wait(tag)
            signal(VSIG, 26, events[tag])
    for tag, _ in pend:
        vm.wait(tag)
        signal(VSIG, 26, events[tag])


P(f"s_cmp_eq_u32 {TYPE}, 0")
P("s_cbranch_scc1 L_lA")
SH1, SH2, SF1 = "s4", "s5", "s6"
P(f"v_add_u32 v22, 16, {v(VSIG)}\nv_lshlrev_b32 v23, 4, v0")
P(f"s_lshl_b32 {T0}, {I_}, 2\ns_add_u32 {T0}, {T0}, {W}")
P(f"s_mul_i32 {SH1}, {T0}, {TB_STRIDE}\ns_add_u32 {SH1}, {SH1}, 0x{WS_HA:x}")
P(f"s_lshl_b32 {SH2}, {HB0L}, 11\ns_add_u32 {SH2}, {SH2}, {SH1}\ns_lshl_b32 {T1}, {C_}, 13\ns_add_u32 {SH1}, {SH1}, {T1}")
P(f"s_lshl_b32 {SF1}, {T0}, 5\ns_add_u32 {SF1}, {SF1}, {C_}\ns_lshl_b32 {SF1}, {SF1}, 2\ns_add_u32 {SF1}, {SF1}, 0x{WS_FLAGS + FL_HB * 128:x}")


def far():
    P(f"ds_read_b32 v28, {v(VPK)} offset:{L_FAST - L_PRG}\ns_waitcnt lgkmcnt(0)\nv_cmp_ne_u32 vcc, 0, v28\ns_or_b32 {FAR}, vcc_lo, vcc_hi")


def hstore(k, base, b, sh, tag):
    if k == 1:
        await_(VPK, 28, k)
        far()
    else:
        await_(22, 28, k)
    d = D0 + 8 * (b & 1)
    for u in range(2):
        a = base + (2 * b + u) * 4096
        P(f"ds_read_b128 {v(d + 4 * u, 4)}, {v(VL16 + a // (64 * K))} offset:{a % (64 * K)}")
    if b == 2:
        P(f"s_add_u32 {sh}, {sh}, 4096")
    for u in range(2):
        P(f"s_waitcnt lgkmcnt({1 - u})")
        row_store(f"buffer_store_dwordx4 {v(d + 4 * u, 4)}, v23, {rWS}, {sh} offen offset:{2048 * (b & 1) + 1024 * u}")
        vm.add(tag)


np_ = OPT["pB"]
stream(range(0, np_), {})
hstore(1, L_HS, 0, SH1, "h")
vm.wait("ch")
signal(VSIG, 26, 1)
for b in range(1, 4):
    stream(range(np_, np_ + OPT["iB"]), {})
    np_ += OPT["iB"]
    hstore(b + 1, L_HS, b, SH1, "h")
signal(VSIG, 26, 2)
stamp(1, "h_st")
stream(range(np_, 18 + OPT["xB"]), {})
vm.wait("h")
flag_store(SF1, aux=HX)
vm.add(None)
stamp(1, "hbflag")
vm.wait(("pg", 17))
signal(VSIG, 26, 3)
P(f"s_add_u32 {SF1}, {SF1}, {(FL_HA - FL_HB) * 128}")
P(f"s_cmp_lt_u32 {C_}, 3")
P("s_cbranch_scc0 L_lB1")
vqB = list(vm.q)
for nb in (2, 1):
    if nb == 1:
        P.label("L_lB1")
        vm.q = list(vqB)
        page_addr.last = None
    rest = list(range(18 + OPT["xB"], 43)) + list(range(44, 60))
    pre, post = (OPT["yB"], OPT["zB"]) if nb == 2 else (OPT["yB1"], OPT["zB1"])
    stream(rest[:pre], {})
    stamp(1, "staged")
    lg.q = []
    for b in range(nb):
        hstore(6 + b, L_PQ, b, SH2, "h2")
    stamp(1, "h2_st")
    stream(rest[pre:pre + post], {})
    vm.wait("h2")
    flag_store(SF1, aux=HX)
    vm.add(None)
    stamp(1, "oflag")
    late = [p for p in rest[pre + post:] if p < 38]
    stream(late, {})
    await_(VPK, 28, 5)
    for p in range(18, 38):
        vm.wait(("pg", p))
        page_write(p)
    signal(VSIG, 26, 4)
    stream([p for p in rest[pre + post:] if p >= 38], {})
    vm.wait(("pg", 42))
    P("s_branch L_l5")
P.label("L_lA")
vm.q = list(vq8)
lg.q = []
page_addr.last = None
restA = list(range(18, 43)) + list(range(44, 60))
k0, k1, k2 = OPT["kA0"], OPT["kA0"] + OPT["kA1"], OPT["kA0"] + OPT["kA1"] + OPT["kA2"]
stream(list(range(13)) + restA[:k0], {"ch": 1})
await_(VPK, 28, 2)
far()
stream(list(range(13, 18)) + restA[k0:k1], {})
SZL, SK0, SK1, SKE = "s4", "s5", "s6", "s7"
NB = [NONCE, "s39", "s42", "s43"]
P("v_and_b32 v23, 15, v0\nv_lshlrev_b32 v27, 4, v0")
P(f"v_lshrrev_b32 v22, 2, v0\nv_mul_u32_u24 v25, {KVP_STR}, v22\nv_and_b32 v26, 3, v0\nv_lshl_add_u32 v25, v26, 4, v25")
P(f"s_mul_i32 {SK0}, {C_}, {16 * KVP_STR}\ns_add_u32 {SK0}, {SK0}, 0x{WS_KVP:x}")
P(f"s_lshl_b32 {SZL}, {W}, 6\ns_add_u32 {SZL}, {SZL}, {SK0}\ns_add_u32 {SZL}, {SZL}, 4096")
P(f"s_add_u32 {SK0}, {SK0}, {SM}\ns_add_u32 {SKE}, {SK0}, {16 * KVP_STR}")
P(f"s_lshl_b32 {SK1}, {I_}, 1\ns_and_b32 {SK1}, {SK1}, 15\ns_mul_i32 {SK1}, {SK1}, {KVP_STR}\ns_add_u32 {SK1}, {SK1}, {SK0}")
P(f"s_add_u32 {T0}, {SM}, 0x{L_KT:x}")
P("v_and_b32 v40, 1, v26\nv_lshlrev_b32 v40, 4, v40\nv_lshrrev_b32 v26, 1, v26\nv_lshl_or_b32 v40, v26, 3, v40")
P(f"v_lshl_or_b32 v40, v22, 5, v40\nv_add_u32 v40, {T0}, v40")
P("v_bfe_u32 v41, v0, 4, 1\nv_lshlrev_b32 v41, 4, v41\nv_lshrrev_b32 v26, 5, v0\nv_lshl_or_b32 v41, v26, 3, v41")
P(f"v_lshl_or_b32 v41, v23, 5, v41\nv_add_u32 v41, {T0}, v41")
P(f"v_and_b32 v42, 31, v0\nv_lshlrev_b32 v42, 5, v42\nv_lshl_or_b32 v42, v26, 4, v42\nv_add_u32 v42, {T0}, v42")
P(f"s_lshr_b32 s39, {NONCE}, 8\ns_lshr_b32 s42, {NONCE}, 16\ns_lshr_b32 s43, {NONCE}, 24")
ZL = f"buffer_load_dwordx4 v[28:31], v25, {rWS}, {SZL} offen sc1"
ZC = "\n".join([f"v_xor_b32 v20, {NB[0]}, v28", f"v_xor_b32 v21, {NB[1]}, v29",
                f"v_bitop3_b32 v20, v20, v30, {NB[2]} bitop3:0xf6", f"v_bitop3_b32 v21, v21, v31, {NB[3]} bitop3:0xf6",
                "v_or_b32 v20, v20, v21", "v_and_b32 v20, 0xff, v20", "v_cmp_ne_u32 vcc, 0, v20"])
if OPT["kvw"]:
    P(f"s_sleep {OPT['kvw']}")
P(f"s_setprio {OPT['gprio']}")
P(f"s_mov_b32 {T2}, 32")
P.label("L_kvall")
spin("L_kv", ZL, ZC)
stamp(1, "kv_seen")
signal(VSIG, 26, 3)
P(f"s_mov_b32 {T1}, {SK1}")
GD = 16 if k1 <= 25 else 8
GR8 = G if GD == 16 else PQR
def gload(n):
    P(f"buffer_load_dwordx4 {v(GR8 + 4 * (n % GD), 4)}, v27, {rWS}, {T1} offen sc1")
    if n < 15:
        P(f"s_add_u32 {T1}, {T1}, {KVP_STR}")
        if n % 2 == 1:
            P(f"s_cmp_eq_u32 {T1}, {SKE}\ns_cselect_b32 {T1}, {SK0}, {T1}")
for n in range(GD):
    gload(n)
for n in range(4):
    P(f"v_and_b32 {v(28 + n)}, 0xffffff00, {v(28 + n)}")
for r in (4, 8):
    for n in range(4):
        P(f"v_add_f32_dpp {v(28 + n)}, {v(28 + n)}, {v(28 + n)} row_ror:{r} row_mask:0xf bank_mask:0xf")
for op in ("v_permlane16_swap_b32", "v_permlane32_swap_b32"):
    for n in range(4):
        P(f"v_mov_b32 {v(32 + n)}, {v(28 + n)}")
    for n in range(4):
        P(f"{op} {v(28 + n)}, {v(32 + n)}")
    for n in range(4):
        P(f"v_add_f32 {v(28 + n)}, {v(28 + n)}, {v(32 + n)}")
P("v_cvt_pk_bf16_f32 v28, v28, v29\nv_cvt_pk_bf16_f32 v29, v30, v31")
P("ds_write_b64 v40, v[28:29] offset:512")
for n in range(16):
    P(f"s_waitcnt vmcnt({min(GD - 1, 15 - n)})")
    for h in range(4):
        r = v(GR8 + 4 * (n % GD) + h)
        if n == 0:
            P(f"v_xor_b32 {v(36 + h)}, {NB[h]}, {r}\nv_and_b32 {v(32 + h)}, 0xffffff00, {r}")
        else:
            P(f"v_bitop3_b32 {v(36 + h)}, {v(36 + h)}, {r}, {NB[h]} bitop3:0xf6\nv_and_b32 {v(44 + h)}, 0xffffff00, {r}")
    if n + GD < 16:
        gload(n + GD)
    if n:
        for h in range(4):
            P(f"v_add_f32 {v(32 + h)}, {v(32 + h)}, {v(44 + h)}")
P("v_or3_b32 v36, v36, v37, v38\nv_or_b32 v36, v36, v39\nv_and_b32 v36, 0xff, v36\nv_cmp_ne_u32 vcc, 0, v36")
P(f"s_sub_u32 {T2}, {T2}, 1")
P("s_cbranch_scc1 L_kvok")
P("s_cbranch_vccnz L_kvall")
P.label("L_kvok")
stamp(1, "gath")
if DIAG >= 3 and "retry" in str(OPT.get("st1")):
    P(f"s_waitcnt lgkmcnt(0)\ns_sub_u32 s98, 32, {T2}\ns_mul_i32 s98, s98, 100\ns_add_u32 s98, s98, s100")
vm.q = []
page_addr.last = None
P("v_cvt_pk_bf16_f32 v32, v32, v33\nv_cvt_pk_bf16_f32 v33, v34, v35")
P("ds_write_b64 v41, v[32:33]")
lg.q = []
P("ds_read_b128 v[28:31], v42")
stream(restA[k1:k2], {})
P(f"v_add_u32 v20, 0x{L_PQ:x}, {v(VL16)}")
P(f"s_mul_i32 s4, {I_}, {4 * TB_STRIDE}\ns_lshl_b32 {T1}, {C_}, 12\ns_add_u32 s4, s4, {T1}")
P(f"s_add_u32 s4, s4, {SM}\ns_add_u32 s4, s4, 0x{WS_HA + 86 * K:x}")
stamp(1, "staged")
await_(VPK, 22, 7)
stamp(1, "g0")
for tb in range(4):
    P(f"ds_read_b128 {v(PQR + 4 * tb, 4)}, v20 offset:{tb * 4096}")
def o_mfma(tb):
    P(f"s_waitcnt lgkmcnt({3 - tb})")
    P(f"v_mfma_f32_32x32x16_bf16 {v((D0, D1)[tb & 1], 16)}, v[28:31], {v(PQR + 4 * tb, 4)}, 0")
o_mfma(0)
o_mfma(1)
for tb in range(4):
    d = (D0, D1)[tb & 1]
    P(f"v_add_f32 {v(d + 8)}, 0x{f2u(1e-6):x}, {v(d + 8)}")
    P(f"v_rcp_f32 {v(d + 8)}, {v(d + 8)}")
    for r in range(8):
        P(f"v_mul_f32 {v(d + r)}, {v(d + r)}, {v(d + 8)}")
    for p in range(4):
        P(f"v_cvt_pk_bf16_f32 {v(PQR + 4 * tb + p)}, {v(d + 2 * p)}, {v(d + 2 * p + 1)}")
    if tb < 2:
        o_mfma(tb + 2)
    row_store(f"buffer_store_dwordx4 {v(PQR + 4 * tb, 4)}, v27, {rWS}, s4 offen")
    vm.add("o")
    if tb < 3:
        P(f"s_add_u32 s4, s4, {TB_STRIDE}")
stamp(1, "o_st")
stream([p for p in restA[k2:] if p < 38], {})
for p in range(18, 38):
    vm.wait(("pg", p))
    page_write(p, OPT["pace1"])
signal(VSIG, 26, 4)
P(f"s_setprio {OPT['prio']}")
lateA = [p for p in restA[k2:] if p >= 38]
stream(lateA[:OPT["sA"]], {})
vm.wait("o")
P(f"s_lshl_b32 {T0}, {I_}, 5\ns_lshl_b32 {T1}, {C_}, 2\ns_add_u32 {T0}, {T0}, {T1}\ns_add_u32 {T0}, {T0}, {W}")
P(f"s_lshl_b32 {T0}, {T0}, 2\ns_add_u32 {T0}, {T0}, 0x{WS_FLAGS + FL_O * 128:x}")
flag_store(T0, aux=HX)
vm.add(None)
stamp(1, "oflag")
stream(lateA[OPT["sA"]:], {})
vm.wait(("pg", 42))
P.label("L_l5")
lg.q = []
await_(VPK, 28, 10)
stamp(1, "gx")
nfree = 2 * ((OPT["gx"] - 7) // 4)
first = [p for p in list(range(38, 43)) + list(range(44, 60)) if p - 38 < nfree]
for p in first:
    if p == 44:
        signal(VSIG, 26, 5)
        P("s_waitcnt vmcnt(0)")
    page_write(p, OPT["pace"])
lg.q = []
P("s_waitcnt lgkmcnt(0)")
await_(VPK, 28, 11)
for p in range(44, 60):
    if p not in first:
        page_write(p, OPT["pace"])
signal(VSIG, 26, 6)
LOG2E = 1.4426950408889634
XRD, GG, XF, BF, YR = 22, 32, 48, 64, 72
P("v_lshrrev_b32 v26, 3, v0\nv_and_b32 v27, 7, v0\nv_lshlrev_b32 v27, 1, v27\nv_xor_b32 v27, v27, v26\nv_lshlrev_b32 v27, 4, v27\nv_lshl_or_b32 v26, v26, 8, v27")
P(f"s_lshl_b32 {T0}, {W}, 12\ns_add_u32 {T0}, {T0}, 0x{L_XY:x}")
P(f"v_add_u32 {v(XRD)}, {T0}, v26\nv_xor_b32 {v(XRD + 1)}, 16, {v(XRD)}")
P(f"s_add_u32 {T2}, {SO}, 8192")
P("s_waitcnt lgkmcnt(0)")


def unpack(dst, src, n):
    for r in range(n):
        P(f"v_lshlrev_b32 {v(dst + 2 * r)}, 16, {v(src + r)}\nv_and_b32 {v(dst + 2 * r + 1)}, 0xffff0000, {v(src + r)}")


def xread(dst, base):
    for h in range(2):
        for kh in range(2):
            for j in range(2):
                P(f"ds_read_b128 {v(dst + 16 * kh + 8 * h + 4 * j, 4)}, {v(XRD + j)} offset:{base + 16 * K * kh + 2048 * h}")


unpack(XF, XRES, 8)
unpack(BF, BRES, 4)
stamp(1, "rdy5")
P("s_barrier ; dY")
xread(YR, 0)
P("s_waitcnt lgkmcnt(0)")
for fmt in ("v_add_f32 {Y}, {Y}, {Z}", "v_add_f32 {Y}, {Y}, {B}", f"v_mul_f32 {{G}}, 0x{f2u(-LOG2E):x}, {{Y}}", "v_exp_f32 {G}, {G}",
            "v_add_f32 {G}, 1.0, {G}", "v_rcp_f32 {G}, {G}", "v_mul_f32 {G}, {G}, {Y}"):
    for r in range(16):
        P(fmt.format(Y=v(YR + r), Z=v(YR + 16 + r), B=v(BF + r % 8), G=v(GG + r)))
stamp(1, "gate")
P("s_barrier ; dS")
xread(YR, L_XS - L_XY)
for h in range(2):
    P(f"s_waitcnt lgkmcnt({4 - 4 * h})")
    for p in range(4 * h, 4 * h + 4):
        P(f"v_pk_add_f32 {v(YR + 2 * p, 2)}, {v(YR + 2 * p, 2)}, {v(YR + 16 + 2 * p, 2)}")
    for p in range(4 * h, 4 * h + 4):
        P(f"v_pk_fma_f32 {v(YR + 2 * p, 2)}, {v(YR + 2 * p, 2)}, {v(GG + 2 * p, 2)}, {v(XF + 2 * p, 2)}")
    for p in range(4 * h, 4 * h + 4):
        P(f"v_cvt_pk_bf16_f32 {v(BF + p)}, {v(YR + 2 * p)}, {v(YR + 2 * p + 1)}")
    P(f"buffer_store_dwordx4 {v(BF + 4 * h, 4)}, {v(VO)}, {rP2}, {(SO, T2)[h]} offen {OPT['outaux']}")
dump(1)
P.label("L_end")
P("s_endpgm")
flush_cold()

P.label("L_compute")
DIAG = OPT["diag"]
XR, ACC, WR = 128, 64, 32
VH, GR, XE, K1, K2, SD, RS, RL = 1, 2, 4, 6, 8, 10, 12, 14
XA, WA = 12, 20
HB0, SH, EPS2, SG, SFL1, SFL2, SCS2 = "s72", "s73", "s[74:75]", "s76", "s77", "s78", "s79"
lg = Q("lgkmcnt", 15)

stamp(0, "start")
P(f"s_setprio {OPT['cprio']}")
P(f"s_lshl_b32 {T0}, {I_}, 4\ns_add_u32 {T0}, {T0}, {J_}\ns_lshl_b32 {T0}, {T0}, 2\ns_add_u32 {T0}, {T0}, {W}\ns_lshl_b32 {T0}, {T0}, 1")
P(f"s_lshl_b32 {T1}, {T0}, 10")
P("v_lshrrev_b32 v26, 5, v0\nv_and_b32 v27, 31, v0\nv_lshlrev_b32 v28, 4, v27\nv_lshl_or_b32 v28, v26, 10, v28")
P("s_waitcnt lgkmcnt(0)")
srd(rX, P_X, 2 * K * K)
P(f"s_load_dword {NONCE}, s[{P_WS}:{P_WS+1}], 0")
P(f"buffer_load_dwordx4 v[32:35], v28, {rX}, {T1} offen")
P(f"buffer_load_dwordx4 v[36:39], v28, {rX}, {T1} offen offset:512")
srd(rWS, P_WS, WS_SIZE)
tile2()
P(f"v_lshlrev_b32 {v(VH)}, 4, v0")
waddr(WA, 29, 30, 3)
P(f"v_xor_b32 {v(WA + 1)}, 64, {v(WA)}")
for k, off in ((2, 64 * K), (4, 88 * K)):
    P(f"v_add_u32 {v(WA + k)}, 0x{off:x}, {v(WA)}\nv_add_u32 {v(WA + k + 1)}, 0x{off:x}, {v(WA + 1)}")
P("v_bfe_u32 v29, v0, 1, 3\nv_xor_b32 v29, v29, v26\nv_lshlrev_b32 v29, 4, v29\nv_lshl_or_b32 v29, v27, 7, v29")
P(f"s_lshl_b32 {T2}, {W}, 12")
P(f"v_add_u32 {v(XA)}, {T2}, v29")
for t in range(1, 4):
    P(f"v_xor_b32 {v(XA + t)}, {32 * t}, {v(XA)}")
for t in range(4):
    P(f"v_add_u32 {v(XA + 4 + t)}, 0x10000, {v(XA + t)}")
P(f"s_lshl_b32 {SG}, {I_}, 2\ns_add_u32 {SG}, {SG}, {W}")
if OPT["touch"]:
    srd(rW2, P_W2, 1376 * 1024)
    srd(rWO, P_WO, 512 * 1024)
    P(f"s_mul_i32 {T2}, s2, 43\ns_mul_i32 {T3}, {W}, 11\ns_add_u32 {T2}, {T2}, {T3}")
    P(f"v_add_u32 v6, {T2}, v0\nv_lshlrev_b32 v6, 7, v6\nv_mov_b32 v8, 0x7ff00000\nv_cmp_gt_u32 vcc, 11, v0")
    P(f"s_lshl_b32 {T2}, s2, 2\ns_add_u32 {T2}, {T2}, {W}\ns_lshl_b32 {T2}, {T2}, 2")
    P(f"v_cndmask_b32 v6, v8, v6, vcc\nv_add_u32 v7, {T2}, v0\nv_lshlrev_b32 v7, 7, v7\nv_cmp_gt_u32 vcc, 4, v0")
    P("v_cndmask_b32 v7, v8, v7, vcc")
    if OPT["touch"] == 9:
        P(f"buffer_load_dword v8, v6, {rW2}, 0 offen\nbuffer_load_dword v9, v7, {rWO}, 0 offen")
P(f"s_lshl_b32 {SG}, {SG}, 8\ns_add_u32 {SG}, {SG}, 0x{WS_STATS:x}")
P(f"s_lshl_b32 {SCS2}, {J_}, 1\ns_lshr_b32 {T2}, {I_}, 3\ns_add_u32 {SCS2}, {SCS2}, {T2}\ns_lshl_b32 {SCS2}, {SCS2}, 2")
P(f"s_add_u32 {SCS2}, {SCS2}, {W}\ns_lshl_b32 {SCS2}, {SCS2}, 3\ns_and_b32 {T2}, {I_}, 7\ns_add_u32 {SCS2}, {SCS2}, {T2}")
P(f"s_lshl_b32 {SCS2}, {SCS2}, 9\ns_add_u32 {SCS2}, {SCS2}, 0x{WS_CS:x}")
SFHB, SFO, KH, SFHA, PRIMED, SK12, SXW, SBASE = "s51", "s52", "s53", "s54", "s55", "s72", "s73", "s77"
P(f"s_lshr_b32 {KH}, {W}, 1\ns_lshl_b32 {SK12}, {KH}, 12\ns_mov_b32 {PRIMED}, 0")
P(f"s_lshl_b32 {T3}, {TB2}, 1\ns_and_b32 {T2}, {W}, 1\ns_add_u32 {T3}, {T3}, {T2}")
P(f"s_mul_i32 {SBASE}, {T3}, {TB_STRIDE}\ns_add_u32 {SBASE}, {SBASE}, 0x{WS_HA:x}")
if OPT["ahot"]:
    P(f"s_mov_b32 {SBASE}, 0x{WS_DIAG + 0x40000:x}")
P(f"s_lshl_b32 {SFHB}, {T3}, 7\ns_add_u32 {SFHA}, {SFHB}, 0x{WS_FLAGS + FL_HA * 128:x}\ns_add_u32 {SFHB}, {SFHB}, 0x{WS_FLAGS + FL_HB * 128:x}")
P(f"s_lshr_b32 {SFO}, {TB2}, 1\ns_lshl_b32 {SFO}, {SFO}, 7\ns_add_u32 {SFO}, {SFO}, 0x{WS_FLAGS + FL_O * 128:x}")
P(f"s_lshl_b32 {SXW}, {T2}, 13\ns_lshl_b32 {T3}, {KH}, 14\ns_add_u32 {SXW}, {SXW}, {T3}\ns_add_u32 {SXW}, {SXW}, 0x{L_XY:x}")
P(f"s_mov_b32 s14, {RHOA}")
for g in list(range(8)) + list(range(11, 15)):
    r = f"s{36 + g}"
    P(f"s_add_u32 {r}, {RHO2 if g < 8 else RHOS}, {g % 11}\ns_and_b32 {r}, {r}, {7 if g < 8 else 3}\ns_lshl_b32 {r}, {r}, 13\ns_add_u32 {r}, {r}, {SBASE}")
    if g >= 11:
        P(f"s_add_u32 {r}, {r}, {86 * K}")
P(f"s_add_u32 s14, s14, {KH}")
for n in range(16, 22):
    r = f"s{8 + n - 16}"
    P(f"s_add_u32 {r}, s14, {2 * (n - 16)}\ns_cmp_ge_u32 {r}, 11\ns_cselect_b32 {T3}, 11, 0\ns_sub_u32 {r}, {r}, {T3}")
    P(f"s_sub_u32 {r}, {r}, {KH}\ns_add_u32 {r}, {r}, {32 - 2 * (n % 2)}\ns_lshl_b32 {r}, {r}, 11\ns_add_u32 {r}, {r}, {SBASE}")
P(f"s_mov_b32 s74, 0x{f2u(1e-6):x}\ns_mov_b32 s75, 0x{f2u(1e-6):x}")
P(f"s_mov_b32 {T2}, 0x3f803f80")
P("v_mov_b32 v40, 0\nv_mov_b32 v41, 0\nv_mov_b32 v42, 0\nv_mov_b32 v43, 0")
stamp(0, "pre")
P("s_waitcnt vmcnt(2)" if OPT["touch"] == 9 else "s_waitcnt vmcnt(0)")
stamp(0, "xin")
for n in range(8):
    P(f"v_dot2_f32_bf16 {v(40 + (n & 1))}, {v(32 + n)}, {T2}, {v(40 + (n & 1))}")
    P(f"v_dot2_f32_bf16 {v(42 + (n & 1))}, {v(32 + n)}, {v(32 + n)}, {v(42 + (n & 1))}")
P("s_nop 2")
P("v_add_f32 v40, v40, v41\nv_add_f32 v42, v42, v43")
for r in (8, 4, 2, 1):
    P(f"v_add_f32_dpp v40, v40, v40 row_ror:{r} row_mask:0xf bank_mask:0xf")
    P(f"v_add_f32_dpp v42, v42, v42 row_ror:{r} row_mask:0xf bank_mask:0xf")
P("v_mov_b32 v41, v40\nv_mov_b32 v43, v42")
P("v_permlane16_swap_b32 v40, v41\nv_permlane16_swap_b32 v42, v43")
P("v_add_f32 v40, v40, v41\nv_add_f32 v42, v42, v43")
P(f"v_mul_f32 v40, 0x{f2u(1 / 512):x}, v40\nv_mul_f32 v42, 0x{f2u(1 / 512):x}, v42")
P("v_fma_f32 v42, -v40, v40, v42\nv_max_f32 v42, 0, v42")
P(f"v_cvt_pk_bf16_f32 v42, v42, v42\nv_and_b32 v42, 0xffff0000, v42\nv_add_f32 v42, 0x{f2u(1e-5):x}, v42")
P("v_cvt_pk_bf16_f32 v42, v42, v42\nv_and_b32 v42, 0xffff0000, v42\nv_sqrt_f32 v42, v42")
P("v_cvt_pk_bf16_f32 v44, v40, v42")
P("v_lshlrev_b32 v28, 3, v26")
P(f"s_lshl_b32 {T0}, {T0}, 3\ns_add_u32 {T0}, {T0}, 0x{WS_STATS:x}")
P("s_waitcnt lgkmcnt(0)")
P(f"s_add_u32 {NONCE}, {NONCE}, 1")
XTAG = "s78"
P(f"s_getreg_b32 {XTAG}, hwreg(HW_REG_XCC_ID, 0, 4)\ns_lshl_b32 {XTAG}, {XTAG}, 28\ns_xor_b32 {XTAG}, {XTAG}, {NONCE}")
P(f"v_mov_b32 v45, {XTAG}\nv_mov_b32 v5, {NONCE}\nv_mov_b32 v46, 0x{L_TAG:x}")
P("ds_write_b32 v46, v5")
P("s_mov_b32 exec_lo, 1\ns_mov_b32 exec_hi, 1")
if not OPT["nst"] & 1:
    P(f"buffer_store_dwordx2 v[44:45], v28, {rWS}, {T0} offen {OPT['saux'] or ''}")
P("s_mov_b64 exec, -1")
P("v_lshlrev_b32 v26, 3, v27\nv_lshlrev_b32 v27, 3, v0")
P(f"s_lshl_b32 {T0}, {W}, 8\ns_add_u32 {T0}, {T0}, 0x{L_CSX:x}")
P(f"v_lshl_add_u32 v28, v0, 2, {T0}")
P(f"v_add_u32 v29, 0x{L_EX1:x}, v27")
GLOAD = f"buffer_load_dwordx2 {v(GR, 2)}, v26, {rWS}, {SG} offen sc1"
CSIG, CPK, CPC = 30, 31, 3
P(f"s_lshl_b32 {T0}, {W}, 2\ns_add_u32 {T0}, {T0}, 0x{L_PRG:x}\nv_mov_b32 {v(CSIG)}, {T0}")
P(f"v_and_b32 {v(CPK)}, 3, v0\nv_lshlrev_b32 {v(CPK)}, 2, {v(CPK)}\nv_add_u32 {v(CPK)}, 0x{L_RDY:x}, {v(CPK)}")
signal(CSIG, 46, 0)
lg.drain()
stamp(0, "stats")


def p1_x(st, t):
    if OPT["nocomp"]:
        return
    sl = st % 3
    P(f"ds_read_b128 {v(XR + 16 * st + 4 * t, 4)}, {v(XA + t + (4 if sl == 2 else 0))} offset:{(sl % 2) * 32 * K}")
    lg.add(("x", st, t))


def p1_w(st, t, b):
    if OPT["nocomp"]:
        return
    sl = st % 3
    a = WA + (b & 1) + (2 if sl == 2 else 0)
    off = (sl % 2) * 32 * K + 16 * K + (b >> 1) * 8 * K + t * 2048
    f = WR + ((t & 1) * 4 + b) * 4
    tr(f, a, off, None)
    tr(f + 2, a, off + 512, ("w", st, t, b))


def p1_m(st, t, b):
    if OPT["nocomp"]:
        return
    lg.wait(("x", st, t))
    lg.wait(("w", st, t, b))
    f = WR + ((t & 1) * 4 + b) * 4
    c = "0" if (st == 0 and t == 0) else v(ACC + 16 * b, 16)
    P(f"v_mfma_f32_32x32x16_bf16 {v(ACC + 16 * b, 16)}, {v(f, 4)}, {v(XR + 16 * st + 4 * t, 4)}, {c}")


P("s_barrier ; b0")
stamp(0, "b0")
if OPT["p2only"]:
    P("s_branch L_c2")
p1_x(0, 0)
for b in range(4):
    p1_w(0, 0, b)
for st in range(8):
    for t in range(3):
        for b in range(4):
            p1_m(st, t, b)
            if b == 0:
                p1_x(st, t + 1)
            p1_w(st, t + 1, b)
    p1_m(st, 3, 0)
    if st == 1:
        P("ds_read_b32 v4, v28")
        lg.add(None)
    p1_m(st, 3, 1)
    if st == 6:
        P(GLOAD)
    lg.drain()
    P(f"s_barrier ; b{st + 1}")
    if st < 7:
        p1_x(st + 1, 0)
        p1_w(st + 1, 0, 0)
        p1_w(st + 1, 0, 1)
        p1_m(st, 3, 2)
        if st == 1 and not OPT["nst"] & 2:
            P(f"buffer_store_dwordx2 v[4:5], v27, {rWS}, {SCS2} offen {OPT['saux'] or ''}")
        if st == OPT["touch"] - 1:
            P(f"buffer_load_dword v8, v6, {rW2}, 0 offen\nbuffer_load_dword v9, v7, {rWO}, 0 offen")
        p1_w(st + 1, 0, 2)
        p1_w(st + 1, 0, 3)
        p1_m(st, 3, 3)
    else:
        for b in range(4):
            P(f"ds_read_b64 {v(WR + 2 * b, 2)}, v29 offset:{512 * b}")
            lg.add(("ex", b))
        p1_m(st, 3, 2)
        p1_m(st, 3, 3)
stamp(0, "b8")
if OPT["p1only"]:
    dump(0)
    P("s_endpgm")
    DIAG = 0
GCHK = f"v_xor_b32 v27, {XTAG}, {v(GR + 1)}\nv_lshlrev_b32 v28, 4, v27\nv_cmp_ne_u32 vcc, 0, v28"
P("s_waitcnt vmcnt(0)")
P(GCHK)
retry("L_gr", GLOAD, GCHK)
P(f"v_cmp_ne_u32 vcc, 0, v27\ns_or_b32 {T0}, vcc_lo, vcc_hi\nv_mov_b32 v27, {T0}\ns_mov_b64 exec, 1")
P(f"ds_write_b32 {v(CSIG)}, v27 offset:{L_FAST - L_PRG}\ns_mov_b64 exec, -1")
lg.add(None)
P(f"s_mov_b32 {T0}, 0x01000100")
P(f"v_perm_b32 {v(XE)}, {v(GR)}, {v(GR)}, {T0}")
P(f"v_xor_b32 {v(XE)}, 0x80008000, {v(XE)}")
P(f"v_lshrrev_b32 {v(XE + 1)}, 16, {v(GR)}")
P(f"v_and_b32 {v(SD)}, 0xffff0000, {v(GR)}")
P(f"v_rcp_f32 {v(RS)}, {v(SD)}")
for b in range(4):
    lg.wait(("ex", b))
    P(f"v_mfma_f32_32x32x8bf16_1k {v(ACC + 16 * b, 16)}, {v(WR + 2 * b, 2)}, {v(XE, 2)}, {v(ACC + 16 * b, 16)}")
LOG2E = 1.4426950408889634
C1 = -2 * LOG2E * math.sqrt(2 / math.pi)
C2 = C1 * 0.044715
P(f"v_mul_f32 {v(K1)}, 0x{f2u(C1):x}, {v(RS)}")
P(f"v_mul_f32 {v(K2)}, {v(RS)}, {v(RS)}\nv_mul_f32 {v(K2)}, {v(K2)}, {v(RS)}\nv_mul_f32 {v(K2)}, 0x{f2u(C2):x}, {v(K2)}")
P(f"v_mul_f32 {v(RL)}, 0x{f2u(LOG2E):x}, {v(RS)}")
for r in (K1, K2, SD, RS, RL):
    P(f"v_mov_b32 {v(r + 1)}, {v(r)}")
stamp(0, "ex1")

TT, UU = 32, 48


def pairs(fmt, a):
    for p in range(8):
        P(fmt.format(T=v(TT + 2 * p, 2), A=v(a + 2 * p, 2)))


def singles(fmt):
    for r in range(16):
        P(fmt.format(T=v(TT + r)))


def cvt(dst, src=TT):
    for p in range(8):
        P(f"v_cvt_pk_bf16_f32 {v(dst + p)}, {v(src + 2 * p)}, {v(src + 2 * p + 1)}")


def epi_gelu(b, base, k, rdy=None):
    a = ACC + 16 * b
    if rdy:
        peek(CPK, 28)
    pairs("v_pk_mul_f32 {T}, {A}, {A}", a)
    pairs("v_pk_fma_f32 {T}, {T}, %s, %s" % (v(K2, 2), v(K1, 2)), a)
    pairs("v_pk_mul_f32 {T}, {T}, {A}", a)
    singles("v_exp_f32 {T}, {T}")
    pairs("v_pk_fma_f32 {T}, {T}, %s, %s" % (v(SD, 2), v(SD, 2)), a)
    singles("v_rcp_f32 {T}, {T}")
    pairs("v_pk_mul_f32 {T}, {T}, {A}", a)
    cvt(a)
    if rdy:
        await_(CPK, 28, rdy, peeked=True)
    for h in range(2 if not OPT["nods"] else 0):
        P(f"ds_write_b128 v26, {v(a + 4 * h, 4)} offset:{base - L_HS + (2 * b + h) * 4096}")
        lg.add(None)
    signal(CSIG, 27, k)


def epi_phi(b, dst):
    a = ACC + 16 * b
    pairs("v_pk_mul_f32 {T}, {A}, %s" % v(RL, 2), a)
    singles("v_exp_f32 {T}, {T}")
    pairs("v_pk_fma_f32 {A}, {A}, %s, 1.0 op_sel_hi:[1,1,0]" % v(RS, 2), a)
    for r in range(16):
        P(f"v_med3_f32 {v(TT + r)}, {v(TT + r)}, {v(a + r)}, 1.0")
    pairs("v_pk_add_f32 {T}, {T}, %s" % EPS2, a)
    cvt(dst)


def epi_lin(b, dst):
    a = ACC + 16 * b
    pairs("v_pk_mul_f32 {T}, {A}, %s" % v(RS, 2), a)
    cvt(dst)


AY, AS, AR = 64, 160, 128
RG = OPT["ring"]
NST = 30
WB, VA, FD, VF, XW, CPC2, TA, TB_, TC = 96, 102, 104, 106, 108, 112, 113, 114, 115
FHB = f"buffer_load_dword {v(FD)}, {v(VF)}, {rWS}, {SFHB} offen sc1"
FHA = f"buffer_load_dword {v(FD)}, {v(VF)}, {rWS}, {SFHA} offen sc1"
FO = f"buffer_load_dword {v(FD + 1)}, {v(VF + 1)}, {rWS}, {SFO} offen sc1"
HBC = f"v_cmp_ne_u32 vcc, {NONCE}, {v(FD)}"
vm = Q("vmcnt", 63)


def aload(n, ks):
    if n >= NST or (OPT["noa"] and n >= RG):
        return
    P(f"buffer_load_dwordx4 {v(AR + 8 * (n % RG) + 4 * ks, 4)}, {v(VA + n % 2)}, {rWS}, s{36 + (n >> 1) if not 16 <= n < 22 else 8 + n - 16} offen offset:{1024 * ks} {OPT['aaux'] or ''}")
    vm.add(("a", n, ks))


def prime():
    for n in range(RG):
        aload(n, 0)
        aload(n, 1)


nchk = [0]
def checkpoint():
    if not OPT["early"]:
        return
    nchk[0] += 1
    l = f"L_ck{nchk[0]}"
    P(f"s_getreg_b32 {T3}, hwreg(HW_REG_IB_STS, 0, 4)\ns_or_b32 {T3}, {T3}, {PRIMED}\ns_cbranch_scc1 {l}_x")
    P(f"s_waitcnt vmcnt(0)\n{HBC}\ns_cbranch_vccnz {l}_r")
    prime()
    P(f"s_mov_b32 {PRIMED}, 1")
    P.label(l + "_x")
    cold.append(f"{l}_r:\n{FHB}\ns_branch {l}_x")


def setup2():
    global P
    keep, P = P, Prog()
    P(f"v_and_b32 {v(VF + 1)}, 31, v0\nv_lshlrev_b32 {v(VF + 1)}, 2, {v(VF + 1)}\nv_and_b32 {v(VF)}, 28, {v(VF + 1)}")
    waddr(WB, TA, TB_, 2)
    P(f"v_add_u32 {v(WB)}, {SK12}, {v(WB)}\nv_xor_b32 {v(WB + 1)}, 64, {v(WB)}")
    for k in (1, 2):
        P(f"v_add_u32 {v(WB + 2 * k)}, 0x{64 * K * k:x}, {v(WB)}\nv_add_u32 {v(WB + 2 * k + 1)}, 0x{64 * K * k:x}, {v(WB + 1)}")
    P(f"v_lshrrev_b32 {v(TA)}, 1, {SK12}\nv_add_u32 {v(VA)}, {v(TA)}, {v(VH)}\nv_add_u32 {v(VA + 1)}, 0x1000, {v(VA)}")
    P(f"v_lshrrev_b32 {v(TA)}, 5, v0\nv_and_b32 {v(TB_)}, 7, v0\nv_xor_b32 {v(TA)}, {v(TA)}, {v(TB_)}\nv_lshlrev_b32 {v(TA)}, 4, {v(TA)}")
    P(f"v_and_b32 {v(TB_)}, 31, v0\nv_lshl_or_b32 {v(TA)}, {v(TB_)}, 8, {v(TA)}\nv_add_u32 {v(XW)}, {SXW}, {v(TA)}")
    for q in range(1, 4):
        P(f"v_xor_b32 {v(XW + q)}, {32 * q}, {v(XW)}")
    P(f"v_add_u32 {v(CPC2)}, 16, {v(CPK)}")
    lines, P = P.lines, keep
    return lines


def pass2(nb):
    side = setup2()
    n = 32 * nb
    def rd(m):
        if m >= n:
            return
        step, b = divmod(m, nb)
        off = CH(step >> 2) - 88 * K + (step & 3) * 2048
        f = WR + (m % 8) * 4
        tr(f, WA + 4 + b, off, None)
        tr(f + 2, WA + 4 + b, off + 512, ("p2", m))
    for m in range(7):
        rd(m)
    for m in range(n):
        step, b = divmod(m, nb)
        lg.wait(("p2", m))
        c = "0" if step == 0 else v(ACC + 16 * b, 16)
        P(f"v_mfma_f32_32x32x16_bf16 {v(ACC + 16 * b, 16)}, {v(WR + (m % 8) * 4, 4)}, {v(XR + 4 * step, 4)}, {c}")
        rd(m + 7)
        for _ in range(3 - nb):
            if side and m >= 2:
                P(side.pop(0))
        if m == max(6, n - OPT["smp"]):
            P(FHB)
        if m == n - 6:
            for bb in range(nb):
                lg.room()
                P(f"ds_read_b64 {v(16 + 2 * bb, 2)}, v29 offset:{L_EX2 - L_EX1 + 512 * bb}")
                lg.add(("ex2", bb))
    assert not side
    checkpoint()
    lg.drain()
    for b in range(nb):
        P(f"v_mfma_f32_32x32x8bf16_1k {v(ACC + 16 * b, 16)}, {v(16 + 2 * b, 2)}, {v(XE, 2)}, {v(ACC + 16 * b, 16)}")


P(f"s_cmp_eq_u32 {TYPE}, 0")
P("s_cbranch_scc0 L_cB")
P(f"v_and_b32 v26, 31, v0\nv_lshrrev_b32 v27, 5, v0\ns_lshl_b32 {T0}, {W}, 5")
P(f"v_add_u32 v26, {T0}, v26\nv_mul_u32_u24 v26, {TROW}, v26\nv_lshl_add_u32 v26, v27, 3, v26\nv_add_u32 v26, 0x{TBUF:x}, v26")
for b in range(4):
    u = UU + 8 * (b & 1)
    (epi_phi if b < 2 else epi_lin)(b, u)
    for q in range(4):
        P(f"ds_write_b64 v26, {v(u + 2 * q, 2)} offset:{64 * b + 16 * q}")
P(f"v_lshrrev_b32 v26, 2, v0\nv_mul_u32_u24 v26, {TROW}, v26\nv_and_b32 v27, 3, v0\nv_lshl_add_u32 v26, v27, 3, v26")
P(f"s_add_u32 {T0}, {T0}, 0x{TBUF:x}")
P(f"v_add_u32 v26, {T0}, v26")
for r in range(4):
    P(f"v_mov_b32 {v(104 + r)}, 0x3f803f80")
P(f"s_lshl_b32 {T0}, {C_}, 4\ns_add_u32 {T0}, {T0}, {I_}\ns_mul_i32 {T0}, {T0}, {KVP_STR}\ns_add_u32 {T0}, {T0}, 0x{WS_KVP:x}")
P(f"s_lshl_b32 {T1}, {W}, 10\ns_add_u32 {T1}, {T1}, {T0}")
P(f"s_lshl_b32 {T2}, {W}, 6\ns_add_u32 {T2}, {T2}, {T0}\ns_add_u32 {T2}, {T2}, 4096")
signal(CSIG, 27, 1)
P(f"v_add_u32 {v(CPC)}, 16, {v(CPK)}")
lg.q = []
await_(CPC, 27, 1)
stamp(0, "e1")
def kvm(mm):
    lg.wait(("kv", mm, 1))
    P(f"v_mfma_f32_16x16x32_bf16 v[96:99], {v(ACC + 8 * mm, 4)}, {v(ACC + 8 * mm + 4, 4)}, {'0' if mm == 0 else 'v[96:99]'}")
    P(f"v_mfma_f32_16x16x32_bf16 v[100:103], {v(ACC + 8 * mm, 4)}, v[104:107], {'0' if mm == 0 else 'v[100:103]'}")
for m in range(4):
    for o in range(2):
        f = ACC + 8 * m + 4 * o
        tr(f, 26, m * 32 * TROW + 128 * o, None)
        tr(f + 2, 26, (m * 32 + 16) * TROW + 128 * o, ("kv", m, o))
    if m >= 2:
        kvm(m - 2)
kvm(2)
kvm(3)
P(f"v_mov_b32 v104, {NONCE}")
for h in range(4):
    P(f"s_mov_b32 {T0}, 0x0706050{h}")
    P(f"v_perm_b32 {v(96 + h)}, {v(96 + h)}, v104, {T0}\nv_perm_b32 {v(100 + h)}, {v(100 + h)}, v104, {T0}")
P(f"buffer_store_dwordx4 v[96:99], {v(VH)}, {rWS}, {T1} offen sc1")
P("s_mov_b32 exec_lo, 0x00010001\ns_mov_b32 exec_hi, 0x00010001")
P(f"buffer_store_dwordx4 v[100:103], v0, {rWS}, {T2} offen sc1")
P("s_mov_b64 exec, -1")
signal(CSIG, 27, 2)
await_(CPK, 27, 1)
stamp(0, "b10")
P("s_branch L_p2")
P.label("L_cB")
lg.q = []
P(f"s_lshl_b32 {T0}, {W}, 10\ns_add_u32 {T0}, {T0}, 0x{L_HS:x}")
P(f"v_add_u32 v26, {T0}, {v(VH)}")
for b in range(4):
    if b == 3:
        peek(CPK, 28)
    epi_gelu(b, L_HS, b + 1)
    if "st0" in OPT:
        stamp(0, f"g{b}")
stamp(0, "e1")
await_(CPK, 28, 1, peeked=True)
stamp(0, "b10")
P(f"s_cmp_lt_u32 {C_}, 3")
P("s_cbranch_scc1 L_p2")
lg.q = [None] * 3
pass2(1)
stamp(0, "p2")
signal(CSIG, 27, 5)
epi_gelu(0, L_PQ, 7, 2)
stamp(0, "e2")
P("s_branch L_c2")
P.label("L_p2")
lg.q = [None] * 3
pass2(2)
stamp(0, "p2")
P(f"s_cmp_eq_u32 {TYPE}, 0")
P("s_cbranch_scc0 L_cB2")
P(f"s_lshl_b32 {T0}, {W}, 12\ns_add_u32 {T0}, {T0}, 0x{L_PQ:x}")
P(f"v_add_u32 v26, {T0}, {v(VH)}")
for b in range(2):
    epi_phi(b, UU + 8 * b)
    for h in range(2):
        P(f"ds_write_b128 v26, {v(UU + 8 * b + 4 * h, 4)} offset:{(2 * b + h) * 1024}")
    if b == 0:
        checkpoint()
signal(CSIG, 27, 7)
stamp(0, "e2")
P("s_branch L_c2")
P.label("L_cB2")
lg.q = []
signal(CSIG, 27, 5)
epi_gelu(0, L_PQ, 6, 2)
checkpoint()
epi_gelu(1, L_PQ, 7)
stamp(0, "e2")
P.label("L_c2")
stamp(0, "c2")
stamp(0, "setup")
P(f"s_cmp_lg_u32 {PRIMED}, 0\ns_cbranch_scc1 L_primed")
if not OPT["p2only"]:
    P(f"s_waitcnt vmcnt(0)\n{HBC}")
    retry("L_hb", FHB, HBC)
stamp(0, "hb_seen")
prime()
P.label("L_primed")
vm.q = [("a", n, ks) for n in range(RG) for ks in range(2)]


def wrd(m):
    n, ks, ct = m >> 2, (m >> 1) & 1, m & 1
    if n >= NST:
        return
    ev = {OPT["gx"]: 4, 76: 5, 88: 6}
    if m + 5 in ev:
        peek(CPK, 20)
    if m == OPT["g2"]:
        signal(CSIG, 21, 11)
    if m == 72:
        signal(CSIG, 21, 12)
    if m == 93:
        peek(CPC2, 19)
    if m in ev:
        if m == OPT["gx"]:
            signal(CSIG, 21, 10)
        await_(CPK, 20, ev[m], peeked=True)
    so = slot_of(2 * n) + ks * 2048
    k = so // (64 * K)
    f = WR + (m % 8) * 4
    if OPT["now"] and m >= 8:
        return
    tr(f, WB + 2 * k + ct, so - 64 * K * k, None)
    tr(f + 2, WB + 2 * k + ct, so - 64 * K * k + 1024, ("w2", m))


def xwrite(acc, base, ct, q):
    lg.room()
    P(f"ds_write_b128 {v(XW + q)}, {v(acc + 16 * ct + 4 * q, 4)} offset:{base + 128 * ct}")
    lg.add(("xw", acc))


lg.q = []
stamp(0, "primed")
await_(CPK, 20, 3)
for m in range(7):
    wrd(m)
for n in range(NST):
    acc = AY if n < 22 else AS
    if n == 21:
        P(f"s_cmp_eq_u32 {KH}, 0")
    for k4 in range(4):
        m = 4 * n + k4
        ks, ct = k4 >> 1, k4 & 1
        w = vm.need(("a", n, ks)) + " " + (lg.need(("w2", m | 1)) if OPT["w2"] else "") + lg.need(("w2", m))
        if w.strip():
            P("s_waitcnt " + w.strip())
        c = "0" if (n in (0, 22) and ks == 0) else v(acc + 16 * ct, 16)
        if n == 21:
            P(f"s_cbranch_scc0 L_null{k4}")
        P(f"v_mfma_f32_32x32x16_bf16 {v(acc + 16 * ct, 16)}, {v(WR + (m % 8) * 4, 4)}, {v(AR + 8 * (n % RG) + 4 * ks, 4)}, {c}")
        if n == 21:
            P.label(f"L_null{k4}")
        if k4 == 1:
            for nn, ld, fd, nm in ((16, FHA, FD, "ha"), (22, FO, FD + 1, "o")):
                if n == nn - RG - 4:
                    P(ld)
                    vm.add("f")
                if n == nn - RG and not OPT["p2only"]:
                    vm.wait("f")
                    P(f"v_cmp_ne_u32 vcc, {NONCE}, {v(fd)}")
                    retry("L_" + nm, ld, f"v_cmp_ne_u32 vcc, {NONCE}, {v(fd)}")
                    stamp(0, nm + "_seen")
        if ct == 1:
            aload(n + RG, ks)
        wrd(m + 7)
        if m == 91:
            await_(CPC2, 19, 12, peeked=True)
        if m >= 91 and (m - 91) % OPT["ys"] == 0 and (m - 91) // OPT["ys"] < 8:
            xwrite(AY, 0, ((m - 91) // OPT["ys"]) >> 2, ((m - 91) // OPT["ys"]) & 3)
        if m == 91 + 7 * OPT["ys"] + OPT["dy"]:
            lg.wait(("xw", AY))
            P("s_barrier ; dY")
    if "st0" in OPT:
        stamp(0, f"n{n}")
stamp(0, "sdone")
for ct in range(2):
    for q in range(4):
        xwrite(AS, L_XS - L_XY, ct, q)
lg.drain()
P("s_barrier ; dS")
P(f"s_or_b32 {T0}, s2, {W}\ns_cmp_eq_u32 {T0}, 0")
P("s_cbranch_scc0 L_cend")
flag_store(T0)
P.label("L_cend")
dump(0)
P("s_endpgm")
flush_cold()
P.label("L_codeend")

body = P.finish()
hdr = f"""; Fused LayerNorm + linear attention + GELU FFN block, one persistent launch (256 workgroups, one per CU).
; @launch grid=(256,1,1) block=(512,1,1) lds=163840
.amdgcn_target "amdgcn-amd-amdhsa--gfx950"
.text
.globl {KNAME}
.p2align 8
.type {KNAME},@function
{KNAME}:
"""
tail = f"""
.section .rodata,"a"
.p2align 6
.amdhsa_kernel {KNAME}
  .amdhsa_next_free_vgpr 256
  .amdhsa_next_free_sgpr 102
  .amdhsa_accum_offset 256
  .amdhsa_group_segment_fixed_size 0
  .amdhsa_kernarg_size 88
  .amdhsa_user_sgpr_count 2
  .amdhsa_user_sgpr_kernarg_segment_ptr 1
  .amdhsa_system_sgpr_workgroup_id_x 1
  .amdhsa_float_denorm_mode_32 3
.end_amdhsa_kernel
"""
if OPT["diag"]:
    tail += f"; STAMPS0 {' '.join(slots[0])}\n"
sys.stdout.write(hdr + body + tail)
sys.stderr.write(f"pads {P.npad}\n")
```

```python
import sys, os, struct, math
from asmlib import Prog, v, s

KNAME = "recurrent_scan__linear_attn_block__dense_activation_gelu__prompt_kernel"
OPT = dict(diag=0, outaux="sc1", map1=81, spin=16, codepf=1, ldfirst=1, prio=1,
           nA9=3, nA10=7, nB10=8, mf=56, cprio=3, gx=36, n6=2, n7=1, kA=12, lag=8, sp=0, sp0=0, nost=0, slp=4, kvw=0, gprio=3, sA=4, xB=0, fast=1, nt1=1, nt2=1, wb=0, lB=0, hk1=0, lA0=8, lA=3, kq=2, wbj=0, kA0=12, kA1=8, kA2=0, rotx=1, spx=0, pB=10, iB=0, ring=4, nods=0, lsl=0, yB=12, zB=4, yB1=2, zB1=4, aaux="sc1", ahot=0, g2=52, rot2=1, pace=0, pace1=0, dy=4, ys=2, w2=1, p2only=0, plain=0, stouch=0, nst=0, saux="sc1", csprio=3, early=1, map2=81, smp=28, noa=0, now=0, la=7, touch=5, stdiag=0, p1only=0, nocomp=0, norot=0, noload=0, nocs=0)
for a in sys.argv[1:]:
    k, val = a.split("=")
    OPT[k] = val if not val.lstrip("-").isdigit() else int(val)
DIAG = OPT["diag"]


def f2u(x):
    return struct.unpack("<I", struct.pack("<f", x))[0]


K = 1024
WS_STATS = 0x1000
WS_FLAGS = 0x8000
FL_HB, FL_HA, FL_O, FL_KV = 0, 64, 128, 192
WS_KVP = 0x10000
KVP_STR = 4352
WS_CS = 0xA0000
WS_HA = 0x140000
TB_STRIDE = 118 * K
WS_DIAG = 0x900000
WS_SIZE = 0xA00000
def CH(q):
    return 96 * K + 8 * K * q if q < 7 else 88 * K
TBUF = 52 * K
TROW = 272
L_EX1 = 152 * K
L_CSX = 156 * K
L_RDY = 154 * K
L_PRG = L_RDY + 16
L_TAG = L_RDY + 32
L_FAST = L_RDY + 48
L_EX2 = 155 * K
L_KT = 156 * K
L_PQ = 72 * K
L_HS = 52 * K
L_XY = 112 * K
L_XS0, L_XS1 = 72 * K, 144 * K
def slot_of(p):
    if p < 18:
        return p * 4 * K
    if p < 34:
        return CH((p - 18) >> 1) + (p & 1) * 4 * K
    if p < 38:
        return 72 * K + (p - 34) * 4 * K
    return slot_of(p - 38)

rX, rP1, rP2, rWS, rW2, rWO, rA, rB = (s(n, 4) for n in (4, 8, 12, 16, 20, 24, 28, 32))
P_X, P_QKV, P_WO, P_W1, P_B1, P_W2, P_B2, P_OUT, P_WS = 36, 38, 40, 44, 46, 48, 50, 52, 56
NONCE, W, I_, J_, C_, TYPE, RHO, TB2, CT, RHO2 = (s(n) for n in range(58, 68))
T0, T1, T2, T3 = (s(n) for n in range(68, 72))

P = Prog()


class Q:
    def __init__(self, name, mx):
        self.q, self.name, self.mx = [], name, mx

    def room(self):
        if len(self.q) >= self.mx:
            P(f"s_waitcnt {self.name}({self.mx - 1})")
            self.q = self.q[len(self.q) - (self.mx - 1):]

    def add(self, tag=None):
        self.q.append(tag)

    def need(self, tag):
        if tag not in self.q:
            return ""
        idx = max(i for i, t in enumerate(self.q) if t == tag)
        n = len(self.q) - 1 - idx
        assert n <= self.mx, (self.name, n)
        self.q = self.q[idx + 1:]
        return f"{self.name}({n})"

    def wait(self, tag):
        t = self.need(tag)
        if t:
            P("s_waitcnt " + t)

    def drain(self, force=False):
        if self.q or force:
            P(f"s_waitcnt {self.name}(0)")
        self.q = []


slots = [{}, {}]
def stamp(role, name):
    if not DIAG:
        return
    want = str(OPT.get(f"st{role}", "")).split(",")
    if want != [""] and name not in want and name not in ("start", "end"):
        return
    n = slots[role].setdefault(name, len(slots[role]))
    if DIAG >= 3:
        assert n < 9, (role, name)
        P(f"{'s_memtime' if DIAG == 4 else 's_memrealtime'} s[{80 + 2 * n}:{81 + 2 * n}]")
        return
    assert n < 16, (role, name)
    P(f"{'s_memtime' if DIAG == 2 else 's_memrealtime'} s[96:97]\ns_waitcnt lgkmcnt(0)\ns_mov_b32 s{80 + n}, s96")


def sreg(r):
    return int(r[2:r.index(":")])


def srd(r, ptr, size):
    n = sreg(r)
    P(f"s_mov_b32 s{n}, s{ptr}\ns_mov_b32 s{n+1}, s{ptr+1}\ns_mov_b32 s{n+2}, 0x{size:x}\ns_mov_b32 s{n+3}, 0x20000")


def sel2(dst, a, b):
    P(f"s_mov_b32 {dst}, 0x{b:x}\ns_cmov_b32 {dst}, 0x{a:x}")


cold = []


def flush_cold():
    for t in cold:
        P(t)
    cold.clear()


def spin_text(lbl, load, check):
    t = f"s_mov_b32 {T3}, {1 << OPT['spin']}\n{lbl}:\n{load}\ns_waitcnt vmcnt(0)\n{check}\n"
    t += f"s_sub_u32 {T3}, {T3}, 1\ns_cbranch_scc1 {lbl}_x\ns_cbranch_vccz {lbl}_x\n"
    if OPT["slp"]:
        t += f"s_sleep {OPT['slp']}\n"
    return t + f"s_branch {lbl}"


def spin(lbl, load, check):
    P(spin_text(lbl, load, check))
    P.label(lbl + "_x")


def retry(lbl, load, check):
    P(f"s_cbranch_vccnz {lbl}_s")
    P.label(lbl + "_x")
    cold.append(f"{lbl}_s:\n" + spin_text(lbl, load, check))


HX = "row"
FAR = "s46"
nrow = [0]
def row_store(text, nt=0):
    if not OPT["fast"]:
        P(text + " sc1")
        return
    nrow[0] += 1
    l = f"L_r{nrow[0]}"
    P(f"s_cmp_lg_u32 {FAR}, 0\ns_cbranch_scc1 {l}\n{text} {'nt' if nt else ''}\n{l}_x:")
    cold.append(f"{l}:\n{text} sc1\ns_branch {l}_x")


def flag_store(sreg_off, va=26, aux="sc1"):
    P(f"v_mov_b32 {v(va)}, {NONCE}\nv_mov_b32 {v(va+1)}, 0")
    P("s_mov_b64 exec, 1")
    if aux == "row":
        row_store(f"buffer_store_dword {v(va)}, {v(va+1)}, {rWS}, {sreg_off} offen")
    else:
        P(f"buffer_store_dword {v(va)}, {v(va+1)}, {rWS}, {sreg_off} offen {aux}")
    P("s_mov_b64 exec, -1")


def signal(vaddr, vtmp, k):
    P(f"v_mov_b32 {v(vtmp)}, {k}\ns_mov_b64 exec, 1\nds_write_b32 {v(vaddr)}, {v(vtmp)}\ns_mov_b64 exec, -1")
    lg.add(None)


nwait = [0]
def peek(vaddr, vd):
    lg.room()
    P(f"ds_read_b32 {v(vd)}, {v(vaddr)}")
    lg.add(("peek", vd))


def await_(vaddr, vd, k, peeked=False):
    nwait[0] += 1
    lbl = f"L_w{nwait[0]}"
    if not peeked:
        peek(vaddr, vd)
    lg.wait(("peek", vd))
    P(f"v_cmp_gt_u32 vcc, {k}, {v(vd)}")
    P(f"s_cbranch_vccnz {lbl}_s")
    P.label(lbl + "_x")
    cold.append(f"{lbl}_s:\ns_mov_b32 {T3}, {1 << 20}\n{lbl}:\nds_read_b32 {v(vd)}, {v(vaddr)}\ns_waitcnt lgkmcnt(0)\n"
                f"v_cmp_gt_u32 vcc, {k}, {v(vd)}\ns_sub_u32 {T3}, {T3}, 1\ns_cbranch_scc1 {lbl}_x\ns_cbranch_vccz {lbl}_x\n"
                + (f"s_sleep {OPT['lsl']}\n" if OPT["lsl"] else "") + f"s_branch {lbl}")


def hblock2(dst):
    P(f"s_lshl_b32 {dst}, {C_}, 1\ns_add_u32 {T3}, {C_}, 3\ns_min_u32 {dst}, {dst}, {T3}\ns_add_u32 {dst}, {dst}, 32")


def waddr(dst, t1, t2, hshift):
    P(f"v_lshrrev_b32 {v(t1)}, 5, v0\nv_bfe_u32 {v(t2)}, v0, 2, 2\nv_lshl_add_u32 {v(t1)}, {v(t1)}, {hshift}, {v(t2)}")
    P(f"v_lshlrev_b32 {v(dst)}, 7, {v(t1)}")
    P(f"v_bfe_u32 {v(t1)}, v0, 3, 1\nv_lshl_or_b32 {v(dst)}, {v(t1)}, 6, {v(dst)}")
    P(f"v_bfe_u32 {v(t1)}, v0, 4, 1\nv_lshl_or_b32 {v(dst)}, {v(t1)}, 5, {v(dst)}")
    P(f"v_and_b32 {v(t1)}, 3, v0\nv_lshl_or_b32 {v(dst)}, {v(t1)}, 3, {v(dst)}")


def tr(dst, addr, off, tag):
    assert 0 <= off < 65536, off
    lg.room()
    P(f"ds_read_b64_tr_b16 {v(dst, 2)}, {v(addr)} offset:{off}")
    lg.add(tag)


def dump(role):
    if not DIAG:
        return
    P("s_waitcnt vmcnt(0)")
    stamp(role, "end")
    P("s_waitcnt lgkmcnt(0)")
    for n in range(16):
        P(f"v_mov_b32 {v(32 + n)}, {s(80 + n) if DIAG < 3 else (s(80 + 2 * n) if n < 10 else ('s100' if n == 15 else 0))}")
    P(f"s_lshl_b32 {T0}, s2, 3\ns_add_u32 {T0}, {T0}, {W}\ns_lshl_b32 {T0}, {T0}, 6\ns_add_u32 {T0}, {T0}, 0x{WS_DIAG + role * 256:x}")
    P("v_mov_b32 v26, 0\ns_mov_b64 exec, 1")
    for n in range(4):
        P(f"buffer_store_dwordx4 {v(32 + 4 * n, 4)}, v26, {rWS}, {T0} offen offset:{16 * n}")


P("s_cmp_ge_u32 s2, 256")
P("s_cbranch_scc1 L_end")
if DIAG >= 3:
    P("s_memrealtime s[100:101]")
P("s_load_dwordx16 s[36:51], s[0:1], 0")
P("v_lshrrev_b32 v1, 6, v0")
P("v_and_b32 v0, 63, v0")
P(f"s_lshr_b32 {T3}, s2, 7\nv_readfirstlane_b32 {T2}, v1\ns_and_b32 {I_}, s2, 7\ns_bfe_u32 {J_}, s2, 0x40003")
P(f"s_lshl2_add_u32 {RHO}, {T3}, {J_}\ns_and_b32 {T1}, s2, 3\ns_lshl1_add_u32 {I_}, {I_}, {T3}\ns_add_u32 {RHO}, {RHO}, {T1}\ns_and_b32 {RHO}, {RHO}, 7")
P(f"s_and_b32 {W}, {T2}, 3")
def late_args():
    P("s_load_dwordx4 s[52:55], s[0:1], 64")
    P("s_load_dwordx2 s[56:57], s[0:1], 80")
    P(f"s_lshr_b32 {C_}, {J_}, 1\ns_and_b32 {TYPE}, {J_}, 1")
def diag_init():
    if DIAG:
        for n in range(20):
            P(f"s_mov_b32 s{80 + n}, 0")


RHOS, RHOA = "s3", "s47"
def tile2():
    if OPT["map2"] == 42:
        P(f"s_lshr_b32 {T3}, s2, 5\ns_bfe_u32 {TB2}, s2, 0x20001\ns_lshl_b32 {TB2}, {TB2}, 3\ns_add_u32 {TB2}, {TB2}, {T3}")
        P(f"s_bfe_u32 {RHO2}, s2, 0x20003\ns_and_b32 {CT}, s2, 1\ns_lshl_b32 {CT}, {CT}, 2\ns_add_u32 {CT}, {CT}, {RHO2}")
        P(f"s_lshl_b32 {RHO2}, {RHO2}, 1\ns_add_u32 {RHO2}, {RHO2}, {T3}\ns_and_b32 {RHO2}, {RHO2}, 7")
        return
    P(f"s_lshr_b32 {T3}, s2, 6\ns_and_b32 {TB2}, s2, 7\ns_lshl_b32 {TB2}, {TB2}, 2\ns_add_u32 {TB2}, {TB2}, {T3}")
    P(f"s_bfe_u32 {CT}, s2, 0x30003\ns_lshl_b32 {RHO2}, {T3}, 1\ns_add_u32 {RHO2}, {RHO2}, {CT}\ns_and_b32 {RHO2}, {RHO2}, 7")
    P(f"s_add_u32 {RHOS}, {T3}, {CT}\ns_mul_i32 {RHOA}, {T3}, 3\ns_and_b32 {T3}, {CT}, 1\ns_add_u32 {RHOA}, {RHOA}, {T3}")
    if not OPT["rotx"]:
        P(f"s_mov_b32 {RHOS}, {RHO2}\ns_mov_b32 {RHOA}, 0")


P(f"s_cmp_lt_u32 {T2}, 4")
P("s_cbranch_scc1 L_loader")
late_args()
if OPT["codepf"]:
    P("s_getpc_b64 s[32:33]")
    P.label("L_pc")
    P("s_mov_b32 s34, L_codeend-L_pc\ns_mov_b32 s35, 0x20000")
    P(f"s_lshr_b32 {T0}, s2, 3\ns_lshl2_add_u32 {T1}, {T0}, {W}\ns_lshl_b32 {T1}, {T1}, 7\nv_and_b32 v2, 3, v0\nv_lshl_add_u32 v2, v2, 14, {T1}")
    P("buffer_load_dword v31, v2, s[32:35], 0 offen")
P("s_branch L_compute")
P.label("L_loader")

lg = Q("lgkmcnt", 15)
vm = Q("vmcnt", 63)
VX, VP1, VP2, VW2, VBI, LWA, LWB, VL16, SEL, CS, CS2 = 1, 2, 3, 4, 5, 6, 7, 8, 12, 16, 20
RS1, RS32, SX0, SW0, DCOL, SP20, SM, HB0L = (s(n) for n in range(72, 80))
if DIAG < 3:
    diag_init()
    stamp(1, "start")
P("v_lshrrev_b32 v24, 3, v0\nv_and_b32 v25, 7, v0\nv_lshrrev_b32 v26, 4, v0")
P(f"s_and_b32 {T0}, {W}, 1\ns_lshl_b32 {T0}, {T0}, 2\ns_lshl4_add_u32 {SX0}, {I_}, {W}")
P(f"v_add_u32 v27, {T0}, v26\nv_xor_b32 v27, v27, v25\nv_lshlrev_b32 v27, 4, v27\nv_lshl_or_b32 {v(VX)}, v24, 10, v27")
P(f"s_lshl_b32 {SX0}, {SX0}, 13\ns_lshl_b32 {SM}, {W}, 10")
P("s_mov_b32 s6, 0x200000\ns_mov_b32 s7, 0x20000")
SZQ, SZ1 = 512 * 3072, 512 * 2752


def wsetup():
    late_args()
    P(f"s_setprio {OPT['prio']}")
    P(f"s_lshl_b32 {T1}, {C_}, 7\ns_cmp_eq_u32 {TYPE}, 0")
    sel2(RS1, 3072, 2752)
    sel2(DCOL, 1024, 128)
    sel2("s10", SZQ, SZ1)
    P(f"s_cselect_b32 s8, s{P_QKV}, s{P_W1}\ns_cselect_b32 s9, s{P_QKV+1}, s{P_W1+1}\ns_mov_b32 s11, 0x20000")
    P(f"s_cselect_b32 {SW0}, 1024, {T1}\ns_add_u32 {SW0}, {SW0}, {T1}")
    P("v_and_b32 v27, 1, v26\nv_lshlrev_b32 v27, 2, v27\nv_xor_b32 v27, v27, v25\nv_lshlrev_b32 v27, 4, v27")
    P(f"v_mad_u32_u24 {v(VP1)}, v24, {RS1}, v27")
    P(f"s_lshl_b32 {T3}, {W}, 3\ns_mul_i32 {SP20}, {T3}, {RS1}\ns_add_u32 {SW0}, {SW0}, {SP20}\ns_lshl_b32 {RS32}, {RS1}, 5")


def wsetup2():
    hblock2(HB0L)
    P(f"s_lshl_b32 {T0}, {HB0L}, 6\ns_lshl_b32 {T1}, {C_}, 7\ns_cmp_eq_u32 {TYPE}, 0\ns_cselect_b32 {T0}, {T1}, {T0}\ns_add_u32 {SP20}, {SP20}, {T0}")
    P(f"v_lshl_or_b32 {v(VW2)}, v24, 10, v27")


def dma(voff, srdr, soff, tag):
    if OPT["noload"]:
        return
    P(f"buffer_load_dwordx4 {v(voff)}, {srdr}, {soff} offen lds")
    vm.add(tag)


def ks_reg(q):
    P(f"s_add_u32 {T0}, {RHO}, {q}\ns_and_b32 {T0}, {T0}, 7" if q else f"s_mov_b32 {T0}, {RHO}")


def stage(q, mid=None, pre=None):
    sl = (q % 3) * 32 * K
    ks_reg(q)
    P(f"s_lshl_b32 {T1}, {T0}, 7\ns_add_u32 {T1}, {T1}, {SX0}")
    for m in range(4):
        P(f"s_add_u32 m0, {SM}, {sl + 4 * K * m}")
        if m:
            P(f"s_add_u32 {T1}, {T1}, 32768")
        else:
            P(f"s_lshl_b32 {T0}, {T0}, 6")
            if pre:
                pre()
        dma(VX, rX, T1, ("st", q))
    if mid:
        mid()
    P(f"s_mul_i32 {T0}, {T0}, {RS1}\ns_add_u32 {T0}, {T0}, {SW0}")
    for h in range(2):
        if h:
            P(f"s_add_u32 {T0}, {T0}, {RS32}")
        P(f"s_add_u32 m0, {SM}, {sl + 16 * K + 4 * K * h}")
        P(f"s_add_u32 {T1}, {T0}, {DCOL}")
        dma(VP1, rP1, T0, ("st", q))
        P(f"s_add_u32 m0, {SM}, {sl + 24 * K + 4 * K * h}")
        dma(VP1, rP1, T1, ("st", q))


def chunk(q, tag="ch"):
    ks_reg(q)
    P(f"s_lshl_b32 {T0}, {T0}, 6\ns_mul_i32 {T0}, {T0}, {RS1}")
    P(f"s_add_u32 m0, {SM}, {CH(q)}\ns_add_u32 {T0}, {T0}, {SP20}")
    dma(VP1, rP1, T0, tag)
    P(f"s_add_u32 m0, {SM}, {CH(q) + 4 * K}\ns_add_u32 {T0}, {T0}, {RS32}")
    dma(VP1, rP1, T0, tag)


LPA, LPL = "s48", "s49"
LPB, LGB, SCS = "s36", "s37", "s38"
STG, G, PQR, D0, D1 = 48, 148, 212, 32, 228


def page_addr(p):
    if p < 32:
        g, mask, sr, add = p >> 2, 7, rW2, 0
    elif p < 44:
        P(f"s_add_u32 {T0}, {LPA}, {(p - 32) * 32768}\ns_cmp_ge_u32 {T0}, {LPL}\ns_cselect_b32 {T1}, {11 * 32768}, 0\ns_sub_u32 {T0}, {T0}, {T1}")
        return rW2
    else:
        g, mask, sr, add = (p - 44) >> 2, 3, rWO, 0
    if p % 4 == 0 or page_addr.last != (p >> 2):
        P(f"s_add_u32 {LGB}, {RHO2 if p < 32 else RHOS}, {g}\ns_and_b32 {LGB}, {LGB}, {mask}\ns_lshl_b32 {LGB}, {LGB}, 17\ns_add_u32 {LGB}, {LGB}, {LPB}")
        page_addr.last = p >> 2
    P(f"s_add_u32 {T0}, {LGB}, {(p % 4) * 32768}")
    return sr
page_addr.last = None


def page(p):
    P(f"s_add_u32 m0, {SM}, {slot_of(p)}")
    sr = page_addr(p)
    dma(VW2, sr, T0, ("pg", p))


def stg_reg(p):
    return STG + 4 * (p - 38 if p < 43 else p - 39)


def page_stage(p):
    sr = page_addr(p)
    P(f"buffer_load_dwordx4 {v(stg_reg(p), 4)}, {v(VW2)}, {sr}, {T0} offen")
    vm.add(("pg", p))


def page_write(p, pace=0):
    so = slot_of(p)
    a, off = (VL16, so) if so < 64 * K else ((VL16 + 1, so - 64 * K) if so < 128 * K else (VL16 + 2, so - 128 * K))
    P(f"ds_write_b128 {v(a)}, {v(stg_reg(p), 4)} offset:{off}")
    if pace:
        P("s_waitcnt lgkmcnt(0)")


stage(0, wsetup, lambda: P(f"s_waitcnt lgkmcnt(0)\ns_mov_b32 s4, s{P_X}\ns_mov_b32 s5, s{P_X+1}"))
if DIAG >= 3:
    diag_init()
    stamp(1, "start")
stamp(1, "st0")
wsetup2()
chunk(0, "ch0")
P("s_waitcnt lgkmcnt(0)")
srd(rWS, P_WS, WS_SIZE)
srd(rW2, P_W2, 1376 * 1024)
srd(rWO, P_WO, 512 * 1024)
srd(rA, P_B1, 2752)
tile2()
waddr(LWA, 27, 28, 3)
P(f"s_and_b32 {T0}, {W}, 1\ns_lshl_b32 {T0}, {T0}, 6")
P(f"v_xor_b32 {v(LWA)}, {T0}, {v(LWA)}")
P(f"v_add_u32 {v(LWB)}, 0x{CH(0):x}, {v(LWA)}")
P(f"s_lshr_b32 {T0}, {W}, 1\ns_lshl_b32 {T0}, {T0}, 13\ns_add_u32 {T0}, {T0}, {16 * K}")
P(f"v_add_u32 {v(LWA)}, {T0}, {v(LWA)}")
P("v_and_b32 v27, 15, v0\nv_lshlrev_b32 v28, 2, v26\nv_cmp_eq_u32 vcc, v27, v28\nv_mov_b32 v27, 0x3f803f80")
for r in range(4):
    P(f"v_cndmask_b32 {v(SEL + r)}, 0, v27, vcc")
P(f"v_lshl_add_u32 {v(VL16)}, v0, 4, {SM}")
P(f"v_add_u32 {v(VL16+1)}, 0x10000, {v(VL16)}\nv_add_u32 {v(VL16+2)}, 0x20000, {v(VL16)}")
P(f"s_lshl_b32 {LPB}, {W}, 13\ns_lshl_b32 {T1}, {CT}, 7\ns_add_u32 {LPB}, {LPB}, {T1}")
P(f"s_lshl_b32 {LPA}, {RHOA}, 15\ns_add_u32 {LPA}, {LPA}, {LPB}\ns_add_u32 {LPA}, {LPA}, {32 * 32768}\ns_add_u32 {LPL}, {LPB}, {43 * 32768}")
P(f"s_lshl_b32 {SCS}, {J_}, 1\ns_lshr_b32 {T0}, {I_}, 3\ns_add_u32 {SCS}, {SCS}, {T0}\ns_lshl_b32 {SCS}, {SCS}, 2")
P(f"s_add_u32 {SCS}, {SCS}, {W}\ns_lshl_b32 {SCS}, {SCS}, 12\ns_add_u32 {SCS}, {SCS}, 0x{WS_CS:x}")
P(f"s_lshl_b32 {T0}, {C_}, 2\ns_add_u32 {T0}, {T0}, {W}\ns_lshl_b32 {T0}, {T0}, 6")
P(f"s_and_b32 {T1}, {W}, 1\ns_add_u32 {T1}, {T1}, {HB0L}\ns_lshl_b32 {T1}, {T1}, 6")
P(f"s_cmp_eq_u32 {TYPE}, 0\ns_cselect_b32 {T0}, 0x100000, {T0}\ns_cselect_b32 {T1}, 0x100000, {T1}")
P(f"v_mov_b32 v27, {T0}\nv_mov_b32 v28, {T1}\nv_cmp_gt_u32 vcc, 32, v0\nv_and_b32 v29, 31, v0")
P(f"v_cndmask_b32 v27, v28, v27, vcc\nv_lshl_add_u32 v30, v29, 1, v27")
STW, STO = "s40", "s41"
P(f"s_lshr_b32 {T0}, s2, 3\ns_lshl_b32 {T0}, {T0}, 2\ns_add_u32 {T0}, {T0}, {W}\ns_and_b32 {T1}, s2, 7")
P(f"s_mul_i32 {STW}, {T0}, 86\ns_mul_i32 {T2}, {T1}, 5\ns_add_u32 {STW}, {STW}, {T2}\ns_lshl_b32 {STW}, {STW}, 7")
P(f"s_lshl_b32 {STO}, {T0}, 4\ns_add_u32 {STO}, {STO}, {T1}\ns_lshl_b32 {STO}, {STO}, 8")
if OPT["stouch"]:
    P(f"s_lshl_b32 {T0}, s2, 2\ns_add_u32 {T0}, {T0}, {W}\ns_mul_i32 {STW}, {T0}, {11 * 128}\ns_lshl_b32 {STO}, {T0}, 9")
ntouch = [0]
def touches(n):
    for _ in range(n):
        t = ntouch[0]
        ntouch[0] += 1
        if t % 4 != 3:
            P(f"s_buffer_load_dword s44, {rW2}, {STW} offset:{(t - t // 4) * 128}")
        elif t // 4 < 32:
            P(f"s_buffer_load_dword s44, {rWO}, {STO} offset:{(t // 4) * 128}")
VSIG, VPK = 11, 24
P(f"s_lshl_b32 {T0}, {W}, 2\ns_add_u32 {T0}, {T0}, 0x{L_RDY:x}\nv_mov_b32 {v(VSIG)}, {T0}")
P(f"v_and_b32 {v(VPK)}, 3, v0\nv_lshlrev_b32 {v(VPK)}, 2, {v(VPK)}\nv_add_u32 {v(VPK)}, 0x{L_PRG:x}, {v(VPK)}")
signal(VSIG, 27, 0)
lg.drain()
stamp(1, "setup")
stage(1)
stamp(1, "issued")
vm.wait("ch0")
vm.wait(("st", 0))
stamp(1, "land")
if OPT["p2only"]:
    P("s_waitcnt vmcnt(0)\ns_barrier")
    signal(VSIG, 27, 6)
    P("s_barrier\ns_barrier")
    dump(1)
    P("s_endpgm")
    lg.q = []
P("s_barrier ; b0")
stamp(1, "b0")
FR = 32


def cs_reads(a, f):
    for t in range(4):
        P(f"ds_read_b64_tr_b16 {v(f + 4 * t, 2)}, {v(a)} offset:{t * 2048}")
        P(f"ds_read_b64_tr_b16 {v(f + 4 * t + 2, 2)}, {v(a)} offset:{t * 2048 + 512}")


def cs_mfma(acc, f):
    for t in range(4):
        P(f"v_mfma_f32_16x16x32_bf16 {v(acc, 4)}, {v(SEL, 4)}, {v(f + 4 * t, 4)}, {'0' if t == 0 else v(acc, 4)}")


CSL = "\n".join(f"buffer_load_dwordx2 {v(32 + 2 * n, 2)}, v29, {rWS}, {SCS} offen offset:{512 * n} sc1" for n in range(8))
CSC = "\n".join([f"v_xor_b32 {v(48 + n)}, {NONCE}, {v(33 + 2 * n)}" for n in range(8)] +
                ["v_or3_b32 v48, v48, v49, v50", "v_or3_b32 v51, v51, v52, v53", "v_or3_b32 v48, v48, v54, v55",
                 "v_or_b32 v48, v48, v51", "v_cmp_ne_u32 vcc, 0, v48"])
nch = 1
for st in range(8):
    if st == 0:
        def mid():
            P(f"s_setprio {OPT['csprio']}")
            P("s_waitcnt lgkmcnt(0)")
            cs_reads(LWB, FR + 16)
            cs_mfma(CS, FR)
        P(f"v_mov_b32 v29, 0x{L_TAG:x}")
        cs_reads(LWA, FR)
        P("ds_read_b32 v29, v29")
        stage(2, mid)
        P(f"buffer_load_ushort {v(VBI)}, v30, {rA}, 0 offen")
        vm.add("bias")
        P(f"v_readfirstlane_b32 {NONCE}, v29")
        P(f"s_lshl_b32 {T0}, {W}, 8\ns_add_u32 {T0}, {T0}, 0x{L_CSX:x}")
        P(f"v_lshl_add_u32 v27, v0, 2, {T0}")
        P("s_waitcnt lgkmcnt(0)")
        cs_mfma(CS2, FR + 16)
    elif st <= 5:
        stage(st + 2)
    if st == 0:
        P(f"v_permlane32_swap_b32 {v(CS)}, {v(CS2)}")
        P(f"v_add_f32 {v(CS)}, {v(CS)}, {v(CS2)}")
        P(f"ds_write_b32 v27, {v(CS)}")
        P(f"s_setprio {OPT['prio']}")
        P("s_waitcnt lgkmcnt(0)")
    if OPT["sp0"] <= st < 7 and st > 0:
        touches(OPT["sp"])
    if OPT["spx"] and 1 <= st <= 6:
        if st == 1:
            P(f"s_lshl_b32 {STW}, {RHO2}, 17\ns_add_u32 {STW}, {STW}, {LPB}\ns_add_u32 {STO}, {RHO2}, 1\ns_and_b32 {STO}, {STO}, 7\ns_lshl_b32 {STO}, {STO}, 17\ns_add_u32 {STO}, {STO}, {LPB}")
        for t in range((st - 1) * OPT["spx"], min(64, st * OPT["spx"])):
            P(f"s_buffer_load_dword s44, {rW2}, {STW if t < 32 else STO} offset:{((t % 32) >> 3) * 32768 + (t & 7) * 1024}")
    if OPT["stouch"] and st in (OPT["stouch"], OPT["stouch"] + 1):
        for t in range(8 * (st - OPT["stouch"]), min(15, 8 * (st - OPT["stouch"]) + 8)):
            P(f"s_buffer_load_dword s44, {rW2}, {STW} offset:{t * 128}" if t < 11 else f"s_buffer_load_dword s44, {rWO}, {STO} offset:{(t - 11) * 128}")
    if st == 6:
        P("v_lshlrev_b32 v29, 3, v0")
        if not OPT["nocs"]:
            P(CSL)
            for n in range(8):
                vm.add("cs")
        for q in range(nch, nch + OPT["n6"]):
            chunk(q)
        nch += OPT["n6"]
    if st == 7:
        if not OPT["nocs"]:
            vm.wait("cs")
            P(CSC)
            retry("L_cs", CSL, CSC)
        P("v_add_f32 v32, v32, v34\nv_add_f32 v36, v36, v38\nv_add_f32 v40, v40, v42\nv_add_f32 v44, v44, v46")
        P("v_add_f32 v32, v32, v36\nv_add_f32 v40, v40, v44\nv_add_f32 v32, v32, v40")
        P("v_cvt_pk_bf16_f32 v33, v32, v32\nv_lshlrev_b32 v33, 16, v33\nv_sub_f32 v32, v32, v33\nv_cvt_pk_bf16_f32 v32, v33, v32")
        P("v_cmp_gt_u32 vcc, 32, v0")
        P(f"s_lshl_b32 {T0}, {W}, 9\ns_add_u32 {T0}, {T0}, 0x{L_EX1:x}")
        P(f"v_add_u32 v29, {T0}, v29")
        P(f"v_cndmask_b32 v34, 0, v32, vcc\nv_cndmask_b32 v35, 0, {v(VBI)}, vcc")
        P(f"v_cndmask_b32 v36, v32, 0, vcc\nv_cndmask_b32 v37, {v(VBI)}, 0, vcc")
        P(f"ds_write_b64 v29, v[34:35]\nds_write_b64 v29, v[36:37] offset:{L_EX2 - L_EX1}")
        for q in range(nch, nch + OPT["n7"]):
            chunk(q)
        nch += OPT["n7"]
        P("s_waitcnt lgkmcnt(0)")
    else:
        vm.wait(("st", st + 1))
    P(f"s_barrier ; b{st + 1}")
    if "st1" in OPT and st < 7:
        stamp(1, f"b{st+1}")
stamp(1, "b8")
if OPT["p1only"]:
    dump(1)
    P("s_endpgm")
    DIAG = 0
for q in range(nch, 8):
    chunk(q)
XRES, BRES, VO, SO = 244, 252, 19, "s45"
srd(rB, P_B2, 1024)
srd(rP2, P_OUT, 2 * K * K)
P(f"v_and_b32 v28, 7, v0\nv_lshlrev_b32 v28, 4, v28\nv_lshrrev_b32 v29, 3, v0\nv_lshl_or_b32 {v(VO)}, v29, 10, v28")
P(f"s_lshl_b32 {SO}, {TB2}, 2\ns_add_u32 {SO}, {SO}, {W}\ns_lshl_b32 {SO}, {SO}, 14\ns_lshl_b32 {T1}, {CT}, 7\ns_add_u32 {SO}, {SO}, {T1}")
P(f"s_add_u32 {T2}, {SO}, 8192")
P(f"buffer_load_dwordx4 {v(BRES, 4)}, v28, {rB}, {T1} offen")
P(f"buffer_load_dwordx4 {v(XRES, 4)}, {v(VO)}, {rX}, {SO} offen")
P(f"buffer_load_dwordx4 {v(XRES + 4, 4)}, {v(VO)}, {rX}, {T2} offen")
for _ in range(3):
    vm.add("res")
vq8 = list(vm.q)


def stream(seq, events):
    pend, n = [], 0
    for tag in events:
        if tag in vm.q:
            pend.append([tag, len(vm.q) - 1 - max(i for i, t in enumerate(vm.q) if t == tag)])
    for p in seq:
        (page if p < 38 else page_stage)(p)
        if "st1" in OPT:
            stamp(1, f"p{p}")
        for e in pend:
            e[1] += 1
        if ("pg", p) in events:
            pend.append([("pg", p), 0])
        while pend and pend[0][1] >= OPT["lag"]:
            tag = pend.pop(0)[0]
            vm.wait(tag)
            signal(VSIG, 26, events[tag])
    for tag, _ in pend:
        vm.wait(tag)
        signal(VSIG, 26, events[tag])


P(f"s_cmp_eq_u32 {TYPE}, 0")
P("s_cbranch_scc1 L_lA")
SH1, SH2, SF1 = "s4", "s5", "s6"
P(f"v_add_u32 v22, 16, {v(VSIG)}\nv_lshlrev_b32 v23, 4, v0")
P(f"s_lshl_b32 {T0}, {I_}, 2\ns_add_u32 {T0}, {T0}, {W}")
P(f"s_mul_i32 {SH1}, {T0}, {TB_STRIDE}\ns_add_u32 {SH1}, {SH1}, 0x{WS_HA:x}")
P(f"s_lshl_b32 {SH2}, {HB0L}, 11\ns_add_u32 {SH2}, {SH2}, {SH1}\ns_lshl_b32 {T1}, {C_}, 13\ns_add_u32 {SH1}, {SH1}, {T1}")
P(f"s_lshl_b32 {SF1}, {T0}, 5\ns_add_u32 {SF1}, {SF1}, {C_}\ns_lshl_b32 {SF1}, {SF1}, 2\ns_add_u32 {SF1}, {SF1}, 0x{WS_FLAGS + FL_HB * 128:x}")


def far():
    P(f"ds_read_b32 v28, {v(VPK)} offset:{L_FAST - L_PRG}\ns_waitcnt lgkmcnt(0)\nv_cmp_ne_u32 vcc, 0, v28\ns_or_b32 {FAR}, vcc_lo, vcc_hi")


def wback(tag):
    if OPT["wbj"] == 0:
        P(f"s_cmp_lg_u32 {W}, 0")
    else:
        P(f"s_xor_b32 {T0}, {J_}, {OPT['wbj'] - 1}\ns_or_b32 {T0}, {T0}, {W}\ns_cmp_lg_u32 {T0}, 0")
    P(f"s_cbranch_scc1 L_wb{tag}\nbuffer_wbl2 sc1\nL_wb{tag}:")


def hstore(k, base, b, sh, tag):
    if k == 1:
        await_(VPK, 28, k)
        far()
    else:
        await_(22, 28, k)
    d = D0 + 8 * (b & 1)
    for u in range(2):
        a = base + (2 * b + u) * 4096
        P(f"ds_read_b128 {v(d + 4 * u, 4)}, {v(VL16 + a // (64 * K))} offset:{a % (64 * K)}")
    if b == 2:
        P(f"s_add_u32 {sh}, {sh}, 4096")
    for u in range(2):
        P(f"s_waitcnt lgkmcnt({1 - u})")
        row_store(f"buffer_store_dwordx4 {v(d + 4 * u, 4)}, v23, {rWS}, {sh} offen offset:{2048 * (b & 1) + 1024 * u}", OPT["nt1"] if tag == "h" else OPT["nt2"])
        vm.add(tag)


np_ = OPT["pB"]
stream(range(0, np_), {})
hstore(1, L_HS, 0, SH1, "h")
vm.wait("ch")
signal(VSIG, 26, 1)
for b in range(1, 4):
    stream(range(np_, np_ + OPT["iB"]), {})
    np_ += OPT["iB"]
    hstore(b + 1, L_HS, b, SH1, "h")
signal(VSIG, 26, 2)
stamp(1, "h_st")
nx = min(18, np_ + OPT["xB"])
stream(range(np_, nx), {})
vm.wait("h")
flag_store(SF1, aux=HX)
vm.add(None)
stamp(1, "hbflag")
if OPT["wb"] in (1, 4):
    wback(1)
stream(range(nx, 18), {})
P(f"s_add_u32 {SF1}, {SF1}, {(FL_HA - FL_HB) * 128}")
P(f"s_cmp_lt_u32 {C_}, 3")
P("s_cbranch_scc0 L_lB1")
vqB = list(vm.q)
for nb in (2, 1):
    if nb == 1:
        P.label("L_lB1")
        vm.q = list(vqB)
    page_addr.last = None
    late = list(range(38, 43)) + list(range(44, 60))
    hk = 3 if nb == 2 else OPT["hk1"]
    for k in range(4):
        if nb == 2:
            stream(late[:OPT["lB"]], {})
            late = late[OPT["lB"]:]
        lg.q = []
        await_(VPK, 28, 5 + k)
        stream(range(18 + 4 * k, 22 + 4 * k), {})
        if k == 0:
            vm.wait(("pg", 17))
            signal(VSIG, 26, 3)
        if k == hk:
            lg.q = []
            for b in range(nb):
                hstore(9 + b, L_PQ, b, SH2, "h2")
            stamp(1, "h2_st")
            stream(range(34, 38), {})
        if k == min(3, hk + 1):
            vm.wait("h2")
            flag_store(SF1, aux=HX)
            vm.add(None)
            stamp(1, "oflag")
    stream(late[:OPT["lag"]], {})
    vm.wait(("pg", 33))
    vm.wait(("pg", 37))
    signal(VSIG, 26, 4)
    stream(late[OPT["lag"]:], {})
    stamp(1, "staged")
    vm.wait(("pg", 42))
    P("s_branch L_l5")
P.label("L_lA")
vm.q = list(vq8)
lg.q = []
page_addr.last = None
lateA = list(range(38, 43)) + list(range(44, 60))
def takeA(n):
    global lateA
    r, lateA = lateA[:n], lateA[n:]
    return r
stream(list(range(13)) + takeA(OPT["lA0"]), {"ch": 1})
await_(VPK, 28, 2)
far()
stream(range(13, 18), {})
def freed(ks):
    for k in ks:
        stream(takeA(OPT["lA"]), {})
        lg.q = []
        await_(VPK, 28, 5 + k)
        stream(range(18 + 4 * k, 22 + 4 * k), {})
SZL, SK0, SK1, SKE = "s4", "s5", "s6", "s7"
NB = [NONCE, "s39", "s42", "s43"]
P("v_and_b32 v23, 15, v0\nv_lshlrev_b32 v27, 4, v0")
P(f"v_lshrrev_b32 v22, 2, v0\nv_mul_u32_u24 v25, {KVP_STR}, v22\nv_and_b32 v26, 3, v0\nv_lshl_add_u32 v25, v26, 4, v25")
P(f"s_mul_i32 {SK0}, {C_}, {16 * KVP_STR}\ns_add_u32 {SK0}, {SK0}, 0x{WS_KVP:x}")
P(f"s_lshl_b32 {SZL}, {W}, 6\ns_add_u32 {SZL}, {SZL}, {SK0}\ns_add_u32 {SZL}, {SZL}, 4096")
P(f"s_add_u32 {SK0}, {SK0}, {SM}\ns_add_u32 {SKE}, {SK0}, {16 * KVP_STR}")
P(f"s_lshl_b32 {SK1}, {I_}, 1\ns_and_b32 {SK1}, {SK1}, 15\ns_mul_i32 {SK1}, {SK1}, {KVP_STR}\ns_add_u32 {SK1}, {SK1}, {SK0}")
P(f"s_add_u32 {T0}, {SM}, 0x{L_KT:x}")
P("v_and_b32 v40, 1, v26\nv_lshlrev_b32 v40, 4, v40\nv_lshrrev_b32 v26, 1, v26\nv_lshl_or_b32 v40, v26, 3, v40")
P(f"v_lshl_or_b32 v40, v22, 5, v40\nv_add_u32 v40, {T0}, v40")
P("v_bfe_u32 v41, v0, 4, 1\nv_lshlrev_b32 v41, 4, v41\nv_lshrrev_b32 v26, 5, v0\nv_lshl_or_b32 v41, v26, 3, v41")
P(f"v_lshl_or_b32 v41, v23, 5, v41\nv_add_u32 v41, {T0}, v41")
P(f"v_and_b32 v42, 31, v0\nv_lshlrev_b32 v42, 5, v42\nv_lshl_or_b32 v42, v26, 4, v42\nv_add_u32 v42, {T0}, v42")
P(f"s_lshr_b32 s39, {NONCE}, 8\ns_lshr_b32 s42, {NONCE}, 16\ns_lshr_b32 s43, {NONCE}, 24")
ZL = f"buffer_load_dwordx4 v[28:31], v25, {rWS}, {SZL} offen sc1"
ZC = "\n".join([f"v_xor_b32 v20, {NB[0]}, v28", f"v_xor_b32 v21, {NB[1]}, v29",
                f"v_bitop3_b32 v20, v20, v30, {NB[2]} bitop3:0xf6", f"v_bitop3_b32 v21, v21, v31, {NB[3]} bitop3:0xf6",
                "v_or_b32 v20, v20, v21", "v_and_b32 v20, 0xff, v20", "v_cmp_ne_u32 vcc, 0, v20"])
freed(range(OPT["kq"]))
P(f"s_setprio {OPT['gprio']}")
P(f"s_mov_b32 {T2}, 32")
P.label("L_kvall")
spin("L_kv", ZL, ZC)
stamp(1, "kv_seen")
signal(VSIG, 26, 3)
P(f"s_mov_b32 {T1}, {SK1}")
GD = 16
GR8 = G if GD == 16 else PQR
def gload(n):
    P(f"buffer_load_dwordx4 {v(GR8 + 4 * (n % GD), 4)}, v27, {rWS}, {T1} offen sc1")
    if n < 15:
        P(f"s_add_u32 {T1}, {T1}, {KVP_STR}")
        if n % 2 == 1:
            P(f"s_cmp_eq_u32 {T1}, {SKE}\ns_cselect_b32 {T1}, {SK0}, {T1}")
for n in range(GD):
    gload(n)
for n in range(4):
    P(f"v_and_b32 {v(28 + n)}, 0xffffff00, {v(28 + n)}")
for r in (4, 8):
    for n in range(4):
        P(f"v_add_f32_dpp {v(28 + n)}, {v(28 + n)}, {v(28 + n)} row_ror:{r} row_mask:0xf bank_mask:0xf")
for op in ("v_permlane16_swap_b32", "v_permlane32_swap_b32"):
    for n in range(4):
        P(f"v_mov_b32 {v(32 + n)}, {v(28 + n)}")
    for n in range(4):
        P(f"{op} {v(28 + n)}, {v(32 + n)}")
    for n in range(4):
        P(f"v_add_f32 {v(28 + n)}, {v(28 + n)}, {v(32 + n)}")
P("v_cvt_pk_bf16_f32 v28, v28, v29\nv_cvt_pk_bf16_f32 v29, v30, v31")
P("ds_write_b64 v40, v[28:29] offset:512")
for n in range(16):
    P(f"s_waitcnt vmcnt({min(GD - 1, 15 - n)})")
    for h in range(4):
        r = v(GR8 + 4 * (n % GD) + h)
        if n == 0:
            P(f"v_xor_b32 {v(36 + h)}, {NB[h]}, {r}\nv_and_b32 {v(32 + h)}, 0xffffff00, {r}")
        else:
            P(f"v_bitop3_b32 {v(36 + h)}, {v(36 + h)}, {r}, {NB[h]} bitop3:0xf6\nv_and_b32 {v(44 + h)}, 0xffffff00, {r}")
    if n + GD < 16:
        gload(n + GD)
    if n:
        for h in range(4):
            P(f"v_add_f32 {v(32 + h)}, {v(32 + h)}, {v(44 + h)}")
P("v_or3_b32 v36, v36, v37, v38\nv_or_b32 v36, v36, v39\nv_and_b32 v36, 0xff, v36\nv_cmp_ne_u32 vcc, 0, v36")
P(f"s_sub_u32 {T2}, {T2}, 1")
P("s_cbranch_scc1 L_kvok")
P("s_cbranch_vccnz L_kvall")
P.label("L_kvok")
stamp(1, "gath")
if DIAG >= 3 and "retry" in str(OPT.get("st1")):
    P(f"s_waitcnt lgkmcnt(0)\ns_sub_u32 s98, 32, {T2}\ns_mul_i32 s98, s98, 100\ns_add_u32 s98, s98, s100")
vm.q = []
page_addr.last = None
P("v_cvt_pk_bf16_f32 v32, v32, v33\nv_cvt_pk_bf16_f32 v33, v34, v35")
P("ds_write_b64 v41, v[32:33]")
lg.q = []
P("ds_read_b128 v[44:47], v42")
freed(range(OPT["kq"], 4))
P(f"v_add_u32 v20, 0x{L_PQ:x}, {v(VL16)}")
P(f"s_mul_i32 s4, {I_}, {4 * TB_STRIDE}\ns_lshl_b32 {T1}, {C_}, 12\ns_add_u32 s4, s4, {T1}")
P(f"s_add_u32 s4, s4, {SM}\ns_add_u32 s4, s4, 0x{WS_HA + 86 * K:x}")
stamp(1, "staged")
await_(VPK, 22, 10)
stamp(1, "g0")
for tb in range(4):
    P(f"ds_read_b128 {v(PQR + 4 * tb, 4)}, v20 offset:{tb * 4096}")
P("v_mov_b32 v28, v44\nv_mov_b32 v29, v45\nv_mov_b32 v30, v46\nv_mov_b32 v31, v47")
def o_mfma(tb):
    P(f"s_waitcnt lgkmcnt({3 - tb})")
    P(f"v_mfma_f32_32x32x16_bf16 {v((D0, D1)[tb & 1], 16)}, v[28:31], {v(PQR + 4 * tb, 4)}, 0")
o_mfma(0)
o_mfma(1)
for tb in range(4):
    d = (D0, D1)[tb & 1]
    P(f"v_add_f32 {v(d + 8)}, 0x{f2u(1e-6):x}, {v(d + 8)}")
    P(f"v_rcp_f32 {v(d + 8)}, {v(d + 8)}")
    for r in range(8):
        P(f"v_mul_f32 {v(d + r)}, {v(d + r)}, {v(d + 8)}")
    for p in range(4):
        P(f"v_cvt_pk_bf16_f32 {v(PQR + 4 * tb + p)}, {v(d + 2 * p)}, {v(d + 2 * p + 1)}")
    if tb < 2:
        o_mfma(tb + 2)
    row_store(f"buffer_store_dwordx4 {v(PQR + 4 * tb, 4)}, v27, {rWS}, s4 offen", OPT["nt2"])
    vm.add("o")
    if tb < 3:
        P(f"s_add_u32 s4, s4, {TB_STRIDE}")
stamp(1, "o_st")
P(f"s_setprio {OPT['prio']}")
stream(range(34, 38), {})
vm.wait("o")
P(f"s_lshl_b32 {T0}, {I_}, 5\ns_lshl_b32 {T1}, {C_}, 2\ns_add_u32 {T0}, {T0}, {T1}\ns_add_u32 {T0}, {T0}, {W}")
P(f"s_lshl_b32 {T0}, {T0}, 2\ns_add_u32 {T0}, {T0}, 0x{WS_FLAGS + FL_O * 128:x}")
flag_store(T0, aux=HX)
vm.add(None)
stamp(1, "oflag")
stream(takeA(OPT["lag"]), {})
vm.wait(("pg", 37))
signal(VSIG, 26, 4)
stream(takeA(21), {})
vm.wait(("pg", 42))
P.label("L_l5")
lg.q = []
await_(VPK, 28, 11)
stamp(1, "gx")
nfree = 2 * ((OPT["gx"] - 7) // 4)
first = [p for p in list(range(38, 43)) + list(range(44, 60)) if p - 38 < nfree]
for p in first:
    if p == 44:
        signal(VSIG, 26, 5)
        P("s_waitcnt vmcnt(0)")
    page_write(p, OPT["pace"])
lg.q = []
P("s_waitcnt lgkmcnt(0)")
await_(VPK, 28, 12)
for p in range(44, 60):
    if p not in first:
        page_write(p, OPT["pace"])
signal(VSIG, 26, 6)
LOG2E = 1.4426950408889634
XRD, GG, XF, BF, YR = 22, 32, 48, 64, 72
P("v_lshrrev_b32 v26, 3, v0\nv_and_b32 v27, 7, v0\nv_lshlrev_b32 v27, 1, v27\nv_xor_b32 v27, v27, v26\nv_lshlrev_b32 v27, 4, v27\nv_lshl_or_b32 v26, v26, 8, v27")
P(f"s_lshl_b32 {T0}, {W}, 12\ns_add_u32 {T0}, {T0}, 0x{L_XS0:x}")
P(f"v_add_u32 {v(XRD)}, {T0}, v26\nv_xor_b32 {v(XRD + 1)}, 16, {v(XRD)}")
P(f"v_add_u32 {v(XRD + 2)}, 0x10000, {v(XRD)}\nv_add_u32 {v(XRD + 3)}, 0x10000, {v(XRD + 1)}")
P(f"s_add_u32 {T2}, {SO}, 8192")
P("s_waitcnt lgkmcnt(0)")


if OPT["wb"] in (2, 4):
    wback(2)
def unpack(dst, src, n):
    for r in range(n):
        P(f"v_lshlrev_b32 {v(dst + 2 * r)}, 16, {v(src + r)}\nv_and_b32 {v(dst + 2 * r + 1)}, 0xffff0000, {v(src + r)}")


def xread(dst, bases):
    for h in range(2):
        for kh in range(2):
            for j in range(2):
                P(f"ds_read_b128 {v(dst + 16 * kh + 8 * h + 4 * j, 4)}, {v(XRD + j + 2 * ((bases[kh] - L_XS0) >> 16))} offset:{((bases[kh] - L_XS0) & 0xffff) + 2048 * h}")


unpack(XF, XRES, 8)
unpack(BF, BRES, 4)
stamp(1, "rdy5")
P("s_barrier ; dY")
if OPT["wb"] == 3:
    wback(3)
xread(YR, (L_XY, L_XY + 16 * K))
P("s_waitcnt lgkmcnt(0)")
for fmt in ("v_add_f32 {Y}, {Y}, {Z}", "v_add_f32 {Y}, {Y}, {B}", f"v_mul_f32 {{G}}, 0x{f2u(-LOG2E):x}, {{Y}}", "v_exp_f32 {G}, {G}",
            "v_add_f32 {G}, 1.0, {G}", "v_rcp_f32 {G}, {G}", "v_mul_f32 {G}, {G}, {Y}"):
    for r in range(16):
        P(fmt.format(Y=v(YR + r), Z=v(YR + 16 + r), B=v(BF + r % 8), G=v(GG + r)))
stamp(1, "gate")
P("s_barrier ; dS")
xread(YR, (L_XS0, L_XS1))
for h in range(2):
    P(f"s_waitcnt lgkmcnt({4 - 4 * h})")
    for p in range(4 * h, 4 * h + 4):
        P(f"v_pk_add_f32 {v(YR + 2 * p, 2)}, {v(YR + 2 * p, 2)}, {v(YR + 16 + 2 * p, 2)}")
    for p in range(4 * h, 4 * h + 4):
        P(f"v_pk_fma_f32 {v(YR + 2 * p, 2)}, {v(YR + 2 * p, 2)}, {v(GG + 2 * p, 2)}, {v(XF + 2 * p, 2)}")
    for p in range(4 * h, 4 * h + 4):
        P(f"v_cvt_pk_bf16_f32 {v(BF + p)}, {v(YR + 2 * p)}, {v(YR + 2 * p + 1)}")
    P(f"buffer_store_dwordx4 {v(BF + 4 * h, 4)}, {v(VO)}, {rP2}, {(SO, T2)[h]} offen {OPT['outaux']}")
dump(1)
P.label("L_end")
P("s_endpgm")
flush_cold()

P.label("L_compute")
DIAG = OPT["diag"]
XR, ACC, WR = 128, 64, 32
VH, GR, XE, K1, K2, SD, RS, RL = 1, 2, 4, 6, 8, 10, 12, 14
XA, WA = 12, 20
HB0, SH, EPS2, SG, SFL1, SFL2, SCS2 = "s72", "s73", "s[74:75]", "s76", "s77", "s78", "s79"
lg = Q("lgkmcnt", 15)

diag_init()
stamp(0, "start")
P(f"s_setprio {OPT['cprio']}")
P(f"s_lshl_b32 {T0}, {I_}, 4\ns_add_u32 {T0}, {T0}, {J_}\ns_lshl_b32 {T0}, {T0}, 2\ns_add_u32 {T0}, {T0}, {W}\ns_lshl_b32 {T0}, {T0}, 1")
P(f"s_lshl_b32 {T1}, {T0}, 10")
P("v_lshrrev_b32 v26, 5, v0\nv_and_b32 v27, 31, v0\nv_lshlrev_b32 v28, 4, v27\nv_lshl_or_b32 v28, v26, 10, v28")
P("s_waitcnt lgkmcnt(0)")
srd(rX, P_X, 2 * K * K)
P(f"s_load_dword {NONCE}, s[{P_WS}:{P_WS+1}], 0")
P(f"buffer_load_dwordx4 v[32:35], v28, {rX}, {T1} offen")
P(f"buffer_load_dwordx4 v[36:39], v28, {rX}, {T1} offen offset:512")
srd(rWS, P_WS, WS_SIZE)
tile2()
P(f"v_lshlrev_b32 {v(VH)}, 4, v0")
waddr(WA, 29, 30, 3)
P(f"v_xor_b32 {v(WA + 1)}, 64, {v(WA)}")
for k, off in ((2, 64 * K), (4, 88 * K)):
    P(f"v_add_u32 {v(WA + k)}, 0x{off:x}, {v(WA)}\nv_add_u32 {v(WA + k + 1)}, 0x{off:x}, {v(WA + 1)}")
P("v_bfe_u32 v29, v0, 1, 3\nv_xor_b32 v29, v29, v26\nv_lshlrev_b32 v29, 4, v29\nv_lshl_or_b32 v29, v27, 7, v29")
P(f"s_lshl_b32 {T2}, {W}, 12")
P(f"v_add_u32 {v(XA)}, {T2}, v29")
for t in range(1, 4):
    P(f"v_xor_b32 {v(XA + t)}, {32 * t}, {v(XA)}")
for t in range(4):
    P(f"v_add_u32 {v(XA + 4 + t)}, 0x10000, {v(XA + t)}")
P(f"s_lshl_b32 {SG}, {I_}, 2\ns_add_u32 {SG}, {SG}, {W}")
if OPT["touch"]:
    srd(rW2, P_W2, 1376 * 1024)
    srd(rWO, P_WO, 512 * 1024)
    P(f"s_mul_i32 {T2}, s2, 43\ns_mul_i32 {T3}, {W}, 11\ns_add_u32 {T2}, {T2}, {T3}")
    P(f"v_add_u32 v6, {T2}, v0\nv_lshlrev_b32 v6, 7, v6\nv_mov_b32 v8, 0x7ff00000\nv_cmp_gt_u32 vcc, 11, v0")
    P(f"s_lshl_b32 {T2}, s2, 2\ns_add_u32 {T2}, {T2}, {W}\ns_lshl_b32 {T2}, {T2}, 2")
    P(f"v_cndmask_b32 v6, v8, v6, vcc\nv_add_u32 v7, {T2}, v0\nv_lshlrev_b32 v7, 7, v7\nv_cmp_gt_u32 vcc, 4, v0")
    P("v_cndmask_b32 v7, v8, v7, vcc")
    if OPT["touch"] == 9:
        P(f"buffer_load_dword v8, v6, {rW2}, 0 offen\nbuffer_load_dword v9, v7, {rWO}, 0 offen")
P(f"s_lshl_b32 {SG}, {SG}, 8\ns_add_u32 {SG}, {SG}, 0x{WS_STATS:x}")
P(f"s_lshl_b32 {SCS2}, {J_}, 1\ns_lshr_b32 {T2}, {I_}, 3\ns_add_u32 {SCS2}, {SCS2}, {T2}\ns_lshl_b32 {SCS2}, {SCS2}, 2")
P(f"s_add_u32 {SCS2}, {SCS2}, {W}\ns_lshl_b32 {SCS2}, {SCS2}, 3\ns_and_b32 {T2}, {I_}, 7\ns_add_u32 {SCS2}, {SCS2}, {T2}")
P(f"s_lshl_b32 {SCS2}, {SCS2}, 9\ns_add_u32 {SCS2}, {SCS2}, 0x{WS_CS:x}")
SFHB, SFO, KH, SFHA, PRIMED, SK12, SXW, SBASE = "s51", "s52", "s53", "s54", "s55", "s72", "s73", "s77"
P(f"s_lshr_b32 {KH}, {W}, 1\ns_lshl_b32 {SK12}, {KH}, 12\ns_mov_b32 {PRIMED}, 0")
P(f"s_lshl_b32 {T3}, {TB2}, 1\ns_and_b32 {T2}, {W}, 1\ns_add_u32 {T3}, {T3}, {T2}")
P(f"s_mul_i32 {SBASE}, {T3}, {TB_STRIDE}\ns_add_u32 {SBASE}, {SBASE}, 0x{WS_HA:x}")
if OPT["ahot"]:
    P(f"s_mov_b32 {SBASE}, 0x{WS_DIAG + 0x40000:x}")
P(f"s_lshl_b32 {SFHB}, {T3}, 7\ns_add_u32 {SFHA}, {SFHB}, 0x{WS_FLAGS + FL_HA * 128:x}\ns_add_u32 {SFHB}, {SFHB}, 0x{WS_FLAGS + FL_HB * 128:x}")
P(f"s_lshr_b32 {SFO}, {TB2}, 1\ns_lshl_b32 {SFO}, {SFO}, 7\ns_add_u32 {SFO}, {SFO}, 0x{WS_FLAGS + FL_O * 128:x}")
P(f"s_lshl_b32 {SXW}, {T2}, 13\ns_lshl_b32 {T3}, {KH}, 14\ns_add_u32 {SXW}, {SXW}, {T3}\ns_add_u32 {SXW}, {SXW}, 0x{L_XY:x}")
SXS = "s15"
P(f"s_cmp_eq_u32 {KH}, 0")
sel2(SXS, (L_XS0 - L_XY) & 0xffffffff, L_XS1 - L_XY - 16 * K)
P(f"s_mov_b32 s14, {RHOA}")
for g in list(range(8)) + list(range(11, 15)):
    r = f"s{36 + g}"
    P(f"s_add_u32 {r}, {RHO2 if g < 8 else RHOS}, {g % 11}\ns_and_b32 {r}, {r}, {7 if g < 8 else 3}\ns_lshl_b32 {r}, {r}, 13\ns_add_u32 {r}, {r}, {SBASE}")
    if g >= 11:
        P(f"s_add_u32 {r}, {r}, {86 * K}")
P(f"s_add_u32 s14, s14, {KH}")
for n in range(16, 22):
    r = f"s{8 + n - 16}"
    P(f"s_add_u32 {r}, s14, {2 * (n - 16)}\ns_cmp_ge_u32 {r}, 11\ns_cselect_b32 {T3}, 11, 0\ns_sub_u32 {r}, {r}, {T3}")
    P(f"s_sub_u32 {r}, {r}, {KH}\ns_add_u32 {r}, {r}, {32 - 2 * (n % 2)}\ns_lshl_b32 {r}, {r}, 11\ns_add_u32 {r}, {r}, {SBASE}")
P(f"s_mov_b32 s74, 0x{f2u(1e-6):x}\ns_mov_b32 s75, 0x{f2u(1e-6):x}")
P(f"s_mov_b32 {T2}, 0x3f803f80")
P("v_mov_b32 v40, 0\nv_mov_b32 v41, 0\nv_mov_b32 v42, 0\nv_mov_b32 v43, 0")
stamp(0, "pre")
P("s_waitcnt vmcnt(2)" if OPT["touch"] == 9 else "s_waitcnt vmcnt(0)")
stamp(0, "xin")
for n in range(8):
    P(f"v_dot2_f32_bf16 {v(40 + (n & 1))}, {v(32 + n)}, {T2}, {v(40 + (n & 1))}")
    P(f"v_dot2_f32_bf16 {v(42 + (n & 1))}, {v(32 + n)}, {v(32 + n)}, {v(42 + (n & 1))}")
P("s_nop 2")
P("v_add_f32 v40, v40, v41\nv_add_f32 v42, v42, v43")
for r in (8, 4, 2, 1):
    P(f"v_add_f32_dpp v40, v40, v40 row_ror:{r} row_mask:0xf bank_mask:0xf")
    P(f"v_add_f32_dpp v42, v42, v42 row_ror:{r} row_mask:0xf bank_mask:0xf")
P("v_mov_b32 v41, v40\nv_mov_b32 v43, v42")
P("v_permlane16_swap_b32 v40, v41\nv_permlane16_swap_b32 v42, v43")
P("v_add_f32 v40, v40, v41\nv_add_f32 v42, v42, v43")
P(f"v_mul_f32 v40, 0x{f2u(1 / 512):x}, v40\nv_mul_f32 v42, 0x{f2u(1 / 512):x}, v42")
P("v_fma_f32 v42, -v40, v40, v42\nv_max_f32 v42, 0, v42")
P(f"v_cvt_pk_bf16_f32 v42, v42, v42\nv_and_b32 v42, 0xffff0000, v42\nv_add_f32 v42, 0x{f2u(1e-5):x}, v42")
P("v_cvt_pk_bf16_f32 v42, v42, v42\nv_and_b32 v42, 0xffff0000, v42\nv_sqrt_f32 v42, v42")
P("v_cvt_pk_bf16_f32 v44, v40, v42")
P("v_lshlrev_b32 v28, 3, v26")
P(f"s_lshl_b32 {T0}, {T0}, 3\ns_add_u32 {T0}, {T0}, 0x{WS_STATS:x}")
P("s_waitcnt lgkmcnt(0)")
P(f"s_add_u32 {NONCE}, {NONCE}, 1")
XTAG = "s78"
P(f"s_getreg_b32 {XTAG}, hwreg(HW_REG_XCC_ID, 0, 4)\ns_lshl_b32 {XTAG}, {XTAG}, 28\ns_xor_b32 {XTAG}, {XTAG}, {NONCE}")
P(f"v_mov_b32 v45, {XTAG}\nv_mov_b32 v5, {NONCE}\nv_mov_b32 v46, 0x{L_TAG:x}")
P("ds_write_b32 v46, v5")
P("s_mov_b32 exec_lo, 1\ns_mov_b32 exec_hi, 1")
if not OPT["nst"] & 1:
    P(f"buffer_store_dwordx2 v[44:45], v28, {rWS}, {T0} offen {OPT['saux'] or ''}")
P("s_mov_b64 exec, -1")
P("v_lshlrev_b32 v26, 3, v27\nv_lshlrev_b32 v27, 3, v0")
P(f"s_lshl_b32 {T0}, {W}, 8\ns_add_u32 {T0}, {T0}, 0x{L_CSX:x}")
P(f"v_lshl_add_u32 v28, v0, 2, {T0}")
P(f"v_add_u32 v29, 0x{L_EX1:x}, v27")
GLOAD = f"buffer_load_dwordx2 {v(GR, 2)}, v26, {rWS}, {SG} offen sc1"
CSIG, CPK, CPC = 30, 31, 3
P(f"s_lshl_b32 {T0}, {W}, 2\ns_add_u32 {T0}, {T0}, 0x{L_PRG:x}\nv_mov_b32 {v(CSIG)}, {T0}")
P(f"v_and_b32 {v(CPK)}, 3, v0\nv_lshlrev_b32 {v(CPK)}, 2, {v(CPK)}\nv_add_u32 {v(CPK)}, 0x{L_RDY:x}, {v(CPK)}")
signal(CSIG, 46, 0)
lg.drain()
stamp(0, "stats")


def p1_x(st, t):
    if OPT["nocomp"]:
        return
    sl = st % 3
    P(f"ds_read_b128 {v(XR + 16 * st + 4 * t, 4)}, {v(XA + t + (4 if sl == 2 else 0))} offset:{(sl % 2) * 32 * K}")
    lg.add(("x", st, t))


def p1_w(st, t, b):
    if OPT["nocomp"]:
        return
    sl = st % 3
    a = WA + (b & 1) + (2 if sl == 2 else 0)
    off = (sl % 2) * 32 * K + 16 * K + (b >> 1) * 8 * K + t * 2048
    f = WR + ((t & 1) * 4 + b) * 4
    tr(f, a, off, None)
    tr(f + 2, a, off + 512, ("w", st, t, b))


def p1_m(st, t, b):
    if OPT["nocomp"]:
        return
    lg.wait(("x", st, t))
    lg.wait(("w", st, t, b))
    f = WR + ((t & 1) * 4 + b) * 4
    c = "0" if (st == 0 and t == 0) else v(ACC + 16 * b, 16)
    P(f"v_mfma_f32_32x32x16_bf16 {v(ACC + 16 * b, 16)}, {v(f, 4)}, {v(XR + 16 * st + 4 * t, 4)}, {c}")


P("s_barrier ; b0")
stamp(0, "b0")
if OPT["p2only"]:
    P("s_branch L_c2")
p1_x(0, 0)
for b in range(4):
    p1_w(0, 0, b)
for st in range(8):
    for t in range(3):
        for b in range(4):
            p1_m(st, t, b)
            if b == 0:
                p1_x(st, t + 1)
            p1_w(st, t + 1, b)
    p1_m(st, 3, 0)
    if st == 1:
        P("ds_read_b32 v4, v28")
        lg.add(None)
    p1_m(st, 3, 1)
    if st == 6:
        P(GLOAD)
    lg.drain()
    P(f"s_barrier ; b{st + 1}")
    if st < 7:
        p1_x(st + 1, 0)
        p1_w(st + 1, 0, 0)
        p1_w(st + 1, 0, 1)
        p1_m(st, 3, 2)
        if st == 1 and not OPT["nst"] & 2:
            P(f"buffer_store_dwordx2 v[4:5], v27, {rWS}, {SCS2} offen {OPT['saux'] or ''}")
        if st == OPT["touch"] - 1:
            P(f"buffer_load_dword v8, v6, {rW2}, 0 offen\nbuffer_load_dword v9, v7, {rWO}, 0 offen")
        p1_w(st + 1, 0, 2)
        p1_w(st + 1, 0, 3)
        p1_m(st, 3, 3)
    else:
        for b in range(4):
            P(f"ds_read_b64 {v(WR + 2 * b, 2)}, v29 offset:{512 * b}")
            lg.add(("ex", b))
        p1_m(st, 3, 2)
        p1_m(st, 3, 3)
stamp(0, "b8")
if OPT["p1only"]:
    dump(0)
    P("s_endpgm")
    DIAG = 0
GCHK = f"v_xor_b32 v27, {XTAG}, {v(GR + 1)}\nv_lshlrev_b32 v28, 4, v27\nv_cmp_ne_u32 vcc, 0, v28"
P("s_waitcnt vmcnt(0)")
P(GCHK)
retry("L_gr", GLOAD, GCHK)
P(f"v_cmp_ne_u32 vcc, 0, v27\ns_or_b32 {T0}, vcc_lo, vcc_hi\nv_mov_b32 v27, {T0}\ns_mov_b64 exec, 1")
P(f"ds_write_b32 {v(CSIG)}, v27 offset:{L_FAST - L_PRG}\ns_mov_b64 exec, -1")
lg.add(None)
P(f"s_mov_b32 {T0}, 0x01000100")
P(f"v_perm_b32 {v(XE)}, {v(GR)}, {v(GR)}, {T0}")
P(f"v_xor_b32 {v(XE)}, 0x80008000, {v(XE)}")
P(f"v_lshrrev_b32 {v(XE + 1)}, 16, {v(GR)}")
P(f"v_and_b32 {v(SD)}, 0xffff0000, {v(GR)}")
P(f"v_rcp_f32 {v(RS)}, {v(SD)}")
for b in range(4):
    lg.wait(("ex", b))
    P(f"v_mfma_f32_32x32x8bf16_1k {v(ACC + 16 * b, 16)}, {v(WR + 2 * b, 2)}, {v(XE, 2)}, {v(ACC + 16 * b, 16)}")
LOG2E = 1.4426950408889634
C1 = -2 * LOG2E * math.sqrt(2 / math.pi)
C2 = C1 * 0.044715
P(f"v_mul_f32 {v(K1)}, 0x{f2u(C1):x}, {v(RS)}")
P(f"v_mul_f32 {v(K2)}, {v(RS)}, {v(RS)}\nv_mul_f32 {v(K2)}, {v(K2)}, {v(RS)}\nv_mul_f32 {v(K2)}, 0x{f2u(C2):x}, {v(K2)}")
P(f"v_mul_f32 {v(RL)}, 0x{f2u(LOG2E):x}, {v(RS)}")
for r in (K1, K2, SD, RS, RL):
    P(f"v_mov_b32 {v(r + 1)}, {v(r)}")
stamp(0, "ex1")

TT, UU = 32, 48


def pairs(fmt, a):
    for p in range(8):
        P(fmt.format(T=v(TT + 2 * p, 2), A=v(a + 2 * p, 2)))


def singles(fmt):
    for r in range(16):
        P(fmt.format(T=v(TT + r)))


def cvt(dst, src=TT):
    for p in range(8):
        P(f"v_cvt_pk_bf16_f32 {v(dst + p)}, {v(src + 2 * p)}, {v(src + 2 * p + 1)}")


def epi_gelu(b, base, k, rdy=None):
    a = ACC + 16 * b
    if rdy:
        peek(CPK, 28)
    pairs("v_pk_mul_f32 {T}, {A}, {A}", a)
    pairs("v_pk_fma_f32 {T}, {T}, %s, %s" % (v(K2, 2), v(K1, 2)), a)
    pairs("v_pk_mul_f32 {T}, {T}, {A}", a)
    singles("v_exp_f32 {T}, {T}")
    pairs("v_pk_fma_f32 {T}, {T}, %s, %s" % (v(SD, 2), v(SD, 2)), a)
    singles("v_rcp_f32 {T}, {T}")
    pairs("v_pk_mul_f32 {T}, {T}, {A}", a)
    cvt(a)
    if rdy:
        await_(CPK, 28, rdy, peeked=True)
    for h in range(2 if not OPT["nods"] else 0):
        P(f"ds_write_b128 v26, {v(a + 4 * h, 4)} offset:{base - L_HS + (2 * b + h) * 4096}")
        lg.add(None)
    signal(CSIG, 27, k)


def epi_phi(b, dst):
    a = ACC + 16 * b
    pairs("v_pk_mul_f32 {T}, {A}, %s" % v(RL, 2), a)
    singles("v_exp_f32 {T}, {T}")
    pairs("v_pk_fma_f32 {A}, {A}, %s, 1.0 op_sel_hi:[1,1,0]" % v(RS, 2), a)
    for r in range(16):
        P(f"v_med3_f32 {v(TT + r)}, {v(TT + r)}, {v(a + r)}, 1.0")
    pairs("v_pk_add_f32 {T}, {T}, %s" % EPS2, a)
    cvt(dst)


def epi_lin(b, dst):
    a = ACC + 16 * b
    pairs("v_pk_mul_f32 {T}, {A}, %s" % v(RS, 2), a)
    cvt(dst)


AY, AS, AR = 64, 160, 128
RG = OPT["ring"]
NST = 30
WB, VA, FD, VF, XW, CPC2, TA, TB_, TC, XW2 = 96, 102, 104, 106, 108, 112, 113, 114, 115, 116
FHB = f"buffer_load_dword {v(FD)}, {v(VF)}, {rWS}, {SFHB} offen sc1"
FHA = f"buffer_load_dword {v(FD)}, {v(VF)}, {rWS}, {SFHA} offen sc1"
FO = f"buffer_load_dword {v(FD + 1)}, {v(VF + 1)}, {rWS}, {SFO} offen sc1"
HBC = f"v_cmp_ne_u32 vcc, {NONCE}, {v(FD)}"
vm = Q("vmcnt", 63)


def aload(n, ks):
    if n >= NST or (OPT["noa"] and n >= RG):
        return
    P(f"buffer_load_dwordx4 {v(AR + 8 * (n % RG) + 4 * ks, 4)}, {v(VA + n % 2)}, {rWS}, s{36 + (n >> 1) if not 16 <= n < 22 else 8 + n - 16} offen offset:{1024 * ks} {OPT['aaux'] or ''}")
    vm.add(("a", n, ks))


def prime():
    for n in range(RG):
        aload(n, 0)
        aload(n, 1)


nchk = [0]
def checkpoint():
    if not OPT["early"]:
        return
    nchk[0] += 1
    l = f"L_ck{nchk[0]}"
    P(f"s_getreg_b32 {T3}, hwreg(HW_REG_IB_STS, 0, 4)\ns_or_b32 {T3}, {T3}, {PRIMED}\ns_cbranch_scc1 {l}_x")
    P(f"s_waitcnt vmcnt(0)\n{HBC}\ns_cbranch_vccnz {l}_r")
    prime()
    P(f"s_mov_b32 {PRIMED}, 1")
    P.label(l + "_x")
    cold.append(f"{l}_r:\n{FHB}\ns_branch {l}_x")


def setup2():
    global P
    keep, P = P, Prog()
    P(f"v_and_b32 {v(VF + 1)}, 31, v0\nv_lshlrev_b32 {v(VF + 1)}, 2, {v(VF + 1)}\nv_and_b32 {v(VF)}, 28, {v(VF + 1)}")
    waddr(WB, TA, TB_, 2)
    P(f"v_add_u32 {v(WB)}, {SK12}, {v(WB)}\nv_xor_b32 {v(WB + 1)}, 64, {v(WB)}")
    for k in (1, 2):
        P(f"v_add_u32 {v(WB + 2 * k)}, 0x{64 * K * k:x}, {v(WB)}\nv_add_u32 {v(WB + 2 * k + 1)}, 0x{64 * K * k:x}, {v(WB + 1)}")
    P(f"v_lshrrev_b32 {v(TA)}, 1, {SK12}\nv_add_u32 {v(VA)}, {v(TA)}, {v(VH)}\nv_add_u32 {v(VA + 1)}, 0x1000, {v(VA)}")
    P(f"v_lshrrev_b32 {v(TA)}, 5, v0\nv_and_b32 {v(TB_)}, 7, v0\nv_xor_b32 {v(TA)}, {v(TA)}, {v(TB_)}\nv_lshlrev_b32 {v(TA)}, 4, {v(TA)}")
    P(f"v_and_b32 {v(TB_)}, 31, v0\nv_lshl_or_b32 {v(TA)}, {v(TB_)}, 8, {v(TA)}\nv_add_u32 {v(XW)}, {SXW}, {v(TA)}")
    for q in range(1, 4):
        P(f"v_xor_b32 {v(XW + q)}, {32 * q}, {v(XW)}")
    P(f"v_add_u32 {v(CPC2)}, 16, {v(CPK)}")
    for q in range(4):
        P(f"v_add_u32 {v(XW2 + q)}, {SXS}, {v(XW + q)}")
    lines, P = P.lines, keep
    return lines


def pass2(nb):
    side = setup2()
    n = 32 * nb
    def rd(m):
        if m >= n:
            return
        step, b = divmod(m, nb)
        off = CH(step >> 2) - 88 * K + (step & 3) * 2048
        f = WR + (m % 8) * 4
        tr(f, WA + 4 + b, off, None)
        tr(f + 2, WA + 4 + b, off + 512, ("p2", m))
    for m in range(7):
        rd(m)
    for m in range(n):
        step, b = divmod(m, nb)
        lg.wait(("p2", m))
        c = "0" if step == 0 else v(ACC + 16 * b, 16)
        P(f"v_mfma_f32_32x32x16_bf16 {v(ACC + 16 * b, 16)}, {v(WR + (m % 8) * 4, 4)}, {v(XR + 4 * step, 4)}, {c}")
        rd(m + 7)
        for _ in range(2 if nb == 1 else 1):
            if side and m >= 2:
                P(side.pop(0))
        if (m + 1) % (8 * nb) == 0 and m + 1 < n:
            signal(CSIG, 27, 4 + (m + 1) // (8 * nb))
        if m == max(6, n - OPT["smp"]):
            P(FHB)
        if m == n - 6:
            for bb in range(nb):
                lg.room()
                P(f"ds_read_b64 {v(16 + 2 * bb, 2)}, v29 offset:{L_EX2 - L_EX1 + 512 * bb}")
                lg.add(("ex2", bb))
    assert not side
    checkpoint()
    lg.drain()
    signal(CSIG, 27, 8)
    for b in range(nb):
        P(f"v_mfma_f32_32x32x8bf16_1k {v(ACC + 16 * b, 16)}, {v(16 + 2 * b, 2)}, {v(XE, 2)}, {v(ACC + 16 * b, 16)}")


P(f"s_cmp_eq_u32 {TYPE}, 0")
P("s_cbranch_scc0 L_cB")
P(f"v_and_b32 v26, 31, v0\nv_lshrrev_b32 v27, 5, v0\ns_lshl_b32 {T0}, {W}, 5")
P(f"v_add_u32 v26, {T0}, v26\nv_mul_u32_u24 v26, {TROW}, v26\nv_lshl_add_u32 v26, v27, 3, v26\nv_add_u32 v26, 0x{TBUF:x}, v26")
for b in range(4):
    u = UU + 8 * (b & 1)
    (epi_phi if b < 2 else epi_lin)(b, u)
    for q in range(4):
        P(f"ds_write_b64 v26, {v(u + 2 * q, 2)} offset:{64 * b + 16 * q}")
P(f"v_lshrrev_b32 v26, 2, v0\nv_mul_u32_u24 v26, {TROW}, v26\nv_and_b32 v27, 3, v0\nv_lshl_add_u32 v26, v27, 3, v26")
P(f"s_add_u32 {T0}, {T0}, 0x{TBUF:x}")
P(f"v_add_u32 v26, {T0}, v26")
for r in range(4):
    P(f"v_mov_b32 {v(104 + r)}, 0x3f803f80")
P(f"s_lshl_b32 {T0}, {C_}, 4\ns_add_u32 {T0}, {T0}, {I_}\ns_mul_i32 {T0}, {T0}, {KVP_STR}\ns_add_u32 {T0}, {T0}, 0x{WS_KVP:x}")
P(f"s_lshl_b32 {T1}, {W}, 10\ns_add_u32 {T1}, {T1}, {T0}")
P(f"s_lshl_b32 {T2}, {W}, 6\ns_add_u32 {T2}, {T2}, {T0}\ns_add_u32 {T2}, {T2}, 4096")
signal(CSIG, 27, 1)
P(f"v_add_u32 {v(CPC)}, 16, {v(CPK)}")
lg.q = []
await_(CPC, 27, 1)
stamp(0, "e1")
def kvm(mm):
    lg.wait(("kv", mm, 1))
    P(f"v_mfma_f32_16x16x32_bf16 v[96:99], {v(ACC + 8 * mm, 4)}, {v(ACC + 8 * mm + 4, 4)}, {'0' if mm == 0 else 'v[96:99]'}")
    P(f"v_mfma_f32_16x16x32_bf16 v[100:103], {v(ACC + 8 * mm, 4)}, v[104:107], {'0' if mm == 0 else 'v[100:103]'}")
for m in range(4):
    for o in range(2):
        f = ACC + 8 * m + 4 * o
        tr(f, 26, m * 32 * TROW + 128 * o, None)
        tr(f + 2, 26, (m * 32 + 16) * TROW + 128 * o, ("kv", m, o))
    if m >= 2:
        kvm(m - 2)
kvm(2)
kvm(3)
P(f"v_mov_b32 v104, {NONCE}")
for h in range(4):
    P(f"s_mov_b32 {T0}, 0x0706050{h}")
    P(f"v_perm_b32 {v(96 + h)}, {v(96 + h)}, v104, {T0}\nv_perm_b32 {v(100 + h)}, {v(100 + h)}, v104, {T0}")
P(f"buffer_store_dwordx4 v[96:99], {v(VH)}, {rWS}, {T1} offen sc1")
P("s_mov_b32 exec_lo, 0x00010001\ns_mov_b32 exec_hi, 0x00010001")
P(f"buffer_store_dwordx4 v[100:103], v0, {rWS}, {T2} offen sc1")
P("s_mov_b64 exec, -1")
signal(CSIG, 27, 2)
await_(CPK, 27, 1)
stamp(0, "b10")
P("s_branch L_p2")
P.label("L_cB")
lg.q = []
P(f"s_lshl_b32 {T0}, {W}, 10\ns_add_u32 {T0}, {T0}, 0x{L_HS:x}")
P(f"v_add_u32 v26, {T0}, {v(VH)}")
for b in range(4):
    if b == 3:
        peek(CPK, 28)
    epi_gelu(b, L_HS, b + 1)
    if "st0" in OPT:
        stamp(0, f"g{b}")
stamp(0, "e1")
await_(CPK, 28, 1, peeked=True)
stamp(0, "b10")
P(f"s_cmp_lt_u32 {C_}, 3")
P("s_cbranch_scc1 L_p2")
lg.q = [None] * 3
pass2(1)
stamp(0, "p2")
epi_gelu(0, L_PQ, 10, 2)
stamp(0, "e2")
P("s_branch L_c2")
P.label("L_p2")
lg.q = [None] * 3
pass2(2)
stamp(0, "p2")
P(f"s_cmp_eq_u32 {TYPE}, 0")
P("s_cbranch_scc0 L_cB2")
P(f"s_lshl_b32 {T0}, {W}, 12\ns_add_u32 {T0}, {T0}, 0x{L_PQ:x}")
P(f"v_add_u32 v26, {T0}, {v(VH)}")
for b in range(2):
    epi_phi(b, UU + 8 * b)
    for h in range(2):
        P(f"ds_write_b128 v26, {v(UU + 8 * b + 4 * h, 4)} offset:{(2 * b + h) * 1024}")
    if b == 0:
        checkpoint()
signal(CSIG, 27, 10)
stamp(0, "e2")
P("s_branch L_c2")
P.label("L_cB2")
lg.q = [None]
epi_gelu(0, L_PQ, 9, 2)
checkpoint()
epi_gelu(1, L_PQ, 10)
stamp(0, "e2")
P.label("L_c2")
stamp(0, "c2")
stamp(0, "setup")
P(f"s_cmp_lg_u32 {PRIMED}, 0\ns_cbranch_scc1 L_primed")
if not OPT["p2only"]:
    P(f"s_waitcnt vmcnt(0)\n{HBC}")
    retry("L_hb", FHB, HBC)
stamp(0, "hb_seen")
prime()
P.label("L_primed")
vm.q = [("a", n, ks) for n in range(RG) for ks in range(2)]


def wrd(m):
    n, ks, ct = m >> 2, (m >> 1) & 1, m & 1
    if n >= NST:
        return
    ev = {OPT["gx"]: 4, 76: 5, 88: 6}
    if m + 5 in ev:
        peek(CPK, 20)
    if m == OPT["g2"]:
        signal(CSIG, 21, 12)
    if m == 72:
        signal(CSIG, 21, 13)
    if m == 93:
        peek(CPC2, 19)
    if m in ev:
        if m == OPT["gx"]:
            signal(CSIG, 21, 11)
        await_(CPK, 20, ev[m], peeked=True)
    so = slot_of(2 * n) + ks * 2048
    k = so // (64 * K)
    f = WR + (m % 8) * 4
    if OPT["now"] and m >= 8:
        return
    tr(f, WB + 2 * k + ct, so - 64 * K * k, None)
    tr(f + 2, WB + 2 * k + ct, so - 64 * K * k + 1024, ("w2", m))


def xwrite(acc, base, ct, q):
    lg.room()
    P(f"ds_write_b128 {v(base + q)}, {v(acc + 16 * ct + 4 * q, 4)} offset:{128 * ct}")
    lg.add(("xw", acc))


lg.q = []
stamp(0, "primed")
await_(CPK, 20, 3)
for m in range(7):
    wrd(m)
for n in range(NST):
    acc = AY if n < 22 else AS
    if n == 21:
        P(f"s_cmp_eq_u32 {KH}, 0")
    for k4 in range(4):
        m = 4 * n + k4
        ks, ct = k4 >> 1, k4 & 1
        w = vm.need(("a", n, ks)) + " " + (lg.need(("w2", m | 1)) if OPT["w2"] else "") + lg.need(("w2", m))
        if w.strip():
            P("s_waitcnt " + w.strip())
        c = "0" if (n in (0, 22) and ks == 0) else v(acc + 16 * ct, 16)
        if n == 21:
            P(f"s_cbranch_scc0 L_null{k4}")
        P(f"v_mfma_f32_32x32x16_bf16 {v(acc + 16 * ct, 16)}, {v(WR + (m % 8) * 4, 4)}, {v(AR + 8 * (n % RG) + 4 * ks, 4)}, {c}")
        if n == 21:
            P.label(f"L_null{k4}")
        if k4 == 1:
            for nn, ld, fd, nm in ((16, FHA, FD, "ha"), (22, FO, FD + 1, "o")):
                if n == nn - RG - 4:
                    P(ld)
                    vm.add("f")
                if n == nn - RG and not OPT["p2only"]:
                    vm.wait("f")
                    P(f"v_cmp_ne_u32 vcc, {NONCE}, {v(fd)}")
                    retry("L_" + nm, ld, f"v_cmp_ne_u32 vcc, {NONCE}, {v(fd)}")
                    stamp(0, nm + "_seen")
        if ct == 1:
            aload(n + RG, ks)
        wrd(m + 7)
        if m == 91:
            await_(CPC2, 19, 13, peeked=True)
        if m >= 91 and (m - 91) % OPT["ys"] == 0 and (m - 91) // OPT["ys"] < 8:
            xwrite(AY, XW, ((m - 91) // OPT["ys"]) >> 2, ((m - 91) // OPT["ys"]) & 3)
        if m == 91 + 7 * OPT["ys"] + OPT["dy"]:
            lg.wait(("xw", AY))
            P("s_barrier ; dY")
    if "st0" in OPT:
        stamp(0, f"n{n}")
stamp(0, "sdone")
for ct in range(2):
    for q in range(4):
        xwrite(AS, XW2, ct, q)
lg.drain()
P("s_barrier ; dS")
P(f"s_or_b32 {T0}, s2, {W}\ns_cmp_eq_u32 {T0}, 0")
P("s_cbranch_scc0 L_cend")
flag_store(T0)
P.label("L_cend")
dump(0)
P("s_endpgm")
flush_cold()
P.label("L_codeend")

body = P.finish()
hdr = f"""; Fused LayerNorm + linear attention + GELU FFN block, one persistent launch (256 workgroups, one per CU).
; @launch grid=(256,1,1) block=(512,1,1) lds=163840
.amdgcn_target "amdgcn-amd-amdhsa--gfx950"
.text
.globl {KNAME}
.p2align 8
.type {KNAME},@function
{KNAME}:
"""
tail = f"""
.section .rodata,"a"
.p2align 6
.amdhsa_kernel {KNAME}
  .amdhsa_next_free_vgpr 256
  .amdhsa_next_free_sgpr 102
  .amdhsa_accum_offset 256
  .amdhsa_group_segment_fixed_size 0
  .amdhsa_kernarg_size 88
  .amdhsa_user_sgpr_count 2
  .amdhsa_user_sgpr_kernarg_segment_ptr 1
  .amdhsa_system_sgpr_workgroup_id_x 1
  .amdhsa_float_denorm_mode_32 3
.end_amdhsa_kernel
"""
if OPT["diag"]:
    tail += f"; STAMPS0 {' '.join(slots[0])}\n"
sys.stdout.write(hdr + body + tail)
sys.stderr.write(f"pads {P.npad}\n")
```

```python
import sys, os, struct, math
from asmlib import Prog, v, s

KNAME = "recurrent_scan__linear_attn_block__dense_activation_gelu__prompt_kernel"
OPT = dict(diag=0, outaux="sc1", map1=81, spin=16, codepf=1, ldfirst=1, prio=1,
           nA9=3, nA10=7, nB10=8, mf=56, cprio=3, gx=36, n6=2, n7=1, kA=12, lag=8, sp=0, sp0=0, nost=0, slp=4, kvw=0, gprio=3, sA=4, xB=0, fast=1, faux="nt", wb=0, lB=0, hk1=0, lA0=8, lA=3, kq=2, wbj=0, kA0=12, kA1=8, kA2=0, rotx=1, spx=0, pB=10, iB=0, ring=4, nods=0, lsl=0, yB=12, zB=4, yB1=2, zB1=4, aaux="sc1", ahot=0, g2=52, rot2=1, pace=0, pace1=0, dy=4, ys=2, w2=1, p2only=0, plain=0, stouch=0, nst=0, saux="sc1", csprio=3, early=1, map2=81, smp=28, noa=0, now=0, la=7, touch=5, stdiag=0, p1only=0, nocomp=0, norot=0, noload=0, nocs=0)
for a in sys.argv[1:]:
    k, val = a.split("=")
    OPT[k] = val if not val.lstrip("-").isdigit() else int(val)
DIAG = OPT["diag"]


def f2u(x):
    return struct.unpack("<I", struct.pack("<f", x))[0]


K = 1024
WS_STATS = 0x1000
WS_FLAGS = 0x8000
FL_HB, FL_HA, FL_O, FL_KV = 0, 64, 128, 192
WS_KVP = 0x10000
KVP_STR = 4352
WS_CS = 0xA0000
WS_HA = 0x140000
TB_STRIDE = 118 * K
WS_DIAG = 0x900000
WS_SIZE = 0xA00000
def CH(q):
    return 96 * K + 8 * K * q if q < 7 else 88 * K
TBUF = 52 * K
TROW = 272
L_EX1 = 152 * K
L_CSX = 156 * K
L_RDY = 154 * K
L_PRG = L_RDY + 16
L_TAG = L_RDY + 32
L_FAST = L_RDY + 48
L_EX2 = 155 * K
L_KT = 156 * K
L_PQ = 72 * K
L_HS = 52 * K
L_XY = 112 * K
L_XS0, L_XS1 = 72 * K, 144 * K
def slot_of(p):
    if p < 18:
        return p * 4 * K
    if p < 34:
        return CH((p - 18) >> 1) + (p & 1) * 4 * K
    if p < 38:
        return 72 * K + (p - 34) * 4 * K
    return slot_of(p - 38)

rX, rP1, rP2, rWS, rW2, rWO, rA, rB = (s(n, 4) for n in (4, 8, 12, 16, 20, 24, 28, 32))
P_X, P_QKV, P_WO, P_W1, P_B1, P_W2, P_B2, P_OUT, P_WS = 36, 38, 40, 44, 46, 48, 50, 52, 56
NONCE, W, I_, J_, C_, TYPE, RHO, TB2, CT, RHO2 = (s(n) for n in range(58, 68))
T0, T1, T2, T3 = (s(n) for n in range(68, 72))

P = Prog()


class Q:
    def __init__(self, name, mx):
        self.q, self.name, self.mx = [], name, mx

    def room(self):
        if len(self.q) >= self.mx:
            P(f"s_waitcnt {self.name}({self.mx - 1})")
            self.q = self.q[len(self.q) - (self.mx - 1):]

    def add(self, tag=None):
        self.q.append(tag)

    def need(self, tag):
        if tag not in self.q:
            return ""
        idx = max(i for i, t in enumerate(self.q) if t == tag)
        n = len(self.q) - 1 - idx
        assert n <= self.mx, (self.name, n)
        self.q = self.q[idx + 1:]
        return f"{self.name}({n})"

    def wait(self, tag):
        t = self.need(tag)
        if t:
            P("s_waitcnt " + t)

    def drain(self, force=False):
        if self.q or force:
            P(f"s_waitcnt {self.name}(0)")
        self.q = []


slots = [{}, {}]
def stamp(role, name):
    if not DIAG:
        return
    want = str(OPT.get(f"st{role}", "")).split(",")
    if want != [""] and name not in want and name not in ("start", "end"):
        return
    n = slots[role].setdefault(name, len(slots[role]))
    if DIAG >= 3:
        assert n < 9, (role, name)
        P(f"{'s_memtime' if DIAG == 4 else 's_memrealtime'} s[{80 + 2 * n}:{81 + 2 * n}]")
        return
    assert n < 16, (role, name)
    P(f"{'s_memtime' if DIAG == 2 else 's_memrealtime'} s[96:97]\ns_waitcnt lgkmcnt(0)\ns_mov_b32 s{80 + n}, s96")


def sreg(r):
    return int(r[2:r.index(":")])


def srd(r, ptr, size):
    n = sreg(r)
    P(f"s_mov_b32 s{n}, s{ptr}\ns_mov_b32 s{n+1}, s{ptr+1}\ns_mov_b32 s{n+2}, 0x{size:x}\ns_mov_b32 s{n+3}, 0x20000")


def sel2(dst, a, b):
    P(f"s_mov_b32 {dst}, 0x{b:x}\ns_cmov_b32 {dst}, 0x{a:x}")


cold = []


def flush_cold():
    for t in cold:
        P(t)
    cold.clear()


def spin_text(lbl, load, check):
    t = f"s_mov_b32 {T3}, {1 << OPT['spin']}\n{lbl}:\n{load}\ns_waitcnt vmcnt(0)\n{check}\n"
    t += f"s_sub_u32 {T3}, {T3}, 1\ns_cbranch_scc1 {lbl}_x\ns_cbranch_vccz {lbl}_x\n"
    if OPT["slp"]:
        t += f"s_sleep {OPT['slp']}\n"
    return t + f"s_branch {lbl}"


def spin(lbl, load, check):
    P(spin_text(lbl, load, check))
    P.label(lbl + "_x")


def retry(lbl, load, check):
    P(f"s_cbranch_vccnz {lbl}_s")
    P.label(lbl + "_x")
    cold.append(f"{lbl}_s:\n" + spin_text(lbl, load, check))


HX = "row"
FAR = "s46"
nrow = [0]
def row_store(text):
    if not OPT["fast"]:
        P(text + " sc1")
        return
    nrow[0] += 1
    l = f"L_r{nrow[0]}"
    P(f"s_cmp_lg_u32 {FAR}, 0\ns_cbranch_scc1 {l}\n{text} {OPT['faux'] if 'x4' in text else ''}\n{l}_x:")
    cold.append(f"{l}:\n{text} sc1\ns_branch {l}_x")


def flag_store(sreg_off, va=26, aux="sc1"):
    P(f"v_mov_b32 {v(va)}, {NONCE}\nv_mov_b32 {v(va+1)}, 0")
    P("s_mov_b64 exec, 1")
    if aux == "row":
        row_store(f"buffer_store_dword {v(va)}, {v(va+1)}, {rWS}, {sreg_off} offen")
    else:
        P(f"buffer_store_dword {v(va)}, {v(va+1)}, {rWS}, {sreg_off} offen {aux}")
    P("s_mov_b64 exec, -1")


def signal(vaddr, vtmp, k):
    P(f"v_mov_b32 {v(vtmp)}, {k}\ns_mov_b64 exec, 1\nds_write_b32 {v(vaddr)}, {v(vtmp)}\ns_mov_b64 exec, -1")
    lg.add(None)


nwait = [0]
def peek(vaddr, vd):
    lg.room()
    P(f"ds_read_b32 {v(vd)}, {v(vaddr)}")
    lg.add(("peek", vd))


def await_(vaddr, vd, k, peeked=False):
    nwait[0] += 1
    lbl = f"L_w{nwait[0]}"
    if not peeked:
        peek(vaddr, vd)
    lg.wait(("peek", vd))
    P(f"v_cmp_gt_u32 vcc, {k}, {v(vd)}")
    P(f"s_cbranch_vccnz {lbl}_s")
    P.label(lbl + "_x")
    cold.append(f"{lbl}_s:\ns_mov_b32 {T3}, {1 << 20}\n{lbl}:\nds_read_b32 {v(vd)}, {v(vaddr)}\ns_waitcnt lgkmcnt(0)\n"
                f"v_cmp_gt_u32 vcc, {k}, {v(vd)}\ns_sub_u32 {T3}, {T3}, 1\ns_cbranch_scc1 {lbl}_x\ns_cbranch_vccz {lbl}_x\n"
                + (f"s_sleep {OPT['lsl']}\n" if OPT["lsl"] else "") + f"s_branch {lbl}")


def hblock2(dst):
    P(f"s_lshl_b32 {dst}, {C_}, 1\ns_add_u32 {T3}, {C_}, 3\ns_min_u32 {dst}, {dst}, {T3}\ns_add_u32 {dst}, {dst}, 32")


def waddr(dst, t1, t2, hshift):
    P(f"v_lshrrev_b32 {v(t1)}, 5, v0\nv_bfe_u32 {v(t2)}, v0, 2, 2\nv_lshl_add_u32 {v(t1)}, {v(t1)}, {hshift}, {v(t2)}")
    P(f"v_lshlrev_b32 {v(dst)}, 7, {v(t1)}")
    P(f"v_bfe_u32 {v(t1)}, v0, 3, 1\nv_lshl_or_b32 {v(dst)}, {v(t1)}, 6, {v(dst)}")
    P(f"v_bfe_u32 {v(t1)}, v0, 4, 1\nv_lshl_or_b32 {v(dst)}, {v(t1)}, 5, {v(dst)}")
    P(f"v_and_b32 {v(t1)}, 3, v0\nv_lshl_or_b32 {v(dst)}, {v(t1)}, 3, {v(dst)}")


def tr(dst, addr, off, tag):
    assert 0 <= off < 65536, off
    lg.room()
    P(f"ds_read_b64_tr_b16 {v(dst, 2)}, {v(addr)} offset:{off}")
    lg.add(tag)


def dump(role):
    if not DIAG:
        return
    P("s_waitcnt vmcnt(0)")
    stamp(role, "end")
    P("s_waitcnt lgkmcnt(0)")
    for n in range(16):
        P(f"v_mov_b32 {v(32 + n)}, {s(80 + n) if DIAG < 3 else (s(80 + 2 * n) if n < 10 else ('s100' if n == 15 else 0))}")
    P(f"s_lshl_b32 {T0}, s2, 3\ns_add_u32 {T0}, {T0}, {W}\ns_lshl_b32 {T0}, {T0}, 6\ns_add_u32 {T0}, {T0}, 0x{WS_DIAG + role * 256:x}")
    P("v_mov_b32 v26, 0\ns_mov_b64 exec, 1")
    for n in range(4):
        P(f"buffer_store_dwordx4 {v(32 + 4 * n, 4)}, v26, {rWS}, {T0} offen offset:{16 * n}")


P("s_cmp_ge_u32 s2, 256")
P("s_cbranch_scc1 L_end")
if DIAG >= 3:
    P("s_memrealtime s[100:101]")
P("s_load_dwordx16 s[36:51], s[0:1], 0")
P("s_load_dwordx4 s[52:55], s[0:1], 64")
P("s_load_dwordx2 s[56:57], s[0:1], 80")
P("v_lshrrev_b32 v1, 6, v0")
P("v_and_b32 v0, 63, v0")
P(f"s_lshr_b32 {T0}, s2, 3")
P(f"v_readfirstlane_b32 {T2}, v1")
if OPT["codepf"]:
    P("s_getpc_b64 s[32:33]")
    P.label("L_pc")
    P("s_mov_b32 s34, L_codeend-L_pc\ns_mov_b32 s35, 0x20000")
    P(f"s_lshl_b32 {T1}, {T0}, 3\ns_add_u32 {T1}, {T1}, {T2}\ns_lshl_b32 {T1}, {T1}, 7\nv_and_b32 v2, 1, v0\nv_lshl_add_u32 v2, v2, 15, {T1}")
    P("buffer_load_dword v31, v2, s[32:35], 0 offen")
P(f"s_and_b32 {T1}, s2, 7")
if OPT["map1"] == 24:
    P(f"s_lshr_b32 {I_}, {T1}, 2\ns_lshl_b32 {I_}, {I_}, 3\ns_lshr_b32 {T3}, {T0}, 2\ns_add_u32 {I_}, {I_}, {T3}")
    P(f"s_and_b32 {J_}, {T1}, 3\ns_lshl_b32 {J_}, {J_}, 2\ns_and_b32 {RHO}, {T0}, 3\ns_add_u32 {J_}, {J_}, {RHO}")
    P(f"s_lshl_b32 {RHO}, {RHO}, 1\ns_add_u32 {RHO}, {RHO}, {T3}\ns_and_b32 {T3}, {T1}, 1\ns_add_u32 {RHO}, {RHO}, {T3}\ns_and_b32 {RHO}, {RHO}, 7")
elif OPT["map1"] == 81:
    P(f"s_lshl_b32 {I_}, {T1}, 1\ns_lshr_b32 {T3}, {T0}, 4\ns_add_u32 {I_}, {I_}, {T3}\ns_and_b32 {J_}, {T0}, 15")
    P(f"s_lshl_b32 {RHO}, {T3}, 2\ns_add_u32 {RHO}, {RHO}, {J_}\ns_and_b32 {T3}, {T1}, 3\ns_add_u32 {RHO}, {RHO}, {T3}\ns_and_b32 {RHO}, {RHO}, 7")
else:
    P(f"s_lshr_b32 {I_}, {T1}, 1\ns_lshl_b32 {I_}, {I_}, 2\ns_lshr_b32 {T3}, {T0}, 3\ns_add_u32 {I_}, {I_}, {T3}")
    P(f"s_and_b32 {J_}, {T1}, 1\ns_lshl_b32 {J_}, {J_}, 3\ns_and_b32 {RHO}, {T0}, 7\ns_add_u32 {J_}, {J_}, {RHO}")
    P(f"s_lshl_b32 {T3}, {T3}, 1\ns_add_u32 {RHO}, {RHO}, {T3}\ns_bfe_u32 {T3}, {T1}, 0x10001\ns_add_u32 {RHO}, {RHO}, {T3}\ns_and_b32 {RHO}, {RHO}, 7")
P(f"s_lshr_b32 {C_}, {J_}, 1\ns_and_b32 {TYPE}, {J_}, 1\ns_and_b32 {W}, {T2}, 3")
if OPT["norot"] == 1:
    P(f"s_mov_b32 {RHO}, 0")
if OPT["norot"] == 2:
    P(f"s_and_b32 {RHO}, {T1}, 3\ns_lshl_b32 {RHO}, {RHO}, 1\ns_lshr_b32 {T3}, {T1}, 2\ns_mul_i32 {T3}, {T3}, 5\ns_add_u32 {RHO}, {RHO}, {T3}\ns_and_b32 {RHO}, {RHO}, 7")
if OPT["norot"] == 3:
    P(f"s_and_b32 {RHO}, {T1}, 3\ns_lshl_b32 {RHO}, {RHO}, 1\ns_lshr_b32 {T3}, {T1}, 2\ns_add_u32 {RHO}, {RHO}, {T3}\ns_bfe_u32 {T3}, {T0}, 0x10002\ns_lshl_b32 {T3}, {T3}, 2\ns_add_u32 {RHO}, {RHO}, {T3}\ns_and_b32 {RHO}, {RHO}, 7")
if OPT["norot"] == 4:
    P(f"s_and_b32 {RHO}, {T1}, 3\ns_lshl_b32 {RHO}, {RHO}, 1\ns_lshr_b32 {T3}, {T1}, 2\ns_add_u32 {RHO}, {RHO}, {T3}\ns_bfe_u32 {T3}, {T0}, 0x20002\ns_lshl_b32 {T3}, {T3}, 1\ns_add_u32 {RHO}, {RHO}, {T3}\ns_and_b32 {RHO}, {RHO}, 7")
if OPT["norot"] == 5:
    P(f"s_lshr_b32 {RHO}, {T0}, 2\ns_and_b32 {T3}, {T1}, 3\ns_lshl_b32 {T3}, {T3}, 1\ns_add_u32 {RHO}, {RHO}, {T3}\ns_and_b32 {RHO}, {RHO}, 7")
if OPT["norot"] == 6:
    P(f"s_and_b32 {RHO}, {T0}, 3\ns_lshl_b32 {RHO}, {RHO}, 1\ns_and_b32 {T3}, {T1}, 1\ns_add_u32 {RHO}, {RHO}, {T3}\ns_lshr_b32 {T3}, {T1}, 2\ns_lshl_b32 {T3}, {T3}, 2\ns_add_u32 {RHO}, {RHO}, {T3}\ns_and_b32 {RHO}, {RHO}, 7")


RHOS, RHOA = "s3", "s47"
def tile2():
    if OPT["map2"] == 42:
        P(f"s_lshr_b32 {T3}, s2, 5\ns_bfe_u32 {TB2}, s2, 0x20001\ns_lshl_b32 {TB2}, {TB2}, 3\ns_add_u32 {TB2}, {TB2}, {T3}")
        P(f"s_bfe_u32 {RHO2}, s2, 0x20003\ns_and_b32 {CT}, s2, 1\ns_lshl_b32 {CT}, {CT}, 2\ns_add_u32 {CT}, {CT}, {RHO2}")
        P(f"s_lshl_b32 {RHO2}, {RHO2}, 1\ns_add_u32 {RHO2}, {RHO2}, {T3}\ns_and_b32 {RHO2}, {RHO2}, 7")
        return
    P(f"s_lshr_b32 {T3}, s2, 6\ns_and_b32 {TB2}, s2, 7\ns_lshl_b32 {TB2}, {TB2}, 2\ns_add_u32 {TB2}, {TB2}, {T3}")
    P(f"s_bfe_u32 {CT}, s2, 0x30003\ns_lshl_b32 {RHO2}, {T3}, 1\ns_add_u32 {RHO2}, {RHO2}, {CT}\ns_and_b32 {RHO2}, {RHO2}, 7")
    P(f"s_add_u32 {RHOS}, {T3}, {CT}\ns_mul_i32 {RHOA}, {T3}, 3\ns_and_b32 {T3}, {CT}, 1\ns_add_u32 {RHOA}, {RHOA}, {T3}")
    if not OPT["rotx"]:
        P(f"s_mov_b32 {RHOS}, {RHO2}\ns_mov_b32 {RHOA}, 0")


if DIAG:
    for n in range(20):
        P(f"s_mov_b32 s{80 + n}, 0")
P(f"s_cmp_ge_u32 {T2}, 4")
P("s_cbranch_scc1 L_compute" if OPT["ldfirst"] else "s_cbranch_scc0 L_compute")

lg = Q("lgkmcnt", 15)
vm = Q("vmcnt", 63)
VX, VP1, VP2, VW2, VBI, LWA, LWB, VL16, SEL, CS, CS2 = 1, 2, 3, 4, 5, 6, 7, 8, 12, 16, 20
RS1, RS32, SX0, SW0, DCOL, SP20, SM, HB0L = (s(n) for n in range(72, 80))
stamp(1, "start")
P(f"s_setprio {OPT['prio']}")
P(f"s_cmp_eq_u32 {TYPE}, 0")
sel2(RS1, 3072, 2752)
sel2(DCOL, 1024, 128)
P("v_lshrrev_b32 v24, 3, v0\nv_and_b32 v25, 7, v0\nv_lshrrev_b32 v26, 4, v0")
P(f"s_and_b32 {T0}, {W}, 1\ns_lshl_b32 {T0}, {T0}, 2")
P(f"v_add_u32 v27, {T0}, v26\nv_xor_b32 v27, v27, v25\nv_lshlrev_b32 v27, 4, v27\nv_lshl_or_b32 {v(VX)}, v24, 10, v27")
P("v_and_b32 v27, 1, v26\nv_lshlrev_b32 v27, 2, v27\nv_xor_b32 v27, v27, v25\nv_lshlrev_b32 v27, 4, v27")
P(f"v_mad_u32_u24 {v(VP1)}, v24, {RS1}, v27")
hblock2(HB0L)
P(f"s_lshl_b32 {SX0}, {I_}, 4\ns_add_u32 {SX0}, {SX0}, {W}\ns_lshl_b32 {SX0}, {SX0}, 13")
P(f"s_lshl_b32 {T0}, {HB0L}, 6\ns_lshl_b32 {T1}, {C_}, 7\ns_add_u32 {T2}, {T1}, 1024\ns_lshl_b32 {SW0}, {C_}, 8")
P(f"s_cmp_eq_u32 {TYPE}, 0")
P(f"s_cselect_b32 {SW0}, {T2}, {SW0}\ns_cselect_b32 {SP20}, {T1}, {T0}")
SZQ, SZ1 = 512 * 3072, 512 * 2752
sel2("s10", SZQ, SZ1)
P(f"s_lshl_b32 {T3}, {W}, 3\ns_mul_i32 {T0}, {T3}, {RS1}\ns_add_u32 {SW0}, {SW0}, {T0}\ns_add_u32 {SP20}, {SP20}, {T0}")
P(f"s_lshl_b32 {SM}, {W}, 10\ns_lshl_b32 {RS32}, {RS1}, 5")
P(f"v_lshl_or_b32 {v(VW2)}, v24, 10, v27")
P("s_mov_b32 s11, 0x20000\ns_mov_b32 s6, 0x200000\ns_mov_b32 s7, 0x20000")
P(f"s_cmp_eq_u32 {TYPE}, 0")
stamp(1, "pre")
P("s_waitcnt lgkmcnt(0)")
stamp(1, "karg")
P(f"s_mov_b32 s4, s{P_X}\ns_mov_b32 s5, s{P_X+1}")
P(f"s_cselect_b32 s8, s{P_QKV}, s{P_W1}\ns_cselect_b32 s9, s{P_QKV+1}, s{P_W1+1}")


def dma(voff, srdr, soff, tag):
    if OPT["noload"]:
        return
    P(f"buffer_load_dwordx4 {v(voff)}, {srdr}, {soff} offen lds")
    vm.add(tag)


def ks_reg(q):
    P(f"s_add_u32 {T0}, {RHO}, {q}\ns_and_b32 {T0}, {T0}, 7")


def stage(q, mid=None):
    sl = (q % 3) * 32 * K
    ks_reg(q)
    P(f"s_lshl_b32 {T1}, {T0}, 7\ns_add_u32 {T1}, {T1}, {SX0}")
    for m in range(4):
        P(f"s_add_u32 m0, {SM}, {sl + 4 * K * m}")
        if m:
            P(f"s_add_u32 {T1}, {T1}, 32768")
        else:
            P(f"s_lshl_b32 {T0}, {T0}, 6")
        dma(VX, rX, T1, ("st", q))
    if mid:
        mid()
    P(f"s_mul_i32 {T0}, {T0}, {RS1}\ns_add_u32 {T0}, {T0}, {SW0}")
    for h in range(2):
        if h:
            P(f"s_add_u32 {T0}, {T0}, {RS32}")
        P(f"s_add_u32 m0, {SM}, {sl + 16 * K + 4 * K * h}")
        P(f"s_add_u32 {T1}, {T0}, {DCOL}")
        dma(VP1, rP1, T0, ("st", q))
        P(f"s_add_u32 m0, {SM}, {sl + 24 * K + 4 * K * h}")
        dma(VP1, rP1, T1, ("st", q))


def chunk(q, tag="ch"):
    ks_reg(q)
    P(f"s_lshl_b32 {T0}, {T0}, 6\ns_mul_i32 {T0}, {T0}, {RS1}")
    P(f"s_add_u32 m0, {SM}, {CH(q)}\ns_add_u32 {T0}, {T0}, {SP20}")
    dma(VP1, rP1, T0, tag)
    P(f"s_add_u32 m0, {SM}, {CH(q) + 4 * K}\ns_add_u32 {T0}, {T0}, {RS32}")
    dma(VP1, rP1, T0, tag)


LPA, LPL = "s48", "s49"
LPB, LGB, SCS = "s36", "s37", "s38"
STG, G, PQR, D0, D1 = 48, 148, 212, 32, 228


def page_addr(p):
    if p < 32:
        g, mask, sr, add = p >> 2, 7, rW2, 0
    elif p < 44:
        P(f"s_add_u32 {T0}, {LPA}, {(p - 32) * 32768}\ns_cmp_ge_u32 {T0}, {LPL}\ns_cselect_b32 {T1}, {11 * 32768}, 0\ns_sub_u32 {T0}, {T0}, {T1}")
        return rW2
    else:
        g, mask, sr, add = (p - 44) >> 2, 3, rWO, 0
    if p % 4 == 0 or page_addr.last != (p >> 2):
        P(f"s_add_u32 {LGB}, {RHO2 if p < 32 else RHOS}, {g}\ns_and_b32 {LGB}, {LGB}, {mask}\ns_lshl_b32 {LGB}, {LGB}, 17\ns_add_u32 {LGB}, {LGB}, {LPB}")
        page_addr.last = p >> 2
    P(f"s_add_u32 {T0}, {LGB}, {(p % 4) * 32768}")
    return sr
page_addr.last = None


def page(p):
    P(f"s_add_u32 m0, {SM}, {slot_of(p)}")
    sr = page_addr(p)
    dma(VW2, sr, T0, ("pg", p))


def stg_reg(p):
    return STG + 4 * (p - 38 if p < 43 else p - 39)


def page_stage(p):
    sr = page_addr(p)
    P(f"buffer_load_dwordx4 {v(stg_reg(p), 4)}, {v(VW2)}, {sr}, {T0} offen")
    vm.add(("pg", p))


def page_write(p, pace=0):
    so = slot_of(p)
    a, off = (VL16, so) if so < 64 * K else ((VL16 + 1, so - 64 * K) if so < 128 * K else (VL16 + 2, so - 128 * K))
    P(f"ds_write_b128 {v(a)}, {v(stg_reg(p), 4)} offset:{off}")
    if pace:
        P("s_waitcnt lgkmcnt(0)")


stage(0)
stamp(1, "st0")
chunk(0, "ch0")
srd(rWS, P_WS, WS_SIZE)
srd(rW2, P_W2, 1376 * 1024)
srd(rWO, P_WO, 512 * 1024)
srd(rA, P_B1, 2752)
tile2()
waddr(LWA, 27, 28, 3)
P(f"s_and_b32 {T0}, {W}, 1\ns_lshl_b32 {T0}, {T0}, 6")
P(f"v_xor_b32 {v(LWA)}, {T0}, {v(LWA)}")
P(f"v_add_u32 {v(LWB)}, 0x{CH(0):x}, {v(LWA)}")
P(f"s_lshr_b32 {T0}, {W}, 1\ns_lshl_b32 {T0}, {T0}, 13\ns_add_u32 {T0}, {T0}, {16 * K}")
P(f"v_add_u32 {v(LWA)}, {T0}, {v(LWA)}")
P("v_and_b32 v27, 15, v0\nv_lshlrev_b32 v28, 2, v26\nv_cmp_eq_u32 vcc, v27, v28\nv_mov_b32 v27, 0x3f803f80")
for r in range(4):
    P(f"v_cndmask_b32 {v(SEL + r)}, 0, v27, vcc")
P(f"v_lshl_add_u32 {v(VL16)}, v0, 4, {SM}")
P(f"v_add_u32 {v(VL16+1)}, 0x10000, {v(VL16)}\nv_add_u32 {v(VL16+2)}, 0x20000, {v(VL16)}")
P(f"s_lshl_b32 {LPB}, {W}, 13\ns_lshl_b32 {T1}, {CT}, 7\ns_add_u32 {LPB}, {LPB}, {T1}")
P(f"s_lshl_b32 {LPA}, {RHOA}, 15\ns_add_u32 {LPA}, {LPA}, {LPB}\ns_add_u32 {LPA}, {LPA}, {32 * 32768}\ns_add_u32 {LPL}, {LPB}, {43 * 32768}")
P(f"s_lshl_b32 {SCS}, {J_}, 1\ns_lshr_b32 {T0}, {I_}, 3\ns_add_u32 {SCS}, {SCS}, {T0}\ns_lshl_b32 {SCS}, {SCS}, 2")
P(f"s_add_u32 {SCS}, {SCS}, {W}\ns_lshl_b32 {SCS}, {SCS}, 12\ns_add_u32 {SCS}, {SCS}, 0x{WS_CS:x}")
P(f"s_lshl_b32 {T0}, {C_}, 2\ns_add_u32 {T0}, {T0}, {W}\ns_lshl_b32 {T0}, {T0}, 6")
P(f"s_and_b32 {T1}, {W}, 1\ns_add_u32 {T1}, {T1}, {HB0L}\ns_lshl_b32 {T1}, {T1}, 6")
P(f"s_cmp_eq_u32 {TYPE}, 0\ns_cselect_b32 {T0}, 0x100000, {T0}\ns_cselect_b32 {T1}, 0x100000, {T1}")
P(f"v_mov_b32 v27, {T0}\nv_mov_b32 v28, {T1}\nv_cmp_gt_u32 vcc, 32, v0\nv_and_b32 v29, 31, v0")
P(f"v_cndmask_b32 v27, v28, v27, vcc\nv_lshl_add_u32 v30, v29, 1, v27")
STW, STO = "s40", "s41"
P(f"s_lshr_b32 {T0}, s2, 3\ns_lshl_b32 {T0}, {T0}, 2\ns_add_u32 {T0}, {T0}, {W}\ns_and_b32 {T1}, s2, 7")
P(f"s_mul_i32 {STW}, {T0}, 86\ns_mul_i32 {T2}, {T1}, 5\ns_add_u32 {STW}, {STW}, {T2}\ns_lshl_b32 {STW}, {STW}, 7")
P(f"s_lshl_b32 {STO}, {T0}, 4\ns_add_u32 {STO}, {STO}, {T1}\ns_lshl_b32 {STO}, {STO}, 8")
if OPT["stouch"]:
    P(f"s_lshl_b32 {T0}, s2, 2\ns_add_u32 {T0}, {T0}, {W}\ns_mul_i32 {STW}, {T0}, {11 * 128}\ns_lshl_b32 {STO}, {T0}, 9")
ntouch = [0]
def touches(n):
    for _ in range(n):
        t = ntouch[0]
        ntouch[0] += 1
        if t % 4 != 3:
            P(f"s_buffer_load_dword s44, {rW2}, {STW} offset:{(t - t // 4) * 128}")
        elif t // 4 < 32:
            P(f"s_buffer_load_dword s44, {rWO}, {STO} offset:{(t // 4) * 128}")
VSIG, VPK = 11, 24
P(f"s_lshl_b32 {T0}, {W}, 2\ns_add_u32 {T0}, {T0}, 0x{L_RDY:x}\nv_mov_b32 {v(VSIG)}, {T0}")
P(f"v_and_b32 {v(VPK)}, 3, v0\nv_lshlrev_b32 {v(VPK)}, 2, {v(VPK)}\nv_add_u32 {v(VPK)}, 0x{L_PRG:x}, {v(VPK)}")
signal(VSIG, 27, 0)
lg.drain()
stamp(1, "setup")
stage(1)
stamp(1, "issued")
vm.wait("ch0")
vm.wait(("st", 0))
stamp(1, "land")
if OPT["p2only"]:
    P("s_waitcnt vmcnt(0)\ns_barrier")
    signal(VSIG, 27, 6)
    P("s_barrier\ns_barrier")
    dump(1)
    P("s_endpgm")
    lg.q = []
P("s_barrier ; b0")
stamp(1, "b0")
FR = 32


def cs_reads(a, f):
    for t in range(4):
        P(f"ds_read_b64_tr_b16 {v(f + 4 * t, 2)}, {v(a)} offset:{t * 2048}")
        P(f"ds_read_b64_tr_b16 {v(f + 4 * t + 2, 2)}, {v(a)} offset:{t * 2048 + 512}")


def cs_mfma(acc, f):
    for t in range(4):
        P(f"v_mfma_f32_16x16x32_bf16 {v(acc, 4)}, {v(SEL, 4)}, {v(f + 4 * t, 4)}, {'0' if t == 0 else v(acc, 4)}")


CSL = "\n".join(f"buffer_load_dwordx2 {v(32 + 2 * n, 2)}, v29, {rWS}, {SCS} offen offset:{512 * n} sc1" for n in range(8))
CSC = "\n".join([f"v_xor_b32 {v(48 + n)}, {NONCE}, {v(33 + 2 * n)}" for n in range(8)] +
                ["v_or3_b32 v48, v48, v49, v50", "v_or3_b32 v51, v51, v52, v53", "v_or3_b32 v48, v48, v54, v55",
                 "v_or_b32 v48, v48, v51", "v_cmp_ne_u32 vcc, 0, v48"])
nch = 1
for st in range(8):
    if st == 0:
        def mid():
            P(f"s_setprio {OPT['csprio']}")
            P("s_waitcnt lgkmcnt(0)")
            cs_reads(LWB, FR + 16)
            cs_mfma(CS, FR)
        P(f"v_mov_b32 v29, 0x{L_TAG:x}")
        cs_reads(LWA, FR)
        P("ds_read_b32 v29, v29")
        stage(2, mid)
        P(f"buffer_load_ushort {v(VBI)}, v30, {rA}, 0 offen")
        vm.add("bias")
        P(f"v_readfirstlane_b32 {NONCE}, v29")
        P(f"s_lshl_b32 {T0}, {W}, 8\ns_add_u32 {T0}, {T0}, 0x{L_CSX:x}")
        P(f"v_lshl_add_u32 v27, v0, 2, {T0}")
        P("s_waitcnt lgkmcnt(0)")
        cs_mfma(CS2, FR + 16)
    elif st <= 5:
        stage(st + 2)
    if st == 0:
        P(f"v_permlane32_swap_b32 {v(CS)}, {v(CS2)}")
        P(f"v_add_f32 {v(CS)}, {v(CS)}, {v(CS2)}")
        P(f"ds_write_b32 v27, {v(CS)}")
        P(f"s_setprio {OPT['prio']}")
        P("s_waitcnt lgkmcnt(0)")
    if OPT["sp0"] <= st < 7 and st > 0:
        touches(OPT["sp"])
    if OPT["spx"] and 1 <= st <= 6:
        if st == 1:
            P(f"s_lshl_b32 {STW}, {RHO2}, 17\ns_add_u32 {STW}, {STW}, {LPB}\ns_add_u32 {STO}, {RHO2}, 1\ns_and_b32 {STO}, {STO}, 7\ns_lshl_b32 {STO}, {STO}, 17\ns_add_u32 {STO}, {STO}, {LPB}")
        for t in range((st - 1) * OPT["spx"], min(64, st * OPT["spx"])):
            P(f"s_buffer_load_dword s44, {rW2}, {STW if t < 32 else STO} offset:{((t % 32) >> 3) * 32768 + (t & 7) * 1024}")
    if OPT["stouch"] and st in (OPT["stouch"], OPT["stouch"] + 1):
        for t in range(8 * (st - OPT["stouch"]), min(15, 8 * (st - OPT["stouch"]) + 8)):
            P(f"s_buffer_load_dword s44, {rW2}, {STW} offset:{t * 128}" if t < 11 else f"s_buffer_load_dword s44, {rWO}, {STO} offset:{(t - 11) * 128}")
    if st == 6:
        P("v_lshlrev_b32 v29, 3, v0")
        if not OPT["nocs"]:
            P(CSL)
            for n in range(8):
                vm.add("cs")
        for q in range(nch, nch + OPT["n6"]):
            chunk(q)
        nch += OPT["n6"]
    if st == 7:
        if not OPT["nocs"]:
            vm.wait("cs")
            P(CSC)
            retry("L_cs", CSL, CSC)
        P("v_add_f32 v32, v32, v34\nv_add_f32 v36, v36, v38\nv_add_f32 v40, v40, v42\nv_add_f32 v44, v44, v46")
        P("v_add_f32 v32, v32, v36\nv_add_f32 v40, v40, v44\nv_add_f32 v32, v32, v40")
        P("v_cvt_pk_bf16_f32 v33, v32, v32\nv_lshlrev_b32 v33, 16, v33\nv_sub_f32 v32, v32, v33\nv_cvt_pk_bf16_f32 v32, v33, v32")
        P("v_cmp_gt_u32 vcc, 32, v0")
        P(f"s_lshl_b32 {T0}, {W}, 9\ns_add_u32 {T0}, {T0}, 0x{L_EX1:x}")
        P(f"v_add_u32 v29, {T0}, v29")
        P(f"v_cndmask_b32 v34, 0, v32, vcc\nv_cndmask_b32 v35, 0, {v(VBI)}, vcc")
        P(f"v_cndmask_b32 v36, v32, 0, vcc\nv_cndmask_b32 v37, {v(VBI)}, 0, vcc")
        P(f"ds_write_b64 v29, v[34:35]\nds_write_b64 v29, v[36:37] offset:{L_EX2 - L_EX1}")
        for q in range(nch, nch + OPT["n7"]):
            chunk(q)
        nch += OPT["n7"]
        P("s_waitcnt lgkmcnt(0)")
    else:
        vm.wait(("st", st + 1))
    P(f"s_barrier ; b{st + 1}")
    if "st1" in OPT and st < 7:
        stamp(1, f"b{st+1}")
stamp(1, "b8")
if OPT["p1only"]:
    dump(1)
    P("s_endpgm")
    DIAG = 0
for q in range(nch, 8):
    chunk(q)
XRES, BRES, VO, SO = 244, 252, 19, "s45"
srd(rB, P_B2, 1024)
srd(rP2, P_OUT, 2 * K * K)
P(f"v_and_b32 v28, 7, v0\nv_lshlrev_b32 v28, 4, v28\nv_lshrrev_b32 v29, 3, v0\nv_lshl_or_b32 {v(VO)}, v29, 10, v28")
P(f"s_lshl_b32 {SO}, {TB2}, 2\ns_add_u32 {SO}, {SO}, {W}\ns_lshl_b32 {SO}, {SO}, 14\ns_lshl_b32 {T1}, {CT}, 7\ns_add_u32 {SO}, {SO}, {T1}")
P(f"s_add_u32 {T2}, {SO}, 8192")
P(f"buffer_load_dwordx4 {v(BRES, 4)}, v28, {rB}, {T1} offen")
P(f"buffer_load_dwordx4 {v(XRES, 4)}, {v(VO)}, {rX}, {SO} offen")
P(f"buffer_load_dwordx4 {v(XRES + 4, 4)}, {v(VO)}, {rX}, {T2} offen")
for _ in range(3):
    vm.add("res")
vq8 = list(vm.q)


def stream(seq, events):
    pend, n = [], 0
    for tag in events:
        if tag in vm.q:
            pend.append([tag, len(vm.q) - 1 - max(i for i, t in enumerate(vm.q) if t == tag)])
    for p in seq:
        (page if p < 38 else page_stage)(p)
        if "st1" in OPT:
            stamp(1, f"p{p}")
        for e in pend:
            e[1] += 1
        if ("pg", p) in events:
            pend.append([("pg", p), 0])
        while pend and pend[0][1] >= OPT["lag"]:
            tag = pend.pop(0)[0]
            vm.wait(tag)
            signal(VSIG, 26, events[tag])
    for tag, _ in pend:
        vm.wait(tag)
        signal(VSIG, 26, events[tag])


P(f"s_cmp_eq_u32 {TYPE}, 0")
P("s_cbranch_scc1 L_lA")
SH1, SH2, SF1 = "s4", "s5", "s6"
P(f"v_add_u32 v22, 16, {v(VSIG)}\nv_lshlrev_b32 v23, 4, v0")
P(f"s_lshl_b32 {T0}, {I_}, 2\ns_add_u32 {T0}, {T0}, {W}")
P(f"s_mul_i32 {SH1}, {T0}, {TB_STRIDE}\ns_add_u32 {SH1}, {SH1}, 0x{WS_HA:x}")
P(f"s_lshl_b32 {SH2}, {HB0L}, 11\ns_add_u32 {SH2}, {SH2}, {SH1}\ns_lshl_b32 {T1}, {C_}, 13\ns_add_u32 {SH1}, {SH1}, {T1}")
P(f"s_lshl_b32 {SF1}, {T0}, 5\ns_add_u32 {SF1}, {SF1}, {C_}\ns_lshl_b32 {SF1}, {SF1}, 2\ns_add_u32 {SF1}, {SF1}, 0x{WS_FLAGS + FL_HB * 128:x}")


def far():
    P(f"ds_read_b32 v28, {v(VPK)} offset:{L_FAST - L_PRG}\ns_waitcnt lgkmcnt(0)\nv_cmp_ne_u32 vcc, 0, v28\ns_or_b32 {FAR}, vcc_lo, vcc_hi")


def hstore(k, base, b, sh, tag):
    if k == 1:
        await_(VPK, 28, k)
        far()
    else:
        await_(22, 28, k)
    d = D0 + 8 * (b & 1)
    for u in range(2):
        a = base + (2 * b + u) * 4096
        P(f"ds_read_b128 {v(d + 4 * u, 4)}, {v(VL16 + a // (64 * K))} offset:{a % (64 * K)}")
    if b == 2:
        P(f"s_add_u32 {sh}, {sh}, 4096")
    for u in range(2):
        P(f"s_waitcnt lgkmcnt({1 - u})")
        row_store(f"buffer_store_dwordx4 {v(d + 4 * u, 4)}, v23, {rWS}, {sh} offen offset:{2048 * (b & 1) + 1024 * u}")
        vm.add(tag)


np_ = OPT["pB"]
stream(range(0, np_), {})
hstore(1, L_HS, 0, SH1, "h")
vm.wait("ch")
signal(VSIG, 26, 1)
for b in range(1, 4):
    stream(range(np_, np_ + OPT["iB"]), {})
    np_ += OPT["iB"]
    hstore(b + 1, L_HS, b, SH1, "h")
signal(VSIG, 26, 2)
stamp(1, "h_st")
nx = min(18, np_ + OPT["xB"])
stream(range(np_, nx), {})
vm.wait("h")
flag_store(SF1, aux=HX)
vm.add(None)
stamp(1, "hbflag")
stream(range(nx, 18), {})
P(f"s_add_u32 {SF1}, {SF1}, {(FL_HA - FL_HB) * 128}")
P(f"s_cmp_lt_u32 {C_}, 3")
P("s_cbranch_scc0 L_lB1")
vqB = list(vm.q)
for nb in (2, 1):
    if nb == 1:
        P.label("L_lB1")
        vm.q = list(vqB)
    page_addr.last = None
    late = list(range(38, 43)) + list(range(44, 60))
    hk = 3 if nb == 2 else OPT["hk1"]
    for k in range(4):
        if nb == 2:
            stream(late[:OPT["lB"]], {})
            late = late[OPT["lB"]:]
        lg.q = []
        await_(VPK, 28, 5 + k)
        stream(range(18 + 4 * k, 22 + 4 * k), {})
        if k == 0:
            vm.wait(("pg", 17))
            signal(VSIG, 26, 3)
        if k == hk:
            lg.q = []
            for b in range(nb):
                hstore(9 + b, L_PQ, b, SH2, "h2")
            stamp(1, "h2_st")
            stream(range(34, 38), {})
        if k == min(3, hk + 1):
            vm.wait("h2")
            flag_store(SF1, aux=HX)
            vm.add(None)
            stamp(1, "oflag")
    stream(late[:OPT["lag"]], {})
    vm.wait(("pg", 33))
    vm.wait(("pg", 37))
    signal(VSIG, 26, 4)
    stream(late[OPT["lag"]:], {})
    stamp(1, "staged")
    vm.wait(("pg", 42))
    P("s_branch L_l5")
P.label("L_lA")
vm.q = list(vq8)
lg.q = []
page_addr.last = None
lateA = list(range(38, 43)) + list(range(44, 60))
def takeA(n):
    global lateA
    r, lateA = lateA[:n], lateA[n:]
    return r
stream(list(range(13)) + takeA(OPT["lA0"]), {"ch": 1})
await_(VPK, 28, 2)
far()
stream(range(13, 18), {})
def freed(ks):
    for k in ks:
        stream(takeA(OPT["lA"]), {})
        lg.q = []
        await_(VPK, 28, 5 + k)
        stream(range(18 + 4 * k, 22 + 4 * k), {})
SZL, SK0, SK1, SKE = "s4", "s5", "s6", "s7"
NB = [NONCE, "s39", "s42", "s43"]
P("v_and_b32 v23, 15, v0\nv_lshlrev_b32 v27, 4, v0")
P(f"v_lshrrev_b32 v22, 2, v0\nv_mul_u32_u24 v25, {KVP_STR}, v22\nv_and_b32 v26, 3, v0\nv_lshl_add_u32 v25, v26, 4, v25")
P(f"s_mul_i32 {SK0}, {C_}, {16 * KVP_STR}\ns_add_u32 {SK0}, {SK0}, 0x{WS_KVP:x}")
P(f"s_lshl_b32 {SZL}, {W}, 6\ns_add_u32 {SZL}, {SZL}, {SK0}\ns_add_u32 {SZL}, {SZL}, 4096")
P(f"s_add_u32 {SK0}, {SK0}, {SM}\ns_add_u32 {SKE}, {SK0}, {16 * KVP_STR}")
P(f"s_lshl_b32 {SK1}, {I_}, 1\ns_and_b32 {SK1}, {SK1}, 15\ns_mul_i32 {SK1}, {SK1}, {KVP_STR}\ns_add_u32 {SK1}, {SK1}, {SK0}")
P(f"s_add_u32 {T0}, {SM}, 0x{L_KT:x}")
P("v_and_b32 v40, 1, v26\nv_lshlrev_b32 v40, 4, v40\nv_lshrrev_b32 v26, 1, v26\nv_lshl_or_b32 v40, v26, 3, v40")
P(f"v_lshl_or_b32 v40, v22, 5, v40\nv_add_u32 v40, {T0}, v40")
P("v_bfe_u32 v41, v0, 4, 1\nv_lshlrev_b32 v41, 4, v41\nv_lshrrev_b32 v26, 5, v0\nv_lshl_or_b32 v41, v26, 3, v41")
P(f"v_lshl_or_b32 v41, v23, 5, v41\nv_add_u32 v41, {T0}, v41")
P(f"v_and_b32 v42, 31, v0\nv_lshlrev_b32 v42, 5, v42\nv_lshl_or_b32 v42, v26, 4, v42\nv_add_u32 v42, {T0}, v42")
P(f"s_lshr_b32 s39, {NONCE}, 8\ns_lshr_b32 s42, {NONCE}, 16\ns_lshr_b32 s43, {NONCE}, 24")
ZL = f"buffer_load_dwordx4 v[28:31], v25, {rWS}, {SZL} offen sc1"
ZC = "\n".join([f"v_xor_b32 v20, {NB[0]}, v28", f"v_xor_b32 v21, {NB[1]}, v29",
                f"v_bitop3_b32 v20, v20, v30, {NB[2]} bitop3:0xf6", f"v_bitop3_b32 v21, v21, v31, {NB[3]} bitop3:0xf6",
                "v_or_b32 v20, v20, v21", "v_and_b32 v20, 0xff, v20", "v_cmp_ne_u32 vcc, 0, v20"])
freed(range(OPT["kq"]))
P(f"s_setprio {OPT['gprio']}")
P(f"s_mov_b32 {T2}, 32")
P.label("L_kvall")
spin("L_kv", ZL, ZC)
stamp(1, "kv_seen")
signal(VSIG, 26, 3)
P(f"s_mov_b32 {T1}, {SK1}")
GD = 16
GR8 = G if GD == 16 else PQR
def gload(n):
    P(f"buffer_load_dwordx4 {v(GR8 + 4 * (n % GD), 4)}, v27, {rWS}, {T1} offen sc1")
    if n < 15:
        P(f"s_add_u32 {T1}, {T1}, {KVP_STR}")
        if n % 2 == 1:
            P(f"s_cmp_eq_u32 {T1}, {SKE}\ns_cselect_b32 {T1}, {SK0}, {T1}")
for n in range(GD):
    gload(n)
for n in range(4):
    P(f"v_and_b32 {v(28 + n)}, 0xffffff00, {v(28 + n)}")
for r in (4, 8):
    for n in range(4):
        P(f"v_add_f32_dpp {v(28 + n)}, {v(28 + n)}, {v(28 + n)} row_ror:{r} row_mask:0xf bank_mask:0xf")
for op in ("v_permlane16_swap_b32", "v_permlane32_swap_b32"):
    for n in range(4):
        P(f"v_mov_b32 {v(32 + n)}, {v(28 + n)}")
    for n in range(4):
        P(f"{op} {v(28 + n)}, {v(32 + n)}")
    for n in range(4):
        P(f"v_add_f32 {v(28 + n)}, {v(28 + n)}, {v(32 + n)}")
P("v_cvt_pk_bf16_f32 v28, v28, v29\nv_cvt_pk_bf16_f32 v29, v30, v31")
P("ds_write_b64 v40, v[28:29] offset:512")
for n in range(16):
    P(f"s_waitcnt vmcnt({min(GD - 1, 15 - n)})")
    for h in range(4):
        r = v(GR8 + 4 * (n % GD) + h)
        if n == 0:
            P(f"v_xor_b32 {v(36 + h)}, {NB[h]}, {r}\nv_and_b32 {v(32 + h)}, 0xffffff00, {r}")
        else:
            P(f"v_bitop3_b32 {v(36 + h)}, {v(36 + h)}, {r}, {NB[h]} bitop3:0xf6\nv_and_b32 {v(44 + h)}, 0xffffff00, {r}")
    if n + GD < 16:
        gload(n + GD)
    if n:
        for h in range(4):
            P(f"v_add_f32 {v(32 + h)}, {v(32 + h)}, {v(44 + h)}")
P("v_or3_b32 v36, v36, v37, v38\nv_or_b32 v36, v36, v39\nv_and_b32 v36, 0xff, v36\nv_cmp_ne_u32 vcc, 0, v36")
P(f"s_sub_u32 {T2}, {T2}, 1")
P("s_cbranch_scc1 L_kvok")
P("s_cbranch_vccnz L_kvall")
P.label("L_kvok")
stamp(1, "gath")
if DIAG >= 3 and "retry" in str(OPT.get("st1")):
    P(f"s_waitcnt lgkmcnt(0)\ns_sub_u32 s98, 32, {T2}\ns_mul_i32 s98, s98, 100\ns_add_u32 s98, s98, s100")
vm.q = []
page_addr.last = None
P("v_cvt_pk_bf16_f32 v32, v32, v33\nv_cvt_pk_bf16_f32 v33, v34, v35")
P("ds_write_b64 v41, v[32:33]")
lg.q = []
P("ds_read_b128 v[44:47], v42")
freed(range(OPT["kq"], 4))
P(f"v_add_u32 v20, 0x{L_PQ:x}, {v(VL16)}")
P(f"s_mul_i32 s4, {I_}, {4 * TB_STRIDE}\ns_lshl_b32 {T1}, {C_}, 12\ns_add_u32 s4, s4, {T1}")
P(f"s_add_u32 s4, s4, {SM}\ns_add_u32 s4, s4, 0x{WS_HA + 86 * K:x}")
stamp(1, "staged")
await_(VPK, 22, 10)
stamp(1, "g0")
for tb in range(4):
    P(f"ds_read_b128 {v(PQR + 4 * tb, 4)}, v20 offset:{tb * 4096}")
P("v_mov_b32 v28, v44\nv_mov_b32 v29, v45\nv_mov_b32 v30, v46\nv_mov_b32 v31, v47")
def o_mfma(tb):
    P(f"s_waitcnt lgkmcnt({3 - tb})")
    P(f"v_mfma_f32_32x32x16_bf16 {v((D0, D1)[tb & 1], 16)}, v[28:31], {v(PQR + 4 * tb, 4)}, 0")
o_mfma(0)
o_mfma(1)
for tb in range(4):
    d = (D0, D1)[tb & 1]
    P(f"v_add_f32 {v(d + 8)}, 0x{f2u(1e-6):x}, {v(d + 8)}")
    P(f"v_rcp_f32 {v(d + 8)}, {v(d + 8)}")
    for r in range(8):
        P(f"v_mul_f32 {v(d + r)}, {v(d + r)}, {v(d + 8)}")
    for p in range(4):
        P(f"v_cvt_pk_bf16_f32 {v(PQR + 4 * tb + p)}, {v(d + 2 * p)}, {v(d + 2 * p + 1)}")
    if tb < 2:
        o_mfma(tb + 2)
    row_store(f"buffer_store_dwordx4 {v(PQR + 4 * tb, 4)}, v27, {rWS}, s4 offen")
    vm.add("o")
    if tb < 3:
        P(f"s_add_u32 s4, s4, {TB_STRIDE}")
stamp(1, "o_st")
P(f"s_setprio {OPT['prio']}")
stream(range(34, 38), {})
vm.wait("o")
P(f"s_lshl_b32 {T0}, {I_}, 5\ns_lshl_b32 {T1}, {C_}, 2\ns_add_u32 {T0}, {T0}, {T1}\ns_add_u32 {T0}, {T0}, {W}")
P(f"s_lshl_b32 {T0}, {T0}, 2\ns_add_u32 {T0}, {T0}, 0x{WS_FLAGS + FL_O * 128:x}")
flag_store(T0, aux=HX)
vm.add(None)
stamp(1, "oflag")
stream(takeA(OPT["lag"]), {})
vm.wait(("pg", 37))
signal(VSIG, 26, 4)
stream(takeA(21), {})
vm.wait(("pg", 42))
P.label("L_l5")
lg.q = []
await_(VPK, 28, 11)
stamp(1, "gx")
nfree = 2 * ((OPT["gx"] - 7) // 4)
first = [p for p in list(range(38, 43)) + list(range(44, 60)) if p - 38 < nfree]
for p in first:
    if p == 44:
        signal(VSIG, 26, 5)
        P("s_waitcnt vmcnt(0)")
    page_write(p, OPT["pace"])
lg.q = []
P("s_waitcnt lgkmcnt(0)")
await_(VPK, 28, 12)
for p in range(44, 60):
    if p not in first:
        page_write(p, OPT["pace"])
signal(VSIG, 26, 6)
LOG2E = 1.4426950408889634
XRD, GG, XF, BF, YR = 22, 32, 48, 64, 72
P("v_lshrrev_b32 v26, 3, v0\nv_and_b32 v27, 7, v0\nv_lshlrev_b32 v27, 1, v27\nv_xor_b32 v27, v27, v26\nv_lshlrev_b32 v27, 4, v27\nv_lshl_or_b32 v26, v26, 8, v27")
P(f"s_lshl_b32 {T0}, {W}, 12\ns_add_u32 {T0}, {T0}, 0x{L_XS0:x}")
P(f"v_add_u32 {v(XRD)}, {T0}, v26\nv_xor_b32 {v(XRD + 1)}, 16, {v(XRD)}")
P(f"v_add_u32 {v(XRD + 2)}, 0x10000, {v(XRD)}\nv_add_u32 {v(XRD + 3)}, 0x10000, {v(XRD + 1)}")
P(f"s_add_u32 {T2}, {SO}, 8192")
P("s_waitcnt lgkmcnt(0)")


def wback(tag):
    if OPT["wbj"] == 0:
        P(f"s_cmp_lg_u32 {W}, 0")
    else:
        P(f"s_xor_b32 {T0}, {J_}, {OPT['wbj'] - 1}\ns_or_b32 {T0}, {T0}, {W}\ns_cmp_lg_u32 {T0}, 0")
    P(f"s_cbranch_scc1 L_wb{tag}\nbuffer_wbl2 sc1\nL_wb{tag}:")


if OPT["wb"] == 2:
    wback(2)
def unpack(dst, src, n):
    for r in range(n):
        P(f"v_lshlrev_b32 {v(dst + 2 * r)}, 16, {v(src + r)}\nv_and_b32 {v(dst + 2 * r + 1)}, 0xffff0000, {v(src + r)}")


def xread(dst, bases):
    for h in range(2):
        for kh in range(2):
            for j in range(2):
                P(f"ds_read_b128 {v(dst + 16 * kh + 8 * h + 4 * j, 4)}, {v(XRD + j + 2 * ((bases[kh] - L_XS0) >> 16))} offset:{((bases[kh] - L_XS0) & 0xffff) + 2048 * h}")


unpack(XF, XRES, 8)
unpack(BF, BRES, 4)
stamp(1, "rdy5")
P("s_barrier ; dY")
if OPT["wb"] == 3:
    wback(3)
xread(YR, (L_XY, L_XY + 16 * K))
P("s_waitcnt lgkmcnt(0)")
for fmt in ("v_add_f32 {Y}, {Y}, {Z}", "v_add_f32 {Y}, {Y}, {B}", f"v_mul_f32 {{G}}, 0x{f2u(-LOG2E):x}, {{Y}}", "v_exp_f32 {G}, {G}",
            "v_add_f32 {G}, 1.0, {G}", "v_rcp_f32 {G}, {G}", "v_mul_f32 {G}, {G}, {Y}"):
    for r in range(16):
        P(fmt.format(Y=v(YR + r), Z=v(YR + 16 + r), B=v(BF + r % 8), G=v(GG + r)))
stamp(1, "gate")
P("s_barrier ; dS")
xread(YR, (L_XS0, L_XS1))
for h in range(2):
    P(f"s_waitcnt lgkmcnt({4 - 4 * h})")
    for p in range(4 * h, 4 * h + 4):
        P(f"v_pk_add_f32 {v(YR + 2 * p, 2)}, {v(YR + 2 * p, 2)}, {v(YR + 16 + 2 * p, 2)}")
    for p in range(4 * h, 4 * h + 4):
        P(f"v_pk_fma_f32 {v(YR + 2 * p, 2)}, {v(YR + 2 * p, 2)}, {v(GG + 2 * p, 2)}, {v(XF + 2 * p, 2)}")
    for p in range(4 * h, 4 * h + 4):
        P(f"v_cvt_pk_bf16_f32 {v(BF + p)}, {v(YR + 2 * p)}, {v(YR + 2 * p + 1)}")
    P(f"buffer_store_dwordx4 {v(BF + 4 * h, 4)}, {v(VO)}, {rP2}, {(SO, T2)[h]} offen {OPT['outaux']}")
dump(1)
P.label("L_end")
P("s_endpgm")
flush_cold()

P.label("L_compute")
DIAG = OPT["diag"]
XR, ACC, WR = 128, 64, 32
VH, GR, XE, K1, K2, SD, RS, RL = 1, 2, 4, 6, 8, 10, 12, 14
XA, WA = 12, 20
HB0, SH, EPS2, SG, SFL1, SFL2, SCS2 = "s72", "s73", "s[74:75]", "s76", "s77", "s78", "s79"
lg = Q("lgkmcnt", 15)

stamp(0, "start")
P(f"s_setprio {OPT['cprio']}")
P(f"s_lshl_b32 {T0}, {I_}, 4\ns_add_u32 {T0}, {T0}, {J_}\ns_lshl_b32 {T0}, {T0}, 2\ns_add_u32 {T0}, {T0}, {W}\ns_lshl_b32 {T0}, {T0}, 1")
P(f"s_lshl_b32 {T1}, {T0}, 10")
P("v_lshrrev_b32 v26, 5, v0\nv_and_b32 v27, 31, v0\nv_lshlrev_b32 v28, 4, v27\nv_lshl_or_b32 v28, v26, 10, v28")
P("s_waitcnt lgkmcnt(0)")
srd(rX, P_X, 2 * K * K)
P(f"s_load_dword {NONCE}, s[{P_WS}:{P_WS+1}], 0")
P(f"buffer_load_dwordx4 v[32:35], v28, {rX}, {T1} offen")
P(f"buffer_load_dwordx4 v[36:39], v28, {rX}, {T1} offen offset:512")
srd(rWS, P_WS, WS_SIZE)
tile2()
P(f"v_lshlrev_b32 {v(VH)}, 4, v0")
waddr(WA, 29, 30, 3)
P(f"v_xor_b32 {v(WA + 1)}, 64, {v(WA)}")
for k, off in ((2, 64 * K), (4, 88 * K)):
    P(f"v_add_u32 {v(WA + k)}, 0x{off:x}, {v(WA)}\nv_add_u32 {v(WA + k + 1)}, 0x{off:x}, {v(WA + 1)}")
P("v_bfe_u32 v29, v0, 1, 3\nv_xor_b32 v29, v29, v26\nv_lshlrev_b32 v29, 4, v29\nv_lshl_or_b32 v29, v27, 7, v29")
P(f"s_lshl_b32 {T2}, {W}, 12")
P(f"v_add_u32 {v(XA)}, {T2}, v29")
for t in range(1, 4):
    P(f"v_xor_b32 {v(XA + t)}, {32 * t}, {v(XA)}")
for t in range(4):
    P(f"v_add_u32 {v(XA + 4 + t)}, 0x10000, {v(XA + t)}")
P(f"s_lshl_b32 {SG}, {I_}, 2\ns_add_u32 {SG}, {SG}, {W}")
if OPT["touch"]:
    srd(rW2, P_W2, 1376 * 1024)
    srd(rWO, P_WO, 512 * 1024)
    P(f"s_mul_i32 {T2}, s2, 43\ns_mul_i32 {T3}, {W}, 11\ns_add_u32 {T2}, {T2}, {T3}")
    P(f"v_add_u32 v6, {T2}, v0\nv_lshlrev_b32 v6, 7, v6\nv_mov_b32 v8, 0x7ff00000\nv_cmp_gt_u32 vcc, 11, v0")
    P(f"s_lshl_b32 {T2}, s2, 2\ns_add_u32 {T2}, {T2}, {W}\ns_lshl_b32 {T2}, {T2}, 2")
    P(f"v_cndmask_b32 v6, v8, v6, vcc\nv_add_u32 v7, {T2}, v0\nv_lshlrev_b32 v7, 7, v7\nv_cmp_gt_u32 vcc, 4, v0")
    P("v_cndmask_b32 v7, v8, v7, vcc")
    if OPT["touch"] == 9:
        P(f"buffer_load_dword v8, v6, {rW2}, 0 offen\nbuffer_load_dword v9, v7, {rWO}, 0 offen")
P(f"s_lshl_b32 {SG}, {SG}, 8\ns_add_u32 {SG}, {SG}, 0x{WS_STATS:x}")
P(f"s_lshl_b32 {SCS2}, {J_}, 1\ns_lshr_b32 {T2}, {I_}, 3\ns_add_u32 {SCS2}, {SCS2}, {T2}\ns_lshl_b32 {SCS2}, {SCS2}, 2")
P(f"s_add_u32 {SCS2}, {SCS2}, {W}\ns_lshl_b32 {SCS2}, {SCS2}, 3\ns_and_b32 {T2}, {I_}, 7\ns_add_u32 {SCS2}, {SCS2}, {T2}")
P(f"s_lshl_b32 {SCS2}, {SCS2}, 9\ns_add_u32 {SCS2}, {SCS2}, 0x{WS_CS:x}")
SFHB, SFO, KH, SFHA, PRIMED, SK12, SXW, SBASE = "s51", "s52", "s53", "s54", "s55", "s72", "s73", "s77"
P(f"s_lshr_b32 {KH}, {W}, 1\ns_lshl_b32 {SK12}, {KH}, 12\ns_mov_b32 {PRIMED}, 0")
P(f"s_lshl_b32 {T3}, {TB2}, 1\ns_and_b32 {T2}, {W}, 1\ns_add_u32 {T3}, {T3}, {T2}")
P(f"s_mul_i32 {SBASE}, {T3}, {TB_STRIDE}\ns_add_u32 {SBASE}, {SBASE}, 0x{WS_HA:x}")
if OPT["ahot"]:
    P(f"s_mov_b32 {SBASE}, 0x{WS_DIAG + 0x40000:x}")
P(f"s_lshl_b32 {SFHB}, {T3}, 7\ns_add_u32 {SFHA}, {SFHB}, 0x{WS_FLAGS + FL_HA * 128:x}\ns_add_u32 {SFHB}, {SFHB}, 0x{WS_FLAGS + FL_HB * 128:x}")
P(f"s_lshr_b32 {SFO}, {TB2}, 1\ns_lshl_b32 {SFO}, {SFO}, 7\ns_add_u32 {SFO}, {SFO}, 0x{WS_FLAGS + FL_O * 128:x}")
P(f"s_lshl_b32 {SXW}, {T2}, 13\ns_lshl_b32 {T3}, {KH}, 14\ns_add_u32 {SXW}, {SXW}, {T3}\ns_add_u32 {SXW}, {SXW}, 0x{L_XY:x}")
SXS = "s15"
P(f"s_cmp_eq_u32 {KH}, 0")
sel2(SXS, (L_XS0 - L_XY) & 0xffffffff, L_XS1 - L_XY - 16 * K)
P(f"s_mov_b32 s14, {RHOA}")
for g in list(range(8)) + list(range(11, 15)):
    r = f"s{36 + g}"
    P(f"s_add_u32 {r}, {RHO2 if g < 8 else RHOS}, {g % 11}\ns_and_b32 {r}, {r}, {7 if g < 8 else 3}\ns_lshl_b32 {r}, {r}, 13\ns_add_u32 {r}, {r}, {SBASE}")
    if g >= 11:
        P(f"s_add_u32 {r}, {r}, {86 * K}")
P(f"s_add_u32 s14, s14, {KH}")
for n in range(16, 22):
    r = f"s{8 + n - 16}"
    P(f"s_add_u32 {r}, s14, {2 * (n - 16)}\ns_cmp_ge_u32 {r}, 11\ns_cselect_b32 {T3}, 11, 0\ns_sub_u32 {r}, {r}, {T3}")
    P(f"s_sub_u32 {r}, {r}, {KH}\ns_add_u32 {r}, {r}, {32 - 2 * (n % 2)}\ns_lshl_b32 {r}, {r}, 11\ns_add_u32 {r}, {r}, {SBASE}")
P(f"s_mov_b32 s74, 0x{f2u(1e-6):x}\ns_mov_b32 s75, 0x{f2u(1e-6):x}")
P(f"s_mov_b32 {T2}, 0x3f803f80")
P("v_mov_b32 v40, 0\nv_mov_b32 v41, 0\nv_mov_b32 v42, 0\nv_mov_b32 v43, 0")
stamp(0, "pre")
P("s_waitcnt vmcnt(2)" if OPT["touch"] == 9 else "s_waitcnt vmcnt(0)")
stamp(0, "xin")
for n in range(8):
    P(f"v_dot2_f32_bf16 {v(40 + (n & 1))}, {v(32 + n)}, {T2}, {v(40 + (n & 1))}")
    P(f"v_dot2_f32_bf16 {v(42 + (n & 1))}, {v(32 + n)}, {v(32 + n)}, {v(42 + (n & 1))}")
P("s_nop 2")
P("v_add_f32 v40, v40, v41\nv_add_f32 v42, v42, v43")
for r in (8, 4, 2, 1):
    P(f"v_add_f32_dpp v40, v40, v40 row_ror:{r} row_mask:0xf bank_mask:0xf")
    P(f"v_add_f32_dpp v42, v42, v42 row_ror:{r} row_mask:0xf bank_mask:0xf")
P("v_mov_b32 v41, v40\nv_mov_b32 v43, v42")
P("v_permlane16_swap_b32 v40, v41\nv_permlane16_swap_b32 v42, v43")
P("v_add_f32 v40, v40, v41\nv_add_f32 v42, v42, v43")
P(f"v_mul_f32 v40, 0x{f2u(1 / 512):x}, v40\nv_mul_f32 v42, 0x{f2u(1 / 512):x}, v42")
P("v_fma_f32 v42, -v40, v40, v42\nv_max_f32 v42, 0, v42")
P(f"v_cvt_pk_bf16_f32 v42, v42, v42\nv_and_b32 v42, 0xffff0000, v42\nv_add_f32 v42, 0x{f2u(1e-5):x}, v42")
P("v_cvt_pk_bf16_f32 v42, v42, v42\nv_and_b32 v42, 0xffff0000, v42\nv_sqrt_f32 v42, v42")
P("v_cvt_pk_bf16_f32 v44, v40, v42")
P("v_lshlrev_b32 v28, 3, v26")
P(f"s_lshl_b32 {T0}, {T0}, 3\ns_add_u32 {T0}, {T0}, 0x{WS_STATS:x}")
P("s_waitcnt lgkmcnt(0)")
P(f"s_add_u32 {NONCE}, {NONCE}, 1")
XTAG = "s78"
P(f"s_getreg_b32 {XTAG}, hwreg(HW_REG_XCC_ID, 0, 4)\ns_lshl_b32 {XTAG}, {XTAG}, 28\ns_xor_b32 {XTAG}, {XTAG}, {NONCE}")
P(f"v_mov_b32 v45, {XTAG}\nv_mov_b32 v5, {NONCE}\nv_mov_b32 v46, 0x{L_TAG:x}")
P("ds_write_b32 v46, v5")
P("s_mov_b32 exec_lo, 1\ns_mov_b32 exec_hi, 1")
if not OPT["nst"] & 1:
    P(f"buffer_store_dwordx2 v[44:45], v28, {rWS}, {T0} offen {OPT['saux'] or ''}")
P("s_mov_b64 exec, -1")
P("v_lshlrev_b32 v26, 3, v27\nv_lshlrev_b32 v27, 3, v0")
P(f"s_lshl_b32 {T0}, {W}, 8\ns_add_u32 {T0}, {T0}, 0x{L_CSX:x}")
P(f"v_lshl_add_u32 v28, v0, 2, {T0}")
P(f"v_add_u32 v29, 0x{L_EX1:x}, v27")
GLOAD = f"buffer_load_dwordx2 {v(GR, 2)}, v26, {rWS}, {SG} offen sc1"
CSIG, CPK, CPC = 30, 31, 3
P(f"s_lshl_b32 {T0}, {W}, 2\ns_add_u32 {T0}, {T0}, 0x{L_PRG:x}\nv_mov_b32 {v(CSIG)}, {T0}")
P(f"v_and_b32 {v(CPK)}, 3, v0\nv_lshlrev_b32 {v(CPK)}, 2, {v(CPK)}\nv_add_u32 {v(CPK)}, 0x{L_RDY:x}, {v(CPK)}")
signal(CSIG, 46, 0)
lg.drain()
stamp(0, "stats")


def p1_x(st, t):
    if OPT["nocomp"]:
        return
    sl = st % 3
    P(f"ds_read_b128 {v(XR + 16 * st + 4 * t, 4)}, {v(XA + t + (4 if sl == 2 else 0))} offset:{(sl % 2) * 32 * K}")
    lg.add(("x", st, t))


def p1_w(st, t, b):
    if OPT["nocomp"]:
        return
    sl = st % 3
    a = WA + (b & 1) + (2 if sl == 2 else 0)
    off = (sl % 2) * 32 * K + 16 * K + (b >> 1) * 8 * K + t * 2048
    f = WR + ((t & 1) * 4 + b) * 4
    tr(f, a, off, None)
    tr(f + 2, a, off + 512, ("w", st, t, b))


def p1_m(st, t, b):
    if OPT["nocomp"]:
        return
    lg.wait(("x", st, t))
    lg.wait(("w", st, t, b))
    f = WR + ((t & 1) * 4 + b) * 4
    c = "0" if (st == 0 and t == 0) else v(ACC + 16 * b, 16)
    P(f"v_mfma_f32_32x32x16_bf16 {v(ACC + 16 * b, 16)}, {v(f, 4)}, {v(XR + 16 * st + 4 * t, 4)}, {c}")


P("s_barrier ; b0")
stamp(0, "b0")
if OPT["p2only"]:
    P("s_branch L_c2")
p1_x(0, 0)
for b in range(4):
    p1_w(0, 0, b)
for st in range(8):
    for t in range(3):
        for b in range(4):
            p1_m(st, t, b)
            if b == 0:
                p1_x(st, t + 1)
            p1_w(st, t + 1, b)
    p1_m(st, 3, 0)
    if st == 1:
        P("ds_read_b32 v4, v28")
        lg.add(None)
    p1_m(st, 3, 1)
    if st == 6:
        P(GLOAD)
    lg.drain()
    P(f"s_barrier ; b{st + 1}")
    if st < 7:
        p1_x(st + 1, 0)
        p1_w(st + 1, 0, 0)
        p1_w(st + 1, 0, 1)
        p1_m(st, 3, 2)
        if st == 1 and not OPT["nst"] & 2:
            P(f"buffer_store_dwordx2 v[4:5], v27, {rWS}, {SCS2} offen {OPT['saux'] or ''}")
        if st == OPT["touch"] - 1:
            P(f"buffer_load_dword v8, v6, {rW2}, 0 offen\nbuffer_load_dword v9, v7, {rWO}, 0 offen")
        p1_w(st + 1, 0, 2)
        p1_w(st + 1, 0, 3)
        p1_m(st, 3, 3)
    else:
        for b in range(4):
            P(f"ds_read_b64 {v(WR + 2 * b, 2)}, v29 offset:{512 * b}")
            lg.add(("ex", b))
        p1_m(st, 3, 2)
        p1_m(st, 3, 3)
stamp(0, "b8")
if OPT["p1only"]:
    dump(0)
    P("s_endpgm")
    DIAG = 0
GCHK = f"v_xor_b32 v27, {XTAG}, {v(GR + 1)}\nv_lshlrev_b32 v28, 4, v27\nv_cmp_ne_u32 vcc, 0, v28"
P("s_waitcnt vmcnt(0)")
P(GCHK)
retry("L_gr", GLOAD, GCHK)
P(f"v_cmp_ne_u32 vcc, 0, v27\ns_or_b32 {T0}, vcc_lo, vcc_hi\nv_mov_b32 v27, {T0}\ns_mov_b64 exec, 1")
P(f"ds_write_b32 {v(CSIG)}, v27 offset:{L_FAST - L_PRG}\ns_mov_b64 exec, -1")
lg.add(None)
P(f"s_mov_b32 {T0}, 0x01000100")
P(f"v_perm_b32 {v(XE)}, {v(GR)}, {v(GR)}, {T0}")
P(f"v_xor_b32 {v(XE)}, 0x80008000, {v(XE)}")
P(f"v_lshrrev_b32 {v(XE + 1)}, 16, {v(GR)}")
P(f"v_and_b32 {v(SD)}, 0xffff0000, {v(GR)}")
P(f"v_rcp_f32 {v(RS)}, {v(SD)}")
for b in range(4):
    lg.wait(("ex", b))
    P(f"v_mfma_f32_32x32x8bf16_1k {v(ACC + 16 * b, 16)}, {v(WR + 2 * b, 2)}, {v(XE, 2)}, {v(ACC + 16 * b, 16)}")
LOG2E = 1.4426950408889634
C1 = -2 * LOG2E * math.sqrt(2 / math.pi)
C2 = C1 * 0.044715
P(f"v_mul_f32 {v(K1)}, 0x{f2u(C1):x}, {v(RS)}")
P(f"v_mul_f32 {v(K2)}, {v(RS)}, {v(RS)}\nv_mul_f32 {v(K2)}, {v(K2)}, {v(RS)}\nv_mul_f32 {v(K2)}, 0x{f2u(C2):x}, {v(K2)}")
P(f"v_mul_f32 {v(RL)}, 0x{f2u(LOG2E):x}, {v(RS)}")
for r in (K1, K2, SD, RS, RL):
    P(f"v_mov_b32 {v(r + 1)}, {v(r)}")
stamp(0, "ex1")

TT, UU = 32, 48


def pairs(fmt, a):
    for p in range(8):
        P(fmt.format(T=v(TT + 2 * p, 2), A=v(a + 2 * p, 2)))


def singles(fmt):
    for r in range(16):
        P(fmt.format(T=v(TT + r)))


def cvt(dst, src=TT):
    for p in range(8):
        P(f"v_cvt_pk_bf16_f32 {v(dst + p)}, {v(src + 2 * p)}, {v(src + 2 * p + 1)}")


def epi_gelu(b, base, k, rdy=None):
    a = ACC + 16 * b
    if rdy:
        peek(CPK, 28)
    pairs("v_pk_mul_f32 {T}, {A}, {A}", a)
    pairs("v_pk_fma_f32 {T}, {T}, %s, %s" % (v(K2, 2), v(K1, 2)), a)
    pairs("v_pk_mul_f32 {T}, {T}, {A}", a)
    singles("v_exp_f32 {T}, {T}")
    pairs("v_pk_fma_f32 {T}, {T}, %s, %s" % (v(SD, 2), v(SD, 2)), a)
    singles("v_rcp_f32 {T}, {T}")
    pairs("v_pk_mul_f32 {T}, {T}, {A}", a)
    cvt(a)
    if rdy:
        await_(CPK, 28, rdy, peeked=True)
    for h in range(2 if not OPT["nods"] else 0):
        P(f"ds_write_b128 v26, {v(a + 4 * h, 4)} offset:{base - L_HS + (2 * b + h) * 4096}")
        lg.add(None)
    signal(CSIG, 27, k)


def epi_phi(b, dst):
    a = ACC + 16 * b
    pairs("v_pk_mul_f32 {T}, {A}, %s" % v(RL, 2), a)
    singles("v_exp_f32 {T}, {T}")
    pairs("v_pk_fma_f32 {A}, {A}, %s, 1.0 op_sel_hi:[1,1,0]" % v(RS, 2), a)
    for r in range(16):
        P(f"v_med3_f32 {v(TT + r)}, {v(TT + r)}, {v(a + r)}, 1.0")
    pairs("v_pk_add_f32 {T}, {T}, %s" % EPS2, a)
    cvt(dst)


def epi_lin(b, dst):
    a = ACC + 16 * b
    pairs("v_pk_mul_f32 {T}, {A}, %s" % v(RS, 2), a)
    cvt(dst)


AY, AS, AR = 64, 160, 128
RG = OPT["ring"]
NST = 30
WB, VA, FD, VF, XW, CPC2, TA, TB_, TC, XW2 = 96, 102, 104, 106, 108, 112, 113, 114, 115, 116
FHB = f"buffer_load_dword {v(FD)}, {v(VF)}, {rWS}, {SFHB} offen sc1"
FHA = f"buffer_load_dword {v(FD)}, {v(VF)}, {rWS}, {SFHA} offen sc1"
FO = f"buffer_load_dword {v(FD + 1)}, {v(VF + 1)}, {rWS}, {SFO} offen sc1"
HBC = f"v_cmp_ne_u32 vcc, {NONCE}, {v(FD)}"
vm = Q("vmcnt", 63)


def aload(n, ks):
    if n >= NST or (OPT["noa"] and n >= RG):
        return
    P(f"buffer_load_dwordx4 {v(AR + 8 * (n % RG) + 4 * ks, 4)}, {v(VA + n % 2)}, {rWS}, s{36 + (n >> 1) if not 16 <= n < 22 else 8 + n - 16} offen offset:{1024 * ks} {OPT['aaux'] or ''}")
    vm.add(("a", n, ks))


def prime():
    for n in range(RG):
        aload(n, 0)
        aload(n, 1)


nchk = [0]
def checkpoint():
    if not OPT["early"]:
        return
    nchk[0] += 1
    l = f"L_ck{nchk[0]}"
    P(f"s_getreg_b32 {T3}, hwreg(HW_REG_IB_STS, 0, 4)\ns_or_b32 {T3}, {T3}, {PRIMED}\ns_cbranch_scc1 {l}_x")
    P(f"s_waitcnt vmcnt(0)\n{HBC}\ns_cbranch_vccnz {l}_r")
    prime()
    P(f"s_mov_b32 {PRIMED}, 1")
    P.label(l + "_x")
    cold.append(f"{l}_r:\n{FHB}\ns_branch {l}_x")


def setup2():
    global P
    keep, P = P, Prog()
    P(f"v_and_b32 {v(VF + 1)}, 31, v0\nv_lshlrev_b32 {v(VF + 1)}, 2, {v(VF + 1)}\nv_and_b32 {v(VF)}, 28, {v(VF + 1)}")
    waddr(WB, TA, TB_, 2)
    P(f"v_add_u32 {v(WB)}, {SK12}, {v(WB)}\nv_xor_b32 {v(WB + 1)}, 64, {v(WB)}")
    for k in (1, 2):
        P(f"v_add_u32 {v(WB + 2 * k)}, 0x{64 * K * k:x}, {v(WB)}\nv_add_u32 {v(WB + 2 * k + 1)}, 0x{64 * K * k:x}, {v(WB + 1)}")
    P(f"v_lshrrev_b32 {v(TA)}, 1, {SK12}\nv_add_u32 {v(VA)}, {v(TA)}, {v(VH)}\nv_add_u32 {v(VA + 1)}, 0x1000, {v(VA)}")
    P(f"v_lshrrev_b32 {v(TA)}, 5, v0\nv_and_b32 {v(TB_)}, 7, v0\nv_xor_b32 {v(TA)}, {v(TA)}, {v(TB_)}\nv_lshlrev_b32 {v(TA)}, 4, {v(TA)}")
    P(f"v_and_b32 {v(TB_)}, 31, v0\nv_lshl_or_b32 {v(TA)}, {v(TB_)}, 8, {v(TA)}\nv_add_u32 {v(XW)}, {SXW}, {v(TA)}")
    for q in range(1, 4):
        P(f"v_xor_b32 {v(XW + q)}, {32 * q}, {v(XW)}")
    P(f"v_add_u32 {v(CPC2)}, 16, {v(CPK)}")
    for q in range(4):
        P(f"v_add_u32 {v(XW2 + q)}, {SXS}, {v(XW + q)}")
    lines, P = P.lines, keep
    return lines


def pass2(nb):
    side = setup2()
    n = 32 * nb
    def rd(m):
        if m >= n:
            return
        step, b = divmod(m, nb)
        off = CH(step >> 2) - 88 * K + (step & 3) * 2048
        f = WR + (m % 8) * 4
        tr(f, WA + 4 + b, off, None)
        tr(f + 2, WA + 4 + b, off + 512, ("p2", m))
    for m in range(7):
        rd(m)
    for m in range(n):
        step, b = divmod(m, nb)
        lg.wait(("p2", m))
        c = "0" if step == 0 else v(ACC + 16 * b, 16)
        P(f"v_mfma_f32_32x32x16_bf16 {v(ACC + 16 * b, 16)}, {v(WR + (m % 8) * 4, 4)}, {v(XR + 4 * step, 4)}, {c}")
        rd(m + 7)
        for _ in range(2 if nb == 1 else 1):
            if side and m >= 2:
                P(side.pop(0))
        if (m + 1) % (8 * nb) == 0 and m + 1 < n:
            signal(CSIG, 27, 4 + (m + 1) // (8 * nb))
        if m == max(6, n - OPT["smp"]):
            P(FHB)
        if m == n - 6:
            for bb in range(nb):
                lg.room()
                P(f"ds_read_b64 {v(16 + 2 * bb, 2)}, v29 offset:{L_EX2 - L_EX1 + 512 * bb}")
                lg.add(("ex2", bb))
    assert not side
    checkpoint()
    lg.drain()
    signal(CSIG, 27, 8)
    for b in range(nb):
        P(f"v_mfma_f32_32x32x8bf16_1k {v(ACC + 16 * b, 16)}, {v(16 + 2 * b, 2)}, {v(XE, 2)}, {v(ACC + 16 * b, 16)}")


P(f"s_cmp_eq_u32 {TYPE}, 0")
P("s_cbranch_scc0 L_cB")
P(f"v_and_b32 v26, 31, v0\nv_lshrrev_b32 v27, 5, v0\ns_lshl_b32 {T0}, {W}, 5")
P(f"v_add_u32 v26, {T0}, v26\nv_mul_u32_u24 v26, {TROW}, v26\nv_lshl_add_u32 v26, v27, 3, v26\nv_add_u32 v26, 0x{TBUF:x}, v26")
for b in range(4):
    u = UU + 8 * (b & 1)
    (epi_phi if b < 2 else epi_lin)(b, u)
    for q in range(4):
        P(f"ds_write_b64 v26, {v(u + 2 * q, 2)} offset:{64 * b + 16 * q}")
P(f"v_lshrrev_b32 v26, 2, v0\nv_mul_u32_u24 v26, {TROW}, v26\nv_and_b32 v27, 3, v0\nv_lshl_add_u32 v26, v27, 3, v26")
P(f"s_add_u32 {T0}, {T0}, 0x{TBUF:x}")
P(f"v_add_u32 v26, {T0}, v26")
for r in range(4):
    P(f"v_mov_b32 {v(104 + r)}, 0x3f803f80")
P(f"s_lshl_b32 {T0}, {C_}, 4\ns_add_u32 {T0}, {T0}, {I_}\ns_mul_i32 {T0}, {T0}, {KVP_STR}\ns_add_u32 {T0}, {T0}, 0x{WS_KVP:x}")
P(f"s_lshl_b32 {T1}, {W}, 10\ns_add_u32 {T1}, {T1}, {T0}")
P(f"s_lshl_b32 {T2}, {W}, 6\ns_add_u32 {T2}, {T2}, {T0}\ns_add_u32 {T2}, {T2}, 4096")
signal(CSIG, 27, 1)
P(f"v_add_u32 {v(CPC)}, 16, {v(CPK)}")
lg.q = []
await_(CPC, 27, 1)
stamp(0, "e1")
def kvm(mm):
    lg.wait(("kv", mm, 1))
    P(f"v_mfma_f32_16x16x32_bf16 v[96:99], {v(ACC + 8 * mm, 4)}, {v(ACC + 8 * mm + 4, 4)}, {'0' if mm == 0 else 'v[96:99]'}")
    P(f"v_mfma_f32_16x16x32_bf16 v[100:103], {v(ACC + 8 * mm, 4)}, v[104:107], {'0' if mm == 0 else 'v[100:103]'}")
for m in range(4):
    for o in range(2):
        f = ACC + 8 * m + 4 * o
        tr(f, 26, m * 32 * TROW + 128 * o, None)
        tr(f + 2, 26, (m * 32 + 16) * TROW + 128 * o, ("kv", m, o))
    if m >= 2:
        kvm(m - 2)
kvm(2)
kvm(3)
P(f"v_mov_b32 v104, {NONCE}")
for h in range(4):
    P(f"s_mov_b32 {T0}, 0x0706050{h}")
    P(f"v_perm_b32 {v(96 + h)}, {v(96 + h)}, v104, {T0}\nv_perm_b32 {v(100 + h)}, {v(100 + h)}, v104, {T0}")
P(f"buffer_store_dwordx4 v[96:99], {v(VH)}, {rWS}, {T1} offen sc1")
P("s_mov_b32 exec_lo, 0x00010001\ns_mov_b32 exec_hi, 0x00010001")
P(f"buffer_store_dwordx4 v[100:103], v0, {rWS}, {T2} offen sc1")
P("s_mov_b64 exec, -1")
signal(CSIG, 27, 2)
await_(CPK, 27, 1)
stamp(0, "b10")
P("s_branch L_p2")
P.label("L_cB")
lg.q = []
P(f"s_lshl_b32 {T0}, {W}, 10\ns_add_u32 {T0}, {T0}, 0x{L_HS:x}")
P(f"v_add_u32 v26, {T0}, {v(VH)}")
for b in range(4):
    if b == 3:
        peek(CPK, 28)
    epi_gelu(b, L_HS, b + 1)
    if "st0" in OPT:
        stamp(0, f"g{b}")
stamp(0, "e1")
await_(CPK, 28, 1, peeked=True)
stamp(0, "b10")
P(f"s_cmp_lt_u32 {C_}, 3")
P("s_cbranch_scc1 L_p2")
lg.q = [None] * 3
pass2(1)
stamp(0, "p2")
epi_gelu(0, L_PQ, 10, 2)
stamp(0, "e2")
P("s_branch L_c2")
P.label("L_p2")
lg.q = [None] * 3
pass2(2)
stamp(0, "p2")
P(f"s_cmp_eq_u32 {TYPE}, 0")
P("s_cbranch_scc0 L_cB2")
P(f"s_lshl_b32 {T0}, {W}, 12\ns_add_u32 {T0}, {T0}, 0x{L_PQ:x}")
P(f"v_add_u32 v26, {T0}, {v(VH)}")
for b in range(2):
    epi_phi(b, UU + 8 * b)
    for h in range(2):
        P(f"ds_write_b128 v26, {v(UU + 8 * b + 4 * h, 4)} offset:{(2 * b + h) * 1024}")
    if b == 0:
        checkpoint()
signal(CSIG, 27, 10)
stamp(0, "e2")
P("s_branch L_c2")
P.label("L_cB2")
lg.q = [None]
epi_gelu(0, L_PQ, 9, 2)
checkpoint()
epi_gelu(1, L_PQ, 10)
stamp(0, "e2")
P.label("L_c2")
stamp(0, "c2")
stamp(0, "setup")
P(f"s_cmp_lg_u32 {PRIMED}, 0\ns_cbranch_scc1 L_primed")
if not OPT["p2only"]:
    P(f"s_waitcnt vmcnt(0)\n{HBC}")
    retry("L_hb", FHB, HBC)
stamp(0, "hb_seen")
prime()
P.label("L_primed")
vm.q = [("a", n, ks) for n in range(RG) for ks in range(2)]


def wrd(m):
    n, ks, ct = m >> 2, (m >> 1) & 1, m & 1
    if n >= NST:
        return
    ev = {OPT["gx"]: 4, 76: 5, 88: 6}
    if m + 5 in ev:
        peek(CPK, 20)
    if m == OPT["g2"]:
        signal(CSIG, 21, 12)
    if m == 72:
        signal(CSIG, 21, 13)
    if m == 93:
        peek(CPC2, 19)
    if m in ev:
        if m == OPT["gx"]:
            signal(CSIG, 21, 11)
        await_(CPK, 20, ev[m], peeked=True)
    so = slot_of(2 * n) + ks * 2048
    k = so // (64 * K)
    f = WR + (m % 8) * 4
    if OPT["now"] and m >= 8:
        return
    tr(f, WB + 2 * k + ct, so - 64 * K * k, None)
    tr(f + 2, WB + 2 * k + ct, so - 64 * K * k + 1024, ("w2", m))


def xwrite(acc, base, ct, q):
    lg.room()
    P(f"ds_write_b128 {v(base + q)}, {v(acc + 16 * ct + 4 * q, 4)} offset:{128 * ct}")
    lg.add(("xw", acc))


lg.q = []
stamp(0, "primed")
await_(CPK, 20, 3)
for m in range(7):
    wrd(m)
for n in range(NST):
    acc = AY if n < 22 else AS
    if n == 21:
        P(f"s_cmp_eq_u32 {KH}, 0")
    for k4 in range(4):
        m = 4 * n + k4
        ks, ct = k4 >> 1, k4 & 1
        w = vm.need(("a", n, ks)) + " " + (lg.need(("w2", m | 1)) if OPT["w2"] else "") + lg.need(("w2", m))
        if w.strip():
            P("s_waitcnt " + w.strip())
        c = "0" if (n in (0, 22) and ks == 0) else v(acc + 16 * ct, 16)
        if n == 21:
            P(f"s_cbranch_scc0 L_null{k4}")
        P(f"v_mfma_f32_32x32x16_bf16 {v(acc + 16 * ct, 16)}, {v(WR + (m % 8) * 4, 4)}, {v(AR + 8 * (n % RG) + 4 * ks, 4)}, {c}")
        if n == 21:
            P.label(f"L_null{k4}")
        if k4 == 1:
            for nn, ld, fd, nm in ((16, FHA, FD, "ha"), (22, FO, FD + 1, "o")):
                if n == nn - RG - 4:
                    P(ld)
                    vm.add("f")
                if n == nn - RG and not OPT["p2only"]:
                    vm.wait("f")
                    P(f"v_cmp_ne_u32 vcc, {NONCE}, {v(fd)}")
                    retry("L_" + nm, ld, f"v_cmp_ne_u32 vcc, {NONCE}, {v(fd)}")
                    stamp(0, nm + "_seen")
        if ct == 1:
            aload(n + RG, ks)
        wrd(m + 7)
        if m == 91:
            await_(CPC2, 19, 13, peeked=True)
        if m >= 91 and (m - 91) % OPT["ys"] == 0 and (m - 91) // OPT["ys"] < 8:
            xwrite(AY, XW, ((m - 91) // OPT["ys"]) >> 2, ((m - 91) // OPT["ys"]) & 3)
        if m == 91 + 7 * OPT["ys"] + OPT["dy"]:
            lg.wait(("xw", AY))
            P("s_barrier ; dY")
    if "st0" in OPT:
        stamp(0, f"n{n}")
stamp(0, "sdone")
for ct in range(2):
    for q in range(4):
        xwrite(AS, XW2, ct, q)
lg.drain()
P("s_barrier ; dS")
P(f"s_or_b32 {T0}, s2, {W}\ns_cmp_eq_u32 {T0}, 0")
P("s_cbranch_scc0 L_cend")
flag_store(T0)
P.label("L_cend")
dump(0)
P("s_endpgm")
flush_cold()
P.label("L_codeend")

body = P.finish()
hdr = f"""; Fused LayerNorm + linear attention + GELU FFN block, one persistent launch (256 workgroups, one per CU).
; @launch grid=(256,1,1) block=(512,1,1) lds=163840
.amdgcn_target "amdgcn-amd-amdhsa--gfx950"
.text
.globl {KNAME}
.p2align 8
.type {KNAME},@function
{KNAME}:
"""
tail = f"""
.section .rodata,"a"
.p2align 6
.amdhsa_kernel {KNAME}
  .amdhsa_next_free_vgpr 256
  .amdhsa_next_free_sgpr 102
  .amdhsa_accum_offset 256
  .amdhsa_group_segment_fixed_size 0
  .amdhsa_kernarg_size 88
  .amdhsa_user_sgpr_count 2
  .amdhsa_user_sgpr_kernarg_segment_ptr 1
  .amdhsa_system_sgpr_workgroup_id_x 1
  .amdhsa_float_denorm_mode_32 3
.end_amdhsa_kernel
"""
if OPT["diag"]:
    tail += f"; STAMPS0 {' '.join(slots[0])}\n"
sys.stdout.write(hdr + body + tail)
sys.stderr.write(f"pads {P.npad}\n")
```

```python
import sys, os, struct, math
from asmlib import Prog, v, s

KNAME = "recurrent_scan__linear_attn_block__dense_activation_gelu__prompt_kernel"
OPT = dict(diag=0, outaux="sc1", map1=81, spin=16, codepf=1, ldfirst=1, prio=1,
           nA9=3, nA10=7, nB10=8, mf=56, cprio=3, gx=36, n6=2, n7=1, kA=12, lag=8, sp=0, sp0=0, nost=0, slp=4, kvw=0, gprio=3, sA=4, xB=8, fast=1, nt1=2, trow=272, nosamp=0, e1B=4, iB2=2, e1A=20, gd=16, lB2=10, lB1=0, cw=1, tlb=0, fill=0, f1=0, f2=9, fo=0, wsoff=0, quiet=0, nosig=0, noside=0, nt2=2, wb=0, lB=0, hk1=0, lA0=8, lA=3, kq=2, wbj=0, kA0=12, kA1=8, kA2=0, rotx=1, spx=0, pB=10, iB=0, ring=4, nods=0, lsl=0, yB=12, zB=4, yB1=2, zB1=4, aaux="sc1", ahot=0, g2=52, rot2=1, pace=0, pace1=0, dy=4, ys=2, w2=1, p2only=0, plain=0, stouch=0, nst=0, saux="sc1", csprio=3, early=0, map2=81, smp=28, noa=0, now=0, la=7, touch=5, stdiag=0, p1only=0, nocomp=0, norot=0, noload=0, nocs=0)
for a in sys.argv[1:]:
    k, val = a.split("=")
    OPT[k] = val if not val.lstrip("-").isdigit() else int(val)
DIAG = OPT["diag"]
assert OPT["gx"] <= 36


def f2u(x):
    return struct.unpack("<I", struct.pack("<f", x))[0]


K = 1024
WS_STATS = 0x1000
WS_FLAGS = 0x8000
FL_HB, FL_HA, FL_O, FL_KV = 0, 64, 128, 192
WS_KVP = 0x10000
KVP_STR = 4352
WS_CS = 0xA0000
WS_HA = 0x140000 + OPT["wsoff"] * 0x100000
TB_STRIDE = 118 * K
WS_DIAG = 0x900000
WS_SIZE = 0xA00000 + OPT["wsoff"] * 0x100000
def CH(q):
    return 96 * K + 8 * K * q if q < 7 else 88 * K
TBUF = 52 * K
TROW = OPT["trow"]
L_EX1 = 152 * K
L_CSX = 156 * K
L_RDY = 154 * K
L_PRG = L_RDY + 16
L_TAG = L_RDY + 32
L_FAST = L_RDY + 48
L_EX2 = 155 * K
L_KT = 156 * K
L_PQ = 72 * K
L_HS = 52 * K
L_XY = 112 * K
L_XS0, L_XS1 = 72 * K, 144 * K
def slot_of(p):
    if p < 18:
        return p * 4 * K
    if p < 34:
        return CH((p - 18) >> 1) + (p & 1) * 4 * K
    if p < 38:
        return 72 * K + (p - 34) * 4 * K
    return slot_of(p - 38)

rX, rP1, rP2, rWS, rW2, rWO, rA, rB = (s(n, 4) for n in (4, 8, 12, 16, 20, 24, 28, 32))
P_X, P_QKV, P_WO, P_W1, P_B1, P_W2, P_B2, P_OUT, P_WS = 36, 38, 40, 44, 46, 48, 50, 52, 56
NONCE, W, I_, J_, C_, TYPE, RHO, TB2, CT, RHO2 = (s(n) for n in range(58, 68))
T0, T1, T2, T3 = (s(n) for n in range(68, 72))

P = Prog()


class Q:
    def __init__(self, name, mx):
        self.q, self.name, self.mx = [], name, mx

    def room(self):
        if len(self.q) >= self.mx:
            P(f"s_waitcnt {self.name}({self.mx - 1})")
            self.q = self.q[len(self.q) - (self.mx - 1):]

    def add(self, tag=None):
        self.q.append(tag)

    def need(self, tag):
        if tag not in self.q:
            return ""
        idx = max(i for i, t in enumerate(self.q) if t == tag)
        n = len(self.q) - 1 - idx
        assert n <= self.mx, (self.name, n)
        self.q = self.q[idx + 1:]
        return f"{self.name}({n})"

    def wait(self, tag):
        t = self.need(tag)
        if t:
            P("s_waitcnt " + t)

    def drain(self, force=False):
        if self.q or force:
            P(f"s_waitcnt {self.name}(0)")
        self.q = []


slots = [{}, {}]
def stamp(role, name):
    if not DIAG:
        return
    want = str(OPT.get(f"st{role}", "")).split(",")
    if want != [""] and name not in want and name not in ("start", "end"):
        return
    n = slots[role].setdefault(name, len(slots[role]))
    if DIAG >= 3:
        assert n < 9, (role, name)
        P(f"{'s_memtime' if DIAG == 4 else 's_memrealtime'} s[{80 + 2 * n}:{81 + 2 * n}]")
        return
    assert n < 16, (role, name)
    P(f"{'s_memtime' if DIAG == 2 else 's_memrealtime'} s[96:97]\ns_waitcnt lgkmcnt(0)\ns_mov_b32 s{80 + n}, s96")


def sreg(r):
    return int(r[2:r.index(":")])


def srd(r, ptr, size):
    n = sreg(r)
    P(f"s_mov_b32 s{n}, s{ptr}\ns_mov_b32 s{n+1}, s{ptr+1}\ns_mov_b32 s{n+2}, 0x{size:x}\ns_mov_b32 s{n+3}, 0x20000")


def sel2(dst, a, b):
    P(f"s_mov_b32 {dst}, 0x{b:x}\ns_cmov_b32 {dst}, 0x{a:x}")


cold = []


def flush_cold():
    for t in cold:
        P(t)
    cold.clear()


def spin_text(lbl, load, check):
    t = f"s_mov_b32 {T3}, {1 << OPT['spin']}\n{lbl}:\n{load}\ns_waitcnt vmcnt(0)\n{check}\n"
    t += f"s_sub_u32 {T3}, {T3}, 1\ns_cbranch_scc1 {lbl}_x\ns_cbranch_vccz {lbl}_x\n"
    if OPT["slp"]:
        t += f"s_sleep {OPT['slp']}\n"
    return t + f"s_branch {lbl}"


def spin(lbl, load, check):
    P(spin_text(lbl, load, check))
    P.label(lbl + "_x")


def retry(lbl, load, check):
    P(f"s_cbranch_vccnz {lbl}_s")
    P.label(lbl + "_x")
    cold.append(f"{lbl}_s:\n" + spin_text(lbl, load, check))


HX = "row"
FAR = "s46"
nrow = [0]
def row_store(text, nt=0):
    if not OPT["fast"] or nt == 2:
        P(text + " sc1")
        return
    nrow[0] += 1
    l = f"L_r{nrow[0]}"
    P(f"s_cmp_lg_u32 {FAR}, 0\ns_cbranch_scc1 {l}\n{text} {'nt' if nt else ''}\n{l}_x:")
    cold.append(f"{l}:\n{text} sc1\ns_branch {l}_x")


def flag_store(sreg_off, va=26, aux="sc1"):
    P(f"v_mov_b32 {v(va)}, {NONCE}\nv_mov_b32 {v(va+1)}, 0")
    P("s_mov_b64 exec, 1")
    if aux == "row":
        row_store(f"buffer_store_dword {v(va)}, {v(va+1)}, {rWS}, {sreg_off} offen")
    else:
        P(f"buffer_store_dword {v(va)}, {v(va+1)}, {rWS}, {sreg_off} offen {aux}")
    P("s_mov_b64 exec, -1")


def signal(vaddr, vtmp, k):
    P(f"v_mov_b32 {v(vtmp)}, {k}\ns_mov_b64 exec, 1\nds_write_b32 {v(vaddr)}, {v(vtmp)}\ns_mov_b64 exec, -1")
    lg.add(None)


nwait = [0]
def peek(vaddr, vd):
    lg.room()
    P(f"ds_read_b32 {v(vd)}, {v(vaddr)}")
    lg.add(("peek", vd))


def await_(vaddr, vd, k, peeked=False):
    nwait[0] += 1
    lbl = f"L_w{nwait[0]}"
    if not peeked:
        peek(vaddr, vd)
    lg.wait(("peek", vd))
    P(f"v_cmp_gt_u32 vcc, {k}, {v(vd)}")
    P(f"s_cbranch_vccnz {lbl}_s")
    P.label(lbl + "_x")
    cold.append(f"{lbl}_s:\ns_mov_b32 {T3}, {1 << 20}\n{lbl}:\nds_read_b32 {v(vd)}, {v(vaddr)}\ns_waitcnt lgkmcnt(0)\n"
                f"v_cmp_gt_u32 vcc, {k}, {v(vd)}\ns_sub_u32 {T3}, {T3}, 1\ns_cbranch_scc1 {lbl}_x\ns_cbranch_vccz {lbl}_x\n"
                + (f"s_sleep {OPT['lsl']}\n" if OPT["lsl"] else "") + f"s_branch {lbl}")


def hblock2(dst):
    P(f"s_lshl_b32 {dst}, {C_}, 1\ns_add_u32 {T3}, {C_}, 3\ns_min_u32 {dst}, {dst}, {T3}\ns_add_u32 {dst}, {dst}, 32")


def waddr(dst, t1, t2, hshift):
    P(f"v_lshrrev_b32 {v(t1)}, 5, v0\nv_bfe_u32 {v(t2)}, v0, 2, 2\nv_lshl_add_u32 {v(t1)}, {v(t1)}, {hshift}, {v(t2)}")
    P(f"v_lshlrev_b32 {v(dst)}, 7, {v(t1)}")
    P(f"v_bfe_u32 {v(t1)}, v0, 3, 1\nv_lshl_or_b32 {v(dst)}, {v(t1)}, 6, {v(dst)}")
    P(f"v_bfe_u32 {v(t1)}, v0, 4, 1\nv_lshl_or_b32 {v(dst)}, {v(t1)}, 5, {v(dst)}")
    P(f"v_and_b32 {v(t1)}, 3, v0\nv_lshl_or_b32 {v(dst)}, {v(t1)}, 3, {v(dst)}")


def tr(dst, addr, off, tag):
    assert 0 <= off < 65536, off
    lg.room()
    P(f"ds_read_b64_tr_b16 {v(dst, 2)}, {v(addr)} offset:{off}")
    lg.add(tag)


def dump(role):
    if not DIAG:
        return
    P("s_waitcnt vmcnt(0)")
    stamp(role, "end")
    P("s_waitcnt lgkmcnt(0)")
    for n in range(16):
        P(f"v_mov_b32 {v(32 + n)}, {s(80 + n) if DIAG < 3 else (s(80 + 2 * n) if n < 10 else ('s100' if n == 15 else 0))}")
    if role == 1 and DIAG >= 3 and OPT.get("xcc"):
        P(f"s_getreg_b32 {T0}, hwreg(HW_REG_XCC_ID, 0, 4)\ns_min_u32 {T1}, s46, 1\ns_lshl4_add_u32 {T0}, {T1}, {T0}\nv_mov_b32 v45, {T0}")
    P(f"s_lshl_b32 {T0}, s2, 3\ns_add_u32 {T0}, {T0}, {W}\ns_lshl_b32 {T0}, {T0}, 6\ns_add_u32 {T0}, {T0}, 0x{WS_DIAG + role * 256:x}")
    P("v_mov_b32 v26, 0\ns_mov_b64 exec, 1")
    for n in range(4):
        P(f"buffer_store_dwordx4 {v(32 + 4 * n, 4)}, v26, {rWS}, {T0} offen offset:{16 * n}")


P("s_cmp_ge_u32 s2, 256")
P("s_cbranch_scc1 L_end")
if DIAG >= 3:
    P("s_memrealtime s[100:101]")
P("s_load_dwordx16 s[36:51], s[0:1], 0")
P("v_lshrrev_b32 v1, 6, v0")
P("v_and_b32 v0, 63, v0")
P(f"v_lshlrev_b32 v2, 2, v1\nv_add_u32 v2, 0x{L_RDY:x}, v2\nv_mov_b32 v3, 0\nds_write_b32 v2, v3")
if OPT["map1"] == 81:
    P(f"s_lshr_b32 {T3}, s2, 7\nv_readfirstlane_b32 {T2}, v1\ns_and_b32 {I_}, s2, 7\ns_bfe_u32 {J_}, s2, 0x40003")
    P(f"s_lshl2_add_u32 {RHO}, {T3}, {J_}\ns_and_b32 {T1}, s2, 3\ns_lshl1_add_u32 {I_}, {I_}, {T3}\ns_add_u32 {RHO}, {RHO}, {T1}\ns_and_b32 {RHO}, {RHO}, 7")
elif OPT["map1"] == 24:
    P(f"s_lshr_b32 {T3}, s2, 5\nv_readfirstlane_b32 {T2}, v1\ns_and_b32 {I_}, s2, 4\ns_bfe_u32 {T1}, s2, 0x20003\ns_and_b32 {J_}, s2, 3")
    P(f"s_lshl1_add_u32 {I_}, {I_}, {T3}\ns_lshl2_add_u32 {J_}, {J_}, {T1}\ns_lshl1_add_u32 {RHO}, {T1}, {T3}\ns_and_b32 {T1}, s2, 1\ns_add_u32 {RHO}, {RHO}, {T1}\ns_and_b32 {RHO}, {RHO}, 7")
else:
    P(f"s_lshr_b32 {T3}, s2, 6\nv_readfirstlane_b32 {T2}, v1\ns_and_b32 {I_}, s2, 6\ns_bfe_u32 {T1}, s2, 0x30003\ns_and_b32 {J_}, s2, 1")
    P(f"s_lshl1_add_u32 {I_}, {I_}, {T3}\ns_lshl3_add_u32 {J_}, {J_}, {T1}\ns_lshl1_add_u32 {RHO}, {T3}, {T1}\ns_bfe_u32 {T1}, s2, 0x10001\ns_add_u32 {RHO}, {RHO}, {T1}\ns_and_b32 {RHO}, {RHO}, 7")
P(f"s_and_b32 {W}, {T2}, 3")
def late_args():
    P("s_load_dwordx4 s[52:55], s[0:1], 64")
    P("s_load_dwordx2 s[56:57], s[0:1], 80")
    P(f"s_lshr_b32 {C_}, {J_}, 1\ns_and_b32 {TYPE}, {J_}, 1")
def diag_init():
    if DIAG:
        for n in range(20):
            P(f"s_mov_b32 s{80 + n}, 0")


RHOS, RHOA = "s3", "s47"
def tile2():
    if OPT["map2"] == 42:
        P(f"s_lshr_b32 {T3}, s2, 5\ns_bfe_u32 {TB2}, s2, 0x20001\ns_lshl_b32 {TB2}, {TB2}, 3\ns_add_u32 {TB2}, {TB2}, {T3}")
        P(f"s_bfe_u32 {RHO2}, s2, 0x20003\ns_and_b32 {CT}, s2, 1\ns_lshl_b32 {CT}, {CT}, 2\ns_add_u32 {CT}, {CT}, {RHO2}")
        P(f"s_lshl_b32 {RHO2}, {RHO2}, 1\ns_add_u32 {RHO2}, {RHO2}, {T3}\ns_and_b32 {RHO2}, {RHO2}, 7")
        return
    P(f"s_lshr_b32 {T3}, s2, 6\ns_and_b32 {TB2}, s2, 7\ns_lshl_b32 {TB2}, {TB2}, 2\ns_add_u32 {TB2}, {TB2}, {T3}")
    P(f"s_bfe_u32 {CT}, s2, 0x30003\ns_lshl_b32 {RHO2}, {T3}, 1\ns_add_u32 {RHO2}, {RHO2}, {CT}\ns_and_b32 {RHO2}, {RHO2}, 7")
    P(f"s_add_u32 {RHOS}, {T3}, {CT}\ns_mul_i32 {RHOA}, {T3}, 3\ns_and_b32 {T3}, {CT}, 1\ns_add_u32 {RHOA}, {RHOA}, {T3}")
    if not OPT["rotx"]:
        P(f"s_mov_b32 {RHOS}, {RHO2}\ns_mov_b32 {RHOA}, 0")


P(f"s_cmp_lt_u32 {T2}, 4")
P("s_cbranch_scc1 L_loader")
late_args()
if OPT["codepf"]:
    P("s_getpc_b64 s[32:33]")
    P.label("L_pc")
    P("s_mov_b32 s34, L_codeend-L_pc\ns_mov_b32 s35, 0x20000")
    P(f"s_lshr_b32 {T0}, s2, 3\ns_lshl2_add_u32 {T1}, {T0}, {W}\ns_lshl_b32 {T1}, {T1}, 7\nv_and_b32 v4, 3, v0\nv_lshl_add_u32 v4, v4, 14, {T1}")
    P("buffer_load_dword v31, v4, s[32:35], 0 offen")
P("s_branch L_compute")
P.label("L_loader")

lg = Q("lgkmcnt", 15)
vm = Q("vmcnt", 63)
VX, VP1, VP2, VW2, VBI, LWA, LWB, VL16, SEL, CS, CS2 = 1, 2, 3, 4, 5, 6, 7, 8, 12, 16, 20
RS1, RS32, SX0, SW0, DCOL, SP20, SM, HB0L = (s(n) for n in range(72, 80))
if DIAG < 3:
    diag_init()
    stamp(1, "start")
P("v_lshrrev_b32 v24, 3, v0\nv_and_b32 v25, 7, v0\nv_lshrrev_b32 v26, 4, v0")
P(f"s_and_b32 {T0}, {W}, 1\ns_lshl_b32 {T0}, {T0}, 2\ns_lshl4_add_u32 {SX0}, {I_}, {W}")
P(f"v_add_u32 v27, {T0}, v26\nv_xor_b32 v27, v27, v25\nv_lshlrev_b32 v27, 4, v27\nv_lshl_or_b32 {v(VX)}, v24, 10, v27")
P(f"s_lshl_b32 {SX0}, {SX0}, 13\ns_lshl_b32 {SM}, {W}, 10")
P("s_mov_b32 s6, 0x200000\ns_mov_b32 s7, 0x20000")
SZQ, SZ1 = 512 * 3072, 512 * 2752


def wsetup():
    late_args()
    P(f"s_setprio {OPT['prio']}")
    P(f"s_lshl_b32 {T1}, {C_}, 7\ns_cmp_eq_u32 {TYPE}, 0")
    sel2(RS1, 3072, 2752)
    sel2(DCOL, 1024, 128)
    sel2("s10", SZQ, SZ1)
    P(f"s_cselect_b32 s8, s{P_QKV}, s{P_W1}\ns_cselect_b32 s9, s{P_QKV+1}, s{P_W1+1}\ns_mov_b32 s11, 0x20000")
    P(f"s_cselect_b32 {SW0}, 1024, {T1}\ns_add_u32 {SW0}, {SW0}, {T1}")
    P("v_and_b32 v27, 1, v26\nv_lshlrev_b32 v27, 2, v27\nv_xor_b32 v27, v27, v25\nv_lshlrev_b32 v27, 4, v27")
    P(f"v_mad_u32_u24 {v(VP1)}, v24, {RS1}, v27")
    P(f"s_lshl_b32 {T3}, {W}, 3\ns_mul_i32 {SP20}, {T3}, {RS1}\ns_add_u32 {SW0}, {SW0}, {SP20}\ns_lshl_b32 {RS32}, {RS1}, 5")


def wsetup2():
    hblock2(HB0L)
    P(f"s_lshl_b32 {T0}, {HB0L}, 6\ns_lshl_b32 {T1}, {C_}, 7\ns_cmp_eq_u32 {TYPE}, 0\ns_cselect_b32 {T0}, {T1}, {T0}\ns_add_u32 {SP20}, {SP20}, {T0}")
    P(f"v_lshl_or_b32 {v(VW2)}, v24, 10, v27")


def dma(voff, srdr, soff, tag):
    if OPT["noload"]:
        return
    P(f"buffer_load_dwordx4 {v(voff)}, {srdr}, {soff} offen lds")
    vm.add(tag)


def ks_reg(q):
    P(f"s_add_u32 {T0}, {RHO}, {q}\ns_and_b32 {T0}, {T0}, 7" if q else f"s_mov_b32 {T0}, {RHO}")


def stage(q, mid=None, pre=None):
    sl = (q % 3) * 32 * K
    ks_reg(q)
    P(f"s_lshl_b32 {T1}, {T0}, 7\ns_add_u32 {T1}, {T1}, {SX0}")
    for m in range(4):
        P(f"s_add_u32 m0, {SM}, {sl + 4 * K * m}")
        if m:
            P(f"s_add_u32 {T1}, {T1}, 32768")
        else:
            P(f"s_lshl_b32 {T0}, {T0}, 6")
            if pre:
                pre()
        dma(VX, rX, T1, ("st", q))
    if mid:
        mid()
    P(f"s_mul_i32 {T0}, {T0}, {RS1}\ns_add_u32 {T0}, {T0}, {SW0}")
    for h in range(2):
        if h:
            P(f"s_add_u32 {T0}, {T0}, {RS32}")
        P(f"s_add_u32 m0, {SM}, {sl + 16 * K + 4 * K * h}")
        P(f"s_add_u32 {T1}, {T0}, {DCOL}")
        dma(VP1, rP1, T0, ("st", q))
        P(f"s_add_u32 m0, {SM}, {sl + 24 * K + 4 * K * h}")
        dma(VP1, rP1, T1, ("st", q))


def chunk(q, tag="ch"):
    ks_reg(q)
    P(f"s_lshl_b32 {T0}, {T0}, 6\ns_mul_i32 {T0}, {T0}, {RS1}")
    P(f"s_add_u32 m0, {SM}, {CH(q)}\ns_add_u32 {T0}, {T0}, {SP20}")
    dma(VP1, rP1, T0, tag)
    P(f"s_add_u32 m0, {SM}, {CH(q) + 4 * K}\ns_add_u32 {T0}, {T0}, {RS32}")
    dma(VP1, rP1, T0, tag)


LPA, LPL = "s48", "s49"
LPB, LGB, SCS = "s36", "s37", "s38"
CHR, MID, PQR, D0, D1 = 48, 104, 212, 32, 228


def page_addr(p):
    if p < 32:
        g, mask, sr, add = p >> 2, 7, rW2, 0
    elif p < 44:
        P(f"s_add_u32 {T0}, {LPA}, {(p - 32) * 32768}\ns_cmp_ge_u32 {T0}, {LPL}\ns_cselect_b32 {T1}, {11 * 32768}, 0\ns_sub_u32 {T0}, {T0}, {T1}")
        return rW2
    else:
        g, mask, sr, add = (p - 44) >> 2, 3, rWO, 0
    if p % 4 == 0 or page_addr.last != (p >> 2):
        P(f"s_add_u32 {LGB}, {RHO2 if p < 32 else RHOS}, {g}\ns_and_b32 {LGB}, {LGB}, {mask}\ns_lshl_b32 {LGB}, {LGB}, 17\ns_add_u32 {LGB}, {LGB}, {LPB}")
        page_addr.last = p >> 2
    P(f"s_add_u32 {T0}, {LGB}, {(p % 4) * 32768}")
    return sr
page_addr.last = None


def page(p):
    P(f"s_add_u32 m0, {SM}, {slot_of(p)}")
    sr = page_addr(p)
    dma(VW2, sr, T0, ("pg", p))


def stg_reg(p):
    if p < 38:
        return MID + 4 * (p - 18)
    k = p - 38 if p < 43 else p - 39
    return CHR + 4 * k if k < 14 else 184 + 4 * (k - 14)


def lds16(a):
    return f"{v(VL16 + a // (64 * K))}", a % (64 * K)


def chunk_stage(q):
    ks_reg(q)
    P(f"s_lshl_b32 {T0}, {T0}, 6\ns_mul_i32 {T0}, {T0}, {RS1}\ns_add_u32 {T0}, {T0}, {SP20}\ns_add_u32 {T1}, {T0}, {RS32}")
    for h in range(2):
        P(f"buffer_load_dwordx4 {v(CHR + 8 * (q - 1) + 4 * h, 4)}, {v(VP1)}, {rP1}, {(T0, T1)[h]} offen")
        vm.add(("ch", q))


def chunk_write(q):
    vm.wait(("ch", q))
    for h in range(2):
        a, off = lds16(CH(q) + 4 * K * h)
        P(f"ds_write_b128 {a}, {v(CHR + 8 * (q - 1) + 4 * h, 4)} offset:{off}")


def page_stage(p):
    sr = page_addr(p)
    P(f"buffer_load_dwordx4 {v(stg_reg(p), 4)}, {v(VW2)}, {sr}, {T0} offen")
    vm.add(("pg", p))


def page_write(p, pace=0):
    so = slot_of(p)
    a, off = (VL16, so) if so < 64 * K else ((VL16 + 1, so - 64 * K) if so < 128 * K else (VL16 + 2, so - 128 * K))
    P(f"ds_write_b128 {v(a)}, {v(stg_reg(p), 4)} offset:{off}")
    if pace:
        P("s_waitcnt lgkmcnt(0)")


stage(0, wsetup, lambda: P(f"s_waitcnt lgkmcnt(0)\ns_mov_b32 s4, s{P_X}\ns_mov_b32 s5, s{P_X+1}"))
if DIAG >= 3:
    diag_init()
    stamp(1, "start")
stamp(1, "st0")
wsetup2()
chunk(0, "ch0")
P("s_waitcnt lgkmcnt(0)")
P(f"s_load_dword {NONCE}, s[{P_WS}:{P_WS+1}], 0")
srd(rWS, P_WS, WS_SIZE)
srd(rW2, P_W2, 1376 * 1024)
srd(rWO, P_WO, 512 * 1024)
srd(rA, P_B1, 2752)
tile2()
waddr(LWA, 27, 28, 3)
P(f"s_and_b32 {T0}, {W}, 1\ns_lshl_b32 {T0}, {T0}, 6")
P(f"v_xor_b32 {v(LWA)}, {T0}, {v(LWA)}")
P(f"v_add_u32 {v(LWB)}, 0x{CH(0):x}, {v(LWA)}")
P(f"s_lshr_b32 {T0}, {W}, 1\ns_lshl_b32 {T0}, {T0}, 13\ns_add_u32 {T0}, {T0}, {16 * K}")
P(f"v_add_u32 {v(LWA)}, {T0}, {v(LWA)}")
P("v_and_b32 v27, 15, v0\nv_lshlrev_b32 v28, 2, v26\nv_cmp_eq_u32 vcc, v27, v28\nv_mov_b32 v27, 0x3f803f80")
for r in range(4):
    P(f"v_cndmask_b32 {v(SEL + r)}, 0, v27, vcc")
P(f"v_lshl_add_u32 {v(VL16)}, v0, 4, {SM}")
P(f"v_add_u32 {v(VL16+1)}, 0x10000, {v(VL16)}\nv_add_u32 {v(VL16+2)}, 0x20000, {v(VL16)}")
P(f"s_lshl_b32 {LPB}, {W}, 13\ns_lshl_b32 {T1}, {CT}, 7\ns_add_u32 {LPB}, {LPB}, {T1}")
P(f"s_lshl_b32 {LPA}, {RHOA}, 15\ns_add_u32 {LPA}, {LPA}, {LPB}\ns_add_u32 {LPA}, {LPA}, {32 * 32768}\ns_add_u32 {LPL}, {LPB}, {43 * 32768}")
P(f"s_lshl_b32 {SCS}, {J_}, 1\ns_lshr_b32 {T0}, {I_}, 3\ns_add_u32 {SCS}, {SCS}, {T0}\ns_lshl_b32 {SCS}, {SCS}, 2")
P(f"s_add_u32 {SCS}, {SCS}, {W}\ns_lshl_b32 {SCS}, {SCS}, 12\ns_add_u32 {SCS}, {SCS}, 0x{WS_CS:x}")
P(f"s_lshl_b32 {T0}, {C_}, 2\ns_add_u32 {T0}, {T0}, {W}\ns_lshl_b32 {T0}, {T0}, 6")
P(f"s_and_b32 {T1}, {W}, 1\ns_add_u32 {T1}, {T1}, {HB0L}\ns_lshl_b32 {T1}, {T1}, 6")
P(f"s_cmp_eq_u32 {TYPE}, 0\ns_cselect_b32 {T0}, 0x100000, {T0}\ns_cselect_b32 {T1}, 0x100000, {T1}")
P(f"v_mov_b32 v27, {T0}\nv_mov_b32 v28, {T1}\nv_cmp_gt_u32 vcc, 32, v0\nv_and_b32 v29, 31, v0")
P(f"v_cndmask_b32 v27, v28, v27, vcc\nv_lshl_add_u32 v30, v29, 1, v27")
VSIG, VPK = 11, 24
P(f"s_lshl_b32 {T0}, {W}, 2\ns_add_u32 {T0}, {T0}, 0x{L_RDY:x}\nv_mov_b32 {v(VSIG)}, {T0}")
P(f"v_and_b32 {v(VPK)}, 3, v0\nv_lshlrev_b32 {v(VPK)}, 2, {v(VPK)}\nv_add_u32 {v(VPK)}, 0x{L_PRG:x}, {v(VPK)}")
stamp(1, "setup")
stage(1)
stamp(1, "issued")
P(f"s_waitcnt lgkmcnt(0)\ns_add_u32 {NONCE}, {NONCE}, 1")
vm.wait("ch0")
vm.wait(("st", 0))
stamp(1, "land")
if OPT["p2only"]:
    P("s_waitcnt vmcnt(0)\ns_barrier")
    signal(VSIG, 27, 6)
    P("s_barrier\ns_barrier")
    dump(1)
    P("s_endpgm")
    lg.q = []
P("s_barrier ; b0")
stamp(1, "b0")
FR = 32


def cs_reads(a, f):
    for t in range(4):
        P(f"ds_read_b64_tr_b16 {v(f + 4 * t, 2)}, {v(a)} offset:{t * 2048}")
        P(f"ds_read_b64_tr_b16 {v(f + 4 * t + 2, 2)}, {v(a)} offset:{t * 2048 + 512}")


def cs_mfma(acc, f):
    for t in range(4):
        P(f"v_mfma_f32_16x16x32_bf16 {v(acc, 4)}, {v(SEL, 4)}, {v(f + 4 * t, 4)}, {'0' if t == 0 else v(acc, 4)}")


CSL = "\n".join(f"buffer_load_dwordx2 {v(32 + 2 * n, 2)}, v29, {rWS}, {SCS} offen offset:{512 * n} sc1" for n in range(8))
CSC = "\n".join([f"v_xor_b32 {v(228 + n)}, {NONCE}, {v(33 + 2 * n)}" for n in range(8)] +
                ["v_or3_b32 v228, v228, v229, v230", "v_or3_b32 v231, v231, v232, v233", "v_or3_b32 v228, v228, v234, v235",
                 "v_or_b32 v228, v228, v231", "v_cmp_ne_u32 vcc, 0, v228"])
nch = 1
for st in range(8):
    if st == 0:
        def mid():
            P(f"s_setprio {OPT['csprio']}")
            P("s_waitcnt lgkmcnt(0)")
            cs_reads(LWB, FR + 16)
            cs_mfma(CS, FR)
        cs_reads(LWA, FR)
        stage(2, mid)
        P(f"buffer_load_ushort {v(VBI)}, v30, {rA}, 0 offen")
        vm.add("bias")
        P(f"s_lshl_b32 {T0}, {W}, 8\ns_add_u32 {T0}, {T0}, 0x{L_CSX:x}")
        P(f"v_lshl_add_u32 v27, v0, 2, {T0}")
        P("s_waitcnt lgkmcnt(0)")
        cs_mfma(CS2, FR + 16)
    elif st <= 5:
        stage(st + 2)
    if st == 0:
        P(f"v_permlane32_swap_b32 {v(CS)}, {v(CS2)}")
        P(f"v_add_f32 {v(CS)}, {v(CS)}, {v(CS2)}")
        P(f"ds_write_b32 v27, {v(CS)}")
        P(f"s_setprio {OPT['prio']}")
    if st == 1:
        P("s_waitcnt lgkmcnt(0)")
    if OPT["fill"] == 3 and 1 <= st <= 6:
        if st == 1:
            P(f"s_lshl2_add_u32 s40, {I_}, {W}\ns_mul_i32 s40, s40, {TB_STRIDE}\ns_lshl_b32 {T0}, {J_}, 12\ns_add_u32 s40, s40, {T0}\ns_add_u32 s40, s40, 0x{WS_HA:x}")
        for t in range(6 * (st - 1), min(32, 6 * st)):
            P(f"s_buffer_load_dword s41, {rWS}, s40 offset:{128 * t}")
    if st == 6:
        P("v_lshlrev_b32 v29, 3, v0")
        if not OPT["nocs"]:
            P(CSL)
            for n in range(8):
                vm.add("cs")
        for q in range(nch, nch + OPT["n6"]):
            chunk_stage(q)
        nch += OPT["n6"]
    if st == 7:
        if not OPT["nocs"]:
            vm.wait("cs")
            P(CSC)
            retry("L_cs", CSL, CSC)
        P("v_add_f32 v32, v32, v34\nv_add_f32 v36, v36, v38\nv_add_f32 v40, v40, v42\nv_add_f32 v44, v44, v46")
        P("v_add_f32 v32, v32, v36\nv_add_f32 v40, v40, v44\nv_add_f32 v32, v32, v40")
        P("v_cvt_pk_bf16_f32 v33, v32, v32\nv_lshlrev_b32 v33, 16, v33\nv_sub_f32 v32, v32, v33\nv_cvt_pk_bf16_f32 v32, v33, v32")
        P("v_cmp_gt_u32 vcc, 32, v0")
        P(f"s_lshl_b32 {T0}, {W}, 9\ns_add_u32 {T0}, {T0}, 0x{L_EX1:x}")
        P(f"v_add_u32 v29, {T0}, v29")
        P(f"v_cndmask_b32 v34, 0, v32, vcc\nv_cndmask_b32 v35, 0, {v(VBI)}, vcc")
        P(f"v_cndmask_b32 v36, v32, 0, vcc\nv_cndmask_b32 v37, {v(VBI)}, 0, vcc")
        P(f"ds_write_b64 v29, v[34:35]\nds_write_b64 v29, v[36:37] offset:{L_EX2 - L_EX1}")
        for q in range(nch, nch + OPT["n7"]):
            chunk_stage(q)
        nch += OPT["n7"]
        P("s_waitcnt lgkmcnt(0)")
    else:
        vm.wait(("st", st + 1))
    P(f"s_barrier ; b{st + 1}")
    if "st1" in OPT and st < 7:
        stamp(1, f"b{st+1}")
stamp(1, "b8")
if OPT["p1only"]:
    dump(1)
    P("s_endpgm")
    DIAG = 0
for q in range(nch, 8):
    chunk_stage(q)
XRES, BRES, VO, SO = 244, 252, 19, "s45"
srd(rB, P_B2, 1024)
srd(rP2, P_OUT, 2 * K * K)
P(f"v_and_b32 v28, 7, v0\nv_lshlrev_b32 v28, 4, v28\nv_lshrrev_b32 v29, 3, v0\nv_lshl_or_b32 {v(VO)}, v29, 10, v28")
P(f"s_lshl_b32 {SO}, {TB2}, 2\ns_add_u32 {SO}, {SO}, {W}\ns_lshl_b32 {SO}, {SO}, 14\ns_lshl_b32 {T1}, {CT}, 7\ns_add_u32 {SO}, {SO}, {T1}")
P(f"s_add_u32 {T2}, {SO}, 8192")
P(f"buffer_load_dwordx4 {v(BRES, 4)}, v28, {rB}, {T1} offen")
P(f"buffer_load_dwordx4 {v(XRES, 4)}, {v(VO)}, {rX}, {SO} offen")
P(f"buffer_load_dwordx4 {v(XRES + 4, 4)}, {v(VO)}, {rX}, {T2} offen")
for _ in range(3):
    vm.add("res")
vq8 = list(vm.q)


def stream(seq):
    for p in seq:
        (page if p < 18 else page_stage)(p)


LATE = list(range(38, 43)) + list(range(44, 60))
P(f"s_cmp_eq_u32 {TYPE}, 0")
P("s_cbranch_scc1 L_lA")
SH1, SH2, SF1 = "s4", "s5", "s6"
P(f"v_add_u32 v22, 16, {v(VSIG)}\nv_lshlrev_b32 v23, 4, v0")
P(f"s_lshl_b32 {T0}, {I_}, 2\ns_add_u32 {T0}, {T0}, {W}")
P(f"s_mul_i32 {SH1}, {T0}, {TB_STRIDE}\ns_add_u32 {SH1}, {SH1}, 0x{WS_HA:x}")
P(f"s_lshl_b32 {SH2}, {HB0L}, 11\ns_add_u32 {SH2}, {SH2}, {SH1}\ns_lshl_b32 {T1}, {C_}, 13\ns_add_u32 {SH1}, {SH1}, {T1}")
P(f"s_lshl_b32 {SF1}, {T0}, 5\ns_add_u32 {SF1}, {SF1}, {C_}\ns_lshl_b32 {SF1}, {SF1}, 2\ns_add_u32 {SF1}, {SF1}, 0x{WS_FLAGS + FL_HB * 128:x}")


def far():
    P(f"ds_read_b32 v28, {v(VPK)} offset:{L_FAST - L_PRG}\ns_waitcnt lgkmcnt(0)\nv_cmp_ne_u32 vcc, 0, v28\ns_or_b32 {FAR}, vcc_lo, vcc_hi")


def wback(tag):
    if OPT["wbj"] == 0:
        P(f"s_cmp_lg_u32 {W}, 0")
    else:
        P(f"s_xor_b32 {T0}, {J_}, {OPT['wbj'] - 1}\ns_or_b32 {T0}, {T0}, {W}\ns_cmp_lg_u32 {T0}, 0")
    P(f"s_cbranch_scc1 L_wb{tag}\nbuffer_wbl2 sc1\nL_wb{tag}:")


def hstore(k, base, b, sh, tag):
    if k == 1:
        await_(VPK, 28, k)
        far()
    else:
        await_(22, 28, k)
    d = D0 + 8 * (b & 1)
    for u in range(2):
        a = base + (2 * b + u) * 4096
        P(f"ds_read_b128 {v(d + 4 * u, 4)}, {v(VL16 + a // (64 * K))} offset:{a % (64 * K)}")
    if b == 2:
        P(f"s_add_u32 {sh}, {sh}, 4096")
    for u in range(2):
        P(f"s_waitcnt lgkmcnt({1 - u})")
        row_store(f"buffer_store_dwordx4 {v(d + 4 * u, 4)}, v23, {rWS}, {sh} offen offset:{2048 * (b & 1) + 1024 * u}", OPT["nt1"] if tag == "h" else OPT["nt2"])
        vm.add(tag)


if OPT["fill"] == 1:
    P("v_lshlrev_b32 v25, 7, v0\nv_and_b32 v27, 0xfff, v25")
    P(f"buffer_load_dword v20, v25, {rWS}, {SH1} offen\nbuffer_load_dword v21, v27, {rWS}, {SH2} offen")
    vm.add(None)
    vm.add(None)
mid = list(range(18, 38))
stream(mid[:OPT["e1B"]])
np_ = OPT["e1B"]
for q in range(1, 5):
    chunk_write(q)
hstore(1, L_HS, 0, SH1, "h")
for q in range(5, 8):
    chunk_write(q)
signal(VSIG, 26, 1)
for b in range(1, 4):
    stream(mid[np_:np_ + OPT["iB2"]])
    np_ += OPT["iB2"]
    hstore(b + 1, L_HS, b, SH1, "h")
signal(VSIG, 26, 2)
stamp(1, "h_st")
stream(range(OPT["xB"]))
vm.wait("h")
flag_store(SF1, aux=HX)
vm.add(None)
stamp(1, "hbflag")
stream(range(OPT["xB"], 18))
stream(mid[np_:])
P(f"s_add_u32 {SF1}, {SF1}, {(FL_HA - FL_HB) * 128}")
P(f"s_cmp_lt_u32 {C_}, 3")
P("s_cbranch_scc0 L_lB1")
vqB = list(vm.q)
for nb in (2, 1):
    if nb == 1:
        P.label("L_lB1")
        vm.q = list(vqB)
    page_addr.last = None
    pre = OPT["lB2"] if nb == 2 else OPT["lB1"]
    stream(LATE[:pre])
    vm.wait(("pg", 17))
    signal(VSIG, 26, 3)
    stamp(1, "staged")
    lg.q = []
    await_(VPK, 28, 8)
    for n, p in enumerate(range(18, 34)):
        if n == (8 if nb == 2 else 16) - 8 * (2 - nb) * 0 and nb == 2:
            lg.q = []
            hstore(9, L_PQ, 0, SH2, "h2")
        vm.wait(("pg", p))
        page_write(p)
    lg.q = []
    hstore(8 + nb, L_PQ, nb - 1, SH2, "h2")
    stamp(1, "h2_st")
    for p in range(34, 38):
        vm.wait(("pg", p))
        page_write(p)
    signal(VSIG, 26, 4)
    vm.wait("h2")
    flag_store(SF1, aux=HX)
    vm.add(None)
    stamp(1, "oflag")
    stream(LATE[pre:])
    vm.wait(("pg", 42))
    P("s_branch L_l5")
P.label("L_lA")
vm.q = list(vq8)
lg.q = []
page_addr.last = None
SOB = "s44"
P(f"s_mul_i32 {SOB}, {I_}, {4 * TB_STRIDE}\ns_lshl_b32 {T1}, {C_}, 12\ns_add_u32 {SOB}, {SOB}, {T1}")
P(f"s_add_u32 {SOB}, {SOB}, {SM}\ns_add_u32 {SOB}, {SOB}, 0x{WS_HA + 86 * K:x}")
if OPT["fill"] == 1:
    P(f"v_bfe_u32 v25, v0, 3, 2\nv_mul_u32_u24 v25, {TB_STRIDE}, v25\nv_and_b32 v27, 7, v0\nv_lshl_add_u32 v25, v27, 7, v25")
    P(f"buffer_load_dword v20, v25, {rWS}, {SOB} offen")
    vm.add(None)
mid = list(range(18, 38))
stream(mid[:8])
for q in range(1, 8):
    chunk_write(q)
signal(VSIG, 26, 1)
if OPT["fill"] in (2, 3):
    P(f"s_lshl2_add_u32 {T0}, {I_}, {W}\ns_mul_i32 {T0}, {T0}, {TB_STRIDE}\ns_add_u32 {T0}, {T0}, 0x{WS_HA:x}")
    P("v_lshlrev_b32 v25, 7, v0")
    if OPT["fill"] == 2:
        P(f"s_lshl_b32 {T1}, {C_}, 13\ns_add_u32 {T1}, {T1}, {T0}")
        P(f"buffer_load_dword v20, v25, {rWS}, {T1} offen")
        vm.add(None)
    P(f"s_mul_i32 {T1}, {C_}, {54 * 128}\ns_add_u32 {T1}, {T1}, {T0}\ns_add_u32 {T1}, {T1}, {64 * K}\nv_min_u32 v25, {53 * 128}, v25")
    P(f"buffer_load_dword v21, v25, {rWS}, {T1} offen")
    vm.add(None)
stream(mid[8:OPT["e1A"]])
lg.q = []
await_(VPK, 28, 2)
far()
stream(range(18))
stream(mid[OPT["e1A"]:])
SZL, SK0, SK1, SKE = "s4", "s5", "s6", "s7"
NB = [NONCE, "s39", "s42", "s43"]
P("v_and_b32 v23, 15, v0\nv_lshlrev_b32 v27, 4, v0")
P(f"v_lshrrev_b32 v22, 2, v0\nv_mul_u32_u24 v25, {KVP_STR}, v22\nv_and_b32 v26, 3, v0\nv_lshl_add_u32 v25, v26, 4, v25")
P(f"s_mul_i32 {SK0}, {C_}, {16 * KVP_STR}\ns_add_u32 {SK0}, {SK0}, 0x{WS_KVP:x}")
P(f"s_lshl_b32 {SZL}, {W}, 6\ns_add_u32 {SZL}, {SZL}, {SK0}\ns_add_u32 {SZL}, {SZL}, 4096")
P(f"s_add_u32 {SK0}, {SK0}, {SM}\ns_add_u32 {SKE}, {SK0}, {16 * KVP_STR}")
P(f"s_lshl_b32 {SK1}, {I_}, 1\ns_and_b32 {SK1}, {SK1}, 15\ns_mul_i32 {SK1}, {SK1}, {KVP_STR}\ns_add_u32 {SK1}, {SK1}, {SK0}")
P(f"s_add_u32 {T0}, {SM}, 0x{L_KT:x}")
P("v_and_b32 v40, 1, v26\nv_lshlrev_b32 v40, 4, v40\nv_lshrrev_b32 v26, 1, v26\nv_lshl_or_b32 v40, v26, 3, v40")
P(f"v_lshl_or_b32 v40, v22, 5, v40\nv_add_u32 v40, {T0}, v40")
P("v_bfe_u32 v41, v0, 4, 1\nv_lshlrev_b32 v41, 4, v41\nv_lshrrev_b32 v26, 5, v0\nv_lshl_or_b32 v41, v26, 3, v41")
P(f"v_lshl_or_b32 v41, v23, 5, v41\nv_add_u32 v41, {T0}, v41")
P(f"v_and_b32 v42, 31, v0\nv_lshlrev_b32 v42, 5, v42\nv_lshl_or_b32 v42, v26, 4, v42\nv_add_u32 v42, {T0}, v42")
P(f"s_lshr_b32 s39, {NONCE}, 8\ns_lshr_b32 s42, {NONCE}, 16\ns_lshr_b32 s43, {NONCE}, 24")
ZL = f"buffer_load_dwordx4 v[28:31], v25, {rWS}, {SZL} offen sc1"
ZC = "\n".join([f"v_xor_b32 v20, {NB[0]}, v28", f"v_xor_b32 v21, {NB[1]}, v29",
                f"v_bitop3_b32 v20, v20, v30, {NB[2]} bitop3:0xf6", f"v_bitop3_b32 v21, v21, v31, {NB[3]} bitop3:0xf6",
                "v_or_b32 v20, v20, v21", "v_and_b32 v20, 0xff, v20", "v_cmp_ne_u32 vcc, 0, v20"])
P(f"s_setprio {OPT['gprio']}")
P(f"s_mov_b32 {T2}, 32")
P.label("L_kvall")
spin("L_kv", ZL, ZC)
stamp(1, "kv_seen")
signal(VSIG, 26, 3)
P(f"s_mov_b32 {T1}, {SK1}")
GD = OPT["gd"]
GQ = [CHR + 4 * n for n in range(14)] + [184, 188] if GD == 16 else [PQR + 4 * n for n in range(8)]
def gload(n):
    P(f"buffer_load_dwordx4 {v(GQ[n % GD], 4)}, v27, {rWS}, {T1} offen sc1")
    if n < 15:
        P(f"s_add_u32 {T1}, {T1}, {KVP_STR}")
        if n % 2 == 1:
            P(f"s_cmp_eq_u32 {T1}, {SKE}\ns_cselect_b32 {T1}, {SK0}, {T1}")
for n in range(GD):
    gload(n)
for n in range(4):
    P(f"v_and_b32 {v(28 + n)}, 0xffffff00, {v(28 + n)}")
for r in (4, 8):
    for n in range(4):
        P(f"v_add_f32_dpp {v(28 + n)}, {v(28 + n)}, {v(28 + n)} row_ror:{r} row_mask:0xf bank_mask:0xf")
for op in ("v_permlane16_swap_b32", "v_permlane32_swap_b32"):
    for n in range(4):
        P(f"v_mov_b32 {v(32 + n)}, {v(28 + n)}")
    for n in range(4):
        P(f"{op} {v(28 + n)}, {v(32 + n)}")
    for n in range(4):
        P(f"v_add_f32 {v(28 + n)}, {v(28 + n)}, {v(32 + n)}")
P("v_cvt_pk_bf16_f32 v28, v28, v29\nv_cvt_pk_bf16_f32 v29, v30, v31")
P("ds_write_b64 v40, v[28:29] offset:512")
for n in range(16):
    P(f"s_waitcnt vmcnt({min(GD - 1, 15 - n)})")
    for h in range(4):
        r = v(GQ[n % GD] + h)
        if n == 0:
            P(f"v_xor_b32 {v(36 + h)}, {NB[h]}, {r}\nv_and_b32 {v(32 + h)}, 0xffffff00, {r}")
        else:
            P(f"v_bitop3_b32 {v(36 + h)}, {v(36 + h)}, {r}, {NB[h]} bitop3:0xf6\nv_and_b32 {v(44 + h)}, 0xffffff00, {r}")
    if n + GD < 16:
        gload(n + GD)
    if n:
        for h in range(4):
            P(f"v_add_f32 {v(32 + h)}, {v(32 + h)}, {v(44 + h)}")
P("v_or3_b32 v36, v36, v37, v38\nv_or_b32 v36, v36, v39\nv_and_b32 v36, 0xff, v36\nv_cmp_ne_u32 vcc, 0, v36")
P(f"s_sub_u32 {T2}, {T2}, 1")
P("s_cbranch_scc1 L_kvok")
P("s_cbranch_vccnz L_kvall")
P.label("L_kvok")
stamp(1, "gath")
if DIAG >= 3 and "retry" in str(OPT.get("st1")):
    P(f"s_waitcnt lgkmcnt(0)\ns_sub_u32 s98, 32, {T2}\ns_mul_i32 s98, s98, 100\ns_add_u32 s98, s98, s100")
vm.q = []
page_addr.last = None
P("v_cvt_pk_bf16_f32 v32, v32, v33\nv_cvt_pk_bf16_f32 v33, v34, v35")
P("ds_write_b64 v41, v[32:33]")
lg.q = []
P("ds_read_b128 v[44:47], v42")
stream(LATE[:OPT["lA"]])
P(f"v_add_u32 v20, 0x{L_PQ:x}, {v(VL16)}")
P(f"s_mov_b32 s4, {SOB}")
stamp(1, "staged")
await_(VPK, 22, 10)
stamp(1, "g0")
for tb in range(4):
    P(f"ds_read_b128 {v(PQR + 4 * tb, 4)}, v20 offset:{tb * 4096}")
P("v_mov_b32 v28, v44\nv_mov_b32 v29, v45\nv_mov_b32 v30, v46\nv_mov_b32 v31, v47")
def o_mfma(tb):
    P(f"s_waitcnt lgkmcnt({3 - tb})")
    P(f"v_mfma_f32_32x32x16_bf16 {v((D0, D1)[tb & 1], 16)}, v[28:31], {v(PQR + 4 * tb, 4)}, 0")
o_mfma(0)
o_mfma(1)
for tb in range(4):
    d = (D0, D1)[tb & 1]
    P(f"v_add_f32 {v(d + 8)}, 0x{f2u(1e-6):x}, {v(d + 8)}")
    P(f"v_rcp_f32 {v(d + 8)}, {v(d + 8)}")
    for r in range(8):
        P(f"v_mul_f32 {v(d + r)}, {v(d + r)}, {v(d + 8)}")
    for p in range(4):
        P(f"v_cvt_pk_bf16_f32 {v(PQR + 4 * tb + p)}, {v(d + 2 * p)}, {v(d + 2 * p + 1)}")
    if tb < 2:
        o_mfma(tb + 2)
    row_store(f"buffer_store_dwordx4 {v(PQR + 4 * tb, 4)}, v27, {rWS}, s4 offen", OPT["nt2"])
    vm.add("o")
    if tb < 3:
        P(f"s_add_u32 s4, s4, {TB_STRIDE}")
stamp(1, "o_st")
P(f"s_setprio {OPT['prio']}")
for p in range(18, 38):
    page_write(p)
signal(VSIG, 26, 4)
vm.wait("o")
P(f"s_lshl_b32 {T0}, {I_}, 5\ns_lshl_b32 {T1}, {C_}, 2\ns_add_u32 {T0}, {T0}, {T1}\ns_add_u32 {T0}, {T0}, {W}")
P(f"s_lshl_b32 {T0}, {T0}, 2\ns_add_u32 {T0}, {T0}, 0x{WS_FLAGS + FL_O * 128:x}")
flag_store(T0, aux=HX)
vm.add(None)
stamp(1, "oflag")
stream(LATE[OPT["lA"]:])
vm.wait(("pg", 42))
P.label("L_l5")
lg.q = []
await_(VPK, 28, 11)
stamp(1, "gx")
nfree = 2 * ((OPT["gx"] - 7) // 4)
first = [p for p in list(range(38, 43)) + list(range(44, 60)) if p - 38 < nfree]
for p in first:
    if p == 44:
        signal(VSIG, 26, 5)
        P("s_waitcnt vmcnt(0)")
    page_write(p, OPT["pace"])
lg.q = []
P("s_waitcnt lgkmcnt(0)")
await_(VPK, 28, 12)
for p in range(44, 60):
    if p not in first:
        page_write(p, OPT["pace"])
signal(VSIG, 26, 6)
LOG2E = 1.4426950408889634
XRD, GG, XF, BF, YR = 22, 32, 48, 64, 72
P("v_lshrrev_b32 v26, 3, v0\nv_and_b32 v27, 7, v0\nv_lshlrev_b32 v27, 1, v27\nv_xor_b32 v27, v27, v26\nv_lshlrev_b32 v27, 4, v27\nv_lshl_or_b32 v26, v26, 8, v27")
P(f"s_lshl_b32 {T0}, {W}, 12\ns_add_u32 {T0}, {T0}, 0x{L_XS0:x}")
P(f"v_add_u32 {v(XRD)}, {T0}, v26\nv_xor_b32 {v(XRD + 1)}, 16, {v(XRD)}")
P(f"v_add_u32 {v(XRD + 2)}, 0x10000, {v(XRD)}\nv_add_u32 {v(XRD + 3)}, 0x10000, {v(XRD + 1)}")
P(f"s_add_u32 {T2}, {SO}, 8192")
P("s_waitcnt lgkmcnt(0)")


if OPT["wb"] in (2, 4):
    wback(2)
def unpack(dst, src, n):
    for r in range(n):
        P(f"v_lshlrev_b32 {v(dst + 2 * r)}, 16, {v(src + r)}\nv_and_b32 {v(dst + 2 * r + 1)}, 0xffff0000, {v(src + r)}")


def xread(dst, bases):
    for h in range(2):
        for kh in range(2):
            for j in range(2):
                P(f"ds_read_b128 {v(dst + 16 * kh + 8 * h + 4 * j, 4)}, {v(XRD + j + 2 * ((bases[kh] - L_XS0) >> 16))} offset:{((bases[kh] - L_XS0) & 0xffff) + 2048 * h}")


unpack(XF, XRES, 8)
unpack(BF, BRES, 4)
stamp(1, "rdy5")
P("s_barrier ; dY")
if OPT["wb"] == 3:
    wback(3)
xread(YR, (L_XY, L_XY + 16 * K))
P("s_waitcnt lgkmcnt(0)")
for fmt in ("v_add_f32 {Y}, {Y}, {Z}", "v_add_f32 {Y}, {Y}, {B}", f"v_mul_f32 {{G}}, 0x{f2u(-LOG2E):x}, {{Y}}", "v_exp_f32 {G}, {G}",
            "v_add_f32 {G}, 1.0, {G}", "v_rcp_f32 {G}, {G}", "v_mul_f32 {G}, {G}, {Y}"):
    for r in range(16):
        P(fmt.format(Y=v(YR + r), Z=v(YR + 16 + r), B=v(BF + r % 8), G=v(GG + r)))
stamp(1, "gate")
P("s_barrier ; dS")
xread(YR, (L_XS0, L_XS1))
for h in range(2):
    P(f"s_waitcnt lgkmcnt({4 - 4 * h})")
    for p in range(4 * h, 4 * h + 4):
        P(f"v_pk_add_f32 {v(YR + 2 * p, 2)}, {v(YR + 2 * p, 2)}, {v(YR + 16 + 2 * p, 2)}")
    for p in range(4 * h, 4 * h + 4):
        P(f"v_pk_fma_f32 {v(YR + 2 * p, 2)}, {v(YR + 2 * p, 2)}, {v(GG + 2 * p, 2)}, {v(XF + 2 * p, 2)}")
    for p in range(4 * h, 4 * h + 4):
        P(f"v_cvt_pk_bf16_f32 {v(BF + p)}, {v(YR + 2 * p)}, {v(YR + 2 * p + 1)}")
    P(f"buffer_store_dwordx4 {v(BF + 4 * h, 4)}, {v(VO)}, {rP2}, {(SO, T2)[h]} offen {OPT['outaux']}")
dump(1)
P.label("L_end")
P("s_endpgm")
flush_cold()

P.label("L_compute")
DIAG = OPT["diag"]
assert OPT["gx"] <= 36
XR, ACC, WR = 128, 64, 32
VH, GR, XE, K1, K2, SD, RS, RL = 1, 2, 4, 6, 8, 10, 12, 14
XA, WA = 12, 20
HB0, SH, EPS2, SG, SFL1, SFL2, SCS2 = "s72", "s73", "s[74:75]", "s76", "s77", "s78", "s79"
lg = Q("lgkmcnt", 15)

diag_init()
stamp(0, "start")
P(f"s_setprio {OPT['cprio']}")
P(f"s_lshl_b32 {T0}, {I_}, 4\ns_add_u32 {T0}, {T0}, {J_}\ns_lshl_b32 {T0}, {T0}, 2\ns_add_u32 {T0}, {T0}, {W}\ns_lshl_b32 {T0}, {T0}, 1")
P(f"s_lshl_b32 {T1}, {T0}, 10")
P("v_lshrrev_b32 v26, 5, v0\nv_and_b32 v27, 31, v0\nv_lshlrev_b32 v28, 4, v27\nv_lshl_or_b32 v28, v26, 10, v28")
P("s_waitcnt lgkmcnt(0)")
srd(rX, P_X, 2 * K * K)
P(f"s_load_dword {NONCE}, s[{P_WS}:{P_WS+1}], 0")
P(f"buffer_load_dwordx4 v[32:35], v28, {rX}, {T1} offen")
P(f"buffer_load_dwordx4 v[36:39], v28, {rX}, {T1} offen offset:512")
srd(rWS, P_WS, WS_SIZE)
tile2()
P(f"v_lshlrev_b32 {v(VH)}, 4, v0")
waddr(WA, 29, 30, 3)
P(f"v_xor_b32 {v(WA + 1)}, 64, {v(WA)}")
for k, off in ((2, 64 * K), (4, 88 * K)):
    P(f"v_add_u32 {v(WA + k)}, 0x{off:x}, {v(WA)}\nv_add_u32 {v(WA + k + 1)}, 0x{off:x}, {v(WA + 1)}")
P("v_bfe_u32 v29, v0, 1, 3\nv_xor_b32 v29, v29, v26\nv_lshlrev_b32 v29, 4, v29\nv_lshl_or_b32 v29, v27, 7, v29")
P(f"s_lshl_b32 {T2}, {W}, 12")
P(f"v_add_u32 {v(XA)}, {T2}, v29")
for t in range(1, 4):
    P(f"v_xor_b32 {v(XA + t)}, {32 * t}, {v(XA)}")
for t in range(4):
    P(f"v_add_u32 {v(XA + 4 + t)}, 0x10000, {v(XA + t)}")
P(f"s_lshl_b32 {SG}, {I_}, 2\ns_add_u32 {SG}, {SG}, {W}")
if OPT["touch"]:
    srd(rW2, P_W2, 1376 * 1024)
    srd(rWO, P_WO, 512 * 1024)
    P(f"s_mul_i32 {T2}, s2, 43\ns_mul_i32 {T3}, {W}, 11\ns_add_u32 {T2}, {T2}, {T3}")
    P(f"v_add_u32 v6, {T2}, v0\nv_lshlrev_b32 v6, 7, v6\nv_mov_b32 v8, 0x7ff00000\nv_cmp_gt_u32 vcc, 11, v0")
    P(f"s_lshl_b32 {T2}, s2, 2\ns_add_u32 {T2}, {T2}, {W}\ns_lshl_b32 {T2}, {T2}, 2")
    P(f"v_cndmask_b32 v6, v8, v6, vcc\nv_add_u32 v7, {T2}, v0\nv_lshlrev_b32 v7, 7, v7\nv_cmp_gt_u32 vcc, 4, v0")
    P("v_cndmask_b32 v7, v8, v7, vcc")
    if OPT["touch"] == 9:
        P(f"buffer_load_dword v8, v6, {rW2}, 0 offen\nbuffer_load_dword v9, v7, {rWO}, 0 offen")
P(f"s_lshl_b32 {SG}, {SG}, 8\ns_add_u32 {SG}, {SG}, 0x{WS_STATS:x}")
P(f"s_lshl_b32 {SCS2}, {J_}, 1\ns_lshr_b32 {T2}, {I_}, 3\ns_add_u32 {SCS2}, {SCS2}, {T2}\ns_lshl_b32 {SCS2}, {SCS2}, 2")
P(f"s_add_u32 {SCS2}, {SCS2}, {W}\ns_lshl_b32 {SCS2}, {SCS2}, 3\ns_and_b32 {T2}, {I_}, 7\ns_add_u32 {SCS2}, {SCS2}, {T2}")
P(f"s_lshl_b32 {SCS2}, {SCS2}, 9\ns_add_u32 {SCS2}, {SCS2}, 0x{WS_CS:x}")
SFHB, SFO, KH, SFHA, PRIMED, SK12, SXW, SBASE = "s51", "s52", "s53", "s54", "s55", "s72", "s73", "s77"
P(f"s_lshr_b32 {KH}, {W}, 1\ns_lshl_b32 {SK12}, {KH}, 12\ns_mov_b32 {PRIMED}, 0")
P(f"s_lshl_b32 {T3}, {TB2}, 1\ns_and_b32 {T2}, {W}, 1\ns_add_u32 {T3}, {T3}, {T2}")
P(f"s_mul_i32 {SBASE}, {T3}, {TB_STRIDE}\ns_add_u32 {SBASE}, {SBASE}, 0x{WS_HA:x}")
if OPT["ahot"]:
    P(f"s_mov_b32 {SBASE}, 0x{WS_DIAG + 0x40000:x}")
P(f"s_lshl_b32 {SFHB}, {T3}, 7\ns_add_u32 {SFHA}, {SFHB}, 0x{WS_FLAGS + FL_HA * 128:x}\ns_add_u32 {SFHB}, {SFHB}, 0x{WS_FLAGS + FL_HB * 128:x}")
P(f"s_lshr_b32 {SFO}, {TB2}, 1\ns_lshl_b32 {SFO}, {SFO}, 7\ns_add_u32 {SFO}, {SFO}, 0x{WS_FLAGS + FL_O * 128:x}")
P(f"s_lshl_b32 {SXW}, {T2}, 13\ns_lshl_b32 {T3}, {KH}, 14\ns_add_u32 {SXW}, {SXW}, {T3}\ns_add_u32 {SXW}, {SXW}, 0x{L_XY:x}")
SXS = "s15"
P(f"s_cmp_eq_u32 {KH}, 0")
sel2(SXS, (L_XS0 - L_XY) & 0xffffffff, L_XS1 - L_XY - 16 * K)
if OPT["tlb"] == 2:
    P(f"buffer_load_dword v47, v0, {rWS}, {SBASE} offen sc1")
P(f"s_mov_b32 s14, {RHOA}")
for g in list(range(8)) + list(range(11, 15)):
    r = f"s{36 + g}"
    P(f"s_add_u32 {r}, {RHO2 if g < 8 else RHOS}, {g % 11}\ns_and_b32 {r}, {r}, {7 if g < 8 else 3}\ns_lshl_b32 {r}, {r}, 13\ns_add_u32 {r}, {r}, {SBASE}")
    if g >= 11:
        P(f"s_add_u32 {r}, {r}, {86 * K}")
P(f"s_add_u32 s14, s14, {KH}")
for n in range(16, 22):
    r = f"s{8 + n - 16}"
    P(f"s_add_u32 {r}, s14, {2 * (n - 16)}\ns_cmp_ge_u32 {r}, 11\ns_cselect_b32 {T3}, 11, 0\ns_sub_u32 {r}, {r}, {T3}")
    P(f"s_sub_u32 {r}, {r}, {KH}\ns_add_u32 {r}, {r}, {32 - 2 * (n % 2)}\ns_lshl_b32 {r}, {r}, 11\ns_add_u32 {r}, {r}, {SBASE}")
P(f"s_mov_b32 s74, 0x{f2u(1e-6):x}\ns_mov_b32 s75, 0x{f2u(1e-6):x}")
P(f"s_mov_b32 {T2}, 0x3f803f80")
P("v_mov_b32 v40, 0\nv_mov_b32 v41, 0\nv_mov_b32 v42, 0\nv_mov_b32 v43, 0")
stamp(0, "pre")
P("s_waitcnt vmcnt(2)" if OPT["touch"] == 9 else "s_waitcnt vmcnt(0)")
stamp(0, "xin")
for n in range(8):
    P(f"v_dot2_f32_bf16 {v(40 + (n & 1))}, {v(32 + n)}, {T2}, {v(40 + (n & 1))}")
    P(f"v_dot2_f32_bf16 {v(42 + (n & 1))}, {v(32 + n)}, {v(32 + n)}, {v(42 + (n & 1))}")
P("s_nop 2")
P("v_add_f32 v40, v40, v41\nv_add_f32 v42, v42, v43")
for r in (8, 4, 2, 1):
    P(f"v_add_f32_dpp v40, v40, v40 row_ror:{r} row_mask:0xf bank_mask:0xf")
    P(f"v_add_f32_dpp v42, v42, v42 row_ror:{r} row_mask:0xf bank_mask:0xf")
P("v_mov_b32 v41, v40\nv_mov_b32 v43, v42")
P("v_permlane16_swap_b32 v40, v41\nv_permlane16_swap_b32 v42, v43")
P("v_add_f32 v40, v40, v41\nv_add_f32 v42, v42, v43")
P(f"v_mul_f32 v40, 0x{f2u(1 / 512):x}, v40\nv_mul_f32 v42, 0x{f2u(1 / 512):x}, v42")
P("v_fma_f32 v42, -v40, v40, v42\nv_max_f32 v42, 0, v42")
P(f"v_cvt_pk_bf16_f32 v42, v42, v42\nv_and_b32 v42, 0xffff0000, v42\nv_add_f32 v42, 0x{f2u(1e-5):x}, v42")
P("v_cvt_pk_bf16_f32 v42, v42, v42\nv_and_b32 v42, 0xffff0000, v42\nv_sqrt_f32 v42, v42")
P("v_cvt_pk_bf16_f32 v44, v40, v42")
P("v_lshlrev_b32 v28, 3, v26")
P(f"s_lshl_b32 {T0}, {T0}, 3\ns_add_u32 {T0}, {T0}, 0x{WS_STATS:x}")
P("s_waitcnt lgkmcnt(0)")
P(f"s_add_u32 {NONCE}, {NONCE}, 1")
XTAG = "s78"
P(f"s_getreg_b32 {XTAG}, hwreg(HW_REG_XCC_ID, 0, 4)\ns_lshl_b32 {XTAG}, {XTAG}, 28\ns_xor_b32 {XTAG}, {XTAG}, {NONCE}")
P(f"v_mov_b32 v45, {XTAG}\nv_mov_b32 v5, {NONCE}")
P(f"s_mov_b32 s56, {T0}\nv_mov_b32 v2, v44\nv_mov_b32 v3, v45\nv_mov_b32 v25, v28")
P("v_lshlrev_b32 v26, 3, v27\nv_lshlrev_b32 v27, 3, v0")
P(f"s_lshl_b32 {T0}, {W}, 8\ns_add_u32 {T0}, {T0}, 0x{L_CSX:x}")
P(f"v_lshl_add_u32 v28, v0, 2, {T0}")
P(f"v_add_u32 v29, 0x{L_EX1:x}, v27")
GLOAD = f"buffer_load_dwordx2 {v(GR, 2)}, v26, {rWS}, {SG} offen sc1"
CSIG, CPK, CPC = 30, 31, 3
P(f"s_lshl_b32 {T0}, {W}, 2\ns_add_u32 {T0}, {T0}, 0x{L_PRG:x}\nv_mov_b32 {v(CSIG)}, {T0}")
P(f"v_and_b32 {v(CPK)}, 3, v0\nv_lshlrev_b32 {v(CPK)}, 2, {v(CPK)}\nv_add_u32 {v(CPK)}, 0x{L_RDY:x}, {v(CPK)}")
stamp(0, "stats")


def p1_x(st, t):
    if OPT["nocomp"]:
        return
    sl = st % 3
    P(f"ds_read_b128 {v(XR + 16 * st + 4 * t, 4)}, {v(XA + t + (4 if sl == 2 else 0))} offset:{(sl % 2) * 32 * K}")
    lg.add(("x", st, t))


def p1_w(st, t, b):
    if OPT["nocomp"]:
        return
    sl = st % 3
    a = WA + (b & 1) + (2 if sl == 2 else 0)
    off = (sl % 2) * 32 * K + 16 * K + (b >> 1) * 8 * K + t * 2048
    f = WR + ((t & 1) * 4 + b) * 4
    tr(f, a, off, None)
    tr(f + 2, a, off + 512, ("w", st, t, b))


def p1_m(st, t, b):
    if OPT["nocomp"]:
        return
    lg.wait(("x", st, t))
    lg.wait(("w", st, t, b))
    f = WR + ((t & 1) * 4 + b) * 4
    c = "0" if (st == 0 and t == 0) else v(ACC + 16 * b, 16)
    P(f"v_mfma_f32_32x32x16_bf16 {v(ACC + 16 * b, 16)}, {v(f, 4)}, {v(XR + 16 * st + 4 * t, 4)}, {c}")


P("s_barrier ; b0")
stamp(0, "b0")
if OPT["p2only"]:
    P("s_branch L_c2")
p1_x(0, 0)
for b in range(4):
    p1_w(0, 0, b)
P("s_mov_b32 exec_lo, 1\ns_mov_b32 exec_hi, 1")
P(f"buffer_store_dwordx2 v[2:3], v25, {rWS}, s56 offen sc1")
P("s_mov_b64 exec, -1")
P(f"v_add_u32 {v(WA + 5)}, 0x{88 * K:x}, {v(WA + 1)}")
for st in range(8):
    for t in range(3):
        for b in range(4):
            p1_m(st, t, b)
            if b == 0:
                p1_x(st, t + 1)
            p1_w(st, t + 1, b)
    p1_m(st, 3, 0)
    if st == 2:
        P("ds_read_b32 v4, v28")
        lg.add(None)
    p1_m(st, 3, 1)
    if st == 6:
        P(GLOAD)
    lg.drain()
    P(f"s_barrier ; b{st + 1}")
    if st < 7:
        p1_x(st + 1, 0)
        p1_w(st + 1, 0, 0)
        p1_w(st + 1, 0, 1)
        p1_m(st, 3, 2)
        if st == 2 and not OPT["nst"] & 2:
            P(f"buffer_store_dwordx2 v[4:5], v27, {rWS}, {SCS2} offen {OPT['saux'] or ''}")
        if st == OPT["touch"] - 1:
            P(f"buffer_load_dword v8, v6, {rW2}, 0 offen\nbuffer_load_dword v9, v7, {rWO}, 0 offen")
        p1_w(st + 1, 0, 2)
        p1_w(st + 1, 0, 3)
        p1_m(st, 3, 3)
    else:
        for b in range(4):
            P(f"ds_read_b64 {v(WR + 2 * b, 2)}, v29 offset:{512 * b}")
            lg.add(("ex", b))
        p1_m(st, 3, 2)
        p1_m(st, 3, 3)
stamp(0, "b8")
if OPT["p1only"]:
    dump(0)
    P("s_endpgm")
    DIAG = 0
GCHK = f"v_xor_b32 v27, {XTAG}, {v(GR + 1)}\nv_lshlrev_b32 v28, 4, v27\nv_cmp_ne_u32 vcc, 0, v28"
P("s_waitcnt vmcnt(0)")
P(GCHK)
retry("L_gr", GLOAD, GCHK)
P(f"v_cmp_ne_u32 vcc, 0, v27\ns_or_b32 {T0}, vcc_lo, vcc_hi\nv_mov_b32 v27, {T0}\ns_mov_b64 exec, 1")
P(f"ds_write_b32 {v(CSIG)}, v27 offset:{L_FAST - L_PRG}\ns_mov_b64 exec, -1")
lg.add(None)
P(f"s_mov_b32 {T0}, 0x01000100")
P(f"v_perm_b32 {v(XE)}, {v(GR)}, {v(GR)}, {T0}")
P(f"v_xor_b32 {v(XE)}, 0x80008000, {v(XE)}")
P(f"v_lshrrev_b32 {v(XE + 1)}, 16, {v(GR)}")
P(f"v_and_b32 {v(SD)}, 0xffff0000, {v(GR)}")
P(f"v_rcp_f32 {v(RS)}, {v(SD)}")
for b in range(4):
    lg.wait(("ex", b))
    P(f"v_mfma_f32_32x32x8bf16_1k {v(ACC + 16 * b, 16)}, {v(WR + 2 * b, 2)}, {v(XE, 2)}, {v(ACC + 16 * b, 16)}")
LOG2E = 1.4426950408889634
C1 = -2 * LOG2E * math.sqrt(2 / math.pi)
C2 = C1 * 0.044715
P(f"v_mul_f32 {v(K1)}, 0x{f2u(C1):x}, {v(RS)}")
P(f"v_mul_f32 {v(K2)}, {v(RS)}, {v(RS)}\nv_mul_f32 {v(K2)}, {v(K2)}, {v(RS)}\nv_mul_f32 {v(K2)}, 0x{f2u(C2):x}, {v(K2)}")
P(f"v_mul_f32 {v(RL)}, 0x{f2u(LOG2E):x}, {v(RS)}")
for r in (K1, K2, SD, RS, RL):
    P(f"v_mov_b32 {v(r + 1)}, {v(r)}")
stamp(0, "ex1")

TT, UU = 32, 48


def pairs(fmt, a):
    for p in range(8):
        P(fmt.format(T=v(TT + 2 * p, 2), A=v(a + 2 * p, 2)))


def singles(fmt):
    for r in range(16):
        P(fmt.format(T=v(TT + r)))


def cvt(dst, src=TT):
    for p in range(8):
        P(f"v_cvt_pk_bf16_f32 {v(dst + p)}, {v(src + 2 * p)}, {v(src + 2 * p + 1)}")


def epi_gelu(b, base, k, rdy=None):
    a = ACC + 16 * b
    if rdy:
        peek(CPK, 28)
    pairs("v_pk_mul_f32 {T}, {A}, {A}", a)
    pairs("v_pk_fma_f32 {T}, {T}, %s, %s" % (v(K2, 2), v(K1, 2)), a)
    pairs("v_pk_mul_f32 {T}, {T}, {A}", a)
    singles("v_exp_f32 {T}, {T}")
    pairs("v_pk_fma_f32 {T}, {T}, %s, %s" % (v(SD, 2), v(SD, 2)), a)
    singles("v_rcp_f32 {T}, {T}")
    pairs("v_pk_mul_f32 {T}, {T}, {A}", a)
    cvt(a)
    if rdy:
        await_(CPK, 28, rdy, peeked=True)
    for h in range(2 if not OPT["nods"] else 0):
        P(f"ds_write_b128 v26, {v(a + 4 * h, 4)} offset:{base - L_HS + (2 * b + h) * 4096}")
        lg.add(None)
    signal(CSIG, 27, k)


def epi_phi(b, dst):
    a = ACC + 16 * b
    pairs("v_pk_mul_f32 {T}, {A}, %s" % v(RL, 2), a)
    singles("v_exp_f32 {T}, {T}")
    pairs("v_pk_fma_f32 {A}, {A}, %s, 1.0 op_sel_hi:[1,1,0]" % v(RS, 2), a)
    for r in range(16):
        P(f"v_med3_f32 {v(TT + r)}, {v(TT + r)}, {v(a + r)}, 1.0")
    pairs("v_pk_add_f32 {T}, {T}, %s" % EPS2, a)
    cvt(dst)


def epi_lin(b, dst):
    a = ACC + 16 * b
    pairs("v_pk_mul_f32 {T}, {A}, %s" % v(RS, 2), a)
    cvt(dst)


AY, AS, AR = 64, 160, 128
RG = OPT["ring"]
NST = 30
WB, VA, FD, VF, XW, CPC2, TA, TB_, TC, XW2 = 96, 102, 104, 106, 108, 112, 113, 114, 115, 116
FHB = f"buffer_load_dword {v(FD)}, {v(VF)}, {rWS}, {SFHB} offen sc1"
FHA = f"buffer_load_dword {v(FD)}, {v(VF)}, {rWS}, {SFHA} offen sc1"
FO = f"buffer_load_dword {v(FD + 1)}, {v(VF + 1)}, {rWS}, {SFO} offen sc1"
HBC = f"v_cmp_ne_u32 vcc, {NONCE}, {v(FD)}"
vm = Q("vmcnt", 63)


def aload(n, ks):
    if n >= NST or (OPT["noa"] and n >= RG):
        return
    P(f"buffer_load_dwordx4 {v(AR + 8 * (n % RG) + 4 * ks, 4)}, {v(VA + n % 2)}, {rWS}, s{36 + (n >> 1) if not 16 <= n < 22 else 8 + n - 16} offen offset:{1024 * ks} {OPT['aaux'] or ''}")
    vm.add(("a", n, ks))


def prime():
    for n in range(RG):
        aload(n, 0)
        aload(n, 1)


nchk = [0]
def checkpoint():
    if not OPT["early"]:
        return
    nchk[0] += 1
    l = f"L_ck{nchk[0]}"
    P(f"s_getreg_b32 {T3}, hwreg(HW_REG_IB_STS, 0, 4)\ns_or_b32 {T3}, {T3}, {PRIMED}\ns_cbranch_scc1 {l}_x")
    P(f"s_waitcnt vmcnt(0)\n{HBC}\ns_cbranch_vccnz {l}_r")
    prime()
    P(f"s_mov_b32 {PRIMED}, 1")
    P.label(l + "_x")
    cold.append(f"{l}_r:\n{FHB}\ns_branch {l}_x")


def setup2():
    global P
    keep, P = P, Prog()
    P(f"v_and_b32 {v(VF + 1)}, 31, v0\nv_lshlrev_b32 {v(VF + 1)}, 2, {v(VF + 1)}\nv_and_b32 {v(VF)}, 28, {v(VF + 1)}")
    waddr(WB, TA, TB_, 2)
    P(f"v_add_u32 {v(WB)}, {SK12}, {v(WB)}\nv_xor_b32 {v(WB + 1)}, 64, {v(WB)}")
    for k in (1, 2):
        P(f"v_add_u32 {v(WB + 2 * k)}, 0x{64 * K * k:x}, {v(WB)}\nv_add_u32 {v(WB + 2 * k + 1)}, 0x{64 * K * k:x}, {v(WB + 1)}")
    P(f"v_lshrrev_b32 {v(TA)}, 1, {SK12}\nv_add_u32 {v(VA)}, {v(TA)}, {v(VH)}\nv_add_u32 {v(VA + 1)}, 0x1000, {v(VA)}")
    P(f"v_lshrrev_b32 {v(TA)}, 5, v0\nv_and_b32 {v(TB_)}, 7, v0\nv_xor_b32 {v(TA)}, {v(TA)}, {v(TB_)}\nv_lshlrev_b32 {v(TA)}, 4, {v(TA)}")
    P(f"v_and_b32 {v(TB_)}, 31, v0\nv_lshl_or_b32 {v(TA)}, {v(TB_)}, 8, {v(TA)}\nv_add_u32 {v(XW)}, {SXW}, {v(TA)}")
    for q in range(1, 4):
        P(f"v_xor_b32 {v(XW + q)}, {32 * q}, {v(XW)}")
    P(f"v_add_u32 {v(CPC2)}, 16, {v(CPK)}")
    for q in range(4):
        P(f"v_add_u32 {v(XW2 + q)}, {SXS}, {v(XW + q)}")
    lines, P = P.lines, keep
    return lines


def pass2(nb):
    side = setup2()
    n = 32 * nb
    def rd(m):
        if m >= n:
            return
        step, b = divmod(m, nb)
        off = CH(step >> 2) - 88 * K + (step & 3) * 2048
        f = WR + (m % 8) * 4
        tr(f, WA + 4 + b, off, None)
        tr(f + 2, WA + 4 + b, off + 512, ("p2", m))
    for m in range(7):
        rd(m)
    for m in range(n):
        step, b = divmod(m, nb)
        lg.wait(("p2", m))
        c = "0" if step == 0 else v(ACC + 16 * b, 16)
        P(f"v_mfma_f32_32x32x16_bf16 {v(ACC + 16 * b, 16)}, {v(WR + (m % 8) * 4, 4)}, {v(XR + 4 * step, 4)}, {c}")
        rd(m + 7)
        for _ in range(2 if nb == 1 else 1):
            if side and m >= 2 and not OPT["noside"]:
                P(side.pop(0))
        if m == max(6, n - OPT["smp"]) and not OPT["nosamp"]:
            P(FHB)
        if m == 5 and OPT["tlb"] == 1:
            P(f"buffer_load_dword {v(TC)}, {v(VF)}, {rWS}, {SBASE} offen sc1")
        if m == n - 6:
            if OPT["fill"] == 4:
                P("s_waitcnt vmcnt(0)" if OPT["nosamp"] else "s_waitcnt vmcnt(1)")
            for bb in range(nb):
                lg.room()
                P(f"ds_read_b64 {v(16 + 2 * bb, 2)}, v29 offset:{L_EX2 - L_EX1 + 512 * bb}")
                lg.add(("ex2", bb))
    while side:
        P(side.pop(0))
    checkpoint()
    lg.drain()
    signal(CSIG, 27, 8)
    for b in range(nb):
        P(f"v_mfma_f32_32x32x8bf16_1k {v(ACC + 16 * b, 16)}, {v(16 + 2 * b, 2)}, {v(XE, 2)}, {v(ACC + 16 * b, 16)}")


P(f"s_cmp_eq_u32 {TYPE}, 0")
P("s_cbranch_scc0 L_cB")
P(f"v_and_b32 v26, 31, v0\nv_lshrrev_b32 v27, 5, v0\ns_lshl_b32 {T0}, {W}, 5")
P(f"v_add_u32 v26, {T0}, v26\nv_mul_u32_u24 v26, {TROW}, v26\nv_lshl_add_u32 v26, v27, 3, v26\nv_add_u32 v26, 0x{TBUF:x}, v26")
for b in range(4):
    u = UU + 8 * (b & 1)
    (epi_phi if b < 2 else epi_lin)(b, u)
    for q in range(4):
        P(f"ds_write_b64 v26, {v(u + 2 * q, 2)} offset:{64 * b + 16 * q}")
    if OPT["fill"] == 4 and b == OPT["fo"]:
        P(f"s_lshl2_add_u32 {T1}, {I_}, {W}\ns_mul_i32 {T1}, {T1}, {TB_STRIDE}\ns_lshl_b32 {T2}, {C_}, 12\ns_add_u32 {T1}, {T1}, {T2}\ns_add_u32 {T1}, {T1}, 0x{WS_HA + 86 * K:x}")
        P(f"v_lshlrev_b32 v16, 7, v0\nv_and_b32 v16, 0xfff, v16\nbuffer_load_dword v18, v16, {rWS}, {T1} offen")
    if "st0" in OPT:
        stamp(0, f"g{b}")
P(f"v_lshrrev_b32 v26, 2, v0\nv_mul_u32_u24 v26, {TROW}, v26\nv_and_b32 v27, 3, v0\nv_lshl_add_u32 v26, v27, 3, v26")
P(f"s_add_u32 {T0}, {T0}, 0x{TBUF:x}")
P(f"v_add_u32 v26, {T0}, v26")
for r in range(4):
    P(f"v_mov_b32 {v(104 + r)}, 0x3f803f80")
P(f"s_lshl_b32 {T0}, {C_}, 4\ns_add_u32 {T0}, {T0}, {I_}\ns_mul_i32 {T0}, {T0}, {KVP_STR}\ns_add_u32 {T0}, {T0}, 0x{WS_KVP:x}")
P(f"s_lshl_b32 {T1}, {W}, 10\ns_add_u32 {T1}, {T1}, {T0}")
P(f"s_lshl_b32 {T2}, {W}, 6\ns_add_u32 {T2}, {T2}, {T0}\ns_add_u32 {T2}, {T2}, 4096")
signal(CSIG, 27, 1)
P(f"v_add_u32 {v(CPC)}, 16, {v(CPK)}")
lg.q = []
await_(CPC, 27, 1)
stamp(0, "e1")
def kvm(mm):
    lg.wait(("kv", mm, 1))
    P(f"v_mfma_f32_16x16x32_bf16 v[96:99], {v(ACC + 8 * mm, 4)}, {v(ACC + 8 * mm + 4, 4)}, {'0' if mm == 0 else 'v[96:99]'}")
    P(f"v_mfma_f32_16x16x32_bf16 v[100:103], {v(ACC + 8 * mm, 4)}, v[104:107], {'0' if mm == 0 else 'v[100:103]'}")
for m in range(4):
    for o in range(2):
        f = ACC + 8 * m + 4 * o
        tr(f, 26, m * 32 * TROW + 128 * o, None)
        tr(f + 2, 26, (m * 32 + 16) * TROW + 128 * o, ("kv", m, o))
    if m >= 2:
        kvm(m - 2)
kvm(2)
kvm(3)
P(f"v_mov_b32 v104, {NONCE}")
for h in range(4):
    P(f"s_mov_b32 {T0}, 0x0706050{h}")
    P(f"v_perm_b32 {v(96 + h)}, {v(96 + h)}, v104, {T0}\nv_perm_b32 {v(100 + h)}, {v(100 + h)}, v104, {T0}")
P(f"buffer_store_dwordx4 v[96:99], {v(VH)}, {rWS}, {T1} offen sc1")
P("s_mov_b32 exec_lo, 0x00010001\ns_mov_b32 exec_hi, 0x00010001")
P(f"buffer_store_dwordx4 v[100:103], v0, {rWS}, {T2} offen sc1")
P("s_mov_b64 exec, -1")
signal(CSIG, 27, 2)
stamp(0, "kv")
await_(CPK, 27, 1)
stamp(0, "b10")
P("s_branch L_p2")
P.label("L_cB")
lg.q = []
P(f"s_lshl_b32 {T0}, {W}, 10\ns_add_u32 {T0}, {T0}, 0x{L_HS:x}")
P(f"v_add_u32 v26, {T0}, {v(VH)}")
if OPT["fill"] == 4:
    hblock2(T1)
    P(f"s_lshl2_add_u32 {T0}, {I_}, {W}\ns_mul_i32 {T0}, {T0}, {TB_STRIDE}\ns_add_u32 {T0}, {T0}, 0x{WS_HA:x}")
    P(f"s_lshl_b32 {T1}, {T1}, 11\ns_add_u32 {T1}, {T1}, {T0}\ns_lshl_b32 {T2}, {C_}, 13\ns_add_u32 {T0}, {T0}, {T2}")
    P(f"s_cmp_lt_u32 {C_}, 3")
    sel2(T2, 0xfff, 0x7ff)
    P(f"v_lshlrev_b32 v16, 7, v0\nv_and_b32 v17, {T2}, v16")
for b in range(4):
    if b == 3:
        peek(CPK, 28)
    epi_gelu(b, L_HS, b + 1)
    if OPT["fill"] == 4 and b == OPT["f1"]:
        P(f"buffer_load_dword v18, v16, {rWS}, {T0} offen")
    if OPT["fill"] == 4 and b == OPT["f2"]:
        P(f"buffer_load_dword v19, v17, {rWS}, {T1} offen")
    if "st0" in OPT:
        stamp(0, f"g{b}")
stamp(0, "e1")
await_(CPK, 28, 1, peeked=True)
stamp(0, "b10")
P(f"s_cmp_lt_u32 {C_}, 3")
P("s_cbranch_scc1 L_p2")
lg.q = [None] * 3
pass2(1)
stamp(0, "p2")
epi_gelu(0, L_PQ, 10, 2)
stamp(0, "e2")
P("s_branch L_c2")
P.label("L_p2")
lg.q = [None] * 3
pass2(2)
stamp(0, "p2")
P(f"s_cmp_eq_u32 {TYPE}, 0")
P("s_cbranch_scc0 L_cB2")
P(f"s_lshl_b32 {T0}, {W}, 12\ns_add_u32 {T0}, {T0}, 0x{L_PQ:x}")
P(f"v_add_u32 v26, {T0}, {v(VH)}")
for b in range(2):
    epi_phi(b, UU + 8 * b)
    for h in range(2):
        P(f"ds_write_b128 v26, {v(UU + 8 * b + 4 * h, 4)} offset:{(2 * b + h) * 1024}")
    if b == 0:
        checkpoint()
signal(CSIG, 27, 10)
stamp(0, "e2")
P("s_branch L_c2")
P.label("L_cB2")
lg.q = [None]
epi_gelu(0, L_PQ, 9, 2)
checkpoint()
epi_gelu(1, L_PQ, 10)
stamp(0, "e2")
P.label("L_c2")
stamp(0, "c2")
stamp(0, "setup")
if OPT["quiet"]:
    dump(0)
    P("s_endpgm")
if OPT["nosamp"]:
    P(FHB)
P(f"s_cmp_lg_u32 {PRIMED}, 0\ns_cbranch_scc1 L_primed")
if not OPT["p2only"]:
    P(f"s_waitcnt vmcnt(0)\n{HBC}")
    retry("L_hb", FHB, HBC)
stamp(0, "hb_seen")
prime()
P.label("L_primed")
vm.q = [("a", n, ks) for n in range(RG) for ks in range(2)]


def wrd(m):
    n, ks, ct = m >> 2, (m >> 1) & 1, m & 1
    if n >= NST:
        return
    ev = {OPT["gx"]: 4, 76: 5, 88: 6}
    if m + 5 in ev:
        peek(CPK, 20)
    if m == OPT["g2"]:
        signal(CSIG, 21, 12)
    if m == 72:
        signal(CSIG, 21, 13)
    if m == 93:
        peek(CPC2, 19)
    if m in ev:
        if m == OPT["gx"]:
            signal(CSIG, 21, 11)
        await_(CPK, 20, ev[m], peeked=True)
    so = slot_of(2 * n) + ks * 2048
    k = so // (64 * K)
    f = WR + (m % 8) * 4
    if OPT["now"] and m >= 8:
        return
    tr(f, WB + 2 * k + ct, so - 64 * K * k, None)
    tr(f + 2, WB + 2 * k + ct, so - 64 * K * k + 1024, ("w2", m))


def xwrite(acc, base, ct, q):
    lg.room()
    P(f"ds_write_b128 {v(base + q)}, {v(acc + 16 * ct + 4 * q, 4)} offset:{128 * ct}")
    lg.add(("xw", acc))


lg.q = []
stamp(0, "primed")
await_(CPK, 20, 3)
for m in range(7):
    wrd(m)
for n in range(NST):
    acc = AY if n < 22 else AS
    if n == 21:
        P(f"s_cmp_eq_u32 {KH}, 0")
    for k4 in range(4):
        m = 4 * n + k4
        ks, ct = k4 >> 1, k4 & 1
        w = vm.need(("a", n, ks)) + " " + (lg.need(("w2", m | 1)) if OPT["w2"] else "") + lg.need(("w2", m))
        if w.strip():
            P("s_waitcnt " + w.strip())
        c = "0" if (n in (0, 22) and ks == 0) else v(acc + 16 * ct, 16)
        if n == 21:
            P(f"s_cbranch_scc0 L_null{k4}")
        P(f"v_mfma_f32_32x32x16_bf16 {v(acc + 16 * ct, 16)}, {v(WR + (m % 8) * 4, 4)}, {v(AR + 8 * (n % RG) + 4 * ks, 4)}, {c}")
        if n == 21:
            P.label(f"L_null{k4}")
        if k4 == 1:
            for nn, ld, fd, nm in ((16, FHA, FD, "ha"), (22, FO, FD + 1, "o")):
                if n == nn - RG - 4:
                    P(ld)
                    vm.add("f")
                if n == nn - RG and not OPT["p2only"]:
                    vm.wait("f")
                    P(f"v_cmp_ne_u32 vcc, {NONCE}, {v(fd)}")
                    retry("L_" + nm, ld, f"v_cmp_ne_u32 vcc, {NONCE}, {v(fd)}")
                    stamp(0, nm + "_seen")
        if ct == 1:
            aload(n + RG, ks)
        wrd(m + 7)
        if m == 91:
            await_(CPC2, 19, 13, peeked=True)
        if m >= 91 and (m - 91) % OPT["ys"] == 0 and (m - 91) // OPT["ys"] < 8:
            xwrite(AY, XW, ((m - 91) // OPT["ys"]) >> 2, ((m - 91) // OPT["ys"]) & 3)
        if m == 91 + 7 * OPT["ys"] + OPT["dy"]:
            lg.wait(("xw", AY))
            P("s_barrier ; dY")
    if "st0" in OPT:
        stamp(0, f"n{n}")
stamp(0, "sdone")
for ct in range(2):
    for q in range(4):
        xwrite(AS, XW2, ct, q)
lg.drain()
P("s_barrier ; dS")
P(f"s_or_b32 {T0}, s2, {W}\ns_cmp_eq_u32 {T0}, 0")
P("s_cbranch_scc0 L_cend")
flag_store(T0)
P.label("L_cend")
dump(0)
P("s_endpgm")
flush_cold()
P.label("L_codeend")

body = P.finish()
hdr = f"""; Fused LayerNorm + linear attention + GELU FFN block, one persistent launch (256 workgroups, one per CU).
; Generated by work/gen2.py.  Four waves stream operands into LDS, four waves compute.
; @launch grid=(256,1,1) block=(512,1,1) lds=163840
.amdgcn_target "amdgcn-amd-amdhsa--gfx950"
.text
.globl {KNAME}
.p2align 8
.type {KNAME},@function
{KNAME}:
"""
tail = f"""
.section .rodata,"a"
.p2align 6
.amdhsa_kernel {KNAME}
  .amdhsa_next_free_vgpr 256
  .amdhsa_next_free_sgpr 102
  .amdhsa_accum_offset 256
  .amdhsa_group_segment_fixed_size 0
  .amdhsa_kernarg_size 88
  .amdhsa_user_sgpr_count 2
  .amdhsa_user_sgpr_kernarg_segment_ptr 1
  .amdhsa_system_sgpr_workgroup_id_x 1
  .amdhsa_float_denorm_mode_32 3
.end_amdhsa_kernel
"""
if OPT["diag"]:
    tail += f"; STAMPS0 {' '.join(slots[0])}\n"
sys.stdout.write(hdr + body + tail)
sys.stderr.write(f"pads {P.npad}\n")
```

```python
import sys, os, struct, math
from asmlib import Prog, v, s

KNAME = "recurrent_scan__linear_attn_block__dense_activation_gelu__prompt_kernel"
OPT = dict(diag=0, outaux="sc1", map1=81, spin=16, codepf=1, ldfirst=1, prio=1,
           nA9=3, nA10=7, nB10=8, mf=56, cprio=3, gx=36, n6=2, n7=1, kA=12, lag=8, sp=0, sp0=0, nost=0, slp=4, kvw=0, gprio=3, sA=4, xB=8, fast=1, nt1=2, trow=272, nosamp=0, e1B=4, iB2=2, e1A=20, gd=16, lB2=5, lB1=0, cw=1, tlb=0, fill=0, f1=0, f2=9, fo=0, wsoff=0, wprio=3, l1=9, fence=1, inl=1, w0=6, w1=8, w0c=6, quiet=0, nosig=0, noside=0, nt2=2, wb=0, lB=0, hk1=0, lA0=8, lA=0, kq=2, wbj=0, kA0=12, kA1=8, kA2=0, rotx=1, spx=0, pB=10, iB=0, ring=4, nods=0, lsl=0, yB=12, zB=4, yB1=2, zB1=4, aaux="sc1", ahot=0, g2=52, rot2=1, pace=0, pace1=0, dy=4, ys=2, w2=1, p2only=0, plain=0, stouch=0, nst=0, saux="sc1", csprio=3, early=0, map2=81, smp=28, noa=0, now=0, la=7, touch=0, ltouch=1, gl=0, eb=1, chl=0, preA=0, f6=0, prime=4, cH1=4, cHA=12, cO=18, fl=4, ft=1, exprio=1, stdiag=0, p1only=0, nocomp=0, norot=0, noload=0, nocs=0)
for a in sys.argv[1:]:
    k, val = a.split("=")
    OPT[k] = val if not val.lstrip("-").isdigit() else int(val)
DIAG = OPT["diag"]
assert OPT["gx"] <= 36


def f2u(x):
    return struct.unpack("<I", struct.pack("<f", x))[0]


K = 1024
WS_STATS = 0x1000
WS_FLAGS = 0x8000
FL_HB, FL_HA, FL_O, FL_H1 = 0, 64, 128, 192
WS_KVP = 0x10000
KVP_STR = 4352
WS_CS = 0xA0000
WS_HA = 0x140000 + OPT["wsoff"] * 0x100000
TB_STRIDE = 118 * K
WS_DIAG = 0x900000
WS_SIZE = 0xA00000 + OPT["wsoff"] * 0x100000
def CH(q):
    return 96 * K + 8 * K * q if q < 7 else 88 * K
TBUF = 52 * K
TROW = OPT["trow"]
L_EX1 = 152 * K
L_CSX = 156 * K
L_RDY = 154 * K
L_PRG = L_RDY + 16
L_TAG = L_RDY + 32
L_FAST = L_RDY + 48
L_EX2 = 155 * K
L_KT = 156 * K
L_PQ = 72 * K
L_HS = 52 * K
L_XY = 112 * K
L_XS0, L_XS1 = 72 * K, 144 * K
def slot_of(p):
    if p < 18:
        return p * 4 * K
    if p < 34:
        return CH((p - 18) >> 1) + (p & 1) * 4 * K
    if p < 38:
        return 72 * K + (p - 34) * 4 * K
    return slot_of(p - 38)

rX, rP1, rP2, rWS, rW2, rWO, rA, rB = (s(n, 4) for n in (4, 8, 12, 16, 20, 24, 28, 32))
P_X, P_QKV, P_WO, P_W1, P_B1, P_W2, P_B2, P_OUT, P_WS = 36, 38, 40, 44, 46, 48, 50, 52, 56
NONCE, W, I_, J_, C_, TYPE, RHO, TB2, CT, RHO2 = (s(n) for n in range(58, 68))
T0, T1, T2, T3 = (s(n) for n in range(68, 72))

P = Prog()


class Q:
    def __init__(self, name, mx):
        self.q, self.name, self.mx = [], name, mx

    def room(self):
        if len(self.q) >= self.mx:
            P(f"s_waitcnt {self.name}({self.mx - 1})")
            self.q = self.q[len(self.q) - (self.mx - 1):]

    def add(self, tag=None):
        self.q.append(tag)

    def need(self, tag):
        if tag not in self.q:
            return ""
        idx = max(i for i, t in enumerate(self.q) if t == tag)
        n = len(self.q) - 1 - idx
        assert n <= self.mx, (self.name, n)
        self.q = self.q[idx + 1:]
        return f"{self.name}({n})"

    def wait(self, tag):
        t = self.need(tag)
        if t:
            P("s_waitcnt " + t)

    def drain(self, force=False):
        if self.q or force:
            P(f"s_waitcnt {self.name}(0)")
        self.q = []


slots = [{}, {}]
def stamp(role, name):
    if not DIAG:
        return
    want = str(OPT.get(f"st{role}", "")).split(",")
    if want != [""] and name not in want and name not in ("start", "end"):
        return
    n = slots[role].setdefault(name, len(slots[role]))
    if DIAG >= 3:
        assert n < 9, (role, name)
        P(f"{'s_memtime' if DIAG == 4 else 's_memrealtime'} s[{80 + 2 * n}:{81 + 2 * n}]")
        return
    assert n < 16, (role, name)
    P(f"{'s_memtime' if DIAG == 2 else 's_memrealtime'} s[96:97]\ns_waitcnt lgkmcnt(0)\ns_mov_b32 s{80 + n}, s96")


def sreg(r):
    return int(r[2:r.index(":")])


def srd(r, ptr, size):
    n = sreg(r)
    P(f"s_mov_b32 s{n}, s{ptr}\ns_mov_b32 s{n+1}, s{ptr+1}\ns_mov_b32 s{n+2}, 0x{size:x}\ns_mov_b32 s{n+3}, 0x20000")


def sel2(dst, a, b):
    P(f"s_mov_b32 {dst}, 0x{b:x}\ns_cmov_b32 {dst}, 0x{a:x}")


cold = []


def flush_cold():
    for t in cold:
        P(t)
    cold.clear()


def spin_text(lbl, load, check):
    t = f"s_mov_b32 {T3}, {1 << OPT['spin']}\n{lbl}:\n{load}\ns_waitcnt vmcnt(0)\n{check}\n"
    t += f"s_sub_u32 {T3}, {T3}, 1\ns_cbranch_scc1 {lbl}_x\ns_cbranch_vccz {lbl}_x\n"
    if OPT["slp"]:
        t += f"s_sleep {OPT['slp']}\n"
    return t + f"s_branch {lbl}"


def spin(lbl, load, check):
    P(spin_text(lbl, load, check))
    P.label(lbl + "_x")


def retry(lbl, load, check):
    if OPT["inl"]:
        P(f"s_cbranch_vccz {lbl}_x")
        spin(lbl, load, check)
        return
    P(f"s_cbranch_vccnz {lbl}_s")
    P.label(lbl + "_x")
    cold.append(f"{lbl}_s:\n" + spin_text(lbl, load, check))


HX = "row"
FAR = "s46"
nrow = [0]
def row_store(text, nt=0):
    if not OPT["fast"] or nt == 2:
        P(text + " sc1")
        return
    nrow[0] += 1
    l = f"L_r{nrow[0]}"
    P(f"s_cmp_lg_u32 {FAR}, 0\ns_cbranch_scc1 {l}\n{text} {'nt' if nt else ''}\n{l}_x:")
    cold.append(f"{l}:\n{text} sc1\ns_branch {l}_x")


def flag_store(sreg_off, va=26, aux="sc1"):
    P(f"v_mov_b32 {v(va)}, {NONCE}\nv_mov_b32 {v(va+1)}, 0")
    P("s_mov_b64 exec, 1")
    if aux == "row":
        row_store(f"buffer_store_dword {v(va)}, {v(va+1)}, {rWS}, {sreg_off} offen")
    else:
        P(f"buffer_store_dword {v(va)}, {v(va+1)}, {rWS}, {sreg_off} offen {aux}")
    P("s_mov_b64 exec, -1")


def signal(vaddr, vtmp, k, fence=False):
    if fence and OPT["fence"]:
        lg.drain(force=True)
    P(f"v_mov_b32 {v(vtmp)}, {k}\ns_mov_b64 exec, 1\nds_write_b32 {v(vaddr)}, {v(vtmp)}\ns_mov_b64 exec, -1")
    lg.add(None)


nwait = [0]
def peek(vaddr, vd):
    lg.room()
    P(f"ds_read_b32 {v(vd)}, {v(vaddr)}")
    lg.add(("peek", vd))


def await_(vaddr, vd, k, peeked=False):
    nwait[0] += 1
    lbl = f"L_w{nwait[0]}"
    if not peeked:
        peek(vaddr, vd)
    lg.wait(("peek", vd))
    P(f"v_cmp_gt_u32 vcc, {k}, {v(vd)}")
    loop = (f"s_mov_b32 {T3}, {1 << 20}\n{lbl}:\nds_read_b32 {v(vd)}, {v(vaddr)}\ns_sub_u32 {T3}, {T3}, 1\ns_waitcnt lgkmcnt(0)\n"
            f"v_cmp_gt_u32 vcc, {k}, {v(vd)}\ns_cbranch_scc1 {lbl}_x\ns_cbranch_vccnz {lbl}")
    if OPT["inl"]:
        P(f"s_cbranch_vccz {lbl}_x\n{loop}")
    else:
        P(f"s_cbranch_vccnz {lbl}_s")
        cold.append(f"{lbl}_s:\n{loop}\ns_branch {lbl}_x")
    P.label(lbl + "_x")


def hblock2(dst):
    P(f"s_lshl_b32 {dst}, {C_}, 1\ns_add_u32 {T3}, {C_}, 3\ns_min_u32 {dst}, {dst}, {T3}\ns_add_u32 {dst}, {dst}, 32")


def waddr(dst, t1, t2, hshift):
    P(f"v_lshrrev_b32 {v(t1)}, 5, v0\nv_bfe_u32 {v(t2)}, v0, 2, 2\nv_lshl_add_u32 {v(t1)}, {v(t1)}, {hshift}, {v(t2)}")
    P(f"v_lshlrev_b32 {v(dst)}, 7, {v(t1)}")
    P(f"v_bfe_u32 {v(t1)}, v0, 3, 1\nv_lshl_or_b32 {v(dst)}, {v(t1)}, 6, {v(dst)}")
    P(f"v_bfe_u32 {v(t1)}, v0, 4, 1\nv_lshl_or_b32 {v(dst)}, {v(t1)}, 5, {v(dst)}")
    P(f"v_and_b32 {v(t1)}, 3, v0\nv_lshl_or_b32 {v(dst)}, {v(t1)}, 3, {v(dst)}")


def tr(dst, addr, off, tag):
    assert 0 <= off < 65536, off
    lg.room()
    P(f"ds_read_b64_tr_b16 {v(dst, 2)}, {v(addr)} offset:{off}")
    lg.add(tag)


def dump(role):
    if not DIAG:
        return
    P("s_waitcnt vmcnt(0)")
    stamp(role, "end")
    P("s_waitcnt lgkmcnt(0)")
    for n in range(16):
        P(f"v_mov_b32 {v(32 + n)}, {s(80 + n) if DIAG < 3 else (s(80 + 2 * n) if n < 10 else ('s100' if n == 15 else 0))}")
    if role == 1 and DIAG >= 3 and OPT.get("xcc"):
        P(f"s_getreg_b32 {T0}, hwreg(HW_REG_XCC_ID, 0, 4)\ns_min_u32 {T1}, s46, 1\ns_lshl4_add_u32 {T0}, {T1}, {T0}\nv_mov_b32 v45, {T0}")
    P(f"s_lshl_b32 {T0}, s2, 3\ns_add_u32 {T0}, {T0}, {W}\ns_lshl_b32 {T0}, {T0}, 6\ns_add_u32 {T0}, {T0}, 0x{WS_DIAG + role * 256:x}")
    P("v_mov_b32 v26, 0\ns_mov_b64 exec, 1")
    for n in range(4):
        P(f"buffer_store_dwordx4 {v(32 + 4 * n, 4)}, v26, {rWS}, {T0} offen offset:{16 * n}")


P("s_cmp_ge_u32 s2, 256")
P("s_cbranch_scc1 L_end")
if DIAG >= 3:
    P("s_memrealtime s[100:101]")
P("s_load_dwordx16 s[36:51], s[0:1], 0")
P("v_lshrrev_b32 v1, 6, v0")
P("v_and_b32 v0, 63, v0")
P(f"v_lshlrev_b32 v2, 2, v1\nv_add_u32 v2, 0x{L_RDY:x}, v2\nv_mov_b32 v3, 0\nds_write_b32 v2, v3")
if OPT["map1"] == 81:
    P(f"s_lshr_b32 {T3}, s2, 7\nv_readfirstlane_b32 {T2}, v1\ns_and_b32 {I_}, s2, 7\ns_bfe_u32 {J_}, s2, 0x40003")
    P(f"s_lshl2_add_u32 {RHO}, {T3}, {J_}\ns_and_b32 {T1}, s2, 3\ns_lshl1_add_u32 {I_}, {I_}, {T3}\ns_add_u32 {RHO}, {RHO}, {T1}\ns_and_b32 {RHO}, {RHO}, 7")
elif OPT["map1"] == 24:
    P(f"s_lshr_b32 {T3}, s2, 5\nv_readfirstlane_b32 {T2}, v1\ns_and_b32 {I_}, s2, 4\ns_bfe_u32 {T1}, s2, 0x20003\ns_and_b32 {J_}, s2, 3")
    P(f"s_lshl1_add_u32 {I_}, {I_}, {T3}\ns_lshl2_add_u32 {J_}, {J_}, {T1}\ns_lshl1_add_u32 {RHO}, {T1}, {T3}\ns_and_b32 {T1}, s2, 1\ns_add_u32 {RHO}, {RHO}, {T1}\ns_and_b32 {RHO}, {RHO}, 7")
else:
    P(f"s_lshr_b32 {T3}, s2, 6\nv_readfirstlane_b32 {T2}, v1\ns_and_b32 {I_}, s2, 6\ns_bfe_u32 {T1}, s2, 0x30003\ns_and_b32 {J_}, s2, 1")
    P(f"s_lshl1_add_u32 {I_}, {I_}, {T3}\ns_lshl3_add_u32 {J_}, {J_}, {T1}\ns_lshl1_add_u32 {RHO}, {T3}, {T1}\ns_bfe_u32 {T1}, s2, 0x10001\ns_add_u32 {RHO}, {RHO}, {T1}\ns_and_b32 {RHO}, {RHO}, 7")
P(f"s_and_b32 {W}, {T2}, 3")
def late_args():
    P("s_load_dwordx4 s[52:55], s[0:1], 64")
    P("s_load_dwordx2 s[56:57], s[0:1], 80")
    P(f"s_lshr_b32 {C_}, {J_}, 1\ns_and_b32 {TYPE}, {J_}, 1")
def diag_init():
    if DIAG:
        for n in range(20):
            P(f"s_mov_b32 s{80 + n}, 0")


RHOS, RHOA = "s3", "s47"
def tile2():
    if OPT["map2"] == 42:
        P(f"s_lshr_b32 {T3}, s2, 5\ns_bfe_u32 {TB2}, s2, 0x20001\ns_lshl_b32 {TB2}, {TB2}, 3\ns_add_u32 {TB2}, {TB2}, {T3}")
        P(f"s_bfe_u32 {RHO2}, s2, 0x20003\ns_and_b32 {CT}, s2, 1\ns_lshl_b32 {CT}, {CT}, 2\ns_add_u32 {CT}, {CT}, {RHO2}")
        P(f"s_lshl_b32 {RHO2}, {RHO2}, 1\ns_add_u32 {RHO2}, {RHO2}, {T3}\ns_and_b32 {RHO2}, {RHO2}, 7")
        return
    P(f"s_lshr_b32 {T3}, s2, 6\ns_and_b32 {TB2}, s2, 7\ns_lshl_b32 {TB2}, {TB2}, 2\ns_add_u32 {TB2}, {TB2}, {T3}")
    P(f"s_bfe_u32 {CT}, s2, 0x30003\ns_lshl_b32 {RHO2}, {T3}, 1\ns_add_u32 {RHO2}, {RHO2}, {CT}\ns_and_b32 {RHO2}, {RHO2}, 7")
    P(f"s_add_u32 {RHOS}, {T3}, {CT}\ns_mul_i32 {RHOA}, {T3}, 3\ns_and_b32 {T3}, {CT}, 1\ns_add_u32 {RHOA}, {RHOA}, {T3}")
    if not OPT["rotx"]:
        P(f"s_mov_b32 {RHOS}, {RHO2}\ns_mov_b32 {RHOA}, 0")


P(f"s_cmp_lt_u32 {T2}, 4")
P("s_cbranch_scc1 L_loader")
late_args()
if OPT["codepf"]:
    P("s_getpc_b64 s[32:33]")
    P.label("L_pc")
    P("s_mov_b32 s34, L_codeend-L_pc\ns_mov_b32 s35, 0x20000")
    P(f"s_lshr_b32 {T0}, s2, 3\ns_lshl2_add_u32 {T1}, {T0}, {W}\ns_lshl_b32 {T1}, {T1}, 7\nv_and_b32 v4, 3, v0\nv_lshl_add_u32 v4, v4, 14, {T1}")
    P("buffer_load_dword v31, v4, s[32:35], 0 offen")
P("s_branch L_compute")
P.label("L_loader")

lg = Q("lgkmcnt", 15)
vm = Q("vmcnt", 63)
VX, VP1, VP2, VW2, VBI, LWA, LWB, VL16, SEL, CS, CS2 = 1, 2, 3, 4, 5, 6, 7, 8, 12, 16, 20
RS1, RS32, SX0, SW0, DCOL, SP20, SM, HB0L = (s(n) for n in range(72, 80))
if DIAG < 3:
    diag_init()
    stamp(1, "start")
P("v_lshrrev_b32 v24, 3, v0\nv_and_b32 v25, 7, v0\nv_lshrrev_b32 v26, 4, v0")
P(f"s_and_b32 {T0}, {W}, 1\ns_lshl_b32 {T0}, {T0}, 2\ns_lshl4_add_u32 {SX0}, {I_}, {W}")
P(f"v_add_u32 v27, {T0}, v26\nv_xor_b32 v27, v27, v25\nv_lshlrev_b32 v27, 4, v27\nv_lshl_or_b32 {v(VX)}, v24, 10, v27")
P(f"s_lshl_b32 {SX0}, {SX0}, 13\ns_lshl_b32 {SM}, {W}, 10")
P("s_mov_b32 s6, 0x200000\ns_mov_b32 s7, 0x20000")
SZQ, SZ1 = 512 * 3072, 512 * 2752


def wsetup():
    late_args()
    P(f"s_setprio {OPT['prio']}")
    P(f"s_lshl_b32 {T1}, {C_}, 7\ns_cmp_eq_u32 {TYPE}, 0")
    sel2(RS1, 3072, 2752)
    sel2(DCOL, 1024, 128)
    sel2("s10", SZQ, SZ1)
    P(f"s_cselect_b32 s8, s{P_QKV}, s{P_W1}\ns_cselect_b32 s9, s{P_QKV+1}, s{P_W1+1}\ns_mov_b32 s11, 0x20000")
    P(f"s_cselect_b32 {SW0}, 1024, {T1}\ns_add_u32 {SW0}, {SW0}, {T1}")
    P("v_and_b32 v27, 1, v26\nv_lshlrev_b32 v27, 2, v27\nv_xor_b32 v27, v27, v25\nv_lshlrev_b32 v27, 4, v27")
    P(f"v_mad_u32_u24 {v(VP1)}, v24, {RS1}, v27")
    P(f"s_lshl_b32 {T3}, {W}, 3\ns_mul_i32 {SP20}, {T3}, {RS1}\ns_add_u32 {SW0}, {SW0}, {SP20}\ns_lshl_b32 {RS32}, {RS1}, 5")


def wsetup2():
    hblock2(HB0L)
    P(f"s_lshl_b32 {T0}, {HB0L}, 6\ns_lshl_b32 {T1}, {C_}, 7\ns_cmp_eq_u32 {TYPE}, 0\ns_cselect_b32 {T0}, {T1}, {T0}\ns_add_u32 {SP20}, {SP20}, {T0}")
    P(f"v_lshl_or_b32 {v(VW2)}, v24, 10, v27")


def dma(voff, srdr, soff, tag):
    if OPT["noload"]:
        return
    P(f"buffer_load_dwordx4 {v(voff)}, {srdr}, {soff} offen lds")
    vm.add(tag)


def ks_reg(q):
    P(f"s_add_u32 {T0}, {RHO}, {q}\ns_and_b32 {T0}, {T0}, 7" if q else f"s_mov_b32 {T0}, {RHO}")


def stage(q, mid=None, pre=None):
    sl = (q % 3) * 32 * K
    ks_reg(q)
    P(f"s_lshl_b32 {T1}, {T0}, 7\ns_add_u32 {T1}, {T1}, {SX0}")
    for m in range(4):
        P(f"s_add_u32 m0, {SM}, {sl + 4 * K * m}")
        if m:
            P(f"s_add_u32 {T1}, {T1}, 32768")
        else:
            P(f"s_lshl_b32 {T0}, {T0}, 6")
            if pre:
                pre()
        dma(VX, rX, T1, ("st", q))
    if mid:
        mid()
    P(f"s_mul_i32 {T0}, {T0}, {RS1}\ns_add_u32 {T0}, {T0}, {SW0}")
    for h in range(2):
        if h:
            P(f"s_add_u32 {T0}, {T0}, {RS32}")
        P(f"s_add_u32 m0, {SM}, {sl + 16 * K + 4 * K * h}")
        P(f"s_add_u32 {T1}, {T0}, {DCOL}")
        dma(VP1, rP1, T0, ("st", q))
        P(f"s_add_u32 m0, {SM}, {sl + 24 * K + 4 * K * h}")
        dma(VP1, rP1, T1, ("st", q))


def chunk(q, tag="ch"):
    ks_reg(q)
    P(f"s_lshl_b32 {T0}, {T0}, 6\ns_mul_i32 {T0}, {T0}, {RS1}")
    P(f"s_add_u32 m0, {SM}, {CH(q)}\ns_add_u32 {T0}, {T0}, {SP20}")
    dma(VP1, rP1, T0, tag)
    P(f"s_add_u32 m0, {SM}, {CH(q) + 4 * K}\ns_add_u32 {T0}, {T0}, {RS32}")
    dma(VP1, rP1, T0, tag)


LPA, LPL = "s48", "s49"
LPB, LGB, SCS = "s36", "s37", "s38"
CHR, MID, PQR, D0, D1 = 48, 104, 212, 32, 228


def page_addr(p):
    if p < 32:
        if p % 2 == 0 or page_addr.last != ("b", p >> 1):
            P(f"s_add_u32 {LGB}, {RHO2}, {(p >> 1) & 7}\ns_and_b32 {LGB}, {LGB}, 7\ns_lshl_b32 {LGB}, {LGB}, 17\ns_add_u32 {LGB}, {LGB}, {LPB}")
            page_addr.last = ("b", p >> 1)
        P(f"s_add_u32 {T0}, {LGB}, {(2 * (p >> 4) + (p & 1)) * 32768}")
        return rW2
    elif p < 44:
        P(f"s_add_u32 {T0}, {LPA}, {(p - 32) * 32768}\ns_cmp_ge_u32 {T0}, {LPL}\ns_cselect_b32 {T1}, {11 * 32768}, 0\ns_sub_u32 {T0}, {T0}, {T1}")
        return rW2
    else:
        g, mask, sr, add = (p - 44) >> 2, 3, rWO, 0
    if p % 4 == 0 or page_addr.last != (p >> 2):
        P(f"s_add_u32 {LGB}, {RHOS}, {g}\ns_and_b32 {LGB}, {LGB}, {mask}\ns_lshl_b32 {LGB}, {LGB}, 17\ns_add_u32 {LGB}, {LGB}, {LPB}")
        page_addr.last = p >> 2
    P(f"s_add_u32 {T0}, {LGB}, {(p % 4) * 32768}")
    return sr
page_addr.last = None


def page(p):
    P(f"s_add_u32 m0, {SM}, {slot_of(p)}")
    sr = page_addr(p)
    dma(VW2, sr, T0, ("pg", p))


def stg_reg(p):
    if p < 38:
        return MID + 4 * (p - 18)
    k = p - 38 if p < 43 else p - 39
    return CHR + 4 * k if k < 14 else 184 + 4 * (k - 14)


def lds16(a):
    return f"{v(VL16 + a // (64 * K))}", a % (64 * K)


def chunk_stage(q):
    ks_reg(q)
    P(f"s_lshl_b32 {T0}, {T0}, 6\ns_mul_i32 {T0}, {T0}, {RS1}\ns_add_u32 {T0}, {T0}, {SP20}\ns_add_u32 {T1}, {T0}, {RS32}")
    for h in range(2):
        P(f"buffer_load_dwordx4 {v(CHR + 8 * (q - 1) + 4 * h, 4)}, {v(VP1)}, {rP1}, {(T0, T1)[h]} offen")
        vm.add(("ch", q))


def chunk_write(q):
    vm.wait(("ch", q))
    for h in range(2):
        a, off = lds16(CH(q) + 4 * K * h)
        P(f"ds_write_b128 {a}, {v(CHR + 8 * (q - 1) + 4 * h, 4)} offset:{off}")


def page_stage(p):
    sr = page_addr(p)
    P(f"buffer_load_dwordx4 {v(stg_reg(p), 4)}, {v(VW2)}, {sr}, {T0} offen")
    vm.add(("pg", p))


def page_write(p, pace=0):
    so = slot_of(p)
    a, off = (VL16, so) if so < 64 * K else ((VL16 + 1, so - 64 * K) if so < 128 * K else (VL16 + 2, so - 128 * K))
    P(f"ds_write_b128 {v(a)}, {v(stg_reg(p), 4)} offset:{off}")
    if pace:
        P("s_waitcnt lgkmcnt(0)")


stage(0, wsetup, lambda: P(f"s_waitcnt lgkmcnt(0)\ns_mov_b32 s4, s{P_X}\ns_mov_b32 s5, s{P_X+1}"))
if DIAG >= 3:
    diag_init()
    stamp(1, "start")
stamp(1, "st0")
wsetup2()
if not OPT["chl"]:
    chunk(0, "ch0")
P("s_waitcnt lgkmcnt(0)")
P(f"s_load_dword {NONCE}, s[{P_WS}:{P_WS+1}], 0")
srd(rWS, P_WS, WS_SIZE)
srd(rW2, P_W2, 1376 * 1024)
srd(rWO, P_WO, 512 * 1024)
srd(rA, P_B1, 2752)
tile2()
waddr(LWA, 27, 28, 3)
P(f"s_and_b32 {T0}, {W}, 1\ns_lshl_b32 {T0}, {T0}, 6")
P(f"v_xor_b32 {v(LWA)}, {T0}, {v(LWA)}")
P(f"v_add_u32 {v(LWB)}, 0x{CH(0):x}, {v(LWA)}")
P(f"s_lshr_b32 {T0}, {W}, 1\ns_lshl_b32 {T0}, {T0}, 13\ns_add_u32 {T0}, {T0}, {16 * K}")
P(f"v_add_u32 {v(LWA)}, {T0}, {v(LWA)}")
P("v_and_b32 v27, 15, v0\nv_lshlrev_b32 v28, 2, v26\nv_cmp_eq_u32 vcc, v27, v28\nv_mov_b32 v27, 0x3f803f80")
for r in range(4):
    P(f"v_cndmask_b32 {v(SEL + r)}, 0, v27, vcc")
P(f"v_lshl_add_u32 {v(VL16)}, v0, 4, {SM}")
P(f"v_add_u32 {v(VL16+1)}, 0x10000, {v(VL16)}\nv_add_u32 {v(VL16+2)}, 0x20000, {v(VL16)}")
P(f"s_lshl_b32 {LPB}, {W}, 13\ns_lshl_b32 {T1}, {CT}, 7\ns_add_u32 {LPB}, {LPB}, {T1}")
P(f"s_lshl_b32 {LPA}, {RHOA}, 15\ns_add_u32 {LPA}, {LPA}, {LPB}\ns_add_u32 {LPA}, {LPA}, {32 * 32768}\ns_add_u32 {LPL}, {LPB}, {43 * 32768}")
P(f"s_lshl_b32 {SCS}, {J_}, 1\ns_lshr_b32 {T0}, {I_}, 3\ns_add_u32 {SCS}, {SCS}, {T0}\ns_lshl_b32 {SCS}, {SCS}, 2")
P(f"s_add_u32 {SCS}, {SCS}, {W}\ns_lshl_b32 {SCS}, {SCS}, 12\ns_add_u32 {SCS}, {SCS}, 0x{WS_CS:x}")
P(f"s_lshl_b32 {T0}, {C_}, 2\ns_add_u32 {T0}, {T0}, {W}\ns_lshl_b32 {T0}, {T0}, 6")
P(f"s_and_b32 {T1}, {W}, 1\ns_add_u32 {T1}, {T1}, {HB0L}\ns_lshl_b32 {T1}, {T1}, 6")
P(f"s_cmp_eq_u32 {TYPE}, 0\ns_cselect_b32 {T0}, 0x100000, {T0}\ns_cselect_b32 {T1}, 0x100000, {T1}")
P(f"v_mov_b32 v27, {T0}\nv_mov_b32 v28, {T1}\nv_cmp_gt_u32 vcc, 32, v0\nv_and_b32 v29, 31, v0")
P(f"v_cndmask_b32 v27, v28, v27, vcc\nv_lshl_add_u32 v30, v29, 1, v27")
VSIG, VPK = 11, 24
P(f"s_lshl_b32 {T0}, {W}, 2\ns_add_u32 {T0}, {T0}, 0x{L_RDY:x}\nv_mov_b32 {v(VSIG)}, {T0}")
P(f"v_and_b32 {v(VPK)}, 3, v0\nv_lshlrev_b32 {v(VPK)}, 2, {v(VPK)}\nv_add_u32 {v(VPK)}, 0x{L_PRG:x}, {v(VPK)}")
XRES, BRES, VO, SO = 244, 252, 19, "s45"
if OPT["eb"]:
    srd(rB, P_B2, 1024)
    P(f"buffer_load_ushort {v(VBI)}, v30, {rA}, 0 offen")
    P(f"v_and_b32 v28, 7, v0\nv_lshlrev_b32 v28, 4, v28\ns_lshl_b32 {T1}, {CT}, 7")
    P(f"buffer_load_dwordx4 {v(BRES, 4)}, v28, {rB}, {T1} offen")
    vm.add(None)
    vm.add(None)
stamp(1, "setup")
stage(1)
if OPT["chl"]:
    chunk(0, ("st", 1))
stamp(1, "issued")
P(f"s_waitcnt lgkmcnt(0)\ns_add_u32 {NONCE}, {NONCE}, 1")
vm.wait("ch0")
vm.wait(("st", 0))
stamp(1, "land")
if OPT["p2only"]:
    P("s_waitcnt vmcnt(0)\ns_barrier")
    signal(VSIG, 27, 6)
    P("s_barrier\ns_barrier")
    dump(1)
    P("s_endpgm")
    lg.q = []
P("s_barrier ; b0")
stamp(1, "b0")
FR = 32


def cs_reads(a, f):
    for t in range(4):
        P(f"ds_read_b64_tr_b16 {v(f + 4 * t, 2)}, {v(a)} offset:{t * 2048}")
        P(f"ds_read_b64_tr_b16 {v(f + 4 * t + 2, 2)}, {v(a)} offset:{t * 2048 + 512}")


def cs_mfma(acc, f):
    for t in range(4):
        P(f"v_mfma_f32_16x16x32_bf16 {v(acc, 4)}, {v(SEL, 4)}, {v(f + 4 * t, 4)}, {'0' if t == 0 else v(acc, 4)}")


CSL = "\n".join(f"buffer_load_dwordx2 {v(32 + 2 * n, 2)}, v29, {rWS}, {SCS} offen offset:{512 * n} sc1" for n in range(8))
CSC = "\n".join([f"v_xor_b32 {v(228 + n)}, {NONCE}, {v(33 + 2 * n)}" for n in range(8)] +
                ["v_or3_b32 v228, v228, v229, v230", "v_or3_b32 v231, v231, v232, v233", "v_or3_b32 v228, v228, v234, v235",
                 "v_or_b32 v228, v228, v231", "v_cmp_ne_u32 vcc, 0, v228"])
nch = 1
for st in range(8):
    CL = OPT["chl"]
    def mid():
        if st == 0:
            P(f"s_setprio {OPT['csprio']}")
            P("s_waitcnt lgkmcnt(0)")
            if not CL:
                cs_reads(LWB, FR + 16)
            cs_mfma(CS, FR)
            if CL:
                P(f"s_setprio {OPT['prio']}")
    if st == 0:
        cs_reads(LWA, FR)
    if st == 1 and CL:
        cs_reads(LWB, FR + 16)
    if st <= 5:
        stage(st + 2, mid)
    if st == CL:
        P(f"s_setprio {OPT['csprio']}")
        P(f"s_lshl_b32 {T0}, {W}, 8\ns_add_u32 {T0}, {T0}, 0x{L_CSX:x}")
        P(f"v_lshl_add_u32 v27, v0, 2, {T0}")
        P("s_waitcnt lgkmcnt(0)")
        cs_mfma(CS2, FR + 16)
        P(f"v_permlane32_swap_b32 {v(CS)}, {v(CS2)}")
        P(f"v_add_f32 {v(CS)}, {v(CS)}, {v(CS2)}")
        P(f"ds_write_b32 v27, {v(CS)}")
        P(f"s_setprio {OPT['prio']}")
    if st == CL + 1:
        P("s_waitcnt lgkmcnt(0)")
    if OPT["fill"] == 3 and 1 <= st <= 6:
        if st == 1:
            P(f"s_lshl2_add_u32 s40, {I_}, {W}\ns_mul_i32 s40, s40, {TB_STRIDE}\ns_lshl_b32 {T0}, {J_}, 12\ns_add_u32 s40, s40, {T0}\ns_add_u32 s40, s40, 0x{WS_HA:x}")
        for t in range(6 * (st - 1), min(32, 6 * st)):
            P(f"s_buffer_load_dword s41, {rWS}, s40 offset:{128 * t}")
    if st == 6:
        P("v_lshlrev_b32 v29, 3, v0")
        P(CSL)
        for n in range(8):
            vm.add("cs")
        if OPT["ltouch"]:
            P(f"s_lshl2_add_u32 {T0}, s2, {W}\ns_mul_i32 {T1}, {T0}, {11 * 128}\ns_lshl_b32 {T0}, {T0}, 9")
            P(f"v_min_u32 v27, 10, v0\nv_lshlrev_b32 v27, 7, v27\nv_and_b32 v28, 0x180, v27")
            P(f"buffer_load_dword v20, v27, {rW2}, {T1} offen\nbuffer_load_dword v21, v28, {rWO}, {T0} offen")
            vm.add(None)
            vm.add(None)
        if OPT["f6"]:
            P(f"s_mul_i32 {T0}, {I_}, {4 * TB_STRIDE}\ns_lshl_b32 {T1}, {C_}, 12\ns_add_u32 {T1}, {T1}, {SM}\ns_add_u32 {T1}, {T1}, {86 * K}")
            P(f"s_mul_i32 {T2}, {W}, {TB_STRIDE}\ns_lshl_b32 {T3}, {HB0L}, 11\ns_add_u32 {T2}, {T2}, {T3}")
            P(f"s_cmp_lt_u32 {C_}, 3")
            sel2(T3, 3, 1)
            P(f"s_cmp_eq_u32 {TYPE}, 0\ns_cselect_b32 {T1}, {T1}, {T2}\ns_cselect_b32 {T3}, 3, {T3}")
            sel2(T2, TB_STRIDE, 1024)
            P(f"s_add_u32 {T0}, {T0}, {T1}\ns_add_u32 {T0}, {T0}, 0x{WS_HA:x}")
            P(f"v_lshrrev_b32 v27, 3, v0\nv_and_b32 v27, {T3}, v27\nv_mul_u32_u24 v27, {T2}, v27\nv_and_b32 v28, 7, v0\nv_lshl_add_u32 v27, v28, 7, v27")
            P(f"buffer_load_dword v23, v27, {rWS}, {T0} offen")
            vm.add(None)
        if OPT["ft"]:
            P(f"s_lshl2_add_u32 {T0}, {I_}, {W}\ns_lshl_b32 {T0}, {T0}, 7\ns_lshl_b32 {T1}, {I_}, 7\ns_add_u32 {T1}, {T1}, {FL_O * 128}")
            P(f"v_and_b32 v27, 3, v0\nv_lshl_add_u32 v28, v27, 13, {T0}\nv_mov_b32 v22, {T1}\nv_cmp_eq_u32 vcc, 2, v27\nv_cndmask_b32 v28, v28, v22, vcc")
            P(f"s_mov_b32 {T0}, 0x{WS_FLAGS:x}\nbuffer_load_dword v22, v28, {rWS}, {T0} offen sc1")
            vm.add(None)
    if st == 7:
        P(f"s_setprio {OPT['exprio']}")
        vm.wait("cs")
        stamp(1, "csin")
        P(CSC)
        retry("L_cs", CSL, CSC)
        stamp(1, "csok")
        P("v_add_f32 v32, v32, v34\nv_add_f32 v36, v36, v38\nv_add_f32 v40, v40, v42\nv_add_f32 v44, v44, v46")
        P("v_add_f32 v32, v32, v36\nv_add_f32 v40, v40, v44\nv_add_f32 v32, v32, v40")
        P("v_cvt_pk_bf16_f32 v33, v32, v32\nv_lshlrev_b32 v33, 16, v33\nv_sub_f32 v32, v32, v33\nv_cvt_pk_bf16_f32 v32, v33, v32")
        P("v_cmp_gt_u32 vcc, 32, v0")
        P(f"s_lshl_b32 {T0}, {W}, 9\ns_add_u32 {T0}, {T0}, 0x{L_EX1:x}")
        P(f"v_add_u32 v29, {T0}, v29")
        P(f"v_cndmask_b32 v34, 0, v32, vcc\nv_cndmask_b32 v35, 0, {v(VBI)}, vcc")
        P(f"v_cndmask_b32 v36, v32, 0, vcc\nv_cndmask_b32 v37, {v(VBI)}, 0, vcc")
        P(f"ds_write_b64 v29, v[34:35]\nds_write_b64 v29, v[36:37] offset:{L_EX2 - L_EX1}")
    if st == 7:
        P(f"s_setprio {OPT['prio']}")
    if st >= 6:
        for q in range(nch, nch + OPT[f"n{st}"]):
            chunk_stage(q)
        nch += OPT[f"n{st}"]
    if st < 7:
        vm.wait(("st", st + 1))
    if st == 7:
        P("s_waitcnt lgkmcnt(0)")
        stamp(1, "exw")
    P(f"s_barrier ; b{st + 1}")
    if "st1" in OPT and st < 7:
        stamp(1, f"b{st+1}")
stamp(1, "b8")
if OPT["p1only"]:
    dump(1)
    P("s_endpgm")
    DIAG = 0
for q in range(nch, 8):
    chunk_stage(q)
if not OPT["eb"]:
    srd(rB, P_B2, 1024)
srd(rP2, P_OUT, 2 * K * K)
P(f"v_and_b32 v28, 7, v0\nv_lshlrev_b32 v28, 4, v28\nv_lshrrev_b32 v29, 3, v0\nv_lshl_or_b32 {v(VO)}, v29, 10, v28")
P(f"s_lshl_b32 {SO}, {TB2}, 2\ns_add_u32 {SO}, {SO}, {W}\ns_lshl_b32 {SO}, {SO}, 14\ns_lshl_b32 {T1}, {CT}, 7\ns_add_u32 {SO}, {SO}, {T1}")
P(f"s_add_u32 {T2}, {SO}, 8192")
if not OPT["eb"]:
    P(f"buffer_load_dwordx4 {v(BRES, 4)}, v28, {rB}, {T1} offen")
    vm.add("res")
P(f"buffer_load_dwordx4 {v(XRES, 4)}, {v(VO)}, {rX}, {SO} offen")
P(f"buffer_load_dwordx4 {v(XRES + 4, 4)}, {v(VO)}, {rX}, {T2} offen")
for _ in range(2):
    vm.add("res")
vq8 = list(vm.q)


def stream(seq):
    for p in seq:
        (page if p < 18 else page_stage)(p)


LATE = list(range(38, 43)) + list(range(44, 60))
P(f"s_cmp_eq_u32 {TYPE}, 0")
P("s_cbranch_scc1 L_lA")
SH1, SH2, SF1 = "s4", "s5", "s6"
P(f"v_add_u32 v22, 16, {v(VSIG)}\nv_lshlrev_b32 v23, 4, v0")
P(f"s_lshl_b32 {T0}, {I_}, 2\ns_add_u32 {T0}, {T0}, {W}")
P(f"s_mul_i32 {SH1}, {T0}, {TB_STRIDE}\ns_add_u32 {SH1}, {SH1}, 0x{WS_HA:x}")
P(f"s_lshl_b32 {SH2}, {HB0L}, 11\ns_add_u32 {SH2}, {SH2}, {SH1}\ns_lshl_b32 {T1}, {C_}, 13\ns_add_u32 {SH1}, {SH1}, {T1}")
P(f"s_lshl_b32 {SF1}, {T0}, 5\ns_add_u32 {SF1}, {SF1}, {C_}\ns_lshl_b32 {SF1}, {SF1}, 2\ns_add_u32 {SF1}, {SF1}, 0x{WS_FLAGS + FL_HB * 128:x}")


def far():
    P(f"ds_read_b32 v28, {v(VPK)} offset:{L_FAST - L_PRG}\ns_waitcnt lgkmcnt(0)\nv_cmp_ne_u32 vcc, 0, v28\ns_or_b32 {FAR}, vcc_lo, vcc_hi")


def wback(tag):
    if OPT["wbj"] == 0:
        P(f"s_cmp_lg_u32 {W}, 0")
    else:
        P(f"s_xor_b32 {T0}, {J_}, {OPT['wbj'] - 1}\ns_or_b32 {T0}, {T0}, {W}\ns_cmp_lg_u32 {T0}, 0")
    P(f"s_cbranch_scc1 L_wb{tag}\nbuffer_wbl2 sc1\nL_wb{tag}:")


def hstore(k, base, b, sh, tag):
    if k == 1:
        await_(VPK, 28, k)
        far()
    else:
        await_(22, 28, k)
    d = D0 + 8 * (b & 1)
    for u in range(2):
        a = base + (2 * b + u) * 4096
        P(f"ds_read_b128 {v(d + 4 * u, 4)}, {v(VL16 + a // (64 * K))} offset:{a % (64 * K)}")
    if b == 2:
        P(f"s_add_u32 {sh}, {sh}, 4096")
    for u in range(2):
        P(f"s_waitcnt lgkmcnt({1 - u})")
        row_store(f"buffer_store_dwordx4 {v(d + 4 * u, 4)}, v23, {rWS}, {sh} offen offset:{2048 * (b & 1) + 1024 * u}", OPT["nt1"] if tag != "h2" else OPT["nt2"])
        vm.add(tag)


if OPT["fill"] == 1:
    P("v_lshlrev_b32 v25, 7, v0\nv_and_b32 v27, 0xfff, v25")
    P(f"buffer_load_dword v20, v25, {rWS}, {SH1} offen\nbuffer_load_dword v21, v27, {rWS}, {SH2} offen")
    vm.add(None)
    vm.add(None)
mid = list(range(18, 38))
stream(mid[:OPT["e1B"]])
np_ = OPT["e1B"]
for q in range(1, 5):
    chunk_write(q)
hstore(1, L_HS, 0, SH1, "h")
for q in range(5, 8):
    chunk_write(q)
signal(VSIG, 26, 1, True)
for b in range(1, 4):
    stream(mid[np_:np_ + OPT["iB2"]])
    np_ += OPT["iB2"]
    hstore(b + 1, L_HS, b, SH1, "h" if b < 2 else "h1")
signal(VSIG, 26, 2)
stamp(1, "h_st")
vm.wait("h")
flag_store(SF1, aux=HX)
vm.add(None)
stamp(1, "hbflag")
P(f"s_add_u32 {SF1}, {SF1}, {(FL_H1 - FL_HB) * 128}")
stream(range(OPT["xB"]))
vm.wait("h1")
flag_store(SF1, aux=HX)
vm.add(None)
stamp(1, "h1flag")
stream(range(OPT["xB"], 18))
stream(mid[np_:])
P(f"s_sub_u32 {SF1}, {SF1}, {(FL_H1 - FL_HA) * 128}")
P(f"s_cmp_lt_u32 {C_}, 3")
P("s_cbranch_scc0 L_lB1")
vqB = list(vm.q)
restB = {}
for nb in (2, 1):
    if nb == 1:
        P.label("L_lB1")
        vm.q = list(vqB)
    page_addr.last = None
    pre = OPT["lB2"] if nb == 2 else OPT["lB1"]
    stream(LATE[:pre])
    vm.wait(("pg", 17))
    signal(VSIG, 26, 3)
    stamp(1, "staged")
    lg.q = []
    await_(VPK, 28, 8)
    marks = {OPT["w0"]: 0, OPT["w1"]: 1} if nb == 2 else {OPT["w0c"]: 0}
    for n, p in enumerate(range(18, 38)):
        if n in marks:
            lg.q = []
            hstore(9 + marks[n], L_PQ, marks[n], SH2, "h2")
            stamp(1, "h2_st")
        vm.wait(("pg", p))
        page_write(p)
    signal(VSIG, 26, 4, True)
    vm.wait("h2")
    flag_store(SF1, aux=HX)
    vm.add(None)
    stamp(1, "oflag")
    stream(LATE[pre:max(pre, OPT["l1"])])
    vm.wait(("pg", 42))
    restB[nb] = LATE[max(pre, OPT["l1"]):]
    P("s_branch L_l5")
P.label("L_lA")
vm.q = list(vq8)
lg.q = []
page_addr.last = None
SOB = "s44"
P(f"s_mul_i32 {SOB}, {I_}, {4 * TB_STRIDE}\ns_lshl_b32 {T1}, {C_}, 12\ns_add_u32 {SOB}, {SOB}, {T1}")
P(f"s_add_u32 {SOB}, {SOB}, {SM}\ns_add_u32 {SOB}, {SOB}, 0x{WS_HA + 86 * K:x}")
if OPT["fill"] == 1:
    P(f"v_bfe_u32 v25, v0, 3, 2\nv_mul_u32_u24 v25, {TB_STRIDE}, v25\nv_and_b32 v27, 7, v0\nv_lshl_add_u32 v25, v27, 7, v25")
    P(f"buffer_load_dword v20, v25, {rWS}, {SOB} offen")
    vm.add(None)
mid = list(range(18, 38))
stream(mid[:8])
for q in range(1, 8):
    chunk_write(q)
signal(VSIG, 26, 1, True)
if OPT["fill"] in (2, 3):
    P(f"s_lshl2_add_u32 {T0}, {I_}, {W}\ns_mul_i32 {T0}, {T0}, {TB_STRIDE}\ns_add_u32 {T0}, {T0}, 0x{WS_HA:x}")
    P("v_lshlrev_b32 v25, 7, v0")
    if OPT["fill"] == 2:
        P(f"s_lshl_b32 {T1}, {C_}, 13\ns_add_u32 {T1}, {T1}, {T0}")
        P(f"buffer_load_dword v20, v25, {rWS}, {T1} offen")
        vm.add(None)
    P(f"s_mul_i32 {T1}, {C_}, {54 * 128}\ns_add_u32 {T1}, {T1}, {T0}\ns_add_u32 {T1}, {T1}, {64 * K}\nv_min_u32 v25, {53 * 128}, v25")
    P(f"buffer_load_dword v21, v25, {rWS}, {T1} offen")
    vm.add(None)
stream(mid[8:OPT["e1A"]])
lg.q = []
await_(VPK, 28, 2)
far()
stream(range(18))
stream(mid[OPT["e1A"]:])
PREA = LATE[:OPT["preA"]] if OPT["gd"] == 8 else LATE[21 - min(5, OPT["preA"]):21]
stream(PREA)
SZL, SK0, SK1, SKE = "s4", "s5", "s6", "s7"
NB = [NONCE, "s39", "s42", "s43"]
P("v_and_b32 v23, 15, v0\nv_lshlrev_b32 v27, 4, v0")
P(f"v_lshrrev_b32 v22, 2, v0\nv_mul_u32_u24 v25, {KVP_STR}, v22\nv_and_b32 v26, 3, v0\nv_lshl_add_u32 v25, v26, 4, v25")
P(f"s_mul_i32 {SK0}, {C_}, {16 * KVP_STR}\ns_add_u32 {SK0}, {SK0}, 0x{WS_KVP:x}")
P(f"s_lshl_b32 {SZL}, {W}, 6\ns_add_u32 {SZL}, {SZL}, {SK0}\ns_add_u32 {SZL}, {SZL}, 4096")
P(f"s_add_u32 {SK0}, {SK0}, {SM}\ns_add_u32 {SKE}, {SK0}, {16 * KVP_STR}")
P(f"s_lshl_b32 {SK1}, {I_}, 1\ns_and_b32 {SK1}, {SK1}, 15\ns_mul_i32 {SK1}, {SK1}, {KVP_STR}\ns_add_u32 {SK1}, {SK1}, {SK0}")
P(f"s_add_u32 {T0}, {SM}, 0x{L_KT:x}")
P("v_and_b32 v40, 1, v26\nv_lshlrev_b32 v40, 4, v40\nv_lshrrev_b32 v26, 1, v26\nv_lshl_or_b32 v40, v26, 3, v40")
P(f"v_lshl_or_b32 v40, v22, 5, v40\nv_add_u32 v40, {T0}, v40")
P("v_bfe_u32 v41, v0, 4, 1\nv_lshlrev_b32 v41, 4, v41\nv_lshrrev_b32 v26, 5, v0\nv_lshl_or_b32 v41, v26, 3, v41")
P(f"v_lshl_or_b32 v41, v23, 5, v41\nv_add_u32 v41, {T0}, v41")
P(f"v_and_b32 v42, 31, v0\nv_lshlrev_b32 v42, 5, v42\nv_lshl_or_b32 v42, v26, 4, v42\nv_add_u32 v42, {T0}, v42")
P(f"s_lshr_b32 s39, {NONCE}, 8\ns_lshr_b32 s42, {NONCE}, 16\ns_lshr_b32 s43, {NONCE}, 24")
ZL = f"buffer_load_dwordx4 v[28:31], v25, {rWS}, {SZL} offen sc1"
ZC = "\n".join([f"v_xor_b32 v20, {NB[0]}, v28", f"v_xor_b32 v21, {NB[1]}, v29",
                f"v_bitop3_b32 v20, v20, v30, {NB[2]} bitop3:0xf6", f"v_bitop3_b32 v21, v21, v31, {NB[3]} bitop3:0xf6",
                "v_or_b32 v20, v20, v21", "v_and_b32 v20, 0xff, v20", "v_cmp_ne_u32 vcc, 0, v20"])
P(f"s_setprio {OPT['gprio']}")
P(f"s_mov_b32 {T2}, 32")
P.label("L_kvall")
spin("L_kv", ZL, ZC)
stamp(1, "kv_seen")
signal(VSIG, 26, 3)
P(f"s_mov_b32 {T1}, {SK1}")
GD = OPT["gd"]
GQ = [CHR + 4 * n for n in range(14)] + [184, 188] if GD == 16 else [PQR + 4 * n for n in range(8)]
def gload(n):
    P(f"buffer_load_dwordx4 {v(GQ[n % GD], 4)}, v27, {rWS}, {T1} offen sc1")
    if n < 15:
        P(f"s_add_u32 {T1}, {T1}, {KVP_STR}")
        if n % 2 == 1:
            P(f"s_cmp_eq_u32 {T1}, {SKE}\ns_cselect_b32 {T1}, {SK0}, {T1}")
for n in range(GD):
    gload(n)
for n in range(4):
    P(f"v_and_b32 {v(28 + n)}, 0xffffff00, {v(28 + n)}")
for r in (4, 8):
    for n in range(4):
        P(f"v_add_f32_dpp {v(28 + n)}, {v(28 + n)}, {v(28 + n)} row_ror:{r} row_mask:0xf bank_mask:0xf")
for op in ("v_permlane16_swap_b32", "v_permlane32_swap_b32"):
    for n in range(4):
        P(f"v_mov_b32 {v(32 + n)}, {v(28 + n)}")
    for n in range(4):
        P(f"{op} {v(28 + n)}, {v(32 + n)}")
    for n in range(4):
        P(f"v_add_f32 {v(28 + n)}, {v(28 + n)}, {v(32 + n)}")
P("v_cvt_pk_bf16_f32 v28, v28, v29\nv_cvt_pk_bf16_f32 v29, v30, v31")
P("ds_write_b64 v40, v[28:29] offset:512")
for n in range(16):
    P(f"s_waitcnt vmcnt({min(GD - 1, 15 - n)})")
    for h in range(4):
        r = v(GQ[n % GD] + h)
        if n == 0:
            P(f"v_xor_b32 {v(36 + h)}, {NB[h]}, {r}\nv_and_b32 {v(32 + h)}, 0xffffff00, {r}")
        else:
            P(f"v_bitop3_b32 {v(36 + h)}, {v(36 + h)}, {r}, {NB[h]} bitop3:0xf6\nv_and_b32 {v(44 + h)}, 0xffffff00, {r}")
    if n + GD < 16:
        gload(n + GD)
    if n:
        for h in range(4):
            P(f"v_add_f32 {v(32 + h)}, {v(32 + h)}, {v(44 + h)}")
P("v_or3_b32 v36, v36, v37, v38\nv_or_b32 v36, v36, v39\nv_and_b32 v36, 0xff, v36\nv_cmp_ne_u32 vcc, 0, v36")
P(f"s_sub_u32 {T2}, {T2}, 1")
P("s_cbranch_scc1 L_kvok")
P("s_cbranch_vccnz L_kvall")
P.label("L_kvok")
stamp(1, "gath")
if DIAG >= 3 and "retry" in str(OPT.get("st1")):
    P(f"s_waitcnt lgkmcnt(0)\ns_sub_u32 s98, 32, {T2}\ns_mul_i32 s98, s98, 100\ns_add_u32 s98, s98, s100")
vm.q = []
page_addr.last = None
P("v_cvt_pk_bf16_f32 v32, v32, v33\nv_cvt_pk_bf16_f32 v33, v34, v35")
P("ds_write_b64 v41, v[32:33]")
lg.q = []
P("ds_read_b128 v[44:47], v42")
stream([p for p in LATE[:OPT["lA"]] if p not in PREA])
P(f"v_add_u32 v20, 0x{L_PQ:x}, {v(VL16)}")
P(f"s_mov_b32 s4, {SOB}")
stamp(1, "staged")
await_(VPK, 22, 10)
stamp(1, "g0")
for tb in range(4):
    P(f"ds_read_b128 {v(PQR + 4 * tb, 4)}, v20 offset:{tb * 4096}")
P("v_mov_b32 v28, v44\nv_mov_b32 v29, v45\nv_mov_b32 v30, v46\nv_mov_b32 v31, v47")
def o_mfma(tb):
    P(f"s_waitcnt lgkmcnt({3 - tb})")
    P(f"v_mfma_f32_32x32x16_bf16 {v((D0, D1)[tb & 1], 16)}, v[28:31], {v(PQR + 4 * tb, 4)}, 0")
o_mfma(0)
o_mfma(1)
for tb in range(4):
    d = (D0, D1)[tb & 1]
    P(f"v_add_f32 {v(d + 8)}, 0x{f2u(1e-6):x}, {v(d + 8)}")
    P(f"v_rcp_f32 {v(d + 8)}, {v(d + 8)}")
    for r in range(8):
        P(f"v_mul_f32 {v(d + r)}, {v(d + r)}, {v(d + 8)}")
    for p in range(4):
        P(f"v_cvt_pk_bf16_f32 {v(PQR + 4 * tb + p)}, {v(d + 2 * p)}, {v(d + 2 * p + 1)}")
    if tb < 2:
        o_mfma(tb + 2)
    row_store(f"buffer_store_dwordx4 {v(PQR + 4 * tb, 4)}, v27, {rWS}, s4 offen", OPT["nt2"])
    vm.add("o")
    if tb < 3:
        P(f"s_add_u32 s4, s4, {TB_STRIDE}")
stamp(1, "o_st")
P(f"s_setprio {OPT['prio']}")
for p in range(18, 38):
    page_write(p)
signal(VSIG, 26, 4, True)
vm.wait("o")
P(f"s_lshl_b32 {T0}, {I_}, 5\ns_lshl_b32 {T1}, {C_}, 2\ns_add_u32 {T0}, {T0}, {T1}\ns_add_u32 {T0}, {T0}, {W}")
P(f"s_lshl_b32 {T0}, {T0}, 2\ns_add_u32 {T0}, {T0}, 0x{WS_FLAGS + FL_O * 128:x}")
flag_store(T0, aux=HX)
vm.add(None)
stamp(1, "oflag")
stream([p for p in LATE[OPT["lA"]:OPT["l1"]] if p not in PREA])
vm.wait(("pg", 42))
restA = [p for p in LATE[OPT["l1"]:] if p not in PREA]
P.label("L_l5")
lg.q = []
await_(VPK, 28, 11)
stamp(1, "gx")
nfree = 2 * ((OPT["gx"] - 7) // 4)
first = [p for p in list(range(38, 43)) + list(range(44, 60)) if p - 38 < nfree]
P(f"s_setprio {OPT['wprio']}")
for p in range(38, 43):
    page_write(p, OPT["pace"])
signal(VSIG, 26, 5, True)
for who, rest in (("A", restA), ("B2", restB[2]), ("B1", restB[1])):
    if who == "A":
        P(f"s_cmp_eq_u32 {TYPE}, 0\ns_cbranch_scc0 L_tB")
    elif who == "B2":
        P.label("L_tB")
        P(f"s_cmp_lt_u32 {C_}, 3\ns_cbranch_scc0 L_tB1")
    else:
        P.label("L_tB1")
    page_addr.last = None
    vm.q = [("pg", p) for p in LATE[5:] if p not in rest and not (who == "A" and p in PREA)]
    stream(rest)
    for p in first[5:]:
        vm.wait(("pg", p))
        page_write(p, OPT["pace"])
    vm.drain()
    if who != "B1":
        P("s_branch L_t2")
P.label("L_t2")
lg.q = []
P("s_waitcnt lgkmcnt(0)")
await_(VPK, 28, 12)
for p in range(44, 60):
    if p not in first:
        vm.wait(("pg", p))
        page_write(p, OPT["pace"])
signal(VSIG, 26, 6, True)
P(f"s_setprio {OPT['prio']}")
LOG2E = 1.4426950408889634
XRD, GG, XF, BF, YR = 22, 32, 48, 64, 72
P("v_lshrrev_b32 v26, 3, v0\nv_and_b32 v27, 7, v0\nv_lshlrev_b32 v27, 1, v27\nv_xor_b32 v27, v27, v26\nv_lshlrev_b32 v27, 4, v27\nv_lshl_or_b32 v26, v26, 8, v27")
P(f"s_lshl_b32 {T0}, {W}, 12\ns_add_u32 {T0}, {T0}, 0x{L_XS0:x}")
P(f"v_add_u32 {v(XRD)}, {T0}, v26\nv_xor_b32 {v(XRD + 1)}, 16, {v(XRD)}")
P(f"v_add_u32 {v(XRD + 2)}, 0x10000, {v(XRD)}\nv_add_u32 {v(XRD + 3)}, 0x10000, {v(XRD + 1)}")
P(f"s_add_u32 {T2}, {SO}, 8192")
P("s_waitcnt lgkmcnt(0)")


if OPT["wb"] in (2, 4):
    wback(2)
def unpack(dst, src, n):
    for r in range(n):
        P(f"v_lshlrev_b32 {v(dst + 2 * r)}, 16, {v(src + r)}\nv_and_b32 {v(dst + 2 * r + 1)}, 0xffff0000, {v(src + r)}")


def xread(dst, bases):
    for h in range(2):
        for kh in range(2):
            for j in range(2):
                P(f"ds_read_b128 {v(dst + 16 * kh + 8 * h + 4 * j, 4)}, {v(XRD + j + 2 * ((bases[kh] - L_XS0) >> 16))} offset:{((bases[kh] - L_XS0) & 0xffff) + 2048 * h}")


unpack(XF, XRES, 8)
unpack(BF, BRES, 4)
stamp(1, "rdy5")
P("s_barrier ; dY")
if OPT["wb"] == 3:
    wback(3)
xread(YR, (L_XY, L_XY + 16 * K))
P("s_waitcnt lgkmcnt(0)")
for fmt in ("v_add_f32 {Y}, {Y}, {Z}", "v_add_f32 {Y}, {Y}, {B}", f"v_mul_f32 {{G}}, 0x{f2u(-LOG2E):x}, {{Y}}", "v_exp_f32 {G}, {G}",
            "v_add_f32 {G}, 1.0, {G}", "v_rcp_f32 {G}, {G}", "v_mul_f32 {G}, {G}, {Y}"):
    for r in range(16):
        P(fmt.format(Y=v(YR + r), Z=v(YR + 16 + r), B=v(BF + r % 8), G=v(GG + r)))
stamp(1, "gate")
P("s_barrier ; dS")
xread(YR, (L_XS0, L_XS1))
for h in range(2):
    P(f"s_waitcnt lgkmcnt({4 - 4 * h})")
    for p in range(4 * h, 4 * h + 4):
        P(f"v_pk_add_f32 {v(YR + 2 * p, 2)}, {v(YR + 2 * p, 2)}, {v(YR + 16 + 2 * p, 2)}")
    for p in range(4 * h, 4 * h + 4):
        P(f"v_pk_fma_f32 {v(YR + 2 * p, 2)}, {v(YR + 2 * p, 2)}, {v(GG + 2 * p, 2)}, {v(XF + 2 * p, 2)}")
    for p in range(4 * h, 4 * h + 4):
        P(f"v_cvt_pk_bf16_f32 {v(BF + p)}, {v(YR + 2 * p)}, {v(YR + 2 * p + 1)}")
    P(f"buffer_store_dwordx4 {v(BF + 4 * h, 4)}, {v(VO)}, {rP2}, {(SO, T2)[h]} offen {OPT['outaux']}")
dump(1)
P.label("L_end")
P("s_endpgm")
flush_cold()

P.label("L_compute")
DIAG = OPT["diag"]
assert OPT["gx"] <= 36
XR, ACC, WR = 128, 64, 32
VH, GR, XE, K1, K2, SD, RS, RL = 1, 2, 4, 6, 8, 10, 16, 18
XA, WA = 12, 20
HB0, SH, EPS2, SG, SFL1, SFL2, SCS2 = "s72", "s73", "s[74:75]", "s76", "s77", "s78", "s79"
lg = Q("lgkmcnt", 15)

diag_init()
stamp(0, "start")
P(f"s_setprio {OPT['cprio']}")
P(f"s_lshl_b32 {T0}, {I_}, 4\ns_add_u32 {T0}, {T0}, {J_}\ns_lshl_b32 {T0}, {T0}, 2\ns_add_u32 {T0}, {T0}, {W}\ns_lshl_b32 {T0}, {T0}, 1")
P(f"s_lshl_b32 {T1}, {T0}, 10")
P("v_lshrrev_b32 v26, 5, v0\nv_and_b32 v27, 31, v0\nv_lshlrev_b32 v28, 4, v27\nv_lshl_or_b32 v28, v26, 10, v28")
P("s_waitcnt lgkmcnt(0)")
srd(rX, P_X, 2 * K * K)
P(f"s_load_dword {NONCE}, s[{P_WS}:{P_WS+1}], 0")
P(f"buffer_load_dwordx4 v[32:35], v28, {rX}, {T1} offen")
P(f"buffer_load_dwordx4 v[36:39], v28, {rX}, {T1} offen offset:512")
srd(rWS, P_WS, WS_SIZE)
tile2()
P(f"v_lshlrev_b32 {v(VH)}, 4, v0")
waddr(WA, 29, 30, 3)
P(f"v_xor_b32 {v(WA + 1)}, 64, {v(WA)}")
for k, off in ((2, 64 * K), (4, 88 * K)):
    P(f"v_add_u32 {v(WA + k)}, 0x{off:x}, {v(WA)}\nv_add_u32 {v(WA + k + 1)}, 0x{off:x}, {v(WA + 1)}")
P("v_bfe_u32 v29, v0, 1, 3\nv_xor_b32 v29, v29, v26\nv_lshlrev_b32 v29, 4, v29\nv_lshl_or_b32 v29, v27, 7, v29")
P(f"s_lshl_b32 {T2}, {W}, 12")
P(f"v_add_u32 {v(XA)}, {T2}, v29")
for t in range(1, 4):
    P(f"v_xor_b32 {v(XA + t)}, {32 * t}, {v(XA)}")
for t in range(4):
    P(f"v_add_u32 {v(XA + 4 + t)}, 0x10000, {v(XA + t)}")
P(f"s_lshl_b32 {SG}, {I_}, 2\ns_add_u32 {SG}, {SG}, {W}")
if OPT["touch"]:
    srd(rW2, P_W2, 1376 * 1024)
    srd(rWO, P_WO, 512 * 1024)
    P(f"s_mul_i32 {T2}, s2, 43\ns_mul_i32 {T3}, {W}, 11\ns_add_u32 {T2}, {T2}, {T3}")
    P(f"v_add_u32 v6, {T2}, v0\nv_lshlrev_b32 v6, 7, v6\nv_mov_b32 v8, 0x7ff00000\nv_cmp_gt_u32 vcc, 11, v0")
    P(f"s_lshl_b32 {T2}, s2, 2\ns_add_u32 {T2}, {T2}, {W}\ns_lshl_b32 {T2}, {T2}, 2")
    P(f"v_cndmask_b32 v6, v8, v6, vcc\nv_add_u32 v7, {T2}, v0\nv_lshlrev_b32 v7, 7, v7\nv_cmp_gt_u32 vcc, 4, v0")
    P("v_cndmask_b32 v7, v8, v7, vcc")
    if OPT["touch"] == 9:
        P(f"buffer_load_dword v8, v6, {rW2}, 0 offen\nbuffer_load_dword v9, v7, {rWO}, 0 offen")
P(f"s_lshl_b32 {SG}, {SG}, 8\ns_add_u32 {SG}, {SG}, 0x{WS_STATS:x}")
P(f"s_lshl_b32 {SCS2}, {J_}, 1\ns_lshr_b32 {T2}, {I_}, 3\ns_add_u32 {SCS2}, {SCS2}, {T2}\ns_lshl_b32 {SCS2}, {SCS2}, 2")
P(f"s_add_u32 {SCS2}, {SCS2}, {W}\ns_lshl_b32 {SCS2}, {SCS2}, 3\ns_and_b32 {T2}, {I_}, 7\ns_add_u32 {SCS2}, {SCS2}, {T2}")
P(f"s_lshl_b32 {SCS2}, {SCS2}, 9\ns_add_u32 {SCS2}, {SCS2}, 0x{WS_CS:x}")
SFHB, SFO, KH, SFHA, PRIMED, SK12, SXW, SBASE = "s51", "s52", "s53", "s54", "s55", "s72", "s73", "s77"
P(f"s_lshr_b32 {KH}, {W}, 1\ns_lshl_b32 {SK12}, {KH}, 12\ns_mov_b32 {PRIMED}, 0")
P(f"s_lshl_b32 {T3}, {TB2}, 1\ns_and_b32 {T2}, {W}, 1\ns_add_u32 {T3}, {T3}, {T2}")
P(f"s_mul_i32 {SBASE}, {T3}, {TB_STRIDE}\ns_add_u32 {SBASE}, {SBASE}, 0x{WS_HA:x}")
if OPT["ahot"]:
    P(f"s_mov_b32 {SBASE}, 0x{WS_DIAG + 0x40000:x}")
P(f"s_lshl_b32 {SFHB}, {T3}, 7\ns_add_u32 {SFHA}, {SFHB}, 0x{WS_FLAGS + FL_HA * 128:x}\ns_add_u32 s44, {SFHB}, 0x{WS_FLAGS + FL_H1 * 128:x}\ns_add_u32 {SFHB}, {SFHB}, 0x{WS_FLAGS + FL_HB * 128:x}")
P(f"s_lshr_b32 {SFO}, {TB2}, 1\ns_lshl_b32 {SFO}, {SFO}, 7\ns_add_u32 {SFO}, {SFO}, 0x{WS_FLAGS + FL_O * 128:x}")
P(f"s_lshl_b32 {SXW}, {T2}, 13\ns_lshl_b32 {T3}, {KH}, 14\ns_add_u32 {SXW}, {SXW}, {T3}\ns_add_u32 {SXW}, {SXW}, 0x{L_XY:x}")
SXS = "s15"
P(f"s_cmp_eq_u32 {KH}, 0")
sel2(SXS, (L_XS0 - L_XY) & 0xffffffff, L_XS1 - L_XY - 16 * K)
if OPT["tlb"] == 2:
    P(f"buffer_load_dword v47, v0, {rWS}, {SBASE} offen sc1")
P(f"s_mov_b32 s14, {RHOA}")
for g in list(range(8)) + list(range(11, 15)):
    r = f"s{36 + g}"
    P(f"s_add_u32 {r}, {RHO2 if g < 8 else RHOS}, {g % 11}\ns_and_b32 {r}, {r}, {7 if g < 8 else 3}\ns_lshl_b32 {r}, {r}, 13\ns_add_u32 {r}, {r}, {SBASE}")
    if g >= 11:
        P(f"s_add_u32 {r}, {r}, {86 * K}")
P(f"s_add_u32 s14, s14, {KH}")
for n in range(16, 22):
    r = f"s{8 + n - 16}"
    P(f"s_add_u32 {r}, s14, {2 * (n - 16)}\ns_cmp_ge_u32 {r}, 11\ns_cselect_b32 {T3}, 11, 0\ns_sub_u32 {r}, {r}, {T3}")
    P(f"s_sub_u32 {r}, {r}, {KH}\ns_add_u32 {r}, {r}, {32 - 2 * (n % 2)}\ns_lshl_b32 {r}, {r}, 11\ns_add_u32 {r}, {r}, {SBASE}")
P(f"s_mov_b32 s74, 0x{f2u(1e-6):x}\ns_mov_b32 s75, 0x{f2u(1e-6):x}")
P(f"s_mov_b32 {T2}, 0x3f803f80")
P("v_mov_b32 v40, 0\nv_mov_b32 v41, 0\nv_mov_b32 v42, 0\nv_mov_b32 v43, 0")
stamp(0, "pre")
P("s_waitcnt vmcnt(2)" if OPT["touch"] == 9 else "s_waitcnt vmcnt(0)")
stamp(0, "xin")
for n in range(8):
    P(f"v_dot2_f32_bf16 {v(40 + (n & 1))}, {v(32 + n)}, {T2}, {v(40 + (n & 1))}")
    P(f"v_dot2_f32_bf16 {v(42 + (n & 1))}, {v(32 + n)}, {v(32 + n)}, {v(42 + (n & 1))}")
P("s_nop 2")
P("v_add_f32 v40, v40, v41\nv_add_f32 v42, v42, v43")
for r in (8, 4, 2, 1):
    P(f"v_add_f32_dpp v40, v40, v40 row_ror:{r} row_mask:0xf bank_mask:0xf")
    P(f"v_add_f32_dpp v42, v42, v42 row_ror:{r} row_mask:0xf bank_mask:0xf")
P("v_mov_b32 v41, v40\nv_mov_b32 v43, v42")
P("v_permlane16_swap_b32 v40, v41\nv_permlane16_swap_b32 v42, v43")
P("v_add_f32 v40, v40, v41\nv_add_f32 v42, v42, v43")
P(f"v_mul_f32 v40, 0x{f2u(1 / 512):x}, v40\nv_mul_f32 v42, 0x{f2u(1 / 512):x}, v42")
P("v_fma_f32 v42, -v40, v40, v42\nv_max_f32 v42, 0, v42")
P(f"v_cvt_pk_bf16_f32 v42, v42, v42\nv_and_b32 v42, 0xffff0000, v42\nv_add_f32 v42, 0x{f2u(1e-5):x}, v42")
P("v_cvt_pk_bf16_f32 v42, v42, v42\nv_and_b32 v42, 0xffff0000, v42\nv_sqrt_f32 v42, v42")
P("v_cvt_pk_bf16_f32 v44, v40, v42")
P("v_lshlrev_b32 v28, 3, v26")
P(f"s_lshl_b32 {T0}, {T0}, 3\ns_add_u32 {T0}, {T0}, 0x{WS_STATS:x}")
P("s_waitcnt lgkmcnt(0)")
P(f"s_add_u32 {NONCE}, {NONCE}, 1")
XTAG = "s78"
P(f"s_getreg_b32 {XTAG}, hwreg(HW_REG_XCC_ID, 0, 4)\ns_lshl_b32 {XTAG}, {XTAG}, 28\ns_xor_b32 {XTAG}, {XTAG}, {NONCE}")
P(f"v_mov_b32 v45, {XTAG}\nv_mov_b32 v5, {NONCE}")
P(f"s_mov_b32 s56, {T0}\nv_mov_b32 v2, v44\nv_mov_b32 v3, v45\nv_mov_b32 v25, v28")
P("v_lshlrev_b32 v26, 3, v27\nv_lshlrev_b32 v27, 3, v0")
P(f"s_lshl_b32 {T0}, {W}, 8\ns_add_u32 {T0}, {T0}, 0x{L_CSX:x}")
P(f"v_lshl_add_u32 v28, v0, 2, {T0}")
P(f"v_add_u32 v29, 0x{L_EX1:x}, v27")
GLOAD = f"buffer_load_dwordx2 {v(GR, 2)}, v26, {rWS}, {SG} offen sc1"
CSIG, CPK, CPC = 30, 31, 3
P(f"s_lshl_b32 {T0}, {W}, 2\ns_add_u32 {T0}, {T0}, 0x{L_PRG:x}\nv_mov_b32 {v(CSIG)}, {T0}")
P(f"v_and_b32 {v(CPK)}, 3, v0\nv_lshlrev_b32 {v(CPK)}, 2, {v(CPK)}\nv_add_u32 {v(CPK)}, 0x{L_RDY:x}, {v(CPK)}")
stamp(0, "stats")


def p1_x(st, t):
    if OPT["nocomp"]:
        return
    sl = st % 3
    P(f"ds_read_b128 {v(XR + 16 * st + 4 * t, 4)}, {v(XA + t + (4 if sl == 2 else 0))} offset:{(sl % 2) * 32 * K}")
    lg.add(("x", st, t))


def p1_w(st, t, b):
    if OPT["nocomp"]:
        return
    sl = st % 3
    a = WA + (b & 1) + (2 if sl == 2 else 0)
    off = (sl % 2) * 32 * K + 16 * K + (b >> 1) * 8 * K + t * 2048
    f = WR + ((t & 1) * 4 + b) * 4
    tr(f, a, off, None)
    tr(f + 2, a, off + 512, ("w", st, t, b))


def p1_m(st, t, b):
    if OPT["nocomp"]:
        return
    lg.wait(("x", st, t))
    lg.wait(("w", st, t, b))
    f = WR + ((t & 1) * 4 + b) * 4
    c = "0" if (st == 0 and t == 0) else v(ACC + 16 * b, 16)
    P(f"v_mfma_f32_32x32x16_bf16 {v(ACC + 16 * b, 16)}, {v(f, 4)}, {v(XR + 16 * st + 4 * t, 4)}, {c}")


P("s_barrier ; b0")
stamp(0, "b0")
if OPT["p2only"]:
    P("s_branch L_c2")
p1_x(0, 0)
for b in range(4):
    p1_w(0, 0, b)
P("s_mov_b32 exec_lo, 1\ns_mov_b32 exec_hi, 1")
P(f"buffer_store_dwordx2 v[2:3], v25, {rWS}, s56 offen sc1")
P("s_mov_b64 exec, -1")
P(f"v_add_u32 {v(WA + 5)}, 0x{88 * K:x}, {v(WA + 1)}")
LOG2E = 1.4426950408889634
C1 = -2 * LOG2E * math.sqrt(2 / math.pi)
C2 = C1 * 0.044715
GCHK = f"v_xor_b32 v27, {XTAG}, {v(GR + 1)}\nv_lshlrev_b32 v28, 4, v27\nv_cmp_ne_u32 vcc, 0, v28"
EXR = (22, 26)
side1 = [f"v_cmp_ne_u32 vcc, 0, v27", f"s_mov_b32 {T0}, 0x01000100", f"v_perm_b32 {v(XE)}, {v(GR)}, {v(GR)}, {T0}",
         "s_or_b32 s57, vcc_lo, vcc_hi", f"v_xor_b32 {v(XE)}, 0x80008000, {v(XE)}", f"v_lshrrev_b32 {v(XE + 1)}, 16, {v(GR)}",
         f"v_and_b32 {v(SD)}, 0xffff0000, {v(GR)}", f"v_rcp_f32 {v(RS)}, {v(SD)}", f"v_mov_b32 {v(SD + 1)}, {v(SD)}",
         f"v_mul_f32 {v(K1)}, 0x{f2u(C1):x}, {v(RS)}", f"v_mul_f32 {v(K2)}, {v(RS)}, {v(RS)}", f"v_mul_f32 {v(RL)}, 0x{f2u(LOG2E):x}, {v(RS)}",
         f"v_mul_f32 {v(K2)}, {v(K2)}, {v(RS)}", f"v_mov_b32 {v(RS + 1)}, {v(RS)}", f"v_mul_f32 {v(K2)}, 0x{f2u(C2):x}, {v(K2)}",
         f"v_mov_b32 {v(K1 + 1)}, {v(K1)}", f"v_mov_b32 {v(RL + 1)}, {v(RL)}", f"v_mov_b32 {v(K2 + 1)}, {v(K2)}"]
for st in range(8):
    for t in range(3):
        for b in range(4):
            p1_m(st, t, b)
            if st == 7 and t == 1 and b == 0:
                P("s_waitcnt vmcnt(0)")
                P(GCHK)
                retry("L_gr", GLOAD, GCHK)
            elif st == 7 and t >= 1:
                for _ in range(3):
                    if side1:
                        P(side1.pop(0))
            if b == 0:
                p1_x(st, t + 1)
            p1_w(st, t + 1, b)
    assert st < 7 or not side1
    p1_m(st, 3, 0)
    if st == 2 + OPT["chl"]:
        P("ds_read_b32 v4, v28")
        lg.add(None)
    p1_m(st, 3, 1)
    if st == 5 + OPT["gl"]:
        P(GLOAD)
    lg.drain()
    if st == 7:
        stamp(0, "c8")
    P(f"s_barrier ; b{st + 1}")
    if st == 6:
        stamp(0, "b7")
    if st < 7:
        p1_x(st + 1, 0)
        p1_w(st + 1, 0, 0)
        p1_w(st + 1, 0, 1)
        p1_m(st, 3, 2)
        if st == 2 + OPT["chl"] and not OPT["nst"] & 2:
            P(f"buffer_store_dwordx2 v[4:5], v27, {rWS}, {SCS2} offen {OPT['saux'] or ''}")
        if st == OPT["touch"] - 1:
            P(f"buffer_load_dword v8, v6, {rW2}, 0 offen\nbuffer_load_dword v9, v7, {rWO}, 0 offen")
        p1_w(st + 1, 0, 2)
        p1_w(st + 1, 0, 3)
        p1_m(st, 3, 3)
    else:
        P(f"v_mov_b32 v27, s57\ns_mov_b64 exec, 1\nds_write_b32 {v(CSIG)}, v27 offset:{L_FAST - L_PRG}\ns_mov_b64 exec, -1")
        lg.add(None)
        for b in range(4):
            P(f"ds_read_b64 {v(WR + 2 * b, 2)}, v29 offset:{512 * b}")
            lg.add(("ex", b))
        p1_m(st, 3, 2)
        p1_m(st, 3, 3)
        for b in range(4):
            lg.wait(("ex", b))
            P(f"v_mfma_f32_32x32x8bf16_1k {v(ACC + 16 * b, 16)}, {v(WR + 2 * b, 2)}, {v(XE, 2)}, {v(ACC + 16 * b, 16)}")
stamp(0, "b8")
if OPT["p1only"]:
    dump(0)
    P("s_endpgm")
    DIAG = 0
stamp(0, "ex1")

TT, UU = 32, 48


def pairs(fmt, a):
    for p in range(8):
        P(fmt.format(T=v(TT + 2 * p, 2), A=v(a + 2 * p, 2)))


def singles(fmt):
    for r in range(16):
        P(fmt.format(T=v(TT + r)))


def cvt(dst, src=TT):
    for p in range(8):
        P(f"v_cvt_pk_bf16_f32 {v(dst + p)}, {v(src + 2 * p)}, {v(src + 2 * p + 1)}")


def epi_gelu(b, base, k, rdy=None, prev=None, last=True):
    a = ACC + 16 * b
    if rdy:
        peek(CPK, 28)
    pairs("v_pk_mul_f32 {T}, {A}, {A}", a)
    pairs("v_pk_fma_f32 {T}, {T}, %s, %s" % (v(K2, 2), v(K1, 2)), a)
    pairs("v_pk_mul_f32 {T}, {T}, {A}", a)
    if prev:
        signal(CSIG, 27, prev, True)
    singles("v_exp_f32 {T}, {T}")
    pairs("v_pk_fma_f32 {T}, {T}, %s, %s" % (v(SD, 2), v(SD, 2)), a)
    singles("v_rcp_f32 {T}, {T}")
    pairs("v_pk_mul_f32 {T}, {T}, {A}", a)
    cvt(a)
    if rdy:
        await_(CPK, 28, rdy, peeked=True)
    for h in range(2 if not OPT["nods"] else 0):
        P(f"ds_write_b128 v26, {v(a + 4 * h, 4)} offset:{base - L_HS + (2 * b + h) * 4096}")
        lg.add(None)
    if last:
        signal(CSIG, 27, k, True)


def epi_phi(b, dst):
    a = ACC + 16 * b
    pairs("v_pk_mul_f32 {T}, {A}, %s" % v(RL, 2), a)
    singles("v_exp_f32 {T}, {T}")
    pairs("v_pk_fma_f32 {A}, {A}, %s, 1.0 op_sel_hi:[1,1,0]" % v(RS, 2), a)
    for r in range(16):
        P(f"v_med3_f32 {v(TT + r)}, {v(TT + r)}, {v(a + r)}, 1.0")
    pairs("v_pk_add_f32 {T}, {T}, %s" % EPS2, a)
    cvt(dst)


def epi_lin(b, dst):
    a = ACC + 16 * b
    pairs("v_pk_mul_f32 {T}, {A}, %s" % v(RS, 2), a)
    cvt(dst)


AY, AS, AR = 64, 192, 128
RG = OPT["ring"]
NST = 30
WB, VA, FD, VF, XW, CPC2, TA, TB_, TC, XW2 = 96, 102, 104, 106, 108, 112, 113, 114, 115, 116
FHB = f"buffer_load_dword {v(FD)}, {v(VF)}, {rWS}, {SFHB} offen sc1"
FHA = f"buffer_load_dword {v(FD)}, {v(VF)}, {rWS}, {SFHA} offen sc1"
FH1 = f"buffer_load_dword {v(FD)}, {v(VF)}, {rWS}, s44 offen sc1"
FO = f"buffer_load_dword {v(FD + 1)}, {v(VF + 1)}, {rWS}, {SFO} offen sc1"
HBC = f"v_cmp_ne_u32 vcc, {NONCE}, {v(FD)}"
vm = Q("vmcnt", 63)


def aload(n, ks):
    if n >= NST or (OPT["noa"] and n >= RG):
        return
    P(f"buffer_load_dwordx4 {v(AR + 8 * (n % RG) + 4 * ks, 4)}, {v(VA + (n % 2 if n >= 16 else n >> 3))}, {rWS}, s{36 + (n & 7) if n < 16 else (8 + n - 16 if n < 22 else 36 + (n >> 1))} offen offset:{1024 * ks} {OPT['aaux'] or ''}")
    vm.add(("a", n, ks))


PRM = OPT["prime"]
def prime():
    for n in range(PRM):
        aload(n, 0)
        aload(n, 1)


nchk = [0]
def checkpoint():
    if not OPT["early"]:
        return
    nchk[0] += 1
    l = f"L_ck{nchk[0]}"
    P(f"s_getreg_b32 {T3}, hwreg(HW_REG_IB_STS, 0, 4)\ns_or_b32 {T3}, {T3}, {PRIMED}\ns_cbranch_scc1 {l}_x")
    P(f"s_waitcnt vmcnt(0)\n{HBC}\ns_cbranch_vccnz {l}_r")
    prime()
    P(f"s_mov_b32 {PRIMED}, 1")
    P.label(l + "_x")
    cold.append(f"{l}_r:\n{FHB}\ns_branch {l}_x")


def setup2():
    global P
    keep, P = P, Prog()
    P(f"v_and_b32 {v(VF + 1)}, 31, v0\nv_lshlrev_b32 {v(VF + 1)}, 2, {v(VF + 1)}\nv_and_b32 {v(VF)}, 28, {v(VF + 1)}")
    waddr(WB, TA, TB_, 2)
    P(f"v_add_u32 {v(WB)}, {SK12}, {v(WB)}\nv_xor_b32 {v(WB + 1)}, 64, {v(WB)}")
    for k in (1, 2):
        P(f"v_add_u32 {v(WB + 2 * k)}, 0x{64 * K * k:x}, {v(WB)}\nv_add_u32 {v(WB + 2 * k + 1)}, 0x{64 * K * k:x}, {v(WB + 1)}")
    P(f"v_lshrrev_b32 {v(TA)}, 1, {SK12}\nv_add_u32 {v(VA)}, {v(TA)}, {v(VH)}\nv_add_u32 {v(VA + 1)}, 0x1000, {v(VA)}")
    P(f"v_lshrrev_b32 {v(TA)}, 5, v0\nv_and_b32 {v(TB_)}, 7, v0\nv_xor_b32 {v(TA)}, {v(TA)}, {v(TB_)}\nv_lshlrev_b32 {v(TA)}, 4, {v(TA)}")
    P(f"v_and_b32 {v(TB_)}, 31, v0\nv_lshl_or_b32 {v(TA)}, {v(TB_)}, 8, {v(TA)}\nv_add_u32 {v(XW)}, {SXW}, {v(TA)}")
    for q in range(1, 4):
        P(f"v_xor_b32 {v(XW + q)}, {32 * q}, {v(XW)}")
    P(f"v_add_u32 {v(CPC2)}, 16, {v(CPK)}")
    for q in range(4):
        P(f"v_add_u32 {v(XW2 + q)}, {SXS}, {v(XW + q)}")
    lines, P = P.lines, keep
    return lines


def pass2(nb):
    side = setup2()
    n = 32 * nb
    def rd(m):
        if m >= n:
            return
        step, b = divmod(m, nb)
        off = CH(step >> 2) - 88 * K + (step & 3) * 2048
        f = WR + (m % 8) * 4
        tr(f, WA + 4 + b, off, None)
        tr(f + 2, WA + 4 + b, off + 512, ("p2", m))
    for m in range(7):
        rd(m)
    for m in range(n):
        step, b = divmod(m, nb)
        lg.wait(("p2", m))
        c = "0" if step == 0 else v(ACC + 16 * b, 16)
        P(f"v_mfma_f32_32x32x16_bf16 {v(ACC + 16 * b, 16)}, {v(WR + (m % 8) * 4, 4)}, {v(XR + 4 * step, 4)}, {c}")
        rd(m + 7)
        for _ in range(2 if nb == 1 else 1):
            if side and m >= 2 and not OPT["noside"]:
                P(side.pop(0))
        if m == max(6, n - OPT["smp"]) and not OPT["nosamp"]:
            P(FHB)
        if m == 5 and OPT["tlb"] == 1:
            P(f"buffer_load_dword {v(TC)}, {v(VF)}, {rWS}, {SBASE} offen sc1")
        if m == n - 6:
            if OPT["fill"] == 4:
                P("s_waitcnt vmcnt(0)" if OPT["nosamp"] else "s_waitcnt vmcnt(1)")
            for bb in range(nb):
                lg.room()
                P(f"ds_read_b64 {v(12 + 2 * bb, 2)}, v29 offset:{L_EX2 - L_EX1 + 512 * bb}")
                lg.add(("ex2", bb))
    while side:
        P(side.pop(0))
    checkpoint()
    lg.drain()
    signal(CSIG, 27, 8)
    for b in range(nb):
        P(f"v_mfma_f32_32x32x8bf16_1k {v(ACC + 16 * b, 16)}, {v(12 + 2 * b, 2)}, {v(XE, 2)}, {v(ACC + 16 * b, 16)}")


P(f"s_cmp_eq_u32 {TYPE}, 0")
P("s_cbranch_scc0 L_cB")
P(f"v_and_b32 v26, 31, v0\nv_lshrrev_b32 v27, 5, v0\ns_lshl_b32 {T0}, {W}, 5")
P(f"v_add_u32 v26, {T0}, v26\nv_mul_u32_u24 v26, {TROW}, v26\nv_lshl_add_u32 v26, v27, 3, v26\nv_add_u32 v26, 0x{TBUF:x}, v26")
for b in range(4):
    u = UU + 8 * (b & 1)
    (epi_phi if b < 2 else epi_lin)(b, u)
    for q in range(4):
        P(f"ds_write_b64 v26, {v(u + 2 * q, 2)} offset:{64 * b + 16 * q}")
    if OPT["fill"] == 4 and b == OPT["fo"]:
        P(f"s_lshl2_add_u32 {T1}, {I_}, {W}\ns_mul_i32 {T1}, {T1}, {TB_STRIDE}\ns_lshl_b32 {T2}, {C_}, 12\ns_add_u32 {T1}, {T1}, {T2}\ns_add_u32 {T1}, {T1}, 0x{WS_HA + 86 * K:x}")
        P(f"v_lshlrev_b32 v16, 7, v0\nv_and_b32 v16, 0xfff, v16\nbuffer_load_dword v18, v16, {rWS}, {T1} offen")
    if "st0" in OPT:
        stamp(0, f"g{b}")
P(f"v_lshrrev_b32 v26, 2, v0\nv_mul_u32_u24 v26, {TROW}, v26\nv_and_b32 v27, 3, v0\nv_lshl_add_u32 v26, v27, 3, v26")
P(f"s_add_u32 {T0}, {T0}, 0x{TBUF:x}")
P(f"v_add_u32 v26, {T0}, v26")
for r in range(4):
    P(f"v_mov_b32 {v(104 + r)}, 0x3f803f80")
P(f"s_lshl_b32 {T0}, {C_}, 4\ns_add_u32 {T0}, {T0}, {I_}\ns_mul_i32 {T0}, {T0}, {KVP_STR}\ns_add_u32 {T0}, {T0}, 0x{WS_KVP:x}")
P(f"s_lshl_b32 {T1}, {W}, 10\ns_add_u32 {T1}, {T1}, {T0}")
P(f"s_lshl_b32 {T2}, {W}, 6\ns_add_u32 {T2}, {T2}, {T0}\ns_add_u32 {T2}, {T2}, 4096")
signal(CSIG, 27, 1, True)
P(f"v_add_u32 {v(CPC)}, 16, {v(CPK)}")
lg.q = []
await_(CPC, 27, 1)
stamp(0, "e1")
def kvm(mm):
    lg.wait(("kv", mm, 1))
    P(f"v_mfma_f32_16x16x32_bf16 v[96:99], {v(ACC + 8 * mm, 4)}, {v(ACC + 8 * mm + 4, 4)}, {'0' if mm == 0 else 'v[96:99]'}")
    P(f"v_mfma_f32_16x16x32_bf16 v[100:103], {v(ACC + 8 * mm, 4)}, v[104:107], {'0' if mm == 0 else 'v[100:103]'}")
for m in range(4):
    for o in range(2):
        f = ACC + 8 * m + 4 * o
        tr(f, 26, m * 32 * TROW + 128 * o, None)
        tr(f + 2, 26, (m * 32 + 16) * TROW + 128 * o, ("kv", m, o))
    if m >= 2:
        kvm(m - 2)
kvm(2)
kvm(3)
P(f"v_mov_b32 v104, {NONCE}")
for h in range(4):
    P(f"s_mov_b32 {T0}, 0x0706050{h}")
    P(f"v_perm_b32 {v(96 + h)}, {v(96 + h)}, v104, {T0}\nv_perm_b32 {v(100 + h)}, {v(100 + h)}, v104, {T0}")
P(f"buffer_store_dwordx4 v[96:99], {v(VH)}, {rWS}, {T1} offen sc1")
P("s_mov_b32 exec_lo, 0x00010001\ns_mov_b32 exec_hi, 0x00010001")
P(f"buffer_store_dwordx4 v[100:103], v0, {rWS}, {T2} offen sc1")
P("s_mov_b64 exec, -1")
signal(CSIG, 27, 2)
stamp(0, "kv")
await_(CPK, 27, 1)
stamp(0, "b10")
P("s_branch L_p2")
P.label("L_cB")
lg.q = []
P(f"s_lshl_b32 {T0}, {W}, 10\ns_add_u32 {T0}, {T0}, 0x{L_HS:x}")
P(f"v_add_u32 v26, {T0}, {v(VH)}")
if OPT["fill"] == 4:
    hblock2(T1)
    P(f"s_lshl2_add_u32 {T0}, {I_}, {W}\ns_mul_i32 {T0}, {T0}, {TB_STRIDE}\ns_add_u32 {T0}, {T0}, 0x{WS_HA:x}")
    P(f"s_lshl_b32 {T1}, {T1}, 11\ns_add_u32 {T1}, {T1}, {T0}\ns_lshl_b32 {T2}, {C_}, 13\ns_add_u32 {T0}, {T0}, {T2}")
    P(f"s_cmp_lt_u32 {C_}, 3")
    sel2(T2, 0xfff, 0x7ff)
    P(f"v_lshlrev_b32 v16, 7, v0\nv_and_b32 v17, {T2}, v16")
for b in range(4):
    epi_gelu(b, L_HS, b + 1, prev=b, last=(b == 3))
    if OPT["fill"] == 4 and b == OPT["f1"]:
        P(f"buffer_load_dword v18, v16, {rWS}, {T0} offen")
    if OPT["fill"] == 4 and b == OPT["f2"]:
        P(f"buffer_load_dword v19, v17, {rWS}, {T1} offen")
    if "st0" in OPT:
        stamp(0, f"g{b}")
stamp(0, "e1")
await_(CPK, 28, 1)
stamp(0, "b10")
P(f"s_cmp_lt_u32 {C_}, 3")
P("s_cbranch_scc1 L_p2")
lg.q = [None] * 3
pass2(1)
stamp(0, "p2")
epi_gelu(0, L_PQ, 10, 2)
stamp(0, "e2")
P("s_branch L_c2")
P.label("L_p2")
lg.q = [None] * 3
pass2(2)
stamp(0, "p2")
P(f"s_cmp_eq_u32 {TYPE}, 0")
P("s_cbranch_scc0 L_cB2")
P(f"s_lshl_b32 {T0}, {W}, 12\ns_add_u32 {T0}, {T0}, 0x{L_PQ:x}")
P(f"v_add_u32 v26, {T0}, {v(VH)}")
lg.q = [None]
peek(CPC2, 28)
for b in range(2):
    epi_phi(b, UU + 8 * b)
    if b == 0:
        await_(CPC2, 28, 2, peeked=True)
    for h in range(2):
        P(f"ds_write_b128 v26, {v(UU + 8 * b + 4 * h, 4)} offset:{(2 * b + h) * 1024}")
    if b == 0:
        checkpoint()
signal(CSIG, 27, 10, True)
stamp(0, "e2")
P("s_branch L_c2")
P.label("L_cB2")
lg.q = [None]
epi_gelu(0, L_PQ, 9, 2, last=False)
checkpoint()
epi_gelu(1, L_PQ, 10, prev=9)
stamp(0, "e2")
P.label("L_c2")
stamp(0, "c2")
stamp(0, "setup")
if OPT["quiet"]:
    dump(0)
    P("s_endpgm")
if OPT["nosamp"]:
    P(FHB)
P(f"s_cmp_lg_u32 {PRIMED}, 0\ns_cbranch_scc1 L_primed")
if not OPT["p2only"]:
    P(f"s_waitcnt vmcnt(0)\n{HBC}")
    retry("L_hb", FHB, HBC)
stamp(0, "hb_seen")
prime()
P.label("L_primed")
vm.q = [("a", n, ks) for n in range(PRM) for ks in range(2)]
gate = {8: OPT["cH1"], 16: OPT["cHA"], 22: OPT["cO"]}
nxt = [PRM, 0]
def aissue(n, k4):
    while nxt[0] < NST:
        nn, ks = nxt
        if nn in gate and (n, k4) < (gate[nn], 1):
            return
        if nn - RG > n or (nn - RG == n and k4 < 2 * ks + 1):
            return
        aload(nn, ks)
        nxt[:] = [nn, 1] if ks == 0 else [nn + 1, 0]
        return


def wrd(m):
    n, ks, ct = m >> 2, (m >> 1) & 1, m & 1
    if n >= NST:
        return
    ev = {OPT["gx"]: 4, 76: 5, 88: 6}
    if m + 5 in ev:
        peek(CPK, 20)
    if m == OPT["g2"]:
        signal(CSIG, 21, 12)
    if m == 72:
        signal(CSIG, 21, 13)
    if m == 93:
        peek(CPC2, 19)
    if m in ev:
        if m == OPT["gx"]:
            signal(CSIG, 21, 11)
        await_(CPK, 20, ev[m], peeked=True)
    so = slot_of(2 * n) + ks * 2048
    k = so // (64 * K)
    f = WR + (m % 8) * 4
    if OPT["now"] and m >= 8:
        return
    tr(f, WB + 2 * k + ct, so - 64 * K * k, None)
    tr(f + 2, WB + 2 * k + ct, so - 64 * K * k + 1024, ("w2", m))


def xwrite(acc, base, ct, q):
    lg.room()
    P(f"ds_write_b128 {v(base + q)}, {v(acc + 16 * ct + 4 * q, 4)} offset:{128 * ct}")
    lg.add(("xw", acc))


lg.q = []
stamp(0, "primed")
await_(CPK, 20, 3)
for m in range(7):
    wrd(m)
for n in range(NST):
    acc = AY if n < 22 else AS
    if n == 21:
        P(f"s_cmp_eq_u32 {KH}, 0")
    for k4 in range(4):
        m = 4 * n + k4
        ks, ct = k4 >> 1, k4 & 1
        w = vm.need(("a", n, ks)) + " " + (lg.need(("w2", m | 1)) if OPT["w2"] else "") + lg.need(("w2", m))
        if w.strip():
            P("s_waitcnt " + w.strip())
        c = "0" if (n in (0, 22) and ks == 0) else v(acc + 16 * ct, 16)
        if n == 21:
            P(f"s_cbranch_scc0 L_null{k4}")
        P(f"v_mfma_f32_32x32x16_bf16 {v(acc + 16 * ct, 16)}, {v(WR + (m % 8) * 4, 4)}, {v(AR + 8 * (n % RG) + 4 * ks, 4)}, {c}")
        if n == 21:
            P.label(f"L_null{k4}")
        if k4 == 1:
            for nn, ld, fd, nm in ((8, FH1, FD, "h1"), (16, FHA, FD, "ha"), (22, FO, FD + 1, "o")):
                if n == max(0, gate[nn] - OPT["fl"]) and gate[nn] > 0:
                    P(ld)
                    vm.add("f" + nm)
                if n == gate[nn]:
                    vm.wait("f" + nm)
                    P(f"v_cmp_ne_u32 vcc, {NONCE}, {v(fd)}")
                    retry("L_" + nm, ld, f"v_cmp_ne_u32 vcc, {NONCE}, {v(fd)}")
                    stamp(0, nm + "_seen")
        aissue(n, k4)
        assert nxt[0] > n + 1 or nxt[0] == NST or (nxt[0] == n + 1 and k4 < 3), (n, k4, nxt)
        wrd(m + 7)
        if m == 91:
            await_(CPC2, 19, 13, peeked=True)
        if m >= 91 and (m - 91) % OPT["ys"] == 0 and (m - 91) // OPT["ys"] < 8:
            xwrite(AY, XW, ((m - 91) // OPT["ys"]) >> 2, ((m - 91) // OPT["ys"]) & 3)
        if m == 91 + 7 * OPT["ys"] + OPT["dy"]:
            lg.wait(("xw", AY))
            P("s_barrier ; dY")
    if "st0" in OPT:
        stamp(0, f"n{n}")
stamp(0, "sdone")
for ct in range(2):
    for q in range(4):
        xwrite(AS, XW2, ct, q)
lg.drain()
P("s_barrier ; dS")
P(f"s_or_b32 {T0}, s2, {W}\ns_cmp_eq_u32 {T0}, 0")
P("s_cbranch_scc0 L_cend")
flag_store(T0)
P.label("L_cend")
dump(0)
P("s_endpgm")
flush_cold()
P.label("L_codeend")

body = P.finish()
hdr = f"""; Fused LayerNorm + linear attention + GELU FFN block, one persistent launch (256 workgroups, one per CU).
; Generated by work/gen2.py.  Four waves stream operands into LDS, four waves compute.
; @launch grid=(256,1,1) block=(512,1,1) lds=163840
.amdgcn_target "amdgcn-amd-amdhsa--gfx950"
.text
.globl {KNAME}
.p2align 8
.type {KNAME},@function
{KNAME}:
"""
tail = f"""
.section .rodata,"a"
.p2align 6
.amdhsa_kernel {KNAME}
  .amdhsa_next_free_vgpr 256
  .amdhsa_next_free_sgpr 102
  .amdhsa_accum_offset 256
  .amdhsa_group_segment_fixed_size 0
  .amdhsa_kernarg_size 88
  .amdhsa_user_sgpr_count 2
  .amdhsa_user_sgpr_kernarg_segment_ptr 1
  .amdhsa_system_sgpr_workgroup_id_x 1
  .amdhsa_float_denorm_mode_32 3
.end_amdhsa_kernel
"""
if OPT["diag"]:
    tail += f"; STAMPS0 {' '.join(slots[0])}\n"
sys.stdout.write(hdr + body + tail)
sys.stderr.write(f"pads {P.npad}\n")
```

```python
import sys, os, struct, math
from asmlib import Prog, v, s

KNAME = "recurrent_scan__linear_attn_block__dense_activation_gelu__prompt_kernel"
OPT = dict(diag=0, outaux="sc1", map1=81, spin=16, codepf=1, ldfirst=1, prio=1,
           nA9=3, nA10=7, nB10=8, mf=56, cprio=3, gx=36, n6=2, n7=1, kA=12, lag=8, sp=0, sp0=0, nost=0, slp=2, kvw=0, gprio=3, sA=4, xB=8, fast=1, nt1=2, trow=272, nosamp=0, e1B=4, iB2=2, e1A=20, gd=16, lB2=5, lB1=0, cw=1, tlb=0, fill=0, f1=0, f2=9, fo=0, wsoff=0, wprio=3, l1=9, fence=1, inl=1, w0=6, w1=8, w0c=6, quiet=0, nosig=0, noside=0, nt2=2, wb=0, lB=0, hk1=0, lA0=8, lA=0, kq=2, wbj=0, kA0=12, kA1=8, kA2=0, rotx=1, spx=0, pB=10, iB=0, ring=4, nods=0, lsl=0, yB=12, zB=4, yB1=2, zB1=4, aaux="sc1", ahot=0, g2=52, rot2=1, pace=0, pace1=0, dy=2, ys=1, w2=1, p2only=0, plain=0, stouch=0, nst=0, saux="sc1", csprio=3, early=0, map2=81, smp=28, noa=0, now=0, la=7, touch=0, ltouch=1, gl=0, eb=1, chl=0, preA=0, tl=1, pg=0, fprio=1, f6=0, prime=4, cH1=4, cHA=12, cO=18, fl=4, ft=1, exprio=1, stdiag=0, p1only=0, nocomp=0, norot=0, noload=0, nocs=0)
for a in sys.argv[1:]:
    k, val = a.split("=")
    OPT[k] = val if not val.lstrip("-").isdigit() else int(val)
DIAG = OPT["diag"]
assert OPT["gx"] <= 36


def f2u(x):
    return struct.unpack("<I", struct.pack("<f", x))[0]


K = 1024
WS_STATS = 0x1000
WS_FLAGS = 0x8000
FL_HB, FL_HA, FL_O, FL_H1 = 0, 64, 128, 192
WS_KVP = 0x10000
KVP_STR = 4352
WS_CS = 0xA0000
WS_HA = 0x140000 + OPT["wsoff"] * 0x100000
TB_STRIDE = 118 * K
WS_DIAG = 0x900000
WS_SIZE = 0xA00000 + OPT["wsoff"] * 0x100000
def CH(q):
    return 96 * K + 8 * K * q if q < 7 else 88 * K
TBUF = 52 * K
TROW = OPT["trow"]
L_EX1 = 152 * K
L_CSX = 156 * K
L_RDY = 154 * K
L_PRG = L_RDY + 16
L_TAG = L_RDY + 32
L_FAST = L_RDY + 48
L_EX2 = 155 * K
L_KT = 156 * K
L_PQ = 72 * K
L_HS = 52 * K
L_XY = 112 * K
L_XS0, L_XS1 = 72 * K, 144 * K
def slot_of(p):
    if p < 18:
        return p * 4 * K
    if p < 34:
        return CH((p - 18) >> 1) + (p & 1) * 4 * K
    if p < 38:
        return 72 * K + (p - 34) * 4 * K
    return slot_of(p - 38)

rX, rP1, rP2, rWS, rW2, rWO, rA, rB = (s(n, 4) for n in (4, 8, 12, 16, 20, 24, 28, 32))
P_X, P_QKV, P_WO, P_W1, P_B1, P_W2, P_B2, P_OUT, P_WS = 36, 38, 40, 44, 46, 48, 50, 52, 56
NONCE, W, I_, J_, C_, TYPE, RHO, TB2, CT, RHO2 = (s(n) for n in range(58, 68))
T0, T1, T2, T3 = (s(n) for n in range(68, 72))

P = Prog()


class Q:
    def __init__(self, name, mx):
        self.q, self.name, self.mx = [], name, mx

    def room(self):
        if len(self.q) >= self.mx:
            P(f"s_waitcnt {self.name}({self.mx - 1})")
            self.q = self.q[len(self.q) - (self.mx - 1):]

    def add(self, tag=None):
        self.q.append(tag)

    def need(self, tag):
        if tag not in self.q:
            return ""
        idx = max(i for i, t in enumerate(self.q) if t == tag)
        n = len(self.q) - 1 - idx
        assert n <= self.mx, (self.name, n)
        self.q = self.q[idx + 1:]
        return f"{self.name}({n})"

    def wait(self, tag):
        t = self.need(tag)
        if t:
            P("s_waitcnt " + t)

    def drain(self, force=False):
        if self.q or force:
            P(f"s_waitcnt {self.name}(0)")
        self.q = []


slots = [{}, {}]
def stamp(role, name):
    if not DIAG:
        return
    want = str(OPT.get(f"st{role}", "")).split(",")
    if want != [""] and name not in want and name not in ("start", "end"):
        return
    n = slots[role].setdefault(name, len(slots[role]))
    if DIAG >= 3:
        assert n < 9, (role, name)
        P(f"{'s_memtime' if DIAG == 4 else 's_memrealtime'} s[{80 + 2 * n}:{81 + 2 * n}]")
        return
    assert n < 16, (role, name)
    P(f"{'s_memtime' if DIAG == 2 else 's_memrealtime'} s[96:97]\ns_waitcnt lgkmcnt(0)\ns_mov_b32 s{80 + n}, s96")


def sreg(r):
    return int(r[2:r.index(":")])


def srd(r, ptr, size):
    n = sreg(r)
    P(f"s_mov_b32 s{n}, s{ptr}\ns_mov_b32 s{n+1}, s{ptr+1}\ns_mov_b32 s{n+2}, 0x{size:x}\ns_mov_b32 s{n+3}, 0x20000")


def sel2(dst, a, b):
    P(f"s_mov_b32 {dst}, 0x{b:x}\ns_cmov_b32 {dst}, 0x{a:x}")


cold = []


def flush_cold():
    for t in cold:
        P(t)
    cold.clear()


def spin_text(lbl, load, check):
    t = f"s_mov_b32 {T3}, {1 << OPT['spin']}\n{lbl}:\n{load}\ns_waitcnt vmcnt(0)\n{check}\n"
    t += f"s_sub_u32 {T3}, {T3}, 1\ns_cbranch_scc1 {lbl}_x\ns_cbranch_vccz {lbl}_x\n"
    if OPT["slp"]:
        t += f"s_sleep {OPT['slp']}\n"
    return t + f"s_branch {lbl}"


def spin(lbl, load, check):
    P(spin_text(lbl, load, check))
    P.label(lbl + "_x")


def retry(lbl, load, check):
    if OPT["inl"]:
        P(f"s_cbranch_vccz {lbl}_x")
        spin(lbl, load, check)
        return
    P(f"s_cbranch_vccnz {lbl}_s")
    P.label(lbl + "_x")
    cold.append(f"{lbl}_s:\n" + spin_text(lbl, load, check))


HX = "row"
FAR = "s46"
nrow = [0]
def row_store(text, nt=0):
    if not OPT["fast"] or nt == 2:
        P(text + " sc1")
        return
    nrow[0] += 1
    l = f"L_r{nrow[0]}"
    P(f"s_cmp_lg_u32 {FAR}, 0\ns_cbranch_scc1 {l}\n{text} {'nt' if nt else ''}\n{l}_x:")
    cold.append(f"{l}:\n{text} sc1\ns_branch {l}_x")


def flag_store(sreg_off, va=26, aux="sc1"):
    P(f"v_mov_b32 {v(va)}, {NONCE}\nv_mov_b32 {v(va+1)}, 0")
    P("s_mov_b64 exec, 1")
    if aux == "row":
        row_store(f"buffer_store_dword {v(va)}, {v(va+1)}, {rWS}, {sreg_off} offen")
    else:
        P(f"buffer_store_dword {v(va)}, {v(va+1)}, {rWS}, {sreg_off} offen {aux}")
    P("s_mov_b64 exec, -1")


def signal(vaddr, vtmp, k, fence=False):
    if fence and OPT["fence"]:
        lg.drain(force=True)
    P(f"v_mov_b32 {v(vtmp)}, {k}\ns_mov_b64 exec, 1\nds_write_b32 {v(vaddr)}, {v(vtmp)}\ns_mov_b64 exec, -1")
    lg.add(None)


nwait = [0]
def peek(vaddr, vd):
    lg.room()
    P(f"ds_read_b32 {v(vd)}, {v(vaddr)}")
    lg.add(("peek", vd))


def await_(vaddr, vd, k, peeked=False):
    nwait[0] += 1
    lbl = f"L_w{nwait[0]}"
    if not peeked:
        peek(vaddr, vd)
    lg.wait(("peek", vd))
    P(f"v_cmp_gt_u32 vcc, {k}, {v(vd)}")
    loop = (f"s_mov_b32 {T3}, {1 << 20}\n{lbl}:\nds_read_b32 {v(vd)}, {v(vaddr)}\ns_sub_u32 {T3}, {T3}, 1\ns_waitcnt lgkmcnt(0)\n"
            f"v_cmp_gt_u32 vcc, {k}, {v(vd)}\ns_cbranch_scc1 {lbl}_x\ns_cbranch_vccnz {lbl}")
    if OPT["inl"]:
        P(f"s_cbranch_vccz {lbl}_x\n{loop}")
    else:
        P(f"s_cbranch_vccnz {lbl}_s")
        cold.append(f"{lbl}_s:\n{loop}\ns_branch {lbl}_x")
    P.label(lbl + "_x")


def hblock2(dst):
    P(f"s_lshl_b32 {dst}, {C_}, 1\ns_add_u32 {T3}, {C_}, 3\ns_min_u32 {dst}, {dst}, {T3}\ns_add_u32 {dst}, {dst}, 32")


def waddr(dst, t1, t2, hshift):
    P(f"v_lshrrev_b32 {v(t1)}, 5, v0\nv_bfe_u32 {v(t2)}, v0, 2, 2\nv_lshl_add_u32 {v(t1)}, {v(t1)}, {hshift}, {v(t2)}")
    P(f"v_lshlrev_b32 {v(dst)}, 7, {v(t1)}")
    P(f"v_bfe_u32 {v(t1)}, v0, 3, 1\nv_lshl_or_b32 {v(dst)}, {v(t1)}, 6, {v(dst)}")
    P(f"v_bfe_u32 {v(t1)}, v0, 4, 1\nv_lshl_or_b32 {v(dst)}, {v(t1)}, 5, {v(dst)}")
    P(f"v_and_b32 {v(t1)}, 3, v0\nv_lshl_or_b32 {v(dst)}, {v(t1)}, 3, {v(dst)}")


def tr(dst, addr, off, tag):
    assert 0 <= off < 65536, off
    lg.room()
    P(f"ds_read_b64_tr_b16 {v(dst, 2)}, {v(addr)} offset:{off}")
    lg.add(tag)


def dump(role):
    if not DIAG:
        return
    P("s_waitcnt vmcnt(0)")
    stamp(role, "end")
    P("s_waitcnt lgkmcnt(0)")
    for n in range(16):
        P(f"v_mov_b32 {v(32 + n)}, {s(80 + n) if DIAG < 3 else (s(80 + 2 * n) if n < 10 else ('s100' if n == 15 else 0))}")
    if role == 1 and DIAG >= 3 and OPT.get("xcc"):
        P(f"s_getreg_b32 {T0}, hwreg(HW_REG_XCC_ID, 0, 4)\ns_min_u32 {T1}, s46, 1\ns_lshl4_add_u32 {T0}, {T1}, {T0}\nv_mov_b32 v45, {T0}")
    P(f"s_lshl_b32 {T0}, s2, 3\ns_add_u32 {T0}, {T0}, {W}\ns_lshl_b32 {T0}, {T0}, 6\ns_add_u32 {T0}, {T0}, 0x{WS_DIAG + role * 256:x}")
    P("v_mov_b32 v26, 0\ns_mov_b64 exec, 1")
    for n in range(4):
        P(f"buffer_store_dwordx4 {v(32 + 4 * n, 4)}, v26, {rWS}, {T0} offen offset:{16 * n}")


P("s_cmp_ge_u32 s2, 256")
P("s_cbranch_scc1 L_end")
if DIAG >= 3:
    P("s_memrealtime s[100:101]")
P("s_load_dwordx16 s[36:51], s[0:1], 0")
P("v_lshrrev_b32 v1, 6, v0")
P("v_and_b32 v0, 63, v0")
P(f"v_lshlrev_b32 v2, 2, v1\nv_add_u32 v2, 0x{L_RDY:x}, v2\nv_mov_b32 v3, 0\nds_write_b32 v2, v3")
if OPT["map1"] == 81:
    P(f"s_lshr_b32 {T3}, s2, 7\nv_readfirstlane_b32 {T2}, v1\ns_and_b32 {I_}, s2, 7\ns_bfe_u32 {J_}, s2, 0x40003")
    P(f"s_lshl2_add_u32 {RHO}, {T3}, {J_}\ns_and_b32 {T1}, s2, 3\ns_lshl1_add_u32 {I_}, {I_}, {T3}\ns_add_u32 {RHO}, {RHO}, {T1}\ns_and_b32 {RHO}, {RHO}, 7")
elif OPT["map1"] == 24:
    P(f"s_lshr_b32 {T3}, s2, 5\nv_readfirstlane_b32 {T2}, v1\ns_and_b32 {I_}, s2, 4\ns_bfe_u32 {T1}, s2, 0x20003\ns_and_b32 {J_}, s2, 3")
    P(f"s_lshl1_add_u32 {I_}, {I_}, {T3}\ns_lshl2_add_u32 {J_}, {J_}, {T1}\ns_lshl1_add_u32 {RHO}, {T1}, {T3}\ns_and_b32 {T1}, s2, 1\ns_add_u32 {RHO}, {RHO}, {T1}\ns_and_b32 {RHO}, {RHO}, 7")
else:
    P(f"s_lshr_b32 {T3}, s2, 6\nv_readfirstlane_b32 {T2}, v1\ns_and_b32 {I_}, s2, 6\ns_bfe_u32 {T1}, s2, 0x30003\ns_and_b32 {J_}, s2, 1")
    P(f"s_lshl1_add_u32 {I_}, {I_}, {T3}\ns_lshl3_add_u32 {J_}, {J_}, {T1}\ns_lshl1_add_u32 {RHO}, {T3}, {T1}\ns_bfe_u32 {T1}, s2, 0x10001\ns_add_u32 {RHO}, {RHO}, {T1}\ns_and_b32 {RHO}, {RHO}, 7")
P(f"s_and_b32 {W}, {T2}, 3")
def late_args():
    P("s_load_dwordx4 s[52:55], s[0:1], 64")
    P("s_load_dwordx2 s[56:57], s[0:1], 80")
    P(f"s_lshr_b32 {C_}, {J_}, 1\ns_and_b32 {TYPE}, {J_}, 1")
def diag_init():
    if DIAG:
        for n in range(20):
            P(f"s_mov_b32 s{80 + n}, 0")


RHOS, RHOA = "s3", "s47"
def tile2():
    if OPT["map2"] == 42:
        P(f"s_lshr_b32 {T3}, s2, 5\ns_bfe_u32 {TB2}, s2, 0x20001\ns_lshl_b32 {TB2}, {TB2}, 3\ns_add_u32 {TB2}, {TB2}, {T3}")
        P(f"s_bfe_u32 {RHO2}, s2, 0x20003\ns_and_b32 {CT}, s2, 1\ns_lshl_b32 {CT}, {CT}, 2\ns_add_u32 {CT}, {CT}, {RHO2}")
        P(f"s_lshl_b32 {RHO2}, {RHO2}, 1\ns_add_u32 {RHO2}, {RHO2}, {T3}\ns_and_b32 {RHO2}, {RHO2}, 7")
        return
    P(f"s_lshr_b32 {T3}, s2, 6\ns_and_b32 {TB2}, s2, 7\ns_lshl_b32 {TB2}, {TB2}, 2\ns_add_u32 {TB2}, {TB2}, {T3}")
    P(f"s_bfe_u32 {CT}, s2, 0x30003\ns_lshl_b32 {RHO2}, {T3}, 1\ns_add_u32 {RHO2}, {RHO2}, {CT}\ns_and_b32 {RHO2}, {RHO2}, 7")
    P(f"s_add_u32 {RHOS}, {T3}, {CT}\ns_mul_i32 {RHOA}, {T3}, 3\ns_and_b32 {T3}, {CT}, 1\ns_add_u32 {RHOA}, {RHOA}, {T3}")
    if not OPT["rotx"]:
        P(f"s_mov_b32 {RHOS}, {RHO2}\ns_mov_b32 {RHOA}, 0")


P(f"s_cmp_lt_u32 {T2}, 4")
P("s_cbranch_scc1 L_loader")
late_args()
if OPT["codepf"]:
    P("s_getpc_b64 s[32:33]")
    P.label("L_pc")
    P("s_mov_b32 s34, L_codeend-L_pc\ns_mov_b32 s35, 0x20000")
    P(f"s_lshr_b32 {T0}, s2, 3\ns_lshl2_add_u32 {T1}, {T0}, {W}\ns_lshl_b32 {T1}, {T1}, 7\nv_and_b32 v4, 3, v0\nv_lshl_add_u32 v4, v4, 14, {T1}")
    P("buffer_load_dword v31, v4, s[32:35], 0 offen")
P("s_branch L_compute")
P.label("L_loader")

lg = Q("lgkmcnt", 15)
vm = Q("vmcnt", 63)
VX, VP1, VP2, VW2, VBI, LWA, LWB, VL16, SEL, CS, CS2 = 1, 2, 3, 4, 5, 6, 7, 8, 12, 16, 20
RS1, RS32, SX0, SW0, DCOL, SP20, SM, HB0L = (s(n) for n in range(72, 80))
if DIAG < 3:
    diag_init()
    stamp(1, "start")
P("v_lshrrev_b32 v24, 3, v0\nv_and_b32 v25, 7, v0\nv_lshrrev_b32 v26, 4, v0")
P(f"s_and_b32 {T0}, {W}, 1\ns_lshl_b32 {T0}, {T0}, 2\ns_lshl4_add_u32 {SX0}, {I_}, {W}")
P(f"v_add_u32 v27, {T0}, v26\nv_xor_b32 v27, v27, v25\nv_lshlrev_b32 v27, 4, v27\nv_lshl_or_b32 {v(VX)}, v24, 10, v27")
P(f"s_lshl_b32 {SX0}, {SX0}, 13\ns_lshl_b32 {SM}, {W}, 10")
P("s_mov_b32 s6, 0x200000\ns_mov_b32 s7, 0x20000")
SZQ, SZ1 = 512 * 3072, 512 * 2752


def wsetup():
    late_args()
    P(f"s_setprio {OPT['prio']}")
    P(f"s_lshl_b32 {T1}, {C_}, 7\ns_cmp_eq_u32 {TYPE}, 0")
    sel2(RS1, 3072, 2752)
    sel2(DCOL, 1024, 128)
    sel2("s10", SZQ, SZ1)
    P(f"s_cselect_b32 s8, s{P_QKV}, s{P_W1}\ns_cselect_b32 s9, s{P_QKV+1}, s{P_W1+1}\ns_mov_b32 s11, 0x20000")
    P(f"s_cselect_b32 {SW0}, 1024, {T1}\ns_add_u32 {SW0}, {SW0}, {T1}")
    P("v_and_b32 v27, 1, v26\nv_lshlrev_b32 v27, 2, v27\nv_xor_b32 v27, v27, v25\nv_lshlrev_b32 v27, 4, v27")
    P(f"v_mad_u32_u24 {v(VP1)}, v24, {RS1}, v27")
    P(f"s_lshl_b32 {T3}, {W}, 3\ns_mul_i32 {SP20}, {T3}, {RS1}\ns_add_u32 {SW0}, {SW0}, {SP20}\ns_lshl_b32 {RS32}, {RS1}, 5")


def wsetup2():
    hblock2(HB0L)
    P(f"s_lshl_b32 {T0}, {HB0L}, 6\ns_lshl_b32 {T1}, {C_}, 7\ns_cmp_eq_u32 {TYPE}, 0\ns_cselect_b32 {T0}, {T1}, {T0}\ns_add_u32 {SP20}, {SP20}, {T0}")
    P(f"v_lshl_or_b32 {v(VW2)}, v24, 10, v27")


def dma(voff, srdr, soff, tag):
    if OPT["noload"]:
        return
    P(f"buffer_load_dwordx4 {v(voff)}, {srdr}, {soff} offen lds")
    vm.add(tag)


def ks_reg(q):
    P(f"s_add_u32 {T0}, {RHO}, {q}\ns_and_b32 {T0}, {T0}, 7" if q else f"s_mov_b32 {T0}, {RHO}")


def stage(q, mid=None, pre=None):
    sl = (q % 3) * 32 * K
    ks_reg(q)
    P(f"s_lshl_b32 {T1}, {T0}, 7\ns_add_u32 {T1}, {T1}, {SX0}")
    for m in range(4):
        P(f"s_add_u32 m0, {SM}, {sl + 4 * K * m}")
        if m:
            P(f"s_add_u32 {T1}, {T1}, 32768")
        else:
            P(f"s_lshl_b32 {T0}, {T0}, 6")
            if pre:
                pre()
        dma(VX, rX, T1, ("st", q))
    if mid:
        mid()
    P(f"s_mul_i32 {T0}, {T0}, {RS1}\ns_add_u32 {T0}, {T0}, {SW0}")
    for h in range(2):
        if h:
            P(f"s_add_u32 {T0}, {T0}, {RS32}")
        P(f"s_add_u32 m0, {SM}, {sl + 16 * K + 4 * K * h}")
        P(f"s_add_u32 {T1}, {T0}, {DCOL}")
        dma(VP1, rP1, T0, ("st", q))
        P(f"s_add_u32 m0, {SM}, {sl + 24 * K + 4 * K * h}")
        dma(VP1, rP1, T1, ("st", q))


def chunk(q, tag="ch"):
    ks_reg(q)
    P(f"s_lshl_b32 {T0}, {T0}, 6\ns_mul_i32 {T0}, {T0}, {RS1}")
    P(f"s_add_u32 m0, {SM}, {CH(q)}\ns_add_u32 {T0}, {T0}, {SP20}")
    dma(VP1, rP1, T0, tag)
    P(f"s_add_u32 m0, {SM}, {CH(q) + 4 * K}\ns_add_u32 {T0}, {T0}, {RS32}")
    dma(VP1, rP1, T0, tag)


LPA, LPL = "s48", "s49"
LPB, LGB, SCS = "s36", "s37", "s38"
CHR, MID, PQR, D0, D1 = 48, 104, 212, 32, 228


def page_addr(p):
    if p < 32:
        if p % 2 == 0 or page_addr.last != ("b", p >> 1):
            P(f"s_add_u32 {LGB}, {RHO2}, {(p >> 1) & 7}\ns_and_b32 {LGB}, {LGB}, 7\ns_lshl_b32 {LGB}, {LGB}, 17\ns_add_u32 {LGB}, {LGB}, {LPB}")
            page_addr.last = ("b", p >> 1)
        P(f"s_add_u32 {T0}, {LGB}, {(2 * (p >> 4) + (p & 1)) * 32768}")
        return rW2
    elif p < 44:
        P(f"s_add_u32 {T0}, {LPA}, {(p - 32) * 32768}\ns_cmp_ge_u32 {T0}, {LPL}\ns_cselect_b32 {T1}, {11 * 32768}, 0\ns_sub_u32 {T0}, {T0}, {T1}")
        return rW2
    else:
        g, mask, sr, add = (p - 44) >> 2, 3, rWO, 0
    if p % 4 == 0 or page_addr.last != (p >> 2):
        P(f"s_add_u32 {LGB}, {RHOS}, {g}\ns_and_b32 {LGB}, {LGB}, {mask}\ns_lshl_b32 {LGB}, {LGB}, 17\ns_add_u32 {LGB}, {LGB}, {LPB}")
        page_addr.last = p >> 2
    P(f"s_add_u32 {T0}, {LGB}, {(p % 4) * 32768}")
    return sr
page_addr.last = None


def page(p):
    P(f"s_add_u32 m0, {SM}, {slot_of(p)}")
    sr = page_addr(p)
    dma(VW2, sr, T0, ("pg", p))


def stg_reg(p):
    if p < 38:
        return MID + 4 * (p - 18)
    k = p - 38 if p < 43 else p - 39
    return CHR + 4 * k if k < 14 else 184 + 4 * (k - 14)


def lds16(a):
    return f"{v(VL16 + a // (64 * K))}", a % (64 * K)


def chunk_stage(q):
    ks_reg(q)
    P(f"s_lshl_b32 {T0}, {T0}, 6\ns_mul_i32 {T0}, {T0}, {RS1}\ns_add_u32 {T0}, {T0}, {SP20}\ns_add_u32 {T1}, {T0}, {RS32}")
    for h in range(2):
        P(f"buffer_load_dwordx4 {v(CHR + 8 * (q - 1) + 4 * h, 4)}, {v(VP1)}, {rP1}, {(T0, T1)[h]} offen")
        vm.add(("ch", q))


def chunk_write(q):
    vm.wait(("ch", q))
    for h in range(2):
        a, off = lds16(CH(q) + 4 * K * h)
        P(f"ds_write_b128 {a}, {v(CHR + 8 * (q - 1) + 4 * h, 4)} offset:{off}")


def page_stage(p):
    sr = page_addr(p)
    P(f"buffer_load_dwordx4 {v(stg_reg(p), 4)}, {v(VW2)}, {sr}, {T0} offen")
    vm.add(("pg", p))


def page_write(p, pace=0):
    so = slot_of(p)
    a, off = (VL16, so) if so < 64 * K else ((VL16 + 1, so - 64 * K) if so < 128 * K else (VL16 + 2, so - 128 * K))
    P(f"ds_write_b128 {v(a)}, {v(stg_reg(p), 4)} offset:{off}")
    if pace:
        P("s_waitcnt lgkmcnt(0)")


stage(0, wsetup, lambda: P(f"s_waitcnt lgkmcnt(0)\ns_mov_b32 s4, s{P_X}\ns_mov_b32 s5, s{P_X+1}"))
if DIAG >= 3:
    diag_init()
    stamp(1, "start")
stamp(1, "st0")
wsetup2()
if not OPT["chl"]:
    chunk(0, "ch0")
P("s_waitcnt lgkmcnt(0)")
P(f"s_load_dword {NONCE}, s[{P_WS}:{P_WS+1}], 0")
srd(rWS, P_WS, WS_SIZE)
srd(rW2, P_W2, 1376 * 1024)
srd(rWO, P_WO, 512 * 1024)
srd(rA, P_B1, 2752)
tile2()
waddr(LWA, 27, 28, 3)
P(f"s_and_b32 {T0}, {W}, 1\ns_lshl_b32 {T0}, {T0}, 6")
P(f"v_xor_b32 {v(LWA)}, {T0}, {v(LWA)}")
P(f"v_add_u32 {v(LWB)}, 0x{CH(0):x}, {v(LWA)}")
P(f"s_lshr_b32 {T0}, {W}, 1\ns_lshl_b32 {T0}, {T0}, 13\ns_add_u32 {T0}, {T0}, {16 * K}")
P(f"v_add_u32 {v(LWA)}, {T0}, {v(LWA)}")
P("v_and_b32 v27, 15, v0\nv_lshlrev_b32 v28, 2, v26\nv_cmp_eq_u32 vcc, v27, v28\nv_mov_b32 v27, 0x3f803f80")
for r in range(4):
    P(f"v_cndmask_b32 {v(SEL + r)}, 0, v27, vcc")
P(f"v_lshl_add_u32 {v(VL16)}, v0, 4, {SM}")
P(f"v_add_u32 {v(VL16+1)}, 0x10000, {v(VL16)}\nv_add_u32 {v(VL16+2)}, 0x20000, {v(VL16)}")
P(f"s_lshl_b32 {LPB}, {W}, 13\ns_lshl_b32 {T1}, {CT}, 7\ns_add_u32 {LPB}, {LPB}, {T1}")
P(f"s_lshl_b32 {LPA}, {RHOA}, 15\ns_add_u32 {LPA}, {LPA}, {LPB}\ns_add_u32 {LPA}, {LPA}, {32 * 32768}\ns_add_u32 {LPL}, {LPB}, {43 * 32768}")
P(f"s_lshl_b32 {SCS}, {J_}, 1\ns_lshr_b32 {T0}, {I_}, 3\ns_add_u32 {SCS}, {SCS}, {T0}\ns_lshl_b32 {SCS}, {SCS}, 2")
P(f"s_add_u32 {SCS}, {SCS}, {W}\ns_lshl_b32 {SCS}, {SCS}, 12\ns_add_u32 {SCS}, {SCS}, 0x{WS_CS:x}")
P(f"s_lshl_b32 {T0}, {C_}, 2\ns_add_u32 {T0}, {T0}, {W}\ns_lshl_b32 {T0}, {T0}, 6")
P(f"s_and_b32 {T1}, {W}, 1\ns_add_u32 {T1}, {T1}, {HB0L}\ns_lshl_b32 {T1}, {T1}, 6")
P(f"s_cmp_eq_u32 {TYPE}, 0\ns_cselect_b32 {T0}, 0x100000, {T0}\ns_cselect_b32 {T1}, 0x100000, {T1}")
P(f"v_mov_b32 v27, {T0}\nv_mov_b32 v28, {T1}\nv_cmp_gt_u32 vcc, 32, v0\nv_and_b32 v29, 31, v0")
P(f"v_cndmask_b32 v27, v28, v27, vcc\nv_lshl_add_u32 v30, v29, 1, v27")
VSIG, VPK = 11, 24
P(f"s_lshl_b32 {T0}, {W}, 2\ns_add_u32 {T0}, {T0}, 0x{L_RDY:x}\nv_mov_b32 {v(VSIG)}, {T0}")
P(f"v_and_b32 {v(VPK)}, 3, v0\nv_lshlrev_b32 {v(VPK)}, 2, {v(VPK)}\nv_add_u32 {v(VPK)}, 0x{L_PRG:x}, {v(VPK)}")
XRES, BRES, VO, SO = 244, 252, 19, "s45"
if OPT["eb"]:
    srd(rB, P_B2, 1024)
    P(f"buffer_load_ushort {v(VBI)}, v30, {rA}, 0 offen")
    P(f"v_and_b32 v28, 7, v0\nv_lshlrev_b32 v28, 4, v28\ns_lshl_b32 {T1}, {CT}, 7")
    P(f"buffer_load_dwordx4 {v(BRES, 4)}, v28, {rB}, {T1} offen")
    vm.add(None)
    vm.add(None)
stamp(1, "setup")
stage(1)
if OPT["chl"]:
    chunk(0, ("st", 1))
stamp(1, "issued")
P(f"s_waitcnt lgkmcnt(0)\ns_add_u32 {NONCE}, {NONCE}, 1")
vm.wait("ch0")
vm.wait(("st", 0))
stamp(1, "land")
if OPT["p2only"]:
    P("s_waitcnt vmcnt(0)\ns_barrier")
    signal(VSIG, 27, 6)
    P("s_barrier\ns_barrier")
    dump(1)
    P("s_endpgm")
    lg.q = []
P("s_barrier ; b0")
stamp(1, "b0")
FR = 32


def cs_reads(a, f):
    for t in range(4):
        P(f"ds_read_b64_tr_b16 {v(f + 4 * t, 2)}, {v(a)} offset:{t * 2048}")
        P(f"ds_read_b64_tr_b16 {v(f + 4 * t + 2, 2)}, {v(a)} offset:{t * 2048 + 512}")


def cs_mfma(acc, f):
    for t in range(4):
        P(f"v_mfma_f32_16x16x32_bf16 {v(acc, 4)}, {v(SEL, 4)}, {v(f + 4 * t, 4)}, {'0' if t == 0 else v(acc, 4)}")


CSL = "\n".join(f"buffer_load_dwordx2 {v(32 + 2 * n, 2)}, v29, {rWS}, {SCS} offen offset:{512 * n} sc1" for n in range(8))
CSC = "\n".join([f"v_xor_b32 {v(228 + n)}, {NONCE}, {v(33 + 2 * n)}" for n in range(8)] +
                ["v_or3_b32 v228, v228, v229, v230", "v_or3_b32 v231, v231, v232, v233", "v_or3_b32 v228, v228, v234, v235",
                 "v_or_b32 v228, v228, v231", "v_cmp_ne_u32 vcc, 0, v228"])
nch = 1
for st in range(8):
    CL = OPT["chl"]
    def mid():
        if st == 0:
            P(f"s_setprio {OPT['csprio']}")
            P("s_waitcnt lgkmcnt(0)")
            if not CL:
                cs_reads(LWB, FR + 16)
            cs_mfma(CS, FR)
            if CL:
                P(f"s_setprio {OPT['prio']}")
    if st == 0:
        cs_reads(LWA, FR)
    if st == 1 and CL:
        cs_reads(LWB, FR + 16)
    if st <= 5:
        stage(st + 2, mid)
    if st == CL:
        P(f"s_setprio {OPT['csprio']}")
        P(f"s_lshl_b32 {T0}, {W}, 8\ns_add_u32 {T0}, {T0}, 0x{L_CSX:x}")
        P(f"v_lshl_add_u32 v27, v0, 2, {T0}")
        P("s_waitcnt lgkmcnt(0)")
        cs_mfma(CS2, FR + 16)
        P(f"v_permlane32_swap_b32 {v(CS)}, {v(CS2)}")
        P(f"v_add_f32 {v(CS)}, {v(CS)}, {v(CS2)}")
        P(f"ds_write_b32 v27, {v(CS)}")
        P(f"s_setprio {OPT['prio']}")
    if st == CL + 1:
        P("s_waitcnt lgkmcnt(0)")
    if OPT["fill"] == 3 and 1 <= st <= 6:
        if st == 1:
            P(f"s_lshl2_add_u32 s40, {I_}, {W}\ns_mul_i32 s40, s40, {TB_STRIDE}\ns_lshl_b32 {T0}, {J_}, 12\ns_add_u32 s40, s40, {T0}\ns_add_u32 s40, s40, 0x{WS_HA:x}")
        for t in range(6 * (st - 1), min(32, 6 * st)):
            P(f"s_buffer_load_dword s41, {rWS}, s40 offset:{128 * t}")
    if st == 6:
        P("v_lshlrev_b32 v29, 3, v0")
        P(CSL)
        for n in range(8):
            vm.add("cs")
        if OPT["ltouch"]:
            P(f"s_lshl2_add_u32 {T0}, s2, {W}\ns_mul_i32 {T1}, {T0}, {11 * 128}\ns_lshl_b32 {T0}, {T0}, 9")
            P(f"v_min_u32 v27, 10, v0\nv_lshlrev_b32 v27, 7, v27\nv_and_b32 v28, 0x180, v27")
            P(f"buffer_load_dword v20, v27, {rW2}, {T1} offen\nbuffer_load_dword v21, v28, {rWO}, {T0} offen")
            vm.add(None)
            vm.add(None)
        if OPT["f6"]:
            P(f"s_mul_i32 {T0}, {I_}, {4 * TB_STRIDE}\ns_lshl_b32 {T1}, {C_}, 12\ns_add_u32 {T1}, {T1}, {SM}\ns_add_u32 {T1}, {T1}, {86 * K}")
            P(f"s_mul_i32 {T2}, {W}, {TB_STRIDE}\ns_lshl_b32 {T3}, {HB0L}, 11\ns_add_u32 {T2}, {T2}, {T3}")
            P(f"s_cmp_lt_u32 {C_}, 3")
            sel2(T3, 3, 1)
            P(f"s_cmp_eq_u32 {TYPE}, 0\ns_cselect_b32 {T1}, {T1}, {T2}\ns_cselect_b32 {T3}, 3, {T3}")
            sel2(T2, TB_STRIDE, 1024)
            P(f"s_add_u32 {T0}, {T0}, {T1}\ns_add_u32 {T0}, {T0}, 0x{WS_HA:x}")
            P(f"v_lshrrev_b32 v27, 3, v0\nv_and_b32 v27, {T3}, v27\nv_mul_u32_u24 v27, {T2}, v27\nv_and_b32 v28, 7, v0\nv_lshl_add_u32 v27, v28, 7, v27")
            P(f"buffer_load_dword v23, v27, {rWS}, {T0} offen")
            vm.add(None)
        if OPT["ft"]:
            P(f"s_lshl2_add_u32 {T0}, {I_}, {W}\ns_lshl_b32 {T0}, {T0}, 7\ns_lshl_b32 {T1}, {I_}, 7\ns_add_u32 {T1}, {T1}, {FL_O * 128}")
            P(f"v_and_b32 v27, 3, v0\nv_lshl_add_u32 v28, v27, 13, {T0}\nv_mov_b32 v22, {T1}\nv_cmp_eq_u32 vcc, 2, v27\nv_cndmask_b32 v28, v28, v22, vcc")
            P(f"s_mov_b32 {T0}, 0x{WS_FLAGS:x}\nbuffer_load_dword v22, v28, {rWS}, {T0} offen sc1")
            vm.add(None)
    if st == 7:
        P(f"s_setprio {OPT['exprio']}")
        vm.wait("cs")
        stamp(1, "csin")
        P(CSC)
        retry("L_cs", CSL, CSC)
        stamp(1, "csok")
        P("v_add_f32 v32, v32, v34\nv_add_f32 v36, v36, v38\nv_add_f32 v40, v40, v42\nv_add_f32 v44, v44, v46")
        P("v_add_f32 v32, v32, v36\nv_add_f32 v40, v40, v44\nv_add_f32 v32, v32, v40")
        P("v_cvt_pk_bf16_f32 v33, v32, v32\nv_lshlrev_b32 v33, 16, v33\nv_sub_f32 v32, v32, v33\nv_cvt_pk_bf16_f32 v32, v33, v32")
        P("v_cmp_gt_u32 vcc, 32, v0")
        P(f"s_lshl_b32 {T0}, {W}, 9\ns_add_u32 {T0}, {T0}, 0x{L_EX1:x}")
        P(f"v_add_u32 v29, {T0}, v29")
        P(f"v_cndmask_b32 v34, 0, v32, vcc\nv_cndmask_b32 v35, 0, {v(VBI)}, vcc")
        P(f"v_cndmask_b32 v36, v32, 0, vcc\nv_cndmask_b32 v37, {v(VBI)}, 0, vcc")
        P(f"ds_write_b64 v29, v[34:35]\nds_write_b64 v29, v[36:37] offset:{L_EX2 - L_EX1}")
    if st == 7:
        P(f"s_setprio {OPT['prio']}")
    if st >= 6:
        for q in range(nch, nch + OPT[f"n{st}"]):
            chunk_stage(q)
        nch += OPT[f"n{st}"]
    if st < 7:
        vm.wait(("st", st + 1))
    if st == 7:
        P("s_waitcnt lgkmcnt(0)")
        stamp(1, "exw")
    P(f"s_barrier ; b{st + 1}")
    if "st1" in OPT and st < 7:
        stamp(1, f"b{st+1}")
stamp(1, "b8")
if OPT["p1only"]:
    dump(1)
    P("s_endpgm")
    DIAG = 0
for q in range(nch, 8):
    chunk_stage(q)
if not OPT["eb"]:
    srd(rB, P_B2, 1024)
srd(rP2, P_OUT, 2 * K * K)
P(f"v_and_b32 v28, 7, v0\nv_lshlrev_b32 v28, 4, v28\nv_lshrrev_b32 v29, 3, v0\nv_lshl_or_b32 {v(VO)}, v29, 10, v28")
P(f"s_lshl_b32 {SO}, {TB2}, 2\ns_add_u32 {SO}, {SO}, {W}\ns_lshl_b32 {SO}, {SO}, 14\ns_lshl_b32 {T1}, {CT}, 7\ns_add_u32 {SO}, {SO}, {T1}")
P(f"s_add_u32 {T2}, {SO}, 8192")
if not OPT["eb"]:
    P(f"buffer_load_dwordx4 {v(BRES, 4)}, v28, {rB}, {T1} offen")
    vm.add("res")
P(f"buffer_load_dwordx4 {v(XRES, 4)}, {v(VO)}, {rX}, {SO} offen")
P(f"buffer_load_dwordx4 {v(XRES + 4, 4)}, {v(VO)}, {rX}, {T2} offen")
for _ in range(2):
    vm.add("res")
vq8 = list(vm.q)


def stream(seq):
    for p in seq:
        (page if p < 18 else page_stage)(p)


LATE = list(range(38, 43)) + list(range(44, 60))
P(f"s_cmp_eq_u32 {TYPE}, 0")
P("s_cbranch_scc1 L_lA")
SH1, SH2, SF1 = "s4", "s5", "s6"
P(f"v_add_u32 v22, 16, {v(VSIG)}\nv_lshlrev_b32 v23, 4, v0")
P(f"s_lshl_b32 {T0}, {I_}, 2\ns_add_u32 {T0}, {T0}, {W}")
P(f"s_mul_i32 {SH1}, {T0}, {TB_STRIDE}\ns_add_u32 {SH1}, {SH1}, 0x{WS_HA:x}")
P(f"s_lshl_b32 {SH2}, {HB0L}, 11\ns_add_u32 {SH2}, {SH2}, {SH1}\ns_lshl_b32 {T1}, {C_}, 13\ns_add_u32 {SH1}, {SH1}, {T1}")
P(f"s_lshl_b32 {SF1}, {T0}, 5\ns_add_u32 {SF1}, {SF1}, {C_}\ns_lshl_b32 {SF1}, {SF1}, 2\ns_add_u32 {SF1}, {SF1}, 0x{WS_FLAGS + FL_HB * 128:x}")


def far():
    P(f"ds_read_b32 v28, {v(VPK)} offset:{L_FAST - L_PRG}\ns_waitcnt lgkmcnt(0)\nv_cmp_ne_u32 vcc, 0, v28\ns_or_b32 {FAR}, vcc_lo, vcc_hi")


def wback(tag):
    if OPT["wbj"] == 0:
        P(f"s_cmp_lg_u32 {W}, 0")
    else:
        P(f"s_xor_b32 {T0}, {J_}, {OPT['wbj'] - 1}\ns_or_b32 {T0}, {T0}, {W}\ns_cmp_lg_u32 {T0}, 0")
    P(f"s_cbranch_scc1 L_wb{tag}\nbuffer_wbl2 sc1\nL_wb{tag}:")


def hstore(k, base, b, sh, tag):
    if k == 1:
        await_(VPK, 28, k)
        far()
    else:
        await_(22, 28, k)
    d = D0 + 8 * (b & 1)
    for u in range(2):
        a = base + (2 * b + u) * 4096
        P(f"ds_read_b128 {v(d + 4 * u, 4)}, {v(VL16 + a // (64 * K))} offset:{a % (64 * K)}")
    if b == 2:
        P(f"s_add_u32 {sh}, {sh}, 4096")
    for u in range(2):
        P(f"s_waitcnt lgkmcnt({1 - u})")
        row_store(f"buffer_store_dwordx4 {v(d + 4 * u, 4)}, v23, {rWS}, {sh} offen offset:{2048 * (b & 1) + 1024 * u}", OPT["nt1"] if tag != "h2" else OPT["nt2"])
        vm.add(tag)


if OPT["fill"] == 1:
    P("v_lshlrev_b32 v25, 7, v0\nv_and_b32 v27, 0xfff, v25")
    P(f"buffer_load_dword v20, v25, {rWS}, {SH1} offen\nbuffer_load_dword v21, v27, {rWS}, {SH2} offen")
    vm.add(None)
    vm.add(None)
mid = list(range(18, 38))
stream(mid[:OPT["e1B"]])
np_ = OPT["e1B"]
for q in range(1, 5):
    chunk_write(q)
hstore(1, L_HS, 0, SH1, "h")
for q in range(5, 8):
    chunk_write(q)
signal(VSIG, 26, 1, True)
for b in range(1, 4):
    stream(mid[np_:np_ + OPT["iB2"]])
    np_ += OPT["iB2"]
    hstore(b + 1, L_HS, b, SH1, "h" if b < 2 else "h1")
signal(VSIG, 26, 2)
stamp(1, "h_st")
vm.wait("h")
flag_store(SF1, aux=HX)
vm.add(None)
stamp(1, "hbflag")
P(f"s_add_u32 {SF1}, {SF1}, {(FL_H1 - FL_HB) * 128}")
stream(range(OPT["xB"]))
vm.wait("h1")
flag_store(SF1, aux=HX)
vm.add(None)
stamp(1, "h1flag")
stream(range(OPT["xB"], 18))
stream(mid[np_:])
P(f"s_sub_u32 {SF1}, {SF1}, {(FL_H1 - FL_HA) * 128}")
P(f"s_cmp_lt_u32 {C_}, 3")
P("s_cbranch_scc0 L_lB1")
vqB = list(vm.q)
restB = {}
for nb in (2, 1):
    if nb == 1:
        P.label("L_lB1")
        vm.q = list(vqB)
    page_addr.last = None
    pre = OPT["lB2"] if nb == 2 else OPT["lB1"]
    stream(LATE[:pre])
    vm.wait(("pg", 17))
    signal(VSIG, 26, 3)
    stamp(1, "staged")
    lg.q = []
    await_(VPK, 28, 8)
    marks = {OPT["w0"]: 0, OPT["w1"]: 1} if nb == 2 else {OPT["w0c"]: 0}
    for n, p in enumerate(range(18, 38)):
        if n in marks:
            lg.q = []
            hstore(9 + marks[n], L_PQ, marks[n], SH2, "h2")
            stamp(1, "h2_st")
        vm.wait(("pg", p))
        page_write(p)
    signal(VSIG, 26, 4, True)
    vm.wait("h2")
    flag_store(SF1, aux=HX)
    vm.add(None)
    stamp(1, "oflag")
    stream(LATE[pre:max(pre, OPT["l1"])])
    vm.wait(("pg", 42))
    restB[nb] = LATE[max(pre, OPT["l1"]):]
    P("s_branch L_l5")
P.label("L_lA")
vm.q = list(vq8)
lg.q = []
page_addr.last = None
SOB = "s44"
P(f"s_mul_i32 {SOB}, {I_}, {4 * TB_STRIDE}\ns_lshl_b32 {T1}, {C_}, 12\ns_add_u32 {SOB}, {SOB}, {T1}")
P(f"s_add_u32 {SOB}, {SOB}, {SM}\ns_add_u32 {SOB}, {SOB}, 0x{WS_HA + 86 * K:x}")
if OPT["fill"] == 1:
    P(f"v_bfe_u32 v25, v0, 3, 2\nv_mul_u32_u24 v25, {TB_STRIDE}, v25\nv_and_b32 v27, 7, v0\nv_lshl_add_u32 v25, v27, 7, v25")
    P(f"buffer_load_dword v20, v25, {rWS}, {SOB} offen")
    vm.add(None)
mid = list(range(18, 38))
stream(mid[:8])
for q in range(1, 8):
    chunk_write(q)
signal(VSIG, 26, 1, True)
if OPT["fill"] in (2, 3):
    P(f"s_lshl2_add_u32 {T0}, {I_}, {W}\ns_mul_i32 {T0}, {T0}, {TB_STRIDE}\ns_add_u32 {T0}, {T0}, 0x{WS_HA:x}")
    P("v_lshlrev_b32 v25, 7, v0")
    if OPT["fill"] == 2:
        P(f"s_lshl_b32 {T1}, {C_}, 13\ns_add_u32 {T1}, {T1}, {T0}")
        P(f"buffer_load_dword v20, v25, {rWS}, {T1} offen")
        vm.add(None)
    P(f"s_mul_i32 {T1}, {C_}, {54 * 128}\ns_add_u32 {T1}, {T1}, {T0}\ns_add_u32 {T1}, {T1}, {64 * K}\nv_min_u32 v25, {53 * 128}, v25")
    P(f"buffer_load_dword v21, v25, {rWS}, {T1} offen")
    vm.add(None)
stream(mid[8:OPT["e1A"]])
lg.q = []
await_(VPK, 28, 2)
far()
stream(range(18))
stream(mid[OPT["e1A"]:])
PREA = LATE[:OPT["preA"]] if OPT["gd"] == 8 else LATE[21 - min(5, OPT["preA"]):21]
stream(PREA)
SZL, SK0, SK1, SKE = "s4", "s5", "s6", "s7"
NB = [NONCE, "s39", "s42", "s43"]
P("v_and_b32 v23, 15, v0\nv_lshlrev_b32 v27, 4, v0")
P(f"v_lshrrev_b32 v22, 2, v0\nv_mul_u32_u24 v25, {KVP_STR}, v22\nv_and_b32 v26, 3, v0\nv_lshl_add_u32 v25, v26, 4, v25")
P(f"s_mul_i32 {SK0}, {C_}, {16 * KVP_STR}\ns_add_u32 {SK0}, {SK0}, 0x{WS_KVP:x}")
P(f"s_lshl_b32 {SZL}, {W}, 6\ns_add_u32 {SZL}, {SZL}, {SK0}\ns_add_u32 {SZL}, {SZL}, 4096")
P(f"s_add_u32 {SK0}, {SK0}, {SM}\ns_add_u32 {SKE}, {SK0}, {16 * KVP_STR}")
P(f"s_lshl_b32 {SK1}, {I_}, 1\ns_and_b32 {SK1}, {SK1}, 15\ns_mul_i32 {SK1}, {SK1}, {KVP_STR}\ns_add_u32 {SK1}, {SK1}, {SK0}")
P(f"s_add_u32 {T0}, {SM}, 0x{L_KT:x}")
P("v_and_b32 v40, 1, v26\nv_lshlrev_b32 v40, 4, v40\nv_lshrrev_b32 v26, 1, v26\nv_lshl_or_b32 v40, v26, 3, v40")
P(f"v_lshl_or_b32 v40, v22, 5, v40\nv_add_u32 v40, {T0}, v40")
P("v_bfe_u32 v41, v0, 4, 1\nv_lshlrev_b32 v41, 4, v41\nv_lshrrev_b32 v26, 5, v0\nv_lshl_or_b32 v41, v26, 3, v41")
P(f"v_lshl_or_b32 v41, v23, 5, v41\nv_add_u32 v41, {T0}, v41")
P(f"v_and_b32 v42, 31, v0\nv_lshlrev_b32 v42, 5, v42\nv_lshl_or_b32 v42, v26, 4, v42\nv_add_u32 v42, {T0}, v42")
P(f"s_lshr_b32 s39, {NONCE}, 8\ns_lshr_b32 s42, {NONCE}, 16\ns_lshr_b32 s43, {NONCE}, 24")
ZL = f"buffer_load_dwordx4 v[28:31], v25, {rWS}, {SZL} offen sc1"
ZC = "\n".join([f"v_xor_b32 v20, {NB[0]}, v28", f"v_xor_b32 v21, {NB[1]}, v29",
                f"v_bitop3_b32 v20, v20, v30, {NB[2]} bitop3:0xf6", f"v_bitop3_b32 v21, v21, v31, {NB[3]} bitop3:0xf6",
                "v_or_b32 v20, v20, v21", "v_and_b32 v20, 0xff, v20", "v_cmp_ne_u32 vcc, 0, v20"])
P(f"s_setprio {OPT['gprio']}")
P(f"s_mov_b32 {T2}, 32")
P.label("L_kvall")
spin("L_kv", ZL, ZC)
stamp(1, "kv_seen")
signal(VSIG, 26, 3)
P(f"s_mov_b32 {T1}, {SK1}")
GD = OPT["gd"]
GQ = [CHR + 4 * n for n in range(14)] + [184, 188] if GD == 16 else [PQR + 4 * n for n in range(8)]
def gload(n):
    P(f"buffer_load_dwordx4 {v(GQ[n % GD], 4)}, v27, {rWS}, {T1} offen sc1")
    if n < 15:
        P(f"s_add_u32 {T1}, {T1}, {KVP_STR}")
        if n % 2 == 1:
            P(f"s_cmp_eq_u32 {T1}, {SKE}\ns_cselect_b32 {T1}, {SK0}, {T1}")
for n in range(GD):
    gload(n)
for n in range(4):
    P(f"v_and_b32 {v(28 + n)}, 0xffffff00, {v(28 + n)}")
for r in (4, 8):
    for n in range(4):
        P(f"v_add_f32_dpp {v(28 + n)}, {v(28 + n)}, {v(28 + n)} row_ror:{r} row_mask:0xf bank_mask:0xf")
for op in ("v_permlane16_swap_b32", "v_permlane32_swap_b32"):
    for n in range(4):
        P(f"v_mov_b32 {v(32 + n)}, {v(28 + n)}")
    for n in range(4):
        P(f"{op} {v(28 + n)}, {v(32 + n)}")
    for n in range(4):
        P(f"v_add_f32 {v(28 + n)}, {v(28 + n)}, {v(32 + n)}")
P("v_cvt_pk_bf16_f32 v28, v28, v29\nv_cvt_pk_bf16_f32 v29, v30, v31")
P("ds_write_b64 v40, v[28:29] offset:512")
for n in range(16):
    P(f"s_waitcnt vmcnt({min(GD - 1, 15 - n)})")
    for h in range(4):
        r = v(GQ[n % GD] + h)
        if n == 0:
            P(f"v_xor_b32 {v(36 + h)}, {NB[h]}, {r}\nv_and_b32 {v(32 + h)}, 0xffffff00, {r}")
        else:
            P(f"v_bitop3_b32 {v(36 + h)}, {v(36 + h)}, {r}, {NB[h]} bitop3:0xf6\nv_and_b32 {v(44 + h)}, 0xffffff00, {r}")
    if n + GD < 16:
        gload(n + GD)
    if n:
        for h in range(4):
            P(f"v_add_f32 {v(32 + h)}, {v(32 + h)}, {v(44 + h)}")
P("v_or3_b32 v36, v36, v37, v38\nv_or_b32 v36, v36, v39\nv_and_b32 v36, 0xff, v36\nv_cmp_ne_u32 vcc, 0, v36")
P(f"s_sub_u32 {T2}, {T2}, 1")
P("s_cbranch_scc1 L_kvok")
P("s_cbranch_vccnz L_kvall")
P.label("L_kvok")
stamp(1, "gath")
if DIAG >= 3 and "retry" in str(OPT.get("st1")):
    P(f"s_waitcnt lgkmcnt(0)\ns_sub_u32 s98, 32, {T2}\ns_mul_i32 s98, s98, 100\ns_add_u32 s98, s98, s100")
vm.q = []
page_addr.last = None
P("v_cvt_pk_bf16_f32 v32, v32, v33\nv_cvt_pk_bf16_f32 v33, v34, v35")
P("ds_write_b64 v41, v[32:33]")
lg.q = []
P("ds_read_b128 v[44:47], v42")
stream([p for p in LATE[:OPT["lA"]] if p not in PREA])
P(f"v_add_u32 v20, 0x{L_PQ:x}, {v(VL16)}")
P(f"s_mov_b32 s4, {SOB}")
stamp(1, "staged")
await_(VPK, 22, 10)
stamp(1, "g0")
for tb in range(4):
    P(f"ds_read_b128 {v(PQR + 4 * tb, 4)}, v20 offset:{tb * 4096}")
P("v_mov_b32 v28, v44\nv_mov_b32 v29, v45\nv_mov_b32 v30, v46\nv_mov_b32 v31, v47")
def o_mfma(tb):
    P(f"s_waitcnt lgkmcnt({3 - tb})")
    P(f"v_mfma_f32_32x32x16_bf16 {v((D0, D1)[tb & 1], 16)}, v[28:31], {v(PQR + 4 * tb, 4)}, 0")
o_mfma(0)
o_mfma(1)
for tb in range(4):
    d = (D0, D1)[tb & 1]
    P(f"v_add_f32 {v(d + 8)}, 0x{f2u(1e-6):x}, {v(d + 8)}")
    P(f"v_rcp_f32 {v(d + 8)}, {v(d + 8)}")
    for r in range(8):
        P(f"v_mul_f32 {v(d + r)}, {v(d + r)}, {v(d + 8)}")
    for p in range(4):
        P(f"v_cvt_pk_bf16_f32 {v(PQR + 4 * tb + p)}, {v(d + 2 * p)}, {v(d + 2 * p + 1)}")
    if tb < 2:
        o_mfma(tb + 2)
    row_store(f"buffer_store_dwordx4 {v(PQR + 4 * tb, 4)}, v27, {rWS}, s4 offen", OPT["nt2"])
    vm.add("o")
    if tb < 3:
        P(f"s_add_u32 s4, s4, {TB_STRIDE}")
stamp(1, "o_st")
P(f"s_setprio {OPT['prio']}")
for p in range(18, 38):
    page_write(p)
signal(VSIG, 26, 4, True)
vm.wait("o")
P(f"s_lshl_b32 {T0}, {I_}, 5\ns_lshl_b32 {T1}, {C_}, 2\ns_add_u32 {T0}, {T0}, {T1}\ns_add_u32 {T0}, {T0}, {W}")
P(f"s_lshl_b32 {T0}, {T0}, 2\ns_add_u32 {T0}, {T0}, 0x{WS_FLAGS + FL_O * 128:x}")
flag_store(T0, aux=HX)
vm.add(None)
stamp(1, "oflag")
stream([p for p in LATE[OPT["lA"]:OPT["l1"]] if p not in PREA])
vm.wait(("pg", 42))
restA = [p for p in LATE[OPT["l1"]:] if p not in PREA]
P.label("L_l5")
lg.q = []
await_(VPK, 28, 11)
stamp(1, "gx")
nfree = 2 * ((OPT["gx"] - 7) // 4)
first = [p for p in list(range(38, 43)) + list(range(44, 60)) if p - 38 < nfree]
P(f"s_setprio {OPT['wprio']}")
for p in range(38, 43):
    page_write(p, OPT["pace"])
signal(VSIG, 26, 5, True)
for who, rest in (("A", restA), ("B2", restB[2]), ("B1", restB[1])):
    if who == "A":
        P(f"s_cmp_eq_u32 {TYPE}, 0\ns_cbranch_scc0 L_tB")
    elif who == "B2":
        P.label("L_tB")
        P(f"s_cmp_lt_u32 {C_}, 3\ns_cbranch_scc0 L_tB1")
    else:
        P.label("L_tB1")
    page_addr.last = None
    vm.q = [("pg", p) for p in LATE[5:] if p not in rest and not (who == "A" and p in PREA)]
    stream(rest)
    for p in first[5:]:
        vm.wait(("pg", p))
        page_write(p, OPT["pace"])
    vm.drain()
    if who != "B1":
        P("s_branch L_t2")
P.label("L_t2")
lg.q = []
P("s_waitcnt lgkmcnt(0)")
await_(VPK, 28, 12)
for p in range(44, 60):
    if p not in first:
        vm.wait(("pg", p))
        page_write(p, OPT["pace"])
signal(VSIG, 26, 6, True)
P(f"s_setprio {OPT['prio']}")
LOG2E = 1.4426950408889634
XRD, GG, XF, BF, YR = 22, 32, 48, 64, 72
P("v_lshrrev_b32 v26, 3, v0\nv_and_b32 v27, 7, v0\nv_lshlrev_b32 v27, 1, v27\nv_xor_b32 v27, v27, v26\nv_lshlrev_b32 v27, 4, v27\nv_lshl_or_b32 v26, v26, 8, v27")
P(f"s_lshl_b32 {T0}, {W}, 12\ns_add_u32 {T0}, {T0}, 0x{L_XS0:x}")
P(f"v_add_u32 {v(XRD)}, {T0}, v26\nv_xor_b32 {v(XRD + 1)}, 16, {v(XRD)}")
P(f"v_add_u32 {v(XRD + 2)}, 0x10000, {v(XRD)}\nv_add_u32 {v(XRD + 3)}, 0x10000, {v(XRD + 1)}")
P(f"s_add_u32 {T2}, {SO}, 8192")
P("s_waitcnt lgkmcnt(0)")


if OPT["wb"] in (2, 4):
    wback(2)
def unpack(dst, src, n):
    for r in range(n):
        P(f"v_lshlrev_b32 {v(dst + 2 * r)}, 16, {v(src + r)}\nv_and_b32 {v(dst + 2 * r + 1)}, 0xffff0000, {v(src + r)}")


def xread(dst, bases):
    for h in range(2):
        for kh in range(2):
            for j in range(2):
                P(f"ds_read_b128 {v(dst + 16 * kh + 8 * h + 4 * j, 4)}, {v(XRD + j + 2 * ((bases[kh] - L_XS0) >> 16))} offset:{((bases[kh] - L_XS0) & 0xffff) + 2048 * h}")


unpack(XF, XRES, 8)
unpack(BF, BRES, 4)
stamp(1, "rdy5")
P(f"s_setprio {OPT['fprio']}")
P("s_barrier ; dY")
if OPT["wb"] == 3:
    wback(3)
xread(YR, (L_XY, L_XY + 16 * K))
P("s_waitcnt lgkmcnt(0)")
for fmt in ("v_add_f32 {Y}, {Y}, {Z}", "v_add_f32 {Y}, {Y}, {B}", f"v_mul_f32 {{G}}, 0x{f2u(-LOG2E):x}, {{Y}}", "v_exp_f32 {G}, {G}",
            "v_add_f32 {G}, 1.0, {G}", "v_rcp_f32 {G}, {G}", "v_mul_f32 {G}, {G}, {Y}"):
    for r in range(16):
        P(fmt.format(Y=v(YR + r), Z=v(YR + 16 + r), B=v(BF + r % 8), G=v(GG + r)))
stamp(1, "gate")
P("s_barrier ; dS")
stamp(1, "dS")
xread(YR, (L_XS0, L_XS1))
for h in range(2):
    P(f"s_waitcnt lgkmcnt({4 - 4 * h})")
    for p in range(4 * h, 4 * h + 4):
        P(f"v_pk_add_f32 {v(YR + 2 * p, 2)}, {v(YR + 2 * p, 2)}, {v(YR + 16 + 2 * p, 2)}")
    for p in range(4 * h, 4 * h + 4):
        P(f"v_pk_fma_f32 {v(YR + 2 * p, 2)}, {v(YR + 2 * p, 2)}, {v(GG + 2 * p, 2)}, {v(XF + 2 * p, 2)}")
    for p in range(4 * h, 4 * h + 4):
        P(f"v_cvt_pk_bf16_f32 {v(BF + p)}, {v(YR + 2 * p)}, {v(YR + 2 * p + 1)}")
    P(f"buffer_store_dwordx4 {v(BF + 4 * h, 4)}, {v(VO)}, {rP2}, {(SO, T2)[h]} offen {OPT['outaux']}")
stamp(1, "outst")
dump(1)
P.label("L_end")
P("s_endpgm")
flush_cold()

P.label("L_compute")
DIAG = OPT["diag"]
assert OPT["gx"] <= 36
XR, ACC, WR = 128, 64, 32
VH, GR, XE, K1, K2, SD, RS, RL = 1, 2, 4, 6, 8, 10, 16, 18
XA, WA = 12, 20
HB0, SH, EPS2, SG, SFL1, SFL2, SCS2 = "s72", "s73", "s[74:75]", "s76", "s77", "s78", "s79"
lg = Q("lgkmcnt", 15)

diag_init()
stamp(0, "start")
P(f"s_setprio {OPT['cprio']}")
P(f"s_lshl_b32 {T0}, {I_}, 4\ns_add_u32 {T0}, {T0}, {J_}\ns_lshl_b32 {T0}, {T0}, 2\ns_add_u32 {T0}, {T0}, {W}\ns_lshl_b32 {T0}, {T0}, 1")
P(f"s_lshl_b32 {T1}, {T0}, 10")
P("v_lshrrev_b32 v26, 5, v0\nv_and_b32 v27, 31, v0\nv_lshlrev_b32 v28, 4, v27\nv_lshl_or_b32 v28, v26, 10, v28")
P("s_waitcnt lgkmcnt(0)")
srd(rX, P_X, 2 * K * K)
P(f"s_load_dword {NONCE}, s[{P_WS}:{P_WS+1}], 0")
P(f"buffer_load_dwordx4 v[32:35], v28, {rX}, {T1} offen")
P(f"buffer_load_dwordx4 v[36:39], v28, {rX}, {T1} offen offset:512")
srd(rWS, P_WS, WS_SIZE)
tile2()
P(f"v_lshlrev_b32 {v(VH)}, 4, v0")
waddr(WA, 29, 30, 3)
P(f"v_xor_b32 {v(WA + 1)}, 64, {v(WA)}")
for k, off in ((2, 64 * K), (4, 88 * K)):
    P(f"v_add_u32 {v(WA + k)}, 0x{off:x}, {v(WA)}\nv_add_u32 {v(WA + k + 1)}, 0x{off:x}, {v(WA + 1)}")
P("v_bfe_u32 v29, v0, 1, 3\nv_xor_b32 v29, v29, v26\nv_lshlrev_b32 v29, 4, v29\nv_lshl_or_b32 v29, v27, 7, v29")
P(f"s_lshl_b32 {T2}, {W}, 12")
P(f"v_add_u32 {v(XA)}, {T2}, v29")
for t in range(1, 4):
    P(f"v_xor_b32 {v(XA + t)}, {32 * t}, {v(XA)}")
for t in range(4):
    P(f"v_add_u32 {v(XA + 4 + t)}, 0x10000, {v(XA + t)}")
P(f"s_lshl_b32 {SG}, {I_}, 2\ns_add_u32 {SG}, {SG}, {W}")
if OPT["touch"]:
    srd(rW2, P_W2, 1376 * 1024)
    srd(rWO, P_WO, 512 * 1024)
    P(f"s_mul_i32 {T2}, s2, 43\ns_mul_i32 {T3}, {W}, 11\ns_add_u32 {T2}, {T2}, {T3}")
    P(f"v_add_u32 v6, {T2}, v0\nv_lshlrev_b32 v6, 7, v6\nv_mov_b32 v8, 0x7ff00000\nv_cmp_gt_u32 vcc, 11, v0")
    P(f"s_lshl_b32 {T2}, s2, 2\ns_add_u32 {T2}, {T2}, {W}\ns_lshl_b32 {T2}, {T2}, 2")
    P(f"v_cndmask_b32 v6, v8, v6, vcc\nv_add_u32 v7, {T2}, v0\nv_lshlrev_b32 v7, 7, v7\nv_cmp_gt_u32 vcc, 4, v0")
    P("v_cndmask_b32 v7, v8, v7, vcc")
    if OPT["touch"] == 9:
        P(f"buffer_load_dword v8, v6, {rW2}, 0 offen\nbuffer_load_dword v9, v7, {rWO}, 0 offen")
P(f"s_lshl_b32 {SG}, {SG}, 8\ns_add_u32 {SG}, {SG}, 0x{WS_STATS:x}")
P(f"s_lshl_b32 {SCS2}, {J_}, 1\ns_lshr_b32 {T2}, {I_}, 3\ns_add_u32 {SCS2}, {SCS2}, {T2}\ns_lshl_b32 {SCS2}, {SCS2}, 2")
P(f"s_add_u32 {SCS2}, {SCS2}, {W}\ns_lshl_b32 {SCS2}, {SCS2}, 3\ns_and_b32 {T2}, {I_}, 7\ns_add_u32 {SCS2}, {SCS2}, {T2}")
P(f"s_lshl_b32 {SCS2}, {SCS2}, 9\ns_add_u32 {SCS2}, {SCS2}, 0x{WS_CS:x}")
if OPT["pg"]:
    srd(rW2, P_W2, 1376 * 1024)
    srd(rWO, P_WO, 512 * 1024)
    srd(rA, P_OUT, 2 * K * K)
    P(f"v_lshlrev_b32 v46, 16, v0\ns_lshl_b32 {T3}, {W}, 22\ns_cmp_eq_u32 {W}, 3\ns_cbranch_scc1 L_pg3")
    P(f"buffer_load_dword v47, v46, {rWS}, {T3} offen sc1\ns_branch L_pgx\nL_pg3:")
    P(f"buffer_load_dword v47, v46, {rW2}, 0 offen\nbuffer_load_dword v47, v46, {rWO}, 0 offen\nbuffer_load_dword v47, v46, {rA}, 0 offen\nL_pgx:")
SFHB, SFO, KH, SFHA, PRIMED, SK12, SXW, SBASE = "s51", "s52", "s53", "s54", "s55", "s72", "s73", "s77"
P(f"s_lshr_b32 {KH}, {W}, 1\ns_lshl_b32 {SK12}, {KH}, 12\ns_mov_b32 {PRIMED}, 0")
P(f"s_lshl_b32 {T3}, {TB2}, 1\ns_and_b32 {T2}, {W}, 1\ns_add_u32 {T3}, {T3}, {T2}")
P(f"s_mul_i32 {SBASE}, {T3}, {TB_STRIDE}\ns_add_u32 {SBASE}, {SBASE}, 0x{WS_HA:x}")
if OPT["ahot"]:
    P(f"s_mov_b32 {SBASE}, 0x{WS_DIAG + 0x40000:x}")
P(f"s_lshl_b32 {SFHB}, {T3}, 7\ns_add_u32 {SFHA}, {SFHB}, 0x{WS_FLAGS + FL_HA * 128:x}\ns_add_u32 s44, {SFHB}, 0x{WS_FLAGS + FL_H1 * 128:x}\ns_add_u32 {SFHB}, {SFHB}, 0x{WS_FLAGS + FL_HB * 128:x}")
P(f"s_lshr_b32 {SFO}, {TB2}, 1\ns_lshl_b32 {SFO}, {SFO}, 7\ns_add_u32 {SFO}, {SFO}, 0x{WS_FLAGS + FL_O * 128:x}")
P(f"s_lshl_b32 {SXW}, {T2}, 13\ns_lshl_b32 {T3}, {KH}, 14\ns_add_u32 {SXW}, {SXW}, {T3}\ns_add_u32 {SXW}, {SXW}, 0x{L_XY:x}")
SXS = "s15"
P(f"s_cmp_eq_u32 {KH}, 0")
sel2(SXS, (L_XS0 - L_XY) & 0xffffffff, L_XS1 - L_XY - 16 * K)
if OPT["tlb"] == 2:
    P(f"buffer_load_dword v47, v0, {rWS}, {SBASE} offen sc1")
P(f"s_mov_b32 s14, {RHOA}")
for g in list(range(8)) + list(range(11, 15)):
    r = f"s{36 + g}"
    P(f"s_add_u32 {r}, {RHO2 if g < 8 else RHOS}, {g % 11}\ns_and_b32 {r}, {r}, {7 if g < 8 else 3}\ns_lshl_b32 {r}, {r}, 13\ns_add_u32 {r}, {r}, {SBASE}")
    if g >= 11:
        P(f"s_add_u32 {r}, {r}, {86 * K}")
P(f"s_add_u32 s14, s14, {KH}")
for n in range(16, 22):
    r = f"s{8 + n - 16}"
    P(f"s_add_u32 {r}, s14, {2 * (n - 16)}\ns_cmp_ge_u32 {r}, 11\ns_cselect_b32 {T3}, 11, 0\ns_sub_u32 {r}, {r}, {T3}")
    P(f"s_sub_u32 {r}, {r}, {KH}\ns_add_u32 {r}, {r}, {32 - 2 * (n % 2)}\ns_lshl_b32 {r}, {r}, 11\ns_add_u32 {r}, {r}, {SBASE}")
P(f"s_mov_b32 s74, 0x{f2u(1e-6):x}\ns_mov_b32 s75, 0x{f2u(1e-6):x}")
P(f"s_mov_b32 {T2}, 0x3f803f80")
P("v_mov_b32 v40, 0\nv_mov_b32 v41, 0\nv_mov_b32 v42, 0\nv_mov_b32 v43, 0")
stamp(0, "pre")
P("s_waitcnt vmcnt(2)" if OPT["touch"] == 9 else "s_waitcnt vmcnt(0)")
stamp(0, "xin")
for n in range(8):
    P(f"v_dot2_f32_bf16 {v(40 + (n & 1))}, {v(32 + n)}, {T2}, {v(40 + (n & 1))}")
    P(f"v_dot2_f32_bf16 {v(42 + (n & 1))}, {v(32 + n)}, {v(32 + n)}, {v(42 + (n & 1))}")
P("s_nop 2")
P("v_add_f32 v40, v40, v41\nv_add_f32 v42, v42, v43")
for r in (8, 4, 2, 1):
    P(f"v_add_f32_dpp v40, v40, v40 row_ror:{r} row_mask:0xf bank_mask:0xf")
    P(f"v_add_f32_dpp v42, v42, v42 row_ror:{r} row_mask:0xf bank_mask:0xf")
P("v_mov_b32 v41, v40\nv_mov_b32 v43, v42")
P("v_permlane16_swap_b32 v40, v41\nv_permlane16_swap_b32 v42, v43")
P("v_add_f32 v40, v40, v41\nv_add_f32 v42, v42, v43")
P(f"v_mul_f32 v40, 0x{f2u(1 / 512):x}, v40\nv_mul_f32 v42, 0x{f2u(1 / 512):x}, v42")
P("v_fma_f32 v42, -v40, v40, v42\nv_max_f32 v42, 0, v42")
P(f"v_cvt_pk_bf16_f32 v42, v42, v42\nv_and_b32 v42, 0xffff0000, v42\nv_add_f32 v42, 0x{f2u(1e-5):x}, v42")
P("v_cvt_pk_bf16_f32 v42, v42, v42\nv_and_b32 v42, 0xffff0000, v42\nv_sqrt_f32 v42, v42")
P("v_cvt_pk_bf16_f32 v44, v40, v42")
P("v_lshlrev_b32 v28, 3, v26")
P(f"s_lshl_b32 {T0}, {T0}, 3\ns_add_u32 {T0}, {T0}, 0x{WS_STATS:x}")
P("s_waitcnt lgkmcnt(0)")
P(f"s_add_u32 {NONCE}, {NONCE}, 1")
XTAG = "s78"
P(f"s_getreg_b32 {XTAG}, hwreg(HW_REG_XCC_ID, 0, 4)\ns_lshl_b32 {XTAG}, {XTAG}, 28\ns_xor_b32 {XTAG}, {XTAG}, {NONCE}")
P(f"v_mov_b32 v45, {XTAG}\nv_mov_b32 v5, {NONCE}")
P(f"s_mov_b32 s56, {T0}\nv_mov_b32 v2, v44\nv_mov_b32 v3, v45\nv_mov_b32 v25, v28")
P("v_lshlrev_b32 v26, 3, v27\nv_lshlrev_b32 v27, 3, v0")
P(f"s_lshl_b32 {T0}, {W}, 8\ns_add_u32 {T0}, {T0}, 0x{L_CSX:x}")
P(f"v_lshl_add_u32 v28, v0, 2, {T0}")
P(f"v_add_u32 v29, 0x{L_EX1:x}, v27")
GLOAD = f"buffer_load_dwordx2 {v(GR, 2)}, v26, {rWS}, {SG} offen sc1"
CSIG, CPK, CPC = 30, 31, 3
P(f"s_lshl_b32 {T0}, {W}, 2\ns_add_u32 {T0}, {T0}, 0x{L_PRG:x}\nv_mov_b32 {v(CSIG)}, {T0}")
P(f"v_and_b32 {v(CPK)}, 3, v0\nv_lshlrev_b32 {v(CPK)}, 2, {v(CPK)}\nv_add_u32 {v(CPK)}, 0x{L_RDY:x}, {v(CPK)}")
stamp(0, "stats")


def p1_x(st, t):
    if OPT["nocomp"]:
        return
    sl = st % 3
    P(f"ds_read_b128 {v(XR + 16 * st + 4 * t, 4)}, {v(XA + t + (4 if sl == 2 else 0))} offset:{(sl % 2) * 32 * K}")
    lg.add(("x", st, t))


def p1_w(st, t, b):
    if OPT["nocomp"]:
        return
    sl = st % 3
    a = WA + (b & 1) + (2 if sl == 2 else 0)
    off = (sl % 2) * 32 * K + 16 * K + (b >> 1) * 8 * K + t * 2048
    f = WR + ((t & 1) * 4 + b) * 4
    tr(f, a, off, None)
    tr(f + 2, a, off + 512, ("w", st, t, b))


def p1_m(st, t, b):
    if OPT["nocomp"]:
        return
    lg.wait(("x", st, t))
    lg.wait(("w", st, t, b))
    f = WR + ((t & 1) * 4 + b) * 4
    c = "0" if (st == 0 and t == 0) else v(ACC + 16 * b, 16)
    P(f"v_mfma_f32_32x32x16_bf16 {v(ACC + 16 * b, 16)}, {v(f, 4)}, {v(XR + 16 * st + 4 * t, 4)}, {c}")


P("s_barrier ; b0")
stamp(0, "b0")
if OPT["p2only"]:
    P("s_branch L_c2")
p1_x(0, 0)
for b in range(4):
    p1_w(0, 0, b)
P("s_mov_b32 exec_lo, 1\ns_mov_b32 exec_hi, 1")
P(f"buffer_store_dwordx2 v[2:3], v25, {rWS}, s56 offen sc1")
P("s_mov_b64 exec, -1")
P(f"v_add_u32 {v(WA + 5)}, 0x{88 * K:x}, {v(WA + 1)}")
LOG2E = 1.4426950408889634
C1 = -2 * LOG2E * math.sqrt(2 / math.pi)
C2 = C1 * 0.044715
GCHK = f"v_xor_b32 v27, {XTAG}, {v(GR + 1)}\nv_lshlrev_b32 v28, 4, v27\nv_cmp_ne_u32 vcc, 0, v28"
EXR = (22, 26)
side1 = [f"v_cmp_ne_u32 vcc, 0, v27", f"s_mov_b32 {T0}, 0x01000100", f"v_perm_b32 {v(XE)}, {v(GR)}, {v(GR)}, {T0}",
         "s_or_b32 s57, vcc_lo, vcc_hi", f"v_xor_b32 {v(XE)}, 0x80008000, {v(XE)}", f"v_lshrrev_b32 {v(XE + 1)}, 16, {v(GR)}",
         f"v_and_b32 {v(SD)}, 0xffff0000, {v(GR)}", f"v_rcp_f32 {v(RS)}, {v(SD)}", f"v_mov_b32 {v(SD + 1)}, {v(SD)}",
         f"v_mul_f32 {v(K1)}, 0x{f2u(C1):x}, {v(RS)}", f"v_mul_f32 {v(K2)}, {v(RS)}, {v(RS)}", f"v_mul_f32 {v(RL)}, 0x{f2u(LOG2E):x}, {v(RS)}",
         f"v_mul_f32 {v(K2)}, {v(K2)}, {v(RS)}", f"v_mov_b32 {v(RS + 1)}, {v(RS)}", f"v_mul_f32 {v(K2)}, 0x{f2u(C2):x}, {v(K2)}",
         f"v_mov_b32 {v(K1 + 1)}, {v(K1)}", f"v_mov_b32 {v(RL + 1)}, {v(RL)}", f"v_mov_b32 {v(K2 + 1)}, {v(K2)}"]
for st in range(8):
    for t in range(3):
        for b in range(4):
            p1_m(st, t, b)
            if st == 7 and t == 1 and b == 0:
                P("s_waitcnt vmcnt(0)")
                P(GCHK)
                retry("L_gr", GLOAD, GCHK)
            elif st == 7 and t >= 1:
                for _ in range(3):
                    if side1:
                        P(side1.pop(0))
            if b == 0:
                p1_x(st, t + 1)
            p1_w(st, t + 1, b)
    assert st < 7 or not side1
    p1_m(st, 3, 0)
    if st == 2 + OPT["chl"]:
        P("ds_read_b32 v4, v28")
        lg.add(None)
    p1_m(st, 3, 1)
    if st == 5 + OPT["gl"]:
        P(GLOAD)
    lg.drain()
    if st == 7:
        stamp(0, "c8")
    P(f"s_barrier ; b{st + 1}")
    if st == 6:
        stamp(0, "b7")
    if st < 7:
        p1_x(st + 1, 0)
        p1_w(st + 1, 0, 0)
        p1_w(st + 1, 0, 1)
        p1_m(st, 3, 2)
        if st == 2 + OPT["chl"] and not OPT["nst"] & 2:
            P(f"buffer_store_dwordx2 v[4:5], v27, {rWS}, {SCS2} offen {OPT['saux'] or ''}")
        if st == OPT["touch"] - 1:
            P(f"buffer_load_dword v8, v6, {rW2}, 0 offen\nbuffer_load_dword v9, v7, {rWO}, 0 offen")
        p1_w(st + 1, 0, 2)
        p1_w(st + 1, 0, 3)
        p1_m(st, 3, 3)
    else:
        P(f"v_mov_b32 v27, s57\ns_mov_b64 exec, 1\nds_write_b32 {v(CSIG)}, v27 offset:{L_FAST - L_PRG}\ns_mov_b64 exec, -1")
        lg.add(None)
        for b in range(4):
            P(f"ds_read_b64 {v(WR + 2 * b, 2)}, v29 offset:{512 * b}")
            lg.add(("ex", b))
        p1_m(st, 3, 2)
        p1_m(st, 3, 3)
        for b in range(4):
            lg.wait(("ex", b))
            P(f"v_mfma_f32_32x32x8bf16_1k {v(ACC + 16 * b, 16)}, {v(WR + 2 * b, 2)}, {v(XE, 2)}, {v(ACC + 16 * b, 16)}")
stamp(0, "b8")
if OPT["p1only"]:
    dump(0)
    P("s_endpgm")
    DIAG = 0
stamp(0, "ex1")

TT, UU = 32, 48


def pairs(fmt, a):
    for p in range(8):
        P(fmt.format(T=v(TT + 2 * p, 2), A=v(a + 2 * p, 2)))


def singles(fmt):
    for r in range(16):
        P(fmt.format(T=v(TT + r)))


def cvt(dst, src=TT):
    for p in range(8):
        P(f"v_cvt_pk_bf16_f32 {v(dst + p)}, {v(src + 2 * p)}, {v(src + 2 * p + 1)}")


def epi_gelu(b, base, k, rdy=None, prev=None, last=True):
    a = ACC + 16 * b
    if rdy:
        peek(CPK, 28)
    pairs("v_pk_mul_f32 {T}, {A}, {A}", a)
    pairs("v_pk_fma_f32 {T}, {T}, %s, %s" % (v(K2, 2), v(K1, 2)), a)
    pairs("v_pk_mul_f32 {T}, {T}, {A}", a)
    if prev:
        signal(CSIG, 27, prev, True)
    singles("v_exp_f32 {T}, {T}")
    pairs("v_pk_fma_f32 {T}, {T}, %s, %s" % (v(SD, 2), v(SD, 2)), a)
    singles("v_rcp_f32 {T}, {T}")
    pairs("v_pk_mul_f32 {T}, {T}, {A}", a)
    cvt(a)
    if rdy:
        await_(CPK, 28, rdy, peeked=True)
    for h in range(2 if not OPT["nods"] else 0):
        P(f"ds_write_b128 v26, {v(a + 4 * h, 4)} offset:{base - L_HS + (2 * b + h) * 4096}")
        lg.add(None)
    if last:
        signal(CSIG, 27, k, True)


def epi_phi(b, dst):
    a = ACC + 16 * b
    pairs("v_pk_mul_f32 {T}, {A}, %s" % v(RL, 2), a)
    singles("v_exp_f32 {T}, {T}")
    pairs("v_pk_fma_f32 {A}, {A}, %s, 1.0 op_sel_hi:[1,1,0]" % v(RS, 2), a)
    for r in range(16):
        P(f"v_med3_f32 {v(TT + r)}, {v(TT + r)}, {v(a + r)}, 1.0")
    pairs("v_pk_add_f32 {T}, {T}, %s" % EPS2, a)
    cvt(dst)


def epi_lin(b, dst):
    a = ACC + 16 * b
    pairs("v_pk_mul_f32 {T}, {A}, %s" % v(RS, 2), a)
    cvt(dst)


AY, AS, AR = 64, 192, 128
RG = OPT["ring"]
NST = 30
WB, VA, FD, VF, XW, CPC2, TA, TB_, TC, XW2 = 96, 102, 104, 106, 108, 112, 113, 114, 115, 116
FHB = f"buffer_load_dword {v(FD)}, {v(VF)}, {rWS}, {SFHB} offen sc1"
FHA = f"buffer_load_dword {v(FD)}, {v(VF)}, {rWS}, {SFHA} offen sc1"
FH1 = f"buffer_load_dword {v(FD)}, {v(VF)}, {rWS}, s44 offen sc1"
FO = f"buffer_load_dword {v(FD + 1)}, {v(VF + 1)}, {rWS}, {SFO} offen sc1"
HBC = f"v_cmp_ne_u32 vcc, {NONCE}, {v(FD)}"
vm = Q("vmcnt", 63)


def aload(n, ks):
    if n >= NST or (OPT["noa"] and n >= RG):
        return
    P(f"buffer_load_dwordx4 {v(AR + 8 * (n % RG) + 4 * ks, 4)}, {v(VA + (n % 2 if n >= 16 else n >> 3))}, {rWS}, s{36 + (n & 7) if n < 16 else (8 + n - 16 if n < 22 else 36 + (n >> 1))} offen offset:{1024 * ks} {OPT['aaux'] or ''}")
    vm.add(("a", n, ks))


PRM = OPT["prime"]
def prime():
    for n in range(PRM):
        aload(n, 0)
        aload(n, 1)


nchk = [0]
def checkpoint():
    if not OPT["early"]:
        return
    nchk[0] += 1
    l = f"L_ck{nchk[0]}"
    P(f"s_getreg_b32 {T3}, hwreg(HW_REG_IB_STS, 0, 4)\ns_or_b32 {T3}, {T3}, {PRIMED}\ns_cbranch_scc1 {l}_x")
    P(f"s_waitcnt vmcnt(0)\n{HBC}\ns_cbranch_vccnz {l}_r")
    prime()
    P(f"s_mov_b32 {PRIMED}, 1")
    P.label(l + "_x")
    cold.append(f"{l}_r:\n{FHB}\ns_branch {l}_x")


def setup2():
    global P
    keep, P = P, Prog()
    P(f"v_and_b32 {v(VF + 1)}, 31, v0\nv_lshlrev_b32 {v(VF + 1)}, 2, {v(VF + 1)}\nv_and_b32 {v(VF)}, 28, {v(VF + 1)}")
    waddr(WB, TA, TB_, 2)
    P(f"v_add_u32 {v(WB)}, {SK12}, {v(WB)}\nv_xor_b32 {v(WB + 1)}, 64, {v(WB)}")
    for k in (1, 2):
        P(f"v_add_u32 {v(WB + 2 * k)}, 0x{64 * K * k:x}, {v(WB)}\nv_add_u32 {v(WB + 2 * k + 1)}, 0x{64 * K * k:x}, {v(WB + 1)}")
    P(f"v_lshrrev_b32 {v(TA)}, 1, {SK12}\nv_add_u32 {v(VA)}, {v(TA)}, {v(VH)}\nv_add_u32 {v(VA + 1)}, 0x1000, {v(VA)}")
    P(f"v_lshrrev_b32 {v(TA)}, 5, v0\nv_and_b32 {v(TB_)}, 7, v0\nv_xor_b32 {v(TA)}, {v(TA)}, {v(TB_)}\nv_lshlrev_b32 {v(TA)}, 4, {v(TA)}")
    P(f"v_and_b32 {v(TB_)}, 31, v0\nv_lshl_or_b32 {v(TA)}, {v(TB_)}, 8, {v(TA)}\nv_add_u32 {v(XW)}, {SXW}, {v(TA)}")
    for q in range(1, 4):
        P(f"v_xor_b32 {v(XW + q)}, {32 * q}, {v(XW)}")
    P(f"v_add_u32 {v(CPC2)}, 16, {v(CPK)}")
    for q in range(4):
        P(f"v_add_u32 {v(XW2 + q)}, {SXS}, {v(XW + q)}")
    lines, P = P.lines, keep
    return lines


def pass2(nb):
    side = setup2()
    n = 32 * nb
    def rd(m):
        if m >= n:
            return
        step, b = divmod(m, nb)
        off = CH(step >> 2) - 88 * K + (step & 3) * 2048
        f = WR + (m % 8) * 4
        tr(f, WA + 4 + b, off, None)
        tr(f + 2, WA + 4 + b, off + 512, ("p2", m))
    for m in range(7):
        rd(m)
    for m in range(n):
        step, b = divmod(m, nb)
        lg.wait(("p2", m))
        c = "0" if step == 0 else v(ACC + 16 * b, 16)
        P(f"v_mfma_f32_32x32x16_bf16 {v(ACC + 16 * b, 16)}, {v(WR + (m % 8) * 4, 4)}, {v(XR + 4 * step, 4)}, {c}")
        rd(m + 7)
        for _ in range(2 if nb == 1 else 1):
            if side and m >= 2 and not OPT["noside"]:
                P(side.pop(0))
        if m == max(6, n - OPT["smp"]) and not OPT["nosamp"]:
            P(FHB)
        if m == 5 and OPT["tlb"] == 1:
            P(f"buffer_load_dword {v(TC)}, {v(VF)}, {rWS}, {SBASE} offen sc1")
        if m == n - 6:
            if OPT["fill"] == 4:
                P("s_waitcnt vmcnt(0)" if OPT["nosamp"] else "s_waitcnt vmcnt(1)")
            for bb in range(nb):
                lg.room()
                P(f"ds_read_b64 {v(12 + 2 * bb, 2)}, v29 offset:{L_EX2 - L_EX1 + 512 * bb}")
                lg.add(("ex2", bb))
    while side:
        P(side.pop(0))
    checkpoint()
    lg.drain()
    signal(CSIG, 27, 8)
    for b in range(nb):
        P(f"v_mfma_f32_32x32x8bf16_1k {v(ACC + 16 * b, 16)}, {v(12 + 2 * b, 2)}, {v(XE, 2)}, {v(ACC + 16 * b, 16)}")


P(f"s_cmp_eq_u32 {TYPE}, 0")
P("s_cbranch_scc0 L_cB")
P(f"v_and_b32 v26, 31, v0\nv_lshrrev_b32 v27, 5, v0\ns_lshl_b32 {T0}, {W}, 5")
P(f"v_add_u32 v26, {T0}, v26\nv_mul_u32_u24 v26, {TROW}, v26\nv_lshl_add_u32 v26, v27, 3, v26\nv_add_u32 v26, 0x{TBUF:x}, v26")
for b in range(4):
    u = UU + 8 * (b & 1)
    (epi_phi if b < 2 else epi_lin)(b, u)
    for q in range(4):
        P(f"ds_write_b64 v26, {v(u + 2 * q, 2)} offset:{64 * b + 16 * q}")
    if OPT["fill"] == 4 and b == OPT["fo"]:
        P(f"s_lshl2_add_u32 {T1}, {I_}, {W}\ns_mul_i32 {T1}, {T1}, {TB_STRIDE}\ns_lshl_b32 {T2}, {C_}, 12\ns_add_u32 {T1}, {T1}, {T2}\ns_add_u32 {T1}, {T1}, 0x{WS_HA + 86 * K:x}")
        P(f"v_lshlrev_b32 v16, 7, v0\nv_and_b32 v16, 0xfff, v16\nbuffer_load_dword v18, v16, {rWS}, {T1} offen")
    if "st0" in OPT:
        stamp(0, f"g{b}")
P(f"v_lshrrev_b32 v26, 2, v0\nv_mul_u32_u24 v26, {TROW}, v26\nv_and_b32 v27, 3, v0\nv_lshl_add_u32 v26, v27, 3, v26")
P(f"s_add_u32 {T0}, {T0}, 0x{TBUF:x}")
P(f"v_add_u32 v26, {T0}, v26")
for r in range(4):
    P(f"v_mov_b32 {v(104 + r)}, 0x3f803f80")
P(f"s_lshl_b32 {T0}, {C_}, 4\ns_add_u32 {T0}, {T0}, {I_}\ns_mul_i32 {T0}, {T0}, {KVP_STR}\ns_add_u32 {T0}, {T0}, 0x{WS_KVP:x}")
P(f"s_lshl_b32 {T1}, {W}, 10\ns_add_u32 {T1}, {T1}, {T0}")
P(f"s_lshl_b32 {T2}, {W}, 6\ns_add_u32 {T2}, {T2}, {T0}\ns_add_u32 {T2}, {T2}, 4096")
signal(CSIG, 27, 1, True)
P(f"v_add_u32 {v(CPC)}, 16, {v(CPK)}")
lg.q = []
await_(CPC, 27, 1)
stamp(0, "e1")
def kvm(mm):
    lg.wait(("kv", mm, 1))
    P(f"v_mfma_f32_16x16x32_bf16 v[96:99], {v(ACC + 8 * mm, 4)}, {v(ACC + 8 * mm + 4, 4)}, {'0' if mm == 0 else 'v[96:99]'}")
    P(f"v_mfma_f32_16x16x32_bf16 v[100:103], {v(ACC + 8 * mm, 4)}, v[104:107], {'0' if mm == 0 else 'v[100:103]'}")
for m in range(4):
    for o in range(2):
        f = ACC + 8 * m + 4 * o
        tr(f, 26, m * 32 * TROW + 128 * o, None)
        tr(f + 2, 26, (m * 32 + 16) * TROW + 128 * o, ("kv", m, o))
    if m >= 2:
        kvm(m - 2)
kvm(2)
kvm(3)
P(f"v_mov_b32 v104, {NONCE}")
for h in range(4):
    P(f"s_mov_b32 {T0}, 0x0706050{h}")
    P(f"v_perm_b32 {v(96 + h)}, {v(96 + h)}, v104, {T0}\nv_perm_b32 {v(100 + h)}, {v(100 + h)}, v104, {T0}")
P(f"buffer_store_dwordx4 v[96:99], {v(VH)}, {rWS}, {T1} offen sc1")
P("s_mov_b32 exec_lo, 0x00010001\ns_mov_b32 exec_hi, 0x00010001")
P(f"buffer_store_dwordx4 v[100:103], v0, {rWS}, {T2} offen sc1")
P("s_mov_b64 exec, -1")
signal(CSIG, 27, 2)
stamp(0, "kv")
await_(CPK, 27, 1)
stamp(0, "b10")
P("s_branch L_p2")
P.label("L_cB")
lg.q = []
P(f"s_lshl_b32 {T0}, {W}, 10\ns_add_u32 {T0}, {T0}, 0x{L_HS:x}")
P(f"v_add_u32 v26, {T0}, {v(VH)}")
if OPT["fill"] == 4:
    hblock2(T1)
    P(f"s_lshl2_add_u32 {T0}, {I_}, {W}\ns_mul_i32 {T0}, {T0}, {TB_STRIDE}\ns_add_u32 {T0}, {T0}, 0x{WS_HA:x}")
    P(f"s_lshl_b32 {T1}, {T1}, 11\ns_add_u32 {T1}, {T1}, {T0}\ns_lshl_b32 {T2}, {C_}, 13\ns_add_u32 {T0}, {T0}, {T2}")
    P(f"s_cmp_lt_u32 {C_}, 3")
    sel2(T2, 0xfff, 0x7ff)
    P(f"v_lshlrev_b32 v16, 7, v0\nv_and_b32 v17, {T2}, v16")
for b in range(4):
    epi_gelu(b, L_HS, b + 1, prev=b, last=(b == 3))
    if OPT["fill"] == 4 and b == OPT["f1"]:
        P(f"buffer_load_dword v18, v16, {rWS}, {T0} offen")
    if OPT["fill"] == 4 and b == OPT["f2"]:
        P(f"buffer_load_dword v19, v17, {rWS}, {T1} offen")
    if "st0" in OPT:
        stamp(0, f"g{b}")
stamp(0, "e1")
await_(CPK, 28, 1)
stamp(0, "b10")
P(f"s_cmp_lt_u32 {C_}, 3")
P("s_cbranch_scc1 L_p2")
lg.q = [None] * 3
pass2(1)
stamp(0, "p2")
epi_gelu(0, L_PQ, 10, 2)
stamp(0, "e2")
P("s_branch L_c2")
P.label("L_p2")
lg.q = [None] * 3
pass2(2)
stamp(0, "p2")
P(f"s_cmp_eq_u32 {TYPE}, 0")
P("s_cbranch_scc0 L_cB2")
P(f"s_lshl_b32 {T0}, {W}, 12\ns_add_u32 {T0}, {T0}, 0x{L_PQ:x}")
P(f"v_add_u32 v26, {T0}, {v(VH)}")
lg.q = [None]
peek(CPC2, 28)
for b in range(2):
    epi_phi(b, UU + 8 * b)
    if b == 0:
        await_(CPC2, 28, 2, peeked=True)
    for h in range(2):
        P(f"ds_write_b128 v26, {v(UU + 8 * b + 4 * h, 4)} offset:{(2 * b + h) * 1024}")
    if b == 0:
        checkpoint()
signal(CSIG, 27, 10, True)
stamp(0, "e2")
P("s_branch L_c2")
P.label("L_cB2")
lg.q = [None]
epi_gelu(0, L_PQ, 9, 2, last=False)
checkpoint()
epi_gelu(1, L_PQ, 10, prev=9)
stamp(0, "e2")
P.label("L_c2")
stamp(0, "c2")
stamp(0, "setup")
if OPT["quiet"]:
    dump(0)
    P("s_endpgm")
if OPT["nosamp"]:
    P(FHB)
P(f"s_cmp_lg_u32 {PRIMED}, 0\ns_cbranch_scc1 L_primed")
if not OPT["p2only"]:
    P(f"s_waitcnt vmcnt(0)\n{HBC}")
    retry("L_hb", FHB, HBC)
stamp(0, "hb_seen")
prime()
P.label("L_primed")
vm.q = [("a", n, ks) for n in range(PRM) for ks in range(2)]
gate = {8: OPT["cH1"], 16: OPT["cHA"], 22: OPT["cO"]}
nxt = [PRM, 0]
def aissue(n, k4):
    while nxt[0] < NST:
        nn, ks = nxt
        if nn in gate and (n, k4) < (gate[nn], 1):
            return
        if nn - RG > n or (nn - RG == n and k4 < 2 * ks + 1):
            return
        aload(nn, ks)
        nxt[:] = [nn, 1] if ks == 0 else [nn + 1, 0]
        return


def dec(m):
    if OPT["tl"] and m >= 4 * NST - 8:
        r = m - (4 * NST - 8)
        return NST - 2 + ((r >> 1) & 1), r & 1, r >> 2
    return m >> 2, (m >> 1) & 1, m & 1


def wrd(m):
    if m >= 4 * NST:
        return
    n, ks, ct = dec(m)
    ev = {OPT["gx"]: 4, 76: 5, 88: 6}
    if m + 5 in ev:
        peek(CPK, 20)
    if m == OPT["g2"]:
        signal(CSIG, 21, 12)
    if m == 72:
        signal(CSIG, 21, 13)
    if m == 93:
        peek(CPC2, 19)
    if m in ev:
        if m == OPT["gx"]:
            signal(CSIG, 21, 11)
        await_(CPK, 20, ev[m], peeked=True)
    so = slot_of(2 * n) + ks * 2048
    k = so // (64 * K)
    f = WR + (m % 8) * 4
    if OPT["now"] and m >= 8:
        return
    tr(f, WB + 2 * k + ct, so - 64 * K * k, None)
    tr(f + 2, WB + 2 * k + ct, so - 64 * K * k + 1024, ("w2", m))


def xwrite(acc, base, ct, q):
    lg.room()
    P(f"ds_write_b128 {v(base + q)}, {v(acc + 16 * ct + 4 * q, 4)} offset:{128 * ct}")
    lg.add(("xw", acc))


lg.q = []
stamp(0, "primed")
await_(CPK, 20, 3)
for m in range(7):
    wrd(m)
for n in range(NST):
    acc = AY if n < 22 else AS
    if n == 21:
        P(f"s_cmp_eq_u32 {KH}, 0")
    for k4 in range(4):
        m = 4 * n + k4
        na, ks, ct = dec(m)
        w = vm.need(("a", na, ks)) + " " + (lg.need(("w2", m | 1)) if OPT["w2"] else "") + lg.need(("w2", m))
        if w.strip():
            P("s_waitcnt " + w.strip())
        c = "0" if (n in (0, 22) and ks == 0) else v(acc + 16 * ct, 16)
        if n == 21:
            P(f"s_cbranch_scc0 L_null{k4}")
        P(f"v_mfma_f32_32x32x16_bf16 {v(acc + 16 * ct, 16)}, {v(WR + (m % 8) * 4, 4)}, {v(AR + 8 * (na % RG) + 4 * ks, 4)}, {c}")
        if OPT["tl"] and m >= 4 * NST - 2:
            for q in range(2):
                xwrite(AS, XW2, 0, 2 * (m & 1) + q)
        if n == 21:
            P.label(f"L_null{k4}")
        if k4 == 1:
            for nn, ld, fd, nm in ((8, FH1, FD, "h1"), (16, FHA, FD, "ha"), (22, FO, FD + 1, "o")):
                if n == max(0, gate[nn] - OPT["fl"]) and gate[nn] > 0:
                    P(ld)
                    vm.add("f" + nm)
                if n == gate[nn]:
                    vm.wait("f" + nm)
                    P(f"v_cmp_ne_u32 vcc, {NONCE}, {v(fd)}")
                    retry("L_" + nm, ld, f"v_cmp_ne_u32 vcc, {NONCE}, {v(fd)}")
                    stamp(0, nm + "_seen")
        aissue(n, k4)
        assert nxt[0] > n + 1 or nxt[0] == NST or (nxt[0] == n + 1 and k4 < 3), (n, k4, nxt)
        wrd(m + 7)
        if m == 91:
            await_(CPC2, 19, 13, peeked=True)
        if m >= 91 and (m - 91) % OPT["ys"] == 0 and (m - 91) // OPT["ys"] < 8:
            xwrite(AY, XW, ((m - 91) // OPT["ys"]) >> 2, ((m - 91) // OPT["ys"]) & 3)
        if m == 91 + 7 * OPT["ys"] + OPT["dy"]:
            lg.wait(("xw", AY))
            P("s_barrier ; dY")
    if "st0" in OPT:
        stamp(0, f"n{n}")
stamp(0, "sdone")
for ct in range(1 if OPT["tl"] else 0, 2):
    for q in range(4):
        xwrite(AS, XW2, ct, q)
P("s_setprio 0")
lg.drain()
P("s_barrier ; dS")
P(f"s_or_b32 {T0}, s2, {W}\ns_cmp_eq_u32 {T0}, 0")
P("s_cbranch_scc0 L_cend")
flag_store(T0)
P.label("L_cend")
dump(0)
P("s_endpgm")
flush_cold()
P.label("L_codeend")

body = P.finish()
hdr = f"""; Fused LayerNorm + linear attention + GELU FFN block, one persistent launch (256 workgroups, one per CU).
; Generated by work/gen2.py.  Four waves stream operands into LDS, four waves compute.
; @launch grid=(256,1,1) block=(512,1,1) lds=163840
.amdgcn_target "amdgcn-amd-amdhsa--gfx950"
.text
.globl {KNAME}
.p2align 8
.type {KNAME},@function
{KNAME}:
"""
tail = f"""
.section .rodata,"a"
.p2align 6
.amdhsa_kernel {KNAME}
  .amdhsa_next_free_vgpr 256
  .amdhsa_next_free_sgpr 102
  .amdhsa_accum_offset 256
  .amdhsa_group_segment_fixed_size 0
  .amdhsa_kernarg_size 88
  .amdhsa_user_sgpr_count 2
  .amdhsa_user_sgpr_kernarg_segment_ptr 1
  .amdhsa_system_sgpr_workgroup_id_x 1
  .amdhsa_float_denorm_mode_32 3
.end_amdhsa_kernel
"""
if OPT["diag"]:
    tail += f"; STAMPS0 {' '.join(slots[0])}\n"
sys.stdout.write(hdr + body + tail)
sys.stderr.write(f"pads {P.npad}\n")
```

```python
import sys, os, struct, math
from asmlib import Prog, v, s

KNAME = "recurrent_scan__linear_attn_block__dense_activation_gelu__prompt_kernel"
OPT = dict(diag=0, outaux="sc1", map1=81, spin=16, codepf=1, ldfirst=1, prio=1,
           nA9=3, nA10=7, nB10=8, mf=56, cprio=3, gx=36, n6=2, n7=1, kA=12, lag=8, sp=0, sp0=0, nost=0, slp=2, kvw=0, gprio=3, sA=4, xB=8, fast=1, nt1=2, trow=272, nosamp=0, e1B=4, iB2=2, e1A=20, gd=16, lB2=5, lB1=0, cw=1, tlb=0, fill=0, f1=0, f2=9, fo=0, wsoff=0, wprio=3, l1=9, fence=1, inl=1, w0=4, w1=6, w0c=4, quiet=0, nosig=0, noside=0, nt2=2, wb=0, lB=0, hk1=0, lA0=8, lA=0, kq=2, wbj=0, kA0=12, kA1=8, kA2=0, rotx=1, spx=0, pB=10, iB=0, ring=4, nods=0, lsl=0, yB=12, zB=4, yB1=2, zB1=4, aaux="sc1", ahot=0, g2=52, rot2=1, pace=0, pace1=0, dy=2, ys=1, w2=1, p2only=0, plain=0, stouch=0, nst=0, saux="sc1", csprio=3, early=0, map2=81, smp=28, noa=0, now=0, la=7, touch=0, ltouch=1, gl=0, eb=1, chl=0, preA=0, tl=1, rv=1, s1h=0, late=15, lw=0, r0=0, r1=0, r2=0, rall=0, chx=0, s1late=0, nostat=0, csd=0, gt=2, nar=1, seq=0, kslp=2, fsx=0, pg=0, fprio=1, f6=0, prime=4, cH1=4, cHA=12, cO=18, fl=4, ft=1, exprio=1, stdiag=0, p1only=0, nocomp=0, norot=0, noload=0, nocs=0)
for a in sys.argv[1:]:
    k, val = a.split("=")
    OPT[k] = val if not val.lstrip("-").isdigit() else int(val)
DIAG = OPT["diag"]
assert OPT["gx"] <= 36


def f2u(x):
    return struct.unpack("<I", struct.pack("<f", x))[0]


K = 1024
WS_STATS = 0x1000
FX = 5 if OPT["fsx"] else 0
LN = 128 << FX
WS_FLAGS = 0xA00000 if FX else 0x8000
FL_HB, FL_HA, FL_O, FL_H1 = 0, 64, 128, 192
WS_KVP = 0x10000
KVP_STR = 4352
WS_CS = 0xA0000
WS_HA = 0x140000 + OPT["wsoff"] * 0x100000
TB_STRIDE = 118 * K
WS_DIAG = 0x900000
WS_SIZE = (0xB00000 if FX else 0xA00000) + OPT["wsoff"] * 0x100000
def CH(q):
    return 96 * K + 8 * K * q if q < 7 else 88 * K
TBUF = 52 * K
TROW = OPT["trow"]
L_EX1 = 152 * K
L_CSX = 156 * K
L_RDY = 154 * K
L_PRG = L_RDY + 16
L_TAG = L_RDY + 32
L_FAST = L_RDY + 48
L_EX2 = 155 * K
L_KT = 156 * K
L_PQ = 72 * K
L_HS = 52 * K
L_XY = 112 * K
L_XS0, L_XS1 = 72 * K, 144 * K
def slot_of(p):
    if p < 18:
        return p * 4 * K
    if p < 34:
        return CH((p - 18) >> 1) + (p & 1) * 4 * K
    if p < 38:
        return 72 * K + (p - 34) * 4 * K
    return slot_of(p - 38)

rX, rP1, rP2, rWS, rW2, rWO, rA, rB = (s(n, 4) for n in (4, 8, 12, 16, 20, 24, 28, 32))
P_X, P_QKV, P_WO, P_W1, P_B1, P_W2, P_B2, P_OUT, P_WS = 36, 38, 40, 44, 46, 48, 50, 52, 56
NONCE, W, I_, J_, C_, TYPE, RHO, TB2, CT, RHO2 = (s(n) for n in range(58, 68))
T0, T1, T2, T3 = (s(n) for n in range(68, 72))

P = Prog()


class Q:
    def __init__(self, name, mx):
        self.q, self.name, self.mx = [], name, mx

    def room(self):
        if len(self.q) >= self.mx:
            P(f"s_waitcnt {self.name}({self.mx - 1})")
            self.q = self.q[len(self.q) - (self.mx - 1):]

    def add(self, tag=None):
        self.q.append(tag)

    def need(self, tag):
        if tag not in self.q:
            return ""
        idx = max(i for i, t in enumerate(self.q) if t == tag)
        n = len(self.q) - 1 - idx
        assert n <= self.mx, (self.name, n)
        self.q = self.q[idx + 1:]
        return f"{self.name}({n})"

    def wait(self, tag):
        t = self.need(tag)
        if t:
            P("s_waitcnt " + t)

    def drain(self, force=False):
        if self.q or force:
            P(f"s_waitcnt {self.name}(0)")
        self.q = []


slots = [{}, {}]
def stamp(role, name):
    if not DIAG:
        return
    want = str(OPT.get(f"st{role}", "")).split(",")
    if want != [""] and name not in want and name not in ("start", "end"):
        return
    n = slots[role].setdefault(name, len(slots[role]))
    if DIAG >= 3:
        assert n < 9, (role, name)
        P(f"{'s_memtime' if DIAG == 4 else 's_memrealtime'} s[{80 + 2 * n}:{81 + 2 * n}]")
        return
    assert n < 16, (role, name)
    P(f"{'s_memtime' if DIAG == 2 else 's_memrealtime'} s[96:97]\ns_waitcnt lgkmcnt(0)\ns_mov_b32 s{80 + n}, s96")


def sreg(r):
    return int(r[2:r.index(":")])


def srd(r, ptr, size):
    n = sreg(r)
    P(f"s_mov_b32 s{n}, s{ptr}\ns_mov_b32 s{n+1}, s{ptr+1}\ns_mov_b32 s{n+2}, 0x{size:x}\ns_mov_b32 s{n+3}, 0x20000")


def sel2(dst, a, b):
    P(f"s_mov_b32 {dst}, 0x{b:x}\ns_cmov_b32 {dst}, 0x{a:x}")


cold = []


def flush_cold():
    for t in cold:
        P(t)
    cold.clear()


def spin_text(lbl, load, check):
    t = f"s_mov_b32 {T3}, {1 << OPT['spin']}\n{lbl}:\n{load}\ns_waitcnt vmcnt(0)\n{check}\n"
    t += f"s_sub_u32 {T3}, {T3}, 1\ns_cbranch_scc1 {lbl}_x\ns_cbranch_vccz {lbl}_x\n"
    n = OPT["kslp"] if lbl in ("L_kv", "L_cs", "L_gr") else OPT["slp"]
    if n:
        t += f"s_sleep {n}\n"
    return t + f"s_branch {lbl}"


def spin(lbl, load, check):
    P(spin_text(lbl, load, check))
    P.label(lbl + "_x")


def retry(lbl, load, check):
    if OPT["inl"]:
        P(f"s_cbranch_vccz {lbl}_x")
        spin(lbl, load, check)
        return
    P(f"s_cbranch_vccnz {lbl}_s")
    P.label(lbl + "_x")
    cold.append(f"{lbl}_s:\n" + spin_text(lbl, load, check))


HX = "row"
FAR = "s46"
nrow = [0]
def row_store(text, nt=0):
    if not OPT["fast"] or nt == 2:
        P(text + " sc1")
        return
    nrow[0] += 1
    l = f"L_r{nrow[0]}"
    P(f"s_cmp_lg_u32 {FAR}, 0\ns_cbranch_scc1 {l}\n{text} {'nt' if nt else ''}\n{l}_x:")
    cold.append(f"{l}:\n{text} sc1\ns_branch {l}_x")


def flag_store(sreg_off, va=26, aux="sc1"):
    P(f"v_mov_b32 {v(va)}, {NONCE}\nv_mov_b32 {v(va+1)}, 0")
    P("s_mov_b64 exec, 1")
    if aux == "row":
        row_store(f"buffer_store_dword {v(va)}, {v(va+1)}, {rWS}, {sreg_off} offen")
    else:
        P(f"buffer_store_dword {v(va)}, {v(va+1)}, {rWS}, {sreg_off} offen {aux}")
    P("s_mov_b64 exec, -1")


def signal(vaddr, vtmp, k, fence=False):
    if fence and OPT["fence"]:
        lg.drain(force=True)
    P(f"v_mov_b32 {v(vtmp)}, {k}\ns_mov_b64 exec, 1\nds_write_b32 {v(vaddr)}, {v(vtmp)}\ns_mov_b64 exec, -1")
    lg.add(None)


nwait = [0]
def peek(vaddr, vd):
    lg.room()
    P(f"ds_read_b32 {v(vd)}, {v(vaddr)}")
    lg.add(("peek", vd))


def await_(vaddr, vd, k, peeked=False):
    nwait[0] += 1
    lbl = f"L_w{nwait[0]}"
    if not peeked:
        peek(vaddr, vd)
    lg.wait(("peek", vd))
    P(f"v_cmp_gt_u32 vcc, {k}, {v(vd)}")
    loop = (f"s_mov_b32 {T3}, {1 << 20}\n{lbl}:\nds_read_b32 {v(vd)}, {v(vaddr)}\ns_sub_u32 {T3}, {T3}, 1\ns_waitcnt lgkmcnt(0)\n"
            f"v_cmp_gt_u32 vcc, {k}, {v(vd)}\ns_cbranch_scc1 {lbl}_x\ns_cbranch_vccnz {lbl}")
    if OPT["inl"]:
        P(f"s_cbranch_vccz {lbl}_x\n{loop}")
    else:
        P(f"s_cbranch_vccnz {lbl}_s")
        cold.append(f"{lbl}_s:\n{loop}\ns_branch {lbl}_x")
    P.label(lbl + "_x")


def hblock2(dst):
    P(f"s_lshl_b32 {dst}, {C_}, 1\ns_add_u32 {T3}, {C_}, 3\ns_min_u32 {dst}, {dst}, {T3}\ns_add_u32 {dst}, {dst}, 32")


def waddr(dst, t1, t2, hshift):
    P(f"v_lshrrev_b32 {v(t1)}, 5, v0\nv_bfe_u32 {v(t2)}, v0, 2, 2\nv_lshl_add_u32 {v(t1)}, {v(t1)}, {hshift}, {v(t2)}")
    P(f"v_lshlrev_b32 {v(dst)}, 7, {v(t1)}")
    P(f"v_bfe_u32 {v(t1)}, v0, 3, 1\nv_lshl_or_b32 {v(dst)}, {v(t1)}, 6, {v(dst)}")
    P(f"v_bfe_u32 {v(t1)}, v0, 4, 1\nv_lshl_or_b32 {v(dst)}, {v(t1)}, 5, {v(dst)}")
    P(f"v_and_b32 {v(t1)}, 3, v0\nv_lshl_or_b32 {v(dst)}, {v(t1)}, 3, {v(dst)}")


def tr(dst, addr, off, tag):
    assert 0 <= off < 65536, off
    lg.room()
    P(f"ds_read_b64_tr_b16 {v(dst, 2)}, {v(addr)} offset:{off}")
    lg.add(tag)


def dump(role):
    if not DIAG:
        return
    P("s_waitcnt vmcnt(0)")
    stamp(role, "end")
    P("s_waitcnt lgkmcnt(0)")
    for n in range(16):
        P(f"v_mov_b32 {v(32 + n)}, {s(80 + n) if DIAG < 3 else (s(80 + 2 * n) if n < 10 else ('s100' if n == 15 else 0))}")
    if role == 1 and DIAG >= 3 and OPT.get("xcc"):
        P(f"s_getreg_b32 {T0}, hwreg(HW_REG_XCC_ID, 0, 4)\ns_min_u32 {T1}, s46, 1\ns_lshl4_add_u32 {T0}, {T1}, {T0}\nv_mov_b32 v45, {T0}")
    P(f"s_lshl_b32 {T0}, s2, 3\ns_add_u32 {T0}, {T0}, {W}\ns_lshl_b32 {T0}, {T0}, 6\ns_add_u32 {T0}, {T0}, 0x{WS_DIAG + role * 256:x}")
    P("v_mov_b32 v26, 0\ns_mov_b64 exec, 1")
    for n in range(4):
        P(f"buffer_store_dwordx4 {v(32 + 4 * n, 4)}, v26, {rWS}, {T0} offen offset:{16 * n}")


P("s_cmp_ge_u32 s2, 256")
P("s_cbranch_scc1 L_end")
if DIAG >= 3:
    P("s_memrealtime s[100:101]")
P("s_load_dwordx16 s[36:51], s[0:1], 0")
P("v_lshrrev_b32 v1, 6, v0")
P("v_and_b32 v0, 63, v0")
P(f"v_lshlrev_b32 v2, 2, v1\nv_add_u32 v2, 0x{L_RDY:x}, v2\nv_mov_b32 v3, 0\nds_write_b32 v2, v3")
if OPT["map1"] == 81:
    P(f"s_lshr_b32 {T3}, s2, 7\nv_readfirstlane_b32 {T2}, v1\ns_and_b32 {I_}, s2, 7\ns_bfe_u32 {J_}, s2, 0x40003")
    if OPT["rv"] == 1:
        P(f"s_and_b32 {T1}, s2, 3\ns_lshl1_add_u32 {I_}, {I_}, {T3}\ns_lshl2_add_u32 {RHO}, {T3}, {T1}")
    else:
        P(f"s_lshl2_add_u32 {RHO}, {T3}, {J_}\ns_and_b32 {T1}, s2, 3\ns_lshl1_add_u32 {I_}, {I_}, {T3}\ns_add_u32 {RHO}, {RHO}, {T1}\ns_and_b32 {RHO}, {RHO}, 7")
    if OPT["rv"] == 2:
        P(f"s_lshr_b32 {T1}, {J_}, 1\ns_sub_u32 {RHO}, {RHO}, {J_}\ns_add_u32 {RHO}, {RHO}, {T1}\ns_and_b32 {RHO}, {RHO}, 7")
elif OPT["map1"] == 24:
    P(f"s_lshr_b32 {T3}, s2, 5\nv_readfirstlane_b32 {T2}, v1\ns_and_b32 {I_}, s2, 4\ns_bfe_u32 {T1}, s2, 0x20003\ns_and_b32 {J_}, s2, 3")
    P(f"s_lshl1_add_u32 {I_}, {I_}, {T3}\ns_lshl2_add_u32 {J_}, {J_}, {T1}\ns_lshl1_add_u32 {RHO}, {T1}, {T3}\ns_and_b32 {T1}, s2, 1\ns_add_u32 {RHO}, {RHO}, {T1}\ns_and_b32 {RHO}, {RHO}, 7")
else:
    P(f"s_lshr_b32 {T3}, s2, 6\nv_readfirstlane_b32 {T2}, v1\ns_and_b32 {I_}, s2, 6\ns_bfe_u32 {T1}, s2, 0x30003\ns_and_b32 {J_}, s2, 1")
    P(f"s_lshl1_add_u32 {I_}, {I_}, {T3}\ns_lshl3_add_u32 {J_}, {J_}, {T1}\ns_lshl1_add_u32 {RHO}, {T3}, {T1}\ns_bfe_u32 {T1}, s2, 0x10001\ns_add_u32 {RHO}, {RHO}, {T1}\ns_and_b32 {RHO}, {RHO}, 7")
P(f"s_and_b32 {W}, {T2}, 3")
def late_args():
    P("s_load_dwordx4 s[52:55], s[0:1], 64")
    P("s_load_dwordx2 s[56:57], s[0:1], 80")
    P(f"s_lshr_b32 {C_}, {J_}, 1\ns_and_b32 {TYPE}, {J_}, 1")
def diag_init():
    if DIAG:
        for n in range(20):
            P(f"s_mov_b32 s{80 + n}, 0")


RHOS, RHOA = "s3", "s47"
def tile2():
    if OPT["map2"] == 42:
        P(f"s_lshr_b32 {T3}, s2, 5\ns_bfe_u32 {TB2}, s2, 0x20001\ns_lshl_b32 {TB2}, {TB2}, 3\ns_add_u32 {TB2}, {TB2}, {T3}")
        P(f"s_bfe_u32 {RHO2}, s2, 0x20003\ns_and_b32 {CT}, s2, 1\ns_lshl_b32 {CT}, {CT}, 2\ns_add_u32 {CT}, {CT}, {RHO2}")
        P(f"s_lshl_b32 {RHO2}, {RHO2}, 1\ns_add_u32 {RHO2}, {RHO2}, {T3}\ns_and_b32 {RHO2}, {RHO2}, 7")
        return
    P(f"s_lshr_b32 {T3}, s2, 6\ns_and_b32 {TB2}, s2, 7\ns_lshl_b32 {TB2}, {TB2}, 2\ns_add_u32 {TB2}, {TB2}, {T3}")
    P(f"s_bfe_u32 {CT}, s2, 0x30003\ns_lshl_b32 {RHO2}, {T3}, 1\ns_add_u32 {RHO2}, {RHO2}, {CT}\ns_and_b32 {RHO2}, {RHO2}, 7")
    P(f"s_add_u32 {RHOS}, {T3}, {CT}\ns_mul_i32 {RHOA}, {T3}, 3\ns_and_b32 {T3}, {CT}, 1\ns_add_u32 {RHOA}, {RHOA}, {T3}")
    if not OPT["rotx"]:
        P(f"s_mov_b32 {RHOS}, {RHO2}\ns_mov_b32 {RHOA}, 0")


P(f"s_cmp_lt_u32 {T2}, 4")
P("s_cbranch_scc1 L_loader")
late_args()
if OPT["codepf"]:
    P("s_getpc_b64 s[32:33]")
    P.label("L_pc")
    P("s_mov_b32 s34, L_codeend-L_pc\ns_mov_b32 s35, 0x20000")
    P(f"s_lshr_b32 {T0}, s2, 3\ns_lshl2_add_u32 {T1}, {T0}, {W}\ns_lshl_b32 {T1}, {T1}, 7\nv_and_b32 v4, 3, v0\nv_lshl_add_u32 v4, v4, 14, {T1}")
    P("buffer_load_dword v31, v4, s[32:35], 0 offen")
P("s_branch L_compute")
P.label("L_loader")

lg = Q("lgkmcnt", 15)
vm = Q("vmcnt", 63)
VX, VP1, VP2, VW2, VBI, LWA, LWB, VL16, SEL, CS, CS2 = 1, 2, 3, 4, 5, 6, 7, 8, 12, 16, 20
RS1, RS32, SX0, SW0, DCOL, SP20, SM, HB0L = (s(n) for n in range(72, 80))
if DIAG < 3:
    diag_init()
    stamp(1, "start")
P("v_lshrrev_b32 v24, 3, v0\nv_and_b32 v25, 7, v0\nv_lshrrev_b32 v26, 4, v0")
P(f"s_and_b32 {T0}, {W}, 1\ns_lshl_b32 {T0}, {T0}, 2\ns_lshl4_add_u32 {SX0}, {I_}, {W}")
P(f"v_add_u32 v27, {T0}, v26\nv_xor_b32 v27, v27, v25\nv_lshlrev_b32 v27, 4, v27\nv_lshl_or_b32 {v(VX)}, v24, 10, v27")
P(f"s_lshl_b32 {SX0}, {SX0}, 13\ns_lshl_b32 {SM}, {W}, 10")
P("s_mov_b32 s6, 0x200000\ns_mov_b32 s7, 0x20000")
SZQ, SZ1 = 512 * 3072, 512 * 2752


def wsetup():
    late_args()
    P(f"s_setprio {OPT['prio']}")
    P(f"s_lshl_b32 {T1}, {C_}, 7\ns_cmp_eq_u32 {TYPE}, 0")
    sel2(RS1, 3072, 2752)
    sel2(DCOL, 1024, 128)
    sel2("s10", SZQ, SZ1)
    P(f"s_cselect_b32 s8, s{P_QKV}, s{P_W1}\ns_cselect_b32 s9, s{P_QKV+1}, s{P_W1+1}\ns_mov_b32 s11, 0x20000")
    P(f"s_cselect_b32 {SW0}, 1024, {T1}\ns_add_u32 {SW0}, {SW0}, {T1}")
    P("v_and_b32 v27, 1, v26\nv_lshlrev_b32 v27, 2, v27\nv_xor_b32 v27, v27, v25\nv_lshlrev_b32 v27, 4, v27")
    P(f"v_mad_u32_u24 {v(VP1)}, v24, {RS1}, v27")
    P(f"s_lshl_b32 {T3}, {W}, 3\ns_mul_i32 {SP20}, {T3}, {RS1}\ns_add_u32 {SW0}, {SW0}, {SP20}\ns_lshl_b32 {RS32}, {RS1}, 5")


def wsetup2():
    hblock2(HB0L)
    P(f"s_lshl_b32 {T0}, {HB0L}, 6\ns_lshl_b32 {T1}, {C_}, 7\ns_cmp_eq_u32 {TYPE}, 0\ns_cselect_b32 {T0}, {T1}, {T0}\ns_add_u32 {SP20}, {SP20}, {T0}")
    P(f"v_lshl_or_b32 {v(VW2)}, v24, 10, v27")


def dma(voff, srdr, soff, tag):
    if OPT["noload"]:
        return
    P(f"buffer_load_dwordx4 {v(voff)}, {srdr}, {soff} offen lds")
    vm.add(tag)


def ks_reg(q):
    P(f"s_add_u32 {T0}, {RHO}, {q}\ns_and_b32 {T0}, {T0}, 7" if q else f"s_mov_b32 {T0}, {RHO}")


def stage(q, mid=None, pre=None):
    sl = (q % 3) * 32 * K
    ks_reg(q)
    P(f"s_lshl_b32 {T1}, {T0}, 7\ns_add_u32 {T1}, {T1}, {SX0}")
    for m in range(4):
        P(f"s_add_u32 m0, {SM}, {sl + 4 * K * m}")
        if m:
            P(f"s_add_u32 {T1}, {T1}, 32768")
        else:
            P(f"s_lshl_b32 {T0}, {T0}, 6")
            if pre:
                pre()
        dma(VX, rX, T1, ("st", q))
    if mid:
        mid()
    P(f"s_mul_i32 {T0}, {T0}, {RS1}\ns_add_u32 {T0}, {T0}, {SW0}")
    for h in range(2):
        if h:
            P(f"s_add_u32 {T0}, {T0}, {RS32}")
        P(f"s_add_u32 m0, {SM}, {sl + 16 * K + 4 * K * h}")
        P(f"s_add_u32 {T1}, {T0}, {DCOL}")
        dma(VP1, rP1, T0, ("st", q))
        P(f"s_add_u32 m0, {SM}, {sl + 24 * K + 4 * K * h}")
        dma(VP1, rP1, T1, ("st", q))


def chunk(q, tag="ch"):
    ks_reg(q)
    P(f"s_lshl_b32 {T0}, {T0}, 6\ns_mul_i32 {T0}, {T0}, {RS1}")
    P(f"s_add_u32 m0, {SM}, {CH(q)}\ns_add_u32 {T0}, {T0}, {SP20}")
    dma(VP1, rP1, T0, tag)
    P(f"s_add_u32 m0, {SM}, {CH(q) + 4 * K}\ns_add_u32 {T0}, {T0}, {RS32}")
    dma(VP1, rP1, T0, tag)


LPA, LPL = "s48", "s49"
LPB, LGB, SCS = "s36", "s37", "s38"
CHR, MID, PQR, D0, D1 = 48, 104, 212, 32, 228


def page_addr(p):
    if p < 32:
        if p % 2 == 0 or page_addr.last != ("b", p >> 1):
            P(f"s_add_u32 {LGB}, {RHO2}, {(p >> 1) & 7}\ns_and_b32 {LGB}, {LGB}, 7\ns_lshl_b32 {LGB}, {LGB}, 17\ns_add_u32 {LGB}, {LGB}, {LPB}")
            page_addr.last = ("b", p >> 1)
        P(f"s_add_u32 {T0}, {LGB}, {(2 * (p >> 4) + (p & 1)) * 32768}")
        return rW2
    elif p < 44:
        P(f"s_add_u32 {T0}, {LPA}, {(p - 32) * 32768}\ns_cmp_ge_u32 {T0}, {LPL}\ns_cselect_b32 {T1}, {11 * 32768}, 0\ns_sub_u32 {T0}, {T0}, {T1}")
        return rW2
    else:
        g, mask, sr, add = (p - 44) >> 2, 3, rWO, 0
    if p % 4 == 0 or page_addr.last != (p >> 2):
        P(f"s_add_u32 {LGB}, {RHOS}, {g}\ns_and_b32 {LGB}, {LGB}, {mask}\ns_lshl_b32 {LGB}, {LGB}, 17\ns_add_u32 {LGB}, {LGB}, {LPB}")
        page_addr.last = p >> 2
    P(f"s_add_u32 {T0}, {LGB}, {(p % 4) * 32768}")
    return sr
page_addr.last = None


def page(p):
    P(f"s_add_u32 m0, {SM}, {slot_of(p)}")
    sr = page_addr(p)
    dma(VW2, sr, T0, ("pg", p))


def stg_reg(p):
    if p < 38:
        return MID + 4 * (p - 18)
    k = p - 38 if p < 43 else p - 39
    return CHR + 4 * k if k < 14 else 184 + 4 * (k - 14)


def lds16(a):
    return f"{v(VL16 + a // (64 * K))}", a % (64 * K)


VP2N = 23
def chunk_stage(q):
    if OPT["nar"] and q == 1:
        P(f"s_cmp_ge_u32 {C_}, 3\ns_cselect_b32 {T0}, {TYPE}, 0\ns_lshl_b32 {T0}, {T0}, 6\ns_not_b32 {T0}, {T0}")
        P(f"v_lshrrev_b32 v27, 3, v0\nv_mul_u32_u24 v27, {RS1}, v27\nv_sub_u32 v28, {v(VP1)}, v27\nv_and_b32 v28, {T0}, v28\nv_add_u32 {v(VP2N)}, v27, v28")
    ks_reg(q)
    P(f"s_lshl_b32 {T0}, {T0}, 6\ns_mul_i32 {T0}, {T0}, {RS1}\ns_add_u32 {T0}, {T0}, {SP20}\ns_add_u32 {T1}, {T0}, {RS32}")
    for h in range(2):
        P(f"buffer_load_dwordx4 {v(CHR + 8 * (q - 1) + 4 * h, 4)}, {v(VP2N if OPT['nar'] else VP1)}, {rP1}, {(T0, T1)[h]} offen")
        vm.add(("ch", q))


def chunk_write(q):
    vm.wait(("ch", q))
    for h in range(2):
        a, off = lds16(CH(q) + 4 * K * h)
        P(f"ds_write_b128 {a}, {v(CHR + 8 * (q - 1) + 4 * h, 4)} offset:{off}")


def page_stage(p):
    sr = page_addr(p)
    P(f"buffer_load_dwordx4 {v(stg_reg(p), 4)}, {v(VW2)}, {sr}, {T0} offen")
    vm.add(("pg", p))


def page_write(p, pace=0):
    so = slot_of(p)
    a, off = (VL16, so) if so < 64 * K else ((VL16 + 1, so - 64 * K) if so < 128 * K else (VL16 + 2, so - 128 * K))
    P(f"ds_write_b128 {v(a)}, {v(stg_reg(p), 4)} offset:{off}")
    if pace:
        P("s_waitcnt lgkmcnt(0)")


stage(0, wsetup, lambda: P(f"s_waitcnt lgkmcnt(0)\ns_mov_b32 s4, s{P_X}\ns_mov_b32 s5, s{P_X+1}"))
if DIAG >= 3:
    diag_init()
    stamp(1, "start")
stamp(1, "st0")
wsetup2()
if not OPT["chl"]:
    chunk(0, "ch0")
P("s_waitcnt lgkmcnt(0)")
P(f"s_load_dword {NONCE}, s[{P_WS}:{P_WS+1}], 0")
srd(rWS, P_WS, WS_SIZE)
srd(rW2, P_W2, 1376 * 1024)
srd(rWO, P_WO, 512 * 1024)
srd(rA, P_B1, 2752)
tile2()
waddr(LWA, 27, 28, 3)
P(f"s_and_b32 {T0}, {W}, 1\ns_lshl_b32 {T0}, {T0}, 6")
P(f"v_xor_b32 {v(LWA)}, {T0}, {v(LWA)}")
P(f"v_add_u32 {v(LWB)}, 0x{CH(0):x}, {v(LWA)}")
P(f"s_lshr_b32 {T0}, {W}, 1\ns_lshl_b32 {T0}, {T0}, 13\ns_add_u32 {T0}, {T0}, {16 * K}")
P(f"v_add_u32 {v(LWA)}, {T0}, {v(LWA)}")
P("v_and_b32 v27, 15, v0\nv_lshlrev_b32 v28, 2, v26\nv_cmp_eq_u32 vcc, v27, v28\nv_mov_b32 v27, 0x3f803f80")
for r in range(4):
    P(f"v_cndmask_b32 {v(SEL + r)}, 0, v27, vcc")
P(f"v_lshl_add_u32 {v(VL16)}, v0, 4, {SM}")
P(f"v_add_u32 {v(VL16+1)}, 0x10000, {v(VL16)}\nv_add_u32 {v(VL16+2)}, 0x20000, {v(VL16)}")
P(f"s_lshl_b32 {LPB}, {W}, 13\ns_lshl_b32 {T1}, {CT}, 7\ns_add_u32 {LPB}, {LPB}, {T1}")
P(f"s_lshl_b32 {LPA}, {RHOA}, 15\ns_add_u32 {LPA}, {LPA}, {LPB}\ns_add_u32 {LPA}, {LPA}, {32 * 32768}\ns_add_u32 {LPL}, {LPB}, {43 * 32768}")
P(f"s_lshl_b32 {SCS}, {J_}, 1\ns_lshr_b32 {T0}, {I_}, 3\ns_add_u32 {SCS}, {SCS}, {T0}\ns_lshl_b32 {SCS}, {SCS}, 2")
P(f"s_add_u32 {SCS}, {SCS}, {W}\ns_lshl_b32 {SCS}, {SCS}, 12\ns_add_u32 {SCS}, {SCS}, 0x{WS_CS:x}")
P(f"s_lshl_b32 {T0}, {C_}, 2\ns_add_u32 {T0}, {T0}, {W}\ns_lshl_b32 {T0}, {T0}, 6")
P(f"s_and_b32 {T1}, {W}, 1\ns_add_u32 {T1}, {T1}, {HB0L}\ns_lshl_b32 {T1}, {T1}, 6")
P(f"s_cmp_eq_u32 {TYPE}, 0\ns_cselect_b32 {T0}, 0x100000, {T0}\ns_cselect_b32 {T1}, 0x100000, {T1}")
P(f"v_mov_b32 v27, {T0}\nv_mov_b32 v28, {T1}\nv_cmp_gt_u32 vcc, 32, v0\nv_and_b32 v29, 31, v0")
P(f"v_cndmask_b32 v27, v28, v27, vcc\nv_lshl_add_u32 v30, v29, 1, v27")
VSIG, VPK = 11, 24
P(f"s_lshl_b32 {T0}, {W}, 2\ns_add_u32 {T0}, {T0}, 0x{L_RDY:x}\nv_mov_b32 {v(VSIG)}, {T0}")
P(f"v_and_b32 {v(VPK)}, 3, v0\nv_lshlrev_b32 {v(VPK)}, 2, {v(VPK)}\nv_add_u32 {v(VPK)}, 0x{L_PRG:x}, {v(VPK)}")
XRES, BRES, VO, SO = 244, 252, 19, "s45"
if OPT["eb"]:
    srd(rB, P_B2, 1024)
    P(f"buffer_load_ushort {v(VBI)}, v30, {rA}, 0 offen")
    P(f"v_and_b32 v28, 7, v0\nv_lshlrev_b32 v28, 4, v28\ns_lshl_b32 {T1}, {CT}, 7")
    P(f"buffer_load_dwordx4 {v(BRES, 4)}, v28, {rB}, {T1} offen")
    vm.add(None)
    vm.add(None)
stamp(1, "setup")
if not OPT["s1late"]:
    stage(1, (lambda: P(f"s_waitcnt vmcnt({OPT['s1h']})")) if OPT["s1h"] else None)
if OPT["chl"] and not OPT["chx"] and not OPT["s1late"]:
    chunk(0, ("st", 1))
stamp(1, "issued")
P(f"s_waitcnt lgkmcnt(0)\ns_add_u32 {NONCE}, {NONCE}, 1")
vm.wait("ch0")
vm.wait(("st", 0))
stamp(1, "land")
if OPT["p2only"]:
    P("s_waitcnt vmcnt(0)\ns_barrier")
    signal(VSIG, 27, 6)
    P("s_barrier\ns_barrier")
    dump(1)
    P("s_endpgm")
    lg.q = []
P("s_barrier ; b0")
stamp(1, "b0")
FR = 32


def cs_reads(a, f):
    for t in range(4):
        P(f"ds_read_b64_tr_b16 {v(f + 4 * t, 2)}, {v(a)} offset:{t * 2048}")
        P(f"ds_read_b64_tr_b16 {v(f + 4 * t + 2, 2)}, {v(a)} offset:{t * 2048 + 512}")


def cs_mfma(acc, f):
    for t in range(4):
        P(f"v_mfma_f32_16x16x32_bf16 {v(acc, 4)}, {v(SEL, 4)}, {v(f + 4 * t, 4)}, {'0' if t == 0 else v(acc, 4)}")


CSL = "\n".join(f"buffer_load_dwordx2 {v(32 + 2 * n, 2)}, v29, {rWS}, {SCS} offen offset:{512 * n} sc1" for n in range(8))
CSC = "\n".join([f"v_xor_b32 {v(228 + n)}, {NONCE}, {v(33 + 2 * n)}" for n in range(8)] +
                ["v_or3_b32 v228, v228, v229, v230", "v_or3_b32 v231, v231, v232, v233", "v_or3_b32 v228, v228, v234, v235",
                 "v_or_b32 v228, v228, v231", "v_cmp_ne_u32 vcc, 0, v228"])
nch = 1
for st in range(8):
    CL = OPT["chl"]
    def mid():
        if st == 0:
            P(f"s_setprio {OPT['csprio']}")
            P("s_waitcnt lgkmcnt(0)")
            if not CL:
                cs_reads(LWB, FR + 16)
            cs_mfma(CS, FR)
            if CL:
                P(f"s_setprio {OPT['prio']}")
    if st == 0:
        cs_reads(LWA, FR)
        if OPT["s1late"]:
            stage(1)
            if OPT["chl"]:
                chunk(0, ("st", 1))
    if OPT["chx"] and st == OPT["chx"]:
        chunk(0, None)
    if st == 1 and CL:
        cs_reads(LWB, FR + 16)
    if st <= 5:
        if OPT["late"] >> st & 1:
            P(f"s_waitcnt vmcnt({OPT['lw']})")
        stage(st + 2, mid)
    if st == CL:
        P(f"s_setprio {OPT['csprio']}")
        P(f"s_lshl_b32 {T0}, {W}, 8\ns_add_u32 {T0}, {T0}, 0x{L_CSX:x}")
        P(f"v_lshl_add_u32 v27, v0, 2, {T0}")
        P("s_waitcnt lgkmcnt(0)")
        cs_mfma(CS2, FR + 16)
        P(f"v_permlane32_swap_b32 {v(CS)}, {v(CS2)}")
        P(f"v_add_f32 {v(CS)}, {v(CS)}, {v(CS2)}")
        P(f"ds_write_b32 v27, {v(CS)}")
        P(f"s_setprio {OPT['prio']}")
    if st == CL + 1:
        P("s_waitcnt lgkmcnt(0)")
    if OPT["fill"] == 3 and 1 <= st <= 6:
        if st == 1:
            P(f"s_lshl2_add_u32 s40, {I_}, {W}\ns_mul_i32 s40, s40, {TB_STRIDE}\ns_lshl_b32 {T0}, {J_}, 12\ns_add_u32 s40, s40, {T0}\ns_add_u32 s40, s40, 0x{WS_HA:x}")
        for t in range(6 * (st - 1), min(32, 6 * st)):
            P(f"s_buffer_load_dword s41, {rWS}, s40 offset:{128 * t}")
    if st == 6:
        P("v_lshlrev_b32 v29, 3, v0")
        P(CSL)
        for n in range(8):
            vm.add("cs")
        if OPT["ltouch"]:
            P(f"s_lshl2_add_u32 {T0}, s2, {W}\ns_mul_i32 {T1}, {T0}, {11 * 128}\ns_lshl_b32 {T0}, {T0}, 9")
            P(f"v_min_u32 v27, 10, v0\nv_lshlrev_b32 v27, 7, v27\nv_and_b32 v28, 0x180, v27")
            P(f"buffer_load_dword v20, v27, {rW2}, {T1} offen\nbuffer_load_dword v21, v28, {rWO}, {T0} offen")
            vm.add(None)
            vm.add(None)
        if OPT["f6"]:
            P(f"s_mul_i32 {T0}, {I_}, {4 * TB_STRIDE}\ns_lshl_b32 {T1}, {C_}, 12\ns_add_u32 {T1}, {T1}, {SM}\ns_add_u32 {T1}, {T1}, {86 * K}")
            P(f"s_mul_i32 {T2}, {W}, {TB_STRIDE}\ns_lshl_b32 {T3}, {HB0L}, 11\ns_add_u32 {T2}, {T2}, {T3}")
            P(f"s_cmp_lt_u32 {C_}, 3")
            sel2(T3, 3, 1)
            P(f"s_cmp_eq_u32 {TYPE}, 0\ns_cselect_b32 {T1}, {T1}, {T2}\ns_cselect_b32 {T3}, 3, {T3}")
            sel2(T2, TB_STRIDE, 1024)
            P(f"s_add_u32 {T0}, {T0}, {T1}\ns_add_u32 {T0}, {T0}, 0x{WS_HA:x}")
            P(f"v_lshrrev_b32 v27, 3, v0\nv_and_b32 v27, {T3}, v27\nv_mul_u32_u24 v27, {T2}, v27\nv_and_b32 v28, 7, v0\nv_lshl_add_u32 v27, v28, 7, v27")
            P(f"buffer_load_dword v23, v27, {rWS}, {T0} offen")
            vm.add(None)
        if OPT["ft"]:
            P(f"s_lshl2_add_u32 {T0}, {I_}, {W}\ns_lshl_b32 {T0}, {T0}, 7\ns_lshl_b32 {T1}, {I_}, 7\ns_add_u32 {T1}, {T1}, {FL_O * 128}")
            P(f"v_and_b32 v27, 3, v0\nv_lshl_add_u32 v28, v27, 13, {T0}\nv_mov_b32 v22, {T1}\nv_cmp_eq_u32 vcc, 2, v27\nv_cndmask_b32 v28, v28, v22, vcc")
            P(f"s_mov_b32 {T0}, 0x{WS_FLAGS:x}\nbuffer_load_dword v22, v28, {rWS}, {T0} offen sc1")
            vm.add(None)
    if st == 7:
        P(f"s_setprio {OPT['exprio']}")
        vm.wait("cs")
        stamp(1, "csin")
        P(CSC)
        retry("L_cs", CSL, CSC)
        stamp(1, "csok")
        P("v_add_f32 v32, v32, v34\nv_add_f32 v36, v36, v38\nv_add_f32 v40, v40, v42\nv_add_f32 v44, v44, v46")
        P("v_add_f32 v32, v32, v36\nv_add_f32 v40, v40, v44\nv_add_f32 v32, v32, v40")
        P("v_cvt_pk_bf16_f32 v33, v32, v32\nv_lshlrev_b32 v33, 16, v33\nv_sub_f32 v32, v32, v33\nv_cvt_pk_bf16_f32 v32, v33, v32")
        P("v_cmp_gt_u32 vcc, 32, v0")
        P(f"s_lshl_b32 {T0}, {W}, 9\ns_add_u32 {T0}, {T0}, 0x{L_EX1:x}")
        P(f"v_add_u32 v29, {T0}, v29")
        P(f"v_cndmask_b32 v34, 0, v32, vcc\nv_cndmask_b32 v35, 0, {v(VBI)}, vcc")
        P(f"v_cndmask_b32 v36, v32, 0, vcc\nv_cndmask_b32 v37, {v(VBI)}, 0, vcc")
        P(f"ds_write_b64 v29, v[34:35]\nds_write_b64 v29, v[36:37] offset:{L_EX2 - L_EX1}")
    if st == 7:
        P(f"s_setprio {OPT['prio']}")
    if st >= 6:
        for q in range(nch, nch + OPT[f"n{st}"]):
            chunk_stage(q)
        nch += OPT[f"n{st}"]
    if st < 7:
        vm.wait(("st", st + 1))
    if st == 7:
        P("s_waitcnt lgkmcnt(0)")
        stamp(1, "exw")
    P(f"s_barrier ; b{st + 1}")
    if "st1" in OPT and st < 7:
        stamp(1, f"b{st+1}")
stamp(1, "b8")
if OPT["p1only"]:
    dump(1)
    P("s_endpgm")
    DIAG = 0
for q in range(nch, 8):
    chunk_stage(q)
if not OPT["eb"]:
    srd(rB, P_B2, 1024)
srd(rP2, P_OUT, 2 * K * K)
P(f"v_and_b32 v28, 7, v0\nv_lshlrev_b32 v28, 4, v28\nv_lshrrev_b32 v29, 3, v0\nv_lshl_or_b32 {v(VO)}, v29, 10, v28")
P(f"s_lshl_b32 {SO}, {TB2}, 2\ns_add_u32 {SO}, {SO}, {W}\ns_lshl_b32 {SO}, {SO}, 14\ns_lshl_b32 {T1}, {CT}, 7\ns_add_u32 {SO}, {SO}, {T1}")
P(f"s_add_u32 {T2}, {SO}, 8192")
if not OPT["eb"]:
    P(f"buffer_load_dwordx4 {v(BRES, 4)}, v28, {rB}, {T1} offen")
    vm.add("res")
P(f"buffer_load_dwordx4 {v(XRES, 4)}, {v(VO)}, {rX}, {SO} offen")
P(f"buffer_load_dwordx4 {v(XRES + 4, 4)}, {v(VO)}, {rX}, {T2} offen")
for _ in range(2):
    vm.add("res")
vq8 = list(vm.q)


def stream(seq):
    for p in seq:
        (page if p < 18 else page_stage)(p)


LATE = list(range(38, 43)) + list(range(44, 60))
P(f"s_cmp_eq_u32 {TYPE}, 0")
P("s_cbranch_scc1 L_lA")
SH1, SH2, SF1 = "s4", "s5", "s6"
P(f"v_add_u32 v22, 16, {v(VSIG)}\nv_lshlrev_b32 v23, 4, v0")
P(f"s_lshl_b32 {T0}, {I_}, 2\ns_add_u32 {T0}, {T0}, {W}")
P(f"s_mul_i32 {SH1}, {T0}, {TB_STRIDE}\ns_add_u32 {SH1}, {SH1}, 0x{WS_HA:x}")
P(f"s_lshl_b32 {SH2}, {HB0L}, 11\ns_add_u32 {SH2}, {SH2}, {SH1}\ns_lshl_b32 {T1}, {C_}, 13\ns_add_u32 {SH1}, {SH1}, {T1}")
P(f"s_lshl_b32 {SF1}, {T0}, 5\ns_add_u32 {SF1}, {SF1}, {C_}\ns_lshl_b32 {SF1}, {SF1}, {2 + FX}\ns_add_u32 {SF1}, {SF1}, 0x{WS_FLAGS + FL_HB * LN:x}")


def far():
    P(f"ds_read_b32 v28, {v(VPK)} offset:{L_FAST - L_PRG}\ns_waitcnt lgkmcnt(0)\nv_cmp_ne_u32 vcc, 0, v28\ns_or_b32 {FAR}, vcc_lo, vcc_hi")


def wback(tag):
    if OPT["wbj"] == 0:
        P(f"s_cmp_lg_u32 {W}, 0")
    else:
        P(f"s_xor_b32 {T0}, {J_}, {OPT['wbj'] - 1}\ns_or_b32 {T0}, {T0}, {W}\ns_cmp_lg_u32 {T0}, 0")
    P(f"s_cbranch_scc1 L_wb{tag}\nbuffer_wbl2 sc1\nL_wb{tag}:")


def hstore(k, base, b, sh, tag):
    if k == 1:
        await_(VPK, 28, k)
        far()
    else:
        await_(22, 28, k)
    d = D0 + 8 * (b & 1)
    for u in range(2):
        a = base + (2 * b + u) * 4096
        P(f"ds_read_b128 {v(d + 4 * u, 4)}, {v(VL16 + a // (64 * K))} offset:{a % (64 * K)}")
    if b == 2:
        P(f"s_add_u32 {sh}, {sh}, 4096")
    for u in range(2):
        P(f"s_waitcnt lgkmcnt({1 - u})")
        row_store(f"buffer_store_dwordx4 {v(d + 4 * u, 4)}, v23, {rWS}, {sh} offen offset:{2048 * (b & 1) + 1024 * u}", OPT["nt1"] if tag != "h2" else OPT["nt2"])
        vm.add(tag)


if OPT["fill"] == 1:
    P("v_lshlrev_b32 v25, 7, v0\nv_and_b32 v27, 0xfff, v25")
    P(f"buffer_load_dword v20, v25, {rWS}, {SH1} offen\nbuffer_load_dword v21, v27, {rWS}, {SH2} offen")
    vm.add(None)
    vm.add(None)
mid = list(range(18, 38))
stream(mid[:OPT["e1B"]])
np_ = OPT["e1B"]
for q in range(1, 5):
    chunk_write(q)
hstore(1, L_HS, 0, SH1, "h")
for q in range(5, 8):
    chunk_write(q)
signal(VSIG, 26, 1, True)
for b in range(1, 4):
    stream(mid[np_:np_ + OPT["iB2"]])
    np_ += OPT["iB2"]
    hstore(b + 1, L_HS, b, SH1, "h" if b < 2 else "h1")
signal(VSIG, 26, 2)
stamp(1, "h_st")
vm.wait("h")
flag_store(SF1, aux=HX)
vm.add(None)
stamp(1, "hbflag")
P(f"s_add_u32 {SF1}, {SF1}, {(FL_H1 - FL_HB) * LN}")
stream(range(OPT["xB"]))
vm.wait("h1")
flag_store(SF1, aux=HX)
vm.add(None)
stamp(1, "h1flag")
stream(range(OPT["xB"], 18))
stream(mid[np_:])
P(f"s_sub_u32 {SF1}, {SF1}, {(FL_H1 - FL_HA) * LN}")
P(f"s_cmp_lt_u32 {C_}, 3")
P("s_cbranch_scc0 L_lB1")
vqB = list(vm.q)
restB = {}
for nb in (2, 1):
    if nb == 1:
        P.label("L_lB1")
        vm.q = list(vqB)
    page_addr.last = None
    pre = OPT["lB2"] if nb == 2 else OPT["lB1"]
    stream(LATE[:pre])
    vm.wait(("pg", 17))
    signal(VSIG, 26, 3)
    stamp(1, "staged")
    lg.q = []
    await_(VPK, 28, 8)
    marks = {OPT["w0"]: 0, OPT["w1"]: 1} if nb == 2 else {OPT["w0c"]: 0}
    for n, p in enumerate(range(18, 38)):
        if n in marks:
            lg.q = []
            hstore(9 + marks[n], L_PQ, marks[n], SH2, "h2")
            stamp(1, "h2_st")
        vm.wait(("pg", p))
        page_write(p)
    signal(VSIG, 26, 4, True)
    vm.wait("h2")
    flag_store(SF1, aux=HX)
    vm.add(None)
    stamp(1, "oflag")
    stream(LATE[pre:max(pre, OPT["l1"])])
    vm.wait(("pg", 42))
    restB[nb] = LATE[max(pre, OPT["l1"]):]
    P("s_branch L_l5")
P.label("L_lA")
vm.q = list(vq8)
lg.q = []
page_addr.last = None
SOB = "s44"
P(f"s_mul_i32 {SOB}, {I_}, {4 * TB_STRIDE}\ns_lshl_b32 {T1}, {C_}, 12\ns_add_u32 {SOB}, {SOB}, {T1}")
P(f"s_add_u32 {SOB}, {SOB}, {SM}\ns_add_u32 {SOB}, {SOB}, 0x{WS_HA + 86 * K:x}")
if OPT["fill"] == 1:
    P(f"v_bfe_u32 v25, v0, 3, 2\nv_mul_u32_u24 v25, {TB_STRIDE}, v25\nv_and_b32 v27, 7, v0\nv_lshl_add_u32 v25, v27, 7, v25")
    P(f"buffer_load_dword v20, v25, {rWS}, {SOB} offen")
    vm.add(None)
mid = list(range(18, 38))
stream(mid[:8])
for q in range(1, 8):
    chunk_write(q)
signal(VSIG, 26, 1, True)
if OPT["fill"] in (2, 3):
    P(f"s_lshl2_add_u32 {T0}, {I_}, {W}\ns_mul_i32 {T0}, {T0}, {TB_STRIDE}\ns_add_u32 {T0}, {T0}, 0x{WS_HA:x}")
    P("v_lshlrev_b32 v25, 7, v0")
    if OPT["fill"] == 2:
        P(f"s_lshl_b32 {T1}, {C_}, 13\ns_add_u32 {T1}, {T1}, {T0}")
        P(f"buffer_load_dword v20, v25, {rWS}, {T1} offen")
        vm.add(None)
    P(f"s_mul_i32 {T1}, {C_}, {54 * 128}\ns_add_u32 {T1}, {T1}, {T0}\ns_add_u32 {T1}, {T1}, {64 * K}\nv_min_u32 v25, {53 * 128}, v25")
    P(f"buffer_load_dword v21, v25, {rWS}, {T1} offen")
    vm.add(None)
stream(mid[8:OPT["e1A"]])
lg.q = []
await_(VPK, 28, 2)
far()
stream(range(18))
stream(mid[OPT["e1A"]:])
PREA = LATE[:OPT["preA"]] if OPT["gd"] == 8 else LATE[21 - min(5, OPT["preA"]):21]
stream(PREA)
SZL, SK0, SK1, SKE = "s4", "s5", "s6", "s7"
NB = [NONCE, "s39", "s42", "s43"]
P("v_and_b32 v23, 15, v0\nv_lshlrev_b32 v27, 4, v0")
P(f"v_lshrrev_b32 v22, 2, v0\nv_mul_u32_u24 v25, {KVP_STR}, v22\nv_and_b32 v26, 3, v0\nv_lshl_add_u32 v25, v26, 4, v25")
P(f"s_mul_i32 {SK0}, {C_}, {16 * KVP_STR}\ns_add_u32 {SK0}, {SK0}, 0x{WS_KVP:x}")
P(f"s_lshl_b32 {SZL}, {W}, 6\ns_add_u32 {SZL}, {SZL}, {SK0}\ns_add_u32 {SZL}, {SZL}, 4096")
P(f"s_add_u32 {SK0}, {SK0}, {SM}\ns_add_u32 {SKE}, {SK0}, {16 * KVP_STR}")
P(f"s_lshl_b32 {SK1}, {I_}, 1\ns_and_b32 {SK1}, {SK1}, 15\ns_mul_i32 {SK1}, {SK1}, {KVP_STR}\ns_add_u32 {SK1}, {SK1}, {SK0}")
P(f"s_add_u32 {T0}, {SM}, 0x{L_KT:x}")
P("v_and_b32 v40, 1, v26\nv_lshlrev_b32 v40, 4, v40\nv_lshrrev_b32 v26, 1, v26\nv_lshl_or_b32 v40, v26, 3, v40")
P(f"v_lshl_or_b32 v40, v22, 5, v40\nv_add_u32 v40, {T0}, v40")
P("v_bfe_u32 v41, v0, 4, 1\nv_lshlrev_b32 v41, 4, v41\nv_lshrrev_b32 v26, 5, v0\nv_lshl_or_b32 v41, v26, 3, v41")
P(f"v_lshl_or_b32 v41, v23, 5, v41\nv_add_u32 v41, {T0}, v41")
P(f"v_and_b32 v42, 31, v0\nv_lshlrev_b32 v42, 5, v42\nv_lshl_or_b32 v42, v26, 4, v42\nv_add_u32 v42, {T0}, v42")
P(f"s_lshr_b32 s39, {NONCE}, 8\ns_lshr_b32 s42, {NONCE}, 16\ns_lshr_b32 s43, {NONCE}, 24")
ZL = f"buffer_load_dwordx4 v[28:31], v25, {rWS}, {SZL} offen sc1"
ZC = "\n".join([f"v_xor_b32 v20, {NB[0]}, v28", f"v_xor_b32 v21, {NB[1]}, v29",
                f"v_bitop3_b32 v20, v20, v30, {NB[2]} bitop3:0xf6", f"v_bitop3_b32 v21, v21, v31, {NB[3]} bitop3:0xf6",
                "v_or_b32 v20, v20, v21", "v_and_b32 v20, 0xff, v20", "v_cmp_ne_u32 vcc, 0, v20"])
P(f"s_setprio {OPT['gprio']}")
P(f"s_mov_b32 {T2}, 32")
P.label("L_kvall")
spin("L_kv", ZL, ZC)
stamp(1, "kv_seen")
signal(VSIG, 26, 3)
P(f"s_mov_b32 {T1}, {SK1}")
GD = OPT["gd"]
GQ = [CHR + 4 * n for n in range(14)] + [184, 188] if GD == 16 else [PQR + 4 * n for n in range(8)]
def gload(n):
    P(f"buffer_load_dwordx4 {v(GQ[n % GD], 4)}, v27, {rWS}, {T1} offen sc1")
    if n < 15:
        P(f"s_add_u32 {T1}, {T1}, {KVP_STR}")
        if n % 2 == 1:
            P(f"s_cmp_eq_u32 {T1}, {SKE}\ns_cselect_b32 {T1}, {SK0}, {T1}")
for n in range(GD):
    gload(n)
for n in range(4):
    P(f"v_and_b32 {v(28 + n)}, 0xffffff00, {v(28 + n)}")
for r in (4, 8):
    for n in range(4):
        P(f"v_add_f32_dpp {v(28 + n)}, {v(28 + n)}, {v(28 + n)} row_ror:{r} row_mask:0xf bank_mask:0xf")
for op in ("v_permlane16_swap_b32", "v_permlane32_swap_b32"):
    for n in range(4):
        P(f"v_mov_b32 {v(32 + n)}, {v(28 + n)}")
    for n in range(4):
        P(f"{op} {v(28 + n)}, {v(32 + n)}")
    for n in range(4):
        P(f"v_add_f32 {v(28 + n)}, {v(28 + n)}, {v(32 + n)}")
P("v_cvt_pk_bf16_f32 v28, v28, v29\nv_cvt_pk_bf16_f32 v29, v30, v31")
P("ds_write_b64 v40, v[28:29] offset:512")
for n in range(16):
    P(f"s_waitcnt vmcnt({min(GD - 1, 15 - n)})")
    for h in range(4):
        r = v(GQ[n % GD] + h)
        if n == 0:
            P(f"v_xor_b32 {v(36 + h)}, {NB[h]}, {r}\nv_and_b32 {v(32 + h)}, 0xffffff00, {r}")
        else:
            P(f"v_bitop3_b32 {v(36 + h)}, {v(36 + h)}, {r}, {NB[h]} bitop3:0xf6\nv_and_b32 {v(44 + h)}, 0xffffff00, {r}")
    if n + GD < 16:
        gload(n + GD)
    if n:
        for h in range(4):
            P(f"v_add_f32 {v(32 + h)}, {v(32 + h)}, {v(44 + h)}")
P("v_or3_b32 v36, v36, v37, v38\nv_or_b32 v36, v36, v39\nv_and_b32 v36, 0xff, v36\nv_cmp_ne_u32 vcc, 0, v36")
P(f"s_sub_u32 {T2}, {T2}, 1")
P("s_cbranch_scc1 L_kvok")
P("s_cbranch_vccnz L_kvall")
P.label("L_kvok")
stamp(1, "gath")
if DIAG >= 3 and "retry" in str(OPT.get("st1")):
    P(f"s_waitcnt lgkmcnt(0)\ns_sub_u32 s98, 32, {T2}\ns_mul_i32 s98, s98, 100\ns_add_u32 s98, s98, s100")
vm.q = []
page_addr.last = None
P("v_cvt_pk_bf16_f32 v32, v32, v33\nv_cvt_pk_bf16_f32 v33, v34, v35")
P("ds_write_b64 v41, v[32:33]")
lg.q = []
P("ds_read_b128 v[44:47], v42")
stream([p for p in LATE[:OPT["lA"]] if p not in PREA])
P(f"v_add_u32 v20, 0x{L_PQ:x}, {v(VL16)}")
P(f"s_mov_b32 s4, {SOB}")
stamp(1, "staged")
await_(VPK, 22, 10)
stamp(1, "g0")
for tb in range(4):
    P(f"ds_read_b128 {v(PQR + 4 * tb, 4)}, v20 offset:{tb * 4096}")
P("v_mov_b32 v28, v44\nv_mov_b32 v29, v45\nv_mov_b32 v30, v46\nv_mov_b32 v31, v47")
def o_mfma(tb):
    P(f"s_waitcnt lgkmcnt({3 - tb})")
    P(f"v_mfma_f32_32x32x16_bf16 {v((D0, D1)[tb & 1], 16)}, v[28:31], {v(PQR + 4 * tb, 4)}, 0")
o_mfma(0)
o_mfma(1)
for tb in range(4):
    d = (D0, D1)[tb & 1]
    P(f"v_add_f32 {v(d + 8)}, 0x{f2u(1e-6):x}, {v(d + 8)}")
    P(f"v_rcp_f32 {v(d + 8)}, {v(d + 8)}")
    for r in range(8):
        P(f"v_mul_f32 {v(d + r)}, {v(d + r)}, {v(d + 8)}")
    for p in range(4):
        P(f"v_cvt_pk_bf16_f32 {v(PQR + 4 * tb + p)}, {v(d + 2 * p)}, {v(d + 2 * p + 1)}")
    if tb < 2:
        o_mfma(tb + 2)
    row_store(f"buffer_store_dwordx4 {v(PQR + 4 * tb, 4)}, v27, {rWS}, s4 offen", OPT["nt2"])
    vm.add("o")
    if tb < 3:
        P(f"s_add_u32 s4, s4, {TB_STRIDE}")
stamp(1, "o_st")
P(f"s_setprio {OPT['prio']}")
for p in range(18, 38):
    page_write(p)
signal(VSIG, 26, 4, True)
vm.wait("o")
P(f"s_lshl_b32 {T0}, {I_}, 5\ns_lshl_b32 {T1}, {C_}, 2\ns_add_u32 {T0}, {T0}, {T1}\ns_add_u32 {T0}, {T0}, {W}")
P(f"s_lshl_b32 {T0}, {T0}, {2 + FX}\ns_add_u32 {T0}, {T0}, 0x{WS_FLAGS + FL_O * LN:x}")
flag_store(T0, aux=HX)
vm.add(None)
stamp(1, "oflag")
stream([p for p in LATE[OPT["lA"]:OPT["l1"]] if p not in PREA])
vm.wait(("pg", 42))
restA = [p for p in LATE[OPT["l1"]:] if p not in PREA]
P.label("L_l5")
lg.q = []
await_(VPK, 28, 11)
stamp(1, "gx")
nfree = 2 * ((OPT["gx"] - 7) // 4)
first = [p for p in list(range(38, 43)) + list(range(44, 60)) if p - 38 < nfree]
P(f"s_setprio {OPT['wprio']}")
for p in range(38, 43):
    page_write(p, OPT["pace"])
signal(VSIG, 26, 5, True)
for who, rest in (("A", restA), ("B2", restB[2]), ("B1", restB[1])):
    if who == "A":
        P(f"s_cmp_eq_u32 {TYPE}, 0\ns_cbranch_scc0 L_tB")
    elif who == "B2":
        P.label("L_tB")
        P(f"s_cmp_lt_u32 {C_}, 3\ns_cbranch_scc0 L_tB1")
    else:
        P.label("L_tB1")
    page_addr.last = None
    vm.q = [("pg", p) for p in LATE[5:] if p not in rest and not (who == "A" and p in PREA)]
    stream(rest)
    for p in first[5:]:
        vm.wait(("pg", p))
        page_write(p, OPT["pace"])
    vm.drain()
    if who != "B1":
        P("s_branch L_t2")
P.label("L_t2")
lg.q = []
P("s_waitcnt lgkmcnt(0)")
await_(VPK, 28, 12)
for p in range(44, 60):
    if p not in first:
        vm.wait(("pg", p))
        page_write(p, OPT["pace"])
signal(VSIG, 26, 6, True)
P(f"s_setprio {OPT['prio']}")
LOG2E = 1.4426950408889634
XRD, GG, XF, BF, YR = 22, 32, 48, 64, 72
P("v_lshrrev_b32 v26, 3, v0\nv_and_b32 v27, 7, v0\nv_lshlrev_b32 v27, 1, v27\nv_xor_b32 v27, v27, v26\nv_lshlrev_b32 v27, 4, v27\nv_lshl_or_b32 v26, v26, 8, v27")
P(f"s_lshl_b32 {T0}, {W}, 12\ns_add_u32 {T0}, {T0}, 0x{L_XS0:x}")
P(f"v_add_u32 {v(XRD)}, {T0}, v26\nv_xor_b32 {v(XRD + 1)}, 16, {v(XRD)}")
P(f"v_add_u32 {v(XRD + 2)}, 0x10000, {v(XRD)}\nv_add_u32 {v(XRD + 3)}, 0x10000, {v(XRD + 1)}")
P(f"s_add_u32 {T2}, {SO}, 8192")
P("s_waitcnt lgkmcnt(0)")


if OPT["wb"] in (2, 4):
    wback(2)
def unpack(dst, src, n):
    for r in range(n):
        P(f"v_lshlrev_b32 {v(dst + 2 * r)}, 16, {v(src + r)}\nv_and_b32 {v(dst + 2 * r + 1)}, 0xffff0000, {v(src + r)}")


def xread(dst, bases):
    for h in range(2):
        for kh in range(2):
            for j in range(2):
                P(f"ds_read_b128 {v(dst + 16 * kh + 8 * h + 4 * j, 4)}, {v(XRD + j + 2 * ((bases[kh] - L_XS0) >> 16))} offset:{((bases[kh] - L_XS0) & 0xffff) + 2048 * h}")


unpack(XF, XRES, 8)
unpack(BF, BRES, 4)
stamp(1, "rdy5")
P(f"s_setprio {OPT['fprio']}")
P("s_barrier ; dY")
if OPT["wb"] == 3:
    wback(3)
xread(YR, (L_XY, L_XY + 16 * K))
P("s_waitcnt lgkmcnt(0)")
for fmt in ("v_add_f32 {Y}, {Y}, {Z}", "v_add_f32 {Y}, {Y}, {B}", f"v_mul_f32 {{G}}, 0x{f2u(-LOG2E):x}, {{Y}}", "v_exp_f32 {G}, {G}",
            "v_add_f32 {G}, 1.0, {G}", "v_rcp_f32 {G}, {G}", "v_mul_f32 {G}, {G}, {Y}"):
    for r in range(16):
        P(fmt.format(Y=v(YR + r), Z=v(YR + 16 + r), B=v(BF + r % 8), G=v(GG + r)))
stamp(1, "gate")
P("s_barrier ; dS")
stamp(1, "dS")
xread(YR, (L_XS0, L_XS1))
for h in range(2):
    P(f"s_waitcnt lgkmcnt({4 - 4 * h})")
    for p in range(4 * h, 4 * h + 4):
        P(f"v_pk_add_f32 {v(YR + 2 * p, 2)}, {v(YR + 2 * p, 2)}, {v(YR + 16 + 2 * p, 2)}")
    for p in range(4 * h, 4 * h + 4):
        P(f"v_pk_fma_f32 {v(YR + 2 * p, 2)}, {v(YR + 2 * p, 2)}, {v(GG + 2 * p, 2)}, {v(XF + 2 * p, 2)}")
    for p in range(4 * h, 4 * h + 4):
        P(f"v_cvt_pk_bf16_f32 {v(BF + p)}, {v(YR + 2 * p)}, {v(YR + 2 * p + 1)}")
    P(f"buffer_store_dwordx4 {v(BF + 4 * h, 4)}, {v(VO)}, {rP2}, {(SO, T2)[h]} offen {OPT['outaux']}")
stamp(1, "outst")
dump(1)
P.label("L_end")
P("s_endpgm")
flush_cold()

P.label("L_compute")
DIAG = OPT["diag"]
assert OPT["gx"] <= 36
XR, ACC, WR = 128, 64, 32
VH, GR, XE, K1, K2, SD, RS, RL = 1, 2, 4, 6, 8, 10, 16, 18
XA, WA = 12, 20
HB0, SH, EPS2, SG, SFL1, SFL2, SCS2 = "s72", "s73", "s[74:75]", "s76", "s77", "s78", "s79"
lg = Q("lgkmcnt", 15)

diag_init()
stamp(0, "start")
P(f"s_setprio {OPT['cprio']}")
P(f"s_lshl_b32 {T0}, {I_}, 4\ns_add_u32 {T0}, {T0}, {J_}\ns_lshl_b32 {T0}, {T0}, 2\ns_add_u32 {T0}, {T0}, {W}\ns_lshl_b32 {T0}, {T0}, 1")
P(f"s_lshl_b32 {T1}, {T0}, 10")
P("v_lshrrev_b32 v26, 5, v0\nv_and_b32 v27, 31, v0\nv_lshlrev_b32 v28, 4, v27\nv_lshl_or_b32 v28, v26, 10, v28")
P("s_waitcnt lgkmcnt(0)")
srd(rX, P_X, 2 * K * K)
P(f"s_load_dword {NONCE}, s[{P_WS}:{P_WS+1}], 0")
if not OPT["nostat"]:
    P(f"buffer_load_dwordx4 v[32:35], v28, {rX}, {T1} offen")
    P(f"buffer_load_dwordx4 v[36:39], v28, {rX}, {T1} offen offset:512")
srd(rWS, P_WS, WS_SIZE)
tile2()
P(f"v_lshlrev_b32 {v(VH)}, 4, v0")
waddr(WA, 29, 30, 3)
P(f"v_xor_b32 {v(WA + 1)}, 64, {v(WA)}")
for k, off in ((2, 64 * K), (4, 88 * K)):
    P(f"v_add_u32 {v(WA + k)}, 0x{off:x}, {v(WA)}\nv_add_u32 {v(WA + k + 1)}, 0x{off:x}, {v(WA + 1)}")
P("v_bfe_u32 v29, v0, 1, 3\nv_xor_b32 v29, v29, v26\nv_lshlrev_b32 v29, 4, v29\nv_lshl_or_b32 v29, v27, 7, v29")
P(f"s_lshl_b32 {T2}, {W}, 12")
P(f"v_add_u32 {v(XA)}, {T2}, v29")
for t in range(1, 4):
    P(f"v_xor_b32 {v(XA + t)}, {32 * t}, {v(XA)}")
for t in range(4):
    P(f"v_add_u32 {v(XA + 4 + t)}, 0x10000, {v(XA + t)}")
P(f"s_lshl_b32 {SG}, {I_}, 2\ns_add_u32 {SG}, {SG}, {W}")
if OPT["touch"]:
    srd(rW2, P_W2, 1376 * 1024)
    srd(rWO, P_WO, 512 * 1024)
    P(f"s_mul_i32 {T2}, s2, 43\ns_mul_i32 {T3}, {W}, 11\ns_add_u32 {T2}, {T2}, {T3}")
    P(f"v_add_u32 v6, {T2}, v0\nv_lshlrev_b32 v6, 7, v6\nv_mov_b32 v8, 0x7ff00000\nv_cmp_gt_u32 vcc, 11, v0")
    P(f"s_lshl_b32 {T2}, s2, 2\ns_add_u32 {T2}, {T2}, {W}\ns_lshl_b32 {T2}, {T2}, 2")
    P(f"v_cndmask_b32 v6, v8, v6, vcc\nv_add_u32 v7, {T2}, v0\nv_lshlrev_b32 v7, 7, v7\nv_cmp_gt_u32 vcc, 4, v0")
    P("v_cndmask_b32 v7, v8, v7, vcc")
    if OPT["touch"] == 9:
        P(f"buffer_load_dword v8, v6, {rW2}, 0 offen\nbuffer_load_dword v9, v7, {rWO}, 0 offen")
P(f"s_lshl_b32 {SG}, {SG}, 8\ns_add_u32 {SG}, {SG}, 0x{WS_STATS:x}")
P(f"s_lshl_b32 {SCS2}, {J_}, 1\ns_lshr_b32 {T2}, {I_}, 3\ns_add_u32 {SCS2}, {SCS2}, {T2}\ns_lshl_b32 {SCS2}, {SCS2}, 2")
P(f"s_add_u32 {SCS2}, {SCS2}, {W}\ns_lshl_b32 {SCS2}, {SCS2}, 3\ns_and_b32 {T2}, {I_}, 7\ns_add_u32 {SCS2}, {SCS2}, {T2}")
P(f"s_lshl_b32 {SCS2}, {SCS2}, 9\ns_add_u32 {SCS2}, {SCS2}, 0x{WS_CS:x}")
if OPT["pg"]:
    srd(rW2, P_W2, 1376 * 1024)
    srd(rWO, P_WO, 512 * 1024)
    srd(rA, P_OUT, 2 * K * K)
    P(f"v_lshlrev_b32 v46, 16, v0\ns_lshl_b32 {T3}, {W}, 22\ns_cmp_eq_u32 {W}, 3\ns_cbranch_scc1 L_pg3")
    P(f"buffer_load_dword v47, v46, {rWS}, {T3} offen sc1\ns_branch L_pgx\nL_pg3:")
    P(f"buffer_load_dword v47, v46, {rW2}, 0 offen\nbuffer_load_dword v47, v46, {rWO}, 0 offen\nbuffer_load_dword v47, v46, {rA}, 0 offen\nL_pgx:")
SFHB, SFO, KH, SFHA, PRIMED, SK12, SXW, SBASE = "s51", "s52", "s53", "s54", "s55", "s72", "s73", "s77"
P(f"s_lshr_b32 {KH}, {W}, 1\ns_lshl_b32 {SK12}, {KH}, 12\ns_mov_b32 {PRIMED}, 0")
P(f"s_lshl_b32 {T3}, {TB2}, 1\ns_and_b32 {T2}, {W}, 1\ns_add_u32 {T3}, {T3}, {T2}")
P(f"s_mul_i32 {SBASE}, {T3}, {TB_STRIDE}\ns_add_u32 {SBASE}, {SBASE}, 0x{WS_HA:x}")
if OPT["ahot"]:
    P(f"s_mov_b32 {SBASE}, 0x{WS_DIAG + 0x40000:x}")
P(f"s_lshl_b32 {SFHB}, {T3}, {7 + FX}\ns_add_u32 {SFHA}, {SFHB}, 0x{WS_FLAGS + FL_HA * LN:x}\ns_add_u32 s44, {SFHB}, 0x{WS_FLAGS + FL_H1 * LN:x}\ns_add_u32 {SFHB}, {SFHB}, 0x{WS_FLAGS + FL_HB * LN:x}")
P(f"s_lshr_b32 {SFO}, {TB2}, 1\ns_lshl_b32 {SFO}, {SFO}, {7 + FX}\ns_add_u32 {SFO}, {SFO}, 0x{WS_FLAGS + FL_O * LN:x}")
P(f"s_lshl_b32 {SXW}, {T2}, 13\ns_lshl_b32 {T3}, {KH}, 14\ns_add_u32 {SXW}, {SXW}, {T3}\ns_add_u32 {SXW}, {SXW}, 0x{L_XY:x}")
SXS = "s15"
P(f"s_cmp_eq_u32 {KH}, 0")
sel2(SXS, (L_XS0 - L_XY) & 0xffffffff, L_XS1 - L_XY - 16 * K)
if OPT["tlb"] == 2:
    P(f"buffer_load_dword v47, v0, {rWS}, {SBASE} offen sc1")
P(f"s_mov_b32 s14, {RHOA}")
for g in list(range(8)) + list(range(11, 15)):
    r = f"s{36 + g}"
    P(f"s_add_u32 {r}, {RHO2 if g < 8 else RHOS}, {g % 11}\ns_and_b32 {r}, {r}, {7 if g < 8 else 3}\ns_lshl_b32 {r}, {r}, 13\ns_add_u32 {r}, {r}, {SBASE}")
    if g >= 11:
        P(f"s_add_u32 {r}, {r}, {86 * K}")
P(f"s_add_u32 s14, s14, {KH}")
for n in range(16, 22):
    r = f"s{8 + n - 16}"
    P(f"s_add_u32 {r}, s14, {2 * (n - 16)}\ns_cmp_ge_u32 {r}, 11\ns_cselect_b32 {T3}, 11, 0\ns_sub_u32 {r}, {r}, {T3}")
    P(f"s_sub_u32 {r}, {r}, {KH}\ns_add_u32 {r}, {r}, {32 - 2 * (n % 2)}\ns_lshl_b32 {r}, {r}, 11\ns_add_u32 {r}, {r}, {SBASE}")
P(f"s_mov_b32 s74, 0x{f2u(1e-6):x}\ns_mov_b32 s75, 0x{f2u(1e-6):x}")
P(f"s_mov_b32 {T2}, 0x3f803f80")
P("v_mov_b32 v40, 0\nv_mov_b32 v41, 0\nv_mov_b32 v42, 0\nv_mov_b32 v43, 0")
stamp(0, "pre")
P("s_waitcnt vmcnt(2)" if OPT["touch"] == 9 else "s_waitcnt vmcnt(0)")
stamp(0, "xin")
for n in range(8):
    P(f"v_dot2_f32_bf16 {v(40 + (n & 1))}, {v(32 + n)}, {T2}, {v(40 + (n & 1))}")
    P(f"v_dot2_f32_bf16 {v(42 + (n & 1))}, {v(32 + n)}, {v(32 + n)}, {v(42 + (n & 1))}")
P("s_nop 2")
P("v_add_f32 v40, v40, v41\nv_add_f32 v42, v42, v43")
for r in (8, 4, 2, 1):
    P(f"v_add_f32_dpp v40, v40, v40 row_ror:{r} row_mask:0xf bank_mask:0xf")
    P(f"v_add_f32_dpp v42, v42, v42 row_ror:{r} row_mask:0xf bank_mask:0xf")
P("v_mov_b32 v41, v40\nv_mov_b32 v43, v42")
P("v_permlane16_swap_b32 v40, v41\nv_permlane16_swap_b32 v42, v43")
P("v_add_f32 v40, v40, v41\nv_add_f32 v42, v42, v43")
P(f"v_mul_f32 v40, 0x{f2u(1 / 512):x}, v40\nv_mul_f32 v42, 0x{f2u(1 / 512):x}, v42")
P("v_fma_f32 v42, -v40, v40, v42\nv_max_f32 v42, 0, v42")
P(f"v_cvt_pk_bf16_f32 v42, v42, v42\nv_and_b32 v42, 0xffff0000, v42\nv_add_f32 v42, 0x{f2u(1e-5):x}, v42")
P("v_cvt_pk_bf16_f32 v42, v42, v42\nv_and_b32 v42, 0xffff0000, v42\nv_sqrt_f32 v42, v42")
P("v_cvt_pk_bf16_f32 v44, v40, v42")
P("v_lshlrev_b32 v28, 3, v26")
P(f"s_lshl_b32 {T0}, {T0}, 3\ns_add_u32 {T0}, {T0}, 0x{WS_STATS:x}")
P("s_waitcnt lgkmcnt(0)")
P(f"s_add_u32 {NONCE}, {NONCE}, 1")
XTAG = "s78"
P(f"s_getreg_b32 {XTAG}, hwreg(HW_REG_XCC_ID, 0, 4)\ns_lshl_b32 {XTAG}, {XTAG}, 28\ns_xor_b32 {XTAG}, {XTAG}, {NONCE}")
P(f"v_mov_b32 v45, {XTAG}\nv_mov_b32 v5, {NONCE}")
P(f"s_mov_b32 s56, {T0}\nv_mov_b32 v2, v44\nv_mov_b32 v3, v45\nv_mov_b32 v25, v28")
P("v_lshlrev_b32 v26, 3, v27\nv_lshlrev_b32 v27, 3, v0")
P(f"s_lshl_b32 {T0}, {W}, 8\ns_add_u32 {T0}, {T0}, 0x{L_CSX:x}")
P(f"v_lshl_add_u32 v28, v0, 2, {T0}")
P(f"v_add_u32 v29, 0x{L_EX1:x}, v27")
GLOAD = f"buffer_load_dwordx2 {v(GR, 2)}, v26, {rWS}, {SG} offen sc1"
CSIG, CPK, CPC = 30, 31, 3
P(f"s_lshl_b32 {T0}, {W}, 2\ns_add_u32 {T0}, {T0}, 0x{L_PRG:x}\nv_mov_b32 {v(CSIG)}, {T0}")
P(f"v_and_b32 {v(CPK)}, 3, v0\nv_lshlrev_b32 {v(CPK)}, 2, {v(CPK)}\nv_add_u32 {v(CPK)}, 0x{L_RDY:x}, {v(CPK)}")
stamp(0, "stats")


def p1_x(st, t):
    if OPT["nocomp"]:
        return
    sl = st % 3
    P(f"ds_read_b128 {v(XR + 16 * st + 4 * t, 4)}, {v(XA + t + (4 if sl == 2 else 0))} offset:{(sl % 2) * 32 * K}")
    lg.add(("x", st, t))


def p1_w(st, t, b):
    if OPT["nocomp"]:
        return
    sl = st % 3
    a = WA + (b & 1) + (2 if sl == 2 else 0)
    off = (sl % 2) * 32 * K + 16 * K + (b >> 1) * 8 * K + t * 2048
    f = WR + ((t & 1) * 4 + b) * 4
    tr(f, a, off, None)
    tr(f + 2, a, off + 512, ("w", st, t, b))


def p1_m(st, t, b):
    if OPT["nocomp"]:
        return
    lg.wait(("w", st, t, b))
    assert ("x", st, t) not in lg.q
    f = WR + ((t & 1) * 4 + b) * 4
    c = "0" if (st == 0 and t == 0) else v(ACC + 16 * b, 16)
    P(f"v_mfma_f32_32x32x16_bf16 {v(ACC + 16 * b, 16)}, {v(f, 4)}, {v(XR + 16 * st + 4 * t, 4)}, {c}")
    r = OPT.get(f"r{st}", 0) or OPT["rall"]
    if r:
        P(f"s_nop {r - 1}")


P("s_barrier ; b0")
stamp(0, "b0")
if OPT["p2only"]:
    P("s_branch L_c2")
p1_x(0, 0)
for b in range(4):
    p1_w(0, 0, b)
P("s_mov_b32 exec_lo, 1\ns_mov_b32 exec_hi, 1")
P(f"buffer_store_dwordx2 v[2:3], v25, {rWS}, s56 offen sc1")
P("s_mov_b64 exec, -1")
P(f"v_add_u32 {v(WA + 5)}, 0x{88 * K:x}, {v(WA + 1)}")
LOG2E = 1.4426950408889634
C1 = -2 * LOG2E * math.sqrt(2 / math.pi)
C2 = C1 * 0.044715
GCHK = f"v_xor_b32 v27, {XTAG}, {v(GR + 1)}\nv_lshlrev_b32 v28, 4, v27\nv_cmp_ne_u32 vcc, 0, v28"
EXR = (22, 26)
side1 = [f"v_cmp_ne_u32 vcc, 0, v27", f"s_mov_b32 {T0}, 0x01000100", f"v_perm_b32 {v(XE)}, {v(GR)}, {v(GR)}, {T0}",
         "s_or_b32 s57, vcc_lo, vcc_hi", f"v_xor_b32 {v(XE)}, 0x80008000, {v(XE)}", f"v_lshrrev_b32 {v(XE + 1)}, 16, {v(GR)}",
         f"v_and_b32 {v(SD)}, 0xffff0000, {v(GR)}", f"v_rcp_f32 {v(RS)}, {v(SD)}", f"v_mov_b32 {v(SD + 1)}, {v(SD)}",
         f"v_mul_f32 {v(K1)}, 0x{f2u(C1):x}, {v(RS)}", f"v_mul_f32 {v(K2)}, {v(RS)}, {v(RS)}", f"v_mul_f32 {v(RL)}, 0x{f2u(LOG2E):x}, {v(RS)}",
         f"v_mul_f32 {v(K2)}, {v(K2)}, {v(RS)}", f"v_mov_b32 {v(RS + 1)}, {v(RS)}", f"v_mul_f32 {v(K2)}, 0x{f2u(C2):x}, {v(K2)}",
         f"v_mov_b32 {v(K1 + 1)}, {v(K1)}", f"v_mov_b32 {v(RL + 1)}, {v(RL)}", f"v_mov_b32 {v(K2 + 1)}, {v(K2)}"]
for st in range(8):
    for t in range(3):
        for b in range(4):
            p1_m(st, t, b)
            if st == 7 and t == OPT["gt"] and b == 0:
                P("s_waitcnt vmcnt(0)")
                P(GCHK)
                retry("L_gr", GLOAD, GCHK)
            elif st == 7 and t >= OPT["gt"]:
                for _ in range(3 if OPT["gt"] == 1 else 6):
                    if side1:
                        P(side1.pop(0))
            if b == 0:
                p1_x(st, t + 1)
            p1_w(st, t + 1, b)
    assert st < 7 or not side1
    p1_m(st, 3, 0)
    if st == 2 + OPT["chl"] + OPT["csd"]:
        P("ds_read_b32 v4, v28")
        lg.add(None)
    p1_m(st, 3, 1)
    if st == 5 + OPT["gl"]:
        P(GLOAD)
    lg.drain()
    if st == 7:
        stamp(0, "c8")
    P(f"s_barrier ; b{st + 1}")
    if st == 6:
        stamp(0, "b7")
    if st < 7:
        p1_x(st + 1, 0)
        p1_w(st + 1, 0, 0)
        p1_w(st + 1, 0, 1)
        p1_m(st, 3, 2)
        if st == 2 + OPT["chl"] + OPT["csd"] and not OPT["nst"] & 2:
            P(f"buffer_store_dwordx2 v[4:5], v27, {rWS}, {SCS2} offen {OPT['saux'] or ''}")
        if st == OPT["touch"] - 1:
            P(f"buffer_load_dword v8, v6, {rW2}, 0 offen\nbuffer_load_dword v9, v7, {rWO}, 0 offen")
        p1_w(st + 1, 0, 2)
        p1_w(st + 1, 0, 3)
        p1_m(st, 3, 3)
    else:
        P(f"v_mov_b32 v27, s57\ns_mov_b64 exec, 1\nds_write_b32 {v(CSIG)}, v27 offset:{L_FAST - L_PRG}\ns_mov_b64 exec, -1")
        lg.add(None)
        for b in range(4):
            P(f"ds_read_b64 {v(WR + 2 * b, 2)}, v29 offset:{512 * b}")
            lg.add(("ex", b))
        p1_m(st, 3, 2)
        p1_m(st, 3, 3)
        for b in range(4):
            lg.wait(("ex", b))
            P(f"v_mfma_f32_32x32x8bf16_1k {v(ACC + 16 * b, 16)}, {v(WR + 2 * b, 2)}, {v(XE, 2)}, {v(ACC + 16 * b, 16)}")
stamp(0, "b8")
if OPT["p1only"]:
    dump(0)
    P("s_endpgm")
    DIAG = 0
stamp(0, "ex1")

TT, UU = 32, 48


def pairs(fmt, a):
    for p in range(8):
        P(fmt.format(T=v(TT + 2 * p, 2), A=v(a + 2 * p, 2)))


def singles(fmt):
    for r in range(16):
        P(fmt.format(T=v(TT + r)))


def cvt(dst, src=TT):
    for p in range(8):
        P(f"v_cvt_pk_bf16_f32 {v(dst + p)}, {v(src + 2 * p)}, {v(src + 2 * p + 1)}")


def epi_gelu(b, base, k, rdy=None, prev=None, last=True):
    a = ACC + 16 * b
    if rdy:
        peek(CPK, 28)
    pairs("v_pk_mul_f32 {T}, {A}, {A}", a)
    pairs("v_pk_fma_f32 {T}, {T}, %s, %s" % (v(K2, 2), v(K1, 2)), a)
    pairs("v_pk_mul_f32 {T}, {T}, {A}", a)
    if prev:
        signal(CSIG, 27, prev, True)
    singles("v_exp_f32 {T}, {T}")
    pairs("v_pk_fma_f32 {T}, {T}, %s, %s" % (v(SD, 2), v(SD, 2)), a)
    singles("v_rcp_f32 {T}, {T}")
    pairs("v_pk_mul_f32 {T}, {T}, {A}", a)
    cvt(a)
    if rdy:
        await_(CPK, 28, rdy, peeked=True)
    for h in range(2 if not OPT["nods"] else 0):
        P(f"ds_write_b128 v26, {v(a + 4 * h, 4)} offset:{base - L_HS + (2 * b + h) * 4096}")
        lg.add(None)
    if last:
        signal(CSIG, 27, k, True)


def epi_phi(b, dst):
    a = ACC + 16 * b
    pairs("v_pk_mul_f32 {T}, {A}, %s" % v(RL, 2), a)
    singles("v_exp_f32 {T}, {T}")
    pairs("v_pk_fma_f32 {A}, {A}, %s, 1.0 op_sel_hi:[1,1,0]" % v(RS, 2), a)
    for r in range(16):
        P(f"v_med3_f32 {v(TT + r)}, {v(TT + r)}, {v(a + r)}, 1.0")
    pairs("v_pk_add_f32 {T}, {T}, %s" % EPS2, a)
    cvt(dst)


def epi_lin(b, dst):
    a = ACC + 16 * b
    pairs("v_pk_mul_f32 {T}, {A}, %s" % v(RS, 2), a)
    cvt(dst)


AY, AS, AR = 64, 192, 128
RG = OPT["ring"]
NST = 30
WB, VA, FD, VF, XW, CPC2, TA, TB_, TC, XW2 = 96, 102, 104, 106, 108, 112, 113, 114, 115, 116
FHB = f"buffer_load_dword {v(FD)}, {v(VF)}, {rWS}, {SFHB} offen sc1"
FHA = f"buffer_load_dword {v(FD)}, {v(VF)}, {rWS}, {SFHA} offen sc1"
FH1 = f"buffer_load_dword {v(FD)}, {v(VF)}, {rWS}, s44 offen sc1"
FO = f"buffer_load_dword {v(FD + 1)}, {v(VF + 1)}, {rWS}, {SFO} offen sc1"
HBC = f"v_cmp_ne_u32 vcc, {NONCE}, {v(FD)}"
vm = Q("vmcnt", 63)


def aload(n, ks):
    if n >= NST or (OPT["noa"] and n >= RG):
        return
    P(f"buffer_load_dwordx4 {v(AR + 8 * (n % RG) + 4 * ks, 4)}, {v(VA + (n % 2 if n >= 16 else n >> 3))}, {rWS}, s{36 + (n & 7) if n < 16 else (8 + n - 16 if n < 22 else 36 + (n >> 1))} offen offset:{1024 * ks} {OPT['aaux'] or ''}")
    vm.add(("a", n, ks))


PRM = OPT["prime"]
def prime():
    for n in range(PRM):
        aload(n, 0)
        aload(n, 1)


nchk = [0]
def checkpoint():
    if not OPT["early"]:
        return
    nchk[0] += 1
    l = f"L_ck{nchk[0]}"
    P(f"s_getreg_b32 {T3}, hwreg(HW_REG_IB_STS, 0, 4)\ns_or_b32 {T3}, {T3}, {PRIMED}\ns_cbranch_scc1 {l}_x")
    P(f"s_waitcnt vmcnt(0)\n{HBC}\ns_cbranch_vccnz {l}_r")
    prime()
    P(f"s_mov_b32 {PRIMED}, 1")
    P.label(l + "_x")
    cold.append(f"{l}_r:\n{FHB}\ns_branch {l}_x")


def setup2():
    global P
    keep, P = P, Prog()
    P(f"v_and_b32 {v(VF + 1)}, 31, v0\nv_lshlrev_b32 {v(VF + 1)}, {2 + FX}, {v(VF + 1)}\nv_and_b32 {v(VF)}, {28 << FX}, {v(VF + 1)}")
    waddr(WB, TA, TB_, 2)
    P(f"v_add_u32 {v(WB)}, {SK12}, {v(WB)}\nv_xor_b32 {v(WB + 1)}, 64, {v(WB)}")
    for k in (1, 2):
        P(f"v_add_u32 {v(WB + 2 * k)}, 0x{64 * K * k:x}, {v(WB)}\nv_add_u32 {v(WB + 2 * k + 1)}, 0x{64 * K * k:x}, {v(WB + 1)}")
    P(f"v_lshrrev_b32 {v(TA)}, 1, {SK12}\nv_add_u32 {v(VA)}, {v(TA)}, {v(VH)}\nv_add_u32 {v(VA + 1)}, 0x1000, {v(VA)}")
    P(f"v_lshrrev_b32 {v(TA)}, 5, v0\nv_and_b32 {v(TB_)}, 7, v0\nv_xor_b32 {v(TA)}, {v(TA)}, {v(TB_)}\nv_lshlrev_b32 {v(TA)}, 4, {v(TA)}")
    P(f"v_and_b32 {v(TB_)}, 31, v0\nv_lshl_or_b32 {v(TA)}, {v(TB_)}, 8, {v(TA)}\nv_add_u32 {v(XW)}, {SXW}, {v(TA)}")
    for q in range(1, 4):
        P(f"v_xor_b32 {v(XW + q)}, {32 * q}, {v(XW)}")
    P(f"v_add_u32 {v(CPC2)}, 16, {v(CPK)}")
    for q in range(4):
        P(f"v_add_u32 {v(XW2 + q)}, {SXS}, {v(XW + q)}")
    lines, P = P.lines, keep
    return lines


def pass2(nb):
    side = setup2()
    n = 32 * nb
    def rd(m):
        if m >= n:
            return
        step, b = divmod(m, nb)
        off = CH(step >> 2) - 88 * K + (step & 3) * 2048
        f = WR + (m % 8) * 4
        tr(f, WA + 4 + b, off, None)
        tr(f + 2, WA + 4 + b, off + 512, ("p2", m))
    for m in range(7):
        rd(m)
    for m in range(n):
        step, b = divmod(m, nb)
        lg.wait(("p2", m))
        c = "0" if step == 0 else v(ACC + 16 * b, 16)
        P(f"v_mfma_f32_32x32x16_bf16 {v(ACC + 16 * b, 16)}, {v(WR + (m % 8) * 4, 4)}, {v(XR + 4 * step, 4)}, {c}")
        rd(m + 7)
        for _ in range(2 if nb == 1 else 1):
            if side and m >= 2 and not OPT["noside"]:
                P(side.pop(0))
        if m == max(6, n - OPT["smp"]) and not OPT["nosamp"]:
            P(FHB)
        if m == 5 and OPT["tlb"] == 1:
            P(f"buffer_load_dword {v(TC)}, {v(VF)}, {rWS}, {SBASE} offen sc1")
        if m == n - 6:
            if OPT["fill"] == 4:
                P("s_waitcnt vmcnt(0)" if OPT["nosamp"] else "s_waitcnt vmcnt(1)")
            for bb in range(nb):
                lg.room()
                P(f"ds_read_b64 {v(12 + 2 * bb, 2)}, v29 offset:{L_EX2 - L_EX1 + 512 * bb}")
                lg.add(("ex2", bb))
    while side:
        P(side.pop(0))
    checkpoint()
    lg.drain()
    signal(CSIG, 27, 8)
    for b in range(nb):
        P(f"v_mfma_f32_32x32x8bf16_1k {v(ACC + 16 * b, 16)}, {v(12 + 2 * b, 2)}, {v(XE, 2)}, {v(ACC + 16 * b, 16)}")


P(f"s_cmp_eq_u32 {TYPE}, 0")
P("s_cbranch_scc0 L_cB")
P(f"v_and_b32 v26, 31, v0\nv_lshrrev_b32 v27, 5, v0\ns_lshl_b32 {T0}, {W}, 5")
P(f"v_add_u32 v26, {T0}, v26\nv_mul_u32_u24 v26, {TROW}, v26\nv_lshl_add_u32 v26, v27, 3, v26\nv_add_u32 v26, 0x{TBUF:x}, v26")
for b in range(4):
    u = UU + 8 * (b & 1)
    (epi_phi if b < 2 else epi_lin)(b, u)
    for q in range(4):
        P(f"ds_write_b64 v26, {v(u + 2 * q, 2)} offset:{64 * b + 16 * q}")
    if OPT["fill"] == 4 and b == OPT["fo"]:
        P(f"s_lshl2_add_u32 {T1}, {I_}, {W}\ns_mul_i32 {T1}, {T1}, {TB_STRIDE}\ns_lshl_b32 {T2}, {C_}, 12\ns_add_u32 {T1}, {T1}, {T2}\ns_add_u32 {T1}, {T1}, 0x{WS_HA + 86 * K:x}")
        P(f"v_lshlrev_b32 v16, 7, v0\nv_and_b32 v16, 0xfff, v16\nbuffer_load_dword v18, v16, {rWS}, {T1} offen")
    if "st0" in OPT:
        stamp(0, f"g{b}")
P(f"v_lshrrev_b32 v26, 2, v0\nv_mul_u32_u24 v26, {TROW}, v26\nv_and_b32 v27, 3, v0\nv_lshl_add_u32 v26, v27, 3, v26")
P(f"s_add_u32 {T0}, {T0}, 0x{TBUF:x}")
P(f"v_add_u32 v26, {T0}, v26")
for r in range(4):
    P(f"v_mov_b32 {v(104 + r)}, 0x3f803f80")
P(f"s_lshl_b32 {T0}, {C_}, 4\ns_add_u32 {T0}, {T0}, {I_}\ns_mul_i32 {T0}, {T0}, {KVP_STR}\ns_add_u32 {T0}, {T0}, 0x{WS_KVP:x}")
P(f"s_lshl_b32 {T1}, {W}, 10\ns_add_u32 {T1}, {T1}, {T0}")
P(f"s_lshl_b32 {T2}, {W}, 6\ns_add_u32 {T2}, {T2}, {T0}\ns_add_u32 {T2}, {T2}, 4096")
signal(CSIG, 27, 1, True)
P(f"v_add_u32 {v(CPC)}, 16, {v(CPK)}")
lg.q = []
await_(CPC, 27, 1)
stamp(0, "e1")
def kvm(mm):
    lg.wait(("kv", mm, 1))
    P(f"v_mfma_f32_16x16x32_bf16 v[96:99], {v(ACC + 8 * mm, 4)}, {v(ACC + 8 * mm + 4, 4)}, {'0' if mm == 0 else 'v[96:99]'}")
    P(f"v_mfma_f32_16x16x32_bf16 v[100:103], {v(ACC + 8 * mm, 4)}, v[104:107], {'0' if mm == 0 else 'v[100:103]'}")
for m in range(4):
    for o in range(2):
        f = ACC + 8 * m + 4 * o
        tr(f, 26, m * 32 * TROW + 128 * o, None)
        tr(f + 2, 26, (m * 32 + 16) * TROW + 128 * o, ("kv", m, o))
    if m >= 2:
        kvm(m - 2)
kvm(2)
kvm(3)
P(f"v_mov_b32 v104, {NONCE}")
for h in range(4):
    P(f"s_mov_b32 {T0}, 0x0706050{h}")
    P(f"v_perm_b32 {v(96 + h)}, {v(96 + h)}, v104, {T0}\nv_perm_b32 {v(100 + h)}, {v(100 + h)}, v104, {T0}")
P(f"buffer_store_dwordx4 v[96:99], {v(VH)}, {rWS}, {T1} offen sc1")
P("s_mov_b32 exec_lo, 0x00010001\ns_mov_b32 exec_hi, 0x00010001")
P(f"buffer_store_dwordx4 v[100:103], v0, {rWS}, {T2} offen sc1")
P("s_mov_b64 exec, -1")
signal(CSIG, 27, 2)
stamp(0, "kv")
await_(CPK, 27, 1)
stamp(0, "b10")
P("s_branch L_p2")
P.label("L_cB")
lg.q = []
P(f"s_lshl_b32 {T0}, {W}, 10\ns_add_u32 {T0}, {T0}, 0x{L_HS:x}")
P(f"v_add_u32 v26, {T0}, {v(VH)}")
if OPT["fill"] == 4:
    hblock2(T1)
    P(f"s_lshl2_add_u32 {T0}, {I_}, {W}\ns_mul_i32 {T0}, {T0}, {TB_STRIDE}\ns_add_u32 {T0}, {T0}, 0x{WS_HA:x}")
    P(f"s_lshl_b32 {T1}, {T1}, 11\ns_add_u32 {T1}, {T1}, {T0}\ns_lshl_b32 {T2}, {C_}, 13\ns_add_u32 {T0}, {T0}, {T2}")
    P(f"s_cmp_lt_u32 {C_}, 3")
    sel2(T2, 0xfff, 0x7ff)
    P(f"v_lshlrev_b32 v16, 7, v0\nv_and_b32 v17, {T2}, v16")
for b in range(4):
    epi_gelu(b, L_HS, b + 1, prev=b, last=(b == 3))
    if OPT["fill"] == 4 and b == OPT["f1"]:
        P(f"buffer_load_dword v18, v16, {rWS}, {T0} offen")
    if OPT["fill"] == 4 and b == OPT["f2"]:
        P(f"buffer_load_dword v19, v17, {rWS}, {T1} offen")
    if "st0" in OPT:
        stamp(0, f"g{b}")
stamp(0, "e1")
await_(CPK, 28, 1)
stamp(0, "b10")
P(f"s_cmp_lt_u32 {C_}, 3")
P("s_cbranch_scc1 L_p2")
lg.q = [None] * 3
pass2(1)
stamp(0, "p2")
epi_gelu(0, L_PQ, 10, 2)
stamp(0, "e2")
P("s_branch L_c2")
P.label("L_p2")
lg.q = [None] * 3
pass2(2)
stamp(0, "p2")
P(f"s_cmp_eq_u32 {TYPE}, 0")
P("s_cbranch_scc0 L_cB2")
P(f"s_lshl_b32 {T0}, {W}, 12\ns_add_u32 {T0}, {T0}, 0x{L_PQ:x}")
P(f"v_add_u32 v26, {T0}, {v(VH)}")
lg.q = [None]
peek(CPC2, 28)
for b in range(2):
    epi_phi(b, UU + 8 * b)
    if b == 0:
        await_(CPC2, 28, 2, peeked=True)
    for h in range(2):
        P(f"ds_write_b128 v26, {v(UU + 8 * b + 4 * h, 4)} offset:{(2 * b + h) * 1024}")
    if b == 0:
        checkpoint()
signal(CSIG, 27, 10, True)
stamp(0, "e2")
P("s_branch L_c2")
P.label("L_cB2")
lg.q = [None]
epi_gelu(0, L_PQ, 9, 2, last=False)
checkpoint()
epi_gelu(1, L_PQ, 10, prev=9)
stamp(0, "e2")
P.label("L_c2")
stamp(0, "c2")
stamp(0, "setup")
if OPT["quiet"]:
    dump(0)
    P("s_endpgm")
if OPT["nosamp"]:
    P(FHB)
P(f"s_cmp_lg_u32 {PRIMED}, 0\ns_cbranch_scc1 L_primed")
if not OPT["p2only"]:
    P(f"s_waitcnt vmcnt(0)\n{HBC}")
    retry("L_hb", FHB, HBC)
stamp(0, "hb_seen")
prime()
P.label("L_primed")
vm.q = [("a", n, ks) for n in range(PRM) for ks in range(2)]
gate = {8: OPT["cH1"], 16: OPT["cHA"], 22: OPT["cO"]}
nxt = [PRM, 0]
def aissue(n, k4):
    while nxt[0] < NST:
        nn, ks = nxt
        if nn in gate and (n, k4) < (gate[nn], 1):
            return
        if nn - RG > n or (nn - RG == n and k4 < 2 * ks + 1):
            return
        aload(nn, ks)
        nxt[:] = [nn, 1] if ks == 0 else [nn + 1, 0]
        return


def dec(m):
    if OPT["tl"] and m >= 4 * NST - 8:
        r = m - (4 * NST - 8)
        return NST - 2 + ((r >> 1) & 1), r & 1, r >> 2
    return m >> 2, (m >> 1) & 1, m & 1


def wrd(m):
    if m >= 4 * NST:
        return
    n, ks, ct = dec(m)
    ev = {OPT["gx"]: 4, 76: 5, 88: 6}
    if m + 5 in ev:
        peek(CPK, 20)
    if m == OPT["g2"]:
        signal(CSIG, 21, 12)
    if m == 72:
        signal(CSIG, 21, 13)
    if m == 93:
        peek(CPC2, 19)
    if m in ev:
        if m == OPT["gx"]:
            signal(CSIG, 21, 11)
        await_(CPK, 20, ev[m], peeked=True)
    so = slot_of(2 * n) + ks * 2048
    k = so // (64 * K)
    f = WR + (m % 8) * 4
    if OPT["now"] and m >= 8:
        return
    tr(f, WB + 2 * k + ct, so - 64 * K * k, None)
    tr(f + 2, WB + 2 * k + ct, so - 64 * K * k + 1024, ("w2", m))


def xwrite(acc, base, ct, q):
    lg.room()
    P(f"ds_write_b128 {v(base + q)}, {v(acc + 16 * ct + 4 * q, 4)} offset:{128 * ct}")
    lg.add(("xw", acc))


lg.q = []
stamp(0, "primed")
await_(CPK, 20, 3)
for m in range(7):
    wrd(m)
for n in range(NST):
    acc = AY if n < 22 else AS
    if n == 21:
        P(f"s_cmp_eq_u32 {KH}, 0")
    for k4 in range(4):
        m = 4 * n + k4
        na, ks, ct = dec(m)
        w = vm.need(("a", na, ks)) + " " + (lg.need(("w2", m | 1)) if OPT["w2"] else "") + lg.need(("w2", m))
        if w.strip():
            P("s_waitcnt " + w.strip())
        c = "0" if (n in (0, 22) and ks == 0) else v(acc + 16 * ct, 16)
        if n == 21:
            P(f"s_cbranch_scc0 L_null{k4}")
        P(f"v_mfma_f32_32x32x16_bf16 {v(acc + 16 * ct, 16)}, {v(WR + (m % 8) * 4, 4)}, {v(AR + 8 * (na % RG) + 4 * ks, 4)}, {c}")
        if OPT["tl"] and m >= 4 * NST - 2:
            for q in range(2):
                xwrite(AS, XW2, 0, 2 * (m & 1) + q)
        if n == 21:
            P.label(f"L_null{k4}")
        if k4 == 1:
            for nn, ld, fd, nm in ((8, FH1, FD, "h1"), (16, FHA, FD, "ha"), (22, FO, FD + 1, "o")):
                if n == max(0, gate[nn] - OPT["fl"]) and gate[nn] > 0:
                    P(ld)
                    vm.add("f" + nm)
                if n == gate[nn]:
                    vm.wait("f" + nm)
                    P(f"v_cmp_ne_u32 vcc, {NONCE}, {v(fd)}")
                    retry("L_" + nm, ld, f"v_cmp_ne_u32 vcc, {NONCE}, {v(fd)}")
                    stamp(0, nm + "_seen")
        aissue(n, k4)
        assert nxt[0] > n + 1 or nxt[0] == NST or (nxt[0] == n + 1 and k4 < 3), (n, k4, nxt)
        wrd(m + 7)
        if m == 91:
            await_(CPC2, 19, 13, peeked=True)
        if m >= 91 and (m - 91) % OPT["ys"] == 0 and (m - 91) // OPT["ys"] < 8:
            xwrite(AY, XW, ((m - 91) // OPT["ys"]) >> 2, ((m - 91) // OPT["ys"]) & 3)
        if m == 91 + 7 * OPT["ys"] + OPT["dy"]:
            lg.wait(("xw", AY))
            P("s_barrier ; dY")
    if "st0" in OPT:
        stamp(0, f"n{n}")
stamp(0, "sdone")
for ct in range(1 if OPT["tl"] else 0, 2):
    for q in range(4):
        xwrite(AS, XW2, ct, q)
P("s_setprio 0")
lg.drain()
P("s_barrier ; dS")
P(f"s_or_b32 {T0}, s2, {W}\ns_cmp_eq_u32 {T0}, 0")
P("s_cbranch_scc0 L_cend")
flag_store(T0)
P.label("L_cend")
dump(0)
P("s_endpgm")
flush_cold()
P.label("L_codeend")

body = P.finish()
hdr = f"""; Fused LayerNorm + linear attention + GELU FFN block, one persistent launch (256 workgroups, one per CU).
; Generated by work/gen2.py.  Four waves stream operands into LDS, four waves compute.
; @launch grid=(256,1,1) block=(512,1,1) lds=163840
.amdgcn_target "amdgcn-amd-amdhsa--gfx950"
.text
.globl {KNAME}
.p2align 8
.type {KNAME},@function
{KNAME}:
"""
tail = f"""
.section .rodata,"a"
.p2align 6
.amdhsa_kernel {KNAME}
  .amdhsa_next_free_vgpr 256
  .amdhsa_next_free_sgpr 102
  .amdhsa_accum_offset 256
  .amdhsa_group_segment_fixed_size 0
  .amdhsa_kernarg_size 88
  .amdhsa_user_sgpr_count 2
  .amdhsa_user_sgpr_kernarg_segment_ptr 1
  .amdhsa_system_sgpr_workgroup_id_x 1
  .amdhsa_float_denorm_mode_32 3
.end_amdhsa_kernel
"""
if OPT["diag"]:
    tail += f"; STAMPS0 {' '.join(slots[0])}\n"
sys.stdout.write(hdr + body + tail)
sys.stderr.write(f"pads {P.npad}\n")
```

```python
import sys, os, struct, math
from asmlib import Prog, v, s

KNAME = "recurrent_scan__linear_attn_block__dense_activation_gelu__prompt_kernel"
OPT = dict(diag=0, outaux="sc1", map1=81, spin=16, codepf=1, ldfirst=1, prio=1,
           nA9=3, nA10=7, nB10=8, mf=56, cprio=3, gx=36, n6=2, n7=1, kA=12, lag=8, sp=0, sp0=0, nost=0, slp=2, kvw=0, gprio=3, sA=4, xB=8, fast=1, nt1=2, trow=272, nosamp=0, e1B=4, iB2=2, e1A=20, gd=16, lB2=5, lB1=0, cw=1, tlb=0, fill=0, f1=0, f2=9, fo=0, wsoff=0, wprio=3, l1=9, fence=1, inl=1, w0=4, w1=6, w0c=4, quiet=0, nosig=0, noside=0, nt2=2, wb=0, lB=0, hk1=0, lA0=8, lA=0, kq=2, wbj=0, kA0=12, kA1=8, kA2=0, rotx=1, spx=0, pB=10, iB=0, ring=4, nods=0, lsl=0, yB=12, zB=4, yB1=2, zB1=4, aaux="sc1", ahot=0, g2=52, rot2=1, pace=0, pace1=0, dy=2, ys=1, w2=1, p2only=0, plain=0, stouch=0, nst=0, saux="sc1", csprio=3, early=0, map2=81, smp=28, noa=0, now=0, la=7, touch=0, ltouch=1, gl=0, eb=1, chl=0, preA=0, tl=1, late=0, lw=0, r0=0, r1=0, r2=0, rall=0, chx=0, s1late=0, nostat=0, csd=0, gt=2, nar=1, seq=0, kslp=2, fsx=0, pg=0, fprio=1, f6=0, prime=4, cH1=4, cHA=12, cO=18, fl=4, ft=1, exprio=1, stdiag=0, p1only=0, nocomp=0, norot=0, noload=0, nocs=0)
for a in sys.argv[1:]:
    k, val = a.split("=")
    OPT[k] = val if not val.lstrip("-").isdigit() else int(val)
DIAG = OPT["diag"]
assert OPT["gx"] <= 36


def f2u(x):
    return struct.unpack("<I", struct.pack("<f", x))[0]


K = 1024
WS_STATS = 0x1000
FX = 5 if OPT["fsx"] else 0
LN = 128 << FX
WS_FLAGS = 0xA00000 if FX else 0x8000
FL_HB, FL_HA, FL_O, FL_H1 = 0, 64, 128, 192
WS_KVP = 0x10000
KVP_STR = 4352
WS_CS = 0xA0000
WS_HA = 0x140000 + OPT["wsoff"] * 0x100000
TB_STRIDE = 118 * K
WS_DIAG = 0x900000
WS_SIZE = (0xB00000 if FX else 0xA00000) + OPT["wsoff"] * 0x100000
def CH(q):
    return 96 * K + 8 * K * q if q < 7 else 88 * K
TBUF = 52 * K
TROW = OPT["trow"]
L_EX1 = 152 * K
L_CSX = 156 * K
L_RDY = 154 * K
L_PRG = L_RDY + 16
L_TAG = L_RDY + 32
L_FAST = L_RDY + 48
L_EX2 = 155 * K
L_KT = 156 * K
L_PQ = 72 * K
L_HS = 52 * K
L_XY = 112 * K
L_XS0, L_XS1 = 72 * K, 144 * K
def slot_of(p):
    if p < 18:
        return p * 4 * K
    if p < 34:
        return CH((p - 18) >> 1) + (p & 1) * 4 * K
    if p < 38:
        return 72 * K + (p - 34) * 4 * K
    return slot_of(p - 38)

rX, rP1, rP2, rWS, rW2, rWO, rA, rB = (s(n, 4) for n in (4, 8, 12, 16, 20, 24, 28, 32))
P_X, P_QKV, P_WO, P_W1, P_B1, P_W2, P_B2, P_OUT, P_WS = 36, 38, 40, 44, 46, 48, 50, 52, 56
NONCE, W, I_, J_, C_, TYPE, RHO, TB2, CT, RHO2 = (s(n) for n in range(58, 68))
T0, T1, T2, T3 = (s(n) for n in range(68, 72))

P = Prog()


class Q:
    def __init__(self, name, mx):
        self.q, self.name, self.mx = [], name, mx

    def room(self):
        if len(self.q) >= self.mx:
            P(f"s_waitcnt {self.name}({self.mx - 1})")
            self.q = self.q[len(self.q) - (self.mx - 1):]

    def add(self, tag=None):
        self.q.append(tag)

    def need(self, tag):
        if tag not in self.q:
            return ""
        idx = max(i for i, t in enumerate(self.q) if t == tag)
        n = len(self.q) - 1 - idx
        assert n <= self.mx, (self.name, n)
        self.q = self.q[idx + 1:]
        return f"{self.name}({n})"

    def wait(self, tag):
        t = self.need(tag)
        if t:
            P("s_waitcnt " + t)

    def drain(self, force=False):
        if self.q or force:
            P(f"s_waitcnt {self.name}(0)")
        self.q = []


slots = [{}, {}]
def stamp(role, name):
    if not DIAG:
        return
    want = str(OPT.get(f"st{role}", "")).split(",")
    if want != [""] and name not in want and name not in ("start", "end"):
        return
    n = slots[role].setdefault(name, len(slots[role]))
    if DIAG >= 3:
        assert n < 9, (role, name)
        P(f"{'s_memtime' if DIAG == 4 else 's_memrealtime'} s[{80 + 2 * n}:{81 + 2 * n}]")
        return
    assert n < 16, (role, name)
    P(f"{'s_memtime' if DIAG == 2 else 's_memrealtime'} s[96:97]\ns_waitcnt lgkmcnt(0)\ns_mov_b32 s{80 + n}, s96")


def sreg(r):
    return int(r[2:r.index(":")])


def srd(r, ptr, size):
    n = sreg(r)
    P(f"s_mov_b32 s{n}, s{ptr}\ns_mov_b32 s{n+1}, s{ptr+1}\ns_mov_b32 s{n+2}, 0x{size:x}\ns_mov_b32 s{n+3}, 0x20000")


def sel2(dst, a, b):
    P(f"s_mov_b32 {dst}, 0x{b:x}\ns_cmov_b32 {dst}, 0x{a:x}")


cold = []


def flush_cold():
    for t in cold:
        P(t)
    cold.clear()


def spin_text(lbl, load, check):
    t = f"s_mov_b32 {T3}, {1 << OPT['spin']}\n{lbl}:\n{load}\ns_waitcnt vmcnt(0)\n{check}\n"
    t += f"s_sub_u32 {T3}, {T3}, 1\ns_cbranch_scc1 {lbl}_x\ns_cbranch_vccz {lbl}_x\n"
    n = OPT["kslp"] if lbl in ("L_kv", "L_cs", "L_gr") else OPT["slp"]
    if n:
        t += f"s_sleep {n}\n"
    return t + f"s_branch {lbl}"


def spin(lbl, load, check):
    P(spin_text(lbl, load, check))
    P.label(lbl + "_x")


def retry(lbl, load, check):
    if OPT["inl"]:
        P(f"s_cbranch_vccz {lbl}_x")
        spin(lbl, load, check)
        return
    P(f"s_cbranch_vccnz {lbl}_s")
    P.label(lbl + "_x")
    cold.append(f"{lbl}_s:\n" + spin_text(lbl, load, check))


HX = "row"
FAR = "s46"
nrow = [0]
def row_store(text, nt=0):
    if not OPT["fast"] or nt == 2:
        P(text + " sc1")
        return
    nrow[0] += 1
    l = f"L_r{nrow[0]}"
    P(f"s_cmp_lg_u32 {FAR}, 0\ns_cbranch_scc1 {l}\n{text} {'nt' if nt else ''}\n{l}_x:")
    cold.append(f"{l}:\n{text} sc1\ns_branch {l}_x")


def flag_store(sreg_off, va=26, aux="sc1"):
    P(f"v_mov_b32 {v(va)}, {NONCE}\nv_mov_b32 {v(va+1)}, 0")
    P("s_mov_b64 exec, 1")
    if aux == "row":
        row_store(f"buffer_store_dword {v(va)}, {v(va+1)}, {rWS}, {sreg_off} offen")
    else:
        P(f"buffer_store_dword {v(va)}, {v(va+1)}, {rWS}, {sreg_off} offen {aux}")
    P("s_mov_b64 exec, -1")


def signal(vaddr, vtmp, k, fence=False):
    if fence and OPT["fence"]:
        lg.drain(force=True)
    P(f"v_mov_b32 {v(vtmp)}, {k}\ns_mov_b64 exec, 1\nds_write_b32 {v(vaddr)}, {v(vtmp)}\ns_mov_b64 exec, -1")
    lg.add(None)


nwait = [0]
def peek(vaddr, vd):
    lg.room()
    P(f"ds_read_b32 {v(vd)}, {v(vaddr)}")
    lg.add(("peek", vd))


def await_(vaddr, vd, k, peeked=False):
    nwait[0] += 1
    lbl = f"L_w{nwait[0]}"
    if not peeked:
        peek(vaddr, vd)
    lg.wait(("peek", vd))
    P(f"v_cmp_gt_u32 vcc, {k}, {v(vd)}")
    loop = (f"s_mov_b32 {T3}, {1 << 20}\n{lbl}:\nds_read_b32 {v(vd)}, {v(vaddr)}\ns_sub_u32 {T3}, {T3}, 1\ns_waitcnt lgkmcnt(0)\n"
            f"v_cmp_gt_u32 vcc, {k}, {v(vd)}\ns_cbranch_scc1 {lbl}_x\ns_cbranch_vccnz {lbl}")
    if OPT["inl"]:
        P(f"s_cbranch_vccz {lbl}_x\n{loop}")
    else:
        P(f"s_cbranch_vccnz {lbl}_s")
        cold.append(f"{lbl}_s:\n{loop}\ns_branch {lbl}_x")
    P.label(lbl + "_x")


def hblock2(dst):
    P(f"s_lshl_b32 {dst}, {C_}, 1\ns_add_u32 {T3}, {C_}, 3\ns_min_u32 {dst}, {dst}, {T3}\ns_add_u32 {dst}, {dst}, 32")


def waddr(dst, t1, t2, hshift):
    P(f"v_lshrrev_b32 {v(t1)}, 5, v0\nv_bfe_u32 {v(t2)}, v0, 2, 2\nv_lshl_add_u32 {v(t1)}, {v(t1)}, {hshift}, {v(t2)}")
    P(f"v_lshlrev_b32 {v(dst)}, 7, {v(t1)}")
    P(f"v_bfe_u32 {v(t1)}, v0, 3, 1\nv_lshl_or_b32 {v(dst)}, {v(t1)}, 6, {v(dst)}")
    P(f"v_bfe_u32 {v(t1)}, v0, 4, 1\nv_lshl_or_b32 {v(dst)}, {v(t1)}, 5, {v(dst)}")
    P(f"v_and_b32 {v(t1)}, 3, v0\nv_lshl_or_b32 {v(dst)}, {v(t1)}, 3, {v(dst)}")


def tr(dst, addr, off, tag):
    assert 0 <= off < 65536, off
    lg.room()
    P(f"ds_read_b64_tr_b16 {v(dst, 2)}, {v(addr)} offset:{off}")
    lg.add(tag)


def dump(role):
    if not DIAG:
        return
    P("s_waitcnt vmcnt(0)")
    stamp(role, "end")
    P("s_waitcnt lgkmcnt(0)")
    for n in range(16):
        P(f"v_mov_b32 {v(32 + n)}, {s(80 + n) if DIAG < 3 else (s(80 + 2 * n) if n < 10 else ('s100' if n == 15 else 0))}")
    if role == 1 and DIAG >= 3 and OPT.get("xcc"):
        P(f"s_getreg_b32 {T0}, hwreg(HW_REG_XCC_ID, 0, 4)\ns_min_u32 {T1}, s46, 1\ns_lshl4_add_u32 {T0}, {T1}, {T0}\nv_mov_b32 v45, {T0}")
    P(f"s_lshl_b32 {T0}, s2, 3\ns_add_u32 {T0}, {T0}, {W}\ns_lshl_b32 {T0}, {T0}, 6\ns_add_u32 {T0}, {T0}, 0x{WS_DIAG + role * 256:x}")
    P("v_mov_b32 v26, 0\ns_mov_b64 exec, 1")
    for n in range(4):
        P(f"buffer_store_dwordx4 {v(32 + 4 * n, 4)}, v26, {rWS}, {T0} offen offset:{16 * n}")


P("s_cmp_ge_u32 s2, 256")
P("s_cbranch_scc1 L_end")
if DIAG >= 3:
    P("s_memrealtime s[100:101]")
P("s_load_dwordx16 s[36:51], s[0:1], 0")
P("v_lshrrev_b32 v1, 6, v0")
P("v_and_b32 v0, 63, v0")
P(f"v_lshlrev_b32 v2, 2, v1\nv_add_u32 v2, 0x{L_RDY:x}, v2\nv_mov_b32 v3, 0\nds_write_b32 v2, v3")
if OPT["map1"] == 81:
    P(f"s_lshr_b32 {T3}, s2, 7\nv_readfirstlane_b32 {T2}, v1\ns_and_b32 {I_}, s2, 7\ns_bfe_u32 {J_}, s2, 0x40003")
    P(f"s_lshl2_add_u32 {RHO}, {T3}, {J_}\ns_and_b32 {T1}, s2, 3\ns_lshl1_add_u32 {I_}, {I_}, {T3}\ns_add_u32 {RHO}, {RHO}, {T1}\ns_and_b32 {RHO}, {RHO}, 7")
elif OPT["map1"] == 24:
    P(f"s_lshr_b32 {T3}, s2, 5\nv_readfirstlane_b32 {T2}, v1\ns_and_b32 {I_}, s2, 4\ns_bfe_u32 {T1}, s2, 0x20003\ns_and_b32 {J_}, s2, 3")
    P(f"s_lshl1_add_u32 {I_}, {I_}, {T3}\ns_lshl2_add_u32 {J_}, {J_}, {T1}\ns_lshl1_add_u32 {RHO}, {T1}, {T3}\ns_and_b32 {T1}, s2, 1\ns_add_u32 {RHO}, {RHO}, {T1}\ns_and_b32 {RHO}, {RHO}, 7")
else:
    P(f"s_lshr_b32 {T3}, s2, 6\nv_readfirstlane_b32 {T2}, v1\ns_and_b32 {I_}, s2, 6\ns_bfe_u32 {T1}, s2, 0x30003\ns_and_b32 {J_}, s2, 1")
    P(f"s_lshl1_add_u32 {I_}, {I_}, {T3}\ns_lshl3_add_u32 {J_}, {J_}, {T1}\ns_lshl1_add_u32 {RHO}, {T3}, {T1}\ns_bfe_u32 {T1}, s2, 0x10001\ns_add_u32 {RHO}, {RHO}, {T1}\ns_and_b32 {RHO}, {RHO}, 7")
P(f"s_and_b32 {W}, {T2}, 3")
def late_args():
    P("s_load_dwordx4 s[52:55], s[0:1], 64")
    P("s_load_dwordx2 s[56:57], s[0:1], 80")
    P(f"s_lshr_b32 {C_}, {J_}, 1\ns_and_b32 {TYPE}, {J_}, 1")
def diag_init():
    if DIAG:
        for n in range(20):
            P(f"s_mov_b32 s{80 + n}, 0")


RHOS, RHOA = "s3", "s47"
def tile2():
    if OPT["map2"] == 42:
        P(f"s_lshr_b32 {T3}, s2, 5\ns_bfe_u32 {TB2}, s2, 0x20001\ns_lshl_b32 {TB2}, {TB2}, 3\ns_add_u32 {TB2}, {TB2}, {T3}")
        P(f"s_bfe_u32 {RHO2}, s2, 0x20003\ns_and_b32 {CT}, s2, 1\ns_lshl_b32 {CT}, {CT}, 2\ns_add_u32 {CT}, {CT}, {RHO2}")
        P(f"s_lshl_b32 {RHO2}, {RHO2}, 1\ns_add_u32 {RHO2}, {RHO2}, {T3}\ns_and_b32 {RHO2}, {RHO2}, 7")
        return
    P(f"s_lshr_b32 {T3}, s2, 6\ns_and_b32 {TB2}, s2, 7\ns_lshl_b32 {TB2}, {TB2}, 2\ns_add_u32 {TB2}, {TB2}, {T3}")
    P(f"s_bfe_u32 {CT}, s2, 0x30003\ns_lshl_b32 {RHO2}, {T3}, 1\ns_add_u32 {RHO2}, {RHO2}, {CT}\ns_and_b32 {RHO2}, {RHO2}, 7")
    P(f"s_add_u32 {RHOS}, {T3}, {CT}\ns_mul_i32 {RHOA}, {T3}, 3\ns_and_b32 {T3}, {CT}, 1\ns_add_u32 {RHOA}, {RHOA}, {T3}")
    if not OPT["rotx"]:
        P(f"s_mov_b32 {RHOS}, {RHO2}\ns_mov_b32 {RHOA}, 0")


P(f"s_cmp_lt_u32 {T2}, 4")
P("s_cbranch_scc1 L_loader")
late_args()
if OPT["codepf"]:
    P("s_getpc_b64 s[32:33]")
    P.label("L_pc")
    P("s_mov_b32 s34, L_codeend-L_pc\ns_mov_b32 s35, 0x20000")
    P(f"s_lshr_b32 {T0}, s2, 3\ns_lshl2_add_u32 {T1}, {T0}, {W}\ns_lshl_b32 {T1}, {T1}, 7\nv_and_b32 v4, 3, v0\nv_lshl_add_u32 v4, v4, 14, {T1}")
    P("buffer_load_dword v31, v4, s[32:35], 0 offen")
P("s_branch L_compute")
P.label("L_loader")

lg = Q("lgkmcnt", 15)
vm = Q("vmcnt", 63)
VX, VP1, VP2, VW2, VBI, LWA, LWB, VL16, SEL, CS, CS2 = 1, 2, 3, 4, 5, 6, 7, 8, 12, 16, 20
RS1, RS32, SX0, SW0, DCOL, SP20, SM, HB0L = (s(n) for n in range(72, 80))
if DIAG < 3:
    diag_init()
    stamp(1, "start")
P("v_lshrrev_b32 v24, 3, v0\nv_and_b32 v25, 7, v0\nv_lshrrev_b32 v26, 4, v0")
P(f"s_and_b32 {T0}, {W}, 1\ns_lshl_b32 {T0}, {T0}, 2\ns_lshl4_add_u32 {SX0}, {I_}, {W}")
P(f"v_add_u32 v27, {T0}, v26\nv_xor_b32 v27, v27, v25\nv_lshlrev_b32 v27, 4, v27\nv_lshl_or_b32 {v(VX)}, v24, 10, v27")
P(f"s_lshl_b32 {SX0}, {SX0}, 13\ns_lshl_b32 {SM}, {W}, 10")
P("s_mov_b32 s6, 0x200000\ns_mov_b32 s7, 0x20000")
SZQ, SZ1 = 512 * 3072, 512 * 2752


def wsetup():
    late_args()
    P(f"s_setprio {OPT['prio']}")
    P(f"s_lshl_b32 {T1}, {C_}, 7\ns_cmp_eq_u32 {TYPE}, 0")
    sel2(RS1, 3072, 2752)
    sel2(DCOL, 1024, 128)
    sel2("s10", SZQ, SZ1)
    P(f"s_cselect_b32 s8, s{P_QKV}, s{P_W1}\ns_cselect_b32 s9, s{P_QKV+1}, s{P_W1+1}\ns_mov_b32 s11, 0x20000")
    P(f"s_cselect_b32 {SW0}, 1024, {T1}\ns_add_u32 {SW0}, {SW0}, {T1}")
    P("v_and_b32 v27, 1, v26\nv_lshlrev_b32 v27, 2, v27\nv_xor_b32 v27, v27, v25\nv_lshlrev_b32 v27, 4, v27")
    P(f"v_mad_u32_u24 {v(VP1)}, v24, {RS1}, v27")
    P(f"s_lshl_b32 {T3}, {W}, 3\ns_mul_i32 {SP20}, {T3}, {RS1}\ns_add_u32 {SW0}, {SW0}, {SP20}\ns_lshl_b32 {RS32}, {RS1}, 5")


def wsetup2():
    hblock2(HB0L)
    P(f"s_lshl_b32 {T0}, {HB0L}, 6\ns_lshl_b32 {T1}, {C_}, 7\ns_cmp_eq_u32 {TYPE}, 0\ns_cselect_b32 {T0}, {T1}, {T0}\ns_add_u32 {SP20}, {SP20}, {T0}")
    P(f"v_lshl_or_b32 {v(VW2)}, v24, 10, v27")


def dma(voff, srdr, soff, tag):
    if OPT["noload"]:
        return
    P(f"buffer_load_dwordx4 {v(voff)}, {srdr}, {soff} offen lds")
    vm.add(tag)


def ks_reg(q):
    P(f"s_add_u32 {T0}, {RHO}, {q}\ns_and_b32 {T0}, {T0}, 7" if q else f"s_mov_b32 {T0}, {RHO}")


def stage(q, mid=None, pre=None):
    sl = (q % 3) * 32 * K
    ks_reg(q)
    P(f"s_lshl_b32 {T1}, {T0}, 7\ns_add_u32 {T1}, {T1}, {SX0}")
    for m in range(4):
        P(f"s_add_u32 m0, {SM}, {sl + 4 * K * m}")
        if m:
            P(f"s_add_u32 {T1}, {T1}, 32768")
        else:
            P(f"s_lshl_b32 {T0}, {T0}, 6")
            if pre:
                pre()
        dma(VX, rX, T1, ("st", q))
    if mid:
        mid()
    P(f"s_mul_i32 {T0}, {T0}, {RS1}\ns_add_u32 {T0}, {T0}, {SW0}")
    for h in range(2):
        if h:
            P(f"s_add_u32 {T0}, {T0}, {RS32}")
        P(f"s_add_u32 m0, {SM}, {sl + 16 * K + 4 * K * h}")
        P(f"s_add_u32 {T1}, {T0}, {DCOL}")
        dma(VP1, rP1, T0, ("st", q))
        P(f"s_add_u32 m0, {SM}, {sl + 24 * K + 4 * K * h}")
        dma(VP1, rP1, T1, ("st", q))


def chunk(q, tag="ch"):
    ks_reg(q)
    P(f"s_lshl_b32 {T0}, {T0}, 6\ns_mul_i32 {T0}, {T0}, {RS1}")
    P(f"s_add_u32 m0, {SM}, {CH(q)}\ns_add_u32 {T0}, {T0}, {SP20}")
    dma(VP1, rP1, T0, tag)
    P(f"s_add_u32 m0, {SM}, {CH(q) + 4 * K}\ns_add_u32 {T0}, {T0}, {RS32}")
    dma(VP1, rP1, T0, tag)


LPA, LPL = "s48", "s49"
LPB, LGB, SCS = "s36", "s37", "s38"
CHR, MID, PQR, D0, D1 = 48, 104, 212, 32, 228


def page_addr(p):
    if p < 32:
        if p % 2 == 0 or page_addr.last != ("b", p >> 1):
            P(f"s_add_u32 {LGB}, {RHO2}, {(p >> 1) & 7}\ns_and_b32 {LGB}, {LGB}, 7\ns_lshl_b32 {LGB}, {LGB}, 17\ns_add_u32 {LGB}, {LGB}, {LPB}")
            page_addr.last = ("b", p >> 1)
        P(f"s_add_u32 {T0}, {LGB}, {(2 * (p >> 4) + (p & 1)) * 32768}")
        return rW2
    elif p < 44:
        P(f"s_add_u32 {T0}, {LPA}, {(p - 32) * 32768}\ns_cmp_ge_u32 {T0}, {LPL}\ns_cselect_b32 {T1}, {11 * 32768}, 0\ns_sub_u32 {T0}, {T0}, {T1}")
        return rW2
    else:
        g, mask, sr, add = (p - 44) >> 2, 3, rWO, 0
    if p % 4 == 0 or page_addr.last != (p >> 2):
        P(f"s_add_u32 {LGB}, {RHOS}, {g}\ns_and_b32 {LGB}, {LGB}, {mask}\ns_lshl_b32 {LGB}, {LGB}, 17\ns_add_u32 {LGB}, {LGB}, {LPB}")
        page_addr.last = p >> 2
    P(f"s_add_u32 {T0}, {LGB}, {(p % 4) * 32768}")
    return sr
page_addr.last = None


def page(p):
    P(f"s_add_u32 m0, {SM}, {slot_of(p)}")
    sr = page_addr(p)
    dma(VW2, sr, T0, ("pg", p))


def stg_reg(p):
    if p < 38:
        return MID + 4 * (p - 18)
    k = p - 38 if p < 43 else p - 39
    return CHR + 4 * k if k < 14 else 184 + 4 * (k - 14)


def lds16(a):
    return f"{v(VL16 + a // (64 * K))}", a % (64 * K)


VP2N = 23
def chunk_stage(q):
    if OPT["nar"] and q == 1:
        P(f"s_cmp_ge_u32 {C_}, 3\ns_cselect_b32 {T0}, {TYPE}, 0\ns_lshl_b32 {T0}, {T0}, 6\ns_not_b32 {T0}, {T0}")
        P(f"v_lshrrev_b32 v27, 3, v0\nv_mul_u32_u24 v27, {RS1}, v27\nv_sub_u32 v28, {v(VP1)}, v27\nv_and_b32 v28, {T0}, v28\nv_add_u32 {v(VP2N)}, v27, v28")
    ks_reg(q)
    P(f"s_lshl_b32 {T0}, {T0}, 6\ns_mul_i32 {T0}, {T0}, {RS1}\ns_add_u32 {T0}, {T0}, {SP20}\ns_add_u32 {T1}, {T0}, {RS32}")
    for h in range(2):
        P(f"buffer_load_dwordx4 {v(CHR + 8 * (q - 1) + 4 * h, 4)}, {v(VP2N if OPT['nar'] else VP1)}, {rP1}, {(T0, T1)[h]} offen")
        vm.add(("ch", q))


def chunk_write(q):
    vm.wait(("ch", q))
    for h in range(2):
        a, off = lds16(CH(q) + 4 * K * h)
        P(f"ds_write_b128 {a}, {v(CHR + 8 * (q - 1) + 4 * h, 4)} offset:{off}")


def page_stage(p):
    sr = page_addr(p)
    P(f"buffer_load_dwordx4 {v(stg_reg(p), 4)}, {v(VW2)}, {sr}, {T0} offen")
    vm.add(("pg", p))


def page_write(p, pace=0):
    so = slot_of(p)
    a, off = (VL16, so) if so < 64 * K else ((VL16 + 1, so - 64 * K) if so < 128 * K else (VL16 + 2, so - 128 * K))
    P(f"ds_write_b128 {v(a)}, {v(stg_reg(p), 4)} offset:{off}")
    if pace:
        P("s_waitcnt lgkmcnt(0)")


stage(0, wsetup, lambda: P(f"s_waitcnt lgkmcnt(0)\ns_mov_b32 s4, s{P_X}\ns_mov_b32 s5, s{P_X+1}"))
if DIAG >= 3:
    diag_init()
    stamp(1, "start")
stamp(1, "st0")
wsetup2()
if not OPT["chl"]:
    chunk(0, "ch0")
P("s_waitcnt lgkmcnt(0)")
P(f"s_load_dword {NONCE}, s[{P_WS}:{P_WS+1}], 0")
srd(rWS, P_WS, WS_SIZE)
srd(rW2, P_W2, 1376 * 1024)
srd(rWO, P_WO, 512 * 1024)
srd(rA, P_B1, 2752)
tile2()
waddr(LWA, 27, 28, 3)
P(f"s_and_b32 {T0}, {W}, 1\ns_lshl_b32 {T0}, {T0}, 6")
P(f"v_xor_b32 {v(LWA)}, {T0}, {v(LWA)}")
P(f"v_add_u32 {v(LWB)}, 0x{CH(0):x}, {v(LWA)}")
P(f"s_lshr_b32 {T0}, {W}, 1\ns_lshl_b32 {T0}, {T0}, 13\ns_add_u32 {T0}, {T0}, {16 * K}")
P(f"v_add_u32 {v(LWA)}, {T0}, {v(LWA)}")
P("v_and_b32 v27, 15, v0\nv_lshlrev_b32 v28, 2, v26\nv_cmp_eq_u32 vcc, v27, v28\nv_mov_b32 v27, 0x3f803f80")
for r in range(4):
    P(f"v_cndmask_b32 {v(SEL + r)}, 0, v27, vcc")
P(f"v_lshl_add_u32 {v(VL16)}, v0, 4, {SM}")
P(f"v_add_u32 {v(VL16+1)}, 0x10000, {v(VL16)}\nv_add_u32 {v(VL16+2)}, 0x20000, {v(VL16)}")
P(f"s_lshl_b32 {LPB}, {W}, 13\ns_lshl_b32 {T1}, {CT}, 7\ns_add_u32 {LPB}, {LPB}, {T1}")
P(f"s_lshl_b32 {LPA}, {RHOA}, 15\ns_add_u32 {LPA}, {LPA}, {LPB}\ns_add_u32 {LPA}, {LPA}, {32 * 32768}\ns_add_u32 {LPL}, {LPB}, {43 * 32768}")
P(f"s_lshl_b32 {SCS}, {J_}, 1\ns_lshr_b32 {T0}, {I_}, 3\ns_add_u32 {SCS}, {SCS}, {T0}\ns_lshl_b32 {SCS}, {SCS}, 2")
P(f"s_add_u32 {SCS}, {SCS}, {W}\ns_lshl_b32 {SCS}, {SCS}, 12\ns_add_u32 {SCS}, {SCS}, 0x{WS_CS:x}")
P(f"s_lshl_b32 {T0}, {C_}, 2\ns_add_u32 {T0}, {T0}, {W}\ns_lshl_b32 {T0}, {T0}, 6")
P(f"s_and_b32 {T1}, {W}, 1\ns_add_u32 {T1}, {T1}, {HB0L}\ns_lshl_b32 {T1}, {T1}, 6")
P(f"s_cmp_eq_u32 {TYPE}, 0\ns_cselect_b32 {T0}, 0x100000, {T0}\ns_cselect_b32 {T1}, 0x100000, {T1}")
P(f"v_mov_b32 v27, {T0}\nv_mov_b32 v28, {T1}\nv_cmp_gt_u32 vcc, 32, v0\nv_and_b32 v29, 31, v0")
P(f"v_cndmask_b32 v27, v28, v27, vcc\nv_lshl_add_u32 v30, v29, 1, v27")
VSIG, VPK = 11, 24
P(f"s_lshl_b32 {T0}, {W}, 2\ns_add_u32 {T0}, {T0}, 0x{L_RDY:x}\nv_mov_b32 {v(VSIG)}, {T0}")
P(f"v_and_b32 {v(VPK)}, 3, v0\nv_lshlrev_b32 {v(VPK)}, 2, {v(VPK)}\nv_add_u32 {v(VPK)}, 0x{L_PRG:x}, {v(VPK)}")
XRES, BRES, VO, SO = 244, 252, 19, "s45"
if OPT["eb"]:
    srd(rB, P_B2, 1024)
    P(f"buffer_load_ushort {v(VBI)}, v30, {rA}, 0 offen")
    P(f"v_and_b32 v28, 7, v0\nv_lshlrev_b32 v28, 4, v28\ns_lshl_b32 {T1}, {CT}, 7")
    P(f"buffer_load_dwordx4 {v(BRES, 4)}, v28, {rB}, {T1} offen")
    vm.add(None)
    vm.add(None)
stamp(1, "setup")
if not OPT["s1late"]:
    stage(1)
if OPT["chl"] and not OPT["chx"] and not OPT["s1late"]:
    chunk(0, ("st", 1))
stamp(1, "issued")
P(f"s_waitcnt lgkmcnt(0)\ns_add_u32 {NONCE}, {NONCE}, 1")
vm.wait("ch0")
vm.wait(("st", 0))
stamp(1, "land")
if OPT["p2only"]:
    P("s_waitcnt vmcnt(0)\ns_barrier")
    signal(VSIG, 27, 6)
    P("s_barrier\ns_barrier")
    dump(1)
    P("s_endpgm")
    lg.q = []
P("s_barrier ; b0")
stamp(1, "b0")
FR = 32


def cs_reads(a, f):
    for t in range(4):
        P(f"ds_read_b64_tr_b16 {v(f + 4 * t, 2)}, {v(a)} offset:{t * 2048}")
        P(f"ds_read_b64_tr_b16 {v(f + 4 * t + 2, 2)}, {v(a)} offset:{t * 2048 + 512}")


def cs_mfma(acc, f):
    for t in range(4):
        P(f"v_mfma_f32_16x16x32_bf16 {v(acc, 4)}, {v(SEL, 4)}, {v(f + 4 * t, 4)}, {'0' if t == 0 else v(acc, 4)}")


CSL = "\n".join(f"buffer_load_dwordx2 {v(32 + 2 * n, 2)}, v29, {rWS}, {SCS} offen offset:{512 * n} sc1" for n in range(8))
CSC = "\n".join([f"v_xor_b32 {v(228 + n)}, {NONCE}, {v(33 + 2 * n)}" for n in range(8)] +
                ["v_or3_b32 v228, v228, v229, v230", "v_or3_b32 v231, v231, v232, v233", "v_or3_b32 v228, v228, v234, v235",
                 "v_or_b32 v228, v228, v231", "v_cmp_ne_u32 vcc, 0, v228"])
nch = 1
for st in range(8):
    CL = OPT["chl"]
    def mid():
        if st == 0:
            P(f"s_setprio {OPT['csprio']}")
            P("s_waitcnt lgkmcnt(0)")
            if not CL:
                cs_reads(LWB, FR + 16)
            cs_mfma(CS, FR)
            if CL:
                P(f"s_setprio {OPT['prio']}")
    if st == 0:
        cs_reads(LWA, FR)
        if OPT["s1late"]:
            stage(1)
            if OPT["chl"]:
                chunk(0, ("st", 1))
    if OPT["chx"] and st == OPT["chx"]:
        chunk(0, None)
    if st == 1 and CL:
        cs_reads(LWB, FR + 16)
    if st <= 5:
        if OPT["late"] >> st & 1:
            P(f"s_waitcnt vmcnt({OPT['lw']})")
        stage(st + 2, mid)
    if st == CL:
        P(f"s_setprio {OPT['csprio']}")
        P(f"s_lshl_b32 {T0}, {W}, 8\ns_add_u32 {T0}, {T0}, 0x{L_CSX:x}")
        P(f"v_lshl_add_u32 v27, v0, 2, {T0}")
        P("s_waitcnt lgkmcnt(0)")
        cs_mfma(CS2, FR + 16)
        P(f"v_permlane32_swap_b32 {v(CS)}, {v(CS2)}")
        P(f"v_add_f32 {v(CS)}, {v(CS)}, {v(CS2)}")
        P(f"ds_write_b32 v27, {v(CS)}")
        P(f"s_setprio {OPT['prio']}")
    if st == CL + 1:
        P("s_waitcnt lgkmcnt(0)")
    if OPT["fill"] == 3 and 1 <= st <= 6:
        if st == 1:
            P(f"s_lshl2_add_u32 s40, {I_}, {W}\ns_mul_i32 s40, s40, {TB_STRIDE}\ns_lshl_b32 {T0}, {J_}, 12\ns_add_u32 s40, s40, {T0}\ns_add_u32 s40, s40, 0x{WS_HA:x}")
        for t in range(6 * (st - 1), min(32, 6 * st)):
            P(f"s_buffer_load_dword s41, {rWS}, s40 offset:{128 * t}")
    if st == 6:
        P("v_lshlrev_b32 v29, 3, v0")
        P(CSL)
        for n in range(8):
            vm.add("cs")
        if OPT["ltouch"]:
            P(f"s_lshl2_add_u32 {T0}, s2, {W}\ns_mul_i32 {T1}, {T0}, {11 * 128}\ns_lshl_b32 {T0}, {T0}, 9")
            P(f"v_min_u32 v27, 10, v0\nv_lshlrev_b32 v27, 7, v27\nv_and_b32 v28, 0x180, v27")
            P(f"buffer_load_dword v20, v27, {rW2}, {T1} offen\nbuffer_load_dword v21, v28, {rWO}, {T0} offen")
            vm.add(None)
            vm.add(None)
        if OPT["f6"]:
            P(f"s_mul_i32 {T0}, {I_}, {4 * TB_STRIDE}\ns_lshl_b32 {T1}, {C_}, 12\ns_add_u32 {T1}, {T1}, {SM}\ns_add_u32 {T1}, {T1}, {86 * K}")
            P(f"s_mul_i32 {T2}, {W}, {TB_STRIDE}\ns_lshl_b32 {T3}, {HB0L}, 11\ns_add_u32 {T2}, {T2}, {T3}")
            P(f"s_cmp_lt_u32 {C_}, 3")
            sel2(T3, 3, 1)
            P(f"s_cmp_eq_u32 {TYPE}, 0\ns_cselect_b32 {T1}, {T1}, {T2}\ns_cselect_b32 {T3}, 3, {T3}")
            sel2(T2, TB_STRIDE, 1024)
            P(f"s_add_u32 {T0}, {T0}, {T1}\ns_add_u32 {T0}, {T0}, 0x{WS_HA:x}")
            P(f"v_lshrrev_b32 v27, 3, v0\nv_and_b32 v27, {T3}, v27\nv_mul_u32_u24 v27, {T2}, v27\nv_and_b32 v28, 7, v0\nv_lshl_add_u32 v27, v28, 7, v27")
            P(f"buffer_load_dword v23, v27, {rWS}, {T0} offen")
            vm.add(None)
        if OPT["ft"]:
            P(f"s_lshl2_add_u32 {T0}, {I_}, {W}\ns_lshl_b32 {T0}, {T0}, 7\ns_lshl_b32 {T1}, {I_}, 7\ns_add_u32 {T1}, {T1}, {FL_O * 128}")
            P(f"v_and_b32 v27, 3, v0\nv_lshl_add_u32 v28, v27, 13, {T0}\nv_mov_b32 v22, {T1}\nv_cmp_eq_u32 vcc, 2, v27\nv_cndmask_b32 v28, v28, v22, vcc")
            P(f"s_mov_b32 {T0}, 0x{WS_FLAGS:x}\nbuffer_load_dword v22, v28, {rWS}, {T0} offen sc1")
            vm.add(None)
    if st == 7:
        P(f"s_setprio {OPT['exprio']}")
        vm.wait("cs")
        stamp(1, "csin")
        P(CSC)
        retry("L_cs", CSL, CSC)
        stamp(1, "csok")
        P("v_add_f32 v32, v32, v34\nv_add_f32 v36, v36, v38\nv_add_f32 v40, v40, v42\nv_add_f32 v44, v44, v46")
        P("v_add_f32 v32, v32, v36\nv_add_f32 v40, v40, v44\nv_add_f32 v32, v32, v40")
        P("v_cvt_pk_bf16_f32 v33, v32, v32\nv_lshlrev_b32 v33, 16, v33\nv_sub_f32 v32, v32, v33\nv_cvt_pk_bf16_f32 v32, v33, v32")
        P("v_cmp_gt_u32 vcc, 32, v0")
        P(f"s_lshl_b32 {T0}, {W}, 9\ns_add_u32 {T0}, {T0}, 0x{L_EX1:x}")
        P(f"v_add_u32 v29, {T0}, v29")
        P(f"v_cndmask_b32 v34, 0, v32, vcc\nv_cndmask_b32 v35, 0, {v(VBI)}, vcc")
        P(f"v_cndmask_b32 v36, v32, 0, vcc\nv_cndmask_b32 v37, {v(VBI)}, 0, vcc")
        P(f"ds_write_b64 v29, v[34:35]\nds_write_b64 v29, v[36:37] offset:{L_EX2 - L_EX1}")
    if st == 7:
        P(f"s_setprio {OPT['prio']}")
    if st >= 6:
        for q in range(nch, nch + OPT[f"n{st}"]):
            chunk_stage(q)
        nch += OPT[f"n{st}"]
    if st < 7:
        vm.wait(("st", st + 1))
    if st == 7:
        P("s_waitcnt lgkmcnt(0)")
        stamp(1, "exw")
    P(f"s_barrier ; b{st + 1}")
    if "st1" in OPT and st < 7:
        stamp(1, f"b{st+1}")
stamp(1, "b8")
if OPT["p1only"]:
    dump(1)
    P("s_endpgm")
    DIAG = 0
for q in range(nch, 8):
    chunk_stage(q)
if not OPT["eb"]:
    srd(rB, P_B2, 1024)
srd(rP2, P_OUT, 2 * K * K)
P(f"v_and_b32 v28, 7, v0\nv_lshlrev_b32 v28, 4, v28\nv_lshrrev_b32 v29, 3, v0\nv_lshl_or_b32 {v(VO)}, v29, 10, v28")
P(f"s_lshl_b32 {SO}, {TB2}, 2\ns_add_u32 {SO}, {SO}, {W}\ns_lshl_b32 {SO}, {SO}, 14\ns_lshl_b32 {T1}, {CT}, 7\ns_add_u32 {SO}, {SO}, {T1}")
P(f"s_add_u32 {T2}, {SO}, 8192")
if not OPT["eb"]:
    P(f"buffer_load_dwordx4 {v(BRES, 4)}, v28, {rB}, {T1} offen")
    vm.add("res")
P(f"buffer_load_dwordx4 {v(XRES, 4)}, {v(VO)}, {rX}, {SO} offen")
P(f"buffer_load_dwordx4 {v(XRES + 4, 4)}, {v(VO)}, {rX}, {T2} offen")
for _ in range(2):
    vm.add("res")
vq8 = list(vm.q)


def stream(seq):
    for p in seq:
        (page if p < 18 else page_stage)(p)


LATE = list(range(38, 43)) + list(range(44, 60))
P(f"s_cmp_eq_u32 {TYPE}, 0")
P("s_cbranch_scc1 L_lA")
SH1, SH2, SF1 = "s4", "s5", "s6"
P(f"v_add_u32 v22, 16, {v(VSIG)}\nv_lshlrev_b32 v23, 4, v0")
P(f"s_lshl_b32 {T0}, {I_}, 2\ns_add_u32 {T0}, {T0}, {W}")
P(f"s_mul_i32 {SH1}, {T0}, {TB_STRIDE}\ns_add_u32 {SH1}, {SH1}, 0x{WS_HA:x}")
P(f"s_lshl_b32 {SH2}, {HB0L}, 11\ns_add_u32 {SH2}, {SH2}, {SH1}\ns_lshl_b32 {T1}, {C_}, 13\ns_add_u32 {SH1}, {SH1}, {T1}")
P(f"s_lshl_b32 {SF1}, {T0}, 5\ns_add_u32 {SF1}, {SF1}, {C_}\ns_lshl_b32 {SF1}, {SF1}, {2 + FX}\ns_add_u32 {SF1}, {SF1}, 0x{WS_FLAGS + FL_HB * LN:x}")


def far():
    P(f"ds_read_b32 v28, {v(VPK)} offset:{L_FAST - L_PRG}\ns_waitcnt lgkmcnt(0)\nv_cmp_ne_u32 vcc, 0, v28\ns_or_b32 {FAR}, vcc_lo, vcc_hi")


def wback(tag):
    if OPT["wbj"] == 0:
        P(f"s_cmp_lg_u32 {W}, 0")
    else:
        P(f"s_xor_b32 {T0}, {J_}, {OPT['wbj'] - 1}\ns_or_b32 {T0}, {T0}, {W}\ns_cmp_lg_u32 {T0}, 0")
    P(f"s_cbranch_scc1 L_wb{tag}\nbuffer_wbl2 sc1\nL_wb{tag}:")


def hstore(k, base, b, sh, tag):
    if k == 1:
        await_(VPK, 28, k)
        far()
    else:
        await_(22, 28, k)
    d = D0 + 8 * (b & 1)
    for u in range(2):
        a = base + (2 * b + u) * 4096
        P(f"ds_read_b128 {v(d + 4 * u, 4)}, {v(VL16 + a // (64 * K))} offset:{a % (64 * K)}")
    if b == 2:
        P(f"s_add_u32 {sh}, {sh}, 4096")
    for u in range(2):
        P(f"s_waitcnt lgkmcnt({1 - u})")
        row_store(f"buffer_store_dwordx4 {v(d + 4 * u, 4)}, v23, {rWS}, {sh} offen offset:{2048 * (b & 1) + 1024 * u}", OPT["nt1"] if tag != "h2" else OPT["nt2"])
        vm.add(tag)


if OPT["fill"] == 1:
    P("v_lshlrev_b32 v25, 7, v0\nv_and_b32 v27, 0xfff, v25")
    P(f"buffer_load_dword v20, v25, {rWS}, {SH1} offen\nbuffer_load_dword v21, v27, {rWS}, {SH2} offen")
    vm.add(None)
    vm.add(None)
mid = list(range(18, 38))
stream(mid[:OPT["e1B"]])
np_ = OPT["e1B"]
for q in range(1, 5):
    chunk_write(q)
hstore(1, L_HS, 0, SH1, "h")
for q in range(5, 8):
    chunk_write(q)
signal(VSIG, 26, 1, True)
for b in range(1, 4):
    stream(mid[np_:np_ + OPT["iB2"]])
    np_ += OPT["iB2"]
    hstore(b + 1, L_HS, b, SH1, "h" if b < 2 else "h1")
signal(VSIG, 26, 2)
stamp(1, "h_st")
vm.wait("h")
flag_store(SF1, aux=HX)
vm.add(None)
stamp(1, "hbflag")
P(f"s_add_u32 {SF1}, {SF1}, {(FL_H1 - FL_HB) * LN}")
stream(range(OPT["xB"]))
vm.wait("h1")
flag_store(SF1, aux=HX)
vm.add(None)
stamp(1, "h1flag")
stream(range(OPT["xB"], 18))
stream(mid[np_:])
P(f"s_sub_u32 {SF1}, {SF1}, {(FL_H1 - FL_HA) * LN}")
P(f"s_cmp_lt_u32 {C_}, 3")
P("s_cbranch_scc0 L_lB1")
vqB = list(vm.q)
restB = {}
for nb in (2, 1):
    if nb == 1:
        P.label("L_lB1")
        vm.q = list(vqB)
    page_addr.last = None
    pre = OPT["lB2"] if nb == 2 else OPT["lB1"]
    stream(LATE[:pre])
    vm.wait(("pg", 17))
    signal(VSIG, 26, 3)
    stamp(1, "staged")
    lg.q = []
    await_(VPK, 28, 8)
    marks = {OPT["w0"]: 0, OPT["w1"]: 1} if nb == 2 else {OPT["w0c"]: 0}
    for n, p in enumerate(range(18, 38)):
        if n in marks:
            lg.q = []
            hstore(9 + marks[n], L_PQ, marks[n], SH2, "h2")
            stamp(1, "h2_st")
        vm.wait(("pg", p))
        page_write(p)
    signal(VSIG, 26, 4, True)
    vm.wait("h2")
    flag_store(SF1, aux=HX)
    vm.add(None)
    stamp(1, "oflag")
    stream(LATE[pre:max(pre, OPT["l1"])])
    vm.wait(("pg", 42))
    restB[nb] = LATE[max(pre, OPT["l1"]):]
    P("s_branch L_l5")
P.label("L_lA")
vm.q = list(vq8)
lg.q = []
page_addr.last = None
SOB = "s44"
P(f"s_mul_i32 {SOB}, {I_}, {4 * TB_STRIDE}\ns_lshl_b32 {T1}, {C_}, 12\ns_add_u32 {SOB}, {SOB}, {T1}")
P(f"s_add_u32 {SOB}, {SOB}, {SM}\ns_add_u32 {SOB}, {SOB}, 0x{WS_HA + 86 * K:x}")
if OPT["fill"] == 1:
    P(f"v_bfe_u32 v25, v0, 3, 2\nv_mul_u32_u24 v25, {TB_STRIDE}, v25\nv_and_b32 v27, 7, v0\nv_lshl_add_u32 v25, v27, 7, v25")
    P(f"buffer_load_dword v20, v25, {rWS}, {SOB} offen")
    vm.add(None)
mid = list(range(18, 38))
stream(mid[:8])
for q in range(1, 8):
    chunk_write(q)
signal(VSIG, 26, 1, True)
if OPT["fill"] in (2, 3):
    P(f"s_lshl2_add_u32 {T0}, {I_}, {W}\ns_mul_i32 {T0}, {T0}, {TB_STRIDE}\ns_add_u32 {T0}, {T0}, 0x{WS_HA:x}")
    P("v_lshlrev_b32 v25, 7, v0")
    if OPT["fill"] == 2:
        P(f"s_lshl_b32 {T1}, {C_}, 13\ns_add_u32 {T1}, {T1}, {T0}")
        P(f"buffer_load_dword v20, v25, {rWS}, {T1} offen")
        vm.add(None)
    P(f"s_mul_i32 {T1}, {C_}, {54 * 128}\ns_add_u32 {T1}, {T1}, {T0}\ns_add_u32 {T1}, {T1}, {64 * K}\nv_min_u32 v25, {53 * 128}, v25")
    P(f"buffer_load_dword v21, v25, {rWS}, {T1} offen")
    vm.add(None)
stream(mid[8:OPT["e1A"]])
lg.q = []
await_(VPK, 28, 2)
far()
stream(range(18))
stream(mid[OPT["e1A"]:])
PREA = LATE[:OPT["preA"]] if OPT["gd"] == 8 else LATE[21 - min(5, OPT["preA"]):21]
stream(PREA)
SZL, SK0, SK1, SKE = "s4", "s5", "s6", "s7"
NB = [NONCE, "s39", "s42", "s43"]
P("v_and_b32 v23, 15, v0\nv_lshlrev_b32 v27, 4, v0")
P(f"v_lshrrev_b32 v22, 2, v0\nv_mul_u32_u24 v25, {KVP_STR}, v22\nv_and_b32 v26, 3, v0\nv_lshl_add_u32 v25, v26, 4, v25")
P(f"s_mul_i32 {SK0}, {C_}, {16 * KVP_STR}\ns_add_u32 {SK0}, {SK0}, 0x{WS_KVP:x}")
P(f"s_lshl_b32 {SZL}, {W}, 6\ns_add_u32 {SZL}, {SZL}, {SK0}\ns_add_u32 {SZL}, {SZL}, 4096")
P(f"s_add_u32 {SK0}, {SK0}, {SM}\ns_add_u32 {SKE}, {SK0}, {16 * KVP_STR}")
P(f"s_lshl_b32 {SK1}, {I_}, 1\ns_and_b32 {SK1}, {SK1}, 15\ns_mul_i32 {SK1}, {SK1}, {KVP_STR}\ns_add_u32 {SK1}, {SK1}, {SK0}")
P(f"s_add_u32 {T0}, {SM}, 0x{L_KT:x}")
P("v_and_b32 v40, 1, v26\nv_lshlrev_b32 v40, 4, v40\nv_lshrrev_b32 v26, 1, v26\nv_lshl_or_b32 v40, v26, 3, v40")
P(f"v_lshl_or_b32 v40, v22, 5, v40\nv_add_u32 v40, {T0}, v40")
P("v_bfe_u32 v41, v0, 4, 1\nv_lshlrev_b32 v41, 4, v41\nv_lshrrev_b32 v26, 5, v0\nv_lshl_or_b32 v41, v26, 3, v41")
P(f"v_lshl_or_b32 v41, v23, 5, v41\nv_add_u32 v41, {T0}, v41")
P(f"v_and_b32 v42, 31, v0\nv_lshlrev_b32 v42, 5, v42\nv_lshl_or_b32 v42, v26, 4, v42\nv_add_u32 v42, {T0}, v42")
P(f"s_lshr_b32 s39, {NONCE}, 8\ns_lshr_b32 s42, {NONCE}, 16\ns_lshr_b32 s43, {NONCE}, 24")
ZL = f"buffer_load_dwordx4 v[28:31], v25, {rWS}, {SZL} offen sc1"
ZC = "\n".join([f"v_xor_b32 v20, {NB[0]}, v28", f"v_xor_b32 v21, {NB[1]}, v29",
                f"v_bitop3_b32 v20, v20, v30, {NB[2]} bitop3:0xf6", f"v_bitop3_b32 v21, v21, v31, {NB[3]} bitop3:0xf6",
                "v_or_b32 v20, v20, v21", "v_and_b32 v20, 0xff, v20", "v_cmp_ne_u32 vcc, 0, v20"])
P(f"s_setprio {OPT['gprio']}")
P(f"s_mov_b32 {T2}, 32")
P.label("L_kvall")
spin("L_kv", ZL, ZC)
stamp(1, "kv_seen")
signal(VSIG, 26, 3)
P(f"s_mov_b32 {T1}, {SK1}")
GD = OPT["gd"]
GQ = [CHR + 4 * n for n in range(14)] + [184, 188] if GD == 16 else [PQR + 4 * n for n in range(8)]
def gload(n):
    P(f"buffer_load_dwordx4 {v(GQ[n % GD], 4)}, v27, {rWS}, {T1} offen sc1")
    if n < 15:
        P(f"s_add_u32 {T1}, {T1}, {KVP_STR}")
        if n % 2 == 1:
            P(f"s_cmp_eq_u32 {T1}, {SKE}\ns_cselect_b32 {T1}, {SK0}, {T1}")
for n in range(GD):
    gload(n)
for n in range(4):
    P(f"v_and_b32 {v(28 + n)}, 0xffffff00, {v(28 + n)}")
for r in (4, 8):
    for n in range(4):
        P(f"v_add_f32_dpp {v(28 + n)}, {v(28 + n)}, {v(28 + n)} row_ror:{r} row_mask:0xf bank_mask:0xf")
for op in ("v_permlane16_swap_b32", "v_permlane32_swap_b32"):
    for n in range(4):
        P(f"v_mov_b32 {v(32 + n)}, {v(28 + n)}")
    for n in range(4):
        P(f"{op} {v(28 + n)}, {v(32 + n)}")
    for n in range(4):
        P(f"v_add_f32 {v(28 + n)}, {v(28 + n)}, {v(32 + n)}")
P("v_cvt_pk_bf16_f32 v28, v28, v29\nv_cvt_pk_bf16_f32 v29, v30, v31")
P("ds_write_b64 v40, v[28:29] offset:512")
for n in range(16):
    P(f"s_waitcnt vmcnt({min(GD - 1, 15 - n)})")
    for h in range(4):
        r = v(GQ[n % GD] + h)
        if n == 0:
            P(f"v_xor_b32 {v(36 + h)}, {NB[h]}, {r}\nv_and_b32 {v(32 + h)}, 0xffffff00, {r}")
        else:
            P(f"v_bitop3_b32 {v(36 + h)}, {v(36 + h)}, {r}, {NB[h]} bitop3:0xf6\nv_and_b32 {v(44 + h)}, 0xffffff00, {r}")
    if n + GD < 16:
        gload(n + GD)
    if n:
        for h in range(4):
            P(f"v_add_f32 {v(32 + h)}, {v(32 + h)}, {v(44 + h)}")
P("v_or3_b32 v36, v36, v37, v38\nv_or_b32 v36, v36, v39\nv_and_b32 v36, 0xff, v36\nv_cmp_ne_u32 vcc, 0, v36")
P(f"s_sub_u32 {T2}, {T2}, 1")
P("s_cbranch_scc1 L_kvok")
P("s_cbranch_vccnz L_kvall")
P.label("L_kvok")
stamp(1, "gath")
if DIAG >= 3 and "retry" in str(OPT.get("st1")):
    P(f"s_waitcnt lgkmcnt(0)\ns_sub_u32 s98, 32, {T2}\ns_mul_i32 s98, s98, 100\ns_add_u32 s98, s98, s100")
vm.q = []
page_addr.last = None
P("v_cvt_pk_bf16_f32 v32, v32, v33\nv_cvt_pk_bf16_f32 v33, v34, v35")
P("ds_write_b64 v41, v[32:33]")
lg.q = []
P("ds_read_b128 v[44:47], v42")
stream([p for p in LATE[:OPT["lA"]] if p not in PREA])
P(f"v_add_u32 v20, 0x{L_PQ:x}, {v(VL16)}")
P(f"s_mov_b32 s4, {SOB}")
stamp(1, "staged")
await_(VPK, 22, 10)
stamp(1, "g0")
for tb in range(4):
    P(f"ds_read_b128 {v(PQR + 4 * tb, 4)}, v20 offset:{tb * 4096}")
P("v_mov_b32 v28, v44\nv_mov_b32 v29, v45\nv_mov_b32 v30, v46\nv_mov_b32 v31, v47")
def o_mfma(tb):
    P(f"s_waitcnt lgkmcnt({3 - tb})")
    P(f"v_mfma_f32_32x32x16_bf16 {v((D0, D1)[tb & 1], 16)}, v[28:31], {v(PQR + 4 * tb, 4)}, 0")
o_mfma(0)
o_mfma(1)
for tb in range(4):
    d = (D0, D1)[tb & 1]
    P(f"v_add_f32 {v(d + 8)}, 0x{f2u(1e-6):x}, {v(d + 8)}")
    P(f"v_rcp_f32 {v(d + 8)}, {v(d + 8)}")
    for r in range(8):
        P(f"v_mul_f32 {v(d + r)}, {v(d + r)}, {v(d + 8)}")
    for p in range(4):
        P(f"v_cvt_pk_bf16_f32 {v(PQR + 4 * tb + p)}, {v(d + 2 * p)}, {v(d + 2 * p + 1)}")
    if tb < 2:
        o_mfma(tb + 2)
    row_store(f"buffer_store_dwordx4 {v(PQR + 4 * tb, 4)}, v27, {rWS}, s4 offen", OPT["nt2"])
    vm.add("o")
    if tb < 3:
        P(f"s_add_u32 s4, s4, {TB_STRIDE}")
stamp(1, "o_st")
P(f"s_setprio {OPT['prio']}")
for p in range(18, 38):
    page_write(p)
signal(VSIG, 26, 4, True)
vm.wait("o")
P(f"s_lshl_b32 {T0}, {I_}, 5\ns_lshl_b32 {T1}, {C_}, 2\ns_add_u32 {T0}, {T0}, {T1}\ns_add_u32 {T0}, {T0}, {W}")
P(f"s_lshl_b32 {T0}, {T0}, {2 + FX}\ns_add_u32 {T0}, {T0}, 0x{WS_FLAGS + FL_O * LN:x}")
flag_store(T0, aux=HX)
vm.add(None)
stamp(1, "oflag")
stream([p for p in LATE[OPT["lA"]:OPT["l1"]] if p not in PREA])
vm.wait(("pg", 42))
restA = [p for p in LATE[OPT["l1"]:] if p not in PREA]
P.label("L_l5")
lg.q = []
await_(VPK, 28, 11)
stamp(1, "gx")
nfree = 2 * ((OPT["gx"] - 7) // 4)
first = [p for p in list(range(38, 43)) + list(range(44, 60)) if p - 38 < nfree]
P(f"s_setprio {OPT['wprio']}")
for p in range(38, 43):
    page_write(p, OPT["pace"])
signal(VSIG, 26, 5, True)
for who, rest in (("A", restA), ("B2", restB[2]), ("B1", restB[1])):
    if who == "A":
        P(f"s_cmp_eq_u32 {TYPE}, 0\ns_cbranch_scc0 L_tB")
    elif who == "B2":
        P.label("L_tB")
        P(f"s_cmp_lt_u32 {C_}, 3\ns_cbranch_scc0 L_tB1")
    else:
        P.label("L_tB1")
    page_addr.last = None
    vm.q = [("pg", p) for p in LATE[5:] if p not in rest and not (who == "A" and p in PREA)]
    stream(rest)
    for p in first[5:]:
        vm.wait(("pg", p))
        page_write(p, OPT["pace"])
    vm.drain()
    if who != "B1":
        P("s_branch L_t2")
P.label("L_t2")
lg.q = []
P("s_waitcnt lgkmcnt(0)")
await_(VPK, 28, 12)
for p in range(44, 60):
    if p not in first:
        vm.wait(("pg", p))
        page_write(p, OPT["pace"])
signal(VSIG, 26, 6, True)
P(f"s_setprio {OPT['prio']}")
LOG2E = 1.4426950408889634
XRD, GG, XF, BF, YR = 22, 32, 48, 64, 72
P("v_lshrrev_b32 v26, 3, v0\nv_and_b32 v27, 7, v0\nv_lshlrev_b32 v27, 1, v27\nv_xor_b32 v27, v27, v26\nv_lshlrev_b32 v27, 4, v27\nv_lshl_or_b32 v26, v26, 8, v27")
P(f"s_lshl_b32 {T0}, {W}, 12\ns_add_u32 {T0}, {T0}, 0x{L_XS0:x}")
P(f"v_add_u32 {v(XRD)}, {T0}, v26\nv_xor_b32 {v(XRD + 1)}, 16, {v(XRD)}")
P(f"v_add_u32 {v(XRD + 2)}, 0x10000, {v(XRD)}\nv_add_u32 {v(XRD + 3)}, 0x10000, {v(XRD + 1)}")
P(f"s_add_u32 {T2}, {SO}, 8192")
P("s_waitcnt lgkmcnt(0)")


if OPT["wb"] in (2, 4):
    wback(2)
def unpack(dst, src, n):
    for r in range(n):
        P(f"v_lshlrev_b32 {v(dst + 2 * r)}, 16, {v(src + r)}\nv_and_b32 {v(dst + 2 * r + 1)}, 0xffff0000, {v(src + r)}")


def xread(dst, bases):
    for h in range(2):
        for kh in range(2):
            for j in range(2):
                P(f"ds_read_b128 {v(dst + 16 * kh + 8 * h + 4 * j, 4)}, {v(XRD + j + 2 * ((bases[kh] - L_XS0) >> 16))} offset:{((bases[kh] - L_XS0) & 0xffff) + 2048 * h}")


unpack(XF, XRES, 8)
unpack(BF, BRES, 4)
stamp(1, "rdy5")
P(f"s_setprio {OPT['fprio']}")
P("s_barrier ; dY")
if OPT["wb"] == 3:
    wback(3)
xread(YR, (L_XY, L_XY + 16 * K))
P("s_waitcnt lgkmcnt(0)")
for fmt in ("v_add_f32 {Y}, {Y}, {Z}", "v_add_f32 {Y}, {Y}, {B}", f"v_mul_f32 {{G}}, 0x{f2u(-LOG2E):x}, {{Y}}", "v_exp_f32 {G}, {G}",
            "v_add_f32 {G}, 1.0, {G}", "v_rcp_f32 {G}, {G}", "v_mul_f32 {G}, {G}, {Y}"):
    for r in range(16):
        P(fmt.format(Y=v(YR + r), Z=v(YR + 16 + r), B=v(BF + r % 8), G=v(GG + r)))
stamp(1, "gate")
P("s_barrier ; dS")
stamp(1, "dS")
xread(YR, (L_XS0, L_XS1))
for h in range(2):
    P(f"s_waitcnt lgkmcnt({4 - 4 * h})")
    for p in range(4 * h, 4 * h + 4):
        P(f"v_pk_add_f32 {v(YR + 2 * p, 2)}, {v(YR + 2 * p, 2)}, {v(YR + 16 + 2 * p, 2)}")
    for p in range(4 * h, 4 * h + 4):
        P(f"v_pk_fma_f32 {v(YR + 2 * p, 2)}, {v(YR + 2 * p, 2)}, {v(GG + 2 * p, 2)}, {v(XF + 2 * p, 2)}")
    for p in range(4 * h, 4 * h + 4):
        P(f"v_cvt_pk_bf16_f32 {v(BF + p)}, {v(YR + 2 * p)}, {v(YR + 2 * p + 1)}")
    P(f"buffer_store_dwordx4 {v(BF + 4 * h, 4)}, {v(VO)}, {rP2}, {(SO, T2)[h]} offen {OPT['outaux']}")
stamp(1, "outst")
dump(1)
P.label("L_end")
P("s_endpgm")
flush_cold()

P.label("L_compute")
DIAG = OPT["diag"]
assert OPT["gx"] <= 36
XR, ACC, WR = 128, 64, 32
VH, GR, XE, K1, K2, SD, RS, RL = 1, 2, 4, 6, 8, 10, 16, 18
XA, WA = 12, 20
HB0, SH, EPS2, SG, SFL1, SFL2, SCS2 = "s72", "s73", "s[74:75]", "s76", "s77", "s78", "s79"
lg = Q("lgkmcnt", 15)

diag_init()
stamp(0, "start")
P(f"s_setprio {OPT['cprio']}")
P(f"s_lshl_b32 {T0}, {I_}, 4\ns_add_u32 {T0}, {T0}, {J_}\ns_lshl_b32 {T0}, {T0}, 2\ns_add_u32 {T0}, {T0}, {W}\ns_lshl_b32 {T0}, {T0}, 1")
P(f"s_lshl_b32 {T1}, {T0}, 10")
P("v_lshrrev_b32 v26, 5, v0\nv_and_b32 v27, 31, v0\nv_lshlrev_b32 v28, 4, v27\nv_lshl_or_b32 v28, v26, 10, v28")
P("s_waitcnt lgkmcnt(0)")
srd(rX, P_X, 2 * K * K)
P(f"s_load_dword {NONCE}, s[{P_WS}:{P_WS+1}], 0")
if not OPT["nostat"]:
    P(f"buffer_load_dwordx4 v[32:35], v28, {rX}, {T1} offen")
    P(f"buffer_load_dwordx4 v[36:39], v28, {rX}, {T1} offen offset:512")
srd(rWS, P_WS, WS_SIZE)
tile2()
P(f"v_lshlrev_b32 {v(VH)}, 4, v0")
waddr(WA, 29, 30, 3)
P(f"v_xor_b32 {v(WA + 1)}, 64, {v(WA)}")
for k, off in ((2, 64 * K), (4, 88 * K)):
    P(f"v_add_u32 {v(WA + k)}, 0x{off:x}, {v(WA)}\nv_add_u32 {v(WA + k + 1)}, 0x{off:x}, {v(WA + 1)}")
P("v_bfe_u32 v29, v0, 1, 3\nv_xor_b32 v29, v29, v26\nv_lshlrev_b32 v29, 4, v29\nv_lshl_or_b32 v29, v27, 7, v29")
P(f"s_lshl_b32 {T2}, {W}, 12")
P(f"v_add_u32 {v(XA)}, {T2}, v29")
for t in range(1, 4):
    P(f"v_xor_b32 {v(XA + t)}, {32 * t}, {v(XA)}")
for t in range(4):
    P(f"v_add_u32 {v(XA + 4 + t)}, 0x10000, {v(XA + t)}")
P(f"s_lshl_b32 {SG}, {I_}, 2\ns_add_u32 {SG}, {SG}, {W}")
if OPT["touch"]:
    srd(rW2, P_W2, 1376 * 1024)
    srd(rWO, P_WO, 512 * 1024)
    P(f"s_mul_i32 {T2}, s2, 43\ns_mul_i32 {T3}, {W}, 11\ns_add_u32 {T2}, {T2}, {T3}")
    P(f"v_add_u32 v6, {T2}, v0\nv_lshlrev_b32 v6, 7, v6\nv_mov_b32 v8, 0x7ff00000\nv_cmp_gt_u32 vcc, 11, v0")
    P(f"s_lshl_b32 {T2}, s2, 2\ns_add_u32 {T2}, {T2}, {W}\ns_lshl_b32 {T2}, {T2}, 2")
    P(f"v_cndmask_b32 v6, v8, v6, vcc\nv_add_u32 v7, {T2}, v0\nv_lshlrev_b32 v7, 7, v7\nv_cmp_gt_u32 vcc, 4, v0")
    P("v_cndmask_b32 v7, v8, v7, vcc")
    if OPT["touch"] == 9:
        P(f"buffer_load_dword v8, v6, {rW2}, 0 offen\nbuffer_load_dword v9, v7, {rWO}, 0 offen")
P(f"s_lshl_b32 {SG}, {SG}, 8\ns_add_u32 {SG}, {SG}, 0x{WS_STATS:x}")
P(f"s_lshl_b32 {SCS2}, {J_}, 1\ns_lshr_b32 {T2}, {I_}, 3\ns_add_u32 {SCS2}, {SCS2}, {T2}\ns_lshl_b32 {SCS2}, {SCS2}, 2")
P(f"s_add_u32 {SCS2}, {SCS2}, {W}\ns_lshl_b32 {SCS2}, {SCS2}, 3\ns_and_b32 {T2}, {I_}, 7\ns_add_u32 {SCS2}, {SCS2}, {T2}")
P(f"s_lshl_b32 {SCS2}, {SCS2}, 9\ns_add_u32 {SCS2}, {SCS2}, 0x{WS_CS:x}")
if OPT["pg"]:
    srd(rW2, P_W2, 1376 * 1024)
    srd(rWO, P_WO, 512 * 1024)
    srd(rA, P_OUT, 2 * K * K)
    P(f"v_lshlrev_b32 v46, 16, v0\ns_lshl_b32 {T3}, {W}, 22\ns_cmp_eq_u32 {W}, 3\ns_cbranch_scc1 L_pg3")
    P(f"buffer_load_dword v47, v46, {rWS}, {T3} offen sc1\ns_branch L_pgx\nL_pg3:")
    P(f"buffer_load_dword v47, v46, {rW2}, 0 offen\nbuffer_load_dword v47, v46, {rWO}, 0 offen\nbuffer_load_dword v47, v46, {rA}, 0 offen\nL_pgx:")
SFHB, SFO, KH, SFHA, PRIMED, SK12, SXW, SBASE = "s51", "s52", "s53", "s54", "s55", "s72", "s73", "s77"
P(f"s_lshr_b32 {KH}, {W}, 1\ns_lshl_b32 {SK12}, {KH}, 12\ns_mov_b32 {PRIMED}, 0")
P(f"s_lshl_b32 {T3}, {TB2}, 1\ns_and_b32 {T2}, {W}, 1\ns_add_u32 {T3}, {T3}, {T2}")
P(f"s_mul_i32 {SBASE}, {T3}, {TB_STRIDE}\ns_add_u32 {SBASE}, {SBASE}, 0x{WS_HA:x}")
if OPT["ahot"]:
    P(f"s_mov_b32 {SBASE}, 0x{WS_DIAG + 0x40000:x}")
P(f"s_lshl_b32 {SFHB}, {T3}, {7 + FX}\ns_add_u32 {SFHA}, {SFHB}, 0x{WS_FLAGS + FL_HA * LN:x}\ns_add_u32 s44, {SFHB}, 0x{WS_FLAGS + FL_H1 * LN:x}\ns_add_u32 {SFHB}, {SFHB}, 0x{WS_FLAGS + FL_HB * LN:x}")
P(f"s_lshr_b32 {SFO}, {TB2}, 1\ns_lshl_b32 {SFO}, {SFO}, {7 + FX}\ns_add_u32 {SFO}, {SFO}, 0x{WS_FLAGS + FL_O * LN:x}")
P(f"s_lshl_b32 {SXW}, {T2}, 13\ns_lshl_b32 {T3}, {KH}, 14\ns_add_u32 {SXW}, {SXW}, {T3}\ns_add_u32 {SXW}, {SXW}, 0x{L_XY:x}")
SXS = "s15"
P(f"s_cmp_eq_u32 {KH}, 0")
sel2(SXS, (L_XS0 - L_XY) & 0xffffffff, L_XS1 - L_XY - 16 * K)
if OPT["tlb"] == 2:
    P(f"buffer_load_dword v47, v0, {rWS}, {SBASE} offen sc1")
P(f"s_mov_b32 s14, {RHOA}")
for g in list(range(8)) + list(range(11, 15)):
    r = f"s{36 + g}"
    P(f"s_add_u32 {r}, {RHO2 if g < 8 else RHOS}, {g % 11}\ns_and_b32 {r}, {r}, {7 if g < 8 else 3}\ns_lshl_b32 {r}, {r}, 13\ns_add_u32 {r}, {r}, {SBASE}")
    if g >= 11:
        P(f"s_add_u32 {r}, {r}, {86 * K}")
P(f"s_add_u32 s14, s14, {KH}")
for n in range(16, 22):
    r = f"s{8 + n - 16}"
    P(f"s_add_u32 {r}, s14, {2 * (n - 16)}\ns_cmp_ge_u32 {r}, 11\ns_cselect_b32 {T3}, 11, 0\ns_sub_u32 {r}, {r}, {T3}")
    P(f"s_sub_u32 {r}, {r}, {KH}\ns_add_u32 {r}, {r}, {32 - 2 * (n % 2)}\ns_lshl_b32 {r}, {r}, 11\ns_add_u32 {r}, {r}, {SBASE}")
P(f"s_mov_b32 s74, 0x{f2u(1e-6):x}\ns_mov_b32 s75, 0x{f2u(1e-6):x}")
P(f"s_mov_b32 {T2}, 0x3f803f80")
P("v_mov_b32 v40, 0\nv_mov_b32 v41, 0\nv_mov_b32 v42, 0\nv_mov_b32 v43, 0")
stamp(0, "pre")
P("s_waitcnt vmcnt(2)" if OPT["touch"] == 9 else "s_waitcnt vmcnt(0)")
stamp(0, "xin")
for n in range(8):
    P(f"v_dot2_f32_bf16 {v(40 + (n & 1))}, {v(32 + n)}, {T2}, {v(40 + (n & 1))}")
    P(f"v_dot2_f32_bf16 {v(42 + (n & 1))}, {v(32 + n)}, {v(32 + n)}, {v(42 + (n & 1))}")
P("s_nop 2")
P("v_add_f32 v40, v40, v41\nv_add_f32 v42, v42, v43")
for r in (8, 4, 2, 1):
    P(f"v_add_f32_dpp v40, v40, v40 row_ror:{r} row_mask:0xf bank_mask:0xf")
    P(f"v_add_f32_dpp v42, v42, v42 row_ror:{r} row_mask:0xf bank_mask:0xf")
P("v_mov_b32 v41, v40\nv_mov_b32 v43, v42")
P("v_permlane16_swap_b32 v40, v41\nv_permlane16_swap_b32 v42, v43")
P("v_add_f32 v40, v40, v41\nv_add_f32 v42, v42, v43")
P(f"v_mul_f32 v40, 0x{f2u(1 / 512):x}, v40\nv_mul_f32 v42, 0x{f2u(1 / 512):x}, v42")
P("v_fma_f32 v42, -v40, v40, v42\nv_max_f32 v42, 0, v42")
P(f"v_cvt_pk_bf16_f32 v42, v42, v42\nv_and_b32 v42, 0xffff0000, v42\nv_add_f32 v42, 0x{f2u(1e-5):x}, v42")
P("v_cvt_pk_bf16_f32 v42, v42, v42\nv_and_b32 v42, 0xffff0000, v42\nv_sqrt_f32 v42, v42")
P("v_cvt_pk_bf16_f32 v44, v40, v42")
P("v_lshlrev_b32 v28, 3, v26")
P(f"s_lshl_b32 {T0}, {T0}, 3\ns_add_u32 {T0}, {T0}, 0x{WS_STATS:x}")
P("s_waitcnt lgkmcnt(0)")
P(f"s_add_u32 {NONCE}, {NONCE}, 1")
XTAG = "s78"
P(f"s_getreg_b32 {XTAG}, hwreg(HW_REG_XCC_ID, 0, 4)\ns_lshl_b32 {XTAG}, {XTAG}, 28\ns_xor_b32 {XTAG}, {XTAG}, {NONCE}")
P(f"v_mov_b32 v45, {XTAG}\nv_mov_b32 v5, {NONCE}")
P(f"s_mov_b32 s56, {T0}\nv_mov_b32 v2, v44\nv_mov_b32 v3, v45\nv_mov_b32 v25, v28")
P("v_lshlrev_b32 v26, 3, v27\nv_lshlrev_b32 v27, 3, v0")
P(f"s_lshl_b32 {T0}, {W}, 8\ns_add_u32 {T0}, {T0}, 0x{L_CSX:x}")
P(f"v_lshl_add_u32 v28, v0, 2, {T0}")
P(f"v_add_u32 v29, 0x{L_EX1:x}, v27")
GLOAD = f"buffer_load_dwordx2 {v(GR, 2)}, v26, {rWS}, {SG} offen sc1"
CSIG, CPK, CPC = 30, 31, 3
P(f"s_lshl_b32 {T0}, {W}, 2\ns_add_u32 {T0}, {T0}, 0x{L_PRG:x}\nv_mov_b32 {v(CSIG)}, {T0}")
P(f"v_and_b32 {v(CPK)}, 3, v0\nv_lshlrev_b32 {v(CPK)}, 2, {v(CPK)}\nv_add_u32 {v(CPK)}, 0x{L_RDY:x}, {v(CPK)}")
stamp(0, "stats")


def p1_x(st, t):
    if OPT["nocomp"]:
        return
    sl = st % 3
    P(f"ds_read_b128 {v(XR + 16 * st + 4 * t, 4)}, {v(XA + t + (4 if sl == 2 else 0))} offset:{(sl % 2) * 32 * K}")
    lg.add(("x", st, t))


def p1_w(st, t, b):
    if OPT["nocomp"]:
        return
    sl = st % 3
    a = WA + (b & 1) + (2 if sl == 2 else 0)
    off = (sl % 2) * 32 * K + 16 * K + (b >> 1) * 8 * K + t * 2048
    f = WR + ((t & 1) * 4 + b) * 4
    tr(f, a, off, None)
    tr(f + 2, a, off + 512, ("w", st, t, b))


def p1_m(st, t, b):
    if OPT["nocomp"]:
        return
    lg.wait(("x", st, t))
    lg.wait(("w", st, t, b))
    f = WR + ((t & 1) * 4 + b) * 4
    c = "0" if (st == 0 and t == 0) else v(ACC + 16 * b, 16)
    P(f"v_mfma_f32_32x32x16_bf16 {v(ACC + 16 * b, 16)}, {v(f, 4)}, {v(XR + 16 * st + 4 * t, 4)}, {c}")
    r = OPT.get(f"r{st}", 0) or OPT["rall"]
    if r:
        P(f"s_nop {r - 1}")


P("s_barrier ; b0")
stamp(0, "b0")
if OPT["p2only"]:
    P("s_branch L_c2")
p1_x(0, 0)
for b in range(4):
    p1_w(0, 0, b)
P("s_mov_b32 exec_lo, 1\ns_mov_b32 exec_hi, 1")
P(f"buffer_store_dwordx2 v[2:3], v25, {rWS}, s56 offen sc1")
P("s_mov_b64 exec, -1")
P(f"v_add_u32 {v(WA + 5)}, 0x{88 * K:x}, {v(WA + 1)}")
LOG2E = 1.4426950408889634
C1 = -2 * LOG2E * math.sqrt(2 / math.pi)
C2 = C1 * 0.044715
GCHK = f"v_xor_b32 v27, {XTAG}, {v(GR + 1)}\nv_lshlrev_b32 v28, 4, v27\nv_cmp_ne_u32 vcc, 0, v28"
EXR = (22, 26)
side1 = [f"v_cmp_ne_u32 vcc, 0, v27", f"s_mov_b32 {T0}, 0x01000100", f"v_perm_b32 {v(XE)}, {v(GR)}, {v(GR)}, {T0}",
         "s_or_b32 s57, vcc_lo, vcc_hi", f"v_xor_b32 {v(XE)}, 0x80008000, {v(XE)}", f"v_lshrrev_b32 {v(XE + 1)}, 16, {v(GR)}",
         f"v_and_b32 {v(SD)}, 0xffff0000, {v(GR)}", f"v_rcp_f32 {v(RS)}, {v(SD)}", f"v_mov_b32 {v(SD + 1)}, {v(SD)}",
         f"v_mul_f32 {v(K1)}, 0x{f2u(C1):x}, {v(RS)}", f"v_mul_f32 {v(K2)}, {v(RS)}, {v(RS)}", f"v_mul_f32 {v(RL)}, 0x{f2u(LOG2E):x}, {v(RS)}",
         f"v_mul_f32 {v(K2)}, {v(K2)}, {v(RS)}", f"v_mov_b32 {v(RS + 1)}, {v(RS)}", f"v_mul_f32 {v(K2)}, 0x{f2u(C2):x}, {v(K2)}",
         f"v_mov_b32 {v(K1 + 1)}, {v(K1)}", f"v_mov_b32 {v(RL + 1)}, {v(RL)}", f"v_mov_b32 {v(K2 + 1)}, {v(K2)}"]
for st in range(8):
    for t in range(3):
        for b in range(4):
            p1_m(st, t, b)
            if st == 7 and t == OPT["gt"] and b == 0:
                P("s_waitcnt vmcnt(0)")
                P(GCHK)
                retry("L_gr", GLOAD, GCHK)
            elif st == 7 and t >= OPT["gt"]:
                for _ in range(3 if OPT["gt"] == 1 else 6):
                    if side1:
                        P(side1.pop(0))
            if b == 0:
                p1_x(st, t + 1)
            p1_w(st, t + 1, b)
    assert st < 7 or not side1
    p1_m(st, 3, 0)
    if st == 2 + OPT["chl"] + OPT["csd"]:
        P("ds_read_b32 v4, v28")
        lg.add(None)
    p1_m(st, 3, 1)
    if st == 5 + OPT["gl"]:
        P(GLOAD)
    lg.drain()
    if st == 7:
        stamp(0, "c8")
    P(f"s_barrier ; b{st + 1}")
    if st == 6:
        stamp(0, "b7")
    if st < 7:
        p1_x(st + 1, 0)
        p1_w(st + 1, 0, 0)
        p1_w(st + 1, 0, 1)
        p1_m(st, 3, 2)
        if st == 2 + OPT["chl"] + OPT["csd"] and not OPT["nst"] & 2:
            P(f"buffer_store_dwordx2 v[4:5], v27, {rWS}, {SCS2} offen {OPT['saux'] or ''}")
        if st == OPT["touch"] - 1:
            P(f"buffer_load_dword v8, v6, {rW2}, 0 offen\nbuffer_load_dword v9, v7, {rWO}, 0 offen")
        p1_w(st + 1, 0, 2)
        p1_w(st + 1, 0, 3)
        p1_m(st, 3, 3)
    else:
        P(f"v_mov_b32 v27, s57\ns_mov_b64 exec, 1\nds_write_b32 {v(CSIG)}, v27 offset:{L_FAST - L_PRG}\ns_mov_b64 exec, -1")
        lg.add(None)
        for b in range(4):
            P(f"ds_read_b64 {v(WR + 2 * b, 2)}, v29 offset:{512 * b}")
            lg.add(("ex", b))
        p1_m(st, 3, 2)
        p1_m(st, 3, 3)
        for b in range(4):
            lg.wait(("ex", b))
            P(f"v_mfma_f32_32x32x8bf16_1k {v(ACC + 16 * b, 16)}, {v(WR + 2 * b, 2)}, {v(XE, 2)}, {v(ACC + 16 * b, 16)}")
stamp(0, "b8")
if OPT["p1only"]:
    dump(0)
    P("s_endpgm")
    DIAG = 0
stamp(0, "ex1")

TT, UU = 32, 48


def pairs(fmt, a):
    for p in range(8):
        P(fmt.format(T=v(TT + 2 * p, 2), A=v(a + 2 * p, 2)))


def singles(fmt):
    for r in range(16):
        P(fmt.format(T=v(TT + r)))


def cvt(dst, src=TT):
    for p in range(8):
        P(f"v_cvt_pk_bf16_f32 {v(dst + p)}, {v(src + 2 * p)}, {v(src + 2 * p + 1)}")


def epi_gelu(b, base, k, rdy=None, prev=None, last=True):
    a = ACC + 16 * b
    if rdy:
        peek(CPK, 28)
    pairs("v_pk_mul_f32 {T}, {A}, {A}", a)
    pairs("v_pk_fma_f32 {T}, {T}, %s, %s" % (v(K2, 2), v(K1, 2)), a)
    pairs("v_pk_mul_f32 {T}, {T}, {A}", a)
    if prev:
        signal(CSIG, 27, prev, True)
    singles("v_exp_f32 {T}, {T}")
    pairs("v_pk_fma_f32 {T}, {T}, %s, %s" % (v(SD, 2), v(SD, 2)), a)
    singles("v_rcp_f32 {T}, {T}")
    pairs("v_pk_mul_f32 {T}, {T}, {A}", a)
    cvt(a)
    if rdy:
        await_(CPK, 28, rdy, peeked=True)
    for h in range(2 if not OPT["nods"] else 0):
        P(f"ds_write_b128 v26, {v(a + 4 * h, 4)} offset:{base - L_HS + (2 * b + h) * 4096}")
        lg.add(None)
    if last:
        signal(CSIG, 27, k, True)


def epi_phi(b, dst):
    a = ACC + 16 * b
    pairs("v_pk_mul_f32 {T}, {A}, %s" % v(RL, 2), a)
    singles("v_exp_f32 {T}, {T}")
    pairs("v_pk_fma_f32 {A}, {A}, %s, 1.0 op_sel_hi:[1,1,0]" % v(RS, 2), a)
    for r in range(16):
        P(f"v_med3_f32 {v(TT + r)}, {v(TT + r)}, {v(a + r)}, 1.0")
    pairs("v_pk_add_f32 {T}, {T}, %s" % EPS2, a)
    cvt(dst)


def epi_lin(b, dst):
    a = ACC + 16 * b
    pairs("v_pk_mul_f32 {T}, {A}, %s" % v(RS, 2), a)
    cvt(dst)


AY, AS, AR = 64, 192, 128
RG = OPT["ring"]
NST = 30
WB, VA, FD, VF, XW, CPC2, TA, TB_, TC, XW2 = 96, 102, 104, 106, 108, 112, 113, 114, 115, 116
FHB = f"buffer_load_dword {v(FD)}, {v(VF)}, {rWS}, {SFHB} offen sc1"
FHA = f"buffer_load_dword {v(FD)}, {v(VF)}, {rWS}, {SFHA} offen sc1"
FH1 = f"buffer_load_dword {v(FD)}, {v(VF)}, {rWS}, s44 offen sc1"
FO = f"buffer_load_dword {v(FD + 1)}, {v(VF + 1)}, {rWS}, {SFO} offen sc1"
HBC = f"v_cmp_ne_u32 vcc, {NONCE}, {v(FD)}"
vm = Q("vmcnt", 63)


def aload(n, ks):
    if n >= NST or (OPT["noa"] and n >= RG):
        return
    P(f"buffer_load_dwordx4 {v(AR + 8 * (n % RG) + 4 * ks, 4)}, {v(VA + (n % 2 if n >= 16 else n >> 3))}, {rWS}, s{36 + (n & 7) if n < 16 else (8 + n - 16 if n < 22 else 36 + (n >> 1))} offen offset:{1024 * ks} {OPT['aaux'] or ''}")
    vm.add(("a", n, ks))


PRM = OPT["prime"]
def prime():
    for n in range(PRM):
        aload(n, 0)
        aload(n, 1)


nchk = [0]
def checkpoint():
    if not OPT["early"]:
        return
    nchk[0] += 1
    l = f"L_ck{nchk[0]}"
    P(f"s_getreg_b32 {T3}, hwreg(HW_REG_IB_STS, 0, 4)\ns_or_b32 {T3}, {T3}, {PRIMED}\ns_cbranch_scc1 {l}_x")
    P(f"s_waitcnt vmcnt(0)\n{HBC}\ns_cbranch_vccnz {l}_r")
    prime()
    P(f"s_mov_b32 {PRIMED}, 1")
    P.label(l + "_x")
    cold.append(f"{l}_r:\n{FHB}\ns_branch {l}_x")


def setup2():
    global P
    keep, P = P, Prog()
    P(f"v_and_b32 {v(VF + 1)}, 31, v0\nv_lshlrev_b32 {v(VF + 1)}, {2 + FX}, {v(VF + 1)}\nv_and_b32 {v(VF)}, {28 << FX}, {v(VF + 1)}")
    waddr(WB, TA, TB_, 2)
    P(f"v_add_u32 {v(WB)}, {SK12}, {v(WB)}\nv_xor_b32 {v(WB + 1)}, 64, {v(WB)}")
    for k in (1, 2):
        P(f"v_add_u32 {v(WB + 2 * k)}, 0x{64 * K * k:x}, {v(WB)}\nv_add_u32 {v(WB + 2 * k + 1)}, 0x{64 * K * k:x}, {v(WB + 1)}")
    P(f"v_lshrrev_b32 {v(TA)}, 1, {SK12}\nv_add_u32 {v(VA)}, {v(TA)}, {v(VH)}\nv_add_u32 {v(VA + 1)}, 0x1000, {v(VA)}")
    P(f"v_lshrrev_b32 {v(TA)}, 5, v0\nv_and_b32 {v(TB_)}, 7, v0\nv_xor_b32 {v(TA)}, {v(TA)}, {v(TB_)}\nv_lshlrev_b32 {v(TA)}, 4, {v(TA)}")
    P(f"v_and_b32 {v(TB_)}, 31, v0\nv_lshl_or_b32 {v(TA)}, {v(TB_)}, 8, {v(TA)}\nv_add_u32 {v(XW)}, {SXW}, {v(TA)}")
    for q in range(1, 4):
        P(f"v_xor_b32 {v(XW + q)}, {32 * q}, {v(XW)}")
    P(f"v_add_u32 {v(CPC2)}, 16, {v(CPK)}")
    for q in range(4):
        P(f"v_add_u32 {v(XW2 + q)}, {SXS}, {v(XW + q)}")
    lines, P = P.lines, keep
    return lines


def pass2(nb):
    side = setup2()
    n = 32 * nb
    def rd(m):
        if m >= n:
            return
        step, b = divmod(m, nb)
        off = CH(step >> 2) - 88 * K + (step & 3) * 2048
        f = WR + (m % 8) * 4
        tr(f, WA + 4 + b, off, None)
        tr(f + 2, WA + 4 + b, off + 512, ("p2", m))
    for m in range(7):
        rd(m)
    for m in range(n):
        step, b = divmod(m, nb)
        lg.wait(("p2", m))
        c = "0" if step == 0 else v(ACC + 16 * b, 16)
        P(f"v_mfma_f32_32x32x16_bf16 {v(ACC + 16 * b, 16)}, {v(WR + (m % 8) * 4, 4)}, {v(XR + 4 * step, 4)}, {c}")
        rd(m + 7)
        for _ in range(2 if nb == 1 else 1):
            if side and m >= 2 and not OPT["noside"]:
                P(side.pop(0))
        if m == max(6, n - OPT["smp"]) and not OPT["nosamp"]:
            P(FHB)
        if m == 5 and OPT["tlb"] == 1:
            P(f"buffer_load_dword {v(TC)}, {v(VF)}, {rWS}, {SBASE} offen sc1")
        if m == n - 6:
            if OPT["fill"] == 4:
                P("s_waitcnt vmcnt(0)" if OPT["nosamp"] else "s_waitcnt vmcnt(1)")
            for bb in range(nb):
                lg.room()
                P(f"ds_read_b64 {v(12 + 2 * bb, 2)}, v29 offset:{L_EX2 - L_EX1 + 512 * bb}")
                lg.add(("ex2", bb))
    while side:
        P(side.pop(0))
    checkpoint()
    lg.drain()
    signal(CSIG, 27, 8)
    for b in range(nb):
        P(f"v_mfma_f32_32x32x8bf16_1k {v(ACC + 16 * b, 16)}, {v(12 + 2 * b, 2)}, {v(XE, 2)}, {v(ACC + 16 * b, 16)}")


P(f"s_cmp_eq_u32 {TYPE}, 0")
P("s_cbranch_scc0 L_cB")
P(f"v_and_b32 v26, 31, v0\nv_lshrrev_b32 v27, 5, v0\ns_lshl_b32 {T0}, {W}, 5")
P(f"v_add_u32 v26, {T0}, v26\nv_mul_u32_u24 v26, {TROW}, v26\nv_lshl_add_u32 v26, v27, 3, v26\nv_add_u32 v26, 0x{TBUF:x}, v26")
for b in range(4):
    u = UU + 8 * (b & 1)
    (epi_phi if b < 2 else epi_lin)(b, u)
    for q in range(4):
        P(f"ds_write_b64 v26, {v(u + 2 * q, 2)} offset:{64 * b + 16 * q}")
    if OPT["fill"] == 4 and b == OPT["fo"]:
        P(f"s_lshl2_add_u32 {T1}, {I_}, {W}\ns_mul_i32 {T1}, {T1}, {TB_STRIDE}\ns_lshl_b32 {T2}, {C_}, 12\ns_add_u32 {T1}, {T1}, {T2}\ns_add_u32 {T1}, {T1}, 0x{WS_HA + 86 * K:x}")
        P(f"v_lshlrev_b32 v16, 7, v0\nv_and_b32 v16, 0xfff, v16\nbuffer_load_dword v18, v16, {rWS}, {T1} offen")
    if "st0" in OPT:
        stamp(0, f"g{b}")
P(f"v_lshrrev_b32 v26, 2, v0\nv_mul_u32_u24 v26, {TROW}, v26\nv_and_b32 v27, 3, v0\nv_lshl_add_u32 v26, v27, 3, v26")
P(f"s_add_u32 {T0}, {T0}, 0x{TBUF:x}")
P(f"v_add_u32 v26, {T0}, v26")
for r in range(4):
    P(f"v_mov_b32 {v(104 + r)}, 0x3f803f80")
P(f"s_lshl_b32 {T0}, {C_}, 4\ns_add_u32 {T0}, {T0}, {I_}\ns_mul_i32 {T0}, {T0}, {KVP_STR}\ns_add_u32 {T0}, {T0}, 0x{WS_KVP:x}")
P(f"s_lshl_b32 {T1}, {W}, 10\ns_add_u32 {T1}, {T1}, {T0}")
P(f"s_lshl_b32 {T2}, {W}, 6\ns_add_u32 {T2}, {T2}, {T0}\ns_add_u32 {T2}, {T2}, 4096")
signal(CSIG, 27, 1, True)
P(f"v_add_u32 {v(CPC)}, 16, {v(CPK)}")
lg.q = []
await_(CPC, 27, 1)
stamp(0, "e1")
def kvm(mm):
    lg.wait(("kv", mm, 1))
    P(f"v_mfma_f32_16x16x32_bf16 v[96:99], {v(ACC + 8 * mm, 4)}, {v(ACC + 8 * mm + 4, 4)}, {'0' if mm == 0 else 'v[96:99]'}")
    P(f"v_mfma_f32_16x16x32_bf16 v[100:103], {v(ACC + 8 * mm, 4)}, v[104:107], {'0' if mm == 0 else 'v[100:103]'}")
for m in range(4):
    for o in range(2):
        f = ACC + 8 * m + 4 * o
        tr(f, 26, m * 32 * TROW + 128 * o, None)
        tr(f + 2, 26, (m * 32 + 16) * TROW + 128 * o, ("kv", m, o))
    if m >= 2:
        kvm(m - 2)
kvm(2)
kvm(3)
P(f"v_mov_b32 v104, {NONCE}")
for h in range(4):
    P(f"s_mov_b32 {T0}, 0x0706050{h}")
    P(f"v_perm_b32 {v(96 + h)}, {v(96 + h)}, v104, {T0}\nv_perm_b32 {v(100 + h)}, {v(100 + h)}, v104, {T0}")
P(f"buffer_store_dwordx4 v[96:99], {v(VH)}, {rWS}, {T1} offen sc1")
P("s_mov_b32 exec_lo, 0x00010001\ns_mov_b32 exec_hi, 0x00010001")
P(f"buffer_store_dwordx4 v[100:103], v0, {rWS}, {T2} offen sc1")
P("s_mov_b64 exec, -1")
signal(CSIG, 27, 2)
stamp(0, "kv")
await_(CPK, 27, 1)
stamp(0, "b10")
P("s_branch L_p2")
P.label("L_cB")
lg.q = []
P(f"s_lshl_b32 {T0}, {W}, 10\ns_add_u32 {T0}, {T0}, 0x{L_HS:x}")
P(f"v_add_u32 v26, {T0}, {v(VH)}")
if OPT["fill"] == 4:
    hblock2(T1)
    P(f"s_lshl2_add_u32 {T0}, {I_}, {W}\ns_mul_i32 {T0}, {T0}, {TB_STRIDE}\ns_add_u32 {T0}, {T0}, 0x{WS_HA:x}")
    P(f"s_lshl_b32 {T1}, {T1}, 11\ns_add_u32 {T1}, {T1}, {T0}\ns_lshl_b32 {T2}, {C_}, 13\ns_add_u32 {T0}, {T0}, {T2}")
    P(f"s_cmp_lt_u32 {C_}, 3")
    sel2(T2, 0xfff, 0x7ff)
    P(f"v_lshlrev_b32 v16, 7, v0\nv_and_b32 v17, {T2}, v16")
for b in range(4):
    epi_gelu(b, L_HS, b + 1, prev=b, last=(b == 3))
    if OPT["fill"] == 4 and b == OPT["f1"]:
        P(f"buffer_load_dword v18, v16, {rWS}, {T0} offen")
    if OPT["fill"] == 4 and b == OPT["f2"]:
        P(f"buffer_load_dword v19, v17, {rWS}, {T1} offen")
    if "st0" in OPT:
        stamp(0, f"g{b}")
stamp(0, "e1")
await_(CPK, 28, 1)
stamp(0, "b10")
P(f"s_cmp_lt_u32 {C_}, 3")
P("s_cbranch_scc1 L_p2")
lg.q = [None] * 3
pass2(1)
stamp(0, "p2")
epi_gelu(0, L_PQ, 10, 2)
stamp(0, "e2")
P("s_branch L_c2")
P.label("L_p2")
lg.q = [None] * 3
pass2(2)
stamp(0, "p2")
P(f"s_cmp_eq_u32 {TYPE}, 0")
P("s_cbranch_scc0 L_cB2")
P(f"s_lshl_b32 {T0}, {W}, 12\ns_add_u32 {T0}, {T0}, 0x{L_PQ:x}")
P(f"v_add_u32 v26, {T0}, {v(VH)}")
lg.q = [None]
peek(CPC2, 28)
for b in range(2):
    epi_phi(b, UU + 8 * b)
    if b == 0:
        await_(CPC2, 28, 2, peeked=True)
    for h in range(2):
        P(f"ds_write_b128 v26, {v(UU + 8 * b + 4 * h, 4)} offset:{(2 * b + h) * 1024}")
    if b == 0:
        checkpoint()
signal(CSIG, 27, 10, True)
stamp(0, "e2")
P("s_branch L_c2")
P.label("L_cB2")
lg.q = [None]
epi_gelu(0, L_PQ, 9, 2, last=False)
checkpoint()
epi_gelu(1, L_PQ, 10, prev=9)
stamp(0, "e2")
P.label("L_c2")
stamp(0, "c2")
stamp(0, "setup")
if OPT["quiet"]:
    dump(0)
    P("s_endpgm")
if OPT["nosamp"]:
    P(FHB)
P(f"s_cmp_lg_u32 {PRIMED}, 0\ns_cbranch_scc1 L_primed")
if not OPT["p2only"]:
    P(f"s_waitcnt vmcnt(0)\n{HBC}")
    retry("L_hb", FHB, HBC)
stamp(0, "hb_seen")
prime()
P.label("L_primed")
vm.q = [("a", n, ks) for n in range(PRM) for ks in range(2)]
gate = {8: OPT["cH1"], 16: OPT["cHA"], 22: OPT["cO"]}
nxt = [PRM, 0]
def aissue(n, k4):
    while nxt[0] < NST:
        nn, ks = nxt
        if nn in gate and (n, k4) < (gate[nn], 1):
            return
        if nn - RG > n or (nn - RG == n and k4 < 2 * ks + 1):
            return
        aload(nn, ks)
        nxt[:] = [nn, 1] if ks == 0 else [nn + 1, 0]
        return


def dec(m):
    if OPT["tl"] and m >= 4 * NST - 8:
        r = m - (4 * NST - 8)
        return NST - 2 + ((r >> 1) & 1), r & 1, r >> 2
    return m >> 2, (m >> 1) & 1, m & 1


def wrd(m):
    if m >= 4 * NST:
        return
    n, ks, ct = dec(m)
    ev = {OPT["gx"]: 4, 76: 5, 88: 6}
    if m + 5 in ev:
        peek(CPK, 20)
    if m == OPT["g2"]:
        signal(CSIG, 21, 12)
    if m == 72:
        signal(CSIG, 21, 13)
    if m == 93:
        peek(CPC2, 19)
    if m in ev:
        if m == OPT["gx"]:
            signal(CSIG, 21, 11)
        await_(CPK, 20, ev[m], peeked=True)
    so = slot_of(2 * n) + ks * 2048
    k = so // (64 * K)
    f = WR + (m % 8) * 4
    if OPT["now"] and m >= 8:
        return
    tr(f, WB + 2 * k + ct, so - 64 * K * k, None)
    tr(f + 2, WB + 2 * k + ct, so - 64 * K * k + 1024, ("w2", m))


def xwrite(acc, base, ct, q):
    lg.room()
    P(f"ds_write_b128 {v(base + q)}, {v(acc + 16 * ct + 4 * q, 4)} offset:{128 * ct}")
    lg.add(("xw", acc))


lg.q = []
stamp(0, "primed")
await_(CPK, 20, 3)
for m in range(7):
    wrd(m)
for n in range(NST):
    acc = AY if n < 22 else AS
    if n == 21:
        P(f"s_cmp_eq_u32 {KH}, 0")
    for k4 in range(4):
        m = 4 * n + k4
        na, ks, ct = dec(m)
        w = vm.need(("a", na, ks)) + " " + (lg.need(("w2", m | 1)) if OPT["w2"] else "") + lg.need(("w2", m))
        if w.strip():
            P("s_waitcnt " + w.strip())
        c = "0" if (n in (0, 22) and ks == 0) else v(acc + 16 * ct, 16)
        if n == 21:
            P(f"s_cbranch_scc0 L_null{k4}")
        P(f"v_mfma_f32_32x32x16_bf16 {v(acc + 16 * ct, 16)}, {v(WR + (m % 8) * 4, 4)}, {v(AR + 8 * (na % RG) + 4 * ks, 4)}, {c}")
        if OPT["tl"] and m >= 4 * NST - 2:
            for q in range(2):
                xwrite(AS, XW2, 0, 2 * (m & 1) + q)
        if n == 21:
            P.label(f"L_null{k4}")
        if k4 == 1:
            for nn, ld, fd, nm in ((8, FH1, FD, "h1"), (16, FHA, FD, "ha"), (22, FO, FD + 1, "o")):
                if n == max(0, gate[nn] - OPT["fl"]) and gate[nn] > 0:
                    P(ld)
                    vm.add("f" + nm)
                if n == gate[nn]:
                    vm.wait("f" + nm)
                    P(f"v_cmp_ne_u32 vcc, {NONCE}, {v(fd)}")
                    retry("L_" + nm, ld, f"v_cmp_ne_u32 vcc, {NONCE}, {v(fd)}")
                    stamp(0, nm + "_seen")
        aissue(n, k4)
        assert nxt[0] > n + 1 or nxt[0] == NST or (nxt[0] == n + 1 and k4 < 3), (n, k4, nxt)
        wrd(m + 7)
        if m == 91:
            await_(CPC2, 19, 13, peeked=True)
        if m >= 91 and (m - 91) % OPT["ys"] == 0 and (m - 91) // OPT["ys"] < 8:
            xwrite(AY, XW, ((m - 91) // OPT["ys"]) >> 2, ((m - 91) // OPT["ys"]) & 3)
        if m == 91 + 7 * OPT["ys"] + OPT["dy"]:
            lg.wait(("xw", AY))
            P("s_barrier ; dY")
    if "st0" in OPT:
        stamp(0, f"n{n}")
stamp(0, "sdone")
for ct in range(1 if OPT["tl"] else 0, 2):
    for q in range(4):
        xwrite(AS, XW2, ct, q)
P("s_setprio 0")
lg.drain()
P("s_barrier ; dS")
P(f"s_or_b32 {T0}, s2, {W}\ns_cmp_eq_u32 {T0}, 0")
P("s_cbranch_scc0 L_cend")
flag_store(T0)
P.label("L_cend")
dump(0)
P("s_endpgm")
flush_cold()
P.label("L_codeend")

body = P.finish()
hdr = f"""; Fused LayerNorm + linear attention + GELU FFN block, one persistent launch (256 workgroups, one per CU).
; Generated by work/gen2.py.  Four waves stream operands into LDS, four waves compute.
; @launch grid=(256,1,1) block=(512,1,1) lds=163840
.amdgcn_target "amdgcn-amd-amdhsa--gfx950"
.text
.globl {KNAME}
.p2align 8
.type {KNAME},@function
{KNAME}:
"""
tail = f"""
.section .rodata,"a"
.p2align 6
.amdhsa_kernel {KNAME}
  .amdhsa_next_free_vgpr 256
  .amdhsa_next_free_sgpr 102
  .amdhsa_accum_offset 256
  .amdhsa_group_segment_fixed_size 0
  .amdhsa_kernarg_size 88
  .amdhsa_user_sgpr_count 2
  .amdhsa_user_sgpr_kernarg_segment_ptr 1
  .amdhsa_system_sgpr_workgroup_id_x 1
  .amdhsa_float_denorm_mode_32 3
.end_amdhsa_kernel
"""
if OPT["diag"]:
    tail += f"; STAMPS0 {' '.join(slots[0])}\n"
sys.stdout.write(hdr + body + tail)
sys.stderr.write(f"pads {P.npad}\n")
```

```python
import sys, os, struct, math
from asmlib import Prog, v, s

KNAME = "recurrent_scan__linear_attn_block__dense_activation_gelu__prompt_kernel"
OPT = dict(diag=0, outaux="sc1", map1=81, spin=16, codepf=1, ldfirst=1, prio=1,
           nA9=3, nA10=7, nB10=8, mf=56, cprio=3, gx=36, n6=2, n7=1, kA=12, lag=8, sp=0, sp0=0, nost=0, slp=2, kvw=0, gprio=3, sA=4, xB=8, fast=1, nt1=2, trow=272, nosamp=0, e1B=4, iB2=2, e1A=20, gd=16, lB2=5, lB1=0, cw=1, tlb=0, fill=0, f1=0, f2=9, fo=0, wsoff=0, wprio=3, l1=9, fence=1, inl=1, w0=4, w1=6, w0c=4, quiet=0, nosig=0, noside=0, nt2=2, wb=0, lB=0, hk1=0, lA0=8, lA=0, kq=2, wbj=0, kA0=12, kA1=8, kA2=0, rotx=1, spx=0, pB=10, iB=0, ring=4, nods=0, lsl=0, yB=12, zB=4, yB1=2, zB1=4, aaux="sc1", ahot=0, g2=52, rot2=1, pace=0, pace1=0, dy=2, ys=1, w2=1, p2only=0, plain=0, stouch=0, nst=0, saux="sc1", csprio=3, early=0, map2=81, smp=28, noa=0, now=0, la=7, touch=0, ltouch=1, gl=0, eb=1, chl=0, preA=0, tl=1, rv=0, s1h=0, late=6, lw=0, r0=0, r1=0, r2=0, rall=0, chx=0, s1late=0, nostat=0, csd=0, gt=2, nar=1, seq=0, kslp=2, fsx=0, pg=0, fprio=1, f6=0, prime=4, cH1=4, cHA=12, cO=18, fl=4, ft=1, exprio=1, stdiag=0, p1only=0, nocomp=0, norot=0, noload=0, nocs=0)
for a in sys.argv[1:]:
    k, val = a.split("=")
    OPT[k] = val if not val.lstrip("-").isdigit() else int(val)
DIAG = OPT["diag"]
assert OPT["gx"] <= 36


def f2u(x):
    return struct.unpack("<I", struct.pack("<f", x))[0]


K = 1024
WS_STATS = 0x1000
FX = 5 if OPT["fsx"] else 0
LN = 128 << FX
WS_FLAGS = 0xA00000 if FX else 0x8000
FL_HB, FL_HA, FL_O, FL_H1 = 0, 64, 128, 192
WS_KVP = 0x10000
KVP_STR = 4352
WS_CS = 0xA0000
WS_HA = 0x140000 + OPT["wsoff"] * 0x100000
TB_STRIDE = 118 * K
WS_DIAG = 0x900000
WS_SIZE = (0xB00000 if FX else 0xA00000) + OPT["wsoff"] * 0x100000
def CH(q):
    return 96 * K + 8 * K * q if q < 7 else 88 * K
TBUF = 52 * K
TROW = OPT["trow"]
L_EX1 = 152 * K
L_CSX = 156 * K
L_RDY = 154 * K
L_PRG = L_RDY + 16
L_TAG = L_RDY + 32
L_FAST = L_RDY + 48
L_EX2 = 155 * K
L_KT = 156 * K
L_PQ = 72 * K
L_HS = 52 * K
L_XY = 112 * K
L_XS0, L_XS1 = 72 * K, 144 * K
def slot_of(p):
    if p < 18:
        return p * 4 * K
    if p < 34:
        return CH((p - 18) >> 1) + (p & 1) * 4 * K
    if p < 38:
        return 72 * K + (p - 34) * 4 * K
    return slot_of(p - 38)

rX, rP1, rP2, rWS, rW2, rWO, rA, rB = (s(n, 4) for n in (4, 8, 12, 16, 20, 24, 28, 32))
P_X, P_QKV, P_WO, P_W1, P_B1, P_W2, P_B2, P_OUT, P_WS = 36, 38, 40, 44, 46, 48, 50, 52, 56
NONCE, W, I_, J_, C_, TYPE, RHO, TB2, CT, RHO2 = (s(n) for n in range(58, 68))
T0, T1, T2, T3 = (s(n) for n in range(68, 72))

P = Prog()


class Q:
    def __init__(self, name, mx):
        self.q, self.name, self.mx = [], name, mx

    def room(self):
        if len(self.q) >= self.mx:
            P(f"s_waitcnt {self.name}({self.mx - 1})")
            self.q = self.q[len(self.q) - (self.mx - 1):]

    def add(self, tag=None):
        self.q.append(tag)

    def need(self, tag):
        if tag not in self.q:
            return ""
        idx = max(i for i, t in enumerate(self.q) if t == tag)
        n = len(self.q) - 1 - idx
        assert n <= self.mx, (self.name, n)
        self.q = self.q[idx + 1:]
        return f"{self.name}({n})"

    def wait(self, tag):
        t = self.need(tag)
        if t:
            P("s_waitcnt " + t)

    def drain(self, force=False):
        if self.q or force:
            P(f"s_waitcnt {self.name}(0)")
        self.q = []


slots = [{}, {}]
def stamp(role, name):
    if not DIAG:
        return
    want = str(OPT.get(f"st{role}", "")).split(",")
    if want != [""] and name not in want and name not in ("start", "end"):
        return
    n = slots[role].setdefault(name, len(slots[role]))
    if DIAG >= 3:
        assert n < 9, (role, name)
        P(f"{'s_memtime' if DIAG == 4 else 's_memrealtime'} s[{80 + 2 * n}:{81 + 2 * n}]")
        return
    assert n < 16, (role, name)
    P(f"{'s_memtime' if DIAG == 2 else 's_memrealtime'} s[96:97]\ns_waitcnt lgkmcnt(0)\ns_mov_b32 s{80 + n}, s96")


def sreg(r):
    return int(r[2:r.index(":")])


def srd(r, ptr, size):
    n = sreg(r)
    P(f"s_mov_b32 s{n}, s{ptr}\ns_mov_b32 s{n+1}, s{ptr+1}\ns_mov_b32 s{n+2}, 0x{size:x}\ns_mov_b32 s{n+3}, 0x20000")


def sel2(dst, a, b):
    P(f"s_mov_b32 {dst}, 0x{b:x}\ns_cmov_b32 {dst}, 0x{a:x}")


cold = []


def flush_cold():
    for t in cold:
        P(t)
    cold.clear()


def spin_text(lbl, load, check):
    t = f"s_mov_b32 {T3}, {1 << OPT['spin']}\n{lbl}:\n{load}\ns_waitcnt vmcnt(0)\n{check}\n"
    t += f"s_sub_u32 {T3}, {T3}, 1\ns_cbranch_scc1 {lbl}_x\ns_cbranch_vccz {lbl}_x\n"
    n = OPT["kslp"] if lbl in ("L_kv", "L_cs", "L_gr") else OPT["slp"]
    if n:
        t += f"s_sleep {n}\n"
    return t + f"s_branch {lbl}"


def spin(lbl, load, check):
    P(spin_text(lbl, load, check))
    P.label(lbl + "_x")


def retry(lbl, load, check):
    if OPT["inl"]:
        P(f"s_cbranch_vccz {lbl}_x")
        spin(lbl, load, check)
        return
    P(f"s_cbranch_vccnz {lbl}_s")
    P.label(lbl + "_x")
    cold.append(f"{lbl}_s:\n" + spin_text(lbl, load, check))


HX = "row"
FAR = "s46"
nrow = [0]
def row_store(text, nt=0):
    if not OPT["fast"] or nt == 2:
        P(text + " sc1")
        return
    nrow[0] += 1
    l = f"L_r{nrow[0]}"
    P(f"s_cmp_lg_u32 {FAR}, 0\ns_cbranch_scc1 {l}\n{text} {'nt' if nt else ''}\n{l}_x:")
    cold.append(f"{l}:\n{text} sc1\ns_branch {l}_x")


def flag_store(sreg_off, va=26, aux="sc1"):
    P(f"v_mov_b32 {v(va)}, {NONCE}\nv_mov_b32 {v(va+1)}, 0")
    P("s_mov_b64 exec, 1")
    if aux == "row":
        row_store(f"buffer_store_dword {v(va)}, {v(va+1)}, {rWS}, {sreg_off} offen")
    else:
        P(f"buffer_store_dword {v(va)}, {v(va+1)}, {rWS}, {sreg_off} offen {aux}")
    P("s_mov_b64 exec, -1")


def signal(vaddr, vtmp, k, fence=False):
    if fence and OPT["fence"]:
        lg.drain(force=True)
    P(f"v_mov_b32 {v(vtmp)}, {k}\ns_mov_b64 exec, 1\nds_write_b32 {v(vaddr)}, {v(vtmp)}\ns_mov_b64 exec, -1")
    lg.add(None)


nwait = [0]
def peek(vaddr, vd):
    lg.room()
    P(f"ds_read_b32 {v(vd)}, {v(vaddr)}")
    lg.add(("peek", vd))


def await_(vaddr, vd, k, peeked=False):
    nwait[0] += 1
    lbl = f"L_w{nwait[0]}"
    if not peeked:
        peek(vaddr, vd)
    lg.wait(("peek", vd))
    P(f"v_cmp_gt_u32 vcc, {k}, {v(vd)}")
    loop = (f"s_mov_b32 {T3}, {1 << 20}\n{lbl}:\nds_read_b32 {v(vd)}, {v(vaddr)}\ns_sub_u32 {T3}, {T3}, 1\ns_waitcnt lgkmcnt(0)\n"
            f"v_cmp_gt_u32 vcc, {k}, {v(vd)}\ns_cbranch_scc1 {lbl}_x\ns_cbranch_vccnz {lbl}")
    if OPT["inl"]:
        P(f"s_cbranch_vccz {lbl}_x\n{loop}")
    else:
        P(f"s_cbranch_vccnz {lbl}_s")
        cold.append(f"{lbl}_s:\n{loop}\ns_branch {lbl}_x")
    P.label(lbl + "_x")


def hblock2(dst):
    P(f"s_lshl_b32 {dst}, {C_}, 1\ns_add_u32 {T3}, {C_}, 3\ns_min_u32 {dst}, {dst}, {T3}\ns_add_u32 {dst}, {dst}, 32")


def waddr(dst, t1, t2, hshift):
    P(f"v_lshrrev_b32 {v(t1)}, 5, v0\nv_bfe_u32 {v(t2)}, v0, 2, 2\nv_lshl_add_u32 {v(t1)}, {v(t1)}, {hshift}, {v(t2)}")
    P(f"v_lshlrev_b32 {v(dst)}, 7, {v(t1)}")
    P(f"v_bfe_u32 {v(t1)}, v0, 3, 1\nv_lshl_or_b32 {v(dst)}, {v(t1)}, 6, {v(dst)}")
    P(f"v_bfe_u32 {v(t1)}, v0, 4, 1\nv_lshl_or_b32 {v(dst)}, {v(t1)}, 5, {v(dst)}")
    P(f"v_and_b32 {v(t1)}, 3, v0\nv_lshl_or_b32 {v(dst)}, {v(t1)}, 3, {v(dst)}")


def tr(dst, addr, off, tag):
    assert 0 <= off < 65536, off
    lg.room()
    P(f"ds_read_b64_tr_b16 {v(dst, 2)}, {v(addr)} offset:{off}")
    lg.add(tag)


def dump(role):
    if not DIAG:
        return
    P("s_waitcnt vmcnt(0)")
    stamp(role, "end")
    P("s_waitcnt lgkmcnt(0)")
    for n in range(16):
        P(f"v_mov_b32 {v(32 + n)}, {s(80 + n) if DIAG < 3 else (s(80 + 2 * n) if n < 10 else ('s100' if n == 15 else 0))}")
    if role == 1 and DIAG >= 3 and OPT.get("xcc"):
        P(f"s_getreg_b32 {T0}, hwreg(HW_REG_XCC_ID, 0, 4)\ns_min_u32 {T1}, s46, 1\ns_lshl4_add_u32 {T0}, {T1}, {T0}\nv_mov_b32 v45, {T0}")
    P(f"s_lshl_b32 {T0}, s2, 3\ns_add_u32 {T0}, {T0}, {W}\ns_lshl_b32 {T0}, {T0}, 6\ns_add_u32 {T0}, {T0}, 0x{WS_DIAG + role * 256:x}")
    P("v_mov_b32 v26, 0\ns_mov_b64 exec, 1")
    for n in range(4):
        P(f"buffer_store_dwordx4 {v(32 + 4 * n, 4)}, v26, {rWS}, {T0} offen offset:{16 * n}")


P("s_cmp_ge_u32 s2, 256")
P("s_cbranch_scc1 L_end")
if DIAG >= 3:
    P("s_memrealtime s[100:101]")
P("s_load_dwordx16 s[36:51], s[0:1], 0")
P("v_lshrrev_b32 v1, 6, v0")
P("v_and_b32 v0, 63, v0")
P(f"v_lshlrev_b32 v2, 2, v1\nv_add_u32 v2, 0x{L_RDY:x}, v2\nv_mov_b32 v3, 0\nds_write_b32 v2, v3")
if OPT["map1"] == 81:
    P(f"s_lshr_b32 {T3}, s2, 7\nv_readfirstlane_b32 {T2}, v1\ns_and_b32 {I_}, s2, 7\ns_bfe_u32 {J_}, s2, 0x40003")
    if OPT["rv"] == 1:
        P(f"s_and_b32 {T1}, s2, 3\ns_lshl1_add_u32 {I_}, {I_}, {T3}\ns_lshl2_add_u32 {RHO}, {T3}, {T1}")
    else:
        P(f"s_lshl2_add_u32 {RHO}, {T3}, {J_}\ns_and_b32 {T1}, s2, 3\ns_lshl1_add_u32 {I_}, {I_}, {T3}\ns_add_u32 {RHO}, {RHO}, {T1}\ns_and_b32 {RHO}, {RHO}, 7")
    if OPT["rv"] == 2:
        P(f"s_lshr_b32 {T1}, {J_}, 1\ns_sub_u32 {RHO}, {RHO}, {J_}\ns_add_u32 {RHO}, {RHO}, {T1}\ns_and_b32 {RHO}, {RHO}, 7")
elif OPT["map1"] == 24:
    P(f"s_lshr_b32 {T3}, s2, 5\nv_readfirstlane_b32 {T2}, v1\ns_and_b32 {I_}, s2, 4\ns_bfe_u32 {T1}, s2, 0x20003\ns_and_b32 {J_}, s2, 3")
    P(f"s_lshl1_add_u32 {I_}, {I_}, {T3}\ns_lshl2_add_u32 {J_}, {J_}, {T1}\ns_lshl1_add_u32 {RHO}, {T1}, {T3}\ns_and_b32 {T1}, s2, 1\ns_add_u32 {RHO}, {RHO}, {T1}\ns_and_b32 {RHO}, {RHO}, 7")
else:
    P(f"s_lshr_b32 {T3}, s2, 6\nv_readfirstlane_b32 {T2}, v1\ns_and_b32 {I_}, s2, 6\ns_bfe_u32 {T1}, s2, 0x30003\ns_and_b32 {J_}, s2, 1")
    P(f"s_lshl1_add_u32 {I_}, {I_}, {T3}\ns_lshl3_add_u32 {J_}, {J_}, {T1}\ns_lshl1_add_u32 {RHO}, {T3}, {T1}\ns_bfe_u32 {T1}, s2, 0x10001\ns_add_u32 {RHO}, {RHO}, {T1}\ns_and_b32 {RHO}, {RHO}, 7")
P(f"s_and_b32 {W}, {T2}, 3")
def late_args():
    P("s_load_dwordx4 s[52:55], s[0:1], 64")
    P("s_load_dwordx2 s[56:57], s[0:1], 80")
    P(f"s_lshr_b32 {C_}, {J_}, 1\ns_and_b32 {TYPE}, {J_}, 1")
def diag_init():
    if DIAG:
        for n in range(20):
            P(f"s_mov_b32 s{80 + n}, 0")


RHOS, RHOA = "s3", "s47"
def tile2():
    if OPT["map2"] == 42:
        P(f"s_lshr_b32 {T3}, s2, 5\ns_bfe_u32 {TB2}, s2, 0x20001\ns_lshl_b32 {TB2}, {TB2}, 3\ns_add_u32 {TB2}, {TB2}, {T3}")
        P(f"s_bfe_u32 {RHO2}, s2, 0x20003\ns_and_b32 {CT}, s2, 1\ns_lshl_b32 {CT}, {CT}, 2\ns_add_u32 {CT}, {CT}, {RHO2}")
        P(f"s_lshl_b32 {RHO2}, {RHO2}, 1\ns_add_u32 {RHO2}, {RHO2}, {T3}\ns_and_b32 {RHO2}, {RHO2}, 7")
        return
    P(f"s_lshr_b32 {T3}, s2, 6\ns_and_b32 {TB2}, s2, 7\ns_lshl_b32 {TB2}, {TB2}, 2\ns_add_u32 {TB2}, {TB2}, {T3}")
    P(f"s_bfe_u32 {CT}, s2, 0x30003\ns_lshl_b32 {RHO2}, {T3}, 1\ns_add_u32 {RHO2}, {RHO2}, {CT}\ns_and_b32 {RHO2}, {RHO2}, 7")
    P(f"s_add_u32 {RHOS}, {T3}, {CT}\ns_mul_i32 {RHOA}, {T3}, 3\ns_and_b32 {T3}, {CT}, 1\ns_add_u32 {RHOA}, {RHOA}, {T3}")
    if not OPT["rotx"]:
        P(f"s_mov_b32 {RHOS}, {RHO2}\ns_mov_b32 {RHOA}, 0")


P(f"s_cmp_lt_u32 {T2}, 4")
P("s_cbranch_scc1 L_loader")
late_args()
if OPT["codepf"]:
    P("s_getpc_b64 s[32:33]")
    P.label("L_pc")
    P("s_mov_b32 s34, L_codeend-L_pc\ns_mov_b32 s35, 0x20000")
    P(f"s_lshr_b32 {T0}, s2, 3\ns_lshl2_add_u32 {T1}, {T0}, {W}\ns_lshl_b32 {T1}, {T1}, 7\nv_and_b32 v4, 3, v0\nv_lshl_add_u32 v4, v4, 14, {T1}")
    P("buffer_load_dword v31, v4, s[32:35], 0 offen")
P("s_branch L_compute")
P.label("L_loader")

lg = Q("lgkmcnt", 15)
vm = Q("vmcnt", 63)
VX, VP1, VP2, VW2, VBI, LWA, LWB, VL16, SEL, CS, CS2 = 1, 2, 3, 4, 5, 6, 7, 8, 12, 16, 20
RS1, RS32, SX0, SW0, DCOL, SP20, SM, HB0L = (s(n) for n in range(72, 80))
if DIAG < 3:
    diag_init()
    stamp(1, "start")
P("v_lshrrev_b32 v24, 3, v0\nv_and_b32 v25, 7, v0\nv_lshrrev_b32 v26, 4, v0")
P(f"s_and_b32 {T0}, {W}, 1\ns_lshl_b32 {T0}, {T0}, 2\ns_lshl4_add_u32 {SX0}, {I_}, {W}")
P(f"v_add_u32 v27, {T0}, v26\nv_xor_b32 v27, v27, v25\nv_lshlrev_b32 v27, 4, v27\nv_lshl_or_b32 {v(VX)}, v24, 10, v27")
P(f"s_lshl_b32 {SX0}, {SX0}, 13\ns_lshl_b32 {SM}, {W}, 10")
P("s_mov_b32 s6, 0x200000\ns_mov_b32 s7, 0x20000")
SZQ, SZ1 = 512 * 3072, 512 * 2752


def wsetup():
    late_args()
    P(f"s_setprio {OPT['prio']}")
    P(f"s_lshl_b32 {T1}, {C_}, 7\ns_cmp_eq_u32 {TYPE}, 0")
    sel2(RS1, 3072, 2752)
    sel2(DCOL, 1024, 128)
    sel2("s10", SZQ, SZ1)
    P(f"s_cselect_b32 s8, s{P_QKV}, s{P_W1}\ns_cselect_b32 s9, s{P_QKV+1}, s{P_W1+1}\ns_mov_b32 s11, 0x20000")
    P(f"s_cselect_b32 {SW0}, 1024, {T1}\ns_add_u32 {SW0}, {SW0}, {T1}")
    P("v_and_b32 v27, 1, v26\nv_lshlrev_b32 v27, 2, v27\nv_xor_b32 v27, v27, v25\nv_lshlrev_b32 v27, 4, v27")
    P(f"v_mad_u32_u24 {v(VP1)}, v24, {RS1}, v27")
    P(f"s_lshl_b32 {T3}, {W}, 3\ns_mul_i32 {SP20}, {T3}, {RS1}\ns_add_u32 {SW0}, {SW0}, {SP20}\ns_lshl_b32 {RS32}, {RS1}, 5")


def wsetup2():
    hblock2(HB0L)
    P(f"s_lshl_b32 {T0}, {HB0L}, 6\ns_lshl_b32 {T1}, {C_}, 7\ns_cmp_eq_u32 {TYPE}, 0\ns_cselect_b32 {T0}, {T1}, {T0}\ns_add_u32 {SP20}, {SP20}, {T0}")
    P(f"v_lshl_or_b32 {v(VW2)}, v24, 10, v27")


def dma(voff, srdr, soff, tag):
    if OPT["noload"]:
        return
    P(f"buffer_load_dwordx4 {v(voff)}, {srdr}, {soff} offen lds")
    vm.add(tag)


def ks_reg(q):
    P(f"s_add_u32 {T0}, {RHO}, {q}\ns_and_b32 {T0}, {T0}, 7" if q else f"s_mov_b32 {T0}, {RHO}")


def stage(q, mid=None, pre=None):
    sl = (q % 3) * 32 * K
    ks_reg(q)
    P(f"s_lshl_b32 {T1}, {T0}, 7\ns_add_u32 {T1}, {T1}, {SX0}")
    for m in range(4):
        P(f"s_add_u32 m0, {SM}, {sl + 4 * K * m}")
        if m:
            P(f"s_add_u32 {T1}, {T1}, 32768")
        else:
            P(f"s_lshl_b32 {T0}, {T0}, 6")
            if pre:
                pre()
        dma(VX, rX, T1, ("st", q))
    if mid:
        mid()
    P(f"s_mul_i32 {T0}, {T0}, {RS1}\ns_add_u32 {T0}, {T0}, {SW0}")
    for h in range(2):
        if h:
            P(f"s_add_u32 {T0}, {T0}, {RS32}")
        P(f"s_add_u32 m0, {SM}, {sl + 16 * K + 4 * K * h}")
        P(f"s_add_u32 {T1}, {T0}, {DCOL}")
        dma(VP1, rP1, T0, ("st", q))
        P(f"s_add_u32 m0, {SM}, {sl + 24 * K + 4 * K * h}")
        dma(VP1, rP1, T1, ("st", q))


def chunk(q, tag="ch"):
    ks_reg(q)
    P(f"s_lshl_b32 {T0}, {T0}, 6\ns_mul_i32 {T0}, {T0}, {RS1}")
    P(f"s_add_u32 m0, {SM}, {CH(q)}\ns_add_u32 {T0}, {T0}, {SP20}")
    dma(VP1, rP1, T0, tag)
    P(f"s_add_u32 m0, {SM}, {CH(q) + 4 * K}\ns_add_u32 {T0}, {T0}, {RS32}")
    dma(VP1, rP1, T0, tag)


LPA, LPL = "s48", "s49"
LPB, LGB, SCS = "s36", "s37", "s38"
CHR, MID, PQR, D0, D1 = 48, 104, 212, 32, 228


def page_addr(p):
    if p < 32:
        if p % 2 == 0 or page_addr.last != ("b", p >> 1):
            P(f"s_add_u32 {LGB}, {RHO2}, {(p >> 1) & 7}\ns_and_b32 {LGB}, {LGB}, 7\ns_lshl_b32 {LGB}, {LGB}, 17\ns_add_u32 {LGB}, {LGB}, {LPB}")
            page_addr.last = ("b", p >> 1)
        P(f"s_add_u32 {T0}, {LGB}, {(2 * (p >> 4) + (p & 1)) * 32768}")
        return rW2
    elif p < 44:
        P(f"s_add_u32 {T0}, {LPA}, {(p - 32) * 32768}\ns_cmp_ge_u32 {T0}, {LPL}\ns_cselect_b32 {T1}, {11 * 32768}, 0\ns_sub_u32 {T0}, {T0}, {T1}")
        return rW2
    else:
        g, mask, sr, add = (p - 44) >> 2, 3, rWO, 0
    if p % 4 == 0 or page_addr.last != (p >> 2):
        P(f"s_add_u32 {LGB}, {RHOS}, {g}\ns_and_b32 {LGB}, {LGB}, {mask}\ns_lshl_b32 {LGB}, {LGB}, 17\ns_add_u32 {LGB}, {LGB}, {LPB}")
        page_addr.last = p >> 2
    P(f"s_add_u32 {T0}, {LGB}, {(p % 4) * 32768}")
    return sr
page_addr.last = None


def page(p):
    P(f"s_add_u32 m0, {SM}, {slot_of(p)}")
    sr = page_addr(p)
    dma(VW2, sr, T0, ("pg", p))


def stg_reg(p):
    if p < 38:
        return MID + 4 * (p - 18)
    k = p - 38 if p < 43 else p - 39
    return CHR + 4 * k if k < 14 else 184 + 4 * (k - 14)


def lds16(a):
    return f"{v(VL16 + a // (64 * K))}", a % (64 * K)


VP2N = 23
def chunk_stage(q):
    if OPT["nar"] and q == 1:
        P(f"s_cmp_ge_u32 {C_}, 3\ns_cselect_b32 {T0}, {TYPE}, 0\ns_lshl_b32 {T0}, {T0}, 6\ns_not_b32 {T0}, {T0}")
        P(f"v_lshrrev_b32 v27, 3, v0\nv_mul_u32_u24 v27, {RS1}, v27\nv_sub_u32 v28, {v(VP1)}, v27\nv_and_b32 v28, {T0}, v28\nv_add_u32 {v(VP2N)}, v27, v28")
    ks_reg(q)
    P(f"s_lshl_b32 {T0}, {T0}, 6\ns_mul_i32 {T0}, {T0}, {RS1}\ns_add_u32 {T0}, {T0}, {SP20}\ns_add_u32 {T1}, {T0}, {RS32}")
    for h in range(2):
        P(f"buffer_load_dwordx4 {v(CHR + 8 * (q - 1) + 4 * h, 4)}, {v(VP2N if OPT['nar'] else VP1)}, {rP1}, {(T0, T1)[h]} offen")
        vm.add(("ch", q))


def chunk_write(q):
    vm.wait(("ch", q))
    for h in range(2):
        a, off = lds16(CH(q) + 4 * K * h)
        P(f"ds_write_b128 {a}, {v(CHR + 8 * (q - 1) + 4 * h, 4)} offset:{off}")


def page_stage(p):
    sr = page_addr(p)
    P(f"buffer_load_dwordx4 {v(stg_reg(p), 4)}, {v(VW2)}, {sr}, {T0} offen")
    vm.add(("pg", p))


def page_write(p, pace=0):
    so = slot_of(p)
    a, off = (VL16, so) if so < 64 * K else ((VL16 + 1, so - 64 * K) if so < 128 * K else (VL16 + 2, so - 128 * K))
    P(f"ds_write_b128 {v(a)}, {v(stg_reg(p), 4)} offset:{off}")
    if pace:
        P("s_waitcnt lgkmcnt(0)")


stage(0, wsetup, lambda: P(f"s_waitcnt lgkmcnt(0)\ns_mov_b32 s4, s{P_X}\ns_mov_b32 s5, s{P_X+1}"))
if DIAG >= 3:
    diag_init()
    stamp(1, "start")
stamp(1, "st0")
wsetup2()
if not OPT["chl"]:
    chunk(0, "ch0")
P("s_waitcnt lgkmcnt(0)")
P(f"s_load_dword {NONCE}, s[{P_WS}:{P_WS+1}], 0")
srd(rWS, P_WS, WS_SIZE)
srd(rW2, P_W2, 1376 * 1024)
srd(rWO, P_WO, 512 * 1024)
srd(rA, P_B1, 2752)
tile2()
waddr(LWA, 27, 28, 3)
P(f"s_and_b32 {T0}, {W}, 1\ns_lshl_b32 {T0}, {T0}, 6")
P(f"v_xor_b32 {v(LWA)}, {T0}, {v(LWA)}")
P(f"v_add_u32 {v(LWB)}, 0x{CH(0):x}, {v(LWA)}")
P(f"s_lshr_b32 {T0}, {W}, 1\ns_lshl_b32 {T0}, {T0}, 13\ns_add_u32 {T0}, {T0}, {16 * K}")
P(f"v_add_u32 {v(LWA)}, {T0}, {v(LWA)}")
P("v_and_b32 v27, 15, v0\nv_lshlrev_b32 v28, 2, v26\nv_cmp_eq_u32 vcc, v27, v28\nv_mov_b32 v27, 0x3f803f80")
for r in range(4):
    P(f"v_cndmask_b32 {v(SEL + r)}, 0, v27, vcc")
P(f"v_lshl_add_u32 {v(VL16)}, v0, 4, {SM}")
P(f"v_add_u32 {v(VL16+1)}, 0x10000, {v(VL16)}\nv_add_u32 {v(VL16+2)}, 0x20000, {v(VL16)}")
P(f"s_lshl_b32 {LPB}, {W}, 13\ns_lshl_b32 {T1}, {CT}, 7\ns_add_u32 {LPB}, {LPB}, {T1}")
P(f"s_lshl_b32 {LPA}, {RHOA}, 15\ns_add_u32 {LPA}, {LPA}, {LPB}\ns_add_u32 {LPA}, {LPA}, {32 * 32768}\ns_add_u32 {LPL}, {LPB}, {43 * 32768}")
P(f"s_lshl_b32 {SCS}, {J_}, 1\ns_lshr_b32 {T0}, {I_}, 3\ns_add_u32 {SCS}, {SCS}, {T0}\ns_lshl_b32 {SCS}, {SCS}, 2")
P(f"s_add_u32 {SCS}, {SCS}, {W}\ns_lshl_b32 {SCS}, {SCS}, 12\ns_add_u32 {SCS}, {SCS}, 0x{WS_CS:x}")
P(f"s_lshl_b32 {T0}, {C_}, 2\ns_add_u32 {T0}, {T0}, {W}\ns_lshl_b32 {T0}, {T0}, 6")
P(f"s_and_b32 {T1}, {W}, 1\ns_add_u32 {T1}, {T1}, {HB0L}\ns_lshl_b32 {T1}, {T1}, 6")
P(f"s_cmp_eq_u32 {TYPE}, 0\ns_cselect_b32 {T0}, 0x100000, {T0}\ns_cselect_b32 {T1}, 0x100000, {T1}")
P(f"v_mov_b32 v27, {T0}\nv_mov_b32 v28, {T1}\nv_cmp_gt_u32 vcc, 32, v0\nv_and_b32 v29, 31, v0")
P(f"v_cndmask_b32 v27, v28, v27, vcc\nv_lshl_add_u32 v30, v29, 1, v27")
VSIG, VPK = 11, 24
P(f"s_lshl_b32 {T0}, {W}, 2\ns_add_u32 {T0}, {T0}, 0x{L_RDY:x}\nv_mov_b32 {v(VSIG)}, {T0}")
P(f"v_and_b32 {v(VPK)}, 3, v0\nv_lshlrev_b32 {v(VPK)}, 2, {v(VPK)}\nv_add_u32 {v(VPK)}, 0x{L_PRG:x}, {v(VPK)}")
XRES, BRES, VO, SO = 244, 252, 19, "s45"
if OPT["eb"]:
    srd(rB, P_B2, 1024)
    P(f"buffer_load_ushort {v(VBI)}, v30, {rA}, 0 offen")
    P(f"v_and_b32 v28, 7, v0\nv_lshlrev_b32 v28, 4, v28\ns_lshl_b32 {T1}, {CT}, 7")
    P(f"buffer_load_dwordx4 {v(BRES, 4)}, v28, {rB}, {T1} offen")
    vm.add(None)
    vm.add(None)
stamp(1, "setup")
if not OPT["s1late"]:
    stage(1, (lambda: P(f"s_waitcnt vmcnt({OPT['s1h']})")) if OPT["s1h"] else None)
if OPT["chl"] and not OPT["chx"] and not OPT["s1late"]:
    chunk(0, ("st", 1))
stamp(1, "issued")
P(f"s_waitcnt lgkmcnt(0)\ns_add_u32 {NONCE}, {NONCE}, 1")
vm.wait("ch0")
vm.wait(("st", 0))
stamp(1, "land")
if OPT["p2only"]:
    P("s_waitcnt vmcnt(0)\ns_barrier")
    signal(VSIG, 27, 6)
    P("s_barrier\ns_barrier")
    dump(1)
    P("s_endpgm")
    lg.q = []
P("s_barrier ; b0")
stamp(1, "b0")
FR = 32


def cs_reads(a, f):
    for t in range(4):
        P(f"ds_read_b64_tr_b16 {v(f + 4 * t, 2)}, {v(a)} offset:{t * 2048}")
        P(f"ds_read_b64_tr_b16 {v(f + 4 * t + 2, 2)}, {v(a)} offset:{t * 2048 + 512}")


def cs_mfma(acc, f):
    for t in range(4):
        P(f"v_mfma_f32_16x16x32_bf16 {v(acc, 4)}, {v(SEL, 4)}, {v(f + 4 * t, 4)}, {'0' if t == 0 else v(acc, 4)}")


CSL = "\n".join(f"buffer_load_dwordx2 {v(32 + 2 * n, 2)}, v29, {rWS}, {SCS} offen offset:{512 * n} sc1" for n in range(8))
CSC = "\n".join([f"v_xor_b32 {v(228 + n)}, {NONCE}, {v(33 + 2 * n)}" for n in range(8)] +
                ["v_or3_b32 v228, v228, v229, v230", "v_or3_b32 v231, v231, v232, v233", "v_or3_b32 v228, v228, v234, v235",
                 "v_or_b32 v228, v228, v231", "v_cmp_ne_u32 vcc, 0, v228"])
nch = 1
for st in range(8):
    CL = OPT["chl"]
    def mid():
        if st == 0:
            P(f"s_setprio {OPT['csprio']}")
            P("s_waitcnt lgkmcnt(0)")
            if not CL:
                cs_reads(LWB, FR + 16)
            cs_mfma(CS, FR)
            if CL:
                P(f"s_setprio {OPT['prio']}")
    if st == 0:
        cs_reads(LWA, FR)
        if OPT["s1late"]:
            stage(1)
            if OPT["chl"]:
                chunk(0, ("st", 1))
    if OPT["chx"] and st == OPT["chx"]:
        chunk(0, None)
    if st == 1 and CL:
        cs_reads(LWB, FR + 16)
    if st <= 5:
        if OPT["late"] >> st & 1:
            P(f"s_waitcnt vmcnt({OPT['lw']})")
        stage(st + 2, mid)
    if st == CL:
        P(f"s_setprio {OPT['csprio']}")
        P(f"s_lshl_b32 {T0}, {W}, 8\ns_add_u32 {T0}, {T0}, 0x{L_CSX:x}")
        P(f"v_lshl_add_u32 v27, v0, 2, {T0}")
        P("s_waitcnt lgkmcnt(0)")
        cs_mfma(CS2, FR + 16)
        P(f"v_permlane32_swap_b32 {v(CS)}, {v(CS2)}")
        P(f"v_add_f32 {v(CS)}, {v(CS)}, {v(CS2)}")
        P(f"ds_write_b32 v27, {v(CS)}")
        P(f"s_setprio {OPT['prio']}")
    if st == CL + 1:
        P("s_waitcnt lgkmcnt(0)")
    if OPT["fill"] == 3 and 1 <= st <= 6:
        if st == 1:
            P(f"s_lshl2_add_u32 s40, {I_}, {W}\ns_mul_i32 s40, s40, {TB_STRIDE}\ns_lshl_b32 {T0}, {J_}, 12\ns_add_u32 s40, s40, {T0}\ns_add_u32 s40, s40, 0x{WS_HA:x}")
        for t in range(6 * (st - 1), min(32, 6 * st)):
            P(f"s_buffer_load_dword s41, {rWS}, s40 offset:{128 * t}")
    if st == 6:
        P("v_lshlrev_b32 v29, 3, v0")
        P(CSL)
        for n in range(8):
            vm.add("cs")
        if OPT["ltouch"]:
            P(f"s_lshl2_add_u32 {T0}, s2, {W}\ns_mul_i32 {T1}, {T0}, {11 * 128}\ns_lshl_b32 {T0}, {T0}, 9")
            P(f"v_min_u32 v27, 10, v0\nv_lshlrev_b32 v27, 7, v27\nv_and_b32 v28, 0x180, v27")
            P(f"buffer_load_dword v20, v27, {rW2}, {T1} offen\nbuffer_load_dword v21, v28, {rWO}, {T0} offen")
            vm.add(None)
            vm.add(None)
        if OPT["f6"]:
            P(f"s_mul_i32 {T0}, {I_}, {4 * TB_STRIDE}\ns_lshl_b32 {T1}, {C_}, 12\ns_add_u32 {T1}, {T1}, {SM}\ns_add_u32 {T1}, {T1}, {86 * K}")
            P(f"s_mul_i32 {T2}, {W}, {TB_STRIDE}\ns_lshl_b32 {T3}, {HB0L}, 11\ns_add_u32 {T2}, {T2}, {T3}")
            P(f"s_cmp_lt_u32 {C_}, 3")
            sel2(T3, 3, 1)
            P(f"s_cmp_eq_u32 {TYPE}, 0\ns_cselect_b32 {T1}, {T1}, {T2}\ns_cselect_b32 {T3}, 3, {T3}")
            sel2(T2, TB_STRIDE, 1024)
            P(f"s_add_u32 {T0}, {T0}, {T1}\ns_add_u32 {T0}, {T0}, 0x{WS_HA:x}")
            P(f"v_lshrrev_b32 v27, 3, v0\nv_and_b32 v27, {T3}, v27\nv_mul_u32_u24 v27, {T2}, v27\nv_and_b32 v28, 7, v0\nv_lshl_add_u32 v27, v28, 7, v27")
            P(f"buffer_load_dword v23, v27, {rWS}, {T0} offen")
            vm.add(None)
        if OPT["ft"]:
            P(f"s_lshl2_add_u32 {T0}, {I_}, {W}\ns_lshl_b32 {T0}, {T0}, 7\ns_lshl_b32 {T1}, {I_}, 7\ns_add_u32 {T1}, {T1}, {FL_O * 128}")
            P(f"v_and_b32 v27, 3, v0\nv_lshl_add_u32 v28, v27, 13, {T0}\nv_mov_b32 v22, {T1}\nv_cmp_eq_u32 vcc, 2, v27\nv_cndmask_b32 v28, v28, v22, vcc")
            P(f"s_mov_b32 {T0}, 0x{WS_FLAGS:x}\nbuffer_load_dword v22, v28, {rWS}, {T0} offen sc1")
            vm.add(None)
    if st == 7:
        P(f"s_setprio {OPT['exprio']}")
        vm.wait("cs")
        stamp(1, "csin")
        P(CSC)
        retry("L_cs", CSL, CSC)
        stamp(1, "csok")
        P("v_add_f32 v32, v32, v34\nv_add_f32 v36, v36, v38\nv_add_f32 v40, v40, v42\nv_add_f32 v44, v44, v46")
        P("v_add_f32 v32, v32, v36\nv_add_f32 v40, v40, v44\nv_add_f32 v32, v32, v40")
        P("v_cvt_pk_bf16_f32 v33, v32, v32\nv_lshlrev_b32 v33, 16, v33\nv_sub_f32 v32, v32, v33\nv_cvt_pk_bf16_f32 v32, v33, v32")
        P("v_cmp_gt_u32 vcc, 32, v0")
        P(f"s_lshl_b32 {T0}, {W}, 9\ns_add_u32 {T0}, {T0}, 0x{L_EX1:x}")
        P(f"v_add_u32 v29, {T0}, v29")
        P(f"v_cndmask_b32 v34, 0, v32, vcc\nv_cndmask_b32 v35, 0, {v(VBI)}, vcc")
        P(f"v_cndmask_b32 v36, v32, 0, vcc\nv_cndmask_b32 v37, {v(VBI)}, 0, vcc")
        P(f"ds_write_b64 v29, v[34:35]\nds_write_b64 v29, v[36:37] offset:{L_EX2 - L_EX1}")
    if st == 7:
        P(f"s_setprio {OPT['prio']}")
    if st >= 6:
        for q in range(nch, nch + OPT[f"n{st}"]):
            chunk_stage(q)
        nch += OPT[f"n{st}"]
    if st < 7:
        vm.wait(("st", st + 1))
    if st == 7:
        P("s_waitcnt lgkmcnt(0)")
        stamp(1, "exw")
    P(f"s_barrier ; b{st + 1}")
    if "st1" in OPT and st < 7:
        stamp(1, f"b{st+1}")
stamp(1, "b8")
if OPT["p1only"]:
    dump(1)
    P("s_endpgm")
    DIAG = 0
for q in range(nch, 8):
    chunk_stage(q)
if not OPT["eb"]:
    srd(rB, P_B2, 1024)
srd(rP2, P_OUT, 2 * K * K)
P(f"v_and_b32 v28, 7, v0\nv_lshlrev_b32 v28, 4, v28\nv_lshrrev_b32 v29, 3, v0\nv_lshl_or_b32 {v(VO)}, v29, 10, v28")
P(f"s_lshl_b32 {SO}, {TB2}, 2\ns_add_u32 {SO}, {SO}, {W}\ns_lshl_b32 {SO}, {SO}, 14\ns_lshl_b32 {T1}, {CT}, 7\ns_add_u32 {SO}, {SO}, {T1}")
P(f"s_add_u32 {T2}, {SO}, 8192")
if not OPT["eb"]:
    P(f"buffer_load_dwordx4 {v(BRES, 4)}, v28, {rB}, {T1} offen")
    vm.add("res")
P(f"buffer_load_dwordx4 {v(XRES, 4)}, {v(VO)}, {rX}, {SO} offen")
P(f"buffer_load_dwordx4 {v(XRES + 4, 4)}, {v(VO)}, {rX}, {T2} offen")
for _ in range(2):
    vm.add("res")
vq8 = list(vm.q)


def stream(seq):
    for p in seq:
        (page if p < 18 else page_stage)(p)


LATE = list(range(38, 43)) + list(range(44, 60))
P(f"s_cmp_eq_u32 {TYPE}, 0")
P("s_cbranch_scc1 L_lA")
SH1, SH2, SF1 = "s4", "s5", "s6"
P(f"v_add_u32 v22, 16, {v(VSIG)}\nv_lshlrev_b32 v23, 4, v0")
P(f"s_lshl_b32 {T0}, {I_}, 2\ns_add_u32 {T0}, {T0}, {W}")
P(f"s_mul_i32 {SH1}, {T0}, {TB_STRIDE}\ns_add_u32 {SH1}, {SH1}, 0x{WS_HA:x}")
P(f"s_lshl_b32 {SH2}, {HB0L}, 11\ns_add_u32 {SH2}, {SH2}, {SH1}\ns_lshl_b32 {T1}, {C_}, 13\ns_add_u32 {SH1}, {SH1}, {T1}")
P(f"s_lshl_b32 {SF1}, {T0}, 5\ns_add_u32 {SF1}, {SF1}, {C_}\ns_lshl_b32 {SF1}, {SF1}, {2 + FX}\ns_add_u32 {SF1}, {SF1}, 0x{WS_FLAGS + FL_HB * LN:x}")


def far():
    P(f"ds_read_b32 v28, {v(VPK)} offset:{L_FAST - L_PRG}\ns_waitcnt lgkmcnt(0)\nv_cmp_ne_u32 vcc, 0, v28\ns_or_b32 {FAR}, vcc_lo, vcc_hi")


def wback(tag):
    if OPT["wbj"] == 0:
        P(f"s_cmp_lg_u32 {W}, 0")
    else:
        P(f"s_xor_b32 {T0}, {J_}, {OPT['wbj'] - 1}\ns_or_b32 {T0}, {T0}, {W}\ns_cmp_lg_u32 {T0}, 0")
    P(f"s_cbranch_scc1 L_wb{tag}\nbuffer_wbl2 sc1\nL_wb{tag}:")


def hstore(k, base, b, sh, tag):
    if k == 1:
        await_(VPK, 28, k)
        far()
    else:
        await_(22, 28, k)
    d = D0 + 8 * (b & 1)
    for u in range(2):
        a = base + (2 * b + u) * 4096
        P(f"ds_read_b128 {v(d + 4 * u, 4)}, {v(VL16 + a // (64 * K))} offset:{a % (64 * K)}")
    if b == 2:
        P(f"s_add_u32 {sh}, {sh}, 4096")
    for u in range(2):
        P(f"s_waitcnt lgkmcnt({1 - u})")
        row_store(f"buffer_store_dwordx4 {v(d + 4 * u, 4)}, v23, {rWS}, {sh} offen offset:{2048 * (b & 1) + 1024 * u}", OPT["nt1"] if tag != "h2" else OPT["nt2"])
        vm.add(tag)


if OPT["fill"] == 1:
    P("v_lshlrev_b32 v25, 7, v0\nv_and_b32 v27, 0xfff, v25")
    P(f"buffer_load_dword v20, v25, {rWS}, {SH1} offen\nbuffer_load_dword v21, v27, {rWS}, {SH2} offen")
    vm.add(None)
    vm.add(None)
mid = list(range(18, 38))
stream(mid[:OPT["e1B"]])
np_ = OPT["e1B"]
for q in range(1, 5):
    chunk_write(q)
hstore(1, L_HS, 0, SH1, "h")
for q in range(5, 8):
    chunk_write(q)
signal(VSIG, 26, 1, True)
for b in range(1, 4):
    stream(mid[np_:np_ + OPT["iB2"]])
    np_ += OPT["iB2"]
    hstore(b + 1, L_HS, b, SH1, "h" if b < 2 else "h1")
signal(VSIG, 26, 2)
stamp(1, "h_st")
vm.wait("h")
flag_store(SF1, aux=HX)
vm.add(None)
stamp(1, "hbflag")
P(f"s_add_u32 {SF1}, {SF1}, {(FL_H1 - FL_HB) * LN}")
stream(range(OPT["xB"]))
vm.wait("h1")
flag_store(SF1, aux=HX)
vm.add(None)
stamp(1, "h1flag")
stream(range(OPT["xB"], 18))
stream(mid[np_:])
P(f"s_sub_u32 {SF1}, {SF1}, {(FL_H1 - FL_HA) * LN}")
P(f"s_cmp_lt_u32 {C_}, 3")
P("s_cbranch_scc0 L_lB1")
vqB = list(vm.q)
restB = {}
for nb in (2, 1):
    if nb == 1:
        P.label("L_lB1")
        vm.q = list(vqB)
    page_addr.last = None
    pre = OPT["lB2"] if nb == 2 else OPT["lB1"]
    stream(LATE[:pre])
    vm.wait(("pg", 17))
    signal(VSIG, 26, 3)
    stamp(1, "staged")
    lg.q = []
    await_(VPK, 28, 8)
    marks = {OPT["w0"]: 0, OPT["w1"]: 1} if nb == 2 else {OPT["w0c"]: 0}
    for n, p in enumerate(range(18, 38)):
        if n in marks:
            lg.q = []
            hstore(9 + marks[n], L_PQ, marks[n], SH2, "h2")
            stamp(1, "h2_st")
        vm.wait(("pg", p))
        page_write(p)
    signal(VSIG, 26, 4, True)
    vm.wait("h2")
    flag_store(SF1, aux=HX)
    vm.add(None)
    stamp(1, "oflag")
    stream(LATE[pre:max(pre, OPT["l1"])])
    vm.wait(("pg", 42))
    restB[nb] = LATE[max(pre, OPT["l1"]):]
    P("s_branch L_l5")
P.label("L_lA")
vm.q = list(vq8)
lg.q = []
page_addr.last = None
SOB = "s44"
P(f"s_mul_i32 {SOB}, {I_}, {4 * TB_STRIDE}\ns_lshl_b32 {T1}, {C_}, 12\ns_add_u32 {SOB}, {SOB}, {T1}")
P(f"s_add_u32 {SOB}, {SOB}, {SM}\ns_add_u32 {SOB}, {SOB}, 0x{WS_HA + 86 * K:x}")
if OPT["fill"] == 1:
    P(f"v_bfe_u32 v25, v0, 3, 2\nv_mul_u32_u24 v25, {TB_STRIDE}, v25\nv_and_b32 v27, 7, v0\nv_lshl_add_u32 v25, v27, 7, v25")
    P(f"buffer_load_dword v20, v25, {rWS}, {SOB} offen")
    vm.add(None)
mid = list(range(18, 38))
stream(mid[:8])
for q in range(1, 8):
    chunk_write(q)
signal(VSIG, 26, 1, True)
if OPT["fill"] in (2, 3):
    P(f"s_lshl2_add_u32 {T0}, {I_}, {W}\ns_mul_i32 {T0}, {T0}, {TB_STRIDE}\ns_add_u32 {T0}, {T0}, 0x{WS_HA:x}")
    P("v_lshlrev_b32 v25, 7, v0")
    if OPT["fill"] == 2:
        P(f"s_lshl_b32 {T1}, {C_}, 13\ns_add_u32 {T1}, {T1}, {T0}")
        P(f"buffer_load_dword v20, v25, {rWS}, {T1} offen")
        vm.add(None)
    P(f"s_mul_i32 {T1}, {C_}, {54 * 128}\ns_add_u32 {T1}, {T1}, {T0}\ns_add_u32 {T1}, {T1}, {64 * K}\nv_min_u32 v25, {53 * 128}, v25")
    P(f"buffer_load_dword v21, v25, {rWS}, {T1} offen")
    vm.add(None)
stream(mid[8:OPT["e1A"]])
lg.q = []
await_(VPK, 28, 2)
far()
stream(range(18))
stream(mid[OPT["e1A"]:])
PREA = LATE[:OPT["preA"]] if OPT["gd"] == 8 else LATE[21 - min(5, OPT["preA"]):21]
stream(PREA)
SZL, SK0, SK1, SKE = "s4", "s5", "s6", "s7"
NB = [NONCE, "s39", "s42", "s43"]
P("v_and_b32 v23, 15, v0\nv_lshlrev_b32 v27, 4, v0")
P(f"v_lshrrev_b32 v22, 2, v0\nv_mul_u32_u24 v25, {KVP_STR}, v22\nv_and_b32 v26, 3, v0\nv_lshl_add_u32 v25, v26, 4, v25")
P(f"s_mul_i32 {SK0}, {C_}, {16 * KVP_STR}\ns_add_u32 {SK0}, {SK0}, 0x{WS_KVP:x}")
P(f"s_lshl_b32 {SZL}, {W}, 6\ns_add_u32 {SZL}, {SZL}, {SK0}\ns_add_u32 {SZL}, {SZL}, 4096")
P(f"s_add_u32 {SK0}, {SK0}, {SM}\ns_add_u32 {SKE}, {SK0}, {16 * KVP_STR}")
P(f"s_lshl_b32 {SK1}, {I_}, 1\ns_and_b32 {SK1}, {SK1}, 15\ns_mul_i32 {SK1}, {SK1}, {KVP_STR}\ns_add_u32 {SK1}, {SK1}, {SK0}")
P(f"s_add_u32 {T0}, {SM}, 0x{L_KT:x}")
P("v_and_b32 v40, 1, v26\nv_lshlrev_b32 v40, 4, v40\nv_lshrrev_b32 v26, 1, v26\nv_lshl_or_b32 v40, v26, 3, v40")
P(f"v_lshl_or_b32 v40, v22, 5, v40\nv_add_u32 v40, {T0}, v40")
P("v_bfe_u32 v41, v0, 4, 1\nv_lshlrev_b32 v41, 4, v41\nv_lshrrev_b32 v26, 5, v0\nv_lshl_or_b32 v41, v26, 3, v41")
P(f"v_lshl_or_b32 v41, v23, 5, v41\nv_add_u32 v41, {T0}, v41")
P(f"v_and_b32 v42, 31, v0\nv_lshlrev_b32 v42, 5, v42\nv_lshl_or_b32 v42, v26, 4, v42\nv_add_u32 v42, {T0}, v42")
P(f"s_lshr_b32 s39, {NONCE}, 8\ns_lshr_b32 s42, {NONCE}, 16\ns_lshr_b32 s43, {NONCE}, 24")
ZL = f"buffer_load_dwordx4 v[28:31], v25, {rWS}, {SZL} offen sc1"
ZC = "\n".join([f"v_xor_b32 v20, {NB[0]}, v28", f"v_xor_b32 v21, {NB[1]}, v29",
                f"v_bitop3_b32 v20, v20, v30, {NB[2]} bitop3:0xf6", f"v_bitop3_b32 v21, v21, v31, {NB[3]} bitop3:0xf6",
                "v_or_b32 v20, v20, v21", "v_and_b32 v20, 0xff, v20", "v_cmp_ne_u32 vcc, 0, v20"])
P(f"s_setprio {OPT['gprio']}")
P(f"s_mov_b32 {T2}, 32")
P.label("L_kvall")
spin("L_kv", ZL, ZC)
stamp(1, "kv_seen")
signal(VSIG, 26, 3)
P(f"s_mov_b32 {T1}, {SK1}")
GD = OPT["gd"]
GQ = [CHR + 4 * n for n in range(14)] + [184, 188] if GD == 16 else [PQR + 4 * n for n in range(8)]
def gload(n):
    P(f"buffer_load_dwordx4 {v(GQ[n % GD], 4)}, v27, {rWS}, {T1} offen sc1")
    if n < 15:
        P(f"s_add_u32 {T1}, {T1}, {KVP_STR}")
        if n % 2 == 1:
            P(f"s_cmp_eq_u32 {T1}, {SKE}\ns_cselect_b32 {T1}, {SK0}, {T1}")
for n in range(GD):
    gload(n)
for n in range(4):
    P(f"v_and_b32 {v(28 + n)}, 0xffffff00, {v(28 + n)}")
for r in (4, 8):
    for n in range(4):
        P(f"v_add_f32_dpp {v(28 + n)}, {v(28 + n)}, {v(28 + n)} row_ror:{r} row_mask:0xf bank_mask:0xf")
for op in ("v_permlane16_swap_b32", "v_permlane32_swap_b32"):
    for n in range(4):
        P(f"v_mov_b32 {v(32 + n)}, {v(28 + n)}")
    for n in range(4):
        P(f"{op} {v(28 + n)}, {v(32 + n)}")
    for n in range(4):
        P(f"v_add_f32 {v(28 + n)}, {v(28 + n)}, {v(32 + n)}")
P("v_cvt_pk_bf16_f32 v28, v28, v29\nv_cvt_pk_bf16_f32 v29, v30, v31")
P("ds_write_b64 v40, v[28:29] offset:512")
for n in range(16):
    P(f"s_waitcnt vmcnt({min(GD - 1, 15 - n)})")
    for h in range(4):
        r = v(GQ[n % GD] + h)
        if n == 0:
            P(f"v_xor_b32 {v(36 + h)}, {NB[h]}, {r}\nv_and_b32 {v(32 + h)}, 0xffffff00, {r}")
        else:
            P(f"v_bitop3_b32 {v(36 + h)}, {v(36 + h)}, {r}, {NB[h]} bitop3:0xf6\nv_and_b32 {v(44 + h)}, 0xffffff00, {r}")
    if n + GD < 16:
        gload(n + GD)
    if n:
        for h in range(4):
            P(f"v_add_f32 {v(32 + h)}, {v(32 + h)}, {v(44 + h)}")
P("v_or3_b32 v36, v36, v37, v38\nv_or_b32 v36, v36, v39\nv_and_b32 v36, 0xff, v36\nv_cmp_ne_u32 vcc, 0, v36")
P(f"s_sub_u32 {T2}, {T2}, 1")
P("s_cbranch_scc1 L_kvok")
P("s_cbranch_vccnz L_kvall")
P.label("L_kvok")
stamp(1, "gath")
if DIAG >= 3 and "retry" in str(OPT.get("st1")):
    P(f"s_waitcnt lgkmcnt(0)\ns_sub_u32 s98, 32, {T2}\ns_mul_i32 s98, s98, 100\ns_add_u32 s98, s98, s100")
vm.q = []
page_addr.last = None
P("v_cvt_pk_bf16_f32 v32, v32, v33\nv_cvt_pk_bf16_f32 v33, v34, v35")
P("ds_write_b64 v41, v[32:33]")
lg.q = []
P("ds_read_b128 v[44:47], v42")
stream([p for p in LATE[:OPT["lA"]] if p not in PREA])
P(f"v_add_u32 v20, 0x{L_PQ:x}, {v(VL16)}")
P(f"s_mov_b32 s4, {SOB}")
stamp(1, "staged")
await_(VPK, 22, 10)
stamp(1, "g0")
for tb in range(4):
    P(f"ds_read_b128 {v(PQR + 4 * tb, 4)}, v20 offset:{tb * 4096}")
P("v_mov_b32 v28, v44\nv_mov_b32 v29, v45\nv_mov_b32 v30, v46\nv_mov_b32 v31, v47")
def o_mfma(tb):
    P(f"s_waitcnt lgkmcnt({3 - tb})")
    P(f"v_mfma_f32_32x32x16_bf16 {v((D0, D1)[tb & 1], 16)}, v[28:31], {v(PQR + 4 * tb, 4)}, 0")
o_mfma(0)
o_mfma(1)
for tb in range(4):
    d = (D0, D1)[tb & 1]
    P(f"v_add_f32 {v(d + 8)}, 0x{f2u(1e-6):x}, {v(d + 8)}")
    P(f"v_rcp_f32 {v(d + 8)}, {v(d + 8)}")
    for r in range(8):
        P(f"v_mul_f32 {v(d + r)}, {v(d + r)}, {v(d + 8)}")
    for p in range(4):
        P(f"v_cvt_pk_bf16_f32 {v(PQR + 4 * tb + p)}, {v(d + 2 * p)}, {v(d + 2 * p + 1)}")
    if tb < 2:
        o_mfma(tb + 2)
    row_store(f"buffer_store_dwordx4 {v(PQR + 4 * tb, 4)}, v27, {rWS}, s4 offen", OPT["nt2"])
    vm.add("o")
    if tb < 3:
        P(f"s_add_u32 s4, s4, {TB_STRIDE}")
stamp(1, "o_st")
P(f"s_setprio {OPT['prio']}")
for p in range(18, 38):
    page_write(p)
signal(VSIG, 26, 4, True)
vm.wait("o")
P(f"s_lshl_b32 {T0}, {I_}, 5\ns_lshl_b32 {T1}, {C_}, 2\ns_add_u32 {T0}, {T0}, {T1}\ns_add_u32 {T0}, {T0}, {W}")
P(f"s_lshl_b32 {T0}, {T0}, {2 + FX}\ns_add_u32 {T0}, {T0}, 0x{WS_FLAGS + FL_O * LN:x}")
flag_store(T0, aux=HX)
vm.add(None)
stamp(1, "oflag")
stream([p for p in LATE[OPT["lA"]:OPT["l1"]] if p not in PREA])
vm.wait(("pg", 42))
restA = [p for p in LATE[OPT["l1"]:] if p not in PREA]
P.label("L_l5")
lg.q = []
await_(VPK, 28, 11)
stamp(1, "gx")
nfree = 2 * ((OPT["gx"] - 7) // 4)
first = [p for p in list(range(38, 43)) + list(range(44, 60)) if p - 38 < nfree]
P(f"s_setprio {OPT['wprio']}")
for p in range(38, 43):
    page_write(p, OPT["pace"])
signal(VSIG, 26, 5, True)
for who, rest in (("A", restA), ("B2", restB[2]), ("B1", restB[1])):
    if who == "A":
        P(f"s_cmp_eq_u32 {TYPE}, 0\ns_cbranch_scc0 L_tB")
    elif who == "B2":
        P.label("L_tB")
        P(f"s_cmp_lt_u32 {C_}, 3\ns_cbranch_scc0 L_tB1")
    else:
        P.label("L_tB1")
    page_addr.last = None
    vm.q = [("pg", p) for p in LATE[5:] if p not in rest and not (who == "A" and p in PREA)]
    stream(rest)
    for p in first[5:]:
        vm.wait(("pg", p))
        page_write(p, OPT["pace"])
    vm.drain()
    if who != "B1":
        P("s_branch L_t2")
P.label("L_t2")
lg.q = []
P("s_waitcnt lgkmcnt(0)")
await_(VPK, 28, 12)
for p in range(44, 60):
    if p not in first:
        vm.wait(("pg", p))
        page_write(p, OPT["pace"])
signal(VSIG, 26, 6, True)
P(f"s_setprio {OPT['prio']}")
LOG2E = 1.4426950408889634
XRD, GG, XF, BF, YR = 22, 32, 48, 64, 72
P("v_lshrrev_b32 v26, 3, v0\nv_and_b32 v27, 7, v0\nv_lshlrev_b32 v27, 1, v27\nv_xor_b32 v27, v27, v26\nv_lshlrev_b32 v27, 4, v27\nv_lshl_or_b32 v26, v26, 8, v27")
P(f"s_lshl_b32 {T0}, {W}, 12\ns_add_u32 {T0}, {T0}, 0x{L_XS0:x}")
P(f"v_add_u32 {v(XRD)}, {T0}, v26\nv_xor_b32 {v(XRD + 1)}, 16, {v(XRD)}")
P(f"v_add_u32 {v(XRD + 2)}, 0x10000, {v(XRD)}\nv_add_u32 {v(XRD + 3)}, 0x10000, {v(XRD + 1)}")
P(f"s_add_u32 {T2}, {SO}, 8192")
P("s_waitcnt lgkmcnt(0)")


if OPT["wb"] in (2, 4):
    wback(2)
def unpack(dst, src, n):
    for r in range(n):
        P(f"v_lshlrev_b32 {v(dst + 2 * r)}, 16, {v(src + r)}\nv_and_b32 {v(dst + 2 * r + 1)}, 0xffff0000, {v(src + r)}")


def xread(dst, bases):
    for h in range(2):
        for kh in range(2):
            for j in range(2):
                P(f"ds_read_b128 {v(dst + 16 * kh + 8 * h + 4 * j, 4)}, {v(XRD + j + 2 * ((bases[kh] - L_XS0) >> 16))} offset:{((bases[kh] - L_XS0) & 0xffff) + 2048 * h}")


unpack(XF, XRES, 8)
unpack(BF, BRES, 4)
stamp(1, "rdy5")
P(f"s_setprio {OPT['fprio']}")
P("s_barrier ; dY")
if OPT["wb"] == 3:
    wback(3)
xread(YR, (L_XY, L_XY + 16 * K))
P("s_waitcnt lgkmcnt(0)")
for fmt in ("v_add_f32 {Y}, {Y}, {Z}", "v_add_f32 {Y}, {Y}, {B}", f"v_mul_f32 {{G}}, 0x{f2u(-LOG2E):x}, {{Y}}", "v_exp_f32 {G}, {G}",
            "v_add_f32 {G}, 1.0, {G}", "v_rcp_f32 {G}, {G}", "v_mul_f32 {G}, {G}, {Y}"):
    for r in range(16):
        P(fmt.format(Y=v(YR + r), Z=v(YR + 16 + r), B=v(BF + r % 8), G=v(GG + r)))
stamp(1, "gate")
P("s_barrier ; dS")
stamp(1, "dS")
xread(YR, (L_XS0, L_XS1))
for h in range(2):
    P(f"s_waitcnt lgkmcnt({4 - 4 * h})")
    for p in range(4 * h, 4 * h + 4):
        P(f"v_pk_add_f32 {v(YR + 2 * p, 2)}, {v(YR + 2 * p, 2)}, {v(YR + 16 + 2 * p, 2)}")
    for p in range(4 * h, 4 * h + 4):
        P(f"v_pk_fma_f32 {v(YR + 2 * p, 2)}, {v(YR + 2 * p, 2)}, {v(GG + 2 * p, 2)}, {v(XF + 2 * p, 2)}")
    for p in range(4 * h, 4 * h + 4):
        P(f"v_cvt_pk_bf16_f32 {v(BF + p)}, {v(YR + 2 * p)}, {v(YR + 2 * p + 1)}")
    P(f"buffer_store_dwordx4 {v(BF + 4 * h, 4)}, {v(VO)}, {rP2}, {(SO, T2)[h]} offen {OPT['outaux']}")
stamp(1, "outst")
dump(1)
P.label("L_end")
P("s_endpgm")
flush_cold()

P.label("L_compute")
DIAG = OPT["diag"]
assert OPT["gx"] <= 36
XR, ACC, WR = 128, 64, 32
VH, GR, XE, K1, K2, SD, RS, RL = 1, 2, 4, 6, 8, 10, 16, 18
XA, WA = 12, 20
HB0, SH, EPS2, SG, SFL1, SFL2, SCS2 = "s72", "s73", "s[74:75]", "s76", "s77", "s78", "s79"
lg = Q("lgkmcnt", 15)

diag_init()
stamp(0, "start")
P(f"s_setprio {OPT['cprio']}")
P(f"s_lshl_b32 {T0}, {I_}, 4\ns_add_u32 {T0}, {T0}, {J_}\ns_lshl_b32 {T0}, {T0}, 2\ns_add_u32 {T0}, {T0}, {W}\ns_lshl_b32 {T0}, {T0}, 1")
P(f"s_lshl_b32 {T1}, {T0}, 10")
P("v_lshrrev_b32 v26, 5, v0\nv_and_b32 v27, 31, v0\nv_lshlrev_b32 v28, 4, v27\nv_lshl_or_b32 v28, v26, 10, v28")
P("s_waitcnt lgkmcnt(0)")
srd(rX, P_X, 2 * K * K)
P(f"s_load_dword {NONCE}, s[{P_WS}:{P_WS+1}], 0")
if not OPT["nostat"]:
    P(f"buffer_load_dwordx4 v[32:35], v28, {rX}, {T1} offen")
    P(f"buffer_load_dwordx4 v[36:39], v28, {rX}, {T1} offen offset:512")
srd(rWS, P_WS, WS_SIZE)
tile2()
P(f"v_lshlrev_b32 {v(VH)}, 4, v0")
waddr(WA, 29, 30, 3)
P(f"v_xor_b32 {v(WA + 1)}, 64, {v(WA)}")
for k, off in ((2, 64 * K), (4, 88 * K)):
    P(f"v_add_u32 {v(WA + k)}, 0x{off:x}, {v(WA)}\nv_add_u32 {v(WA + k + 1)}, 0x{off:x}, {v(WA + 1)}")
P("v_bfe_u32 v29, v0, 1, 3\nv_xor_b32 v29, v29, v26\nv_lshlrev_b32 v29, 4, v29\nv_lshl_or_b32 v29, v27, 7, v29")
P(f"s_lshl_b32 {T2}, {W}, 12")
P(f"v_add_u32 {v(XA)}, {T2}, v29")
for t in range(1, 4):
    P(f"v_xor_b32 {v(XA + t)}, {32 * t}, {v(XA)}")
for t in range(4):
    P(f"v_add_u32 {v(XA + 4 + t)}, 0x10000, {v(XA + t)}")
P(f"s_lshl_b32 {SG}, {I_}, 2\ns_add_u32 {SG}, {SG}, {W}")
if OPT["touch"]:
    srd(rW2, P_W2, 1376 * 1024)
    srd(rWO, P_WO, 512 * 1024)
    P(f"s_mul_i32 {T2}, s2, 43\ns_mul_i32 {T3}, {W}, 11\ns_add_u32 {T2}, {T2}, {T3}")
    P(f"v_add_u32 v6, {T2}, v0\nv_lshlrev_b32 v6, 7, v6\nv_mov_b32 v8, 0x7ff00000\nv_cmp_gt_u32 vcc, 11, v0")
    P(f"s_lshl_b32 {T2}, s2, 2\ns_add_u32 {T2}, {T2}, {W}\ns_lshl_b32 {T2}, {T2}, 2")
    P(f"v_cndmask_b32 v6, v8, v6, vcc\nv_add_u32 v7, {T2}, v0\nv_lshlrev_b32 v7, 7, v7\nv_cmp_gt_u32 vcc, 4, v0")
    P("v_cndmask_b32 v7, v8, v7, vcc")
    if OPT["touch"] == 9:
        P(f"buffer_load_dword v8, v6, {rW2}, 0 offen\nbuffer_load_dword v9, v7, {rWO}, 0 offen")
P(f"s_lshl_b32 {SG}, {SG}, 8\ns_add_u32 {SG}, {SG}, 0x{WS_STATS:x}")
P(f"s_lshl_b32 {SCS2}, {J_}, 1\ns_lshr_b32 {T2}, {I_}, 3\ns_add_u32 {SCS2}, {SCS2}, {T2}\ns_lshl_b32 {SCS2}, {SCS2}, 2")
P(f"s_add_u32 {SCS2}, {SCS2}, {W}\ns_lshl_b32 {SCS2}, {SCS2}, 3\ns_and_b32 {T2}, {I_}, 7\ns_add_u32 {SCS2}, {SCS2}, {T2}")
P(f"s_lshl_b32 {SCS2}, {SCS2}, 9\ns_add_u32 {SCS2}, {SCS2}, 0x{WS_CS:x}")
if OPT["pg"]:
    srd(rW2, P_W2, 1376 * 1024)
    srd(rWO, P_WO, 512 * 1024)
    srd(rA, P_OUT, 2 * K * K)
    P(f"v_lshlrev_b32 v46, 16, v0\ns_lshl_b32 {T3}, {W}, 22\ns_cmp_eq_u32 {W}, 3\ns_cbranch_scc1 L_pg3")
    P(f"buffer_load_dword v47, v46, {rWS}, {T3} offen sc1\ns_branch L_pgx\nL_pg3:")
    P(f"buffer_load_dword v47, v46, {rW2}, 0 offen\nbuffer_load_dword v47, v46, {rWO}, 0 offen\nbuffer_load_dword v47, v46, {rA}, 0 offen\nL_pgx:")
SFHB, SFO, KH, SFHA, PRIMED, SK12, SXW, SBASE = "s51", "s52", "s53", "s54", "s55", "s72", "s73", "s77"
P(f"s_lshr_b32 {KH}, {W}, 1\ns_lshl_b32 {SK12}, {KH}, 12\ns_mov_b32 {PRIMED}, 0")
P(f"s_lshl_b32 {T3}, {TB2}, 1\ns_and_b32 {T2}, {W}, 1\ns_add_u32 {T3}, {T3}, {T2}")
P(f"s_mul_i32 {SBASE}, {T3}, {TB_STRIDE}\ns_add_u32 {SBASE}, {SBASE}, 0x{WS_HA:x}")
if OPT["ahot"]:
    P(f"s_mov_b32 {SBASE}, 0x{WS_DIAG + 0x40000:x}")
P(f"s_lshl_b32 {SFHB}, {T3}, {7 + FX}\ns_add_u32 {SFHA}, {SFHB}, 0x{WS_FLAGS + FL_HA * LN:x}\ns_add_u32 s44, {SFHB}, 0x{WS_FLAGS + FL_H1 * LN:x}\ns_add_u32 {SFHB}, {SFHB}, 0x{WS_FLAGS + FL_HB * LN:x}")
P(f"s_lshr_b32 {SFO}, {TB2}, 1\ns_lshl_b32 {SFO}, {SFO}, {7 + FX}\ns_add_u32 {SFO}, {SFO}, 0x{WS_FLAGS + FL_O * LN:x}")
P(f"s_lshl_b32 {SXW}, {T2}, 13\ns_lshl_b32 {T3}, {KH}, 14\ns_add_u32 {SXW}, {SXW}, {T3}\ns_add_u32 {SXW}, {SXW}, 0x{L_XY:x}")
SXS = "s15"
P(f"s_cmp_eq_u32 {KH}, 0")
sel2(SXS, (L_XS0 - L_XY) & 0xffffffff, L_XS1 - L_XY - 16 * K)
if OPT["tlb"] == 2:
    P(f"buffer_load_dword v47, v0, {rWS}, {SBASE} offen sc1")
P(f"s_mov_b32 s14, {RHOA}")
for g in list(range(8)) + list(range(11, 15)):
    r = f"s{36 + g}"
    P(f"s_add_u32 {r}, {RHO2 if g < 8 else RHOS}, {g % 11}\ns_and_b32 {r}, {r}, {7 if g < 8 else 3}\ns_lshl_b32 {r}, {r}, 13\ns_add_u32 {r}, {r}, {SBASE}")
    if g >= 11:
        P(f"s_add_u32 {r}, {r}, {86 * K}")
P(f"s_add_u32 s14, s14, {KH}")
for n in range(16, 22):
    r = f"s{8 + n - 16}"
    P(f"s_add_u32 {r}, s14, {2 * (n - 16)}\ns_cmp_ge_u32 {r}, 11\ns_cselect_b32 {T3}, 11, 0\ns_sub_u32 {r}, {r}, {T3}")
    P(f"s_sub_u32 {r}, {r}, {KH}\ns_add_u32 {r}, {r}, {32 - 2 * (n % 2)}\ns_lshl_b32 {r}, {r}, 11\ns_add_u32 {r}, {r}, {SBASE}")
P(f"s_mov_b32 s74, 0x{f2u(1e-6):x}\ns_mov_b32 s75, 0x{f2u(1e-6):x}")
P(f"s_mov_b32 {T2}, 0x3f803f80")
P("v_mov_b32 v40, 0\nv_mov_b32 v41, 0\nv_mov_b32 v42, 0\nv_mov_b32 v43, 0")
stamp(0, "pre")
P("s_waitcnt vmcnt(2)" if OPT["touch"] == 9 else "s_waitcnt vmcnt(0)")
stamp(0, "xin")
for n in range(8):
    P(f"v_dot2_f32_bf16 {v(40 + (n & 1))}, {v(32 + n)}, {T2}, {v(40 + (n & 1))}")
    P(f"v_dot2_f32_bf16 {v(42 + (n & 1))}, {v(32 + n)}, {v(32 + n)}, {v(42 + (n & 1))}")
P("s_nop 2")
P("v_add_f32 v40, v40, v41\nv_add_f32 v42, v42, v43")
for r in (8, 4, 2, 1):
    P(f"v_add_f32_dpp v40, v40, v40 row_ror:{r} row_mask:0xf bank_mask:0xf")
    P(f"v_add_f32_dpp v42, v42, v42 row_ror:{r} row_mask:0xf bank_mask:0xf")
P("v_mov_b32 v41, v40\nv_mov_b32 v43, v42")
P("v_permlane16_swap_b32 v40, v41\nv_permlane16_swap_b32 v42, v43")
P("v_add_f32 v40, v40, v41\nv_add_f32 v42, v42, v43")
P(f"v_mul_f32 v40, 0x{f2u(1 / 512):x}, v40\nv_mul_f32 v42, 0x{f2u(1 / 512):x}, v42")
P("v_fma_f32 v42, -v40, v40, v42\nv_max_f32 v42, 0, v42")
P(f"v_cvt_pk_bf16_f32 v42, v42, v42\nv_and_b32 v42, 0xffff0000, v42\nv_add_f32 v42, 0x{f2u(1e-5):x}, v42")
P("v_cvt_pk_bf16_f32 v42, v42, v42\nv_and_b32 v42, 0xffff0000, v42\nv_sqrt_f32 v42, v42")
P("v_cvt_pk_bf16_f32 v44, v40, v42")
P("v_lshlrev_b32 v28, 3, v26")
P(f"s_lshl_b32 {T0}, {T0}, 3\ns_add_u32 {T0}, {T0}, 0x{WS_STATS:x}")
P("s_waitcnt lgkmcnt(0)")
P(f"s_add_u32 {NONCE}, {NONCE}, 1")
XTAG = "s78"
P(f"s_getreg_b32 {XTAG}, hwreg(HW_REG_XCC_ID, 0, 4)\ns_lshl_b32 {XTAG}, {XTAG}, 28\ns_xor_b32 {XTAG}, {XTAG}, {NONCE}")
P(f"v_mov_b32 v45, {XTAG}\nv_mov_b32 v5, {NONCE}")
P(f"s_mov_b32 s56, {T0}\nv_mov_b32 v2, v44\nv_mov_b32 v3, v45\nv_mov_b32 v25, v28")
P("v_lshlrev_b32 v26, 3, v27\nv_lshlrev_b32 v27, 3, v0")
P(f"s_lshl_b32 {T0}, {W}, 8\ns_add_u32 {T0}, {T0}, 0x{L_CSX:x}")
P(f"v_lshl_add_u32 v28, v0, 2, {T0}")
P(f"v_add_u32 v29, 0x{L_EX1:x}, v27")
GLOAD = f"buffer_load_dwordx2 {v(GR, 2)}, v26, {rWS}, {SG} offen sc1"
CSIG, CPK, CPC = 30, 31, 3
P(f"s_lshl_b32 {T0}, {W}, 2\ns_add_u32 {T0}, {T0}, 0x{L_PRG:x}\nv_mov_b32 {v(CSIG)}, {T0}")
P(f"v_and_b32 {v(CPK)}, 3, v0\nv_lshlrev_b32 {v(CPK)}, 2, {v(CPK)}\nv_add_u32 {v(CPK)}, 0x{L_RDY:x}, {v(CPK)}")
stamp(0, "stats")


def p1_x(st, t):
    if OPT["nocomp"]:
        return
    sl = st % 3
    P(f"ds_read_b128 {v(XR + 16 * st + 4 * t, 4)}, {v(XA + t + (4 if sl == 2 else 0))} offset:{(sl % 2) * 32 * K}")
    lg.add(("x", st, t))


def p1_w(st, t, b):
    if OPT["nocomp"]:
        return
    sl = st % 3
    a = WA + (b & 1) + (2 if sl == 2 else 0)
    off = (sl % 2) * 32 * K + 16 * K + (b >> 1) * 8 * K + t * 2048
    f = WR + ((t & 1) * 4 + b) * 4
    tr(f, a, off, None)
    tr(f + 2, a, off + 512, ("w", st, t, b))


def p1_m(st, t, b):
    if OPT["nocomp"]:
        return
    lg.wait(("w", st, t, b))
    assert ("x", st, t) not in lg.q
    f = WR + ((t & 1) * 4 + b) * 4
    c = "0" if (st == 0 and t == 0) else v(ACC + 16 * b, 16)
    P(f"v_mfma_f32_32x32x16_bf16 {v(ACC + 16 * b, 16)}, {v(f, 4)}, {v(XR + 16 * st + 4 * t, 4)}, {c}")
    r = OPT.get(f"r{st}", 0) or OPT["rall"]
    if r:
        P(f"s_nop {r - 1}")


P("s_barrier ; b0")
stamp(0, "b0")
if OPT["p2only"]:
    P("s_branch L_c2")
p1_x(0, 0)
for b in range(4):
    p1_w(0, 0, b)
P("s_mov_b32 exec_lo, 1\ns_mov_b32 exec_hi, 1")
P(f"buffer_store_dwordx2 v[2:3], v25, {rWS}, s56 offen sc1")
P("s_mov_b64 exec, -1")
P(f"v_add_u32 {v(WA + 5)}, 0x{88 * K:x}, {v(WA + 1)}")
LOG2E = 1.4426950408889634
C1 = -2 * LOG2E * math.sqrt(2 / math.pi)
C2 = C1 * 0.044715
GCHK = f"v_xor_b32 v27, {XTAG}, {v(GR + 1)}\nv_lshlrev_b32 v28, 4, v27\nv_cmp_ne_u32 vcc, 0, v28"
EXR = (22, 26)
side1 = [f"v_cmp_ne_u32 vcc, 0, v27", f"s_mov_b32 {T0}, 0x01000100", f"v_perm_b32 {v(XE)}, {v(GR)}, {v(GR)}, {T0}",
         "s_or_b32 s57, vcc_lo, vcc_hi", f"v_xor_b32 {v(XE)}, 0x80008000, {v(XE)}", f"v_lshrrev_b32 {v(XE + 1)}, 16, {v(GR)}",
         f"v_and_b32 {v(SD)}, 0xffff0000, {v(GR)}", f"v_rcp_f32 {v(RS)}, {v(SD)}", f"v_mov_b32 {v(SD + 1)}, {v(SD)}",
         f"v_mul_f32 {v(K1)}, 0x{f2u(C1):x}, {v(RS)}", f"v_mul_f32 {v(K2)}, {v(RS)}, {v(RS)}", f"v_mul_f32 {v(RL)}, 0x{f2u(LOG2E):x}, {v(RS)}",
         f"v_mul_f32 {v(K2)}, {v(K2)}, {v(RS)}", f"v_mov_b32 {v(RS + 1)}, {v(RS)}", f"v_mul_f32 {v(K2)}, 0x{f2u(C2):x}, {v(K2)}",
         f"v_mov_b32 {v(K1 + 1)}, {v(K1)}", f"v_mov_b32 {v(RL + 1)}, {v(RL)}", f"v_mov_b32 {v(K2 + 1)}, {v(K2)}"]
for st in range(8):
    for t in range(3):
        for b in range(4):
            p1_m(st, t, b)
            if st == 7 and t == OPT["gt"] and b == 0:
                P("s_waitcnt vmcnt(0)")
                P(GCHK)
                retry("L_gr", GLOAD, GCHK)
            elif st == 7 and t >= OPT["gt"]:
                for _ in range(3 if OPT["gt"] == 1 else 6):
                    if side1:
                        P(side1.pop(0))
            if b == 0:
                p1_x(st, t + 1)
            p1_w(st, t + 1, b)
    assert st < 7 or not side1
    p1_m(st, 3, 0)
    if st == 2 + OPT["chl"] + OPT["csd"]:
        P("ds_read_b32 v4, v28")
        lg.add(None)
    p1_m(st, 3, 1)
    if st == 5 + OPT["gl"]:
        P(GLOAD)
    lg.drain()
    if st == 7:
        stamp(0, "c8")
    P(f"s_barrier ; b{st + 1}")
    if st == 6:
        stamp(0, "b7")
    if st < 7:
        p1_x(st + 1, 0)
        p1_w(st + 1, 0, 0)
        p1_w(st + 1, 0, 1)
        p1_m(st, 3, 2)
        if st == 2 + OPT["chl"] + OPT["csd"] and not OPT["nst"] & 2:
            P(f"buffer_store_dwordx2 v[4:5], v27, {rWS}, {SCS2} offen {OPT['saux'] or ''}")
        if st == OPT["touch"] - 1:
            P(f"buffer_load_dword v8, v6, {rW2}, 0 offen\nbuffer_load_dword v9, v7, {rWO}, 0 offen")
        p1_w(st + 1, 0, 2)
        p1_w(st + 1, 0, 3)
        p1_m(st, 3, 3)
    else:
        P(f"v_mov_b32 v27, s57\ns_mov_b64 exec, 1\nds_write_b32 {v(CSIG)}, v27 offset:{L_FAST - L_PRG}\ns_mov_b64 exec, -1")
        lg.add(None)
        for b in range(4):
            P(f"ds_read_b64 {v(WR + 2 * b, 2)}, v29 offset:{512 * b}")
            lg.add(("ex", b))
        p1_m(st, 3, 2)
        p1_m(st, 3, 3)
        for b in range(4):
            lg.wait(("ex", b))
            P(f"v_mfma_f32_32x32x8bf16_1k {v(ACC + 16 * b, 16)}, {v(WR + 2 * b, 2)}, {v(XE, 2)}, {v(ACC + 16 * b, 16)}")
stamp(0, "b8")
if OPT["p1only"]:
    dump(0)
    P("s_endpgm")
    DIAG = 0
stamp(0, "ex1")

TT, UU = 32, 48


def pairs(fmt, a):
    for p in range(8):
        P(fmt.format(T=v(TT + 2 * p, 2), A=v(a + 2 * p, 2)))


def singles(fmt):
    for r in range(16):
        P(fmt.format(T=v(TT + r)))


def cvt(dst, src=TT):
    for p in range(8):
        P(f"v_cvt_pk_bf16_f32 {v(dst + p)}, {v(src + 2 * p)}, {v(src + 2 * p + 1)}")


def epi_gelu(b, base, k, rdy=None, prev=None, last=True):
    a = ACC + 16 * b
    if rdy:
        peek(CPK, 28)
    pairs("v_pk_mul_f32 {T}, {A}, {A}", a)
    pairs("v_pk_fma_f32 {T}, {T}, %s, %s" % (v(K2, 2), v(K1, 2)), a)
    pairs("v_pk_mul_f32 {T}, {T}, {A}", a)
    if prev:
        signal(CSIG, 27, prev, True)
    singles("v_exp_f32 {T}, {T}")
    pairs("v_pk_fma_f32 {T}, {T}, %s, %s" % (v(SD, 2), v(SD, 2)), a)
    singles("v_rcp_f32 {T}, {T}")
    pairs("v_pk_mul_f32 {T}, {T}, {A}", a)
    cvt(a)
    if rdy:
        await_(CPK, 28, rdy, peeked=True)
    for h in range(2 if not OPT["nods"] else 0):
        P(f"ds_write_b128 v26, {v(a + 4 * h, 4)} offset:{base - L_HS + (2 * b + h) * 4096}")
        lg.add(None)
    if last:
        signal(CSIG, 27, k, True)


def epi_phi(b, dst):
    a = ACC + 16 * b
    pairs("v_pk_mul_f32 {T}, {A}, %s" % v(RL, 2), a)
    singles("v_exp_f32 {T}, {T}")
    pairs("v_pk_fma_f32 {A}, {A}, %s, 1.0 op_sel_hi:[1,1,0]" % v(RS, 2), a)
    for r in range(16):
        P(f"v_med3_f32 {v(TT + r)}, {v(TT + r)}, {v(a + r)}, 1.0")
    pairs("v_pk_add_f32 {T}, {T}, %s" % EPS2, a)
    cvt(dst)


def epi_lin(b, dst):
    a = ACC + 16 * b
    pairs("v_pk_mul_f32 {T}, {A}, %s" % v(RS, 2), a)
    cvt(dst)


AY, AS, AR = 64, 192, 128
RG = OPT["ring"]
NST = 30
WB, VA, FD, VF, XW, CPC2, TA, TB_, TC, XW2 = 96, 102, 104, 106, 108, 112, 113, 114, 115, 116
FHB = f"buffer_load_dword {v(FD)}, {v(VF)}, {rWS}, {SFHB} offen sc1"
FHA = f"buffer_load_dword {v(FD)}, {v(VF)}, {rWS}, {SFHA} offen sc1"
FH1 = f"buffer_load_dword {v(FD)}, {v(VF)}, {rWS}, s44 offen sc1"
FO = f"buffer_load_dword {v(FD + 1)}, {v(VF + 1)}, {rWS}, {SFO} offen sc1"
HBC = f"v_cmp_ne_u32 vcc, {NONCE}, {v(FD)}"
vm = Q("vmcnt", 63)


def aload(n, ks):
    if n >= NST or (OPT["noa"] and n >= RG):
        return
    P(f"buffer_load_dwordx4 {v(AR + 8 * (n % RG) + 4 * ks, 4)}, {v(VA + (n % 2 if n >= 16 else n >> 3))}, {rWS}, s{36 + (n & 7) if n < 16 else (8 + n - 16 if n < 22 else 36 + (n >> 1))} offen offset:{1024 * ks} {OPT['aaux'] or ''}")
    vm.add(("a", n, ks))


PRM = OPT["prime"]
def prime():
    for n in range(PRM):
        aload(n, 0)
        aload(n, 1)


nchk = [0]
def checkpoint():
    if not OPT["early"]:
        return
    nchk[0] += 1
    l = f"L_ck{nchk[0]}"
    P(f"s_getreg_b32 {T3}, hwreg(HW_REG_IB_STS, 0, 4)\ns_or_b32 {T3}, {T3}, {PRIMED}\ns_cbranch_scc1 {l}_x")
    P(f"s_waitcnt vmcnt(0)\n{HBC}\ns_cbranch_vccnz {l}_r")
    prime()
    P(f"s_mov_b32 {PRIMED}, 1")
    P.label(l + "_x")
    cold.append(f"{l}_r:\n{FHB}\ns_branch {l}_x")


def setup2():
    global P
    keep, P = P, Prog()
    P(f"v_and_b32 {v(VF + 1)}, 31, v0\nv_lshlrev_b32 {v(VF + 1)}, {2 + FX}, {v(VF + 1)}\nv_and_b32 {v(VF)}, {28 << FX}, {v(VF + 1)}")
    waddr(WB, TA, TB_, 2)
    P(f"v_add_u32 {v(WB)}, {SK12}, {v(WB)}\nv_xor_b32 {v(WB + 1)}, 64, {v(WB)}")
    for k in (1, 2):
        P(f"v_add_u32 {v(WB + 2 * k)}, 0x{64 * K * k:x}, {v(WB)}\nv_add_u32 {v(WB + 2 * k + 1)}, 0x{64 * K * k:x}, {v(WB + 1)}")
    P(f"v_lshrrev_b32 {v(TA)}, 1, {SK12}\nv_add_u32 {v(VA)}, {v(TA)}, {v(VH)}\nv_add_u32 {v(VA + 1)}, 0x1000, {v(VA)}")
    P(f"v_lshrrev_b32 {v(TA)}, 5, v0\nv_and_b32 {v(TB_)}, 7, v0\nv_xor_b32 {v(TA)}, {v(TA)}, {v(TB_)}\nv_lshlrev_b32 {v(TA)}, 4, {v(TA)}")
    P(f"v_and_b32 {v(TB_)}, 31, v0\nv_lshl_or_b32 {v(TA)}, {v(TB_)}, 8, {v(TA)}\nv_add_u32 {v(XW)}, {SXW}, {v(TA)}")
    for q in range(1, 4):
        P(f"v_xor_b32 {v(XW + q)}, {32 * q}, {v(XW)}")
    P(f"v_add_u32 {v(CPC2)}, 16, {v(CPK)}")
    for q in range(4):
        P(f"v_add_u32 {v(XW2 + q)}, {SXS}, {v(XW + q)}")
    lines, P = P.lines, keep
    return lines


def pass2(nb):
    side = setup2()
    n = 32 * nb
    def rd(m):
        if m >= n:
            return
        step, b = divmod(m, nb)
        off = CH(step >> 2) - 88 * K + (step & 3) * 2048
        f = WR + (m % 8) * 4
        tr(f, WA + 4 + b, off, None)
        tr(f + 2, WA + 4 + b, off + 512, ("p2", m))
    for m in range(7):
        rd(m)
    for m in range(n):
        step, b = divmod(m, nb)
        lg.wait(("p2", m))
        c = "0" if step == 0 else v(ACC + 16 * b, 16)
        P(f"v_mfma_f32_32x32x16_bf16 {v(ACC + 16 * b, 16)}, {v(WR + (m % 8) * 4, 4)}, {v(XR + 4 * step, 4)}, {c}")
        rd(m + 7)
        for _ in range(2 if nb == 1 else 1):
            if side and m >= 2 and not OPT["noside"]:
                P(side.pop(0))
        if m == max(6, n - OPT["smp"]) and not OPT["nosamp"]:
            P(FHB)
        if m == 5 and OPT["tlb"] == 1:
            P(f"buffer_load_dword {v(TC)}, {v(VF)}, {rWS}, {SBASE} offen sc1")
        if m == n - 6:
            if OPT["fill"] == 4:
                P("s_waitcnt vmcnt(0)" if OPT["nosamp"] else "s_waitcnt vmcnt(1)")
            for bb in range(nb):
                lg.room()
                P(f"ds_read_b64 {v(12 + 2 * bb, 2)}, v29 offset:{L_EX2 - L_EX1 + 512 * bb}")
                lg.add(("ex2", bb))
    while side:
        P(side.pop(0))
    checkpoint()
    lg.drain()
    signal(CSIG, 27, 8)
    for b in range(nb):
        P(f"v_mfma_f32_32x32x8bf16_1k {v(ACC + 16 * b, 16)}, {v(12 + 2 * b, 2)}, {v(XE, 2)}, {v(ACC + 16 * b, 16)}")


P(f"s_cmp_eq_u32 {TYPE}, 0")
P("s_cbranch_scc0 L_cB")
P(f"v_and_b32 v26, 31, v0\nv_lshrrev_b32 v27, 5, v0\ns_lshl_b32 {T0}, {W}, 5")
P(f"v_add_u32 v26, {T0}, v26\nv_mul_u32_u24 v26, {TROW}, v26\nv_lshl_add_u32 v26, v27, 3, v26\nv_add_u32 v26, 0x{TBUF:x}, v26")
for b in range(4):
    u = UU + 8 * (b & 1)
    (epi_phi if b < 2 else epi_lin)(b, u)
    for q in range(4):
        P(f"ds_write_b64 v26, {v(u + 2 * q, 2)} offset:{64 * b + 16 * q}")
    if OPT["fill"] == 4 and b == OPT["fo"]:
        P(f"s_lshl2_add_u32 {T1}, {I_}, {W}\ns_mul_i32 {T1}, {T1}, {TB_STRIDE}\ns_lshl_b32 {T2}, {C_}, 12\ns_add_u32 {T1}, {T1}, {T2}\ns_add_u32 {T1}, {T1}, 0x{WS_HA + 86 * K:x}")
        P(f"v_lshlrev_b32 v16, 7, v0\nv_and_b32 v16, 0xfff, v16\nbuffer_load_dword v18, v16, {rWS}, {T1} offen")
    if "st0" in OPT:
        stamp(0, f"g{b}")
P(f"v_lshrrev_b32 v26, 2, v0\nv_mul_u32_u24 v26, {TROW}, v26\nv_and_b32 v27, 3, v0\nv_lshl_add_u32 v26, v27, 3, v26")
P(f"s_add_u32 {T0}, {T0}, 0x{TBUF:x}")
P(f"v_add_u32 v26, {T0}, v26")
for r in range(4):
    P(f"v_mov_b32 {v(104 + r)}, 0x3f803f80")
P(f"s_lshl_b32 {T0}, {C_}, 4\ns_add_u32 {T0}, {T0}, {I_}\ns_mul_i32 {T0}, {T0}, {KVP_STR}\ns_add_u32 {T0}, {T0}, 0x{WS_KVP:x}")
P(f"s_lshl_b32 {T1}, {W}, 10\ns_add_u32 {T1}, {T1}, {T0}")
P(f"s_lshl_b32 {T2}, {W}, 6\ns_add_u32 {T2}, {T2}, {T0}\ns_add_u32 {T2}, {T2}, 4096")
signal(CSIG, 27, 1, True)
P(f"v_add_u32 {v(CPC)}, 16, {v(CPK)}")
lg.q = []
await_(CPC, 27, 1)
stamp(0, "e1")
def kvm(mm):
    lg.wait(("kv", mm, 1))
    P(f"v_mfma_f32_16x16x32_bf16 v[96:99], {v(ACC + 8 * mm, 4)}, {v(ACC + 8 * mm + 4, 4)}, {'0' if mm == 0 else 'v[96:99]'}")
    P(f"v_mfma_f32_16x16x32_bf16 v[100:103], {v(ACC + 8 * mm, 4)}, v[104:107], {'0' if mm == 0 else 'v[100:103]'}")
for m in range(4):
    for o in range(2):
        f = ACC + 8 * m + 4 * o
        tr(f, 26, m * 32 * TROW + 128 * o, None)
        tr(f + 2, 26, (m * 32 + 16) * TROW + 128 * o, ("kv", m, o))
    if m >= 2:
        kvm(m - 2)
kvm(2)
kvm(3)
P(f"v_mov_b32 v104, {NONCE}")
for h in range(4):
    P(f"s_mov_b32 {T0}, 0x0706050{h}")
    P(f"v_perm_b32 {v(96 + h)}, {v(96 + h)}, v104, {T0}\nv_perm_b32 {v(100 + h)}, {v(100 + h)}, v104, {T0}")
P(f"buffer_store_dwordx4 v[96:99], {v(VH)}, {rWS}, {T1} offen sc1")
P("s_mov_b32 exec_lo, 0x00010001\ns_mov_b32 exec_hi, 0x00010001")
P(f"buffer_store_dwordx4 v[100:103], v0, {rWS}, {T2} offen sc1")
P("s_mov_b64 exec, -1")
signal(CSIG, 27, 2)
stamp(0, "kv")
await_(CPK, 27, 1)
stamp(0, "b10")
P("s_branch L_p2")
P.label("L_cB")
lg.q = []
P(f"s_lshl_b32 {T0}, {W}, 10\ns_add_u32 {T0}, {T0}, 0x{L_HS:x}")
P(f"v_add_u32 v26, {T0}, {v(VH)}")
if OPT["fill"] == 4:
    hblock2(T1)
    P(f"s_lshl2_add_u32 {T0}, {I_}, {W}\ns_mul_i32 {T0}, {T0}, {TB_STRIDE}\ns_add_u32 {T0}, {T0}, 0x{WS_HA:x}")
    P(f"s_lshl_b32 {T1}, {T1}, 11\ns_add_u32 {T1}, {T1}, {T0}\ns_lshl_b32 {T2}, {C_}, 13\ns_add_u32 {T0}, {T0}, {T2}")
    P(f"s_cmp_lt_u32 {C_}, 3")
    sel2(T2, 0xfff, 0x7ff)
    P(f"v_lshlrev_b32 v16, 7, v0\nv_and_b32 v17, {T2}, v16")
for b in range(4):
    epi_gelu(b, L_HS, b + 1, prev=b, last=(b == 3))
    if OPT["fill"] == 4 and b == OPT["f1"]:
        P(f"buffer_load_dword v18, v16, {rWS}, {T0} offen")
    if OPT["fill"] == 4 and b == OPT["f2"]:
        P(f"buffer_load_dword v19, v17, {rWS}, {T1} offen")
    if "st0" in OPT:
        stamp(0, f"g{b}")
stamp(0, "e1")
await_(CPK, 28, 1)
stamp(0, "b10")
P(f"s_cmp_lt_u32 {C_}, 3")
P("s_cbranch_scc1 L_p2")
lg.q = [None] * 3
pass2(1)
stamp(0, "p2")
epi_gelu(0, L_PQ, 10, 2)
stamp(0, "e2")
P("s_branch L_c2")
P.label("L_p2")
lg.q = [None] * 3
pass2(2)
stamp(0, "p2")
P(f"s_cmp_eq_u32 {TYPE}, 0")
P("s_cbranch_scc0 L_cB2")
P(f"s_lshl_b32 {T0}, {W}, 12\ns_add_u32 {T0}, {T0}, 0x{L_PQ:x}")
P(f"v_add_u32 v26, {T0}, {v(VH)}")
lg.q = [None]
peek(CPC2, 28)
for b in range(2):
    epi_phi(b, UU + 8 * b)
    if b == 0:
        await_(CPC2, 28, 2, peeked=True)
    for h in range(2):
        P(f"ds_write_b128 v26, {v(UU + 8 * b + 4 * h, 4)} offset:{(2 * b + h) * 1024}")
    if b == 0:
        checkpoint()
signal(CSIG, 27, 10, True)
stamp(0, "e2")
P("s_branch L_c2")
P.label("L_cB2")
lg.q = [None]
epi_gelu(0, L_PQ, 9, 2, last=False)
checkpoint()
epi_gelu(1, L_PQ, 10, prev=9)
stamp(0, "e2")
P.label("L_c2")
stamp(0, "c2")
stamp(0, "setup")
if OPT["quiet"]:
    dump(0)
    P("s_endpgm")
if OPT["nosamp"]:
    P(FHB)
P(f"s_cmp_lg_u32 {PRIMED}, 0\ns_cbranch_scc1 L_primed")
if not OPT["p2only"]:
    P(f"s_waitcnt vmcnt(0)\n{HBC}")
    retry("L_hb", FHB, HBC)
stamp(0, "hb_seen")
prime()
P.label("L_primed")
vm.q = [("a", n, ks) for n in range(PRM) for ks in range(2)]
gate = {8: OPT["cH1"], 16: OPT["cHA"], 22: OPT["cO"]}
nxt = [PRM, 0]
def aissue(n, k4):
    while nxt[0] < NST:
        nn, ks = nxt
        if nn in gate and (n, k4) < (gate[nn], 1):
            return
        if nn - RG > n or (nn - RG == n and k4 < 2 * ks + 1):
            return
        aload(nn, ks)
        nxt[:] = [nn, 1] if ks == 0 else [nn + 1, 0]
        return


def dec(m):
    if OPT["tl"] and m >= 4 * NST - 8:
        r = m - (4 * NST - 8)
        return NST - 2 + ((r >> 1) & 1), r & 1, r >> 2
    return m >> 2, (m >> 1) & 1, m & 1


def wrd(m):
    if m >= 4 * NST:
        return
    n, ks, ct = dec(m)
    ev = {OPT["gx"]: 4, 76: 5, 88: 6}
    if m + 5 in ev:
        peek(CPK, 20)
    if m == OPT["g2"]:
        signal(CSIG, 21, 12)
    if m == 72:
        signal(CSIG, 21, 13)
    if m == 93:
        peek(CPC2, 19)
    if m in ev:
        if m == OPT["gx"]:
            signal(CSIG, 21, 11)
        await_(CPK, 20, ev[m], peeked=True)
    so = slot_of(2 * n) + ks * 2048
    k = so // (64 * K)
    f = WR + (m % 8) * 4
    if OPT["now"] and m >= 8:
        return
    tr(f, WB + 2 * k + ct, so - 64 * K * k, None)
    tr(f + 2, WB + 2 * k + ct, so - 64 * K * k + 1024, ("w2", m))


def xwrite(acc, base, ct, q):
    lg.room()
    P(f"ds_write_b128 {v(base + q)}, {v(acc + 16 * ct + 4 * q, 4)} offset:{128 * ct}")
    lg.add(("xw", acc))


lg.q = []
stamp(0, "primed")
await_(CPK, 20, 3)
for m in range(7):
    wrd(m)
for n in range(NST):
    acc = AY if n < 22 else AS
    if n == 21:
        P(f"s_cmp_eq_u32 {KH}, 0")
    for k4 in range(4):
        m = 4 * n + k4
        na, ks, ct = dec(m)
        w = vm.need(("a", na, ks)) + " " + (lg.need(("w2", m | 1)) if OPT["w2"] else "") + lg.need(("w2", m))
        if w.strip():
            P("s_waitcnt " + w.strip())
        c = "0" if (n in (0, 22) and ks == 0) else v(acc + 16 * ct, 16)
        if n == 21:
            P(f"s_cbranch_scc0 L_null{k4}")
        P(f"v_mfma_f32_32x32x16_bf16 {v(acc + 16 * ct, 16)}, {v(WR + (m % 8) * 4, 4)}, {v(AR + 8 * (na % RG) + 4 * ks, 4)}, {c}")
        if OPT["tl"] and m >= 4 * NST - 2:
            for q in range(2):
                xwrite(AS, XW2, 0, 2 * (m & 1) + q)
        if n == 21:
            P.label(f"L_null{k4}")
        if k4 == 1:
            for nn, ld, fd, nm in ((8, FH1, FD, "h1"), (16, FHA, FD, "ha"), (22, FO, FD + 1, "o")):
                if n == max(0, gate[nn] - OPT["fl"]) and gate[nn] > 0:
                    P(ld)
                    vm.add("f" + nm)
                if n == gate[nn]:
                    vm.wait("f" + nm)
                    P(f"v_cmp_ne_u32 vcc, {NONCE}, {v(fd)}")
                    retry("L_" + nm, ld, f"v_cmp_ne_u32 vcc, {NONCE}, {v(fd)}")
                    stamp(0, nm + "_seen")
        aissue(n, k4)
        assert nxt[0] > n + 1 or nxt[0] == NST or (nxt[0] == n + 1 and k4 < 3), (n, k4, nxt)
        wrd(m + 7)
        if m == 91:
            await_(CPC2, 19, 13, peeked=True)
        if m >= 91 and (m - 91) % OPT["ys"] == 0 and (m - 91) // OPT["ys"] < 8:
            xwrite(AY, XW, ((m - 91) // OPT["ys"]) >> 2, ((m - 91) // OPT["ys"]) & 3)
        if m == 91 + 7 * OPT["ys"] + OPT["dy"]:
            lg.wait(("xw", AY))
            P("s_barrier ; dY")
    if "st0" in OPT:
        stamp(0, f"n{n}")
stamp(0, "sdone")
for ct in range(1 if OPT["tl"] else 0, 2):
    for q in range(4):
        xwrite(AS, XW2, ct, q)
P("s_setprio 0")
lg.drain()
P("s_barrier ; dS")
P(f"s_or_b32 {T0}, s2, {W}\ns_cmp_eq_u32 {T0}, 0")
P("s_cbranch_scc0 L_cend")
flag_store(T0)
P.label("L_cend")
dump(0)
P("s_endpgm")
flush_cold()
P.label("L_codeend")

body = P.finish()
hdr = f"""; Fused LayerNorm + linear attention + GELU FFN block, one persistent launch (256 workgroups, one per CU).
; Generated by work/gen2.py.  Four waves stream operands into LDS, four waves compute.
; @launch grid=(256,1,1) block=(512,1,1) lds=163840
.amdgcn_target "amdgcn-amd-amdhsa--gfx950"
.text
.globl {KNAME}
.p2align 8
.type {KNAME},@function
{KNAME}:
"""
tail = f"""
.section .rodata,"a"
.p2align 6
.amdhsa_kernel {KNAME}
  .amdhsa_next_free_vgpr 256
  .amdhsa_next_free_sgpr 102
  .amdhsa_accum_offset 256
  .amdhsa_group_segment_fixed_size 0
  .amdhsa_kernarg_size 88
  .amdhsa_user_sgpr_count 2
  .amdhsa_user_sgpr_kernarg_segment_ptr 1
  .amdhsa_system_sgpr_workgroup_id_x 1
  .amdhsa_float_denorm_mode_32 3
.end_amdhsa_kernel
"""
if OPT["diag"]:
    tail += f"; STAMPS0 {' '.join(slots[0])}\n"
sys.stdout.write(hdr + body + tail)
sys.stderr.write(f"pads {P.npad}\n")
```

```python
import sys, os, struct, math
from asmlib import Prog, v, s

KNAME = "recurrent_scan__linear_attn_block__dense_activation_gelu__prompt_kernel"
OPT = dict(diag=0, outaux="sc1", map1=81, spin=16, codepf=1, ldfirst=1, prio=1,
           nA9=3, nA10=7, nB10=8, mf=56, cprio=3, gx=36, n6=2, n7=1, kA=12, lag=8, sp=0, sp0=0, nost=0, slp=2, kvw=0, gprio=3, sA=4, xB=8, fast=1, nt1=2, trow=272, nosamp=0, e1B=4, iB2=2, e1A=20, gd=16, lB2=5, lB1=0, cw=1, tlb=0, fill=0, f1=0, f2=9, fo=0, wsoff=0, wprio=3, l1=9, fence=1, inl=1, w0=4, w1=6, w0c=4, quiet=0, nosig=0, noside=0, nt2=2, wb=0, lB=0, hk1=0, lA0=8, lA=0, kq=2, wbj=0, kA0=12, kA1=8, kA2=0, rotx=1, spx=0, pB=10, iB=0, ring=4, nods=0, lsl=0, yB=12, zB=4, yB1=2, zB1=4, aaux="sc1", ahot=0, g2=52, rot2=1, pace=0, pace1=0, dy=2, ys=1, w2=1, p2only=0, plain=0, stouch=0, nst=0, saux="sc1", csprio=3, early=0, map2=81, smp=28, noa=0, now=0, la=7, touch=0, ltouch=1, gl=0, eb=1, chl=0, preA=0, tl=1, hack=0, rv=0, s1h=0, late=6, lw=0, r0=0, r1=0, r2=0, rall=0, chx=0, s1late=0, nostat=0, csd=0, gt=2, nar=1, seq=0, kslp=2, fsx=0, pg=0, fprio=1, f6=0, prime=4, cH1=4, cHA=12, cO=18, fl=4, ft=1, exprio=1, stdiag=0, p1only=0, nocomp=0, norot=0, noload=0, nocs=0)
for a in sys.argv[1:]:
    k, val = a.split("=")
    OPT[k] = val if not val.lstrip("-").isdigit() else int(val)
DIAG = OPT["diag"]
assert OPT["gx"] <= 36


def f2u(x):
    return struct.unpack("<I", struct.pack("<f", x))[0]


K = 1024
WS_STATS = 0x1000
FX = 5 if OPT["fsx"] else 0
LN = 128 << FX
WS_FLAGS = 0xA00000 if FX else 0x8000
FL_HB, FL_HA, FL_O, FL_H1 = 0, 64, 128, 192
WS_KVP = 0x10000
KVP_STR = 4352
WS_CS = 0xA0000
WS_HA = 0x140000 + OPT["wsoff"] * 0x100000
TB_STRIDE = 118 * K
WS_DIAG = 0x900000
WS_SIZE = (0xB00000 if FX else 0xA00000) + OPT["wsoff"] * 0x100000
def CH(q):
    return 96 * K + 8 * K * q if q < 7 else 88 * K
TBUF = 52 * K
TROW = OPT["trow"]
L_EX1 = 152 * K
L_CSX = 156 * K
L_RDY = 154 * K
L_PRG = L_RDY + 16
L_TAG = L_RDY + 32
L_FAST = L_RDY + 48
L_EX2 = 155 * K
L_KT = 156 * K
L_PQ = 72 * K
L_HS = 52 * K
L_XY = 112 * K
L_XS0, L_XS1 = 72 * K, 144 * K
def slot_of(p):
    if p < 18:
        return p * 4 * K
    if p < 34:
        return CH((p - 18) >> 1) + (p & 1) * 4 * K
    if p < 38:
        return 72 * K + (p - 34) * 4 * K
    return slot_of(p - 38)

rX, rP1, rP2, rWS, rW2, rWO, rA, rB = (s(n, 4) for n in (4, 8, 12, 16, 20, 24, 28, 32))
P_X, P_QKV, P_WO, P_W1, P_B1, P_W2, P_B2, P_OUT, P_WS = 36, 38, 40, 44, 46, 48, 50, 52, 56
NONCE, W, I_, J_, C_, TYPE, RHO, TB2, CT, RHO2 = (s(n) for n in range(58, 68))
T0, T1, T2, T3 = (s(n) for n in range(68, 72))

P = Prog()


class Q:
    def __init__(self, name, mx):
        self.q, self.name, self.mx = [], name, mx

    def room(self):
        if len(self.q) >= self.mx:
            P(f"s_waitcnt {self.name}({self.mx - 1})")
            self.q = self.q[len(self.q) - (self.mx - 1):]

    def add(self, tag=None):
        self.q.append(tag)

    def need(self, tag):
        if tag not in self.q:
            return ""
        idx = max(i for i, t in enumerate(self.q) if t == tag)
        n = len(self.q) - 1 - idx
        assert n <= self.mx, (self.name, n)
        self.q = self.q[idx + 1:]
        return f"{self.name}({n})"

    def wait(self, tag):
        t = self.need(tag)
        if t:
            P("s_waitcnt " + t)

    def drain(self, force=False):
        if self.q or force:
            P(f"s_waitcnt {self.name}(0)")
        self.q = []


slots = [{}, {}]
def stamp(role, name):
    if not DIAG:
        return
    want = str(OPT.get(f"st{role}", "")).split(",")
    if want != [""] and name not in want and name not in ("start", "end"):
        return
    n = slots[role].setdefault(name, len(slots[role]))
    if DIAG >= 3:
        assert n < 9, (role, name)
        P(f"{'s_memtime' if DIAG == 4 else 's_memrealtime'} s[{80 + 2 * n}:{81 + 2 * n}]")
        return
    assert n < 16, (role, name)
    P(f"{'s_memtime' if DIAG == 2 else 's_memrealtime'} s[96:97]\ns_waitcnt lgkmcnt(0)\ns_mov_b32 s{80 + n}, s96")


def sreg(r):
    return int(r[2:r.index(":")])


def srd(r, ptr, size):
    n = sreg(r)
    P(f"s_mov_b32 s{n}, s{ptr}\ns_mov_b32 s{n+1}, s{ptr+1}\ns_mov_b32 s{n+2}, 0x{size:x}\ns_mov_b32 s{n+3}, 0x20000")


def sel2(dst, a, b):
    P(f"s_mov_b32 {dst}, 0x{b:x}\ns_cmov_b32 {dst}, 0x{a:x}")


cold = []


def flush_cold():
    for t in cold:
        P(t)
    cold.clear()


def spin_text(lbl, load, check):
    t = f"s_mov_b32 {T3}, {1 << OPT['spin']}\n{lbl}:\n{load}\ns_waitcnt vmcnt(0)\n{check}\n"
    t += f"s_sub_u32 {T3}, {T3}, 1\ns_cbranch_scc1 {lbl}_x\ns_cbranch_vccz {lbl}_x\n"
    n = OPT["kslp"] if lbl in ("L_kv", "L_cs", "L_gr") else OPT["slp"]
    if n:
        t += f"s_sleep {n}\n"
    return t + f"s_branch {lbl}"


def spin(lbl, load, check):
    P(spin_text(lbl, load, check))
    P.label(lbl + "_x")


def retry(lbl, load, check):
    if OPT["inl"]:
        P(f"s_cbranch_vccz {lbl}_x")
        spin(lbl, load, check)
        return
    P(f"s_cbranch_vccnz {lbl}_s")
    P.label(lbl + "_x")
    cold.append(f"{lbl}_s:\n" + spin_text(lbl, load, check))


HX = "row"
FAR = "s46"
nrow = [0]
def row_store(text, nt=0):
    if not OPT["fast"] or nt == 2:
        P(text + " sc1")
        return
    nrow[0] += 1
    l = f"L_r{nrow[0]}"
    P(f"s_cmp_lg_u32 {FAR}, 0\ns_cbranch_scc1 {l}\n{text} {'nt' if nt else ''}\n{l}_x:")
    cold.append(f"{l}:\n{text} sc1\ns_branch {l}_x")


def flag_store(sreg_off, va=26, aux="sc1"):
    P(f"v_mov_b32 {v(va)}, {NONCE}\nv_mov_b32 {v(va+1)}, 0")
    P("s_mov_b64 exec, 1")
    if aux == "row":
        row_store(f"buffer_store_dword {v(va)}, {v(va+1)}, {rWS}, {sreg_off} offen")
    else:
        P(f"buffer_store_dword {v(va)}, {v(va+1)}, {rWS}, {sreg_off} offen {aux}")
    P("s_mov_b64 exec, -1")


def signal(vaddr, vtmp, k, fence=False):
    if fence and OPT["fence"]:
        lg.drain(force=True)
    P(f"v_mov_b32 {v(vtmp)}, {k}\ns_mov_b64 exec, 1\nds_write_b32 {v(vaddr)}, {v(vtmp)}\ns_mov_b64 exec, -1")
    lg.add(None)


nwait = [0]
def peek(vaddr, vd):
    lg.room()
    P(f"ds_read_b32 {v(vd)}, {v(vaddr)}")
    lg.add(("peek", vd))


def await_(vaddr, vd, k, peeked=False):
    nwait[0] += 1
    lbl = f"L_w{nwait[0]}"
    if not peeked:
        peek(vaddr, vd)
    lg.wait(("peek", vd))
    P(f"v_cmp_gt_u32 vcc, {k}, {v(vd)}")
    loop = (f"s_mov_b32 {T3}, {1 << 20}\n{lbl}:\nds_read_b32 {v(vd)}, {v(vaddr)}\ns_sub_u32 {T3}, {T3}, 1\ns_waitcnt lgkmcnt(0)\n"
            f"v_cmp_gt_u32 vcc, {k}, {v(vd)}\ns_cbranch_scc1 {lbl}_x\ns_cbranch_vccnz {lbl}")
    if OPT["inl"]:
        P(f"s_cbranch_vccz {lbl}_x\n{loop}")
    else:
        P(f"s_cbranch_vccnz {lbl}_s")
        cold.append(f"{lbl}_s:\n{loop}\ns_branch {lbl}_x")
    P.label(lbl + "_x")


def hblock2(dst):
    P(f"s_lshl_b32 {dst}, {C_}, 1\ns_add_u32 {T3}, {C_}, 3\ns_min_u32 {dst}, {dst}, {T3}\ns_add_u32 {dst}, {dst}, 32")


def waddr(dst, t1, t2, hshift):
    P(f"v_lshrrev_b32 {v(t1)}, 5, v0\nv_bfe_u32 {v(t2)}, v0, 2, 2\nv_lshl_add_u32 {v(t1)}, {v(t1)}, {hshift}, {v(t2)}")
    P(f"v_lshlrev_b32 {v(dst)}, 7, {v(t1)}")
    P(f"v_bfe_u32 {v(t1)}, v0, 3, 1\nv_lshl_or_b32 {v(dst)}, {v(t1)}, 6, {v(dst)}")
    P(f"v_bfe_u32 {v(t1)}, v0, 4, 1\nv_lshl_or_b32 {v(dst)}, {v(t1)}, 5, {v(dst)}")
    P(f"v_and_b32 {v(t1)}, 3, v0\nv_lshl_or_b32 {v(dst)}, {v(t1)}, 3, {v(dst)}")


def tr(dst, addr, off, tag):
    assert 0 <= off < 65536, off
    lg.room()
    P(f"ds_read_b64_tr_b16 {v(dst, 2)}, {v(addr)} offset:{off}")
    lg.add(tag)


def dump(role):
    if not DIAG:
        return
    P("s_waitcnt vmcnt(0)")
    stamp(role, "end")
    P("s_waitcnt lgkmcnt(0)")
    for n in range(16):
        P(f"v_mov_b32 {v(32 + n)}, {s(80 + n) if DIAG < 3 else (s(80 + 2 * n) if n < 10 else ('s100' if n == 15 else 0))}")
    if role == 1 and DIAG >= 3 and OPT.get("xcc"):
        P(f"s_getreg_b32 {T0}, hwreg(HW_REG_XCC_ID, 0, 4)\ns_min_u32 {T1}, s46, 1\ns_lshl4_add_u32 {T0}, {T1}, {T0}\nv_mov_b32 v45, {T0}")
    P(f"s_lshl_b32 {T0}, s2, 3\ns_add_u32 {T0}, {T0}, {W}\ns_lshl_b32 {T0}, {T0}, 6\ns_add_u32 {T0}, {T0}, 0x{WS_DIAG + role * 256:x}")
    P("v_mov_b32 v26, 0\ns_mov_b64 exec, 1")
    for n in range(4):
        P(f"buffer_store_dwordx4 {v(32 + 4 * n, 4)}, v26, {rWS}, {T0} offen offset:{16 * n}")


P("s_cmp_ge_u32 s2, 256")
P("s_cbranch_scc1 L_end")
if DIAG >= 3:
    P("s_memrealtime s[100:101]")
P("s_load_dwordx16 s[36:51], s[0:1], 0")
P("v_lshrrev_b32 v1, 6, v0")
P("v_and_b32 v0, 63, v0")
P(f"v_lshlrev_b32 v2, 2, v1\nv_add_u32 v2, 0x{L_RDY:x}, v2\nv_mov_b32 v3, 0\nds_write_b32 v2, v3")
if OPT["map1"] == 81:
    P(f"s_lshr_b32 {T3}, s2, 7\nv_readfirstlane_b32 {T2}, v1\ns_and_b32 {I_}, s2, 7\ns_bfe_u32 {J_}, s2, 0x40003")
    if OPT["rv"] == 1:
        P(f"s_and_b32 {T1}, s2, 3\ns_lshl1_add_u32 {I_}, {I_}, {T3}\ns_lshl2_add_u32 {RHO}, {T3}, {T1}")
    else:
        P(f"s_lshl2_add_u32 {RHO}, {T3}, {J_}\ns_and_b32 {T1}, s2, 3\ns_lshl1_add_u32 {I_}, {I_}, {T3}\ns_add_u32 {RHO}, {RHO}, {T1}\ns_and_b32 {RHO}, {RHO}, 7")
    if OPT["rv"] == 2:
        P(f"s_lshr_b32 {T1}, {J_}, 1\ns_sub_u32 {RHO}, {RHO}, {J_}\ns_add_u32 {RHO}, {RHO}, {T1}\ns_and_b32 {RHO}, {RHO}, 7")
elif OPT["map1"] == 24:
    P(f"s_lshr_b32 {T3}, s2, 5\nv_readfirstlane_b32 {T2}, v1\ns_and_b32 {I_}, s2, 4\ns_bfe_u32 {T1}, s2, 0x20003\ns_and_b32 {J_}, s2, 3")
    P(f"s_lshl1_add_u32 {I_}, {I_}, {T3}\ns_lshl2_add_u32 {J_}, {J_}, {T1}\ns_lshl1_add_u32 {RHO}, {T1}, {T3}\ns_and_b32 {T1}, s2, 1\ns_add_u32 {RHO}, {RHO}, {T1}\ns_and_b32 {RHO}, {RHO}, 7")
else:
    P(f"s_lshr_b32 {T3}, s2, 6\nv_readfirstlane_b32 {T2}, v1\ns_and_b32 {I_}, s2, 6\ns_bfe_u32 {T1}, s2, 0x30003\ns_and_b32 {J_}, s2, 1")
    P(f"s_lshl1_add_u32 {I_}, {I_}, {T3}\ns_lshl3_add_u32 {J_}, {J_}, {T1}\ns_lshl1_add_u32 {RHO}, {T3}, {T1}\ns_bfe_u32 {T1}, s2, 0x10001\ns_add_u32 {RHO}, {RHO}, {T1}\ns_and_b32 {RHO}, {RHO}, 7")
P(f"s_and_b32 {W}, {T2}, 3")
def late_args():
    P("s_load_dwordx4 s[52:55], s[0:1], 64")
    P("s_load_dwordx2 s[56:57], s[0:1], 80")
    P(f"s_lshr_b32 {C_}, {J_}, 1\ns_and_b32 {TYPE}, {J_}, 1")
def diag_init():
    if DIAG:
        for n in range(20):
            P(f"s_mov_b32 s{80 + n}, 0")


RHOS, RHOA = "s3", "s47"
def tile2():
    if OPT["map2"] == 42:
        P(f"s_lshr_b32 {T3}, s2, 5\ns_bfe_u32 {TB2}, s2, 0x20001\ns_lshl_b32 {TB2}, {TB2}, 3\ns_add_u32 {TB2}, {TB2}, {T3}")
        P(f"s_bfe_u32 {RHO2}, s2, 0x20003\ns_and_b32 {CT}, s2, 1\ns_lshl_b32 {CT}, {CT}, 2\ns_add_u32 {CT}, {CT}, {RHO2}")
        P(f"s_lshl_b32 {RHO2}, {RHO2}, 1\ns_add_u32 {RHO2}, {RHO2}, {T3}\ns_and_b32 {RHO2}, {RHO2}, 7")
        return
    P(f"s_lshr_b32 {T3}, s2, 6\ns_and_b32 {TB2}, s2, 7\ns_lshl_b32 {TB2}, {TB2}, 2\ns_add_u32 {TB2}, {TB2}, {T3}")
    P(f"s_bfe_u32 {CT}, s2, 0x30003\ns_lshl_b32 {RHO2}, {T3}, 1\ns_add_u32 {RHO2}, {RHO2}, {CT}\ns_and_b32 {RHO2}, {RHO2}, 7")
    P(f"s_add_u32 {RHOS}, {T3}, {CT}\ns_mul_i32 {RHOA}, {T3}, 3\ns_and_b32 {T3}, {CT}, 1\ns_add_u32 {RHOA}, {RHOA}, {T3}")
    if not OPT["rotx"]:
        P(f"s_mov_b32 {RHOS}, {RHO2}\ns_mov_b32 {RHOA}, 0")


P(f"s_cmp_lt_u32 {T2}, 4")
P("s_cbranch_scc1 L_loader")
late_args()
if OPT["codepf"]:
    P("s_getpc_b64 s[32:33]")
    P.label("L_pc")
    P("s_mov_b32 s34, L_codeend-L_pc\ns_mov_b32 s35, 0x20000")
    P(f"s_lshr_b32 {T0}, s2, 3\ns_lshl2_add_u32 {T1}, {T0}, {W}\ns_lshl_b32 {T1}, {T1}, 7\nv_and_b32 v4, 3, v0\nv_lshl_add_u32 v4, v4, 14, {T1}")
    P("buffer_load_dword v31, v4, s[32:35], 0 offen")
P("s_branch L_compute")
P.label("L_loader")

lg = Q("lgkmcnt", 15)
vm = Q("vmcnt", 63)
VX, VP1, VP2, VW2, VBI, LWA, LWB, VL16, SEL, CS, CS2 = 1, 2, 3, 4, 5, 6, 7, 8, 12, 16, 20
RS1, RS32, SX0, SW0, DCOL, SP20, SM, HB0L = (s(n) for n in range(72, 80))
if DIAG < 3:
    diag_init()
    stamp(1, "start")
P("v_lshrrev_b32 v24, 3, v0\nv_and_b32 v25, 7, v0\nv_lshrrev_b32 v26, 4, v0")
P(f"s_and_b32 {T0}, {W}, 1\ns_lshl_b32 {T0}, {T0}, 2\ns_lshl4_add_u32 {SX0}, {I_}, {W}")
P(f"v_add_u32 v27, {T0}, v26\nv_xor_b32 v27, v27, v25\nv_lshlrev_b32 v27, 4, v27\nv_lshl_or_b32 {v(VX)}, v24, 10, v27")
P(f"s_lshl_b32 {SX0}, {SX0}, 13\ns_lshl_b32 {SM}, {W}, 10")
P("s_mov_b32 s6, 0x200000\ns_mov_b32 s7, 0x20000")
SZQ, SZ1 = 512 * 3072, 512 * 2752


def wsetup():
    late_args()
    P(f"s_setprio {OPT['prio']}")
    P(f"s_lshl_b32 {T1}, {C_}, 7\ns_cmp_eq_u32 {TYPE}, 0")
    sel2(RS1, 3072, 2752)
    sel2(DCOL, 1024, 128)
    sel2("s10", SZQ, SZ1)
    P(f"s_cselect_b32 s8, s{P_QKV}, s{P_W1}\ns_cselect_b32 s9, s{P_QKV+1}, s{P_W1+1}\ns_mov_b32 s11, 0x20000")
    P(f"s_cselect_b32 {SW0}, 1024, {T1}\ns_add_u32 {SW0}, {SW0}, {T1}")
    P("v_and_b32 v27, 1, v26\nv_lshlrev_b32 v27, 2, v27\nv_xor_b32 v27, v27, v25\nv_lshlrev_b32 v27, 4, v27")
    P(f"v_mad_u32_u24 {v(VP1)}, v24, {RS1}, v27")
    P(f"s_lshl_b32 {T3}, {W}, 3\ns_mul_i32 {SP20}, {T3}, {RS1}\ns_add_u32 {SW0}, {SW0}, {SP20}\ns_lshl_b32 {RS32}, {RS1}, 5")


def wsetup2():
    hblock2(HB0L)
    P(f"s_lshl_b32 {T0}, {HB0L}, 6\ns_lshl_b32 {T1}, {C_}, 7\ns_cmp_eq_u32 {TYPE}, 0\ns_cselect_b32 {T0}, {T1}, {T0}\ns_add_u32 {SP20}, {SP20}, {T0}")
    P(f"v_lshl_or_b32 {v(VW2)}, v24, 10, v27")


def dma(voff, srdr, soff, tag):
    if OPT["noload"]:
        return
    P(f"buffer_load_dwordx4 {v(voff)}, {srdr}, {soff} offen lds")
    vm.add(tag)


def ks_reg(q):
    P(f"s_add_u32 {T0}, {RHO}, {q}\ns_and_b32 {T0}, {T0}, 7" if q else f"s_mov_b32 {T0}, {RHO}")


def stage(q, mid=None, pre=None):
    sl = (q % 3) * 32 * K
    ks_reg(q)
    P(f"s_lshl_b32 {T1}, {T0}, 7\ns_add_u32 {T1}, {T1}, {SX0}")
    for m in range(4):
        P(f"s_add_u32 m0, {SM}, {sl + 4 * K * m}")
        if m:
            P(f"s_add_u32 {T1}, {T1}, 32768")
        else:
            P(f"s_lshl_b32 {T0}, {T0}, 6")
            if pre:
                pre()
        dma(VX, rX, T1, ("st", q))
    if mid:
        mid()
    P(f"s_mul_i32 {T0}, {T0}, {RS1}\ns_add_u32 {T0}, {T0}, {SW0}")
    for h in range(2):
        if h:
            P(f"s_add_u32 {T0}, {T0}, {RS32}")
        P(f"s_add_u32 m0, {SM}, {sl + 16 * K + 4 * K * h}")
        P(f"s_add_u32 {T1}, {T0}, {DCOL}")
        dma(VP1, rP1, T0, ("st", q))
        P(f"s_add_u32 m0, {SM}, {sl + 24 * K + 4 * K * h}")
        dma(VP1, rP1, T1, ("st", q))


def chunk(q, tag="ch"):
    ks_reg(q)
    P(f"s_lshl_b32 {T0}, {T0}, 6\ns_mul_i32 {T0}, {T0}, {RS1}")
    P(f"s_add_u32 m0, {SM}, {CH(q)}\ns_add_u32 {T0}, {T0}, {SP20}")
    dma(VP1, rP1, T0, tag)
    P(f"s_add_u32 m0, {SM}, {CH(q) + 4 * K}\ns_add_u32 {T0}, {T0}, {RS32}")
    dma(VP1, rP1, T0, tag)


LPA, LPL = "s48", "s49"
LPB, LGB, SCS = "s36", "s37", "s38"
CHR, MID, PQR, D0, D1 = 48, 104, 212, 32, 228


def page_addr(p):
    if p < 32:
        if p % 2 == 0 or page_addr.last != ("b", p >> 1):
            P(f"s_add_u32 {LGB}, {RHO2}, {(p >> 1) & 7}\ns_and_b32 {LGB}, {LGB}, 7\ns_lshl_b32 {LGB}, {LGB}, 17\ns_add_u32 {LGB}, {LGB}, {LPB}")
            page_addr.last = ("b", p >> 1)
        P(f"s_add_u32 {T0}, {LGB}, {(2 * (p >> 4) + (p & 1)) * 32768}")
        return rW2
    elif p < 44:
        P(f"s_add_u32 {T0}, {LPA}, {(p - 32) * 32768}\ns_cmp_ge_u32 {T0}, {LPL}\ns_cselect_b32 {T1}, {11 * 32768}, 0\ns_sub_u32 {T0}, {T0}, {T1}")
        return rW2
    else:
        g, mask, sr, add = (p - 44) >> 2, 3, rWO, 0
    if p % 4 == 0 or page_addr.last != (p >> 2):
        P(f"s_add_u32 {LGB}, {RHOS}, {g}\ns_and_b32 {LGB}, {LGB}, {mask}\ns_lshl_b32 {LGB}, {LGB}, 17\ns_add_u32 {LGB}, {LGB}, {LPB}")
        page_addr.last = p >> 2
    P(f"s_add_u32 {T0}, {LGB}, {(p % 4) * 32768}")
    return sr
page_addr.last = None


def page(p):
    P(f"s_add_u32 m0, {SM}, {slot_of(p)}")
    sr = page_addr(p)
    dma(VW2, sr, T0, ("pg", p))


def stg_reg(p):
    if p < 38:
        return MID + 4 * (p - 18)
    k = p - 38 if p < 43 else p - 39
    return CHR + 4 * k if k < 14 else 184 + 4 * (k - 14)


def lds16(a):
    return f"{v(VL16 + a // (64 * K))}", a % (64 * K)


VP2N = 23
def chunk_stage(q):
    if OPT["nar"] and q == 1:
        P(f"s_cmp_ge_u32 {C_}, 3\ns_cselect_b32 {T0}, {TYPE}, 0\ns_lshl_b32 {T0}, {T0}, 6\ns_not_b32 {T0}, {T0}")
        P(f"v_lshrrev_b32 v27, 3, v0\nv_mul_u32_u24 v27, {RS1}, v27\nv_sub_u32 v28, {v(VP1)}, v27\nv_and_b32 v28, {T0}, v28\nv_add_u32 {v(VP2N)}, v27, v28")
    ks_reg(q)
    P(f"s_lshl_b32 {T0}, {T0}, 6\ns_mul_i32 {T0}, {T0}, {RS1}\ns_add_u32 {T0}, {T0}, {SP20}\ns_add_u32 {T1}, {T0}, {RS32}")
    for h in range(2):
        P(f"buffer_load_dwordx4 {v(CHR + 8 * (q - 1) + 4 * h, 4)}, {v(VP2N if OPT['nar'] else VP1)}, {rP1}, {(T0, T1)[h]} offen")
        vm.add(("ch", q))


def chunk_write(q):
    vm.wait(("ch", q))
    for h in range(2):
        a, off = lds16(CH(q) + 4 * K * h)
        P(f"ds_write_b128 {a}, {v(CHR + 8 * (q - 1) + 4 * h, 4)} offset:{off}")


def page_stage(p):
    sr = page_addr(p)
    P(f"buffer_load_dwordx4 {v(stg_reg(p), 4)}, {v(VW2)}, {sr}, {T0} offen")
    vm.add(("pg", p))


def page_write(p, pace=0):
    so = slot_of(p)
    a, off = (VL16, so) if so < 64 * K else ((VL16 + 1, so - 64 * K) if so < 128 * K else (VL16 + 2, so - 128 * K))
    P(f"ds_write_b128 {v(a)}, {v(stg_reg(p), 4)} offset:{off}")
    if pace:
        P("s_waitcnt lgkmcnt(0)")


stage(0, wsetup, lambda: P(f"s_waitcnt lgkmcnt(0)\ns_mov_b32 s4, s{P_X}\ns_mov_b32 s5, s{P_X+1}"))
if DIAG >= 3:
    diag_init()
    stamp(1, "start")
stamp(1, "st0")
wsetup2()
if not OPT["chl"]:
    chunk(0, "ch0")
P("s_waitcnt lgkmcnt(0)")
P(f"s_load_dword {NONCE}, s[{P_WS}:{P_WS+1}], 0")
srd(rWS, P_WS, WS_SIZE)
srd(rW2, P_W2, 1376 * 1024)
srd(rWO, P_WO, 512 * 1024)
srd(rA, P_B1, 2752)
tile2()
waddr(LWA, 27, 28, 3)
P(f"s_and_b32 {T0}, {W}, 1\ns_lshl_b32 {T0}, {T0}, 6")
P(f"v_xor_b32 {v(LWA)}, {T0}, {v(LWA)}")
P(f"v_add_u32 {v(LWB)}, 0x{CH(0):x}, {v(LWA)}")
P(f"s_lshr_b32 {T0}, {W}, 1\ns_lshl_b32 {T0}, {T0}, 13\ns_add_u32 {T0}, {T0}, {16 * K}")
P(f"v_add_u32 {v(LWA)}, {T0}, {v(LWA)}")
P("v_and_b32 v27, 15, v0\nv_lshlrev_b32 v28, 2, v26\nv_cmp_eq_u32 vcc, v27, v28\nv_mov_b32 v27, 0x3f803f80")
for r in range(4):
    P(f"v_cndmask_b32 {v(SEL + r)}, 0, v27, vcc")
P(f"v_lshl_add_u32 {v(VL16)}, v0, 4, {SM}")
P(f"v_add_u32 {v(VL16+1)}, 0x10000, {v(VL16)}\nv_add_u32 {v(VL16+2)}, 0x20000, {v(VL16)}")
P(f"s_lshl_b32 {LPB}, {W}, 13\ns_lshl_b32 {T1}, {CT}, 7\ns_add_u32 {LPB}, {LPB}, {T1}")
P(f"s_lshl_b32 {LPA}, {RHOA}, 15\ns_add_u32 {LPA}, {LPA}, {LPB}\ns_add_u32 {LPA}, {LPA}, {32 * 32768}\ns_add_u32 {LPL}, {LPB}, {43 * 32768}")
P(f"s_lshl_b32 {SCS}, {J_}, 1\ns_lshr_b32 {T0}, {I_}, 3\ns_add_u32 {SCS}, {SCS}, {T0}\ns_lshl_b32 {SCS}, {SCS}, 2")
P(f"s_add_u32 {SCS}, {SCS}, {W}\ns_lshl_b32 {SCS}, {SCS}, 12\ns_add_u32 {SCS}, {SCS}, 0x{WS_CS:x}")
P(f"s_lshl_b32 {T0}, {C_}, 2\ns_add_u32 {T0}, {T0}, {W}\ns_lshl_b32 {T0}, {T0}, 6")
P(f"s_and_b32 {T1}, {W}, 1\ns_add_u32 {T1}, {T1}, {HB0L}\ns_lshl_b32 {T1}, {T1}, 6")
P(f"s_cmp_eq_u32 {TYPE}, 0\ns_cselect_b32 {T0}, 0x100000, {T0}\ns_cselect_b32 {T1}, 0x100000, {T1}")
P(f"v_mov_b32 v27, {T0}\nv_mov_b32 v28, {T1}\nv_cmp_gt_u32 vcc, 32, v0\nv_and_b32 v29, 31, v0")
P(f"v_cndmask_b32 v27, v28, v27, vcc\nv_lshl_add_u32 v30, v29, 1, v27")
VSIG, VPK = 11, 24
P(f"s_lshl_b32 {T0}, {W}, 2\ns_add_u32 {T0}, {T0}, 0x{L_RDY:x}\nv_mov_b32 {v(VSIG)}, {T0}")
P(f"v_and_b32 {v(VPK)}, 3, v0\nv_lshlrev_b32 {v(VPK)}, 2, {v(VPK)}\nv_add_u32 {v(VPK)}, 0x{L_PRG:x}, {v(VPK)}")
XRES, BRES, VO, SO = 244, 252, 19, "s45"
if OPT["eb"]:
    srd(rB, P_B2, 1024)
    P(f"buffer_load_ushort {v(VBI)}, v30, {rA}, 0 offen")
    P(f"v_and_b32 v28, 7, v0\nv_lshlrev_b32 v28, 4, v28\ns_lshl_b32 {T1}, {CT}, 7")
    P(f"buffer_load_dwordx4 {v(BRES, 4)}, v28, {rB}, {T1} offen")
    vm.add(None)
    vm.add(None)
stamp(1, "setup")
if not OPT["s1late"]:
    stage(1, (lambda: P(f"s_waitcnt vmcnt({OPT['s1h']})")) if OPT["s1h"] else None)
if OPT["chl"] and not OPT["chx"] and not OPT["s1late"]:
    chunk(0, ("st", 1))
stamp(1, "issued")
P(f"s_waitcnt lgkmcnt(0)\ns_add_u32 {NONCE}, {NONCE}, 1")
vm.wait("ch0")
vm.wait(("st", 0))
stamp(1, "land")
if OPT["p2only"]:
    P("s_waitcnt vmcnt(0)\ns_barrier")
    signal(VSIG, 27, 6)
    P("s_barrier\ns_barrier")
    dump(1)
    P("s_endpgm")
    lg.q = []
P("s_barrier ; b0")
stamp(1, "b0")
FR = 32


def cs_reads(a, f):
    for t in range(4):
        P(f"ds_read_b64_tr_b16 {v(f + 4 * t, 2)}, {v(a)} offset:{t * 2048}")
        P(f"ds_read_b64_tr_b16 {v(f + 4 * t + 2, 2)}, {v(a)} offset:{t * 2048 + 512}")


def cs_mfma(acc, f):
    for t in range(4):
        P(f"v_mfma_f32_16x16x32_bf16 {v(acc, 4)}, {v(SEL, 4)}, {v(f + 4 * t, 4)}, {'0' if t == 0 else v(acc, 4)}")


CSL = "\n".join(f"buffer_load_dwordx2 {v(32 + 2 * n, 2)}, v29, {rWS}, {SCS} offen offset:{512 * n} sc1" for n in range(8))
CSC = "\n".join([f"v_xor_b32 {v(228 + n)}, {NONCE}, {v(33 + 2 * n)}" for n in range(8)] +
                ["v_or3_b32 v228, v228, v229, v230", "v_or3_b32 v231, v231, v232, v233", "v_or3_b32 v228, v228, v234, v235",
                 "v_or_b32 v228, v228, v231", "v_cmp_ne_u32 vcc, 0, v228"])
nch = 1
for st in range(8):
    CL = OPT["chl"]
    def mid():
        if st == 0:
            P(f"s_setprio {OPT['csprio']}")
            P("s_waitcnt lgkmcnt(0)")
            if not CL:
                cs_reads(LWB, FR + 16)
            cs_mfma(CS, FR)
            if CL:
                P(f"s_setprio {OPT['prio']}")
    if st == 0:
        cs_reads(LWA, FR)
        if OPT["s1late"]:
            stage(1)
            if OPT["chl"]:
                chunk(0, ("st", 1))
    if OPT["chx"] and st == OPT["chx"]:
        chunk(0, None)
    if st == 1 and CL:
        cs_reads(LWB, FR + 16)
    if st <= 5:
        if OPT["late"] >> st & 1:
            P(f"s_waitcnt vmcnt({OPT['lw']})")
        stage(st + 2, mid)
    if st == CL:
        P(f"s_setprio {OPT['csprio']}")
        P(f"s_lshl_b32 {T0}, {W}, 8\ns_add_u32 {T0}, {T0}, 0x{L_CSX:x}")
        P(f"v_lshl_add_u32 v27, v0, 2, {T0}")
        P("s_waitcnt lgkmcnt(0)")
        cs_mfma(CS2, FR + 16)
        P(f"v_permlane32_swap_b32 {v(CS)}, {v(CS2)}")
        P(f"v_add_f32 {v(CS)}, {v(CS)}, {v(CS2)}")
        P(f"ds_write_b32 v27, {v(CS)}")
        P(f"s_setprio {OPT['prio']}")
    if st == CL + 1:
        P("s_waitcnt lgkmcnt(0)")
    if OPT["fill"] == 3 and 1 <= st <= 6:
        if st == 1:
            P(f"s_lshl2_add_u32 s40, {I_}, {W}\ns_mul_i32 s40, s40, {TB_STRIDE}\ns_lshl_b32 {T0}, {J_}, 12\ns_add_u32 s40, s40, {T0}\ns_add_u32 s40, s40, 0x{WS_HA:x}")
        for t in range(6 * (st - 1), min(32, 6 * st)):
            P(f"s_buffer_load_dword s41, {rWS}, s40 offset:{128 * t}")
    if st == 6:
        P("v_lshlrev_b32 v29, 3, v0")
        P(CSL)
        for n in range(8):
            vm.add("cs")
        if OPT["ltouch"]:
            P(f"s_lshl2_add_u32 {T0}, s2, {W}\ns_mul_i32 {T1}, {T0}, {11 * 128}\ns_lshl_b32 {T0}, {T0}, 9")
            P(f"v_min_u32 v27, 10, v0\nv_lshlrev_b32 v27, 7, v27\nv_and_b32 v28, 0x180, v27")
            P(f"buffer_load_dword v20, v27, {rW2}, {T1} offen\nbuffer_load_dword v21, v28, {rWO}, {T0} offen")
            vm.add(None)
            vm.add(None)
        if OPT["f6"]:
            P(f"s_mul_i32 {T0}, {I_}, {4 * TB_STRIDE}\ns_lshl_b32 {T1}, {C_}, 12\ns_add_u32 {T1}, {T1}, {SM}\ns_add_u32 {T1}, {T1}, {86 * K}")
            P(f"s_mul_i32 {T2}, {W}, {TB_STRIDE}\ns_lshl_b32 {T3}, {HB0L}, 11\ns_add_u32 {T2}, {T2}, {T3}")
            P(f"s_cmp_lt_u32 {C_}, 3")
            sel2(T3, 3, 1)
            P(f"s_cmp_eq_u32 {TYPE}, 0\ns_cselect_b32 {T1}, {T1}, {T2}\ns_cselect_b32 {T3}, 3, {T3}")
            sel2(T2, TB_STRIDE, 1024)
            P(f"s_add_u32 {T0}, {T0}, {T1}\ns_add_u32 {T0}, {T0}, 0x{WS_HA:x}")
            P(f"v_lshrrev_b32 v27, 3, v0\nv_and_b32 v27, {T3}, v27\nv_mul_u32_u24 v27, {T2}, v27\nv_and_b32 v28, 7, v0\nv_lshl_add_u32 v27, v28, 7, v27")
            P(f"buffer_load_dword v23, v27, {rWS}, {T0} offen")
            vm.add(None)
        if OPT["ft"]:
            P(f"s_lshl2_add_u32 {T0}, {I_}, {W}\ns_lshl_b32 {T0}, {T0}, 7\ns_lshl_b32 {T1}, {I_}, 7\ns_add_u32 {T1}, {T1}, {FL_O * 128}")
            P(f"v_and_b32 v27, 3, v0\nv_lshl_add_u32 v28, v27, 13, {T0}\nv_mov_b32 v22, {T1}\nv_cmp_eq_u32 vcc, 2, v27\nv_cndmask_b32 v28, v28, v22, vcc")
            P(f"s_mov_b32 {T0}, 0x{WS_FLAGS:x}\nbuffer_load_dword v22, v28, {rWS}, {T0} offen sc1")
            vm.add(None)
    if st == 7:
        P(f"s_setprio {OPT['exprio']}")
        vm.wait("cs")
        stamp(1, "csin")
        P(CSC)
        retry("L_cs", CSL, CSC)
        stamp(1, "csok")
        P("v_add_f32 v32, v32, v34\nv_add_f32 v36, v36, v38\nv_add_f32 v40, v40, v42\nv_add_f32 v44, v44, v46")
        P("v_add_f32 v32, v32, v36\nv_add_f32 v40, v40, v44\nv_add_f32 v32, v32, v40")
        P("v_cvt_pk_bf16_f32 v33, v32, v32\nv_lshlrev_b32 v33, 16, v33\nv_sub_f32 v32, v32, v33\nv_cvt_pk_bf16_f32 v32, v33, v32")
        P("v_cmp_gt_u32 vcc, 32, v0")
        P(f"s_lshl_b32 {T0}, {W}, 9\ns_add_u32 {T0}, {T0}, 0x{L_EX1:x}")
        P(f"v_add_u32 v29, {T0}, v29")
        P(f"v_cndmask_b32 v34, 0, v32, vcc\nv_cndmask_b32 v35, 0, {v(VBI)}, vcc")
        P(f"v_cndmask_b32 v36, v32, 0, vcc\nv_cndmask_b32 v37, {v(VBI)}, 0, vcc")
        P(f"ds_write_b64 v29, v[34:35]\nds_write_b64 v29, v[36:37] offset:{L_EX2 - L_EX1}")
    if st == 7:
        P(f"s_setprio {OPT['prio']}")
    if st >= 6:
        for q in range(nch, nch + OPT[f"n{st}"]):
            chunk_stage(q)
        nch += OPT[f"n{st}"]
    if st < 7:
        vm.wait(("st", st + 1))
    if st == 7:
        P("s_waitcnt lgkmcnt(0)")
        stamp(1, "exw")
    P(f"s_barrier ; b{st + 1}")
    if "st1" in OPT and st < 7:
        stamp(1, f"b{st+1}")
stamp(1, "b8")
if OPT["p1only"]:
    dump(1)
    P("s_endpgm")
    DIAG = 0
for q in range(nch, 8):
    chunk_stage(q)
if not OPT["eb"]:
    srd(rB, P_B2, 1024)
srd(rP2, P_OUT, 2 * K * K)
P(f"v_and_b32 v28, 7, v0\nv_lshlrev_b32 v28, 4, v28\nv_lshrrev_b32 v29, 3, v0\nv_lshl_or_b32 {v(VO)}, v29, 10, v28")
P(f"s_lshl_b32 {SO}, {TB2}, 2\ns_add_u32 {SO}, {SO}, {W}\ns_lshl_b32 {SO}, {SO}, 14\ns_lshl_b32 {T1}, {CT}, 7\ns_add_u32 {SO}, {SO}, {T1}")
P(f"s_add_u32 {T2}, {SO}, 8192")
if not OPT["eb"]:
    P(f"buffer_load_dwordx4 {v(BRES, 4)}, v28, {rB}, {T1} offen")
    vm.add("res")
P(f"buffer_load_dwordx4 {v(XRES, 4)}, {v(VO)}, {rX}, {SO} offen")
P(f"buffer_load_dwordx4 {v(XRES + 4, 4)}, {v(VO)}, {rX}, {T2} offen")
for _ in range(2):
    vm.add("res")
vq8 = list(vm.q)


def stream(seq):
    for p in seq:
        (page if p < 18 else page_stage)(p)


LATE = list(range(38, 43)) + list(range(44, 60))
P(f"s_cmp_eq_u32 {TYPE}, 0")
P("s_cbranch_scc1 L_lA")
SH1, SH2, SF1 = "s4", "s5", "s6"
P(f"v_add_u32 v22, 16, {v(VSIG)}\nv_lshlrev_b32 v23, 4, v0")
P(f"s_lshl_b32 {T0}, {I_}, 2\ns_add_u32 {T0}, {T0}, {W}")
P(f"s_mul_i32 {SH1}, {T0}, {TB_STRIDE}\ns_add_u32 {SH1}, {SH1}, 0x{WS_HA:x}")
P(f"s_lshl_b32 {SH2}, {HB0L}, 11\ns_add_u32 {SH2}, {SH2}, {SH1}\ns_lshl_b32 {T1}, {C_}, 13\ns_add_u32 {SH1}, {SH1}, {T1}")
P(f"s_lshl_b32 {SF1}, {T0}, 5\ns_add_u32 {SF1}, {SF1}, {C_}\ns_lshl_b32 {SF1}, {SF1}, {2 + FX}\ns_add_u32 {SF1}, {SF1}, 0x{WS_FLAGS + FL_HB * LN:x}")


def far():
    P(f"ds_read_b32 v28, {v(VPK)} offset:{L_FAST - L_PRG}\ns_waitcnt lgkmcnt(0)\nv_cmp_ne_u32 vcc, 0, v28\ns_or_b32 {FAR}, vcc_lo, vcc_hi")


def wback(tag):
    if OPT["wbj"] == 0:
        P(f"s_cmp_lg_u32 {W}, 0")
    else:
        P(f"s_xor_b32 {T0}, {J_}, {OPT['wbj'] - 1}\ns_or_b32 {T0}, {T0}, {W}\ns_cmp_lg_u32 {T0}, 0")
    P(f"s_cbranch_scc1 L_wb{tag}\nbuffer_wbl2 sc1\nL_wb{tag}:")


def hstore(k, base, b, sh, tag):
    if k == 1:
        await_(VPK, 28, k)
        far()
    else:
        await_(22, 28, k)
    d = D0 + 8 * (b & 1)
    for u in range(2):
        a = base + (2 * b + u) * 4096
        P(f"ds_read_b128 {v(d + 4 * u, 4)}, {v(VL16 + a // (64 * K))} offset:{a % (64 * K)}")
    if b == 2:
        P(f"s_add_u32 {sh}, {sh}, 4096")
    for u in range(2):
        P(f"s_waitcnt lgkmcnt({1 - u})")
        row_store(f"buffer_store_dwordx4 {v(d + 4 * u, 4)}, v23, {rWS}, {sh} offen offset:{2048 * (b & 1) + 1024 * u}", OPT["nt1"] if tag != "h2" else OPT["nt2"])
        vm.add(tag)


if OPT["fill"] == 1:
    P("v_lshlrev_b32 v25, 7, v0\nv_and_b32 v27, 0xfff, v25")
    P(f"buffer_load_dword v20, v25, {rWS}, {SH1} offen\nbuffer_load_dword v21, v27, {rWS}, {SH2} offen")
    vm.add(None)
    vm.add(None)
mid = list(range(18, 38))
stream(mid[:OPT["e1B"]])
np_ = OPT["e1B"]
for q in range(1, 5):
    chunk_write(q)
hstore(1, L_HS, 0, SH1, "h")
for q in range(5, 8):
    chunk_write(q)
signal(VSIG, 26, 1, True)
for b in range(1, 4):
    stream(mid[np_:np_ + OPT["iB2"]])
    np_ += OPT["iB2"]
    hstore(b + 1, L_HS, b, SH1, "h" if b < 2 else "h1")
signal(VSIG, 26, 2)
stamp(1, "h_st")
vm.wait("h")
flag_store(SF1, aux=HX)
vm.add(None)
stamp(1, "hbflag")
P(f"s_add_u32 {SF1}, {SF1}, {(FL_H1 - FL_HB) * LN}")
stream(range(OPT["xB"]))
vm.wait("h1")
flag_store(SF1, aux=HX)
vm.add(None)
stamp(1, "h1flag")
stream(range(OPT["xB"], 18))
stream(mid[np_:])
P(f"s_sub_u32 {SF1}, {SF1}, {(FL_H1 - FL_HA) * LN}")
P(f"s_cmp_lt_u32 {C_}, 3")
P("s_cbranch_scc0 L_lB1")
vqB = list(vm.q)
restB = {}
for nb in (2, 1):
    if nb == 1:
        P.label("L_lB1")
        vm.q = list(vqB)
    page_addr.last = None
    pre = OPT["lB2"] if nb == 2 else OPT["lB1"]
    stream(LATE[:pre])
    vm.wait(("pg", 17))
    signal(VSIG, 26, 3)
    stamp(1, "staged")
    lg.q = []
    await_(VPK, 28, 8)
    marks = {OPT["w0"]: 0, OPT["w1"]: 1} if nb == 2 else {OPT["w0c"]: 0}
    for n, p in enumerate(range(18, 38)):
        if n in marks:
            lg.q = []
            hstore(9 + marks[n], L_PQ, marks[n], SH2, "h2")
            stamp(1, "h2_st")
        vm.wait(("pg", p))
        page_write(p)
    signal(VSIG, 26, 4, True)
    vm.wait("h2")
    flag_store(SF1, aux=HX)
    vm.add(None)
    stamp(1, "oflag")
    stream(LATE[pre:max(pre, OPT["l1"])])
    vm.wait(("pg", 42))
    restB[nb] = LATE[max(pre, OPT["l1"]):]
    P("s_branch L_l5")
P.label("L_lA")
vm.q = list(vq8)
lg.q = []
page_addr.last = None
SOB = "s44"
P(f"s_mul_i32 {SOB}, {I_}, {4 * TB_STRIDE}\ns_lshl_b32 {T1}, {C_}, 12\ns_add_u32 {SOB}, {SOB}, {T1}")
P(f"s_add_u32 {SOB}, {SOB}, {SM}\ns_add_u32 {SOB}, {SOB}, 0x{WS_HA + 86 * K:x}")
if OPT["fill"] == 1:
    P(f"v_bfe_u32 v25, v0, 3, 2\nv_mul_u32_u24 v25, {TB_STRIDE}, v25\nv_and_b32 v27, 7, v0\nv_lshl_add_u32 v25, v27, 7, v25")
    P(f"buffer_load_dword v20, v25, {rWS}, {SOB} offen")
    vm.add(None)
mid = list(range(18, 38))
stream(mid[:8])
for q in range(1, 8):
    chunk_write(q)
signal(VSIG, 26, 1, True)
if OPT["fill"] in (2, 3):
    P(f"s_lshl2_add_u32 {T0}, {I_}, {W}\ns_mul_i32 {T0}, {T0}, {TB_STRIDE}\ns_add_u32 {T0}, {T0}, 0x{WS_HA:x}")
    P("v_lshlrev_b32 v25, 7, v0")
    if OPT["fill"] == 2:
        P(f"s_lshl_b32 {T1}, {C_}, 13\ns_add_u32 {T1}, {T1}, {T0}")
        P(f"buffer_load_dword v20, v25, {rWS}, {T1} offen")
        vm.add(None)
    P(f"s_mul_i32 {T1}, {C_}, {54 * 128}\ns_add_u32 {T1}, {T1}, {T0}\ns_add_u32 {T1}, {T1}, {64 * K}\nv_min_u32 v25, {53 * 128}, v25")
    P(f"buffer_load_dword v21, v25, {rWS}, {T1} offen")
    vm.add(None)
stream(mid[8:OPT["e1A"]])
lg.q = []
await_(VPK, 28, 2)
far()
stream(range(18))
stream(mid[OPT["e1A"]:])
PREA = LATE[:OPT["preA"]] if OPT["gd"] == 8 else LATE[21 - min(5, OPT["preA"]):21]
stream(PREA)
SZL, SK0, SK1, SKE = "s4", "s5", "s6", "s7"
NB = [NONCE, "s39", "s42", "s43"]
P("v_and_b32 v23, 15, v0\nv_lshlrev_b32 v27, 4, v0")
P(f"v_lshrrev_b32 v22, 2, v0\nv_mul_u32_u24 v25, {KVP_STR}, v22\nv_and_b32 v26, 3, v0\nv_lshl_add_u32 v25, v26, 4, v25")
P(f"s_mul_i32 {SK0}, {C_}, {16 * KVP_STR}\ns_add_u32 {SK0}, {SK0}, 0x{WS_KVP:x}")
P(f"s_lshl_b32 {SZL}, {W}, 6\ns_add_u32 {SZL}, {SZL}, {SK0}\ns_add_u32 {SZL}, {SZL}, 4096")
P(f"s_add_u32 {SK0}, {SK0}, {SM}\ns_add_u32 {SKE}, {SK0}, {16 * KVP_STR}")
P(f"s_lshl_b32 {SK1}, {I_}, 1\ns_and_b32 {SK1}, {SK1}, 15\ns_mul_i32 {SK1}, {SK1}, {KVP_STR}\ns_add_u32 {SK1}, {SK1}, {SK0}")
P(f"s_add_u32 {T0}, {SM}, 0x{L_KT:x}")
P("v_and_b32 v40, 1, v26\nv_lshlrev_b32 v40, 4, v40\nv_lshrrev_b32 v26, 1, v26\nv_lshl_or_b32 v40, v26, 3, v40")
P(f"v_lshl_or_b32 v40, v22, 5, v40\nv_add_u32 v40, {T0}, v40")
P("v_bfe_u32 v41, v0, 4, 1\nv_lshlrev_b32 v41, 4, v41\nv_lshrrev_b32 v26, 5, v0\nv_lshl_or_b32 v41, v26, 3, v41")
P(f"v_lshl_or_b32 v41, v23, 5, v41\nv_add_u32 v41, {T0}, v41")
P(f"v_and_b32 v42, 31, v0\nv_lshlrev_b32 v42, 5, v42\nv_lshl_or_b32 v42, v26, 4, v42\nv_add_u32 v42, {T0}, v42")
P(f"s_lshr_b32 s39, {NONCE}, 8\ns_lshr_b32 s42, {NONCE}, 16\ns_lshr_b32 s43, {NONCE}, 24")
ZL = f"buffer_load_dwordx4 v[28:31], v25, {rWS}, {SZL} offen sc1"
ZC = "\n".join([f"v_xor_b32 v20, {NB[0]}, v28", f"v_xor_b32 v21, {NB[1]}, v29",
                f"v_bitop3_b32 v20, v20, v30, {NB[2]} bitop3:0xf6", f"v_bitop3_b32 v21, v21, v31, {NB[3]} bitop3:0xf6",
                "v_or_b32 v20, v20, v21", "v_and_b32 v20, 0xff, v20", "v_cmp_ne_u32 vcc, 0, v20"])
P(f"s_setprio {OPT['gprio']}")
P(f"s_mov_b32 {T2}, 32")
P.label("L_kvall")
spin("L_kv", ZL, ZC)
stamp(1, "kv_seen")
signal(VSIG, 26, 3)
P(f"s_mov_b32 {T1}, {SK1}")
GD = OPT["gd"]
GQ = [CHR + 4 * n for n in range(14)] + [184, 188] if GD == 16 else [PQR + 4 * n for n in range(8)]
def gload(n):
    P(f"buffer_load_dwordx4 {v(GQ[n % GD], 4)}, v27, {rWS}, {T1} offen sc1")
    if n < 15:
        P(f"s_add_u32 {T1}, {T1}, {KVP_STR}")
        if n % 2 == 1:
            P(f"s_cmp_eq_u32 {T1}, {SKE}\ns_cselect_b32 {T1}, {SK0}, {T1}")
for n in range(GD if not OPT["hack"] & 8 else 8):
    gload(n)
for n in range(4):
    P(f"v_and_b32 {v(28 + n)}, 0xffffff00, {v(28 + n)}")
for r in (4, 8):
    for n in range(4):
        P(f"v_add_f32_dpp {v(28 + n)}, {v(28 + n)}, {v(28 + n)} row_ror:{r} row_mask:0xf bank_mask:0xf")
for op in ("v_permlane16_swap_b32", "v_permlane32_swap_b32"):
    for n in range(4):
        P(f"v_mov_b32 {v(32 + n)}, {v(28 + n)}")
    for n in range(4):
        P(f"{op} {v(28 + n)}, {v(32 + n)}")
    for n in range(4):
        P(f"v_add_f32 {v(28 + n)}, {v(28 + n)}, {v(32 + n)}")
P("v_cvt_pk_bf16_f32 v28, v28, v29\nv_cvt_pk_bf16_f32 v29, v30, v31")
P("ds_write_b64 v40, v[28:29] offset:512")
for n in range(16 if not OPT["hack"] & 8 else 8):
    P(f"s_waitcnt vmcnt({min(GD - 1, 15 - n) if not OPT['hack'] & 8 else 7 - n})")
    for h in range(4):
        r = v(GQ[n % GD] + h)
        if n == 0:
            P(f"v_xor_b32 {v(36 + h)}, {NB[h]}, {r}\nv_and_b32 {v(32 + h)}, 0xffffff00, {r}")
        else:
            P(f"v_bitop3_b32 {v(36 + h)}, {v(36 + h)}, {r}, {NB[h]} bitop3:0xf6\nv_and_b32 {v(44 + h)}, 0xffffff00, {r}")
    if n + GD < 16:
        gload(n + GD)
    if n:
        for h in range(4):
            P(f"v_add_f32 {v(32 + h)}, {v(32 + h)}, {v(44 + h)}")
P("v_or3_b32 v36, v36, v37, v38\nv_or_b32 v36, v36, v39\nv_and_b32 v36, 0xff, v36\nv_cmp_ne_u32 vcc, 0, v36")
P(f"s_sub_u32 {T2}, {T2}, 1")
P("s_cbranch_scc1 L_kvok")
P("s_cbranch_vccnz L_kvall")
P.label("L_kvok")
stamp(1, "gath")
if DIAG >= 3 and "retry" in str(OPT.get("st1")):
    P(f"s_waitcnt lgkmcnt(0)\ns_sub_u32 s98, 32, {T2}\ns_mul_i32 s98, s98, 100\ns_add_u32 s98, s98, s100")
vm.q = []
page_addr.last = None
P("v_cvt_pk_bf16_f32 v32, v32, v33\nv_cvt_pk_bf16_f32 v33, v34, v35")
P("ds_write_b64 v41, v[32:33]")
lg.q = []
P("ds_read_b128 v[44:47], v42")
stream([p for p in LATE[:OPT["lA"]] if p not in PREA])
P(f"v_add_u32 v20, 0x{L_PQ:x}, {v(VL16)}")
P(f"s_mov_b32 s4, {SOB}")
stamp(1, "staged")
await_(VPK, 22, 10)
stamp(1, "g0")
for tb in range(4):
    P(f"ds_read_b128 {v(PQR + 4 * tb, 4)}, v20 offset:{tb * 4096}")
P("v_mov_b32 v28, v44\nv_mov_b32 v29, v45\nv_mov_b32 v30, v46\nv_mov_b32 v31, v47")
def o_mfma(tb):
    P(f"s_waitcnt lgkmcnt({3 - tb})")
    P(f"v_mfma_f32_32x32x16_bf16 {v((D0, D1)[tb & 1], 16)}, v[28:31], {v(PQR + 4 * tb, 4)}, 0")
o_mfma(0)
o_mfma(1)
for tb in range(4):
    d = (D0, D1)[tb & 1]
    P(f"v_add_f32 {v(d + 8)}, 0x{f2u(1e-6):x}, {v(d + 8)}")
    P(f"v_rcp_f32 {v(d + 8)}, {v(d + 8)}")
    for r in range(8):
        P(f"v_mul_f32 {v(d + r)}, {v(d + r)}, {v(d + 8)}")
    for p in range(4):
        P(f"v_cvt_pk_bf16_f32 {v(PQR + 4 * tb + p)}, {v(d + 2 * p)}, {v(d + 2 * p + 1)}")
    if tb < 2:
        o_mfma(tb + 2)
    row_store(f"buffer_store_dwordx4 {v(PQR + 4 * tb, 4)}, v27, {rWS}, s4 offen", OPT["nt2"])
    vm.add("o")
    if tb < 3:
        P(f"s_add_u32 s4, s4, {TB_STRIDE}")
stamp(1, "o_st")
P(f"s_setprio {OPT['prio']}")
for p in range(18, 38):
    page_write(p)
signal(VSIG, 26, 4, True)
vm.wait("o")
P(f"s_lshl_b32 {T0}, {I_}, 5\ns_lshl_b32 {T1}, {C_}, 2\ns_add_u32 {T0}, {T0}, {T1}\ns_add_u32 {T0}, {T0}, {W}")
P(f"s_lshl_b32 {T0}, {T0}, {2 + FX}\ns_add_u32 {T0}, {T0}, 0x{WS_FLAGS + FL_O * LN:x}")
flag_store(T0, aux=HX)
vm.add(None)
stamp(1, "oflag")
stream([p for p in LATE[OPT["lA"]:OPT["l1"]] if p not in PREA])
vm.wait(("pg", 42))
restA = [p for p in LATE[OPT["l1"]:] if p not in PREA]
P.label("L_l5")
lg.q = []
await_(VPK, 28, 11)
stamp(1, "gx")
nfree = 2 * ((OPT["gx"] - 7) // 4)
first = [p for p in list(range(38, 43)) + list(range(44, 60)) if p - 38 < nfree]
P(f"s_setprio {OPT['wprio']}")
for p in range(38, 43):
    page_write(p, OPT["pace"])
signal(VSIG, 26, 5, True)
for who, rest in (("A", restA), ("B2", restB[2]), ("B1", restB[1])):
    if who == "A":
        P(f"s_cmp_eq_u32 {TYPE}, 0\ns_cbranch_scc0 L_tB")
    elif who == "B2":
        P.label("L_tB")
        P(f"s_cmp_lt_u32 {C_}, 3\ns_cbranch_scc0 L_tB1")
    else:
        P.label("L_tB1")
    page_addr.last = None
    vm.q = [("pg", p) for p in LATE[5:] if p not in rest and not (who == "A" and p in PREA)]
    stream(rest)
    for p in first[5:]:
        vm.wait(("pg", p))
        page_write(p, OPT["pace"])
    vm.drain()
    if who != "B1":
        P("s_branch L_t2")
P.label("L_t2")
lg.q = []
P("s_waitcnt lgkmcnt(0)")
await_(VPK, 28, 12)
for p in range(44, 60):
    if p not in first:
        vm.wait(("pg", p))
        page_write(p, OPT["pace"])
signal(VSIG, 26, 6, True)
P(f"s_setprio {OPT['prio']}")
LOG2E = 1.4426950408889634
XRD, GG, XF, BF, YR = 22, 32, 48, 64, 72
P("v_lshrrev_b32 v26, 3, v0\nv_and_b32 v27, 7, v0\nv_lshlrev_b32 v27, 1, v27\nv_xor_b32 v27, v27, v26\nv_lshlrev_b32 v27, 4, v27\nv_lshl_or_b32 v26, v26, 8, v27")
P(f"s_lshl_b32 {T0}, {W}, 12\ns_add_u32 {T0}, {T0}, 0x{L_XS0:x}")
P(f"v_add_u32 {v(XRD)}, {T0}, v26\nv_xor_b32 {v(XRD + 1)}, 16, {v(XRD)}")
P(f"v_add_u32 {v(XRD + 2)}, 0x10000, {v(XRD)}\nv_add_u32 {v(XRD + 3)}, 0x10000, {v(XRD + 1)}")
P(f"s_add_u32 {T2}, {SO}, 8192")
P("s_waitcnt lgkmcnt(0)")


if OPT["wb"] in (2, 4):
    wback(2)
def unpack(dst, src, n):
    for r in range(n):
        P(f"v_lshlrev_b32 {v(dst + 2 * r)}, 16, {v(src + r)}\nv_and_b32 {v(dst + 2 * r + 1)}, 0xffff0000, {v(src + r)}")


def xread(dst, bases):
    for h in range(2):
        for kh in range(2):
            for j in range(2):
                P(f"ds_read_b128 {v(dst + 16 * kh + 8 * h + 4 * j, 4)}, {v(XRD + j + 2 * ((bases[kh] - L_XS0) >> 16))} offset:{((bases[kh] - L_XS0) & 0xffff) + 2048 * h}")


unpack(XF, XRES, 8)
unpack(BF, BRES, 4)
stamp(1, "rdy5")
P(f"s_setprio {OPT['fprio']}")
P("s_barrier ; dY")
if OPT["wb"] == 3:
    wback(3)
xread(YR, (L_XY, L_XY + 16 * K))
P("s_waitcnt lgkmcnt(0)")
for fmt in ("v_add_f32 {Y}, {Y}, {Z}", "v_add_f32 {Y}, {Y}, {B}", f"v_mul_f32 {{G}}, 0x{f2u(-LOG2E):x}, {{Y}}", "v_exp_f32 {G}, {G}",
            "v_add_f32 {G}, 1.0, {G}", "v_rcp_f32 {G}, {G}", "v_mul_f32 {G}, {G}, {Y}"):
    for r in range(16):
        P(fmt.format(Y=v(YR + r), Z=v(YR + 16 + r), B=v(BF + r % 8), G=v(GG + r)))
stamp(1, "gate")
P("s_barrier ; dS")
stamp(1, "dS")
xread(YR, (L_XS0, L_XS1))
for h in range(2):
    P(f"s_waitcnt lgkmcnt({4 - 4 * h})")
    for p in range(4 * h, 4 * h + 4):
        P(f"v_pk_add_f32 {v(YR + 2 * p, 2)}, {v(YR + 2 * p, 2)}, {v(YR + 16 + 2 * p, 2)}")
    for p in range(4 * h, 4 * h + 4):
        P(f"v_pk_fma_f32 {v(YR + 2 * p, 2)}, {v(YR + 2 * p, 2)}, {v(GG + 2 * p, 2)}, {v(XF + 2 * p, 2)}")
    for p in range(4 * h, 4 * h + 4):
        P(f"v_cvt_pk_bf16_f32 {v(BF + p)}, {v(YR + 2 * p)}, {v(YR + 2 * p + 1)}")
    P(f"buffer_store_dwordx4 {v(BF + 4 * h, 4)}, {v(VO)}, {rP2}, {(SO, T2)[h]} offen {OPT['outaux']}")
stamp(1, "outst")
dump(1)
P.label("L_end")
P("s_endpgm")
flush_cold()

P.label("L_compute")
DIAG = OPT["diag"]
assert OPT["gx"] <= 36
XR, ACC, WR = 128, 64, 32
VH, GR, XE, K1, K2, SD, RS, RL = 1, 2, 4, 6, 8, 10, 16, 18
XA, WA = 12, 20
HB0, SH, EPS2, SG, SFL1, SFL2, SCS2 = "s72", "s73", "s[74:75]", "s76", "s77", "s78", "s79"
lg = Q("lgkmcnt", 15)

diag_init()
stamp(0, "start")
P(f"s_setprio {OPT['cprio']}")
P(f"s_lshl_b32 {T0}, {I_}, 4\ns_add_u32 {T0}, {T0}, {J_}\ns_lshl_b32 {T0}, {T0}, 2\ns_add_u32 {T0}, {T0}, {W}\ns_lshl_b32 {T0}, {T0}, 1")
P(f"s_lshl_b32 {T1}, {T0}, 10")
P("v_lshrrev_b32 v26, 5, v0\nv_and_b32 v27, 31, v0\nv_lshlrev_b32 v28, 4, v27\nv_lshl_or_b32 v28, v26, 10, v28")
P("s_waitcnt lgkmcnt(0)")
srd(rX, P_X, 2 * K * K)
P(f"s_load_dword {NONCE}, s[{P_WS}:{P_WS+1}], 0")
if not OPT["nostat"]:
    P(f"buffer_load_dwordx4 v[32:35], v28, {rX}, {T1} offen")
    P(f"buffer_load_dwordx4 v[36:39], v28, {rX}, {T1} offen offset:512")
srd(rWS, P_WS, WS_SIZE)
tile2()
P(f"v_lshlrev_b32 {v(VH)}, 4, v0")
waddr(WA, 29, 30, 3)
P(f"v_xor_b32 {v(WA + 1)}, 64, {v(WA)}")
for k, off in ((2, 64 * K), (4, 88 * K)):
    P(f"v_add_u32 {v(WA + k)}, 0x{off:x}, {v(WA)}\nv_add_u32 {v(WA + k + 1)}, 0x{off:x}, {v(WA + 1)}")
P("v_bfe_u32 v29, v0, 1, 3\nv_xor_b32 v29, v29, v26\nv_lshlrev_b32 v29, 4, v29\nv_lshl_or_b32 v29, v27, 7, v29")
P(f"s_lshl_b32 {T2}, {W}, 12")
P(f"v_add_u32 {v(XA)}, {T2}, v29")
for t in range(1, 4):
    P(f"v_xor_b32 {v(XA + t)}, {32 * t}, {v(XA)}")
for t in range(4):
    P(f"v_add_u32 {v(XA + 4 + t)}, 0x10000, {v(XA + t)}")
P(f"s_lshl_b32 {SG}, {I_}, 2\ns_add_u32 {SG}, {SG}, {W}")
if OPT["touch"]:
    srd(rW2, P_W2, 1376 * 1024)
    srd(rWO, P_WO, 512 * 1024)
    P(f"s_mul_i32 {T2}, s2, 43\ns_mul_i32 {T3}, {W}, 11\ns_add_u32 {T2}, {T2}, {T3}")
    P(f"v_add_u32 v6, {T2}, v0\nv_lshlrev_b32 v6, 7, v6\nv_mov_b32 v8, 0x7ff00000\nv_cmp_gt_u32 vcc, 11, v0")
    P(f"s_lshl_b32 {T2}, s2, 2\ns_add_u32 {T2}, {T2}, {W}\ns_lshl_b32 {T2}, {T2}, 2")
    P(f"v_cndmask_b32 v6, v8, v6, vcc\nv_add_u32 v7, {T2}, v0\nv_lshlrev_b32 v7, 7, v7\nv_cmp_gt_u32 vcc, 4, v0")
    P("v_cndmask_b32 v7, v8, v7, vcc")
    if OPT["touch"] == 9:
        P(f"buffer_load_dword v8, v6, {rW2}, 0 offen\nbuffer_load_dword v9, v7, {rWO}, 0 offen")
P(f"s_lshl_b32 {SG}, {SG}, 8\ns_add_u32 {SG}, {SG}, 0x{WS_STATS:x}")
P(f"s_lshl_b32 {SCS2}, {J_}, 1\ns_lshr_b32 {T2}, {I_}, 3\ns_add_u32 {SCS2}, {SCS2}, {T2}\ns_lshl_b32 {SCS2}, {SCS2}, 2")
P(f"s_add_u32 {SCS2}, {SCS2}, {W}\ns_lshl_b32 {SCS2}, {SCS2}, 3\ns_and_b32 {T2}, {I_}, 7\ns_add_u32 {SCS2}, {SCS2}, {T2}")
P(f"s_lshl_b32 {SCS2}, {SCS2}, 9\ns_add_u32 {SCS2}, {SCS2}, 0x{WS_CS:x}")
if OPT["pg"]:
    srd(rW2, P_W2, 1376 * 1024)
    srd(rWO, P_WO, 512 * 1024)
    srd(rA, P_OUT, 2 * K * K)
    P(f"v_lshlrev_b32 v46, 16, v0\ns_lshl_b32 {T3}, {W}, 22\ns_cmp_eq_u32 {W}, 3\ns_cbranch_scc1 L_pg3")
    P(f"buffer_load_dword v47, v46, {rWS}, {T3} offen sc1\ns_branch L_pgx\nL_pg3:")
    P(f"buffer_load_dword v47, v46, {rW2}, 0 offen\nbuffer_load_dword v47, v46, {rWO}, 0 offen\nbuffer_load_dword v47, v46, {rA}, 0 offen\nL_pgx:")
SFHB, SFO, KH, SFHA, PRIMED, SK12, SXW, SBASE = "s51", "s52", "s53", "s54", "s55", "s72", "s73", "s77"
P(f"s_lshr_b32 {KH}, {W}, 1\ns_lshl_b32 {SK12}, {KH}, 12\ns_mov_b32 {PRIMED}, 0")
P(f"s_lshl_b32 {T3}, {TB2}, 1\ns_and_b32 {T2}, {W}, 1\ns_add_u32 {T3}, {T3}, {T2}")
P(f"s_mul_i32 {SBASE}, {T3}, {TB_STRIDE}\ns_add_u32 {SBASE}, {SBASE}, 0x{WS_HA:x}")
if OPT["ahot"]:
    P(f"s_mov_b32 {SBASE}, 0x{WS_DIAG + 0x40000:x}")
P(f"s_lshl_b32 {SFHB}, {T3}, {7 + FX}\ns_add_u32 {SFHA}, {SFHB}, 0x{WS_FLAGS + FL_HA * LN:x}\ns_add_u32 s44, {SFHB}, 0x{WS_FLAGS + FL_H1 * LN:x}\ns_add_u32 {SFHB}, {SFHB}, 0x{WS_FLAGS + FL_HB * LN:x}")
P(f"s_lshr_b32 {SFO}, {TB2}, 1\ns_lshl_b32 {SFO}, {SFO}, {7 + FX}\ns_add_u32 {SFO}, {SFO}, 0x{WS_FLAGS + FL_O * LN:x}")
P(f"s_lshl_b32 {SXW}, {T2}, 13\ns_lshl_b32 {T3}, {KH}, 14\ns_add_u32 {SXW}, {SXW}, {T3}\ns_add_u32 {SXW}, {SXW}, 0x{L_XY:x}")
SXS = "s15"
P(f"s_cmp_eq_u32 {KH}, 0")
sel2(SXS, (L_XS0 - L_XY) & 0xffffffff, L_XS1 - L_XY - 16 * K)
if OPT["tlb"] == 2:
    P(f"buffer_load_dword v47, v0, {rWS}, {SBASE} offen sc1")
P(f"s_mov_b32 s14, {RHOA}")
for g in list(range(8)) + list(range(11, 15)):
    r = f"s{36 + g}"
    P(f"s_add_u32 {r}, {RHO2 if g < 8 else RHOS}, {g % 11}\ns_and_b32 {r}, {r}, {7 if g < 8 else 3}\ns_lshl_b32 {r}, {r}, 13\ns_add_u32 {r}, {r}, {SBASE}")
    if g >= 11:
        P(f"s_add_u32 {r}, {r}, {86 * K}")
P(f"s_add_u32 s14, s14, {KH}")
for n in range(16, 22):
    r = f"s{8 + n - 16}"
    P(f"s_add_u32 {r}, s14, {2 * (n - 16)}\ns_cmp_ge_u32 {r}, 11\ns_cselect_b32 {T3}, 11, 0\ns_sub_u32 {r}, {r}, {T3}")
    P(f"s_sub_u32 {r}, {r}, {KH}\ns_add_u32 {r}, {r}, {32 - 2 * (n % 2)}\ns_lshl_b32 {r}, {r}, 11\ns_add_u32 {r}, {r}, {SBASE}")
P(f"s_mov_b32 s74, 0x{f2u(1e-6):x}\ns_mov_b32 s75, 0x{f2u(1e-6):x}")
P(f"s_mov_b32 {T2}, 0x3f803f80")
P("v_mov_b32 v40, 0\nv_mov_b32 v41, 0\nv_mov_b32 v42, 0\nv_mov_b32 v43, 0")
stamp(0, "pre")
P("s_waitcnt vmcnt(2)" if OPT["touch"] == 9 else "s_waitcnt vmcnt(0)")
stamp(0, "xin")
for n in range(8):
    P(f"v_dot2_f32_bf16 {v(40 + (n & 1))}, {v(32 + n)}, {T2}, {v(40 + (n & 1))}")
    P(f"v_dot2_f32_bf16 {v(42 + (n & 1))}, {v(32 + n)}, {v(32 + n)}, {v(42 + (n & 1))}")
P("s_nop 2")
P("v_add_f32 v40, v40, v41\nv_add_f32 v42, v42, v43")
for r in (8, 4, 2, 1):
    P(f"v_add_f32_dpp v40, v40, v40 row_ror:{r} row_mask:0xf bank_mask:0xf")
    P(f"v_add_f32_dpp v42, v42, v42 row_ror:{r} row_mask:0xf bank_mask:0xf")
P("v_mov_b32 v41, v40\nv_mov_b32 v43, v42")
P("v_permlane16_swap_b32 v40, v41\nv_permlane16_swap_b32 v42, v43")
P("v_add_f32 v40, v40, v41\nv_add_f32 v42, v42, v43")
P(f"v_mul_f32 v40, 0x{f2u(1 / 512):x}, v40\nv_mul_f32 v42, 0x{f2u(1 / 512):x}, v42")
P("v_fma_f32 v42, -v40, v40, v42\nv_max_f32 v42, 0, v42")
P(f"v_cvt_pk_bf16_f32 v42, v42, v42\nv_and_b32 v42, 0xffff0000, v42\nv_add_f32 v42, 0x{f2u(1e-5):x}, v42")
P("v_cvt_pk_bf16_f32 v42, v42, v42\nv_and_b32 v42, 0xffff0000, v42\nv_sqrt_f32 v42, v42")
P("v_cvt_pk_bf16_f32 v44, v40, v42")
P("v_lshlrev_b32 v28, 3, v26")
P(f"s_lshl_b32 {T0}, {T0}, 3\ns_add_u32 {T0}, {T0}, 0x{WS_STATS:x}")
P("s_waitcnt lgkmcnt(0)")
P(f"s_add_u32 {NONCE}, {NONCE}, 1")
XTAG = "s78"
P(f"s_getreg_b32 {XTAG}, hwreg(HW_REG_XCC_ID, 0, 4)\ns_lshl_b32 {XTAG}, {XTAG}, 28\ns_xor_b32 {XTAG}, {XTAG}, {NONCE}")
P(f"v_mov_b32 v45, {XTAG}\nv_mov_b32 v5, {NONCE}")
P(f"s_mov_b32 s56, {T0}\nv_mov_b32 v2, v44\nv_mov_b32 v3, v45\nv_mov_b32 v25, v28")
P("v_lshlrev_b32 v26, 3, v27\nv_lshlrev_b32 v27, 3, v0")
P(f"s_lshl_b32 {T0}, {W}, 8\ns_add_u32 {T0}, {T0}, 0x{L_CSX:x}")
P(f"v_lshl_add_u32 v28, v0, 2, {T0}")
P(f"v_add_u32 v29, 0x{L_EX1:x}, v27")
GLOAD = f"buffer_load_dwordx2 {v(GR, 2)}, v26, {rWS}, {SG} offen sc1"
CSIG, CPK, CPC = 30, 31, 3
P(f"s_lshl_b32 {T0}, {W}, 2\ns_add_u32 {T0}, {T0}, 0x{L_PRG:x}\nv_mov_b32 {v(CSIG)}, {T0}")
P(f"v_and_b32 {v(CPK)}, 3, v0\nv_lshlrev_b32 {v(CPK)}, 2, {v(CPK)}\nv_add_u32 {v(CPK)}, 0x{L_RDY:x}, {v(CPK)}")
stamp(0, "stats")


def p1_x(st, t):
    if OPT["nocomp"]:
        return
    sl = st % 3
    P(f"ds_read_b128 {v(XR + 16 * st + 4 * t, 4)}, {v(XA + t + (4 if sl == 2 else 0))} offset:{(sl % 2) * 32 * K}")
    lg.add(("x", st, t))


def p1_w(st, t, b):
    if OPT["nocomp"]:
        return
    sl = st % 3
    a = WA + (b & 1) + (2 if sl == 2 else 0)
    off = (sl % 2) * 32 * K + 16 * K + (b >> 1) * 8 * K + t * 2048
    f = WR + ((t & 1) * 4 + b) * 4
    tr(f, a, off, None)
    tr(f + 2, a, off + 512, ("w", st, t, b))


def p1_m(st, t, b):
    if OPT["nocomp"]:
        return
    lg.wait(("w", st, t, b))
    assert ("x", st, t) not in lg.q
    f = WR + ((t & 1) * 4 + b) * 4
    c = "0" if (st == 0 and t == 0) else v(ACC + 16 * b, 16)
    P(f"v_mfma_f32_32x32x16_bf16 {v(ACC + 16 * b, 16)}, {v(f, 4)}, {v(XR + 16 * st + 4 * t, 4)}, {c}")
    r = OPT.get(f"r{st}", 0) or OPT["rall"]
    if r:
        P(f"s_nop {r - 1}")


P("s_barrier ; b0")
stamp(0, "b0")
if OPT["p2only"]:
    P("s_branch L_c2")
p1_x(0, 0)
for b in range(4):
    p1_w(0, 0, b)
P("s_mov_b32 exec_lo, 1\ns_mov_b32 exec_hi, 1")
P(f"buffer_store_dwordx2 v[2:3], v25, {rWS}, s56 offen sc1")
P("s_mov_b64 exec, -1")
P(f"v_add_u32 {v(WA + 5)}, 0x{88 * K:x}, {v(WA + 1)}")
LOG2E = 1.4426950408889634
C1 = -2 * LOG2E * math.sqrt(2 / math.pi)
C2 = C1 * 0.044715
GCHK = f"v_xor_b32 v27, {XTAG}, {v(GR + 1)}\nv_lshlrev_b32 v28, 4, v27\nv_cmp_ne_u32 vcc, 0, v28"
EXR = (22, 26)
side1 = [f"v_cmp_ne_u32 vcc, 0, v27", f"s_mov_b32 {T0}, 0x01000100", f"v_perm_b32 {v(XE)}, {v(GR)}, {v(GR)}, {T0}",
         "s_or_b32 s57, vcc_lo, vcc_hi", f"v_xor_b32 {v(XE)}, 0x80008000, {v(XE)}", f"v_lshrrev_b32 {v(XE + 1)}, 16, {v(GR)}",
         f"v_and_b32 {v(SD)}, 0xffff0000, {v(GR)}", f"v_rcp_f32 {v(RS)}, {v(SD)}", f"v_mov_b32 {v(SD + 1)}, {v(SD)}",
         f"v_mul_f32 {v(K1)}, 0x{f2u(C1):x}, {v(RS)}", f"v_mul_f32 {v(K2)}, {v(RS)}, {v(RS)}", f"v_mul_f32 {v(RL)}, 0x{f2u(LOG2E):x}, {v(RS)}",
         f"v_mul_f32 {v(K2)}, {v(K2)}, {v(RS)}", f"v_mov_b32 {v(RS + 1)}, {v(RS)}", f"v_mul_f32 {v(K2)}, 0x{f2u(C2):x}, {v(K2)}",
         f"v_mov_b32 {v(K1 + 1)}, {v(K1)}", f"v_mov_b32 {v(RL + 1)}, {v(RL)}", f"v_mov_b32 {v(K2 + 1)}, {v(K2)}"]
for st in range(8):
    for t in range(3):
        for b in range(4):
            p1_m(st, t, b)
            if st == 7 and t == OPT["gt"] and b == 0:
                P("s_waitcnt vmcnt(0)")
                P(GCHK)
                retry("L_gr", GLOAD, GCHK)
            elif st == 7 and t >= OPT["gt"]:
                for _ in range(3 if OPT["gt"] == 1 else 6):
                    if side1:
                        P(side1.pop(0))
            if b == 0:
                p1_x(st, t + 1)
            p1_w(st, t + 1, b)
    assert st < 7 or not side1
    p1_m(st, 3, 0)
    if st == 2 + OPT["chl"] + OPT["csd"]:
        P("ds_read_b32 v4, v28")
        lg.add(None)
    p1_m(st, 3, 1)
    if st == 5 + OPT["gl"]:
        P(GLOAD)
    lg.drain()
    if st == 7:
        stamp(0, "c8")
    P(f"s_barrier ; b{st + 1}")
    if st == 6:
        stamp(0, "b7")
    if st < 7:
        p1_x(st + 1, 0)
        p1_w(st + 1, 0, 0)
        p1_w(st + 1, 0, 1)
        p1_m(st, 3, 2)
        if st == 2 + OPT["chl"] + OPT["csd"] and not OPT["nst"] & 2:
            P(f"buffer_store_dwordx2 v[4:5], v27, {rWS}, {SCS2} offen {OPT['saux'] or ''}")
        if st == OPT["touch"] - 1:
            P(f"buffer_load_dword v8, v6, {rW2}, 0 offen\nbuffer_load_dword v9, v7, {rWO}, 0 offen")
        p1_w(st + 1, 0, 2)
        p1_w(st + 1, 0, 3)
        p1_m(st, 3, 3)
    else:
        P(f"v_mov_b32 v27, s57\ns_mov_b64 exec, 1\nds_write_b32 {v(CSIG)}, v27 offset:{L_FAST - L_PRG}\ns_mov_b64 exec, -1")
        lg.add(None)
        for b in range(4):
            P(f"ds_read_b64 {v(WR + 2 * b, 2)}, v29 offset:{512 * b}")
            lg.add(("ex", b))
        p1_m(st, 3, 2)
        p1_m(st, 3, 3)
        for b in range(4):
            lg.wait(("ex", b))
            P(f"v_mfma_f32_32x32x8bf16_1k {v(ACC + 16 * b, 16)}, {v(WR + 2 * b, 2)}, {v(XE, 2)}, {v(ACC + 16 * b, 16)}")
stamp(0, "b8")
if OPT["p1only"]:
    dump(0)
    P("s_endpgm")
    DIAG = 0
stamp(0, "ex1")

TT, UU = 32, 48


SKIP = [False]
def pairs(fmt, a):
    if SKIP[0]:
        return
    for p in range(8):
        P(fmt.format(T=v(TT + 2 * p, 2), A=v(a + 2 * p, 2)))


def singles(fmt):
    if SKIP[0]:
        return
    for r in range(16):
        P(fmt.format(T=v(TT + r)))


def cvt(dst, src=TT):
    for p in range(8):
        P(f"v_cvt_pk_bf16_f32 {v(dst + p)}, {v(src + 2 * p)}, {v(src + 2 * p + 1)}")


def epi_gelu(b, base, k, rdy=None, prev=None, last=True):
    a = ACC + 16 * b
    if rdy:
        peek(CPK, 28)
    pairs("v_pk_mul_f32 {T}, {A}, {A}", a)
    pairs("v_pk_fma_f32 {T}, {T}, %s, %s" % (v(K2, 2), v(K1, 2)), a)
    pairs("v_pk_mul_f32 {T}, {T}, {A}", a)
    if prev:
        signal(CSIG, 27, prev, True)
    singles("v_exp_f32 {T}, {T}")
    pairs("v_pk_fma_f32 {T}, {T}, %s, %s" % (v(SD, 2), v(SD, 2)), a)
    singles("v_rcp_f32 {T}, {T}")
    pairs("v_pk_mul_f32 {T}, {T}, {A}", a)
    cvt(a)
    if rdy:
        await_(CPK, 28, rdy, peeked=True)
    for h in range(2 if not OPT["nods"] else 0):
        P(f"ds_write_b128 v26, {v(a + 4 * h, 4)} offset:{base - L_HS + (2 * b + h) * 4096}")
        lg.add(None)
    if last:
        signal(CSIG, 27, k, True)


def epi_phi(b, dst):
    a = ACC + 16 * b
    pairs("v_pk_mul_f32 {T}, {A}, %s" % v(RL, 2), a)
    singles("v_exp_f32 {T}, {T}")
    pairs("v_pk_fma_f32 {A}, {A}, %s, 1.0 op_sel_hi:[1,1,0]" % v(RS, 2), a)
    for r in range(16):
        P(f"v_med3_f32 {v(TT + r)}, {v(TT + r)}, {v(a + r)}, 1.0")
    pairs("v_pk_add_f32 {T}, {T}, %s" % EPS2, a)
    cvt(dst)


def epi_lin(b, dst):
    a = ACC + 16 * b
    pairs("v_pk_mul_f32 {T}, {A}, %s" % v(RS, 2), a)
    cvt(dst)


AY, AS, AR = 64, 192, 128
RG = OPT["ring"]
NST = 30
WB, VA, FD, VF, XW, CPC2, TA, TB_, TC, XW2 = 96, 102, 104, 106, 108, 112, 113, 114, 115, 116
FHB = f"buffer_load_dword {v(FD)}, {v(VF)}, {rWS}, {SFHB} offen sc1"
FHA = f"buffer_load_dword {v(FD)}, {v(VF)}, {rWS}, {SFHA} offen sc1"
FH1 = f"buffer_load_dword {v(FD)}, {v(VF)}, {rWS}, s44 offen sc1"
FO = f"buffer_load_dword {v(FD + 1)}, {v(VF + 1)}, {rWS}, {SFO} offen sc1"
HBC = f"v_cmp_ne_u32 vcc, {NONCE}, {v(FD)}"
vm = Q("vmcnt", 63)


def aload(n, ks):
    if n >= NST or (OPT["noa"] and n >= RG):
        return
    P(f"buffer_load_dwordx4 {v(AR + 8 * (n % RG) + 4 * ks, 4)}, {v(VA + (n % 2 if n >= 16 else n >> 3))}, {rWS}, s{36 + (n & 7) if n < 16 else (8 + n - 16 if n < 22 else 36 + (n >> 1))} offen offset:{1024 * ks} {OPT['aaux'] or ''}")
    vm.add(("a", n, ks))


PRM = OPT["prime"]
def prime():
    for n in range(PRM):
        aload(n, 0)
        aload(n, 1)


nchk = [0]
def checkpoint():
    if not OPT["early"]:
        return
    nchk[0] += 1
    l = f"L_ck{nchk[0]}"
    P(f"s_getreg_b32 {T3}, hwreg(HW_REG_IB_STS, 0, 4)\ns_or_b32 {T3}, {T3}, {PRIMED}\ns_cbranch_scc1 {l}_x")
    P(f"s_waitcnt vmcnt(0)\n{HBC}\ns_cbranch_vccnz {l}_r")
    prime()
    P(f"s_mov_b32 {PRIMED}, 1")
    P.label(l + "_x")
    cold.append(f"{l}_r:\n{FHB}\ns_branch {l}_x")


def setup2():
    global P
    keep, P = P, Prog()
    P(f"v_and_b32 {v(VF + 1)}, 31, v0\nv_lshlrev_b32 {v(VF + 1)}, {2 + FX}, {v(VF + 1)}\nv_and_b32 {v(VF)}, {28 << FX}, {v(VF + 1)}")
    waddr(WB, TA, TB_, 2)
    P(f"v_add_u32 {v(WB)}, {SK12}, {v(WB)}\nv_xor_b32 {v(WB + 1)}, 64, {v(WB)}")
    for k in (1, 2):
        P(f"v_add_u32 {v(WB + 2 * k)}, 0x{64 * K * k:x}, {v(WB)}\nv_add_u32 {v(WB + 2 * k + 1)}, 0x{64 * K * k:x}, {v(WB + 1)}")
    P(f"v_lshrrev_b32 {v(TA)}, 1, {SK12}\nv_add_u32 {v(VA)}, {v(TA)}, {v(VH)}\nv_add_u32 {v(VA + 1)}, 0x1000, {v(VA)}")
    P(f"v_lshrrev_b32 {v(TA)}, 5, v0\nv_and_b32 {v(TB_)}, 7, v0\nv_xor_b32 {v(TA)}, {v(TA)}, {v(TB_)}\nv_lshlrev_b32 {v(TA)}, 4, {v(TA)}")
    P(f"v_and_b32 {v(TB_)}, 31, v0\nv_lshl_or_b32 {v(TA)}, {v(TB_)}, 8, {v(TA)}\nv_add_u32 {v(XW)}, {SXW}, {v(TA)}")
    for q in range(1, 4):
        P(f"v_xor_b32 {v(XW + q)}, {32 * q}, {v(XW)}")
    P(f"v_add_u32 {v(CPC2)}, 16, {v(CPK)}")
    for q in range(4):
        P(f"v_add_u32 {v(XW2 + q)}, {SXS}, {v(XW + q)}")
    lines, P = P.lines, keep
    return lines


def pass2(nb):
    side = setup2()
    n = 32 * nb
    def rd(m):
        if m >= n:
            return
        step, b = divmod(m, nb)
        off = CH(step >> 2) - 88 * K + (step & 3) * 2048
        f = WR + (m % 8) * 4
        tr(f, WA + 4 + b, off, None)
        tr(f + 2, WA + 4 + b, off + 512, ("p2", m))
    for m in range(7):
        rd(m)
    for m in range(n):
        step, b = divmod(m, nb)
        lg.wait(("p2", m))
        c = "0" if step == 0 else v(ACC + 16 * b, 16)
        P(f"v_mfma_f32_32x32x16_bf16 {v(ACC + 16 * b, 16)}, {v(WR + (m % 8) * 4, 4)}, {v(XR + 4 * step, 4)}, {c}")
        rd(m + 7)
        for _ in range(2 if nb == 1 else 1):
            if side and m >= 2 and not OPT["noside"]:
                P(side.pop(0))
        if m == max(6, n - OPT["smp"]) and not OPT["nosamp"]:
            P(FHB)
        if m == 5 and OPT["tlb"] == 1:
            P(f"buffer_load_dword {v(TC)}, {v(VF)}, {rWS}, {SBASE} offen sc1")
        if m == n - 6:
            if OPT["fill"] == 4:
                P("s_waitcnt vmcnt(0)" if OPT["nosamp"] else "s_waitcnt vmcnt(1)")
            for bb in range(nb):
                lg.room()
                P(f"ds_read_b64 {v(12 + 2 * bb, 2)}, v29 offset:{L_EX2 - L_EX1 + 512 * bb}")
                lg.add(("ex2", bb))
    while side:
        P(side.pop(0))
    checkpoint()
    lg.drain()
    signal(CSIG, 27, 8)
    for b in range(nb):
        P(f"v_mfma_f32_32x32x8bf16_1k {v(ACC + 16 * b, 16)}, {v(12 + 2 * b, 2)}, {v(XE, 2)}, {v(ACC + 16 * b, 16)}")


P(f"s_cmp_eq_u32 {TYPE}, 0")
P("s_cbranch_scc0 L_cB")
P(f"v_and_b32 v26, 31, v0\nv_lshrrev_b32 v27, 5, v0\ns_lshl_b32 {T0}, {W}, 5")
P(f"v_add_u32 v26, {T0}, v26\nv_mul_u32_u24 v26, {TROW}, v26\nv_lshl_add_u32 v26, v27, 3, v26\nv_add_u32 v26, 0x{TBUF:x}, v26")
for b in range(4):
    u = UU + 8 * (b & 1)
    SKIP[0] = bool(OPT["hack"] & 16) and b == 1
    (epi_phi if b < 2 else epi_lin)(b, u)
    SKIP[0] = False
    for q in range(4):
        P(f"ds_write_b64 v26, {v(u + 2 * q, 2)} offset:{64 * b + 16 * q}")
    if OPT["fill"] == 4 and b == OPT["fo"]:
        P(f"s_lshl2_add_u32 {T1}, {I_}, {W}\ns_mul_i32 {T1}, {T1}, {TB_STRIDE}\ns_lshl_b32 {T2}, {C_}, 12\ns_add_u32 {T1}, {T1}, {T2}\ns_add_u32 {T1}, {T1}, 0x{WS_HA + 86 * K:x}")
        P(f"v_lshlrev_b32 v16, 7, v0\nv_and_b32 v16, 0xfff, v16\nbuffer_load_dword v18, v16, {rWS}, {T1} offen")
    if "st0" in OPT:
        stamp(0, f"g{b}")
P(f"v_lshrrev_b32 v26, 2, v0\nv_mul_u32_u24 v26, {TROW}, v26\nv_and_b32 v27, 3, v0\nv_lshl_add_u32 v26, v27, 3, v26")
P(f"s_add_u32 {T0}, {T0}, 0x{TBUF:x}")
P(f"v_add_u32 v26, {T0}, v26")
for r in range(4):
    P(f"v_mov_b32 {v(104 + r)}, 0x3f803f80")
P(f"s_lshl_b32 {T0}, {C_}, 4\ns_add_u32 {T0}, {T0}, {I_}\ns_mul_i32 {T0}, {T0}, {KVP_STR}\ns_add_u32 {T0}, {T0}, 0x{WS_KVP:x}")
P(f"s_lshl_b32 {T1}, {W}, 10\ns_add_u32 {T1}, {T1}, {T0}")
P(f"s_lshl_b32 {T2}, {W}, 6\ns_add_u32 {T2}, {T2}, {T0}\ns_add_u32 {T2}, {T2}, 4096")
signal(CSIG, 27, 1, True)
P(f"v_add_u32 {v(CPC)}, 16, {v(CPK)}")
lg.q = []
await_(CPC, 27, 1)
stamp(0, "e1")
def kvm(mm):
    lg.wait(("kv", mm, 1))
    P(f"v_mfma_f32_16x16x32_bf16 v[96:99], {v(ACC + 8 * mm, 4)}, {v(ACC + 8 * mm + 4, 4)}, {'0' if mm == 0 else 'v[96:99]'}")
    P(f"v_mfma_f32_16x16x32_bf16 v[100:103], {v(ACC + 8 * mm, 4)}, v[104:107], {'0' if mm == 0 else 'v[100:103]'}")
for m in range(4):
    for o in range(2):
        f = ACC + 8 * m + 4 * o
        tr(f, 26, m * 32 * TROW + 128 * o, None)
        tr(f + 2, 26, (m * 32 + 16) * TROW + 128 * o, ("kv", m, o))
    if m >= 2:
        kvm(m - 2)
kvm(2)
kvm(3)
P(f"v_mov_b32 v104, {NONCE}")
for h in range(4):
    P(f"s_mov_b32 {T0}, 0x0706050{h}")
    P(f"v_perm_b32 {v(96 + h)}, {v(96 + h)}, v104, {T0}\nv_perm_b32 {v(100 + h)}, {v(100 + h)}, v104, {T0}")
P(f"buffer_store_dwordx4 v[96:99], {v(VH)}, {rWS}, {T1} offen sc1")
P("s_mov_b32 exec_lo, 0x00010001\ns_mov_b32 exec_hi, 0x00010001")
P(f"buffer_store_dwordx4 v[100:103], v0, {rWS}, {T2} offen sc1")
P("s_mov_b64 exec, -1")
signal(CSIG, 27, 2)
stamp(0, "kv")
await_(CPK, 27, 1)
stamp(0, "b10")
P("s_branch L_p2")
P.label("L_cB")
lg.q = []
P(f"s_lshl_b32 {T0}, {W}, 10\ns_add_u32 {T0}, {T0}, 0x{L_HS:x}")
P(f"v_add_u32 v26, {T0}, {v(VH)}")
if OPT["fill"] == 4:
    hblock2(T1)
    P(f"s_lshl2_add_u32 {T0}, {I_}, {W}\ns_mul_i32 {T0}, {T0}, {TB_STRIDE}\ns_add_u32 {T0}, {T0}, 0x{WS_HA:x}")
    P(f"s_lshl_b32 {T1}, {T1}, 11\ns_add_u32 {T1}, {T1}, {T0}\ns_lshl_b32 {T2}, {C_}, 13\ns_add_u32 {T0}, {T0}, {T2}")
    P(f"s_cmp_lt_u32 {C_}, 3")
    sel2(T2, 0xfff, 0x7ff)
    P(f"v_lshlrev_b32 v16, 7, v0\nv_and_b32 v17, {T2}, v16")
for b in range(4):
    SKIP[0] = bool(OPT["hack"] & 4) and b == 3
    epi_gelu(b, L_HS, b + 1, prev=b, last=(b == 3))
    SKIP[0] = False
    if OPT["fill"] == 4 and b == OPT["f1"]:
        P(f"buffer_load_dword v18, v16, {rWS}, {T0} offen")
    if OPT["fill"] == 4 and b == OPT["f2"]:
        P(f"buffer_load_dword v19, v17, {rWS}, {T1} offen")
    if "st0" in OPT:
        stamp(0, f"g{b}")
stamp(0, "e1")
await_(CPK, 28, 1)
stamp(0, "b10")
P(f"s_cmp_lt_u32 {C_}, 3")
P("s_cbranch_scc1 L_p2")
lg.q = [None] * 3
pass2(1)
stamp(0, "p2")
epi_gelu(0, L_PQ, 10, 2)
stamp(0, "e2")
P("s_branch L_c2")
P.label("L_p2")
lg.q = [None] * 3
pass2(2)
stamp(0, "p2")
P(f"s_cmp_eq_u32 {TYPE}, 0")
P("s_cbranch_scc0 L_cB2")
P(f"s_lshl_b32 {T0}, {W}, 12\ns_add_u32 {T0}, {T0}, 0x{L_PQ:x}")
P(f"v_add_u32 v26, {T0}, {v(VH)}")
lg.q = [None]
peek(CPC2, 28)
for b in range(2):
    SKIP[0] = bool(OPT["hack"] & 2) and b == 0
    epi_phi(b, UU + 8 * b)
    SKIP[0] = False
    if b == 0:
        await_(CPC2, 28, 2, peeked=True)
    for h in range(2):
        P(f"ds_write_b128 v26, {v(UU + 8 * b + 4 * h, 4)} offset:{(2 * b + h) * 1024}")
    if b == 0:
        checkpoint()
signal(CSIG, 27, 10, True)
stamp(0, "e2")
P("s_branch L_c2")
P.label("L_cB2")
lg.q = [None]
SKIP[0] = bool(OPT["hack"] & 1)
epi_gelu(0, L_PQ, 9, 2, last=False)
SKIP[0] = False
checkpoint()
epi_gelu(1, L_PQ, 10, prev=9)
stamp(0, "e2")
P.label("L_c2")
stamp(0, "c2")
stamp(0, "setup")
if OPT["quiet"]:
    dump(0)
    P("s_endpgm")
if OPT["nosamp"]:
    P(FHB)
P(f"s_cmp_lg_u32 {PRIMED}, 0\ns_cbranch_scc1 L_primed")
if not OPT["p2only"]:
    P(f"s_waitcnt vmcnt(0)\n{HBC}")
    retry("L_hb", FHB, HBC)
stamp(0, "hb_seen")
prime()
P.label("L_primed")
vm.q = [("a", n, ks) for n in range(PRM) for ks in range(2)]
gate = {8: OPT["cH1"], 16: OPT["cHA"], 22: OPT["cO"]}
nxt = [PRM, 0]
def aissue(n, k4):
    while nxt[0] < NST:
        nn, ks = nxt
        if nn in gate and (n, k4) < (gate[nn], 1):
            return
        if nn - RG > n or (nn - RG == n and k4 < 2 * ks + 1):
            return
        aload(nn, ks)
        nxt[:] = [nn, 1] if ks == 0 else [nn + 1, 0]
        return


def dec(m):
    if OPT["tl"] and m >= 4 * NST - 8:
        r = m - (4 * NST - 8)
        return NST - 2 + ((r >> 1) & 1), r & 1, r >> 2
    return m >> 2, (m >> 1) & 1, m & 1


def wrd(m):
    if m >= 4 * NST:
        return
    n, ks, ct = dec(m)
    ev = {OPT["gx"]: 4, 76: 5, 88: 6}
    if m + 5 in ev:
        peek(CPK, 20)
    if m == OPT["g2"]:
        signal(CSIG, 21, 12)
    if m == 72:
        signal(CSIG, 21, 13)
    if m == 93:
        peek(CPC2, 19)
    if m in ev:
        if m == OPT["gx"]:
            signal(CSIG, 21, 11)
        await_(CPK, 20, ev[m], peeked=True)
    so = slot_of(2 * n) + ks * 2048
    k = so // (64 * K)
    f = WR + (m % 8) * 4
    if OPT["now"] and m >= 8:
        return
    tr(f, WB + 2 * k + ct, so - 64 * K * k, None)
    tr(f + 2, WB + 2 * k + ct, so - 64 * K * k + 1024, ("w2", m))


def xwrite(acc, base, ct, q):
    lg.room()
    P(f"ds_write_b128 {v(base + q)}, {v(acc + 16 * ct + 4 * q, 4)} offset:{128 * ct}")
    lg.add(("xw", acc))


lg.q = []
stamp(0, "primed")
await_(CPK, 20, 3)
for m in range(7):
    wrd(m)
for n in range(NST):
    acc = AY if n < 22 else AS
    if n == 21:
        P(f"s_cmp_eq_u32 {KH}, 0")
    for k4 in range(4):
        m = 4 * n + k4
        na, ks, ct = dec(m)
        w = vm.need(("a", na, ks)) + " " + (lg.need(("w2", m | 1)) if OPT["w2"] else "") + lg.need(("w2", m))
        if w.strip():
            P("s_waitcnt " + w.strip())
        c = "0" if (n in (0, 22) and ks == 0) else v(acc + 16 * ct, 16)
        if n == 21:
            P(f"s_cbranch_scc0 L_null{k4}")
        P(f"v_mfma_f32_32x32x16_bf16 {v(acc + 16 * ct, 16)}, {v(WR + (m % 8) * 4, 4)}, {v(AR + 8 * (na % RG) + 4 * ks, 4)}, {c}")
        if OPT["tl"] and m >= 4 * NST - 2:
            for q in range(2):
                xwrite(AS, XW2, 0, 2 * (m & 1) + q)
        if n == 21:
            P.label(f"L_null{k4}")
        if k4 == 1:
            for nn, ld, fd, nm in ((8, FH1, FD, "h1"), (16, FHA, FD, "ha"), (22, FO, FD + 1, "o")):
                if n == max(0, gate[nn] - OPT["fl"]) and gate[nn] > 0:
                    P(ld)
                    vm.add("f" + nm)
                if n == gate[nn]:
                    vm.wait("f" + nm)
                    P(f"v_cmp_ne_u32 vcc, {NONCE}, {v(fd)}")
                    retry("L_" + nm, ld, f"v_cmp_ne_u32 vcc, {NONCE}, {v(fd)}")
                    stamp(0, nm + "_seen")
        aissue(n, k4)
        assert nxt[0] > n + 1 or nxt[0] == NST or (nxt[0] == n + 1 and k4 < 3), (n, k4, nxt)
        wrd(m + 7)
        if m == 91:
            await_(CPC2, 19, 13, peeked=True)
        if m >= 91 and (m - 91) % OPT["ys"] == 0 and (m - 91) // OPT["ys"] < 8:
            xwrite(AY, XW, ((m - 91) // OPT["ys"]) >> 2, ((m - 91) // OPT["ys"]) & 3)
        if m == 91 + 7 * OPT["ys"] + OPT["dy"]:
            lg.wait(("xw", AY))
            P("s_barrier ; dY")
    if "st0" in OPT:
        stamp(0, f"n{n}")
stamp(0, "sdone")
for ct in range(1 if OPT["tl"] else 0, 2):
    for q in range(4):
        xwrite(AS, XW2, ct, q)
P("s_setprio 0")
lg.drain()
P("s_barrier ; dS")
P(f"s_or_b32 {T0}, s2, {W}\ns_cmp_eq_u32 {T0}, 0")
P("s_cbranch_scc0 L_cend")
flag_store(T0)
P.label("L_cend")
dump(0)
P("s_endpgm")
flush_cold()
P.label("L_codeend")

body = P.finish()
hdr = f"""; Fused LayerNorm + linear attention + GELU FFN block, one persistent launch (256 workgroups, one per CU).
; Generated by work/gen2.py.  Four waves stream operands into LDS, four waves compute.
; @launch grid=(256,1,1) block=(512,1,1) lds=163840
.amdgcn_target "amdgcn-amd-amdhsa--gfx950"
.text
.globl {KNAME}
.p2align 8
.type {KNAME},@function
{KNAME}:
"""
tail = f"""
.section .rodata,"a"
.p2align 6
.amdhsa_kernel {KNAME}
  .amdhsa_next_free_vgpr 256
  .amdhsa_next_free_sgpr 102
  .amdhsa_accum_offset 256
  .amdhsa_group_segment_fixed_size 0
  .amdhsa_kernarg_size 88
  .amdhsa_user_sgpr_count 2
  .amdhsa_user_sgpr_kernarg_segment_ptr 1
  .amdhsa_system_sgpr_workgroup_id_x 1
  .amdhsa_float_denorm_mode_32 3
.end_amdhsa_kernel
"""
if OPT["diag"]:
    tail += f"; STAMPS0 {' '.join(slots[0])}\n"
sys.stdout.write(hdr + body + tail)
sys.stderr.write(f"pads {P.npad}\n")
```

```python
import sys, os, struct, math
from asmlib import Prog, v, s

KNAME = "recurrent_scan__linear_attn_block__dense_activation_gelu__prompt_kernel"
OPT = dict(diag=0, outaux="sc1", map1=81, spin=16, codepf=1, ldfirst=1, prio=1,
           nA9=3, nA10=7, nB10=8, mf=56, cprio=3, gx=36, n6=2, n7=1, kA=12, lag=8, sp=0, sp0=0, nost=0, slp=2, kvw=0, gprio=3, sA=4, xB=8, fast=1, nt1=2, trow=272, nosamp=0, e1B=4, iB2=2, e1A=20, gd=16, lB2=5, lB1=0, cw=1, tlb=0, fill=0, f1=0, f2=9, fo=0, wsoff=0, wprio=3, l1=9, fence=1, inl=1, w0=4, w1=6, w0c=4, quiet=0, nosig=0, noside=0, nt2=2, wb=0, lB=0, hk1=0, lA0=8, lA=0, kq=2, wbj=0, kA0=12, kA1=8, kA2=0, rotx=1, spx=0, pB=10, iB=0, ring=4, nods=0, lsl=0, yB=12, zB=4, yB1=2, zB1=4, aaux="sc1", ahot=0, g2=52, rot2=1, pace=0, pace1=0, dy=2, ys=1, w2=1, p2only=0, plain=0, stouch=0, nst=0, saux="sc1", csprio=3, early=0, map2=81, smp=28, noa=0, now=0, la=7, touch=0, ltouch=1, gl=0, eb=1, chl=0, preA=0, tl=1, hack=0, rv=0, s1h=0, late=6, lw=0, r0=0, r1=0, r2=0, rall=0, chx=0, s1late=0, nostat=0, csd=0, gt=2, nar=1, seq=0, kslp=2, fsx=0, pg=0, fprio=1, f6=0, prime=4, cH1=4, cHA=12, cO=18, fl=4, ft=1, exprio=1, stdiag=0, p1only=0, nocomp=0, norot=0, noload=0, nocs=0)
for a in sys.argv[1:]:
    k, val = a.split("=")
    OPT[k] = val if not val.lstrip("-").isdigit() else int(val)
DIAG = OPT["diag"]
assert OPT["gx"] <= 36


def f2u(x):
    return struct.unpack("<I", struct.pack("<f", x))[0]


K = 1024
WS_STATS = 0x1000
FX = 5 if OPT["fsx"] else 0
LN = 128 << FX
WS_FLAGS = 0xA00000 if FX else 0x8000
FL_HB, FL_HA, FL_O, FL_H1 = 0, 64, 128, 192
WS_KVP = 0x10000
KVP_STR = 4352
WS_CS = 0xA0000
WS_HA = 0x140000 + OPT["wsoff"] * 0x100000
TB_STRIDE = 118 * K
WS_DIAG = 0x900000
WS_SIZE = (0xB00000 if FX else 0xA00000) + OPT["wsoff"] * 0x100000
def CH(q):
    return 96 * K + 8 * K * q if q < 7 else 88 * K
TBUF = 52 * K
TROW = OPT["trow"]
L_EX1 = 152 * K
L_CSX = 156 * K
L_RDY = 154 * K
L_PRG = L_RDY + 16
L_TAG = L_RDY + 32
L_FAST = L_RDY + 48
L_EX2 = 155 * K
L_KT = 156 * K
L_PQ = 72 * K
L_HS = 52 * K
L_XY = 112 * K
L_XS0, L_XS1 = 72 * K, 144 * K
def slot_of(p):
    if p < 18:
        return p * 4 * K
    if p < 34:
        return CH((p - 18) >> 1) + (p & 1) * 4 * K
    if p < 38:
        return 72 * K + (p - 34) * 4 * K
    return slot_of(p - 38)

rX, rP1, rP2, rWS, rW2, rWO, rA, rB = (s(n, 4) for n in (4, 8, 12, 16, 20, 24, 28, 32))
P_X, P_QKV, P_WO, P_W1, P_B1, P_W2, P_B2, P_OUT, P_WS = 36, 38, 40, 44, 46, 48, 50, 52, 56
NONCE, W, I_, J_, C_, TYPE, RHO, TB2, CT, RHO2 = (s(n) for n in range(58, 68))
T0, T1, T2, T3 = (s(n) for n in range(68, 72))

P = Prog()


class Q:
    def __init__(self, name, mx):
        self.q, self.name, self.mx = [], name, mx

    def room(self):
        if len(self.q) >= self.mx:
            P(f"s_waitcnt {self.name}({self.mx - 1})")
            self.q = self.q[len(self.q) - (self.mx - 1):]

    def add(self, tag=None):
        self.q.append(tag)

    def need(self, tag):
        if tag not in self.q:
            return ""
        idx = max(i for i, t in enumerate(self.q) if t == tag)
        n = len(self.q) - 1 - idx
        assert n <= self.mx, (self.name, n)
        self.q = self.q[idx + 1:]
        return f"{self.name}({n})"

    def wait(self, tag):
        t = self.need(tag)
        if t:
            P("s_waitcnt " + t)

    def drain(self, force=False):
        if self.q or force:
            P(f"s_waitcnt {self.name}(0)")
        self.q = []


slots = [{}, {}]
def stamp(role, name):
    if not DIAG:
        return
    want = str(OPT.get(f"st{role}", "")).split(",")
    if want != [""] and name not in want and name not in ("start", "end"):
        return
    n = slots[role].setdefault(name, len(slots[role]))
    if DIAG >= 3:
        assert n < 9, (role, name)
        P(f"{'s_memtime' if DIAG == 4 else 's_memrealtime'} s[{80 + 2 * n}:{81 + 2 * n}]")
        return
    assert n < 16, (role, name)
    P(f"{'s_memtime' if DIAG == 2 else 's_memrealtime'} s[96:97]\ns_waitcnt lgkmcnt(0)\ns_mov_b32 s{80 + n}, s96")


def sreg(r):
    return int(r[2:r.index(":")])


def srd(r, ptr, size):
    n = sreg(r)
    P(f"s_mov_b32 s{n}, s{ptr}\ns_mov_b32 s{n+1}, s{ptr+1}\ns_mov_b32 s{n+2}, 0x{size:x}\ns_mov_b32 s{n+3}, 0x20000")


def sel2(dst, a, b):
    P(f"s_mov_b32 {dst}, 0x{b:x}\ns_cmov_b32 {dst}, 0x{a:x}")


cold = []


def flush_cold():
    for t in cold:
        P(t)
    cold.clear()


def spin_text(lbl, load, check):
    t = f"s_mov_b32 {T3}, {1 << OPT['spin']}\n{lbl}:\n{load}\ns_waitcnt vmcnt(0)\n{check}\n"
    t += f"s_sub_u32 {T3}, {T3}, 1\ns_cbranch_scc1 {lbl}_x\ns_cbranch_vccz {lbl}_x\n"
    n = OPT["kslp"] if lbl in ("L_kv", "L_cs", "L_gr") else OPT["slp"]
    if n:
        t += f"s_sleep {n}\n"
    return t + f"s_branch {lbl}"


def spin(lbl, load, check):
    P(spin_text(lbl, load, check))
    P.label(lbl + "_x")


def retry(lbl, load, check):
    if OPT["inl"]:
        P(f"s_cbranch_vccz {lbl}_x")
        spin(lbl, load, check)
        return
    P(f"s_cbranch_vccnz {lbl}_s")
    P.label(lbl + "_x")
    cold.append(f"{lbl}_s:\n" + spin_text(lbl, load, check))


HX = "row"
FAR = "s46"
nrow = [0]
def row_store(text, nt=0):
    if not OPT["fast"] or nt == 2:
        P(text + " sc1")
        return
    nrow[0] += 1
    l = f"L_r{nrow[0]}"
    P(f"s_cmp_lg_u32 {FAR}, 0\ns_cbranch_scc1 {l}\n{text} {'nt' if nt else ''}\n{l}_x:")
    cold.append(f"{l}:\n{text} sc1\ns_branch {l}_x")


def flag_store(sreg_off, va=26, aux="sc1"):
    P(f"v_mov_b32 {v(va)}, {NONCE}\nv_mov_b32 {v(va+1)}, 0")
    P("s_mov_b64 exec, 1")
    if aux == "row":
        row_store(f"buffer_store_dword {v(va)}, {v(va+1)}, {rWS}, {sreg_off} offen")
    else:
        P(f"buffer_store_dword {v(va)}, {v(va+1)}, {rWS}, {sreg_off} offen {aux}")
    P("s_mov_b64 exec, -1")


def signal(vaddr, vtmp, k, fence=False):
    if fence and OPT["fence"]:
        lg.drain(force=True)
    P(f"v_mov_b32 {v(vtmp)}, {k}\ns_mov_b64 exec, 1\nds_write_b32 {v(vaddr)}, {v(vtmp)}\ns_mov_b64 exec, -1")
    lg.add(None)


nwait = [0]
def peek(vaddr, vd):
    lg.room()
    P(f"ds_read_b32 {v(vd)}, {v(vaddr)}")
    lg.add(("peek", vd))


def await_(vaddr, vd, k, peeked=False):
    nwait[0] += 1
    lbl = f"L_w{nwait[0]}"
    if not peeked:
        peek(vaddr, vd)
    lg.wait(("peek", vd))
    P(f"v_cmp_gt_u32 vcc, {k}, {v(vd)}")
    loop = (f"s_mov_b32 {T3}, {1 << 20}\n{lbl}:\nds_read_b32 {v(vd)}, {v(vaddr)}\ns_sub_u32 {T3}, {T3}, 1\ns_waitcnt lgkmcnt(0)\n"
            f"v_cmp_gt_u32 vcc, {k}, {v(vd)}\ns_cbranch_scc1 {lbl}_x\ns_cbranch_vccnz {lbl}")
    if OPT["inl"]:
        P(f"s_cbranch_vccz {lbl}_x\n{loop}")
    else:
        P(f"s_cbranch_vccnz {lbl}_s")
        cold.append(f"{lbl}_s:\n{loop}\ns_branch {lbl}_x")
    P.label(lbl + "_x")


def hblock2(dst):
    P(f"s_lshl_b32 {dst}, {C_}, 1\ns_add_u32 {T3}, {C_}, 3\ns_min_u32 {dst}, {dst}, {T3}\ns_add_u32 {dst}, {dst}, 32")


def waddr(dst, t1, t2, hshift):
    P(f"v_lshrrev_b32 {v(t1)}, 5, v0\nv_bfe_u32 {v(t2)}, v0, 2, 2\nv_lshl_add_u32 {v(t1)}, {v(t1)}, {hshift}, {v(t2)}")
    P(f"v_lshlrev_b32 {v(dst)}, 7, {v(t1)}")
    P(f"v_bfe_u32 {v(t1)}, v0, 3, 1\nv_lshl_or_b32 {v(dst)}, {v(t1)}, 6, {v(dst)}")
    P(f"v_bfe_u32 {v(t1)}, v0, 4, 1\nv_lshl_or_b32 {v(dst)}, {v(t1)}, 5, {v(dst)}")
    P(f"v_and_b32 {v(t1)}, 3, v0\nv_lshl_or_b32 {v(dst)}, {v(t1)}, 3, {v(dst)}")


def tr(dst, addr, off, tag):
    assert 0 <= off < 65536, off
    lg.room()
    P(f"ds_read_b64_tr_b16 {v(dst, 2)}, {v(addr)} offset:{off}")
    lg.add(tag)


def dump(role):
    if not DIAG:
        return
    P("s_waitcnt vmcnt(0)")
    stamp(role, "end")
    P("s_waitcnt lgkmcnt(0)")
    for n in range(16):
        P(f"v_mov_b32 {v(32 + n)}, {s(80 + n) if DIAG < 3 else (s(80 + 2 * n) if n < 10 else ('s100' if n == 15 else 0))}")
    if role == 1 and DIAG >= 3 and OPT.get("xcc"):
        P(f"s_getreg_b32 {T0}, hwreg(HW_REG_XCC_ID, 0, 4)\ns_min_u32 {T1}, s46, 1\ns_lshl4_add_u32 {T0}, {T1}, {T0}\nv_mov_b32 v45, {T0}")
    P(f"s_lshl_b32 {T0}, s2, 3\ns_add_u32 {T0}, {T0}, {W}\ns_lshl_b32 {T0}, {T0}, 6\ns_add_u32 {T0}, {T0}, 0x{WS_DIAG + role * 256:x}")
    P("v_mov_b32 v26, 0\ns_mov_b64 exec, 1")
    for n in range(4):
        P(f"buffer_store_dwordx4 {v(32 + 4 * n, 4)}, v26, {rWS}, {T0} offen offset:{16 * n}")


P("s_cmp_ge_u32 s2, 256")
P("s_cbranch_scc1 L_end")
if DIAG >= 3:
    P("s_memrealtime s[100:101]")
P("s_load_dwordx16 s[36:51], s[0:1], 0")
P("v_lshrrev_b32 v1, 6, v0")
P("v_and_b32 v0, 63, v0")
P(f"v_lshlrev_b32 v2, 2, v1\nv_add_u32 v2, 0x{L_RDY:x}, v2\nv_mov_b32 v3, 0\nds_write_b32 v2, v3")
if OPT["map1"] == 81:
    P(f"s_lshr_b32 {T3}, s2, 7\nv_readfirstlane_b32 {T2}, v1\ns_and_b32 {I_}, s2, 7\ns_bfe_u32 {J_}, s2, 0x40003")
    if OPT["rv"] == 1:
        P(f"s_and_b32 {T1}, s2, 3\ns_lshl1_add_u32 {I_}, {I_}, {T3}\ns_lshl2_add_u32 {RHO}, {T3}, {T1}")
    else:
        P(f"s_lshl2_add_u32 {RHO}, {T3}, {J_}\ns_and_b32 {T1}, s2, 3\ns_lshl1_add_u32 {I_}, {I_}, {T3}\ns_add_u32 {RHO}, {RHO}, {T1}\ns_and_b32 {RHO}, {RHO}, 7")
    if OPT["rv"] == 2:
        P(f"s_lshr_b32 {T1}, {J_}, 1\ns_sub_u32 {RHO}, {RHO}, {J_}\ns_add_u32 {RHO}, {RHO}, {T1}\ns_and_b32 {RHO}, {RHO}, 7")
elif OPT["map1"] == 24:
    P(f"s_lshr_b32 {T3}, s2, 5\nv_readfirstlane_b32 {T2}, v1\ns_and_b32 {I_}, s2, 4\ns_bfe_u32 {T1}, s2, 0x20003\ns_and_b32 {J_}, s2, 3")
    P(f"s_lshl1_add_u32 {I_}, {I_}, {T3}\ns_lshl2_add_u32 {J_}, {J_}, {T1}\ns_lshl1_add_u32 {RHO}, {T1}, {T3}\ns_and_b32 {T1}, s2, 1\ns_add_u32 {RHO}, {RHO}, {T1}\ns_and_b32 {RHO}, {RHO}, 7")
else:
    P(f"s_lshr_b32 {T3}, s2, 6\nv_readfirstlane_b32 {T2}, v1\ns_and_b32 {I_}, s2, 6\ns_bfe_u32 {T1}, s2, 0x30003\ns_and_b32 {J_}, s2, 1")
    P(f"s_lshl1_add_u32 {I_}, {I_}, {T3}\ns_lshl3_add_u32 {J_}, {J_}, {T1}\ns_lshl1_add_u32 {RHO}, {T3}, {T1}\ns_bfe_u32 {T1}, s2, 0x10001\ns_add_u32 {RHO}, {RHO}, {T1}\ns_and_b32 {RHO}, {RHO}, 7")
P(f"s_and_b32 {W}, {T2}, 3")
def late_args():
    P("s_load_dwordx4 s[52:55], s[0:1], 64")
    P("s_load_dwordx2 s[56:57], s[0:1], 80")
    P(f"s_lshr_b32 {C_}, {J_}, 1\ns_and_b32 {TYPE}, {J_}, 1")
def diag_init():
    if DIAG:
        for n in range(20):
            P(f"s_mov_b32 s{80 + n}, 0")


RHOS, RHOA = "s3", "s47"
def tile2():
    if OPT["map2"] == 42:
        P(f"s_lshr_b32 {T3}, s2, 5\ns_bfe_u32 {TB2}, s2, 0x20001\ns_lshl_b32 {TB2}, {TB2}, 3\ns_add_u32 {TB2}, {TB2}, {T3}")
        P(f"s_bfe_u32 {RHO2}, s2, 0x20003\ns_and_b32 {CT}, s2, 1\ns_lshl_b32 {CT}, {CT}, 2\ns_add_u32 {CT}, {CT}, {RHO2}")
        P(f"s_lshl_b32 {RHO2}, {RHO2}, 1\ns_add_u32 {RHO2}, {RHO2}, {T3}\ns_and_b32 {RHO2}, {RHO2}, 7")
        return
    P(f"s_lshr_b32 {T3}, s2, 6\ns_and_b32 {TB2}, s2, 7\ns_lshl_b32 {TB2}, {TB2}, 2\ns_add_u32 {TB2}, {TB2}, {T3}")
    P(f"s_bfe_u32 {CT}, s2, 0x30003\ns_lshl_b32 {RHO2}, {T3}, 1\ns_add_u32 {RHO2}, {RHO2}, {CT}\ns_and_b32 {RHO2}, {RHO2}, 7")
    P(f"s_add_u32 {RHOS}, {T3}, {CT}\ns_mul_i32 {RHOA}, {T3}, 3\ns_and_b32 {T3}, {CT}, 1\ns_add_u32 {RHOA}, {RHOA}, {T3}")
    if not OPT["rotx"]:
        P(f"s_mov_b32 {RHOS}, {RHO2}\ns_mov_b32 {RHOA}, 0")


P(f"s_cmp_lt_u32 {T2}, 4")
P("s_cbranch_scc1 L_loader")
late_args()
if OPT["codepf"]:
    P("s_getpc_b64 s[32:33]")
    P.label("L_pc")
    P("s_mov_b32 s34, L_codeend-L_pc\ns_mov_b32 s35, 0x20000")
    P(f"s_lshr_b32 {T0}, s2, 3\ns_lshl2_add_u32 {T1}, {T0}, {W}\ns_lshl_b32 {T1}, {T1}, 7\nv_and_b32 v4, 3, v0\nv_lshl_add_u32 v4, v4, 14, {T1}")
    P("buffer_load_dword v31, v4, s[32:35], 0 offen")
P("s_branch L_compute")
P.label("L_loader")

lg = Q("lgkmcnt", 15)
vm = Q("vmcnt", 63)
VX, VP1, VP2, VW2, VBI, LWA, LWB, VL16, SEL, CS, CS2 = 1, 2, 3, 4, 5, 6, 7, 8, 12, 16, 20
RS1, RS32, SX0, SW0, DCOL, SP20, SM, HB0L = (s(n) for n in range(72, 80))
if DIAG < 3:
    diag_init()
    stamp(1, "start")
P("v_lshrrev_b32 v24, 3, v0\nv_and_b32 v25, 7, v0\nv_lshrrev_b32 v26, 4, v0")
P(f"s_and_b32 {T0}, {W}, 1\ns_lshl_b32 {T0}, {T0}, 2\ns_lshl4_add_u32 {SX0}, {I_}, {W}")
P(f"v_add_u32 v27, {T0}, v26\nv_xor_b32 v27, v27, v25\nv_lshlrev_b32 v27, 4, v27\nv_lshl_or_b32 {v(VX)}, v24, 10, v27")
P(f"s_lshl_b32 {SX0}, {SX0}, 13\ns_lshl_b32 {SM}, {W}, 10")
P("s_mov_b32 s6, 0x200000\ns_mov_b32 s7, 0x20000")
SZQ, SZ1 = 512 * 3072, 512 * 2752


def wsetup():
    late_args()
    P(f"s_setprio {OPT['prio']}")
    P(f"s_lshl_b32 {T1}, {C_}, 7\ns_cmp_eq_u32 {TYPE}, 0")
    sel2(RS1, 3072, 2752)
    sel2(DCOL, 1024, 128)
    sel2("s10", SZQ, SZ1)
    P(f"s_cselect_b32 s8, s{P_QKV}, s{P_W1}\ns_cselect_b32 s9, s{P_QKV+1}, s{P_W1+1}\ns_mov_b32 s11, 0x20000")
    P(f"s_cselect_b32 {SW0}, 1024, {T1}\ns_add_u32 {SW0}, {SW0}, {T1}")
    P("v_and_b32 v27, 1, v26\nv_lshlrev_b32 v27, 2, v27\nv_xor_b32 v27, v27, v25\nv_lshlrev_b32 v27, 4, v27")
    P(f"v_mad_u32_u24 {v(VP1)}, v24, {RS1}, v27")
    P(f"s_lshl_b32 {T3}, {W}, 3\ns_mul_i32 {SP20}, {T3}, {RS1}\ns_add_u32 {SW0}, {SW0}, {SP20}\ns_lshl_b32 {RS32}, {RS1}, 5")


def wsetup2():
    hblock2(HB0L)
    P(f"s_lshl_b32 {T0}, {HB0L}, 6\ns_lshl_b32 {T1}, {C_}, 7\ns_cmp_eq_u32 {TYPE}, 0\ns_cselect_b32 {T0}, {T1}, {T0}\ns_add_u32 {SP20}, {SP20}, {T0}")
    P(f"v_lshl_or_b32 {v(VW2)}, v24, 10, v27")


def dma(voff, srdr, soff, tag):
    if OPT["noload"]:
        return
    P(f"buffer_load_dwordx4 {v(voff)}, {srdr}, {soff} offen lds")
    vm.add(tag)


def ks_reg(q):
    P(f"s_add_u32 {T0}, {RHO}, {q}\ns_and_b32 {T0}, {T0}, 7" if q else f"s_mov_b32 {T0}, {RHO}")


def stage(q, mid=None, pre=None):
    sl = (q % 3) * 32 * K
    ks_reg(q)
    P(f"s_lshl_b32 {T1}, {T0}, 7\ns_add_u32 {T1}, {T1}, {SX0}")
    for m in range(4):
        P(f"s_add_u32 m0, {SM}, {sl + 4 * K * m}")
        if m:
            P(f"s_add_u32 {T1}, {T1}, 32768")
        else:
            P(f"s_lshl_b32 {T0}, {T0}, 6")
            if pre:
                pre()
        dma(VX, rX, T1, ("st", q))
    if mid:
        mid()
    P(f"s_mul_i32 {T0}, {T0}, {RS1}\ns_add_u32 {T0}, {T0}, {SW0}")
    for h in range(2):
        if h:
            P(f"s_add_u32 {T0}, {T0}, {RS32}")
        P(f"s_add_u32 m0, {SM}, {sl + 16 * K + 4 * K * h}")
        P(f"s_add_u32 {T1}, {T0}, {DCOL}")
        dma(VP1, rP1, T0, ("st", q))
        P(f"s_add_u32 m0, {SM}, {sl + 24 * K + 4 * K * h}")
        dma(VP1, rP1, T1, ("st", q))


def chunk(q, tag="ch"):
    ks_reg(q)
    P(f"s_lshl_b32 {T0}, {T0}, 6\ns_mul_i32 {T0}, {T0}, {RS1}")
    P(f"s_add_u32 m0, {SM}, {CH(q)}\ns_add_u32 {T0}, {T0}, {SP20}")
    dma(VP1, rP1, T0, tag)
    P(f"s_add_u32 m0, {SM}, {CH(q) + 4 * K}\ns_add_u32 {T0}, {T0}, {RS32}")
    dma(VP1, rP1, T0, tag)


LPA, LPL = "s48", "s49"
LPB, LGB, SCS = "s36", "s37", "s38"
CHR, MID, PQR, D0, D1 = 48, 104, 212, 32, 228


def page_addr(p):
    if p < 32:
        if p % 2 == 0 or page_addr.last != ("b", p >> 1):
            P(f"s_add_u32 {LGB}, {RHO2}, {(p >> 1) & 7}\ns_and_b32 {LGB}, {LGB}, 7\ns_lshl_b32 {LGB}, {LGB}, 17\ns_add_u32 {LGB}, {LGB}, {LPB}")
            page_addr.last = ("b", p >> 1)
        P(f"s_add_u32 {T0}, {LGB}, {(2 * (p >> 4) + (p & 1)) * 32768}")
        return rW2
    elif p < 44:
        P(f"s_add_u32 {T0}, {LPA}, {(p - 32) * 32768}\ns_cmp_ge_u32 {T0}, {LPL}\ns_cselect_b32 {T1}, {11 * 32768}, 0\ns_sub_u32 {T0}, {T0}, {T1}")
        return rW2
    else:
        g, mask, sr, add = (p - 44) >> 2, 3, rWO, 0
    if p % 4 == 0 or page_addr.last != (p >> 2):
        P(f"s_add_u32 {LGB}, {RHOS}, {g}\ns_and_b32 {LGB}, {LGB}, {mask}\ns_lshl_b32 {LGB}, {LGB}, 17\ns_add_u32 {LGB}, {LGB}, {LPB}")
        page_addr.last = p >> 2
    P(f"s_add_u32 {T0}, {LGB}, {(p % 4) * 32768}")
    return sr
page_addr.last = None


def page(p):
    P(f"s_add_u32 m0, {SM}, {slot_of(p)}")
    sr = page_addr(p)
    dma(VW2, sr, T0, ("pg", p))


def stg_reg(p):
    if p < 38:
        return MID + 4 * (p - 18)
    k = p - 38 if p < 43 else p - 39
    return CHR + 4 * k if k < 14 else 184 + 4 * (k - 14)


def lds16(a):
    return f"{v(VL16 + a // (64 * K))}", a % (64 * K)


VP2N = 23
def chunk_stage(q):
    if OPT["nar"] and q == 1:
        P(f"s_cmp_ge_u32 {C_}, 3\ns_cselect_b32 {T0}, {TYPE}, 0\ns_lshl_b32 {T0}, {T0}, 6\ns_not_b32 {T0}, {T0}")
        P(f"v_lshrrev_b32 v27, 3, v0\nv_mul_u32_u24 v27, {RS1}, v27\nv_sub_u32 v28, {v(VP1)}, v27\nv_and_b32 v28, {T0}, v28\nv_add_u32 {v(VP2N)}, v27, v28")
    ks_reg(q)
    P(f"s_lshl_b32 {T0}, {T0}, 6\ns_mul_i32 {T0}, {T0}, {RS1}\ns_add_u32 {T0}, {T0}, {SP20}\ns_add_u32 {T1}, {T0}, {RS32}")
    for h in range(2):
        P(f"buffer_load_dwordx4 {v(CHR + 8 * (q - 1) + 4 * h, 4)}, {v(VP2N if OPT['nar'] else VP1)}, {rP1}, {(T0, T1)[h]} offen")
        vm.add(("ch", q))


def chunk_write(q):
    vm.wait(("ch", q))
    for h in range(2):
        a, off = lds16(CH(q) + 4 * K * h)
        P(f"ds_write_b128 {a}, {v(CHR + 8 * (q - 1) + 4 * h, 4)} offset:{off}")


def page_stage(p):
    sr = page_addr(p)
    P(f"buffer_load_dwordx4 {v(stg_reg(p), 4)}, {v(VW2)}, {sr}, {T0} offen")
    vm.add(("pg", p))


def page_write(p, pace=0):
    so = slot_of(p)
    a, off = (VL16, so) if so < 64 * K else ((VL16 + 1, so - 64 * K) if so < 128 * K else (VL16 + 2, so - 128 * K))
    P(f"ds_write_b128 {v(a)}, {v(stg_reg(p), 4)} offset:{off}")
    if pace:
        P("s_waitcnt lgkmcnt(0)")


stage(0, wsetup, lambda: P(f"s_waitcnt lgkmcnt(0)\ns_mov_b32 s4, s{P_X}\ns_mov_b32 s5, s{P_X+1}"))
if DIAG >= 3:
    diag_init()
    stamp(1, "start")
stamp(1, "st0")
wsetup2()
if not OPT["chl"]:
    chunk(0, "ch0")
P("s_waitcnt lgkmcnt(0)")
P(f"s_load_dword {NONCE}, s[{P_WS}:{P_WS+1}], 0")
srd(rWS, P_WS, WS_SIZE)
srd(rW2, P_W2, 1376 * 1024)
srd(rWO, P_WO, 512 * 1024)
srd(rA, P_B1, 2752)
tile2()
waddr(LWA, 27, 28, 3)
P(f"s_and_b32 {T0}, {W}, 1\ns_lshl_b32 {T0}, {T0}, 6")
P(f"v_xor_b32 {v(LWA)}, {T0}, {v(LWA)}")
P(f"v_add_u32 {v(LWB)}, 0x{CH(0):x}, {v(LWA)}")
P(f"s_lshr_b32 {T0}, {W}, 1\ns_lshl_b32 {T0}, {T0}, 13\ns_add_u32 {T0}, {T0}, {16 * K}")
P(f"v_add_u32 {v(LWA)}, {T0}, {v(LWA)}")
P("v_and_b32 v27, 15, v0\nv_lshlrev_b32 v28, 2, v26\nv_cmp_eq_u32 vcc, v27, v28\nv_mov_b32 v27, 0x3f803f80")
for r in range(4):
    P(f"v_cndmask_b32 {v(SEL + r)}, 0, v27, vcc")
P(f"v_lshl_add_u32 {v(VL16)}, v0, 4, {SM}")
P(f"v_add_u32 {v(VL16+1)}, 0x10000, {v(VL16)}\nv_add_u32 {v(VL16+2)}, 0x20000, {v(VL16)}")
P(f"s_lshl_b32 {LPB}, {W}, 13\ns_lshl_b32 {T1}, {CT}, 7\ns_add_u32 {LPB}, {LPB}, {T1}")
P(f"s_lshl_b32 {LPA}, {RHOA}, 15\ns_add_u32 {LPA}, {LPA}, {LPB}\ns_add_u32 {LPA}, {LPA}, {32 * 32768}\ns_add_u32 {LPL}, {LPB}, {43 * 32768}")
P(f"s_lshl_b32 {SCS}, {J_}, 1\ns_lshr_b32 {T0}, {I_}, 3\ns_add_u32 {SCS}, {SCS}, {T0}\ns_lshl_b32 {SCS}, {SCS}, 2")
P(f"s_add_u32 {SCS}, {SCS}, {W}\ns_lshl_b32 {SCS}, {SCS}, 12\ns_add_u32 {SCS}, {SCS}, 0x{WS_CS:x}")
P(f"s_lshl_b32 {T0}, {C_}, 2\ns_add_u32 {T0}, {T0}, {W}\ns_lshl_b32 {T0}, {T0}, 6")
P(f"s_and_b32 {T1}, {W}, 1\ns_add_u32 {T1}, {T1}, {HB0L}\ns_lshl_b32 {T1}, {T1}, 6")
P(f"s_cmp_eq_u32 {TYPE}, 0\ns_cselect_b32 {T0}, 0x100000, {T0}\ns_cselect_b32 {T1}, 0x100000, {T1}")
P(f"v_mov_b32 v27, {T0}\nv_mov_b32 v28, {T1}\nv_cmp_gt_u32 vcc, 32, v0\nv_and_b32 v29, 31, v0")
P(f"v_cndmask_b32 v27, v28, v27, vcc\nv_lshl_add_u32 v30, v29, 1, v27")
VSIG, VPK = 11, 24
P(f"s_lshl_b32 {T0}, {W}, 2\ns_add_u32 {T0}, {T0}, 0x{L_RDY:x}\nv_mov_b32 {v(VSIG)}, {T0}")
P(f"v_and_b32 {v(VPK)}, 3, v0\nv_lshlrev_b32 {v(VPK)}, 2, {v(VPK)}\nv_add_u32 {v(VPK)}, 0x{L_PRG:x}, {v(VPK)}")
XRES, BRES, VO, SO = 244, 252, 19, "s45"
if OPT["eb"]:
    srd(rB, P_B2, 1024)
    P(f"buffer_load_ushort {v(VBI)}, v30, {rA}, 0 offen")
    P(f"v_and_b32 v28, 7, v0\nv_lshlrev_b32 v28, 4, v28\ns_lshl_b32 {T1}, {CT}, 7")
    P(f"buffer_load_dwordx4 {v(BRES, 4)}, v28, {rB}, {T1} offen")
    vm.add(None)
    vm.add(None)
stamp(1, "setup")
if not OPT["s1late"]:
    stage(1, (lambda: P(f"s_waitcnt vmcnt({OPT['s1h']})")) if OPT["s1h"] else None)
if OPT["chl"] and not OPT["chx"] and not OPT["s1late"]:
    chunk(0, ("st", 1))
stamp(1, "issued")
P(f"s_waitcnt lgkmcnt(0)\ns_add_u32 {NONCE}, {NONCE}, 1")
vm.wait("ch0")
vm.wait(("st", 0))
stamp(1, "land")
if OPT["p2only"]:
    P("s_waitcnt vmcnt(0)\ns_barrier")
    signal(VSIG, 27, 6)
    P("s_barrier\ns_barrier")
    dump(1)
    P("s_endpgm")
    lg.q = []
P("s_barrier ; b0")
stamp(1, "b0")
FR = 32


def cs_reads(a, f):
    for t in range(4):
        P(f"ds_read_b64_tr_b16 {v(f + 4 * t, 2)}, {v(a)} offset:{t * 2048}")
        P(f"ds_read_b64_tr_b16 {v(f + 4 * t + 2, 2)}, {v(a)} offset:{t * 2048 + 512}")


def cs_mfma(acc, f):
    for t in range(4):
        P(f"v_mfma_f32_16x16x32_bf16 {v(acc, 4)}, {v(SEL, 4)}, {v(f + 4 * t, 4)}, {'0' if t == 0 else v(acc, 4)}")


CSL = "\n".join(f"buffer_load_dwordx2 {v(32 + 2 * n, 2)}, v29, {rWS}, {SCS} offen offset:{512 * n} sc1" for n in range(8))
CSC = "\n".join([f"v_xor_b32 {v(228 + n)}, {NONCE}, {v(33 + 2 * n)}" for n in range(8)] +
                ["v_or3_b32 v228, v228, v229, v230", "v_or3_b32 v231, v231, v232, v233", "v_or3_b32 v228, v228, v234, v235",
                 "v_or_b32 v228, v228, v231", "v_cmp_ne_u32 vcc, 0, v228"])
nch = 1
for st in range(8):
    CL = OPT["chl"]
    def mid():
        if st == 0:
            P(f"s_setprio {OPT['csprio']}")
            P("s_waitcnt lgkmcnt(0)")
            if not CL:
                cs_reads(LWB, FR + 16)
            cs_mfma(CS, FR)
            if CL:
                P(f"s_setprio {OPT['prio']}")
    if st == 0:
        cs_reads(LWA, FR)
        if OPT["s1late"]:
            stage(1)
            if OPT["chl"]:
                chunk(0, ("st", 1))
    if OPT["chx"] and st == OPT["chx"]:
        chunk(0, None)
    if st == 1 and CL:
        cs_reads(LWB, FR + 16)
    if st <= 5:
        if OPT["late"] >> st & 1:
            P(f"s_waitcnt vmcnt({OPT['lw']})")
        stage(st + 2, mid)
    if st == CL:
        P(f"s_setprio {OPT['csprio']}")
        P(f"s_lshl_b32 {T0}, {W}, 8\ns_add_u32 {T0}, {T0}, 0x{L_CSX:x}")
        P(f"v_lshl_add_u32 v27, v0, 2, {T0}")
        P("s_waitcnt lgkmcnt(0)")
        cs_mfma(CS2, FR + 16)
        P(f"v_permlane32_swap_b32 {v(CS)}, {v(CS2)}")
        P(f"v_add_f32 {v(CS)}, {v(CS)}, {v(CS2)}")
        P(f"ds_write_b32 v27, {v(CS)}")
        P(f"s_setprio {OPT['prio']}")
    if st == CL + 1:
        P("s_waitcnt lgkmcnt(0)")
    if OPT["fill"] == 3 and 1 <= st <= 6:
        if st == 1:
            P(f"s_lshl2_add_u32 s40, {I_}, {W}\ns_mul_i32 s40, s40, {TB_STRIDE}\ns_lshl_b32 {T0}, {J_}, 12\ns_add_u32 s40, s40, {T0}\ns_add_u32 s40, s40, 0x{WS_HA:x}")
        for t in range(6 * (st - 1), min(32, 6 * st)):
            P(f"s_buffer_load_dword s41, {rWS}, s40 offset:{128 * t}")
    if st == 6:
        P("v_lshlrev_b32 v29, 3, v0")
        P(CSL)
        for n in range(8):
            vm.add("cs")
        if OPT["ltouch"]:
            P(f"s_lshl2_add_u32 {T0}, s2, {W}\ns_mul_i32 {T1}, {T0}, {11 * 128}\ns_lshl_b32 {T0}, {T0}, 9")
            P(f"v_min_u32 v27, 10, v0\nv_lshlrev_b32 v27, 7, v27\nv_and_b32 v28, 0x180, v27")
            P(f"buffer_load_dword v20, v27, {rW2}, {T1} offen\nbuffer_load_dword v21, v28, {rWO}, {T0} offen")
            vm.add(None)
            vm.add(None)
        if OPT["f6"]:
            P(f"s_mul_i32 {T0}, {I_}, {4 * TB_STRIDE}\ns_lshl_b32 {T1}, {C_}, 12\ns_add_u32 {T1}, {T1}, {SM}\ns_add_u32 {T1}, {T1}, {86 * K}")
            P(f"s_mul_i32 {T2}, {W}, {TB_STRIDE}\ns_lshl_b32 {T3}, {HB0L}, 11\ns_add_u32 {T2}, {T2}, {T3}")
            P(f"s_cmp_lt_u32 {C_}, 3")
            sel2(T3, 3, 1)
            P(f"s_cmp_eq_u32 {TYPE}, 0\ns_cselect_b32 {T1}, {T1}, {T2}\ns_cselect_b32 {T3}, 3, {T3}")
            sel2(T2, TB_STRIDE, 1024)
            P(f"s_add_u32 {T0}, {T0}, {T1}\ns_add_u32 {T0}, {T0}, 0x{WS_HA:x}")
            P(f"v_lshrrev_b32 v27, 3, v0\nv_and_b32 v27, {T3}, v27\nv_mul_u32_u24 v27, {T2}, v27\nv_and_b32 v28, 7, v0\nv_lshl_add_u32 v27, v28, 7, v27")
            P(f"buffer_load_dword v23, v27, {rWS}, {T0} offen")
            vm.add(None)
        if OPT["ft"]:
            P(f"s_lshl2_add_u32 {T0}, {I_}, {W}\ns_lshl_b32 {T0}, {T0}, 7\ns_lshl_b32 {T1}, {I_}, 7\ns_add_u32 {T1}, {T1}, {FL_O * 128}")
            P(f"v_and_b32 v27, 3, v0\nv_lshl_add_u32 v28, v27, 13, {T0}\nv_mov_b32 v22, {T1}\nv_cmp_eq_u32 vcc, 2, v27\nv_cndmask_b32 v28, v28, v22, vcc")
            P(f"s_mov_b32 {T0}, 0x{WS_FLAGS:x}\nbuffer_load_dword v22, v28, {rWS}, {T0} offen sc1")
            vm.add(None)
    if st == 7:
        P(f"s_setprio {OPT['exprio']}")
        vm.wait("cs")
        stamp(1, "csin")
        P(CSC)
        retry("L_cs", CSL, CSC)
        stamp(1, "csok")
        P("v_add_f32 v32, v32, v34\nv_add_f32 v36, v36, v38\nv_add_f32 v40, v40, v42\nv_add_f32 v44, v44, v46")
        P("v_add_f32 v32, v32, v36\nv_add_f32 v40, v40, v44\nv_add_f32 v32, v32, v40")
        P("v_cvt_pk_bf16_f32 v33, v32, v32\nv_lshlrev_b32 v33, 16, v33\nv_sub_f32 v32, v32, v33\nv_cvt_pk_bf16_f32 v32, v33, v32")
        P("v_cmp_gt_u32 vcc, 32, v0")
        P(f"s_lshl_b32 {T0}, {W}, 9\ns_add_u32 {T0}, {T0}, 0x{L_EX1:x}")
        P(f"v_add_u32 v29, {T0}, v29")
        P(f"v_cndmask_b32 v34, 0, v32, vcc\nv_cndmask_b32 v35, 0, {v(VBI)}, vcc")
        P(f"v_cndmask_b32 v36, v32, 0, vcc\nv_cndmask_b32 v37, {v(VBI)}, 0, vcc")
        P(f"ds_write_b64 v29, v[34:35]\nds_write_b64 v29, v[36:37] offset:{L_EX2 - L_EX1}")
    if st == 7:
        P(f"s_setprio {OPT['prio']}")
    if st >= 6:
        for q in range(nch, nch + OPT[f"n{st}"]):
            chunk_stage(q)
        nch += OPT[f"n{st}"]
    if st < 7:
        vm.wait(("st", st + 1))
    if st == 7:
        P("s_waitcnt lgkmcnt(0)")
        stamp(1, "exw")
    P(f"s_barrier ; b{st + 1}")
    if "st1" in OPT and st < 7:
        stamp(1, f"b{st+1}")
stamp(1, "b8")
if OPT["p1only"]:
    dump(1)
    P("s_endpgm")
    DIAG = 0
for q in range(nch, 8):
    chunk_stage(q)
if not OPT["eb"]:
    srd(rB, P_B2, 1024)
srd(rP2, P_OUT, 2 * K * K)
P(f"v_and_b32 v28, 7, v0\nv_lshlrev_b32 v28, 4, v28\nv_lshrrev_b32 v29, 3, v0\nv_lshl_or_b32 {v(VO)}, v29, 10, v28")
P(f"s_lshl_b32 {SO}, {TB2}, 2\ns_add_u32 {SO}, {SO}, {W}\ns_lshl_b32 {SO}, {SO}, 14\ns_lshl_b32 {T1}, {CT}, 7\ns_add_u32 {SO}, {SO}, {T1}")
P(f"s_add_u32 {T2}, {SO}, 8192")
if not OPT["eb"]:
    P(f"buffer_load_dwordx4 {v(BRES, 4)}, v28, {rB}, {T1} offen")
    vm.add("res")
P(f"buffer_load_dwordx4 {v(XRES, 4)}, {v(VO)}, {rX}, {SO} offen")
P(f"buffer_load_dwordx4 {v(XRES + 4, 4)}, {v(VO)}, {rX}, {T2} offen")
for _ in range(2):
    vm.add("res")
vq8 = list(vm.q)


def stream(seq):
    for p in seq:
        (page if p < 18 else page_stage)(p)


LATE = list(range(38, 43)) + list(range(44, 60))
P(f"s_cmp_eq_u32 {TYPE}, 0")
P("s_cbranch_scc1 L_lA")
SH1, SH2, SF1 = "s4", "s5", "s6"
P(f"v_add_u32 v22, 16, {v(VSIG)}\nv_lshlrev_b32 v23, 4, v0")
P(f"s_lshl_b32 {T0}, {I_}, 2\ns_add_u32 {T0}, {T0}, {W}")
P(f"s_mul_i32 {SH1}, {T0}, {TB_STRIDE}\ns_add_u32 {SH1}, {SH1}, 0x{WS_HA:x}")
P(f"s_lshl_b32 {SH2}, {HB0L}, 11\ns_add_u32 {SH2}, {SH2}, {SH1}\ns_lshl_b32 {T1}, {C_}, 13\ns_add_u32 {SH1}, {SH1}, {T1}")
P(f"s_lshl_b32 {SF1}, {T0}, 5\ns_add_u32 {SF1}, {SF1}, {C_}\ns_lshl_b32 {SF1}, {SF1}, {2 + FX}\ns_add_u32 {SF1}, {SF1}, 0x{WS_FLAGS + FL_HB * LN:x}")


def far():
    P(f"ds_read_b32 v28, {v(VPK)} offset:{L_FAST - L_PRG}\ns_waitcnt lgkmcnt(0)\nv_cmp_ne_u32 vcc, 0, v28\ns_or_b32 {FAR}, vcc_lo, vcc_hi")


def wback(tag):
    if OPT["wbj"] == 0:
        P(f"s_cmp_lg_u32 {W}, 0")
    else:
        P(f"s_xor_b32 {T0}, {J_}, {OPT['wbj'] - 1}\ns_or_b32 {T0}, {T0}, {W}\ns_cmp_lg_u32 {T0}, 0")
    P(f"s_cbranch_scc1 L_wb{tag}\nbuffer_wbl2 sc1\nL_wb{tag}:")


def hstore(k, base, b, sh, tag):
    if k == 1:
        await_(VPK, 28, k)
        far()
    else:
        await_(22, 28, k)
    d = D0 + 8 * (b & 1)
    for u in range(2):
        a = base + (2 * b + u) * 4096
        P(f"ds_read_b128 {v(d + 4 * u, 4)}, {v(VL16 + a // (64 * K))} offset:{a % (64 * K)}")
    if b == 2:
        P(f"s_add_u32 {sh}, {sh}, 4096")
    for u in range(2):
        P(f"s_waitcnt lgkmcnt({1 - u})")
        row_store(f"buffer_store_dwordx4 {v(d + 4 * u, 4)}, v23, {rWS}, {sh} offen offset:{2048 * (b & 1) + 1024 * u}", OPT["nt1"] if tag != "h2" else OPT["nt2"])
        vm.add(tag)


if OPT["fill"] == 1:
    P("v_lshlrev_b32 v25, 7, v0\nv_and_b32 v27, 0xfff, v25")
    P(f"buffer_load_dword v20, v25, {rWS}, {SH1} offen\nbuffer_load_dword v21, v27, {rWS}, {SH2} offen")
    vm.add(None)
    vm.add(None)
mid = list(range(18, 38))
stream(mid[:OPT["e1B"]])
np_ = OPT["e1B"]
for q in range(1, 5):
    chunk_write(q)
hstore(1, L_HS, 0, SH1, "h")
for q in range(5, 8):
    chunk_write(q)
signal(VSIG, 26, 1, True)
for b in range(1, 4):
    stream(mid[np_:np_ + OPT["iB2"]])
    np_ += OPT["iB2"]
    hstore(b + 1, L_HS, b, SH1, "h" if b < 2 else "h1")
signal(VSIG, 26, 2)
stamp(1, "h_st")
vm.wait("h")
flag_store(SF1, aux=HX)
vm.add(None)
stamp(1, "hbflag")
P(f"s_add_u32 {SF1}, {SF1}, {(FL_H1 - FL_HB) * LN}")
stream(range(OPT["xB"]))
vm.wait("h1")
flag_store(SF1, aux=HX)
vm.add(None)
stamp(1, "h1flag")
stream(range(OPT["xB"], 18))
stream(mid[np_:])
P(f"s_sub_u32 {SF1}, {SF1}, {(FL_H1 - FL_HA) * LN}")
P(f"s_cmp_lt_u32 {C_}, 3")
P("s_cbranch_scc0 L_lB1")
vqB = list(vm.q)
restB = {}
for nb in (2, 1):
    if nb == 1:
        P.label("L_lB1")
        vm.q = list(vqB)
    page_addr.last = None
    pre = OPT["lB2"] if nb == 2 else OPT["lB1"]
    stream(LATE[:pre])
    vm.wait(("pg", 17))
    signal(VSIG, 26, 3)
    stamp(1, "staged")
    lg.q = []
    await_(VPK, 28, 8)
    marks = {OPT["w0"]: 0, OPT["w1"]: 1} if nb == 2 else {OPT["w0c"]: 0}
    for n, p in enumerate(range(18, 38)):
        if n in marks:
            lg.q = []
            hstore(9 + marks[n], L_PQ, marks[n], SH2, "h2")
            stamp(1, "h2_st")
        vm.wait(("pg", p))
        page_write(p)
    signal(VSIG, 26, 4, True)
    vm.wait("h2")
    flag_store(SF1, aux=HX)
    vm.add(None)
    stamp(1, "oflag")
    stream(LATE[pre:max(pre, OPT["l1"])])
    vm.wait(("pg", 42))
    restB[nb] = LATE[max(pre, OPT["l1"]):]
    P("s_branch L_l5")
P.label("L_lA")
vm.q = list(vq8)
lg.q = []
page_addr.last = None
SOB = "s44"
P(f"s_mul_i32 {SOB}, {I_}, {4 * TB_STRIDE}\ns_lshl_b32 {T1}, {C_}, 12\ns_add_u32 {SOB}, {SOB}, {T1}")
P(f"s_add_u32 {SOB}, {SOB}, {SM}\ns_add_u32 {SOB}, {SOB}, 0x{WS_HA + 86 * K:x}")
if OPT["fill"] == 1:
    P(f"v_bfe_u32 v25, v0, 3, 2\nv_mul_u32_u24 v25, {TB_STRIDE}, v25\nv_and_b32 v27, 7, v0\nv_lshl_add_u32 v25, v27, 7, v25")
    P(f"buffer_load_dword v20, v25, {rWS}, {SOB} offen")
    vm.add(None)
mid = list(range(18, 38))
stream(mid[:8])
for q in range(1, 8):
    chunk_write(q)
signal(VSIG, 26, 1, True)
if OPT["fill"] in (2, 3):
    P(f"s_lshl2_add_u32 {T0}, {I_}, {W}\ns_mul_i32 {T0}, {T0}, {TB_STRIDE}\ns_add_u32 {T0}, {T0}, 0x{WS_HA:x}")
    P("v_lshlrev_b32 v25, 7, v0")
    if OPT["fill"] == 2:
        P(f"s_lshl_b32 {T1}, {C_}, 13\ns_add_u32 {T1}, {T1}, {T0}")
        P(f"buffer_load_dword v20, v25, {rWS}, {T1} offen")
        vm.add(None)
    P(f"s_mul_i32 {T1}, {C_}, {54 * 128}\ns_add_u32 {T1}, {T1}, {T0}\ns_add_u32 {T1}, {T1}, {64 * K}\nv_min_u32 v25, {53 * 128}, v25")
    P(f"buffer_load_dword v21, v25, {rWS}, {T1} offen")
    vm.add(None)
stream(mid[8:OPT["e1A"]])
lg.q = []
await_(VPK, 28, 2)
far()
stream(range(18))
stream(mid[OPT["e1A"]:])
PREA = LATE[:OPT["preA"]] if OPT["gd"] == 8 else LATE[21 - min(5, OPT["preA"]):21]
stream(PREA)
SZL, SK0, SK1, SKE = "s4", "s5", "s6", "s7"
NB = [NONCE, "s39", "s42", "s43"]
P("v_and_b32 v23, 15, v0\nv_lshlrev_b32 v27, 4, v0")
P(f"v_lshrrev_b32 v22, 2, v0\nv_mul_u32_u24 v25, {KVP_STR}, v22\nv_and_b32 v26, 3, v0\nv_lshl_add_u32 v25, v26, 4, v25")
P(f"s_mul_i32 {SK0}, {C_}, {16 * KVP_STR}\ns_add_u32 {SK0}, {SK0}, 0x{WS_KVP:x}")
P(f"s_lshl_b32 {SZL}, {W}, 6\ns_add_u32 {SZL}, {SZL}, {SK0}\ns_add_u32 {SZL}, {SZL}, 4096")
P(f"s_add_u32 {SK0}, {SK0}, {SM}\ns_add_u32 {SKE}, {SK0}, {16 * KVP_STR}")
P(f"s_lshl_b32 {SK1}, {I_}, 1\ns_and_b32 {SK1}, {SK1}, 15\ns_mul_i32 {SK1}, {SK1}, {KVP_STR}\ns_add_u32 {SK1}, {SK1}, {SK0}")
P(f"s_add_u32 {T0}, {SM}, 0x{L_KT:x}")
P("v_and_b32 v40, 1, v26\nv_lshlrev_b32 v40, 4, v40\nv_lshrrev_b32 v26, 1, v26\nv_lshl_or_b32 v40, v26, 3, v40")
P(f"v_lshl_or_b32 v40, v22, 5, v40\nv_add_u32 v40, {T0}, v40")
P("v_bfe_u32 v41, v0, 4, 1\nv_lshlrev_b32 v41, 4, v41\nv_lshrrev_b32 v26, 5, v0\nv_lshl_or_b32 v41, v26, 3, v41")
P(f"v_lshl_or_b32 v41, v23, 5, v41\nv_add_u32 v41, {T0}, v41")
P(f"v_and_b32 v42, 31, v0\nv_lshlrev_b32 v42, 5, v42\nv_lshl_or_b32 v42, v26, 4, v42\nv_add_u32 v42, {T0}, v42")
P(f"s_lshr_b32 s39, {NONCE}, 8\ns_lshr_b32 s42, {NONCE}, 16\ns_lshr_b32 s43, {NONCE}, 24")
ZL = f"buffer_load_dwordx4 v[28:31], v25, {rWS}, {SZL} offen sc1"
ZC = "\n".join([f"v_xor_b32 v20, {NB[0]}, v28", f"v_xor_b32 v21, {NB[1]}, v29",
                f"v_bitop3_b32 v20, v20, v30, {NB[2]} bitop3:0xf6", f"v_bitop3_b32 v21, v21, v31, {NB[3]} bitop3:0xf6",
                "v_or_b32 v20, v20, v21", "v_and_b32 v20, 0xff, v20", "v_cmp_ne_u32 vcc, 0, v20"])
P(f"s_setprio {OPT['gprio']}")
P(f"s_mov_b32 {T2}, 32")
P.label("L_kvall")
spin("L_kv", ZL, ZC)
stamp(1, "kv_seen")
signal(VSIG, 26, 3)
P(f"s_mov_b32 {T1}, {SK1}")
GD = OPT["gd"]
GQ = [CHR + 4 * n for n in range(14)] + [184, 188] if GD == 16 else [PQR + 4 * n for n in range(8)]
def gload(n):
    P(f"buffer_load_dwordx4 {v(GQ[n % GD], 4)}, v27, {rWS}, {T1} offen sc1")
    if n < 15:
        P(f"s_add_u32 {T1}, {T1}, {KVP_STR}")
        if n % 2 == 1:
            P(f"s_cmp_eq_u32 {T1}, {SKE}\ns_cselect_b32 {T1}, {SK0}, {T1}")
for n in range(GD if not OPT["hack"] & 8 else 8):
    gload(n)
for n in range(4):
    P(f"v_and_b32 {v(28 + n)}, 0xffffff00, {v(28 + n)}")
for r in (4, 8):
    for n in range(4):
        P(f"v_add_f32_dpp {v(28 + n)}, {v(28 + n)}, {v(28 + n)} row_ror:{r} row_mask:0xf bank_mask:0xf")
for op in ("v_permlane16_swap_b32", "v_permlane32_swap_b32"):
    for n in range(4):
        P(f"v_mov_b32 {v(32 + n)}, {v(28 + n)}")
    for n in range(4):
        P(f"{op} {v(28 + n)}, {v(32 + n)}")
    for n in range(4):
        P(f"v_add_f32 {v(28 + n)}, {v(28 + n)}, {v(32 + n)}")
P("v_cvt_pk_bf16_f32 v28, v28, v29\nv_cvt_pk_bf16_f32 v29, v30, v31")
P("ds_write_b64 v40, v[28:29] offset:512")
for n in range(16 if not OPT["hack"] & 8 else 8):
    P(f"s_waitcnt vmcnt({min(GD - 1, 15 - n) if not OPT['hack'] & 8 else 7 - n})")
    for h in range(4):
        r = v(GQ[n % GD] + h)
        if n == 0:
            P(f"v_xor_b32 {v(36 + h)}, {NB[h]}, {r}\nv_and_b32 {v(32 + h)}, 0xffffff00, {r}")
        else:
            P(f"v_bitop3_b32 {v(36 + h)}, {v(36 + h)}, {r}, {NB[h]} bitop3:0xf6\nv_and_b32 {v(44 + h)}, 0xffffff00, {r}")
    if n + GD < 16:
        gload(n + GD)
    if n:
        for h in range(4):
            P(f"v_add_f32 {v(32 + h)}, {v(32 + h)}, {v(44 + h)}")
P("v_or3_b32 v36, v36, v37, v38\nv_or_b32 v36, v36, v39\nv_and_b32 v36, 0xff, v36\nv_cmp_ne_u32 vcc, 0, v36")
P(f"s_sub_u32 {T2}, {T2}, 1")
P("s_cbranch_scc1 L_kvok")
P("s_cbranch_vccnz L_kvall")
P.label("L_kvok")
stamp(1, "gath")
if DIAG >= 3 and "retry" in str(OPT.get("st1")):
    P(f"s_waitcnt lgkmcnt(0)\ns_sub_u32 s98, 32, {T2}\ns_mul_i32 s98, s98, 100\ns_add_u32 s98, s98, s100")
vm.q = []
page_addr.last = None
P("v_cvt_pk_bf16_f32 v32, v32, v33\nv_cvt_pk_bf16_f32 v33, v34, v35")
P("ds_write_b64 v41, v[32:33]")
lg.q = []
P("ds_read_b128 v[44:47], v42")
stream([p for p in LATE[:OPT["lA"]] if p not in PREA])
P(f"v_add_u32 v20, 0x{L_PQ:x}, {v(VL16)}")
P(f"s_mov_b32 s4, {SOB}")
stamp(1, "staged")
await_(VPK, 22, 10)
stamp(1, "g0")
for tb in range(4):
    P(f"ds_read_b128 {v(PQR + 4 * tb, 4)}, v20 offset:{tb * 4096}")
P("v_mov_b32 v28, v44\nv_mov_b32 v29, v45\nv_mov_b32 v30, v46\nv_mov_b32 v31, v47")
def o_mfma(tb):
    P(f"s_waitcnt lgkmcnt({3 - tb})")
    P(f"v_mfma_f32_32x32x16_bf16 {v((D0, D1)[tb & 1], 16)}, v[28:31], {v(PQR + 4 * tb, 4)}, 0")
o_mfma(0)
o_mfma(1)
for tb in range(4):
    d = (D0, D1)[tb & 1]
    P(f"v_add_f32 {v(d + 8)}, 0x{f2u(1e-6):x}, {v(d + 8)}")
    P(f"v_rcp_f32 {v(d + 8)}, {v(d + 8)}")
    for r in range(8):
        P(f"v_mul_f32 {v(d + r)}, {v(d + r)}, {v(d + 8)}")
    for p in range(4):
        P(f"v_cvt_pk_bf16_f32 {v(PQR + 4 * tb + p)}, {v(d + 2 * p)}, {v(d + 2 * p + 1)}")
    if tb < 2:
        o_mfma(tb + 2)
    row_store(f"buffer_store_dwordx4 {v(PQR + 4 * tb, 4)}, v27, {rWS}, s4 offen", OPT["nt2"])
    vm.add("o")
    if tb < 3:
        P(f"s_add_u32 s4, s4, {TB_STRIDE}")
stamp(1, "o_st")
P(f"s_setprio {OPT['prio']}")
for p in range(18, 38):
    page_write(p)
signal(VSIG, 26, 4, True)
vm.wait("o")
P(f"s_lshl_b32 {T0}, {I_}, 5\ns_lshl_b32 {T1}, {C_}, 2\ns_add_u32 {T0}, {T0}, {T1}\ns_add_u32 {T0}, {T0}, {W}")
P(f"s_lshl_b32 {T0}, {T0}, {2 + FX}\ns_add_u32 {T0}, {T0}, 0x{WS_FLAGS + FL_O * LN:x}")
flag_store(T0, aux=HX)
vm.add(None)
stamp(1, "oflag")
stream([p for p in LATE[OPT["lA"]:OPT["l1"]] if p not in PREA])
vm.wait(("pg", 42))
restA = [p for p in LATE[OPT["l1"]:] if p not in PREA]
P.label("L_l5")
lg.q = []
await_(VPK, 28, 11)
stamp(1, "gx")
nfree = 2 * ((OPT["gx"] - 7) // 4)
first = [p for p in list(range(38, 43)) + list(range(44, 60)) if p - 38 < nfree]
P(f"s_setprio {OPT['wprio']}")
for p in range(38, 43):
    page_write(p, OPT["pace"])
signal(VSIG, 26, 5, True)
for who, rest in (("A", restA), ("B2", restB[2]), ("B1", restB[1])):
    if who == "A":
        P(f"s_cmp_eq_u32 {TYPE}, 0\ns_cbranch_scc0 L_tB")
    elif who == "B2":
        P.label("L_tB")
        P(f"s_cmp_lt_u32 {C_}, 3\ns_cbranch_scc0 L_tB1")
    else:
        P.label("L_tB1")
    page_addr.last = None
    vm.q = [("pg", p) for p in LATE[5:] if p not in rest and not (who == "A" and p in PREA)]
    stream(rest)
    for p in first[5:]:
        vm.wait(("pg", p))
        page_write(p, OPT["pace"])
    vm.drain()
    if who != "B1":
        P("s_branch L_t2")
P.label("L_t2")
lg.q = []
P("s_waitcnt lgkmcnt(0)")
await_(VPK, 28, 12)
for p in range(44, 60):
    if p not in first:
        vm.wait(("pg", p))
        page_write(p, OPT["pace"])
signal(VSIG, 26, 6, True)
P(f"s_setprio {OPT['prio']}")
LOG2E = 1.4426950408889634
XRD, GG, XF, BF, YR = 22, 32, 48, 64, 72
P("v_lshrrev_b32 v26, 3, v0\nv_and_b32 v27, 7, v0\nv_lshlrev_b32 v27, 1, v27\nv_xor_b32 v27, v27, v26\nv_lshlrev_b32 v27, 4, v27\nv_lshl_or_b32 v26, v26, 8, v27")
P(f"s_lshl_b32 {T0}, {W}, 12\ns_add_u32 {T0}, {T0}, 0x{L_XS0:x}")
P(f"v_add_u32 {v(XRD)}, {T0}, v26\nv_xor_b32 {v(XRD + 1)}, 16, {v(XRD)}")
P(f"v_add_u32 {v(XRD + 2)}, 0x10000, {v(XRD)}\nv_add_u32 {v(XRD + 3)}, 0x10000, {v(XRD + 1)}")
P(f"s_add_u32 {T2}, {SO}, 8192")
P("s_waitcnt lgkmcnt(0)")


if OPT["wb"] in (2, 4):
    wback(2)
def unpack(dst, src, n):
    for r in range(n):
        P(f"v_lshlrev_b32 {v(dst + 2 * r)}, 16, {v(src + r)}\nv_and_b32 {v(dst + 2 * r + 1)}, 0xffff0000, {v(src + r)}")


def xread(dst, bases):
    for h in range(2):
        for kh in range(2):
            for j in range(2):
                P(f"ds_read_b128 {v(dst + 16 * kh + 8 * h + 4 * j, 4)}, {v(XRD + j + 2 * ((bases[kh] - L_XS0) >> 16))} offset:{((bases[kh] - L_XS0) & 0xffff) + 2048 * h}")


unpack(XF, XRES, 8)
unpack(BF, BRES, 4)
stamp(1, "rdy5")
P(f"s_setprio {OPT['fprio']}")
P("s_barrier ; dY")
if OPT["wb"] == 3:
    wback(3)
xread(YR, (L_XY, L_XY + 16 * K))
P("s_waitcnt lgkmcnt(0)")
for fmt in ("v_add_f32 {Y}, {Y}, {Z}", "v_add_f32 {Y}, {Y}, {B}", f"v_mul_f32 {{G}}, 0x{f2u(-LOG2E):x}, {{Y}}", "v_exp_f32 {G}, {G}",
            "v_add_f32 {G}, 1.0, {G}", "v_rcp_f32 {G}, {G}", "v_mul_f32 {G}, {G}, {Y}"):
    for r in range(16):
        P(fmt.format(Y=v(YR + r), Z=v(YR + 16 + r), B=v(BF + r % 8), G=v(GG + r)))
stamp(1, "gate")
P("s_barrier ; dS")
stamp(1, "dS")
xread(YR, (L_XS0, L_XS1))
for h in range(2):
    P(f"s_waitcnt lgkmcnt({4 - 4 * h})")
    for p in range(4 * h, 4 * h + 4):
        P(f"v_pk_add_f32 {v(YR + 2 * p, 2)}, {v(YR + 2 * p, 2)}, {v(YR + 16 + 2 * p, 2)}")
    for p in range(4 * h, 4 * h + 4):
        P(f"v_pk_fma_f32 {v(YR + 2 * p, 2)}, {v(YR + 2 * p, 2)}, {v(GG + 2 * p, 2)}, {v(XF + 2 * p, 2)}")
    for p in range(4 * h, 4 * h + 4):
        P(f"v_cvt_pk_bf16_f32 {v(BF + p)}, {v(YR + 2 * p)}, {v(YR + 2 * p + 1)}")
    P(f"buffer_store_dwordx4 {v(BF + 4 * h, 4)}, {v(VO)}, {rP2}, {(SO, T2)[h]} offen {OPT['outaux']}")
stamp(1, "outst")
dump(1)
P.label("L_end")
P("s_endpgm")
flush_cold()

P.label("L_compute")
DIAG = OPT["diag"]
assert OPT["gx"] <= 36
XR, ACC, WR = 128, 64, 32
VH, GR, XE, K1, K2, SD, RS, RL = 1, 2, 4, 6, 8, 10, 16, 18
XA, WA = 12, 20
HB0, SH, EPS2, SG, SFL1, SFL2, SCS2 = "s72", "s73", "s[74:75]", "s76", "s77", "s78", "s79"
lg = Q("lgkmcnt", 15)

diag_init()
stamp(0, "start")
P(f"s_setprio {OPT['cprio']}")
P(f"s_lshl_b32 {T0}, {I_}, 4\ns_add_u32 {T0}, {T0}, {J_}\ns_lshl_b32 {T0}, {T0}, 2\ns_add_u32 {T0}, {T0}, {W}\ns_lshl_b32 {T0}, {T0}, 1")
P(f"s_lshl_b32 {T1}, {T0}, 10")
P("v_lshrrev_b32 v26, 5, v0\nv_and_b32 v27, 31, v0\nv_lshlrev_b32 v28, 4, v27\nv_lshl_or_b32 v28, v26, 10, v28")
P("s_waitcnt lgkmcnt(0)")
srd(rX, P_X, 2 * K * K)
P(f"s_load_dword {NONCE}, s[{P_WS}:{P_WS+1}], 0")
if not OPT["nostat"]:
    P(f"buffer_load_dwordx4 v[32:35], v28, {rX}, {T1} offen")
    P(f"buffer_load_dwordx4 v[36:39], v28, {rX}, {T1} offen offset:512")
srd(rWS, P_WS, WS_SIZE)
tile2()
P(f"v_lshlrev_b32 {v(VH)}, 4, v0")
waddr(WA, 29, 30, 3)
P(f"v_xor_b32 {v(WA + 1)}, 64, {v(WA)}")
for k, off in ((2, 64 * K), (4, 88 * K)):
    P(f"v_add_u32 {v(WA + k)}, 0x{off:x}, {v(WA)}\nv_add_u32 {v(WA + k + 1)}, 0x{off:x}, {v(WA + 1)}")
P("v_bfe_u32 v29, v0, 1, 3\nv_xor_b32 v29, v29, v26\nv_lshlrev_b32 v29, 4, v29\nv_lshl_or_b32 v29, v27, 7, v29")
P(f"s_lshl_b32 {T2}, {W}, 12")
P(f"v_add_u32 {v(XA)}, {T2}, v29")
for t in range(1, 4):
    P(f"v_xor_b32 {v(XA + t)}, {32 * t}, {v(XA)}")
for t in range(4):
    P(f"v_add_u32 {v(XA + 4 + t)}, 0x10000, {v(XA + t)}")
P(f"s_lshl_b32 {SG}, {I_}, 2\ns_add_u32 {SG}, {SG}, {W}")
if OPT["touch"]:
    srd(rW2, P_W2, 1376 * 1024)
    srd(rWO, P_WO, 512 * 1024)
    P(f"s_mul_i32 {T2}, s2, 43\ns_mul_i32 {T3}, {W}, 11\ns_add_u32 {T2}, {T2}, {T3}")
    P(f"v_add_u32 v6, {T2}, v0\nv_lshlrev_b32 v6, 7, v6\nv_mov_b32 v8, 0x7ff00000\nv_cmp_gt_u32 vcc, 11, v0")
    P(f"s_lshl_b32 {T2}, s2, 2\ns_add_u32 {T2}, {T2}, {W}\ns_lshl_b32 {T2}, {T2}, 2")
    P(f"v_cndmask_b32 v6, v8, v6, vcc\nv_add_u32 v7, {T2}, v0\nv_lshlrev_b32 v7, 7, v7\nv_cmp_gt_u32 vcc, 4, v0")
    P("v_cndmask_b32 v7, v8, v7, vcc")
    if OPT["touch"] == 9:
        P(f"buffer_load_dword v8, v6, {rW2}, 0 offen\nbuffer_load_dword v9, v7, {rWO}, 0 offen")
P(f"s_lshl_b32 {SG}, {SG}, 8\ns_add_u32 {SG}, {SG}, 0x{WS_STATS:x}")
P(f"s_lshl_b32 {SCS2}, {J_}, 1\ns_lshr_b32 {T2}, {I_}, 3\ns_add_u32 {SCS2}, {SCS2}, {T2}\ns_lshl_b32 {SCS2}, {SCS2}, 2")
P(f"s_add_u32 {SCS2}, {SCS2}, {W}\ns_lshl_b32 {SCS2}, {SCS2}, 3\ns_and_b32 {T2}, {I_}, 7\ns_add_u32 {SCS2}, {SCS2}, {T2}")
P(f"s_lshl_b32 {SCS2}, {SCS2}, 9\ns_add_u32 {SCS2}, {SCS2}, 0x{WS_CS:x}")
if OPT["pg"]:
    srd(rW2, P_W2, 1376 * 1024)
    srd(rWO, P_WO, 512 * 1024)
    srd(rA, P_OUT, 2 * K * K)
    P(f"v_lshlrev_b32 v46, 16, v0\ns_lshl_b32 {T3}, {W}, 22\ns_cmp_eq_u32 {W}, 3\ns_cbranch_scc1 L_pg3")
    P(f"buffer_load_dword v47, v46, {rWS}, {T3} offen sc1\ns_branch L_pgx\nL_pg3:")
    P(f"buffer_load_dword v47, v46, {rW2}, 0 offen\nbuffer_load_dword v47, v46, {rWO}, 0 offen\nbuffer_load_dword v47, v46, {rA}, 0 offen\nL_pgx:")
SFHB, SFO, KH, SFHA, PRIMED, SK12, SXW, SBASE = "s51", "s52", "s53", "s54", "s55", "s72", "s73", "s77"
P(f"s_lshr_b32 {KH}, {W}, 1\ns_lshl_b32 {SK12}, {KH}, 12\ns_mov_b32 {PRIMED}, 0")
P(f"s_lshl_b32 {T3}, {TB2}, 1\ns_and_b32 {T2}, {W}, 1\ns_add_u32 {T3}, {T3}, {T2}")
P(f"s_mul_i32 {SBASE}, {T3}, {TB_STRIDE}\ns_add_u32 {SBASE}, {SBASE}, 0x{WS_HA:x}")
if OPT["ahot"]:
    P(f"s_mov_b32 {SBASE}, 0x{WS_DIAG + 0x40000:x}")
P(f"s_lshl_b32 {SFHB}, {T3}, {7 + FX}\ns_add_u32 {SFHA}, {SFHB}, 0x{WS_FLAGS + FL_HA * LN:x}\ns_add_u32 s44, {SFHB}, 0x{WS_FLAGS + FL_H1 * LN:x}\ns_add_u32 {SFHB}, {SFHB}, 0x{WS_FLAGS + FL_HB * LN:x}")
P(f"s_lshr_b32 {SFO}, {TB2}, 1\ns_lshl_b32 {SFO}, {SFO}, {7 + FX}\ns_add_u32 {SFO}, {SFO}, 0x{WS_FLAGS + FL_O * LN:x}")
P(f"s_lshl_b32 {SXW}, {T2}, 13\ns_lshl_b32 {T3}, {KH}, 14\ns_add_u32 {SXW}, {SXW}, {T3}\ns_add_u32 {SXW}, {SXW}, 0x{L_XY:x}")
SXS = "s15"
P(f"s_cmp_eq_u32 {KH}, 0")
sel2(SXS, (L_XS0 - L_XY) & 0xffffffff, L_XS1 - L_XY - 16 * K)
if OPT["tlb"] == 2:
    P(f"buffer_load_dword v47, v0, {rWS}, {SBASE} offen sc1")
P(f"s_mov_b32 s14, {RHOA}")
for g in list(range(8)) + list(range(11, 15)):
    r = f"s{36 + g}"
    P(f"s_add_u32 {r}, {RHO2 if g < 8 else RHOS}, {g % 11}\ns_and_b32 {r}, {r}, {7 if g < 8 else 3}\ns_lshl_b32 {r}, {r}, 13\ns_add_u32 {r}, {r}, {SBASE}")
    if g >= 11:
        P(f"s_add_u32 {r}, {r}, {86 * K}")
P(f"s_add_u32 s14, s14, {KH}")
for n in range(16, 22):
    r = f"s{8 + n - 16}"
    P(f"s_add_u32 {r}, s14, {2 * (n - 16)}\ns_cmp_ge_u32 {r}, 11\ns_cselect_b32 {T3}, 11, 0\ns_sub_u32 {r}, {r}, {T3}")
    P(f"s_sub_u32 {r}, {r}, {KH}\ns_add_u32 {r}, {r}, {32 - 2 * (n % 2)}\ns_lshl_b32 {r}, {r}, 11\ns_add_u32 {r}, {r}, {SBASE}")
P(f"s_mov_b32 s74, 0x{f2u(1e-6):x}\ns_mov_b32 s75, 0x{f2u(1e-6):x}")
P(f"s_mov_b32 {T2}, 0x3f803f80")
P("v_mov_b32 v40, 0\nv_mov_b32 v41, 0\nv_mov_b32 v42, 0\nv_mov_b32 v43, 0")
stamp(0, "pre")
P("s_waitcnt vmcnt(2)" if OPT["touch"] == 9 else "s_waitcnt vmcnt(0)")
stamp(0, "xin")
for n in range(8):
    P(f"v_dot2_f32_bf16 {v(40 + (n & 1))}, {v(32 + n)}, {T2}, {v(40 + (n & 1))}")
    P(f"v_dot2_f32_bf16 {v(42 + (n & 1))}, {v(32 + n)}, {v(32 + n)}, {v(42 + (n & 1))}")
P("s_nop 2")
P("v_add_f32 v40, v40, v41\nv_add_f32 v42, v42, v43")
for r in (8, 4, 2, 1):
    P(f"v_add_f32_dpp v40, v40, v40 row_ror:{r} row_mask:0xf bank_mask:0xf")
    P(f"v_add_f32_dpp v42, v42, v42 row_ror:{r} row_mask:0xf bank_mask:0xf")
P("v_mov_b32 v41, v40\nv_mov_b32 v43, v42")
P("v_permlane16_swap_b32 v40, v41\nv_permlane16_swap_b32 v42, v43")
P("v_add_f32 v40, v40, v41\nv_add_f32 v42, v42, v43")
P(f"v_mul_f32 v40, 0x{f2u(1 / 512):x}, v40\nv_mul_f32 v42, 0x{f2u(1 / 512):x}, v42")
P("v_fma_f32 v42, -v40, v40, v42\nv_max_f32 v42, 0, v42")
P(f"v_cvt_pk_bf16_f32 v42, v42, v42\nv_and_b32 v42, 0xffff0000, v42\nv_add_f32 v42, 0x{f2u(1e-5):x}, v42")
P("v_cvt_pk_bf16_f32 v42, v42, v42\nv_and_b32 v42, 0xffff0000, v42\nv_sqrt_f32 v42, v42")
P("v_cvt_pk_bf16_f32 v44, v40, v42")
P("v_lshlrev_b32 v28, 3, v26")
P(f"s_lshl_b32 {T0}, {T0}, 3\ns_add_u32 {T0}, {T0}, 0x{WS_STATS:x}")
P("s_waitcnt lgkmcnt(0)")
P(f"s_add_u32 {NONCE}, {NONCE}, 1")
XTAG = "s78"
P(f"s_getreg_b32 {XTAG}, hwreg(HW_REG_XCC_ID, 0, 4)\ns_lshl_b32 {XTAG}, {XTAG}, 28\ns_xor_b32 {XTAG}, {XTAG}, {NONCE}")
P(f"v_mov_b32 v45, {XTAG}\nv_mov_b32 v5, {NONCE}")
P(f"s_mov_b32 s56, {T0}\nv_mov_b32 v2, v44\nv_mov_b32 v3, v45\nv_mov_b32 v25, v28")
P("v_lshlrev_b32 v26, 3, v27\nv_lshlrev_b32 v27, 3, v0")
P(f"s_lshl_b32 {T0}, {W}, 8\ns_add_u32 {T0}, {T0}, 0x{L_CSX:x}")
P(f"v_lshl_add_u32 v28, v0, 2, {T0}")
P(f"v_add_u32 v29, 0x{L_EX1:x}, v27")
GLOAD = f"buffer_load_dwordx2 {v(GR, 2)}, v26, {rWS}, {SG} offen sc1"
CSIG, CPK, CPC = 30, 31, 3
P(f"s_lshl_b32 {T0}, {W}, 2\ns_add_u32 {T0}, {T0}, 0x{L_PRG:x}\nv_mov_b32 {v(CSIG)}, {T0}")
P(f"v_and_b32 {v(CPK)}, 3, v0\nv_lshlrev_b32 {v(CPK)}, 2, {v(CPK)}\nv_add_u32 {v(CPK)}, 0x{L_RDY:x}, {v(CPK)}")
stamp(0, "stats")


def p1_x(st, t):
    if OPT["nocomp"]:
        return
    sl = st % 3
    P(f"ds_read_b128 {v(XR + 16 * st + 4 * t, 4)}, {v(XA + t + (4 if sl == 2 else 0))} offset:{(sl % 2) * 32 * K}")
    lg.add(("x", st, t))


def p1_w(st, t, b):
    if OPT["nocomp"]:
        return
    sl = st % 3
    a = WA + (b & 1) + (2 if sl == 2 else 0)
    off = (sl % 2) * 32 * K + 16 * K + (b >> 1) * 8 * K + t * 2048
    f = WR + ((t & 1) * 4 + b) * 4
    tr(f, a, off, None)
    tr(f + 2, a, off + 512, ("w", st, t, b))


def p1_m(st, t, b):
    if OPT["nocomp"]:
        return
    lg.wait(("w", st, t, b))
    assert ("x", st, t) not in lg.q
    f = WR + ((t & 1) * 4 + b) * 4
    c = "0" if (st == 0 and t == 0) else v(ACC + 16 * b, 16)
    P(f"v_mfma_f32_32x32x16_bf16 {v(ACC + 16 * b, 16)}, {v(f, 4)}, {v(XR + 16 * st + 4 * t, 4)}, {c}")
    r = OPT.get(f"r{st}", 0) or OPT["rall"]
    if r:
        P(f"s_nop {r - 1}")


P("s_barrier ; b0")
stamp(0, "b0")
if OPT["p2only"]:
    P("s_branch L_c2")
p1_x(0, 0)
for b in range(4):
    p1_w(0, 0, b)
P("s_mov_b32 exec_lo, 1\ns_mov_b32 exec_hi, 1")
P(f"buffer_store_dwordx2 v[2:3], v25, {rWS}, s56 offen sc1")
P("s_mov_b64 exec, -1")
P(f"v_add_u32 {v(WA + 5)}, 0x{88 * K:x}, {v(WA + 1)}")
LOG2E = 1.4426950408889634
C1 = -2 * LOG2E * math.sqrt(2 / math.pi)
C2 = C1 * 0.044715
GCHK = f"v_xor_b32 v27, {XTAG}, {v(GR + 1)}\nv_lshlrev_b32 v28, 4, v27\nv_cmp_ne_u32 vcc, 0, v28"
EXR = (22, 26)
side1 = [f"v_cmp_ne_u32 vcc, 0, v27", f"s_mov_b32 {T0}, 0x01000100", f"v_perm_b32 {v(XE)}, {v(GR)}, {v(GR)}, {T0}",
         "s_or_b32 s57, vcc_lo, vcc_hi", f"v_xor_b32 {v(XE)}, 0x80008000, {v(XE)}", f"v_lshrrev_b32 {v(XE + 1)}, 16, {v(GR)}",
         f"v_and_b32 {v(SD)}, 0xffff0000, {v(GR)}", f"v_rcp_f32 {v(RS)}, {v(SD)}", f"v_mov_b32 {v(SD + 1)}, {v(SD)}",
         f"v_mul_f32 {v(K1)}, 0x{f2u(C1):x}, {v(RS)}", f"v_mul_f32 {v(K2)}, {v(RS)}, {v(RS)}", f"v_mul_f32 {v(RL)}, 0x{f2u(LOG2E):x}, {v(RS)}",
         f"v_mul_f32 {v(K2)}, {v(K2)}, {v(RS)}", f"v_mov_b32 {v(RS + 1)}, {v(RS)}", f"v_mul_f32 {v(K2)}, 0x{f2u(C2):x}, {v(K2)}",
         f"v_mov_b32 {v(K1 + 1)}, {v(K1)}", f"v_mov_b32 {v(RL + 1)}, {v(RL)}", f"v_mov_b32 {v(K2 + 1)}, {v(K2)}"]
for st in range(8):
    for t in range(3):
        for b in range(4):
            p1_m(st, t, b)
            if st == 7 and t == OPT["gt"] and b == 0:
                P("s_waitcnt vmcnt(0)")
                P(GCHK)
                retry("L_gr", GLOAD, GCHK)
            elif st == 7 and t >= OPT["gt"]:
                for _ in range(3 if OPT["gt"] == 1 else 6):
                    if side1:
                        P(side1.pop(0))
            if b == 0:
                p1_x(st, t + 1)
            p1_w(st, t + 1, b)
    assert st < 7 or not side1
    p1_m(st, 3, 0)
    if st == 2 + OPT["chl"] + OPT["csd"]:
        P("ds_read_b32 v4, v28")
        lg.add(None)
    p1_m(st, 3, 1)
    if st == 5 + OPT["gl"]:
        P(GLOAD)
    lg.drain()
    if st == 7:
        stamp(0, "c8")
    P(f"s_barrier ; b{st + 1}")
    if st == 6:
        stamp(0, "b7")
    if st < 7:
        p1_x(st + 1, 0)
        p1_w(st + 1, 0, 0)
        p1_w(st + 1, 0, 1)
        p1_m(st, 3, 2)
        if st == 2 + OPT["chl"] + OPT["csd"] and not OPT["nst"] & 2:
            P(f"buffer_store_dwordx2 v[4:5], v27, {rWS}, {SCS2} offen {OPT['saux'] or ''}")
        if st == OPT["touch"] - 1:
            P(f"buffer_load_dword v8, v6, {rW2}, 0 offen\nbuffer_load_dword v9, v7, {rWO}, 0 offen")
        p1_w(st + 1, 0, 2)
        p1_w(st + 1, 0, 3)
        p1_m(st, 3, 3)
    else:
        P(f"v_mov_b32 v27, s57\ns_mov_b64 exec, 1\nds_write_b32 {v(CSIG)}, v27 offset:{L_FAST - L_PRG}\ns_mov_b64 exec, -1")
        lg.add(None)
        for b in range(4):
            P(f"ds_read_b64 {v(WR + 2 * b, 2)}, v29 offset:{512 * b}")
            lg.add(("ex", b))
        p1_m(st, 3, 2)
        p1_m(st, 3, 3)
        for b in range(4):
            lg.wait(("ex", b))
            P(f"v_mfma_f32_32x32x8bf16_1k {v(ACC + 16 * b, 16)}, {v(WR + 2 * b, 2)}, {v(XE, 2)}, {v(ACC + 16 * b, 16)}")
stamp(0, "b8")
if OPT["p1only"]:
    dump(0)
    P("s_endpgm")
    DIAG = 0
stamp(0, "ex1")

TT, UU = 32, 48


SKIP = [False]
def pairs(fmt, a):
    if SKIP[0]:
        return
    for p in range(8):
        P(fmt.format(T=v(TT + 2 * p, 2), A=v(a + 2 * p, 2)))


def singles(fmt):
    if SKIP[0]:
        return
    for r in range(16):
        P(fmt.format(T=v(TT + r)))


def cvt(dst, src=TT):
    for p in range(8):
        P(f"v_cvt_pk_bf16_f32 {v(dst + p)}, {v(src + 2 * p)}, {v(src + 2 * p + 1)}")


def epi_gelu(b, base, k, rdy=None, prev=None, last=True):
    a = ACC + 16 * b
    if rdy:
        peek(CPK, 28)
    pairs("v_pk_mul_f32 {T}, {A}, {A}", a)
    pairs("v_pk_fma_f32 {T}, {T}, %s, %s" % (v(K2, 2), v(K1, 2)), a)
    pairs("v_pk_mul_f32 {T}, {T}, {A}", a)
    if prev:
        signal(CSIG, 27, prev, True)
    singles("v_exp_f32 {T}, {T}")
    pairs("v_pk_fma_f32 {T}, {T}, %s, %s" % (v(SD, 2), v(SD, 2)), a)
    singles("v_rcp_f32 {T}, {T}")
    pairs("v_pk_mul_f32 {T}, {T}, {A}", a)
    cvt(a)
    if rdy:
        await_(CPK, 28, rdy, peeked=True)
    for h in range(2 if not OPT["nods"] else 0):
        P(f"ds_write_b128 v26, {v(a + 4 * h, 4)} offset:{base - L_HS + (2 * b + h) * 4096}")
        lg.add(None)
    if last:
        signal(CSIG, 27, k, True)


def epi_phi(b, dst):
    a = ACC + 16 * b
    pairs("v_pk_mul_f32 {T}, {A}, %s" % v(RL, 2), a)
    singles("v_exp_f32 {T}, {T}")
    pairs("v_pk_fma_f32 {A}, {A}, %s, 1.0 op_sel_hi:[1,1,0]" % v(RS, 2), a)
    for r in range(16):
        P(f"v_med3_f32 {v(TT + r)}, {v(TT + r)}, {v(a + r)}, 1.0")
    pairs("v_pk_add_f32 {T}, {T}, %s" % EPS2, a)
    cvt(dst)


def epi_lin(b, dst):
    a = ACC + 16 * b
    pairs("v_pk_mul_f32 {T}, {A}, %s" % v(RS, 2), a)
    cvt(dst)


AY, AS, AR = 64, 192, 128
RG = OPT["ring"]
NST = 30
WB, VA, FD, VF, XW, CPC2, TA, TB_, TC, XW2 = 96, 102, 104, 106, 108, 112, 113, 114, 115, 116
FHB = f"buffer_load_dword {v(FD)}, {v(VF)}, {rWS}, {SFHB} offen sc1"
FHA = f"buffer_load_dword {v(FD)}, {v(VF)}, {rWS}, {SFHA} offen sc1"
FH1 = f"buffer_load_dword {v(FD)}, {v(VF)}, {rWS}, s44 offen sc1"
FO = f"buffer_load_dword {v(FD + 1)}, {v(VF + 1)}, {rWS}, {SFO} offen sc1"
HBC = f"v_cmp_ne_u32 vcc, {NONCE}, {v(FD)}"
vm = Q("vmcnt", 63)


def aload(n, ks):
    if n >= NST or (OPT["noa"] and n >= RG):
        return
    P(f"buffer_load_dwordx4 {v(AR + 8 * (n % RG) + 4 * ks, 4)}, {v(VA + (n % 2 if n >= 16 else n >> 3))}, {rWS}, s{36 + (n & 7) if n < 16 else (8 + n - 16 if n < 22 else 36 + (n >> 1))} offen offset:{1024 * ks} {OPT['aaux'] or ''}")
    vm.add(("a", n, ks))


PRM = OPT["prime"]
def prime():
    for n in range(PRM):
        aload(n, 0)
        aload(n, 1)


nchk = [0]
def checkpoint():
    if not OPT["early"]:
        return
    nchk[0] += 1
    l = f"L_ck{nchk[0]}"
    P(f"s_getreg_b32 {T3}, hwreg(HW_REG_IB_STS, 0, 4)\ns_or_b32 {T3}, {T3}, {PRIMED}\ns_cbranch_scc1 {l}_x")
    P(f"s_waitcnt vmcnt(0)\n{HBC}\ns_cbranch_vccnz {l}_r")
    prime()
    P(f"s_mov_b32 {PRIMED}, 1")
    P.label(l + "_x")
    cold.append(f"{l}_r:\n{FHB}\ns_branch {l}_x")


def setup2():
    global P
    keep, P = P, Prog()
    P(f"v_and_b32 {v(VF + 1)}, 31, v0\nv_lshlrev_b32 {v(VF + 1)}, {2 + FX}, {v(VF + 1)}\nv_and_b32 {v(VF)}, {28 << FX}, {v(VF + 1)}")
    waddr(WB, TA, TB_, 2)
    P(f"v_add_u32 {v(WB)}, {SK12}, {v(WB)}\nv_xor_b32 {v(WB + 1)}, 64, {v(WB)}")
    for k in (1, 2):
        P(f"v_add_u32 {v(WB + 2 * k)}, 0x{64 * K * k:x}, {v(WB)}\nv_add_u32 {v(WB + 2 * k + 1)}, 0x{64 * K * k:x}, {v(WB + 1)}")
    P(f"v_lshrrev_b32 {v(TA)}, 1, {SK12}\nv_add_u32 {v(VA)}, {v(TA)}, {v(VH)}\nv_add_u32 {v(VA + 1)}, 0x1000, {v(VA)}")
    P(f"v_lshrrev_b32 {v(TA)}, 5, v0\nv_and_b32 {v(TB_)}, 7, v0\nv_xor_b32 {v(TA)}, {v(TA)}, {v(TB_)}\nv_lshlrev_b32 {v(TA)}, 4, {v(TA)}")
    P(f"v_and_b32 {v(TB_)}, 31, v0\nv_lshl_or_b32 {v(TA)}, {v(TB_)}, 8, {v(TA)}\nv_add_u32 {v(XW)}, {SXW}, {v(TA)}")
    for q in range(1, 4):
        P(f"v_xor_b32 {v(XW + q)}, {32 * q}, {v(XW)}")
    P(f"v_add_u32 {v(CPC2)}, 16, {v(CPK)}")
    for q in range(4):
        P(f"v_add_u32 {v(XW2 + q)}, {SXS}, {v(XW + q)}")
    lines, P = P.lines, keep
    return lines


def pass2(nb):
    side = setup2()
    n = 32 * nb
    def rd(m):
        if m >= n:
            return
        step, b = divmod(m, nb)
        off = CH(step >> 2) - 88 * K + (step & 3) * 2048
        f = WR + (m % 8) * 4
        tr(f, WA + 4 + b, off, None)
        tr(f + 2, WA + 4 + b, off + 512, ("p2", m))
    for m in range(7):
        rd(m)
    for m in range(n):
        step, b = divmod(m, nb)
        lg.wait(("p2", m))
        c = "0" if step == 0 else v(ACC + 16 * b, 16)
        P(f"v_mfma_f32_32x32x16_bf16 {v(ACC + 16 * b, 16)}, {v(WR + (m % 8) * 4, 4)}, {v(XR + 4 * step, 4)}, {c}")
        rd(m + 7)
        for _ in range(2 if nb == 1 else 1):
            if side and m >= 2 and not OPT["noside"]:
                P(side.pop(0))
        if m == max(6, n - OPT["smp"]) and not OPT["nosamp"]:
            P(FHB)
        if m == 5 and OPT["tlb"] == 1:
            P(f"buffer_load_dword {v(TC)}, {v(VF)}, {rWS}, {SBASE} offen sc1")
        if m == n - 6:
            if OPT["fill"] == 4:
                P("s_waitcnt vmcnt(0)" if OPT["nosamp"] else "s_waitcnt vmcnt(1)")
            for bb in range(nb):
                lg.room()
                P(f"ds_read_b64 {v(12 + 2 * bb, 2)}, v29 offset:{L_EX2 - L_EX1 + 512 * bb}")
                lg.add(("ex2", bb))
    while side:
        P(side.pop(0))
    checkpoint()
    lg.drain()
    signal(CSIG, 27, 8)
    for b in range(nb):
        P(f"v_mfma_f32_32x32x8bf16_1k {v(ACC + 16 * b, 16)}, {v(12 + 2 * b, 2)}, {v(XE, 2)}, {v(ACC + 16 * b, 16)}")


P(f"s_cmp_eq_u32 {TYPE}, 0")
P("s_cbranch_scc0 L_cB")
P(f"v_and_b32 v26, 31, v0\nv_lshrrev_b32 v27, 5, v0\ns_lshl_b32 {T0}, {W}, 5")
P(f"v_add_u32 v26, {T0}, v26\nv_mul_u32_u24 v26, {TROW}, v26\nv_lshl_add_u32 v26, v27, 3, v26\nv_add_u32 v26, 0x{TBUF:x}, v26")
for b in range(4):
    u = UU + 8 * (b & 1)
    SKIP[0] = bool(OPT["hack"] & 16) and b == 1
    (epi_phi if b < 2 else epi_lin)(b, u)
    SKIP[0] = False
    for q in range(4):
        P(f"ds_write_b64 v26, {v(u + 2 * q, 2)} offset:{64 * b + 16 * q}")
    if OPT["fill"] == 4 and b == OPT["fo"]:
        P(f"s_lshl2_add_u32 {T1}, {I_}, {W}\ns_mul_i32 {T1}, {T1}, {TB_STRIDE}\ns_lshl_b32 {T2}, {C_}, 12\ns_add_u32 {T1}, {T1}, {T2}\ns_add_u32 {T1}, {T1}, 0x{WS_HA + 86 * K:x}")
        P(f"v_lshlrev_b32 v16, 7, v0\nv_and_b32 v16, 0xfff, v16\nbuffer_load_dword v18, v16, {rWS}, {T1} offen")
    if "st0" in OPT:
        stamp(0, f"g{b}")
P(f"v_lshrrev_b32 v26, 2, v0\nv_mul_u32_u24 v26, {TROW}, v26\nv_and_b32 v27, 3, v0\nv_lshl_add_u32 v26, v27, 3, v26")
P(f"s_add_u32 {T0}, {T0}, 0x{TBUF:x}")
P(f"v_add_u32 v26, {T0}, v26")
for r in range(4):
    P(f"v_mov_b32 {v(104 + r)}, 0x3f803f80")
P(f"s_lshl_b32 {T0}, {C_}, 4\ns_add_u32 {T0}, {T0}, {I_}\ns_mul_i32 {T0}, {T0}, {KVP_STR}\ns_add_u32 {T0}, {T0}, 0x{WS_KVP:x}")
P(f"s_lshl_b32 {T1}, {W}, 10\ns_add_u32 {T1}, {T1}, {T0}")
P(f"s_lshl_b32 {T2}, {W}, 6\ns_add_u32 {T2}, {T2}, {T0}\ns_add_u32 {T2}, {T2}, 4096")
signal(CSIG, 27, 1, True)
P(f"v_add_u32 {v(CPC)}, 16, {v(CPK)}")
lg.q = []
await_(CPC, 27, 1)
stamp(0, "e1")
def kvm(mm):
    lg.wait(("kv", mm, 1))
    P(f"v_mfma_f32_16x16x32_bf16 v[96:99], {v(ACC + 8 * mm, 4)}, {v(ACC + 8 * mm + 4, 4)}, {'0' if mm == 0 else 'v[96:99]'}")
    P(f"v_mfma_f32_16x16x32_bf16 v[100:103], {v(ACC + 8 * mm, 4)}, v[104:107], {'0' if mm == 0 else 'v[100:103]'}")
for m in range(4):
    for o in range(2):
        f = ACC + 8 * m + 4 * o
        tr(f, 26, m * 32 * TROW + 128 * o, None)
        tr(f + 2, 26, (m * 32 + 16) * TROW + 128 * o, ("kv", m, o))
    if m >= 2:
        kvm(m - 2)
kvm(2)
kvm(3)
P(f"v_mov_b32 v104, {NONCE}")
for h in range(4):
    P(f"s_mov_b32 {T0}, 0x0706050{h}")
    P(f"v_perm_b32 {v(96 + h)}, {v(96 + h)}, v104, {T0}\nv_perm_b32 {v(100 + h)}, {v(100 + h)}, v104, {T0}")
P(f"buffer_store_dwordx4 v[96:99], {v(VH)}, {rWS}, {T1} offen sc1")
P("s_mov_b32 exec_lo, 0x00010001\ns_mov_b32 exec_hi, 0x00010001")
P(f"buffer_store_dwordx4 v[100:103], v0, {rWS}, {T2} offen sc1")
P("s_mov_b64 exec, -1")
signal(CSIG, 27, 2)
stamp(0, "kv")
await_(CPK, 27, 1)
stamp(0, "b10")
P("s_branch L_p2")
P.label("L_cB")
lg.q = []
P(f"s_lshl_b32 {T0}, {W}, 10\ns_add_u32 {T0}, {T0}, 0x{L_HS:x}")
P(f"v_add_u32 v26, {T0}, {v(VH)}")
if OPT["fill"] == 4:
    hblock2(T1)
    P(f"s_lshl2_add_u32 {T0}, {I_}, {W}\ns_mul_i32 {T0}, {T0}, {TB_STRIDE}\ns_add_u32 {T0}, {T0}, 0x{WS_HA:x}")
    P(f"s_lshl_b32 {T1}, {T1}, 11\ns_add_u32 {T1}, {T1}, {T0}\ns_lshl_b32 {T2}, {C_}, 13\ns_add_u32 {T0}, {T0}, {T2}")
    P(f"s_cmp_lt_u32 {C_}, 3")
    sel2(T2, 0xfff, 0x7ff)
    P(f"v_lshlrev_b32 v16, 7, v0\nv_and_b32 v17, {T2}, v16")
for b in range(4):
    SKIP[0] = bool(OPT["hack"] & 4) and b == 3
    epi_gelu(b, L_HS, b + 1, prev=b, last=(b == 3))
    SKIP[0] = False
    if OPT["fill"] == 4 and b == OPT["f1"]:
        P(f"buffer_load_dword v18, v16, {rWS}, {T0} offen")
    if OPT["fill"] == 4 and b == OPT["f2"]:
        P(f"buffer_load_dword v19, v17, {rWS}, {T1} offen")
    if "st0" in OPT:
        stamp(0, f"g{b}")
stamp(0, "e1")
await_(CPK, 28, 1)
stamp(0, "b10")
P(f"s_cmp_lt_u32 {C_}, 3")
P("s_cbranch_scc1 L_p2")
lg.q = [None] * 3
pass2(1)
stamp(0, "p2")
epi_gelu(0, L_PQ, 10, 2)
stamp(0, "e2")
P("s_branch L_c2")
P.label("L_p2")
lg.q = [None] * 3
pass2(2)
stamp(0, "p2")
P(f"s_cmp_eq_u32 {TYPE}, 0")
P("s_cbranch_scc0 L_cB2")
P(f"s_lshl_b32 {T0}, {W}, 12\ns_add_u32 {T0}, {T0}, 0x{L_PQ:x}")
P(f"v_add_u32 v26, {T0}, {v(VH)}")
lg.q = [None]
peek(CPC2, 28)
for b in range(2):
    SKIP[0] = bool(OPT["hack"] & 2) and b == 0
    epi_phi(b, UU + 8 * b)
    SKIP[0] = False
    if b == 0:
        await_(CPC2, 28, 2, peeked=True)
    for h in range(2):
        P(f"ds_write_b128 v26, {v(UU + 8 * b + 4 * h, 4)} offset:{(2 * b + h) * 1024}")
    if b == 0:
        checkpoint()
signal(CSIG, 27, 10, True)
stamp(0, "e2")
P("s_branch L_c2")
P.label("L_cB2")
lg.q = [None]
SKIP[0] = bool(OPT["hack"] & 1)
epi_gelu(0, L_PQ, 9, 2, last=False)
SKIP[0] = False
checkpoint()
epi_gelu(1, L_PQ, 10, prev=9)
stamp(0, "e2")
P.label("L_c2")
stamp(0, "c2")
stamp(0, "setup")
if OPT["quiet"]:
    dump(0)
    P("s_endpgm")
if OPT["nosamp"]:
    P(FHB)
P(f"s_cmp_lg_u32 {PRIMED}, 0\ns_cbranch_scc1 L_primed")
if not OPT["p2only"]:
    P(f"s_waitcnt vmcnt(0)\n{HBC}")
    retry("L_hb", FHB, HBC)
stamp(0, "hb_seen")
prime()
P.label("L_primed")
vm.q = [("a", n, ks) for n in range(PRM) for ks in range(2)]
gate = {8: OPT["cH1"], 16: OPT["cHA"], 22: OPT["cO"]}
nxt = [PRM, 0]
def aissue(n, k4):
    while nxt[0] < NST:
        nn, ks = nxt
        if nn in gate and (n, k4) < (gate[nn], 1):
            return
        if nn - RG > n or (nn - RG == n and k4 < 2 * ks + 1):
            return
        aload(nn, ks)
        nxt[:] = [nn, 1] if ks == 0 else [nn + 1, 0]
        return


def dec(m):
    if OPT["tl"] and m >= 4 * NST - 8:
        r = m - (4 * NST - 8)
        return NST - 2 + ((r >> 1) & 1), r & 1, r >> 2
    return m >> 2, (m >> 1) & 1, m & 1


def wrd(m):
    if m >= 4 * NST:
        return
    n, ks, ct = dec(m)
    ev = {OPT["gx"]: 4, 76: 5, 88: 6}
    if m + 5 in ev:
        peek(CPK, 20)
    if m == OPT["g2"]:
        signal(CSIG, 21, 12)
    if m == 72:
        signal(CSIG, 21, 13)
    if m == 93:
        peek(CPC2, 19)
    if m in ev:
        if m == OPT["gx"]:
            signal(CSIG, 21, 11)
        await_(CPK, 20, ev[m], peeked=True)
    so = slot_of(2 * n) + ks * 2048
    k = so // (64 * K)
    f = WR + (m % 8) * 4
    if OPT["now"] and m >= 8:
        return
    tr(f, WB + 2 * k + ct, so - 64 * K * k, None)
    tr(f + 2, WB + 2 * k + ct, so - 64 * K * k + 1024, ("w2", m))


def xwrite(acc, base, ct, q):
    lg.room()
    P(f"ds_write_b128 {v(base + q)}, {v(acc + 16 * ct + 4 * q, 4)} offset:{128 * ct}")
    lg.add(("xw", acc))


lg.q = []
stamp(0, "primed")
await_(CPK, 20, 3)
for m in range(7):
    wrd(m)
for n in range(NST):
    acc = AY if n < 22 else AS
    if n == 21:
        P(f"s_cmp_eq_u32 {KH}, 0")
    for k4 in range(4):
        m = 4 * n + k4
        na, ks, ct = dec(m)
        w = vm.need(("a", na, ks)) + " " + (lg.need(("w2", m | 1)) if OPT["w2"] else "") + lg.need(("w2", m))
        if w.strip():
            P("s_waitcnt " + w.strip())
        c = "0" if (n in (0, 22) and ks == 0) else v(acc + 16 * ct, 16)
        if n == 21:
            P(f"s_cbranch_scc0 L_null{k4}")
        P(f"v_mfma_f32_32x32x16_bf16 {v(acc + 16 * ct, 16)}, {v(WR + (m % 8) * 4, 4)}, {v(AR + 8 * (na % RG) + 4 * ks, 4)}, {c}")
        if OPT["tl"] and m >= 4 * NST - 2:
            for q in range(2):
                xwrite(AS, XW2, 0, 2 * (m & 1) + q)
        if n == 21:
            P.label(f"L_null{k4}")
        if k4 == 1:
            for nn, ld, fd, nm in ((8, FH1, FD, "h1"), (16, FHA, FD, "ha"), (22, FO, FD + 1, "o")):
                if n == max(0, gate[nn] - OPT["fl"]) and gate[nn] > 0:
                    P(ld)
                    vm.add("f" + nm)
                if n == gate[nn]:
                    vm.wait("f" + nm)
                    P(f"v_cmp_ne_u32 vcc, {NONCE}, {v(fd)}")
                    retry("L_" + nm, ld, f"v_cmp_ne_u32 vcc, {NONCE}, {v(fd)}")
                    stamp(0, nm + "_seen")
        aissue(n, k4)
        assert nxt[0] > n + 1 or nxt[0] == NST or (nxt[0] == n + 1 and k4 < 3), (n, k4, nxt)
        wrd(m + 7)
        if m == 91:
            await_(CPC2, 19, 13, peeked=True)
        if m >= 91 and (m - 91) % OPT["ys"] == 0 and (m - 91) // OPT["ys"] < 8:
            xwrite(AY, XW, ((m - 91) // OPT["ys"]) >> 2, ((m - 91) // OPT["ys"]) & 3)
        if m == 91 + 7 * OPT["ys"] + OPT["dy"]:
            lg.wait(("xw", AY))
            P("s_barrier ; dY")
    if "st0" in OPT:
        stamp(0, f"n{n}")
stamp(0, "sdone")
for ct in range(1 if OPT["tl"] else 0, 2):
    for q in range(4):
        xwrite(AS, XW2, ct, q)
P("s_setprio 0")
lg.drain()
P("s_barrier ; dS")
P(f"s_or_b32 {T0}, s2, {W}\ns_cmp_eq_u32 {T0}, 0")
P("s_cbranch_scc0 L_cend")
flag_store(T0)
P.label("L_cend")
dump(0)
P("s_endpgm")
flush_cold()
P.label("L_codeend")

body = P.finish()
hdr = f"""; out = x + (linear_attention(LN x) wo) * silu(gelu(LN x w1 + b1) w2 + b2), one launch, 256 workgroups (one per CU).
; Phase 1: workgroup (row block i of 128 tokens, column j).  Even j: k,v then q of four heads; odd j: 5-6 blocks of 32
;   hidden features.  x stays in registers as B fragments; LayerNorm is folded in exactly: the GEMM runs on raw x, one
;   read straight from d_ws behind per-producer flags; written through, so any placement works.  Flags go through the
;   die's L2 only when the producer has seen that its whole row block shares that die, else they are written through too.
; @launch grid=(256,1,1) block=(512,1,1) lds=163840
.amdgcn_target "amdgcn-amd-amdhsa--gfx950"
.text
.globl {KNAME}
.p2align 8
.type {KNAME},@function
{KNAME}:
"""
tail = f"""
.section .rodata,"a"
.p2align 6
.amdhsa_kernel {KNAME}
  .amdhsa_next_free_vgpr 256
  .amdhsa_next_free_sgpr 102
  .amdhsa_accum_offset 256
  .amdhsa_group_segment_fixed_size 0
  .amdhsa_kernarg_size 88
  .amdhsa_user_sgpr_count 2
  .amdhsa_user_sgpr_kernarg_segment_ptr 1
  .amdhsa_system_sgpr_workgroup_id_x 1
  .amdhsa_float_denorm_mode_32 3
.end_amdhsa_kernel
"""
if OPT["diag"]:
    tail += f"; STAMPS0 {' '.join(slots[0])}\n"
sys.stdout.write(hdr + body + tail)
sys.stderr.write(f"pads {P.npad}\n")
```

```python
import sys, os, struct, math
from asmlib import Prog, v, s

KNAME = "recurrent_scan__linear_attn_block__dense_activation_gelu__prompt_kernel"
OPT = dict(diag=0, outaux="sc1", map1=81, spin=16, codepf=1, ldfirst=1, prio=1,
           nA9=3, nA10=7, nB10=8, mf=56, cprio=3, gx=36, n6=2, n7=1, kA=12, lag=8, sp=0, sp0=0, nost=0, slp=2, kvw=0, gprio=3, sA=4, xB=8, fast=1, nt1=2, trow=272, nosamp=0, e1B=4, iB2=2, e1A=20, gd=16, lB2=5, lB1=0, cw=1, tlb=0, fill=0, f1=0, f2=9, fo=0, wsoff=0, wprio=3, l1=9, fence=1, inl=1, w0=4, w1=6, w0c=4, quiet=0, nosig=0, noside=0, nt2=2, wb=0, lB=0, hk1=0, lA0=8, lA=0, kq=2, wbj=0, kA0=12, kA1=8, kA2=0, rotx=1, spx=0, pB=10, iB=0, ring=4, nods=0, lsl=0, yB=12, zB=4, yB1=2, zB1=4, aaux="sc1", ahot=0, g2=52, rot2=1, pace=0, pace1=0, dy=2, ys=1, w2=1, p2only=0, plain=0, stouch=0, nst=0, saux="sc1", csprio=3, early=0, map2=81, smp=28, noa=0, now=0, la=7, touch=0, ltouch=1, gl=0, eb=1, chl=0, preA=0, tl=1, lateA=-1, lateB=-1, lsel=0, hack=0, rv=0, s1h=0, late=6, lw=0, r0=0, r1=0, r2=0, rall=0, chx=0, s1late=0, nostat=0, csd=0, gt=2, nar=1, seq=0, kslp=2, fsx=0, pg=0, fprio=1, f6=0, prime=4, cH1=4, cHA=12, cO=18, fl=4, ft=1, exprio=1, stdiag=0, p1only=0, nocomp=0, norot=0, noload=0, nocs=0)
for a in sys.argv[1:]:
    k, val = a.split("=")
    OPT[k] = val if not val.lstrip("-").isdigit() else int(val)
DIAG = OPT["diag"]
assert OPT["gx"] <= 36


def f2u(x):
    return struct.unpack("<I", struct.pack("<f", x))[0]


K = 1024
WS_STATS = 0x1000
FX = 5 if OPT["fsx"] else 0
LN = 128 << FX
WS_FLAGS = 0xA00000 if FX else 0x8000
FL_HB, FL_HA, FL_O, FL_H1 = 0, 64, 128, 192
WS_KVP = 0x10000
KVP_STR = 4352
WS_CS = 0xA0000
WS_HA = 0x140000 + OPT["wsoff"] * 0x100000
TB_STRIDE = 118 * K
WS_DIAG = 0x900000
WS_SIZE = (0xB00000 if FX else 0xA00000) + OPT["wsoff"] * 0x100000
def CH(q):
    return 96 * K + 8 * K * q if q < 7 else 88 * K
TBUF = 52 * K
TROW = OPT["trow"]
L_EX1 = 152 * K
L_CSX = 156 * K
L_RDY = 154 * K
L_PRG = L_RDY + 16
L_TAG = L_RDY + 32
L_FAST = L_RDY + 48
L_EX2 = 155 * K
L_KT = 156 * K
L_PQ = 72 * K
L_HS = 52 * K
L_XY = 112 * K
L_XS0, L_XS1 = 72 * K, 144 * K
def slot_of(p):
    if p < 18:
        return p * 4 * K
    if p < 34:
        return CH((p - 18) >> 1) + (p & 1) * 4 * K
    if p < 38:
        return 72 * K + (p - 34) * 4 * K
    return slot_of(p - 38)

rX, rP1, rP2, rWS, rW2, rWO, rA, rB = (s(n, 4) for n in (4, 8, 12, 16, 20, 24, 28, 32))
P_X, P_QKV, P_WO, P_W1, P_B1, P_W2, P_B2, P_OUT, P_WS = 36, 38, 40, 44, 46, 48, 50, 52, 56
NONCE, W, I_, J_, C_, TYPE, RHO, TB2, CT, RHO2 = (s(n) for n in range(58, 68))
T0, T1, T2, T3 = (s(n) for n in range(68, 72))

P = Prog()


class Q:
    def __init__(self, name, mx):
        self.q, self.name, self.mx = [], name, mx

    def room(self):
        if len(self.q) >= self.mx:
            P(f"s_waitcnt {self.name}({self.mx - 1})")
            self.q = self.q[len(self.q) - (self.mx - 1):]

    def add(self, tag=None):
        self.q.append(tag)

    def need(self, tag):
        if tag not in self.q:
            return ""
        idx = max(i for i, t in enumerate(self.q) if t == tag)
        n = len(self.q) - 1 - idx
        assert n <= self.mx, (self.name, n)
        self.q = self.q[idx + 1:]
        return f"{self.name}({n})"

    def wait(self, tag):
        t = self.need(tag)
        if t:
            P("s_waitcnt " + t)

    def drain(self, force=False):
        if self.q or force:
            P(f"s_waitcnt {self.name}(0)")
        self.q = []


slots = [{}, {}]
def stamp(role, name):
    if not DIAG:
        return
    want = str(OPT.get(f"st{role}", "")).split(",")
    if want != [""] and name not in want and name not in ("start", "end"):
        return
    n = slots[role].setdefault(name, len(slots[role]))
    if DIAG >= 3:
        assert n < 9, (role, name)
        P(f"{'s_memtime' if DIAG == 4 else 's_memrealtime'} s[{80 + 2 * n}:{81 + 2 * n}]")
        return
    assert n < 16, (role, name)
    P(f"{'s_memtime' if DIAG == 2 else 's_memrealtime'} s[96:97]\ns_waitcnt lgkmcnt(0)\ns_mov_b32 s{80 + n}, s96")


def sreg(r):
    return int(r[2:r.index(":")])


def srd(r, ptr, size):
    n = sreg(r)
    P(f"s_mov_b32 s{n}, s{ptr}\ns_mov_b32 s{n+1}, s{ptr+1}\ns_mov_b32 s{n+2}, 0x{size:x}\ns_mov_b32 s{n+3}, 0x20000")


def sel2(dst, a, b):
    P(f"s_mov_b32 {dst}, 0x{b:x}\ns_cmov_b32 {dst}, 0x{a:x}")


cold = []


def flush_cold():
    for t in cold:
        P(t)
    cold.clear()


def spin_text(lbl, load, check):
    t = f"s_mov_b32 {T3}, {1 << OPT['spin']}\n{lbl}:\n{load}\ns_waitcnt vmcnt(0)\n{check}\n"
    t += f"s_sub_u32 {T3}, {T3}, 1\ns_cbranch_scc1 {lbl}_x\ns_cbranch_vccz {lbl}_x\n"
    n = OPT["kslp"] if lbl in ("L_kv", "L_cs", "L_gr") else OPT["slp"]
    if n:
        t += f"s_sleep {n}\n"
    return t + f"s_branch {lbl}"


def spin(lbl, load, check):
    P(spin_text(lbl, load, check))
    P.label(lbl + "_x")


def retry(lbl, load, check):
    if OPT["inl"]:
        P(f"s_cbranch_vccz {lbl}_x")
        spin(lbl, load, check)
        return
    P(f"s_cbranch_vccnz {lbl}_s")
    P.label(lbl + "_x")
    cold.append(f"{lbl}_s:\n" + spin_text(lbl, load, check))


HX = "row"
FAR = "s46"
nrow = [0]
def row_store(text, nt=0):
    if not OPT["fast"] or nt == 2:
        P(text + " sc1")
        return
    nrow[0] += 1
    l = f"L_r{nrow[0]}"
    P(f"s_cmp_lg_u32 {FAR}, 0\ns_cbranch_scc1 {l}\n{text} {'nt' if nt else ''}\n{l}_x:")
    cold.append(f"{l}:\n{text} sc1\ns_branch {l}_x")


def flag_store(sreg_off, va=26, aux="sc1"):
    P(f"v_mov_b32 {v(va)}, {NONCE}\nv_mov_b32 {v(va+1)}, 0")
    P("s_mov_b64 exec, 1")
    if aux == "row":
        row_store(f"buffer_store_dword {v(va)}, {v(va+1)}, {rWS}, {sreg_off} offen")
    else:
        P(f"buffer_store_dword {v(va)}, {v(va+1)}, {rWS}, {sreg_off} offen {aux}")
    P("s_mov_b64 exec, -1")


def signal(vaddr, vtmp, k, fence=False):
    if fence and OPT["fence"]:
        lg.drain(force=True)
    P(f"v_mov_b32 {v(vtmp)}, {k}\ns_mov_b64 exec, 1\nds_write_b32 {v(vaddr)}, {v(vtmp)}\ns_mov_b64 exec, -1")
    lg.add(None)


nwait = [0]
def peek(vaddr, vd):
    lg.room()
    P(f"ds_read_b32 {v(vd)}, {v(vaddr)}")
    lg.add(("peek", vd))


def await_(vaddr, vd, k, peeked=False):
    nwait[0] += 1
    lbl = f"L_w{nwait[0]}"
    if not peeked:
        peek(vaddr, vd)
    lg.wait(("peek", vd))
    P(f"v_cmp_gt_u32 vcc, {k}, {v(vd)}")
    loop = (f"s_mov_b32 {T3}, {1 << 20}\n{lbl}:\nds_read_b32 {v(vd)}, {v(vaddr)}\ns_sub_u32 {T3}, {T3}, 1\ns_waitcnt lgkmcnt(0)\n"
            f"v_cmp_gt_u32 vcc, {k}, {v(vd)}\ns_cbranch_scc1 {lbl}_x\ns_cbranch_vccnz {lbl}")
    if OPT["inl"]:
        P(f"s_cbranch_vccz {lbl}_x\n{loop}")
    else:
        P(f"s_cbranch_vccnz {lbl}_s")
        cold.append(f"{lbl}_s:\n{loop}\ns_branch {lbl}_x")
    P.label(lbl + "_x")


def hblock2(dst):
    P(f"s_lshl_b32 {dst}, {C_}, 1\ns_add_u32 {T3}, {C_}, 3\ns_min_u32 {dst}, {dst}, {T3}\ns_add_u32 {dst}, {dst}, 32")


def waddr(dst, t1, t2, hshift):
    P(f"v_lshrrev_b32 {v(t1)}, 5, v0\nv_bfe_u32 {v(t2)}, v0, 2, 2\nv_lshl_add_u32 {v(t1)}, {v(t1)}, {hshift}, {v(t2)}")
    P(f"v_lshlrev_b32 {v(dst)}, 7, {v(t1)}")
    P(f"v_bfe_u32 {v(t1)}, v0, 3, 1\nv_lshl_or_b32 {v(dst)}, {v(t1)}, 6, {v(dst)}")
    P(f"v_bfe_u32 {v(t1)}, v0, 4, 1\nv_lshl_or_b32 {v(dst)}, {v(t1)}, 5, {v(dst)}")
    P(f"v_and_b32 {v(t1)}, 3, v0\nv_lshl_or_b32 {v(dst)}, {v(t1)}, 3, {v(dst)}")


def tr(dst, addr, off, tag):
    assert 0 <= off < 65536, off
    lg.room()
    P(f"ds_read_b64_tr_b16 {v(dst, 2)}, {v(addr)} offset:{off}")
    lg.add(tag)


def dump(role):
    if not DIAG:
        return
    P("s_waitcnt vmcnt(0)")
    stamp(role, "end")
    P("s_waitcnt lgkmcnt(0)")
    for n in range(16):
        P(f"v_mov_b32 {v(32 + n)}, {s(80 + n) if DIAG < 3 else (s(80 + 2 * n) if n < 10 else ('s100' if n == 15 else 0))}")
    if role == 1 and DIAG >= 3 and OPT.get("xcc"):
        P(f"s_getreg_b32 {T0}, hwreg(HW_REG_XCC_ID, 0, 4)\ns_min_u32 {T1}, s46, 1\ns_lshl4_add_u32 {T0}, {T1}, {T0}\nv_mov_b32 v45, {T0}")
    P(f"s_lshl_b32 {T0}, s2, 3\ns_add_u32 {T0}, {T0}, {W}\ns_lshl_b32 {T0}, {T0}, 6\ns_add_u32 {T0}, {T0}, 0x{WS_DIAG + role * 256:x}")
    P("v_mov_b32 v26, 0\ns_mov_b64 exec, 1")
    for n in range(4):
        P(f"buffer_store_dwordx4 {v(32 + 4 * n, 4)}, v26, {rWS}, {T0} offen offset:{16 * n}")


P("s_cmp_ge_u32 s2, 256")
P("s_cbranch_scc1 L_end")
if DIAG >= 3:
    P("s_memrealtime s[100:101]")
P("s_load_dwordx16 s[36:51], s[0:1], 0")
P("v_lshrrev_b32 v1, 6, v0")
P("v_and_b32 v0, 63, v0")
P(f"v_lshlrev_b32 v2, 2, v1\nv_add_u32 v2, 0x{L_RDY:x}, v2\nv_mov_b32 v3, 0\nds_write_b32 v2, v3")
if OPT["map1"] == 81:
    P(f"s_lshr_b32 {T3}, s2, 7\nv_readfirstlane_b32 {T2}, v1\ns_and_b32 {I_}, s2, 7\ns_bfe_u32 {J_}, s2, 0x40003")
    if OPT["rv"] == 1:
        P(f"s_and_b32 {T1}, s2, 3\ns_lshl1_add_u32 {I_}, {I_}, {T3}\ns_lshl2_add_u32 {RHO}, {T3}, {T1}")
    else:
        P(f"s_lshl2_add_u32 {RHO}, {T3}, {J_}\ns_and_b32 {T1}, s2, 3\ns_lshl1_add_u32 {I_}, {I_}, {T3}\ns_add_u32 {RHO}, {RHO}, {T1}\ns_and_b32 {RHO}, {RHO}, 7")
    if OPT["rv"] == 2:
        P(f"s_lshr_b32 {T1}, {J_}, 1\ns_sub_u32 {RHO}, {RHO}, {J_}\ns_add_u32 {RHO}, {RHO}, {T1}\ns_and_b32 {RHO}, {RHO}, 7")
elif OPT["map1"] == 24:
    P(f"s_lshr_b32 {T3}, s2, 5\nv_readfirstlane_b32 {T2}, v1\ns_and_b32 {I_}, s2, 4\ns_bfe_u32 {T1}, s2, 0x20003\ns_and_b32 {J_}, s2, 3")
    P(f"s_lshl1_add_u32 {I_}, {I_}, {T3}\ns_lshl2_add_u32 {J_}, {J_}, {T1}\ns_lshl1_add_u32 {RHO}, {T1}, {T3}\ns_and_b32 {T1}, s2, 1\ns_add_u32 {RHO}, {RHO}, {T1}\ns_and_b32 {RHO}, {RHO}, 7")
else:
    P(f"s_lshr_b32 {T3}, s2, 6\nv_readfirstlane_b32 {T2}, v1\ns_and_b32 {I_}, s2, 6\ns_bfe_u32 {T1}, s2, 0x30003\ns_and_b32 {J_}, s2, 1")
    P(f"s_lshl1_add_u32 {I_}, {I_}, {T3}\ns_lshl3_add_u32 {J_}, {J_}, {T1}\ns_lshl1_add_u32 {RHO}, {T3}, {T1}\ns_bfe_u32 {T1}, s2, 0x10001\ns_add_u32 {RHO}, {RHO}, {T1}\ns_and_b32 {RHO}, {RHO}, 7")
P(f"s_and_b32 {W}, {T2}, 3")
def late_args():
    P("s_load_dwordx4 s[52:55], s[0:1], 64")
    P("s_load_dwordx2 s[56:57], s[0:1], 80")
    P(f"s_lshr_b32 {C_}, {J_}, 1\ns_and_b32 {TYPE}, {J_}, 1")
def diag_init():
    if DIAG:
        for n in range(20):
            P(f"s_mov_b32 s{80 + n}, 0")


RHOS, RHOA = "s3", "s47"
def tile2():
    if OPT["map2"] == 42:
        P(f"s_lshr_b32 {T3}, s2, 5\ns_bfe_u32 {TB2}, s2, 0x20001\ns_lshl_b32 {TB2}, {TB2}, 3\ns_add_u32 {TB2}, {TB2}, {T3}")
        P(f"s_bfe_u32 {RHO2}, s2, 0x20003\ns_and_b32 {CT}, s2, 1\ns_lshl_b32 {CT}, {CT}, 2\ns_add_u32 {CT}, {CT}, {RHO2}")
        P(f"s_lshl_b32 {RHO2}, {RHO2}, 1\ns_add_u32 {RHO2}, {RHO2}, {T3}\ns_and_b32 {RHO2}, {RHO2}, 7")
        return
    P(f"s_lshr_b32 {T3}, s2, 6\ns_and_b32 {TB2}, s2, 7\ns_lshl_b32 {TB2}, {TB2}, 2\ns_add_u32 {TB2}, {TB2}, {T3}")
    P(f"s_bfe_u32 {CT}, s2, 0x30003\ns_lshl_b32 {RHO2}, {T3}, 1\ns_add_u32 {RHO2}, {RHO2}, {CT}\ns_and_b32 {RHO2}, {RHO2}, 7")
    P(f"s_add_u32 {RHOS}, {T3}, {CT}\ns_mul_i32 {RHOA}, {T3}, 3\ns_and_b32 {T3}, {CT}, 1\ns_add_u32 {RHOA}, {RHOA}, {T3}")
    if not OPT["rotx"]:
        P(f"s_mov_b32 {RHOS}, {RHO2}\ns_mov_b32 {RHOA}, 0")


P(f"s_cmp_lt_u32 {T2}, 4")
P("s_cbranch_scc1 L_loader")
late_args()
if OPT["codepf"]:
    P("s_getpc_b64 s[32:33]")
    P.label("L_pc")
    P("s_mov_b32 s34, L_codeend-L_pc\ns_mov_b32 s35, 0x20000")
    P(f"s_lshr_b32 {T0}, s2, 3\ns_lshl2_add_u32 {T1}, {T0}, {W}\ns_lshl_b32 {T1}, {T1}, 7\nv_and_b32 v4, 3, v0\nv_lshl_add_u32 v4, v4, 14, {T1}")
    P("buffer_load_dword v31, v4, s[32:35], 0 offen")
P("s_branch L_compute")
P.label("L_loader")

lg = Q("lgkmcnt", 15)
vm = Q("vmcnt", 63)
VX, VP1, VP2, VW2, VBI, LWA, LWB, VL16, SEL, CS, CS2 = 1, 2, 3, 4, 5, 6, 7, 8, 12, 16, 20
RS1, RS32, SX0, SW0, DCOL, SP20, SM, HB0L = (s(n) for n in range(72, 80))
if DIAG < 3:
    diag_init()
    stamp(1, "start")
P("v_lshrrev_b32 v24, 3, v0\nv_and_b32 v25, 7, v0\nv_lshrrev_b32 v26, 4, v0")
P(f"s_and_b32 {T0}, {W}, 1\ns_lshl_b32 {T0}, {T0}, 2\ns_lshl4_add_u32 {SX0}, {I_}, {W}")
P(f"v_add_u32 v27, {T0}, v26\nv_xor_b32 v27, v27, v25\nv_lshlrev_b32 v27, 4, v27\nv_lshl_or_b32 {v(VX)}, v24, 10, v27")
P(f"s_lshl_b32 {SX0}, {SX0}, 13\ns_lshl_b32 {SM}, {W}, 10")
P("s_mov_b32 s6, 0x200000\ns_mov_b32 s7, 0x20000")
SZQ, SZ1 = 512 * 3072, 512 * 2752


def wsetup():
    late_args()
    P(f"s_setprio {OPT['prio']}")
    P(f"s_lshl_b32 {T1}, {C_}, 7\ns_cmp_eq_u32 {TYPE}, 0")
    sel2(RS1, 3072, 2752)
    sel2(DCOL, 1024, 128)
    sel2("s10", SZQ, SZ1)
    P(f"s_cselect_b32 s8, s{P_QKV}, s{P_W1}\ns_cselect_b32 s9, s{P_QKV+1}, s{P_W1+1}\ns_mov_b32 s11, 0x20000")
    P(f"s_cselect_b32 {SW0}, 1024, {T1}\ns_add_u32 {SW0}, {SW0}, {T1}")
    P("v_and_b32 v27, 1, v26\nv_lshlrev_b32 v27, 2, v27\nv_xor_b32 v27, v27, v25\nv_lshlrev_b32 v27, 4, v27")
    P(f"v_mad_u32_u24 {v(VP1)}, v24, {RS1}, v27")
    P(f"s_lshl_b32 {T3}, {W}, 3\ns_mul_i32 {SP20}, {T3}, {RS1}\ns_add_u32 {SW0}, {SW0}, {SP20}\ns_lshl_b32 {RS32}, {RS1}, 5")


def wsetup2():
    hblock2(HB0L)
    P(f"s_lshl_b32 {T0}, {HB0L}, 6\ns_lshl_b32 {T1}, {C_}, 7\ns_cmp_eq_u32 {TYPE}, 0\ns_cselect_b32 {T0}, {T1}, {T0}\ns_add_u32 {SP20}, {SP20}, {T0}")
    P(f"v_lshl_or_b32 {v(VW2)}, v24, 10, v27")


def dma(voff, srdr, soff, tag):
    if OPT["noload"]:
        return
    P(f"buffer_load_dwordx4 {v(voff)}, {srdr}, {soff} offen lds")
    vm.add(tag)


def ks_reg(q):
    P(f"s_add_u32 {T0}, {RHO}, {q}\ns_and_b32 {T0}, {T0}, 7" if q else f"s_mov_b32 {T0}, {RHO}")


def stage(q, mid=None, pre=None):
    sl = (q % 3) * 32 * K
    ks_reg(q)
    P(f"s_lshl_b32 {T1}, {T0}, 7\ns_add_u32 {T1}, {T1}, {SX0}")
    for m in range(4):
        P(f"s_add_u32 m0, {SM}, {sl + 4 * K * m}")
        if m:
            P(f"s_add_u32 {T1}, {T1}, 32768")
        else:
            P(f"s_lshl_b32 {T0}, {T0}, 6")
            if pre:
                pre()
        dma(VX, rX, T1, ("st", q))
    if mid:
        mid()
    P(f"s_mul_i32 {T0}, {T0}, {RS1}\ns_add_u32 {T0}, {T0}, {SW0}")
    for h in range(2):
        if h:
            P(f"s_add_u32 {T0}, {T0}, {RS32}")
        P(f"s_add_u32 m0, {SM}, {sl + 16 * K + 4 * K * h}")
        P(f"s_add_u32 {T1}, {T0}, {DCOL}")
        dma(VP1, rP1, T0, ("st", q))
        P(f"s_add_u32 m0, {SM}, {sl + 24 * K + 4 * K * h}")
        dma(VP1, rP1, T1, ("st", q))


def chunk(q, tag="ch"):
    ks_reg(q)
    P(f"s_lshl_b32 {T0}, {T0}, 6\ns_mul_i32 {T0}, {T0}, {RS1}")
    P(f"s_add_u32 m0, {SM}, {CH(q)}\ns_add_u32 {T0}, {T0}, {SP20}")
    dma(VP1, rP1, T0, tag)
    P(f"s_add_u32 m0, {SM}, {CH(q) + 4 * K}\ns_add_u32 {T0}, {T0}, {RS32}")
    dma(VP1, rP1, T0, tag)


LPA, LPL = "s48", "s49"
LPB, LGB, SCS = "s36", "s37", "s38"
CHR, MID, PQR, D0, D1 = 48, 104, 212, 32, 228


def page_addr(p):
    if p < 32:
        if p % 2 == 0 or page_addr.last != ("b", p >> 1):
            P(f"s_add_u32 {LGB}, {RHO2}, {(p >> 1) & 7}\ns_and_b32 {LGB}, {LGB}, 7\ns_lshl_b32 {LGB}, {LGB}, 17\ns_add_u32 {LGB}, {LGB}, {LPB}")
            page_addr.last = ("b", p >> 1)
        P(f"s_add_u32 {T0}, {LGB}, {(2 * (p >> 4) + (p & 1)) * 32768}")
        return rW2
    elif p < 44:
        P(f"s_add_u32 {T0}, {LPA}, {(p - 32) * 32768}\ns_cmp_ge_u32 {T0}, {LPL}\ns_cselect_b32 {T1}, {11 * 32768}, 0\ns_sub_u32 {T0}, {T0}, {T1}")
        return rW2
    else:
        g, mask, sr, add = (p - 44) >> 2, 3, rWO, 0
    if p % 4 == 0 or page_addr.last != (p >> 2):
        P(f"s_add_u32 {LGB}, {RHOS}, {g}\ns_and_b32 {LGB}, {LGB}, {mask}\ns_lshl_b32 {LGB}, {LGB}, 17\ns_add_u32 {LGB}, {LGB}, {LPB}")
        page_addr.last = p >> 2
    P(f"s_add_u32 {T0}, {LGB}, {(p % 4) * 32768}")
    return sr
page_addr.last = None


def page(p):
    P(f"s_add_u32 m0, {SM}, {slot_of(p)}")
    sr = page_addr(p)
    dma(VW2, sr, T0, ("pg", p))


def stg_reg(p):
    if p < 38:
        return MID + 4 * (p - 18)
    k = p - 38 if p < 43 else p - 39
    return CHR + 4 * k if k < 14 else 184 + 4 * (k - 14)


def lds16(a):
    return f"{v(VL16 + a // (64 * K))}", a % (64 * K)


VP2N = 23
def chunk_stage(q):
    if OPT["nar"] and q == 1:
        P(f"s_cmp_ge_u32 {C_}, 3\ns_cselect_b32 {T0}, {TYPE}, 0\ns_lshl_b32 {T0}, {T0}, 6\ns_not_b32 {T0}, {T0}")
        P(f"v_lshrrev_b32 v27, 3, v0\nv_mul_u32_u24 v27, {RS1}, v27\nv_sub_u32 v28, {v(VP1)}, v27\nv_and_b32 v28, {T0}, v28\nv_add_u32 {v(VP2N)}, v27, v28")
    ks_reg(q)
    P(f"s_lshl_b32 {T0}, {T0}, 6\ns_mul_i32 {T0}, {T0}, {RS1}\ns_add_u32 {T0}, {T0}, {SP20}\ns_add_u32 {T1}, {T0}, {RS32}")
    for h in range(2):
        P(f"buffer_load_dwordx4 {v(CHR + 8 * (q - 1) + 4 * h, 4)}, {v(VP2N if OPT['nar'] else VP1)}, {rP1}, {(T0, T1)[h]} offen")
        vm.add(("ch", q))


def chunk_write(q):
    vm.wait(("ch", q))
    for h in range(2):
        a, off = lds16(CH(q) + 4 * K * h)
        P(f"ds_write_b128 {a}, {v(CHR + 8 * (q - 1) + 4 * h, 4)} offset:{off}")


def page_stage(p):
    sr = page_addr(p)
    P(f"buffer_load_dwordx4 {v(stg_reg(p), 4)}, {v(VW2)}, {sr}, {T0} offen")
    vm.add(("pg", p))


def page_write(p, pace=0):
    so = slot_of(p)
    a, off = (VL16, so) if so < 64 * K else ((VL16 + 1, so - 64 * K) if so < 128 * K else (VL16 + 2, so - 128 * K))
    P(f"ds_write_b128 {v(a)}, {v(stg_reg(p), 4)} offset:{off}")
    if pace:
        P("s_waitcnt lgkmcnt(0)")


stage(0, wsetup, lambda: P(f"s_waitcnt lgkmcnt(0)\ns_mov_b32 s4, s{P_X}\ns_mov_b32 s5, s{P_X+1}"))
if DIAG >= 3:
    diag_init()
    stamp(1, "start")
stamp(1, "st0")
wsetup2()
if not OPT["chl"]:
    chunk(0, "ch0")
P("s_waitcnt lgkmcnt(0)")
P(f"s_load_dword {NONCE}, s[{P_WS}:{P_WS+1}], 0")
srd(rWS, P_WS, WS_SIZE)
srd(rW2, P_W2, 1376 * 1024)
srd(rWO, P_WO, 512 * 1024)
srd(rA, P_B1, 2752)
tile2()
waddr(LWA, 27, 28, 3)
P(f"s_and_b32 {T0}, {W}, 1\ns_lshl_b32 {T0}, {T0}, 6")
P(f"v_xor_b32 {v(LWA)}, {T0}, {v(LWA)}")
P(f"v_add_u32 {v(LWB)}, 0x{CH(0):x}, {v(LWA)}")
P(f"s_lshr_b32 {T0}, {W}, 1\ns_lshl_b32 {T0}, {T0}, 13\ns_add_u32 {T0}, {T0}, {16 * K}")
P(f"v_add_u32 {v(LWA)}, {T0}, {v(LWA)}")
P("v_and_b32 v27, 15, v0\nv_lshlrev_b32 v28, 2, v26\nv_cmp_eq_u32 vcc, v27, v28\nv_mov_b32 v27, 0x3f803f80")
for r in range(4):
    P(f"v_cndmask_b32 {v(SEL + r)}, 0, v27, vcc")
P(f"v_lshl_add_u32 {v(VL16)}, v0, 4, {SM}")
P(f"v_add_u32 {v(VL16+1)}, 0x10000, {v(VL16)}\nv_add_u32 {v(VL16+2)}, 0x20000, {v(VL16)}")
P(f"s_lshl_b32 {LPB}, {W}, 13\ns_lshl_b32 {T1}, {CT}, 7\ns_add_u32 {LPB}, {LPB}, {T1}")
P(f"s_lshl_b32 {LPA}, {RHOA}, 15\ns_add_u32 {LPA}, {LPA}, {LPB}\ns_add_u32 {LPA}, {LPA}, {32 * 32768}\ns_add_u32 {LPL}, {LPB}, {43 * 32768}")
P(f"s_lshl_b32 {SCS}, {J_}, 1\ns_lshr_b32 {T0}, {I_}, 3\ns_add_u32 {SCS}, {SCS}, {T0}\ns_lshl_b32 {SCS}, {SCS}, 2")
P(f"s_add_u32 {SCS}, {SCS}, {W}\ns_lshl_b32 {SCS}, {SCS}, 12\ns_add_u32 {SCS}, {SCS}, 0x{WS_CS:x}")
P(f"s_lshl_b32 {T0}, {C_}, 2\ns_add_u32 {T0}, {T0}, {W}\ns_lshl_b32 {T0}, {T0}, 6")
P(f"s_and_b32 {T1}, {W}, 1\ns_add_u32 {T1}, {T1}, {HB0L}\ns_lshl_b32 {T1}, {T1}, 6")
P(f"s_cmp_eq_u32 {TYPE}, 0\ns_cselect_b32 {T0}, 0x100000, {T0}\ns_cselect_b32 {T1}, 0x100000, {T1}")
P(f"v_mov_b32 v27, {T0}\nv_mov_b32 v28, {T1}\nv_cmp_gt_u32 vcc, 32, v0\nv_and_b32 v29, 31, v0")
P(f"v_cndmask_b32 v27, v28, v27, vcc\nv_lshl_add_u32 v30, v29, 1, v27")
VSIG, VPK = 11, 24
P(f"s_lshl_b32 {T0}, {W}, 2\ns_add_u32 {T0}, {T0}, 0x{L_RDY:x}\nv_mov_b32 {v(VSIG)}, {T0}")
P(f"v_and_b32 {v(VPK)}, 3, v0\nv_lshlrev_b32 {v(VPK)}, 2, {v(VPK)}\nv_add_u32 {v(VPK)}, 0x{L_PRG:x}, {v(VPK)}")
XRES, BRES, VO, SO = 244, 252, 19, "s45"
if OPT["eb"]:
    srd(rB, P_B2, 1024)
    P(f"buffer_load_ushort {v(VBI)}, v30, {rA}, 0 offen")
    P(f"v_and_b32 v28, 7, v0\nv_lshlrev_b32 v28, 4, v28\ns_lshl_b32 {T1}, {CT}, 7")
    P(f"buffer_load_dwordx4 {v(BRES, 4)}, v28, {rB}, {T1} offen")
    vm.add(None)
    vm.add(None)
stamp(1, "setup")
if not OPT["s1late"]:
    stage(1, (lambda: P(f"s_waitcnt vmcnt({OPT['s1h']})")) if OPT["s1h"] else None)
if OPT["chl"] and not OPT["chx"] and not OPT["s1late"]:
    chunk(0, ("st", 1))
stamp(1, "issued")
P(f"s_waitcnt lgkmcnt(0)\ns_add_u32 {NONCE}, {NONCE}, 1")
vm.wait("ch0")
vm.wait(("st", 0))
stamp(1, "land")
if OPT["p2only"]:
    P("s_waitcnt vmcnt(0)\ns_barrier")
    signal(VSIG, 27, 6)
    P("s_barrier\ns_barrier")
    dump(1)
    P("s_endpgm")
    lg.q = []
P("s_barrier ; b0")
stamp(1, "b0")
FR = 32


def cs_reads(a, f):
    for t in range(4):
        P(f"ds_read_b64_tr_b16 {v(f + 4 * t, 2)}, {v(a)} offset:{t * 2048}")
        P(f"ds_read_b64_tr_b16 {v(f + 4 * t + 2, 2)}, {v(a)} offset:{t * 2048 + 512}")


def cs_mfma(acc, f):
    for t in range(4):
        P(f"v_mfma_f32_16x16x32_bf16 {v(acc, 4)}, {v(SEL, 4)}, {v(f + 4 * t, 4)}, {'0' if t == 0 else v(acc, 4)}")


CSL = "\n".join(f"buffer_load_dwordx2 {v(32 + 2 * n, 2)}, v29, {rWS}, {SCS} offen offset:{512 * n} sc1" for n in range(8))
CSC = "\n".join([f"v_xor_b32 {v(228 + n)}, {NONCE}, {v(33 + 2 * n)}" for n in range(8)] +
                ["v_or3_b32 v228, v228, v229, v230", "v_or3_b32 v231, v231, v232, v233", "v_or3_b32 v228, v228, v234, v235",
                 "v_or_b32 v228, v228, v231", "v_cmp_ne_u32 vcc, 0, v228"])
nch = 1
for st in range(8):
    CL = OPT["chl"]
    def mid():
        if st == 0:
            P(f"s_setprio {OPT['csprio']}")
            P("s_waitcnt lgkmcnt(0)")
            if not CL:
                cs_reads(LWB, FR + 16)
            cs_mfma(CS, FR)
            if CL:
                P(f"s_setprio {OPT['prio']}")
    if st == 0:
        cs_reads(LWA, FR)
        if OPT["s1late"]:
            stage(1)
            if OPT["chl"]:
                chunk(0, ("st", 1))
    if OPT["chx"] and st == OPT["chx"]:
        chunk(0, None)
    if st == 1 and CL:
        cs_reads(LWB, FR + 16)
    if st <= 5:
        if OPT["lateA"] >= 0:
            a_, b_ = OPT["lateA"] >> st & 1, OPT["lateB"] >> st & 1
            if a_ and b_:
                P("s_waitcnt vmcnt(0)")
            elif a_ or b_:
                P(f"s_bitcmp1_b32 s2, {(3, 7, 0, 4)[OPT['lsel']]}\ns_cbranch_scc{1 if a_ else 0} L_lt{st}\ns_waitcnt vmcnt(0)\nL_lt{st}:")
        elif OPT["late"] >> st & 1:
            P(f"s_waitcnt vmcnt({OPT['lw']})")
        stage(st + 2, mid)
    if st == CL:
        P(f"s_setprio {OPT['csprio']}")
        P(f"s_lshl_b32 {T0}, {W}, 8\ns_add_u32 {T0}, {T0}, 0x{L_CSX:x}")
        P(f"v_lshl_add_u32 v27, v0, 2, {T0}")
        P("s_waitcnt lgkmcnt(0)")
        cs_mfma(CS2, FR + 16)
        P(f"v_permlane32_swap_b32 {v(CS)}, {v(CS2)}")
        P(f"v_add_f32 {v(CS)}, {v(CS)}, {v(CS2)}")
        P(f"ds_write_b32 v27, {v(CS)}")
        P(f"s_setprio {OPT['prio']}")
    if st == CL + 1:
        P("s_waitcnt lgkmcnt(0)")
    if OPT["fill"] == 3 and 1 <= st <= 6:
        if st == 1:
            P(f"s_lshl2_add_u32 s40, {I_}, {W}\ns_mul_i32 s40, s40, {TB_STRIDE}\ns_lshl_b32 {T0}, {J_}, 12\ns_add_u32 s40, s40, {T0}\ns_add_u32 s40, s40, 0x{WS_HA:x}")
        for t in range(6 * (st - 1), min(32, 6 * st)):
            P(f"s_buffer_load_dword s41, {rWS}, s40 offset:{128 * t}")
    if st == 6:
        P("v_lshlrev_b32 v29, 3, v0")
        P(CSL)
        for n in range(8):
            vm.add("cs")
        if OPT["ltouch"]:
            P(f"s_lshl2_add_u32 {T0}, s2, {W}\ns_mul_i32 {T1}, {T0}, {11 * 128}\ns_lshl_b32 {T0}, {T0}, 9")
            P(f"v_min_u32 v27, 10, v0\nv_lshlrev_b32 v27, 7, v27\nv_and_b32 v28, 0x180, v27")
            P(f"buffer_load_dword v20, v27, {rW2}, {T1} offen\nbuffer_load_dword v21, v28, {rWO}, {T0} offen")
            vm.add(None)
            vm.add(None)
        if OPT["f6"]:
            P(f"s_mul_i32 {T0}, {I_}, {4 * TB_STRIDE}\ns_lshl_b32 {T1}, {C_}, 12\ns_add_u32 {T1}, {T1}, {SM}\ns_add_u32 {T1}, {T1}, {86 * K}")
            P(f"s_mul_i32 {T2}, {W}, {TB_STRIDE}\ns_lshl_b32 {T3}, {HB0L}, 11\ns_add_u32 {T2}, {T2}, {T3}")
            P(f"s_cmp_lt_u32 {C_}, 3")
            sel2(T3, 3, 1)
            P(f"s_cmp_eq_u32 {TYPE}, 0\ns_cselect_b32 {T1}, {T1}, {T2}\ns_cselect_b32 {T3}, 3, {T3}")
            sel2(T2, TB_STRIDE, 1024)
            P(f"s_add_u32 {T0}, {T0}, {T1}\ns_add_u32 {T0}, {T0}, 0x{WS_HA:x}")
            P(f"v_lshrrev_b32 v27, 3, v0\nv_and_b32 v27, {T3}, v27\nv_mul_u32_u24 v27, {T2}, v27\nv_and_b32 v28, 7, v0\nv_lshl_add_u32 v27, v28, 7, v27")
            P(f"buffer_load_dword v23, v27, {rWS}, {T0} offen")
            vm.add(None)
        if OPT["ft"]:
            P(f"s_lshl2_add_u32 {T0}, {I_}, {W}\ns_lshl_b32 {T0}, {T0}, 7\ns_lshl_b32 {T1}, {I_}, 7\ns_add_u32 {T1}, {T1}, {FL_O * 128}")
            P(f"v_and_b32 v27, 3, v0\nv_lshl_add_u32 v28, v27, 13, {T0}\nv_mov_b32 v22, {T1}\nv_cmp_eq_u32 vcc, 2, v27\nv_cndmask_b32 v28, v28, v22, vcc")
            P(f"s_mov_b32 {T0}, 0x{WS_FLAGS:x}\nbuffer_load_dword v22, v28, {rWS}, {T0} offen sc1")
            vm.add(None)
    if st == 7:
        P(f"s_setprio {OPT['exprio']}")
        vm.wait("cs")
        stamp(1, "csin")
        P(CSC)
        retry("L_cs", CSL, CSC)
        stamp(1, "csok")
        P("v_add_f32 v32, v32, v34\nv_add_f32 v36, v36, v38\nv_add_f32 v40, v40, v42\nv_add_f32 v44, v44, v46")
        P("v_add_f32 v32, v32, v36\nv_add_f32 v40, v40, v44\nv_add_f32 v32, v32, v40")
        P("v_cvt_pk_bf16_f32 v33, v32, v32\nv_lshlrev_b32 v33, 16, v33\nv_sub_f32 v32, v32, v33\nv_cvt_pk_bf16_f32 v32, v33, v32")
        P("v_cmp_gt_u32 vcc, 32, v0")
        P(f"s_lshl_b32 {T0}, {W}, 9\ns_add_u32 {T0}, {T0}, 0x{L_EX1:x}")
        P(f"v_add_u32 v29, {T0}, v29")
        P(f"v_cndmask_b32 v34, 0, v32, vcc\nv_cndmask_b32 v35, 0, {v(VBI)}, vcc")
        P(f"v_cndmask_b32 v36, v32, 0, vcc\nv_cndmask_b32 v37, {v(VBI)}, 0, vcc")
        P(f"ds_write_b64 v29, v[34:35]\nds_write_b64 v29, v[36:37] offset:{L_EX2 - L_EX1}")
    if st == 7:
        P(f"s_setprio {OPT['prio']}")
    if st >= 6:
        for q in range(nch, nch + OPT[f"n{st}"]):
            chunk_stage(q)
        nch += OPT[f"n{st}"]
    if st < 7:
        vm.wait(("st", st + 1))
    if st == 7:
        P("s_waitcnt lgkmcnt(0)")
        stamp(1, "exw")
    P(f"s_barrier ; b{st + 1}")
    if "st1" in OPT and st < 7:
        stamp(1, f"b{st+1}")
stamp(1, "b8")
if OPT["p1only"]:
    dump(1)
    P("s_endpgm")
    DIAG = 0
for q in range(nch, 8):
    chunk_stage(q)
if not OPT["eb"]:
    srd(rB, P_B2, 1024)
srd(rP2, P_OUT, 2 * K * K)
P(f"v_and_b32 v28, 7, v0\nv_lshlrev_b32 v28, 4, v28\nv_lshrrev_b32 v29, 3, v0\nv_lshl_or_b32 {v(VO)}, v29, 10, v28")
P(f"s_lshl_b32 {SO}, {TB2}, 2\ns_add_u32 {SO}, {SO}, {W}\ns_lshl_b32 {SO}, {SO}, 14\ns_lshl_b32 {T1}, {CT}, 7\ns_add_u32 {SO}, {SO}, {T1}")
P(f"s_add_u32 {T2}, {SO}, 8192")
if not OPT["eb"]:
    P(f"buffer_load_dwordx4 {v(BRES, 4)}, v28, {rB}, {T1} offen")
    vm.add("res")
P(f"buffer_load_dwordx4 {v(XRES, 4)}, {v(VO)}, {rX}, {SO} offen")
P(f"buffer_load_dwordx4 {v(XRES + 4, 4)}, {v(VO)}, {rX}, {T2} offen")
for _ in range(2):
    vm.add("res")
vq8 = list(vm.q)


def stream(seq):
    for p in seq:
        (page if p < 18 else page_stage)(p)


LATE = list(range(38, 43)) + list(range(44, 60))
P(f"s_cmp_eq_u32 {TYPE}, 0")
P("s_cbranch_scc1 L_lA")
SH1, SH2, SF1 = "s4", "s5", "s6"
P(f"v_add_u32 v22, 16, {v(VSIG)}\nv_lshlrev_b32 v23, 4, v0")
P(f"s_lshl_b32 {T0}, {I_}, 2\ns_add_u32 {T0}, {T0}, {W}")
P(f"s_mul_i32 {SH1}, {T0}, {TB_STRIDE}\ns_add_u32 {SH1}, {SH1}, 0x{WS_HA:x}")
P(f"s_lshl_b32 {SH2}, {HB0L}, 11\ns_add_u32 {SH2}, {SH2}, {SH1}\ns_lshl_b32 {T1}, {C_}, 13\ns_add_u32 {SH1}, {SH1}, {T1}")
P(f"s_lshl_b32 {SF1}, {T0}, 5\ns_add_u32 {SF1}, {SF1}, {C_}\ns_lshl_b32 {SF1}, {SF1}, {2 + FX}\ns_add_u32 {SF1}, {SF1}, 0x{WS_FLAGS + FL_HB * LN:x}")


def far():
    P(f"ds_read_b32 v28, {v(VPK)} offset:{L_FAST - L_PRG}\ns_waitcnt lgkmcnt(0)\nv_cmp_ne_u32 vcc, 0, v28\ns_or_b32 {FAR}, vcc_lo, vcc_hi")


def wback(tag):
    if OPT["wbj"] == 0:
        P(f"s_cmp_lg_u32 {W}, 0")
    else:
        P(f"s_xor_b32 {T0}, {J_}, {OPT['wbj'] - 1}\ns_or_b32 {T0}, {T0}, {W}\ns_cmp_lg_u32 {T0}, 0")
    P(f"s_cbranch_scc1 L_wb{tag}\nbuffer_wbl2 sc1\nL_wb{tag}:")


def hstore(k, base, b, sh, tag):
    if k == 1:
        await_(VPK, 28, k)
        far()
    else:
        await_(22, 28, k)
    d = D0 + 8 * (b & 1)
    for u in range(2):
        a = base + (2 * b + u) * 4096
        P(f"ds_read_b128 {v(d + 4 * u, 4)}, {v(VL16 + a // (64 * K))} offset:{a % (64 * K)}")
    if b == 2:
        P(f"s_add_u32 {sh}, {sh}, 4096")
    for u in range(2):
        P(f"s_waitcnt lgkmcnt({1 - u})")
        row_store(f"buffer_store_dwordx4 {v(d + 4 * u, 4)}, v23, {rWS}, {sh} offen offset:{2048 * (b & 1) + 1024 * u}", OPT["nt1"] if tag != "h2" else OPT["nt2"])
        vm.add(tag)


if OPT["fill"] == 1:
    P("v_lshlrev_b32 v25, 7, v0\nv_and_b32 v27, 0xfff, v25")
    P(f"buffer_load_dword v20, v25, {rWS}, {SH1} offen\nbuffer_load_dword v21, v27, {rWS}, {SH2} offen")
    vm.add(None)
    vm.add(None)
mid = list(range(18, 38))
stream(mid[:OPT["e1B"]])
np_ = OPT["e1B"]
for q in range(1, 5):
    chunk_write(q)
hstore(1, L_HS, 0, SH1, "h")
for q in range(5, 8):
    chunk_write(q)
signal(VSIG, 26, 1, True)
for b in range(1, 4):
    stream(mid[np_:np_ + OPT["iB2"]])
    np_ += OPT["iB2"]
    hstore(b + 1, L_HS, b, SH1, "h" if b < 2 else "h1")
signal(VSIG, 26, 2)
stamp(1, "h_st")
vm.wait("h")
flag_store(SF1, aux=HX)
vm.add(None)
stamp(1, "hbflag")
P(f"s_add_u32 {SF1}, {SF1}, {(FL_H1 - FL_HB) * LN}")
stream(range(OPT["xB"]))
vm.wait("h1")
flag_store(SF1, aux=HX)
vm.add(None)
stamp(1, "h1flag")
stream(range(OPT["xB"], 18))
stream(mid[np_:])
P(f"s_sub_u32 {SF1}, {SF1}, {(FL_H1 - FL_HA) * LN}")
P(f"s_cmp_lt_u32 {C_}, 3")
P("s_cbranch_scc0 L_lB1")
vqB = list(vm.q)
restB = {}
for nb in (2, 1):
    if nb == 1:
        P.label("L_lB1")
        vm.q = list(vqB)
    page_addr.last = None
    pre = OPT["lB2"] if nb == 2 else OPT["lB1"]
    stream(LATE[:pre])
    vm.wait(("pg", 17))
    signal(VSIG, 26, 3)
    stamp(1, "staged")
    lg.q = []
    await_(VPK, 28, 8)
    marks = {OPT["w0"]: 0, OPT["w1"]: 1} if nb == 2 else {OPT["w0c"]: 0}
    for n, p in enumerate(range(18, 38)):
        if n in marks:
            lg.q = []
            hstore(9 + marks[n], L_PQ, marks[n], SH2, "h2")
            stamp(1, "h2_st")
        vm.wait(("pg", p))
        page_write(p)
    signal(VSIG, 26, 4, True)
    vm.wait("h2")
    flag_store(SF1, aux=HX)
    vm.add(None)
    stamp(1, "oflag")
    stream(LATE[pre:max(pre, OPT["l1"])])
    vm.wait(("pg", 42))
    restB[nb] = LATE[max(pre, OPT["l1"]):]
    P("s_branch L_l5")
P.label("L_lA")
vm.q = list(vq8)
lg.q = []
page_addr.last = None
SOB = "s44"
P(f"s_mul_i32 {SOB}, {I_}, {4 * TB_STRIDE}\ns_lshl_b32 {T1}, {C_}, 12\ns_add_u32 {SOB}, {SOB}, {T1}")
P(f"s_add_u32 {SOB}, {SOB}, {SM}\ns_add_u32 {SOB}, {SOB}, 0x{WS_HA + 86 * K:x}")
if OPT["fill"] == 1:
    P(f"v_bfe_u32 v25, v0, 3, 2\nv_mul_u32_u24 v25, {TB_STRIDE}, v25\nv_and_b32 v27, 7, v0\nv_lshl_add_u32 v25, v27, 7, v25")
    P(f"buffer_load_dword v20, v25, {rWS}, {SOB} offen")
    vm.add(None)
mid = list(range(18, 38))
stream(mid[:8])
for q in range(1, 8):
    chunk_write(q)
signal(VSIG, 26, 1, True)
if OPT["fill"] in (2, 3):
    P(f"s_lshl2_add_u32 {T0}, {I_}, {W}\ns_mul_i32 {T0}, {T0}, {TB_STRIDE}\ns_add_u32 {T0}, {T0}, 0x{WS_HA:x}")
    P("v_lshlrev_b32 v25, 7, v0")
    if OPT["fill"] == 2:
        P(f"s_lshl_b32 {T1}, {C_}, 13\ns_add_u32 {T1}, {T1}, {T0}")
        P(f"buffer_load_dword v20, v25, {rWS}, {T1} offen")
        vm.add(None)
    P(f"s_mul_i32 {T1}, {C_}, {54 * 128}\ns_add_u32 {T1}, {T1}, {T0}\ns_add_u32 {T1}, {T1}, {64 * K}\nv_min_u32 v25, {53 * 128}, v25")
    P(f"buffer_load_dword v21, v25, {rWS}, {T1} offen")
    vm.add(None)
stream(mid[8:OPT["e1A"]])
lg.q = []
await_(VPK, 28, 2)
far()
stream(range(18))
stream(mid[OPT["e1A"]:])
PREA = LATE[:OPT["preA"]] if OPT["gd"] == 8 else LATE[21 - min(5, OPT["preA"]):21]
stream(PREA)
SZL, SK0, SK1, SKE = "s4", "s5", "s6", "s7"
NB = [NONCE, "s39", "s42", "s43"]
P("v_and_b32 v23, 15, v0\nv_lshlrev_b32 v27, 4, v0")
P(f"v_lshrrev_b32 v22, 2, v0\nv_mul_u32_u24 v25, {KVP_STR}, v22\nv_and_b32 v26, 3, v0\nv_lshl_add_u32 v25, v26, 4, v25")
P(f"s_mul_i32 {SK0}, {C_}, {16 * KVP_STR}\ns_add_u32 {SK0}, {SK0}, 0x{WS_KVP:x}")
P(f"s_lshl_b32 {SZL}, {W}, 6\ns_add_u32 {SZL}, {SZL}, {SK0}\ns_add_u32 {SZL}, {SZL}, 4096")
P(f"s_add_u32 {SK0}, {SK0}, {SM}\ns_add_u32 {SKE}, {SK0}, {16 * KVP_STR}")
P(f"s_lshl_b32 {SK1}, {I_}, 1\ns_and_b32 {SK1}, {SK1}, 15\ns_mul_i32 {SK1}, {SK1}, {KVP_STR}\ns_add_u32 {SK1}, {SK1}, {SK0}")
P(f"s_add_u32 {T0}, {SM}, 0x{L_KT:x}")
P("v_and_b32 v40, 1, v26\nv_lshlrev_b32 v40, 4, v40\nv_lshrrev_b32 v26, 1, v26\nv_lshl_or_b32 v40, v26, 3, v40")
P(f"v_lshl_or_b32 v40, v22, 5, v40\nv_add_u32 v40, {T0}, v40")
P("v_bfe_u32 v41, v0, 4, 1\nv_lshlrev_b32 v41, 4, v41\nv_lshrrev_b32 v26, 5, v0\nv_lshl_or_b32 v41, v26, 3, v41")
P(f"v_lshl_or_b32 v41, v23, 5, v41\nv_add_u32 v41, {T0}, v41")
P(f"v_and_b32 v42, 31, v0\nv_lshlrev_b32 v42, 5, v42\nv_lshl_or_b32 v42, v26, 4, v42\nv_add_u32 v42, {T0}, v42")
P(f"s_lshr_b32 s39, {NONCE}, 8\ns_lshr_b32 s42, {NONCE}, 16\ns_lshr_b32 s43, {NONCE}, 24")
ZL = f"buffer_load_dwordx4 v[28:31], v25, {rWS}, {SZL} offen sc1"
ZC = "\n".join([f"v_xor_b32 v20, {NB[0]}, v28", f"v_xor_b32 v21, {NB[1]}, v29",
                f"v_bitop3_b32 v20, v20, v30, {NB[2]} bitop3:0xf6", f"v_bitop3_b32 v21, v21, v31, {NB[3]} bitop3:0xf6",
                "v_or_b32 v20, v20, v21", "v_and_b32 v20, 0xff, v20", "v_cmp_ne_u32 vcc, 0, v20"])
P(f"s_setprio {OPT['gprio']}")
P(f"s_mov_b32 {T2}, 32")
P.label("L_kvall")
spin("L_kv", ZL, ZC)
stamp(1, "kv_seen")
signal(VSIG, 26, 3)
P(f"s_mov_b32 {T1}, {SK1}")
GD = OPT["gd"]
GQ = [CHR + 4 * n for n in range(14)] + [184, 188] if GD == 16 else [PQR + 4 * n for n in range(8)]
def gload(n):
    P(f"buffer_load_dwordx4 {v(GQ[n % GD], 4)}, v27, {rWS}, {T1} offen sc1")
    if n < 15:
        P(f"s_add_u32 {T1}, {T1}, {KVP_STR}")
        if n % 2 == 1:
            P(f"s_cmp_eq_u32 {T1}, {SKE}\ns_cselect_b32 {T1}, {SK0}, {T1}")
for n in range(GD if not OPT["hack"] & 8 else 8):
    gload(n)
for n in range(4):
    P(f"v_and_b32 {v(28 + n)}, 0xffffff00, {v(28 + n)}")
for r in (4, 8):
    for n in range(4):
        P(f"v_add_f32_dpp {v(28 + n)}, {v(28 + n)}, {v(28 + n)} row_ror:{r} row_mask:0xf bank_mask:0xf")
for op in ("v_permlane16_swap_b32", "v_permlane32_swap_b32"):
    for n in range(4):
        P(f"v_mov_b32 {v(32 + n)}, {v(28 + n)}")
    for n in range(4):
        P(f"{op} {v(28 + n)}, {v(32 + n)}")
    for n in range(4):
        P(f"v_add_f32 {v(28 + n)}, {v(28 + n)}, {v(32 + n)}")
P("v_cvt_pk_bf16_f32 v28, v28, v29\nv_cvt_pk_bf16_f32 v29, v30, v31")
P("ds_write_b64 v40, v[28:29] offset:512")
for n in range(16 if not OPT["hack"] & 8 else 8):
    P(f"s_waitcnt vmcnt({min(GD - 1, 15 - n) if not OPT['hack'] & 8 else 7 - n})")
    for h in range(4):
        r = v(GQ[n % GD] + h)
        if n == 0:
            P(f"v_xor_b32 {v(36 + h)}, {NB[h]}, {r}\nv_and_b32 {v(32 + h)}, 0xffffff00, {r}")
        else:
            P(f"v_bitop3_b32 {v(36 + h)}, {v(36 + h)}, {r}, {NB[h]} bitop3:0xf6\nv_and_b32 {v(44 + h)}, 0xffffff00, {r}")
    if n + GD < 16:
        gload(n + GD)
    if n:
        for h in range(4):
            P(f"v_add_f32 {v(32 + h)}, {v(32 + h)}, {v(44 + h)}")
P("v_or3_b32 v36, v36, v37, v38\nv_or_b32 v36, v36, v39\nv_and_b32 v36, 0xff, v36\nv_cmp_ne_u32 vcc, 0, v36")
P(f"s_sub_u32 {T2}, {T2}, 1")
P("s_cbranch_scc1 L_kvok")
P("s_cbranch_vccnz L_kvall")
P.label("L_kvok")
stamp(1, "gath")
if DIAG >= 3 and "retry" in str(OPT.get("st1")):
    P(f"s_waitcnt lgkmcnt(0)\ns_sub_u32 s98, 32, {T2}\ns_mul_i32 s98, s98, 100\ns_add_u32 s98, s98, s100")
vm.q = []
page_addr.last = None
P("v_cvt_pk_bf16_f32 v32, v32, v33\nv_cvt_pk_bf16_f32 v33, v34, v35")
P("ds_write_b64 v41, v[32:33]")
lg.q = []
P("ds_read_b128 v[44:47], v42")
stream([p for p in LATE[:OPT["lA"]] if p not in PREA])
P(f"v_add_u32 v20, 0x{L_PQ:x}, {v(VL16)}")
P(f"s_mov_b32 s4, {SOB}")
stamp(1, "staged")
await_(VPK, 22, 10)
stamp(1, "g0")
for tb in range(4):
    P(f"ds_read_b128 {v(PQR + 4 * tb, 4)}, v20 offset:{tb * 4096}")
P("v_mov_b32 v28, v44\nv_mov_b32 v29, v45\nv_mov_b32 v30, v46\nv_mov_b32 v31, v47")
def o_mfma(tb):
    P(f"s_waitcnt lgkmcnt({3 - tb})")
    P(f"v_mfma_f32_32x32x16_bf16 {v((D0, D1)[tb & 1], 16)}, v[28:31], {v(PQR + 4 * tb, 4)}, 0")
o_mfma(0)
o_mfma(1)
for tb in range(4):
    d = (D0, D1)[tb & 1]
    P(f"v_add_f32 {v(d + 8)}, 0x{f2u(1e-6):x}, {v(d + 8)}")
    P(f"v_rcp_f32 {v(d + 8)}, {v(d + 8)}")
    for r in range(8):
        P(f"v_mul_f32 {v(d + r)}, {v(d + r)}, {v(d + 8)}")
    for p in range(4):
        P(f"v_cvt_pk_bf16_f32 {v(PQR + 4 * tb + p)}, {v(d + 2 * p)}, {v(d + 2 * p + 1)}")
    if tb < 2:
        o_mfma(tb + 2)
    row_store(f"buffer_store_dwordx4 {v(PQR + 4 * tb, 4)}, v27, {rWS}, s4 offen", OPT["nt2"])
    vm.add("o")
    if tb < 3:
        P(f"s_add_u32 s4, s4, {TB_STRIDE}")
stamp(1, "o_st")
P(f"s_setprio {OPT['prio']}")
for p in range(18, 38):
    page_write(p)
signal(VSIG, 26, 4, True)
vm.wait("o")
P(f"s_lshl_b32 {T0}, {I_}, 5\ns_lshl_b32 {T1}, {C_}, 2\ns_add_u32 {T0}, {T0}, {T1}\ns_add_u32 {T0}, {T0}, {W}")
P(f"s_lshl_b32 {T0}, {T0}, {2 + FX}\ns_add_u32 {T0}, {T0}, 0x{WS_FLAGS + FL_O * LN:x}")
flag_store(T0, aux=HX)
vm.add(None)
stamp(1, "oflag")
stream([p for p in LATE[OPT["lA"]:OPT["l1"]] if p not in PREA])
vm.wait(("pg", 42))
restA = [p for p in LATE[OPT["l1"]:] if p not in PREA]
P.label("L_l5")
lg.q = []
await_(VPK, 28, 11)
stamp(1, "gx")
nfree = 2 * ((OPT["gx"] - 7) // 4)
first = [p for p in list(range(38, 43)) + list(range(44, 60)) if p - 38 < nfree]
P(f"s_setprio {OPT['wprio']}")
for p in range(38, 43):
    page_write(p, OPT["pace"])
signal(VSIG, 26, 5, True)
for who, rest in (("A", restA), ("B2", restB[2]), ("B1", restB[1])):
    if who == "A":
        P(f"s_cmp_eq_u32 {TYPE}, 0\ns_cbranch_scc0 L_tB")
    elif who == "B2":
        P.label("L_tB")
        P(f"s_cmp_lt_u32 {C_}, 3\ns_cbranch_scc0 L_tB1")
    else:
        P.label("L_tB1")
    page_addr.last = None
    vm.q = [("pg", p) for p in LATE[5:] if p not in rest and not (who == "A" and p in PREA)]
    stream(rest)
    for p in first[5:]:
        vm.wait(("pg", p))
        page_write(p, OPT["pace"])
    vm.drain()
    if who != "B1":
        P("s_branch L_t2")
P.label("L_t2")
lg.q = []
P("s_waitcnt lgkmcnt(0)")
await_(VPK, 28, 12)
for p in range(44, 60):
    if p not in first:
        vm.wait(("pg", p))
        page_write(p, OPT["pace"])
signal(VSIG, 26, 6, True)
P(f"s_setprio {OPT['prio']}")
LOG2E = 1.4426950408889634
XRD, GG, XF, BF, YR = 22, 32, 48, 64, 72
P("v_lshrrev_b32 v26, 3, v0\nv_and_b32 v27, 7, v0\nv_lshlrev_b32 v27, 1, v27\nv_xor_b32 v27, v27, v26\nv_lshlrev_b32 v27, 4, v27\nv_lshl_or_b32 v26, v26, 8, v27")
P(f"s_lshl_b32 {T0}, {W}, 12\ns_add_u32 {T0}, {T0}, 0x{L_XS0:x}")
P(f"v_add_u32 {v(XRD)}, {T0}, v26\nv_xor_b32 {v(XRD + 1)}, 16, {v(XRD)}")
P(f"v_add_u32 {v(XRD + 2)}, 0x10000, {v(XRD)}\nv_add_u32 {v(XRD + 3)}, 0x10000, {v(XRD + 1)}")
P(f"s_add_u32 {T2}, {SO}, 8192")
P("s_waitcnt lgkmcnt(0)")


if OPT["wb"] in (2, 4):
    wback(2)
def unpack(dst, src, n):
    for r in range(n):
        P(f"v_lshlrev_b32 {v(dst + 2 * r)}, 16, {v(src + r)}\nv_and_b32 {v(dst + 2 * r + 1)}, 0xffff0000, {v(src + r)}")


def xread(dst, bases):
    for h in range(2):
        for kh in range(2):
            for j in range(2):
                P(f"ds_read_b128 {v(dst + 16 * kh + 8 * h + 4 * j, 4)}, {v(XRD + j + 2 * ((bases[kh] - L_XS0) >> 16))} offset:{((bases[kh] - L_XS0) & 0xffff) + 2048 * h}")


unpack(XF, XRES, 8)
unpack(BF, BRES, 4)
stamp(1, "rdy5")
P(f"s_setprio {OPT['fprio']}")
P("s_barrier ; dY")
if OPT["wb"] == 3:
    wback(3)
xread(YR, (L_XY, L_XY + 16 * K))
P("s_waitcnt lgkmcnt(0)")
for fmt in ("v_add_f32 {Y}, {Y}, {Z}", "v_add_f32 {Y}, {Y}, {B}", f"v_mul_f32 {{G}}, 0x{f2u(-LOG2E):x}, {{Y}}", "v_exp_f32 {G}, {G}",
            "v_add_f32 {G}, 1.0, {G}", "v_rcp_f32 {G}, {G}", "v_mul_f32 {G}, {G}, {Y}"):
    for r in range(16):
        P(fmt.format(Y=v(YR + r), Z=v(YR + 16 + r), B=v(BF + r % 8), G=v(GG + r)))
stamp(1, "gate")
P("s_barrier ; dS")
stamp(1, "dS")
xread(YR, (L_XS0, L_XS1))
for h in range(2):
    P(f"s_waitcnt lgkmcnt({4 - 4 * h})")
    for p in range(4 * h, 4 * h + 4):
        P(f"v_pk_add_f32 {v(YR + 2 * p, 2)}, {v(YR + 2 * p, 2)}, {v(YR + 16 + 2 * p, 2)}")
    for p in range(4 * h, 4 * h + 4):
        P(f"v_pk_fma_f32 {v(YR + 2 * p, 2)}, {v(YR + 2 * p, 2)}, {v(GG + 2 * p, 2)}, {v(XF + 2 * p, 2)}")
    for p in range(4 * h, 4 * h + 4):
        P(f"v_cvt_pk_bf16_f32 {v(BF + p)}, {v(YR + 2 * p)}, {v(YR + 2 * p + 1)}")
    P(f"buffer_store_dwordx4 {v(BF + 4 * h, 4)}, {v(VO)}, {rP2}, {(SO, T2)[h]} offen {OPT['outaux']}")
stamp(1, "outst")
dump(1)
P.label("L_end")
P("s_endpgm")
flush_cold()

P.label("L_compute")
DIAG = OPT["diag"]
assert OPT["gx"] <= 36
XR, ACC, WR = 128, 64, 32
VH, GR, XE, K1, K2, SD, RS, RL = 1, 2, 4, 6, 8, 10, 16, 18
XA, WA = 12, 20
HB0, SH, EPS2, SG, SFL1, SFL2, SCS2 = "s72", "s73", "s[74:75]", "s76", "s77", "s78", "s79"
lg = Q("lgkmcnt", 15)

diag_init()
stamp(0, "start")
P(f"s_setprio {OPT['cprio']}")
P(f"s_lshl_b32 {T0}, {I_}, 4\ns_add_u32 {T0}, {T0}, {J_}\ns_lshl_b32 {T0}, {T0}, 2\ns_add_u32 {T0}, {T0}, {W}\ns_lshl_b32 {T0}, {T0}, 1")
P(f"s_lshl_b32 {T1}, {T0}, 10")
P("v_lshrrev_b32 v26, 5, v0\nv_and_b32 v27, 31, v0\nv_lshlrev_b32 v28, 4, v27\nv_lshl_or_b32 v28, v26, 10, v28")
P("s_waitcnt lgkmcnt(0)")
srd(rX, P_X, 2 * K * K)
P(f"s_load_dword {NONCE}, s[{P_WS}:{P_WS+1}], 0")
if not OPT["nostat"]:
    P(f"buffer_load_dwordx4 v[32:35], v28, {rX}, {T1} offen")
    P(f"buffer_load_dwordx4 v[36:39], v28, {rX}, {T1} offen offset:512")
srd(rWS, P_WS, WS_SIZE)
tile2()
P(f"v_lshlrev_b32 {v(VH)}, 4, v0")
waddr(WA, 29, 30, 3)
P(f"v_xor_b32 {v(WA + 1)}, 64, {v(WA)}")
for k, off in ((2, 64 * K), (4, 88 * K)):
    P(f"v_add_u32 {v(WA + k)}, 0x{off:x}, {v(WA)}\nv_add_u32 {v(WA + k + 1)}, 0x{off:x}, {v(WA + 1)}")
P("v_bfe_u32 v29, v0, 1, 3\nv_xor_b32 v29, v29, v26\nv_lshlrev_b32 v29, 4, v29\nv_lshl_or_b32 v29, v27, 7, v29")
P(f"s_lshl_b32 {T2}, {W}, 12")
P(f"v_add_u32 {v(XA)}, {T2}, v29")
for t in range(1, 4):
    P(f"v_xor_b32 {v(XA + t)}, {32 * t}, {v(XA)}")
for t in range(4):
    P(f"v_add_u32 {v(XA + 4 + t)}, 0x10000, {v(XA + t)}")
P(f"s_lshl_b32 {SG}, {I_}, 2\ns_add_u32 {SG}, {SG}, {W}")
if OPT["touch"]:
    srd(rW2, P_W2, 1376 * 1024)
    srd(rWO, P_WO, 512 * 1024)
    P(f"s_mul_i32 {T2}, s2, 43\ns_mul_i32 {T3}, {W}, 11\ns_add_u32 {T2}, {T2}, {T3}")
    P(f"v_add_u32 v6, {T2}, v0\nv_lshlrev_b32 v6, 7, v6\nv_mov_b32 v8, 0x7ff00000\nv_cmp_gt_u32 vcc, 11, v0")
    P(f"s_lshl_b32 {T2}, s2, 2\ns_add_u32 {T2}, {T2}, {W}\ns_lshl_b32 {T2}, {T2}, 2")
    P(f"v_cndmask_b32 v6, v8, v6, vcc\nv_add_u32 v7, {T2}, v0\nv_lshlrev_b32 v7, 7, v7\nv_cmp_gt_u32 vcc, 4, v0")
    P("v_cndmask_b32 v7, v8, v7, vcc")
    if OPT["touch"] == 9:
        P(f"buffer_load_dword v8, v6, {rW2}, 0 offen\nbuffer_load_dword v9, v7, {rWO}, 0 offen")
P(f"s_lshl_b32 {SG}, {SG}, 8\ns_add_u32 {SG}, {SG}, 0x{WS_STATS:x}")
P(f"s_lshl_b32 {SCS2}, {J_}, 1\ns_lshr_b32 {T2}, {I_}, 3\ns_add_u32 {SCS2}, {SCS2}, {T2}\ns_lshl_b32 {SCS2}, {SCS2}, 2")
P(f"s_add_u32 {SCS2}, {SCS2}, {W}\ns_lshl_b32 {SCS2}, {SCS2}, 3\ns_and_b32 {T2}, {I_}, 7\ns_add_u32 {SCS2}, {SCS2}, {T2}")
P(f"s_lshl_b32 {SCS2}, {SCS2}, 9\ns_add_u32 {SCS2}, {SCS2}, 0x{WS_CS:x}")
if OPT["pg"]:
    srd(rW2, P_W2, 1376 * 1024)
    srd(rWO, P_WO, 512 * 1024)
    srd(rA, P_OUT, 2 * K * K)
    P(f"v_lshlrev_b32 v46, 16, v0\ns_lshl_b32 {T3}, {W}, 22\ns_cmp_eq_u32 {W}, 3\ns_cbranch_scc1 L_pg3")
    P(f"buffer_load_dword v47, v46, {rWS}, {T3} offen sc1\ns_branch L_pgx\nL_pg3:")
    P(f"buffer_load_dword v47, v46, {rW2}, 0 offen\nbuffer_load_dword v47, v46, {rWO}, 0 offen\nbuffer_load_dword v47, v46, {rA}, 0 offen\nL_pgx:")
SFHB, SFO, KH, SFHA, PRIMED, SK12, SXW, SBASE = "s51", "s52", "s53", "s54", "s55", "s72", "s73", "s77"
P(f"s_lshr_b32 {KH}, {W}, 1\ns_lshl_b32 {SK12}, {KH}, 12\ns_mov_b32 {PRIMED}, 0")
P(f"s_lshl_b32 {T3}, {TB2}, 1\ns_and_b32 {T2}, {W}, 1\ns_add_u32 {T3}, {T3}, {T2}")
P(f"s_mul_i32 {SBASE}, {T3}, {TB_STRIDE}\ns_add_u32 {SBASE}, {SBASE}, 0x{WS_HA:x}")
if OPT["ahot"]:
    P(f"s_mov_b32 {SBASE}, 0x{WS_DIAG + 0x40000:x}")
P(f"s_lshl_b32 {SFHB}, {T3}, {7 + FX}\ns_add_u32 {SFHA}, {SFHB}, 0x{WS_FLAGS + FL_HA * LN:x}\ns_add_u32 s44, {SFHB}, 0x{WS_FLAGS + FL_H1 * LN:x}\ns_add_u32 {SFHB}, {SFHB}, 0x{WS_FLAGS + FL_HB * LN:x}")
P(f"s_lshr_b32 {SFO}, {TB2}, 1\ns_lshl_b32 {SFO}, {SFO}, {7 + FX}\ns_add_u32 {SFO}, {SFO}, 0x{WS_FLAGS + FL_O * LN:x}")
P(f"s_lshl_b32 {SXW}, {T2}, 13\ns_lshl_b32 {T3}, {KH}, 14\ns_add_u32 {SXW}, {SXW}, {T3}\ns_add_u32 {SXW}, {SXW}, 0x{L_XY:x}")
SXS = "s15"
P(f"s_cmp_eq_u32 {KH}, 0")
sel2(SXS, (L_XS0 - L_XY) & 0xffffffff, L_XS1 - L_XY - 16 * K)
if OPT["tlb"] == 2:
    P(f"buffer_load_dword v47, v0, {rWS}, {SBASE} offen sc1")
P(f"s_mov_b32 s14, {RHOA}")
for g in list(range(8)) + list(range(11, 15)):
    r = f"s{36 + g}"
    P(f"s_add_u32 {r}, {RHO2 if g < 8 else RHOS}, {g % 11}\ns_and_b32 {r}, {r}, {7 if g < 8 else 3}\ns_lshl_b32 {r}, {r}, 13\ns_add_u32 {r}, {r}, {SBASE}")
    if g >= 11:
        P(f"s_add_u32 {r}, {r}, {86 * K}")
P(f"s_add_u32 s14, s14, {KH}")
for n in range(16, 22):
    r = f"s{8 + n - 16}"
    P(f"s_add_u32 {r}, s14, {2 * (n - 16)}\ns_cmp_ge_u32 {r}, 11\ns_cselect_b32 {T3}, 11, 0\ns_sub_u32 {r}, {r}, {T3}")
    P(f"s_sub_u32 {r}, {r}, {KH}\ns_add_u32 {r}, {r}, {32 - 2 * (n % 2)}\ns_lshl_b32 {r}, {r}, 11\ns_add_u32 {r}, {r}, {SBASE}")
P(f"s_mov_b32 s74, 0x{f2u(1e-6):x}\ns_mov_b32 s75, 0x{f2u(1e-6):x}")
P(f"s_mov_b32 {T2}, 0x3f803f80")
P("v_mov_b32 v40, 0\nv_mov_b32 v41, 0\nv_mov_b32 v42, 0\nv_mov_b32 v43, 0")
stamp(0, "pre")
P("s_waitcnt vmcnt(2)" if OPT["touch"] == 9 else "s_waitcnt vmcnt(0)")
stamp(0, "xin")
for n in range(8):
    P(f"v_dot2_f32_bf16 {v(40 + (n & 1))}, {v(32 + n)}, {T2}, {v(40 + (n & 1))}")
    P(f"v_dot2_f32_bf16 {v(42 + (n & 1))}, {v(32 + n)}, {v(32 + n)}, {v(42 + (n & 1))}")
P("s_nop 2")
P("v_add_f32 v40, v40, v41\nv_add_f32 v42, v42, v43")
for r in (8, 4, 2, 1):
    P(f"v_add_f32_dpp v40, v40, v40 row_ror:{r} row_mask:0xf bank_mask:0xf")
    P(f"v_add_f32_dpp v42, v42, v42 row_ror:{r} row_mask:0xf bank_mask:0xf")
P("v_mov_b32 v41, v40\nv_mov_b32 v43, v42")
P("v_permlane16_swap_b32 v40, v41\nv_permlane16_swap_b32 v42, v43")
P("v_add_f32 v40, v40, v41\nv_add_f32 v42, v42, v43")
P(f"v_mul_f32 v40, 0x{f2u(1 / 512):x}, v40\nv_mul_f32 v42, 0x{f2u(1 / 512):x}, v42")
P("v_fma_f32 v42, -v40, v40, v42\nv_max_f32 v42, 0, v42")
P(f"v_cvt_pk_bf16_f32 v42, v42, v42\nv_and_b32 v42, 0xffff0000, v42\nv_add_f32 v42, 0x{f2u(1e-5):x}, v42")
P("v_cvt_pk_bf16_f32 v42, v42, v42\nv_and_b32 v42, 0xffff0000, v42\nv_sqrt_f32 v42, v42")
P("v_cvt_pk_bf16_f32 v44, v40, v42")
P("v_lshlrev_b32 v28, 3, v26")
P(f"s_lshl_b32 {T0}, {T0}, 3\ns_add_u32 {T0}, {T0}, 0x{WS_STATS:x}")
P("s_waitcnt lgkmcnt(0)")
P(f"s_add_u32 {NONCE}, {NONCE}, 1")
XTAG = "s78"
P(f"s_getreg_b32 {XTAG}, hwreg(HW_REG_XCC_ID, 0, 4)\ns_lshl_b32 {XTAG}, {XTAG}, 28\ns_xor_b32 {XTAG}, {XTAG}, {NONCE}")
P(f"v_mov_b32 v45, {XTAG}\nv_mov_b32 v5, {NONCE}")
P(f"s_mov_b32 s56, {T0}\nv_mov_b32 v2, v44\nv_mov_b32 v3, v45\nv_mov_b32 v25, v28")
P("v_lshlrev_b32 v26, 3, v27\nv_lshlrev_b32 v27, 3, v0")
P(f"s_lshl_b32 {T0}, {W}, 8\ns_add_u32 {T0}, {T0}, 0x{L_CSX:x}")
P(f"v_lshl_add_u32 v28, v0, 2, {T0}")
P(f"v_add_u32 v29, 0x{L_EX1:x}, v27")
GLOAD = f"buffer_load_dwordx2 {v(GR, 2)}, v26, {rWS}, {SG} offen sc1"
CSIG, CPK, CPC = 30, 31, 3
P(f"s_lshl_b32 {T0}, {W}, 2\ns_add_u32 {T0}, {T0}, 0x{L_PRG:x}\nv_mov_b32 {v(CSIG)}, {T0}")
P(f"v_and_b32 {v(CPK)}, 3, v0\nv_lshlrev_b32 {v(CPK)}, 2, {v(CPK)}\nv_add_u32 {v(CPK)}, 0x{L_RDY:x}, {v(CPK)}")
stamp(0, "stats")


def p1_x(st, t):
    if OPT["nocomp"]:
        return
    sl = st % 3
    P(f"ds_read_b128 {v(XR + 16 * st + 4 * t, 4)}, {v(XA + t + (4 if sl == 2 else 0))} offset:{(sl % 2) * 32 * K}")
    lg.add(("x", st, t))


def p1_w(st, t, b):
    if OPT["nocomp"]:
        return
    sl = st % 3
    a = WA + (b & 1) + (2 if sl == 2 else 0)
    off = (sl % 2) * 32 * K + 16 * K + (b >> 1) * 8 * K + t * 2048
    f = WR + ((t & 1) * 4 + b) * 4
    tr(f, a, off, None)
    tr(f + 2, a, off + 512, ("w", st, t, b))


def p1_m(st, t, b):
    if OPT["nocomp"]:
        return
    lg.wait(("w", st, t, b))
    assert ("x", st, t) not in lg.q
    f = WR + ((t & 1) * 4 + b) * 4
    c = "0" if (st == 0 and t == 0) else v(ACC + 16 * b, 16)
    P(f"v_mfma_f32_32x32x16_bf16 {v(ACC + 16 * b, 16)}, {v(f, 4)}, {v(XR + 16 * st + 4 * t, 4)}, {c}")
    r = OPT.get(f"r{st}", 0) or OPT["rall"]
    if r:
        P(f"s_nop {r - 1}")


P("s_barrier ; b0")
stamp(0, "b0")
if OPT["p2only"]:
    P("s_branch L_c2")
p1_x(0, 0)
for b in range(4):
    p1_w(0, 0, b)
P("s_mov_b32 exec_lo, 1\ns_mov_b32 exec_hi, 1")
P(f"buffer_store_dwordx2 v[2:3], v25, {rWS}, s56 offen sc1")
P("s_mov_b64 exec, -1")
P(f"v_add_u32 {v(WA + 5)}, 0x{88 * K:x}, {v(WA + 1)}")
LOG2E = 1.4426950408889634
C1 = -2 * LOG2E * math.sqrt(2 / math.pi)
C2 = C1 * 0.044715
GCHK = f"v_xor_b32 v27, {XTAG}, {v(GR + 1)}\nv_lshlrev_b32 v28, 4, v27\nv_cmp_ne_u32 vcc, 0, v28"
EXR = (22, 26)
side1 = [f"v_cmp_ne_u32 vcc, 0, v27", f"s_mov_b32 {T0}, 0x01000100", f"v_perm_b32 {v(XE)}, {v(GR)}, {v(GR)}, {T0}",
         "s_or_b32 s57, vcc_lo, vcc_hi", f"v_xor_b32 {v(XE)}, 0x80008000, {v(XE)}", f"v_lshrrev_b32 {v(XE + 1)}, 16, {v(GR)}",
         f"v_and_b32 {v(SD)}, 0xffff0000, {v(GR)}", f"v_rcp_f32 {v(RS)}, {v(SD)}", f"v_mov_b32 {v(SD + 1)}, {v(SD)}",
         f"v_mul_f32 {v(K1)}, 0x{f2u(C1):x}, {v(RS)}", f"v_mul_f32 {v(K2)}, {v(RS)}, {v(RS)}", f"v_mul_f32 {v(RL)}, 0x{f2u(LOG2E):x}, {v(RS)}",
         f"v_mul_f32 {v(K2)}, {v(K2)}, {v(RS)}", f"v_mov_b32 {v(RS + 1)}, {v(RS)}", f"v_mul_f32 {v(K2)}, 0x{f2u(C2):x}, {v(K2)}",
         f"v_mov_b32 {v(K1 + 1)}, {v(K1)}", f"v_mov_b32 {v(RL + 1)}, {v(RL)}", f"v_mov_b32 {v(K2 + 1)}, {v(K2)}"]
for st in range(8):
    for t in range(3):
        for b in range(4):
            p1_m(st, t, b)
            if st == 7 and t == OPT["gt"] and b == 0:
                P("s_waitcnt vmcnt(0)")
                P(GCHK)
                retry("L_gr", GLOAD, GCHK)
            elif st == 7 and t >= OPT["gt"]:
                for _ in range(3 if OPT["gt"] == 1 else 6):
                    if side1:
                        P(side1.pop(0))
            if b == 0:
                p1_x(st, t + 1)
            p1_w(st, t + 1, b)
    assert st < 7 or not side1
    p1_m(st, 3, 0)
    if st == 2 + OPT["chl"] + OPT["csd"]:
        P("ds_read_b32 v4, v28")
        lg.add(None)
    p1_m(st, 3, 1)
    if st == 5 + OPT["gl"]:
        P(GLOAD)
    lg.drain()
    if st == 7:
        stamp(0, "c8")
    P(f"s_barrier ; b{st + 1}")
    if st == 6:
        stamp(0, "b7")
    if st < 7:
        p1_x(st + 1, 0)
        p1_w(st + 1, 0, 0)
        p1_w(st + 1, 0, 1)
        p1_m(st, 3, 2)
        if st == 2 + OPT["chl"] + OPT["csd"] and not OPT["nst"] & 2:
            P(f"buffer_store_dwordx2 v[4:5], v27, {rWS}, {SCS2} offen {OPT['saux'] or ''}")
        if st == OPT["touch"] - 1:
            P(f"buffer_load_dword v8, v6, {rW2}, 0 offen\nbuffer_load_dword v9, v7, {rWO}, 0 offen")
        p1_w(st + 1, 0, 2)
        p1_w(st + 1, 0, 3)
        p1_m(st, 3, 3)
    else:
        P(f"v_mov_b32 v27, s57\ns_mov_b64 exec, 1\nds_write_b32 {v(CSIG)}, v27 offset:{L_FAST - L_PRG}\ns_mov_b64 exec, -1")
        lg.add(None)
        for b in range(4):
            P(f"ds_read_b64 {v(WR + 2 * b, 2)}, v29 offset:{512 * b}")
            lg.add(("ex", b))
        p1_m(st, 3, 2)
        p1_m(st, 3, 3)
        for b in range(4):
            lg.wait(("ex", b))
            P(f"v_mfma_f32_32x32x8bf16_1k {v(ACC + 16 * b, 16)}, {v(WR + 2 * b, 2)}, {v(XE, 2)}, {v(ACC + 16 * b, 16)}")
stamp(0, "b8")
if OPT["p1only"]:
    dump(0)
    P("s_endpgm")
    DIAG = 0
stamp(0, "ex1")

TT, UU = 32, 48


SKIP = [False]
def pairs(fmt, a):
    if SKIP[0]:
        return
    for p in range(8):
        P(fmt.format(T=v(TT + 2 * p, 2), A=v(a + 2 * p, 2)))


def singles(fmt):
    if SKIP[0]:
        return
    for r in range(16):
        P(fmt.format(T=v(TT + r)))


def cvt(dst, src=TT):
    for p in range(8):
        P(f"v_cvt_pk_bf16_f32 {v(dst + p)}, {v(src + 2 * p)}, {v(src + 2 * p + 1)}")


def epi_gelu(b, base, k, rdy=None, prev=None, last=True):
    a = ACC + 16 * b
    if rdy:
        peek(CPK, 28)
    pairs("v_pk_mul_f32 {T}, {A}, {A}", a)
    pairs("v_pk_fma_f32 {T}, {T}, %s, %s" % (v(K2, 2), v(K1, 2)), a)
    pairs("v_pk_mul_f32 {T}, {T}, {A}", a)
    if prev:
        signal(CSIG, 27, prev, True)
    singles("v_exp_f32 {T}, {T}")
    pairs("v_pk_fma_f32 {T}, {T}, %s, %s" % (v(SD, 2), v(SD, 2)), a)
    singles("v_rcp_f32 {T}, {T}")
    pairs("v_pk_mul_f32 {T}, {T}, {A}", a)
    cvt(a)
    if rdy:
        await_(CPK, 28, rdy, peeked=True)
    for h in range(2 if not OPT["nods"] else 0):
        P(f"ds_write_b128 v26, {v(a + 4 * h, 4)} offset:{base - L_HS + (2 * b + h) * 4096}")
        lg.add(None)
    if last:
        signal(CSIG, 27, k, True)


def epi_phi(b, dst):
    a = ACC + 16 * b
    pairs("v_pk_mul_f32 {T}, {A}, %s" % v(RL, 2), a)
    singles("v_exp_f32 {T}, {T}")
    pairs("v_pk_fma_f32 {A}, {A}, %s, 1.0 op_sel_hi:[1,1,0]" % v(RS, 2), a)
    for r in range(16):
        P(f"v_med3_f32 {v(TT + r)}, {v(TT + r)}, {v(a + r)}, 1.0")
    pairs("v_pk_add_f32 {T}, {T}, %s" % EPS2, a)
    cvt(dst)


def epi_lin(b, dst):
    a = ACC + 16 * b
    pairs("v_pk_mul_f32 {T}, {A}, %s" % v(RS, 2), a)
    cvt(dst)


AY, AS, AR = 64, 192, 128
RG = OPT["ring"]
NST = 30
WB, VA, FD, VF, XW, CPC2, TA, TB_, TC, XW2 = 96, 102, 104, 106, 108, 112, 113, 114, 115, 116
FHB = f"buffer_load_dword {v(FD)}, {v(VF)}, {rWS}, {SFHB} offen sc1"
FHA = f"buffer_load_dword {v(FD)}, {v(VF)}, {rWS}, {SFHA} offen sc1"
FH1 = f"buffer_load_dword {v(FD)}, {v(VF)}, {rWS}, s44 offen sc1"
FO = f"buffer_load_dword {v(FD + 1)}, {v(VF + 1)}, {rWS}, {SFO} offen sc1"
HBC = f"v_cmp_ne_u32 vcc, {NONCE}, {v(FD)}"
vm = Q("vmcnt", 63)


def aload(n, ks):
    if n >= NST or (OPT["noa"] and n >= RG):
        return
    P(f"buffer_load_dwordx4 {v(AR + 8 * (n % RG) + 4 * ks, 4)}, {v(VA + (n % 2 if n >= 16 else n >> 3))}, {rWS}, s{36 + (n & 7) if n < 16 else (8 + n - 16 if n < 22 else 36 + (n >> 1))} offen offset:{1024 * ks} {OPT['aaux'] or ''}")
    vm.add(("a", n, ks))


PRM = OPT["prime"]
def prime():
    for n in range(PRM):
        aload(n, 0)
        aload(n, 1)


nchk = [0]
def checkpoint():
    if not OPT["early"]:
        return
    nchk[0] += 1
    l = f"L_ck{nchk[0]}"
    P(f"s_getreg_b32 {T3}, hwreg(HW_REG_IB_STS, 0, 4)\ns_or_b32 {T3}, {T3}, {PRIMED}\ns_cbranch_scc1 {l}_x")
    P(f"s_waitcnt vmcnt(0)\n{HBC}\ns_cbranch_vccnz {l}_r")
    prime()
    P(f"s_mov_b32 {PRIMED}, 1")
    P.label(l + "_x")
    cold.append(f"{l}_r:\n{FHB}\ns_branch {l}_x")


def setup2():
    global P
    keep, P = P, Prog()
    P(f"v_and_b32 {v(VF + 1)}, 31, v0\nv_lshlrev_b32 {v(VF + 1)}, {2 + FX}, {v(VF + 1)}\nv_and_b32 {v(VF)}, {28 << FX}, {v(VF + 1)}")
    waddr(WB, TA, TB_, 2)
    P(f"v_add_u32 {v(WB)}, {SK12}, {v(WB)}\nv_xor_b32 {v(WB + 1)}, 64, {v(WB)}")
    for k in (1, 2):
        P(f"v_add_u32 {v(WB + 2 * k)}, 0x{64 * K * k:x}, {v(WB)}\nv_add_u32 {v(WB + 2 * k + 1)}, 0x{64 * K * k:x}, {v(WB + 1)}")
    P(f"v_lshrrev_b32 {v(TA)}, 1, {SK12}\nv_add_u32 {v(VA)}, {v(TA)}, {v(VH)}\nv_add_u32 {v(VA + 1)}, 0x1000, {v(VA)}")
    P(f"v_lshrrev_b32 {v(TA)}, 5, v0\nv_and_b32 {v(TB_)}, 7, v0\nv_xor_b32 {v(TA)}, {v(TA)}, {v(TB_)}\nv_lshlrev_b32 {v(TA)}, 4, {v(TA)}")
    P(f"v_and_b32 {v(TB_)}, 31, v0\nv_lshl_or_b32 {v(TA)}, {v(TB_)}, 8, {v(TA)}\nv_add_u32 {v(XW)}, {SXW}, {v(TA)}")
    for q in range(1, 4):
        P(f"v_xor_b32 {v(XW + q)}, {32 * q}, {v(XW)}")
    P(f"v_add_u32 {v(CPC2)}, 16, {v(CPK)}")
    for q in range(4):
        P(f"v_add_u32 {v(XW2 + q)}, {SXS}, {v(XW + q)}")
    lines, P = P.lines, keep
    return lines


def pass2(nb):
    side = setup2()
    n = 32 * nb
    def rd(m):
        if m >= n:
            return
        step, b = divmod(m, nb)
        off = CH(step >> 2) - 88 * K + (step & 3) * 2048
        f = WR + (m % 8) * 4
        tr(f, WA + 4 + b, off, None)
        tr(f + 2, WA + 4 + b, off + 512, ("p2", m))
    for m in range(7):
        rd(m)
    for m in range(n):
        step, b = divmod(m, nb)
        lg.wait(("p2", m))
        c = "0" if step == 0 else v(ACC + 16 * b, 16)
        P(f"v_mfma_f32_32x32x16_bf16 {v(ACC + 16 * b, 16)}, {v(WR + (m % 8) * 4, 4)}, {v(XR + 4 * step, 4)}, {c}")
        rd(m + 7)
        for _ in range(2 if nb == 1 else 1):
            if side and m >= 2 and not OPT["noside"]:
                P(side.pop(0))
        if m == max(6, n - OPT["smp"]) and not OPT["nosamp"]:
            P(FHB)
        if m == 5 and OPT["tlb"] == 1:
            P(f"buffer_load_dword {v(TC)}, {v(VF)}, {rWS}, {SBASE} offen sc1")
        if m == n - 6:
            if OPT["fill"] == 4:
                P("s_waitcnt vmcnt(0)" if OPT["nosamp"] else "s_waitcnt vmcnt(1)")
            for bb in range(nb):
                lg.room()
                P(f"ds_read_b64 {v(12 + 2 * bb, 2)}, v29 offset:{L_EX2 - L_EX1 + 512 * bb}")
                lg.add(("ex2", bb))
    while side:
        P(side.pop(0))
    checkpoint()
    lg.drain()
    signal(CSIG, 27, 8)
    for b in range(nb):
        P(f"v_mfma_f32_32x32x8bf16_1k {v(ACC + 16 * b, 16)}, {v(12 + 2 * b, 2)}, {v(XE, 2)}, {v(ACC + 16 * b, 16)}")


P(f"s_cmp_eq_u32 {TYPE}, 0")
P("s_cbranch_scc0 L_cB")
P(f"v_and_b32 v26, 31, v0\nv_lshrrev_b32 v27, 5, v0\ns_lshl_b32 {T0}, {W}, 5")
P(f"v_add_u32 v26, {T0}, v26\nv_mul_u32_u24 v26, {TROW}, v26\nv_lshl_add_u32 v26, v27, 3, v26\nv_add_u32 v26, 0x{TBUF:x}, v26")
for b in range(4):
    u = UU + 8 * (b & 1)
    SKIP[0] = bool(OPT["hack"] & 16) and b == 1
    (epi_phi if b < 2 else epi_lin)(b, u)
    SKIP[0] = False
    for q in range(4):
        P(f"ds_write_b64 v26, {v(u + 2 * q, 2)} offset:{64 * b + 16 * q}")
    if OPT["fill"] == 4 and b == OPT["fo"]:
        P(f"s_lshl2_add_u32 {T1}, {I_}, {W}\ns_mul_i32 {T1}, {T1}, {TB_STRIDE}\ns_lshl_b32 {T2}, {C_}, 12\ns_add_u32 {T1}, {T1}, {T2}\ns_add_u32 {T1}, {T1}, 0x{WS_HA + 86 * K:x}")
        P(f"v_lshlrev_b32 v16, 7, v0\nv_and_b32 v16, 0xfff, v16\nbuffer_load_dword v18, v16, {rWS}, {T1} offen")
    if "st0" in OPT:
        stamp(0, f"g{b}")
P(f"v_lshrrev_b32 v26, 2, v0\nv_mul_u32_u24 v26, {TROW}, v26\nv_and_b32 v27, 3, v0\nv_lshl_add_u32 v26, v27, 3, v26")
P(f"s_add_u32 {T0}, {T0}, 0x{TBUF:x}")
P(f"v_add_u32 v26, {T0}, v26")
for r in range(4):
    P(f"v_mov_b32 {v(104 + r)}, 0x3f803f80")
P(f"s_lshl_b32 {T0}, {C_}, 4\ns_add_u32 {T0}, {T0}, {I_}\ns_mul_i32 {T0}, {T0}, {KVP_STR}\ns_add_u32 {T0}, {T0}, 0x{WS_KVP:x}")
P(f"s_lshl_b32 {T1}, {W}, 10\ns_add_u32 {T1}, {T1}, {T0}")
P(f"s_lshl_b32 {T2}, {W}, 6\ns_add_u32 {T2}, {T2}, {T0}\ns_add_u32 {T2}, {T2}, 4096")
signal(CSIG, 27, 1, True)
P(f"v_add_u32 {v(CPC)}, 16, {v(CPK)}")
lg.q = []
await_(CPC, 27, 1)
stamp(0, "e1")
def kvm(mm):
    lg.wait(("kv", mm, 1))
    P(f"v_mfma_f32_16x16x32_bf16 v[96:99], {v(ACC + 8 * mm, 4)}, {v(ACC + 8 * mm + 4, 4)}, {'0' if mm == 0 else 'v[96:99]'}")
    P(f"v_mfma_f32_16x16x32_bf16 v[100:103], {v(ACC + 8 * mm, 4)}, v[104:107], {'0' if mm == 0 else 'v[100:103]'}")
for m in range(4):
    for o in range(2):
        f = ACC + 8 * m + 4 * o
        tr(f, 26, m * 32 * TROW + 128 * o, None)
        tr(f + 2, 26, (m * 32 + 16) * TROW + 128 * o, ("kv", m, o))
    if m >= 2:
        kvm(m - 2)
kvm(2)
kvm(3)
P(f"v_mov_b32 v104, {NONCE}")
for h in range(4):
    P(f"s_mov_b32 {T0}, 0x0706050{h}")
    P(f"v_perm_b32 {v(96 + h)}, {v(96 + h)}, v104, {T0}\nv_perm_b32 {v(100 + h)}, {v(100 + h)}, v104, {T0}")
P(f"buffer_store_dwordx4 v[96:99], {v(VH)}, {rWS}, {T1} offen sc1")
P("s_mov_b32 exec_lo, 0x00010001\ns_mov_b32 exec_hi, 0x00010001")
P(f"buffer_store_dwordx4 v[100:103], v0, {rWS}, {T2} offen sc1")
P("s_mov_b64 exec, -1")
signal(CSIG, 27, 2)
stamp(0, "kv")
await_(CPK, 27, 1)
stamp(0, "b10")
P("s_branch L_p2")
P.label("L_cB")
lg.q = []
P(f"s_lshl_b32 {T0}, {W}, 10\ns_add_u32 {T0}, {T0}, 0x{L_HS:x}")
P(f"v_add_u32 v26, {T0}, {v(VH)}")
if OPT["fill"] == 4:
    hblock2(T1)
    P(f"s_lshl2_add_u32 {T0}, {I_}, {W}\ns_mul_i32 {T0}, {T0}, {TB_STRIDE}\ns_add_u32 {T0}, {T0}, 0x{WS_HA:x}")
    P(f"s_lshl_b32 {T1}, {T1}, 11\ns_add_u32 {T1}, {T1}, {T0}\ns_lshl_b32 {T2}, {C_}, 13\ns_add_u32 {T0}, {T0}, {T2}")
    P(f"s_cmp_lt_u32 {C_}, 3")
    sel2(T2, 0xfff, 0x7ff)
    P(f"v_lshlrev_b32 v16, 7, v0\nv_and_b32 v17, {T2}, v16")
for b in range(4):
    SKIP[0] = bool(OPT["hack"] & 4) and b == 3
    epi_gelu(b, L_HS, b + 1, prev=b, last=(b == 3))
    SKIP[0] = False
    if OPT["fill"] == 4 and b == OPT["f1"]:
        P(f"buffer_load_dword v18, v16, {rWS}, {T0} offen")
    if OPT["fill"] == 4 and b == OPT["f2"]:
        P(f"buffer_load_dword v19, v17, {rWS}, {T1} offen")
    if "st0" in OPT:
        stamp(0, f"g{b}")
stamp(0, "e1")
await_(CPK, 28, 1)
stamp(0, "b10")
P(f"s_cmp_lt_u32 {C_}, 3")
P("s_cbranch_scc1 L_p2")
lg.q = [None] * 3
pass2(1)
stamp(0, "p2")
epi_gelu(0, L_PQ, 10, 2)
stamp(0, "e2")
P("s_branch L_c2")
P.label("L_p2")
lg.q = [None] * 3
pass2(2)
stamp(0, "p2")
P(f"s_cmp_eq_u32 {TYPE}, 0")
P("s_cbranch_scc0 L_cB2")
P(f"s_lshl_b32 {T0}, {W}, 12\ns_add_u32 {T0}, {T0}, 0x{L_PQ:x}")
P(f"v_add_u32 v26, {T0}, {v(VH)}")
lg.q = [None]
peek(CPC2, 28)
for b in range(2):
    SKIP[0] = bool(OPT["hack"] & 2) and b == 0
    epi_phi(b, UU + 8 * b)
    SKIP[0] = False
    if b == 0:
        await_(CPC2, 28, 2, peeked=True)
    for h in range(2):
        P(f"ds_write_b128 v26, {v(UU + 8 * b + 4 * h, 4)} offset:{(2 * b + h) * 1024}")
    if b == 0:
        checkpoint()
signal(CSIG, 27, 10, True)
stamp(0, "e2")
P("s_branch L_c2")
P.label("L_cB2")
lg.q = [None]
SKIP[0] = bool(OPT["hack"] & 1)
epi_gelu(0, L_PQ, 9, 2, last=False)
SKIP[0] = False
checkpoint()
epi_gelu(1, L_PQ, 10, prev=9)
stamp(0, "e2")
P.label("L_c2")
stamp(0, "c2")
stamp(0, "setup")
if OPT["quiet"]:
    dump(0)
    P("s_endpgm")
if OPT["nosamp"]:
    P(FHB)
P(f"s_cmp_lg_u32 {PRIMED}, 0\ns_cbranch_scc1 L_primed")
if not OPT["p2only"]:
    P(f"s_waitcnt vmcnt(0)\n{HBC}")
    retry("L_hb", FHB, HBC)
stamp(0, "hb_seen")
prime()
P.label("L_primed")
vm.q = [("a", n, ks) for n in range(PRM) for ks in range(2)]
gate = {8: OPT["cH1"], 16: OPT["cHA"], 22: OPT["cO"]}
nxt = [PRM, 0]
def aissue(n, k4):
    while nxt[0] < NST:
        nn, ks = nxt
        if nn in gate and (n, k4) < (gate[nn], 1):
            return
        if nn - RG > n or (nn - RG == n and k4 < 2 * ks + 1):
            return
        aload(nn, ks)
        nxt[:] = [nn, 1] if ks == 0 else [nn + 1, 0]
        return


def dec(m):
    if OPT["tl"] and m >= 4 * NST - 8:
        r = m - (4 * NST - 8)
        return NST - 2 + ((r >> 1) & 1), r & 1, r >> 2
    return m >> 2, (m >> 1) & 1, m & 1


def wrd(m):
    if m >= 4 * NST:
        return
    n, ks, ct = dec(m)
    ev = {OPT["gx"]: 4, 76: 5, 88: 6}
    if m + 5 in ev:
        peek(CPK, 20)
    if m == OPT["g2"]:
        signal(CSIG, 21, 12)
    if m == 72:
        signal(CSIG, 21, 13)
    if m == 93:
        peek(CPC2, 19)
    if m in ev:
        if m == OPT["gx"]:
            signal(CSIG, 21, 11)
        await_(CPK, 20, ev[m], peeked=True)
    so = slot_of(2 * n) + ks * 2048
    k = so // (64 * K)
    f = WR + (m % 8) * 4
    if OPT["now"] and m >= 8:
        return
    tr(f, WB + 2 * k + ct, so - 64 * K * k, None)
    tr(f + 2, WB + 2 * k + ct, so - 64 * K * k + 1024, ("w2", m))


def xwrite(acc, base, ct, q):
    lg.room()
    P(f"ds_write_b128 {v(base + q)}, {v(acc + 16 * ct + 4 * q, 4)} offset:{128 * ct}")
    lg.add(("xw", acc))


lg.q = []
stamp(0, "primed")
await_(CPK, 20, 3)
for m in range(7):
    wrd(m)
for n in range(NST):
    acc = AY if n < 22 else AS
    if n == 21:
        P(f"s_cmp_eq_u32 {KH}, 0")
    for k4 in range(4):
        m = 4 * n + k4
        na, ks, ct = dec(m)
        w = vm.need(("a", na, ks)) + " " + (lg.need(("w2", m | 1)) if OPT["w2"] else "") + lg.need(("w2", m))
        if w.strip():
            P("s_waitcnt " + w.strip())
        c = "0" if (n in (0, 22) and ks == 0) else v(acc + 16 * ct, 16)
        if n == 21:
            P(f"s_cbranch_scc0 L_null{k4}")
        P(f"v_mfma_f32_32x32x16_bf16 {v(acc + 16 * ct, 16)}, {v(WR + (m % 8) * 4, 4)}, {v(AR + 8 * (na % RG) + 4 * ks, 4)}, {c}")
        if OPT["tl"] and m >= 4 * NST - 2:
            for q in range(2):
                xwrite(AS, XW2, 0, 2 * (m & 1) + q)
        if n == 21:
            P.label(f"L_null{k4}")
        if k4 == 1:
            for nn, ld, fd, nm in ((8, FH1, FD, "h1"), (16, FHA, FD, "ha"), (22, FO, FD + 1, "o")):
                if n == max(0, gate[nn] - OPT["fl"]) and gate[nn] > 0:
                    P(ld)
                    vm.add("f" + nm)
                if n == gate[nn]:
                    vm.wait("f" + nm)
                    P(f"v_cmp_ne_u32 vcc, {NONCE}, {v(fd)}")
                    retry("L_" + nm, ld, f"v_cmp_ne_u32 vcc, {NONCE}, {v(fd)}")
                    stamp(0, nm + "_seen")
        aissue(n, k4)
        assert nxt[0] > n + 1 or nxt[0] == NST or (nxt[0] == n + 1 and k4 < 3), (n, k4, nxt)
        wrd(m + 7)
        if m == 91:
            await_(CPC2, 19, 13, peeked=True)
        if m >= 91 and (m - 91) % OPT["ys"] == 0 and (m - 91) // OPT["ys"] < 8:
            xwrite(AY, XW, ((m - 91) // OPT["ys"]) >> 2, ((m - 91) // OPT["ys"]) & 3)
        if m == 91 + 7 * OPT["ys"] + OPT["dy"]:
            lg.wait(("xw", AY))
            P("s_barrier ; dY")
    if "st0" in OPT:
        stamp(0, f"n{n}")
stamp(0, "sdone")
for ct in range(1 if OPT["tl"] else 0, 2):
    for q in range(4):
        xwrite(AS, XW2, ct, q)
P("s_setprio 0")
lg.drain()
P("s_barrier ; dS")
P(f"s_or_b32 {T0}, s2, {W}\ns_cmp_eq_u32 {T0}, 0")
P("s_cbranch_scc0 L_cend")
flag_store(T0)
P.label("L_cend")
dump(0)
P("s_endpgm")
flush_cold()
P.label("L_codeend")

body = P.finish()
hdr = f"""; out = x + (linear_attention(LN x) wo) * silu(gelu(LN x w1 + b1) w2 + b2), one launch, 256 workgroups (one per CU).
; Phase 1: workgroup (row block i of 128 tokens, column j).  Even j: k,v then q of four heads; odd j: 5-6 blocks of 32
;   hidden features.  x stays in registers as B fragments; LayerNorm is folded in exactly: the GEMM runs on raw x, one
;   read straight from d_ws behind per-producer flags; written through, so any placement works.  Flags go through the
;   die's L2 only when the producer has seen that its whole row block shares that die, else they are written through too.
; @launch grid=(256,1,1) block=(512,1,1) lds=163840
.amdgcn_target "amdgcn-amd-amdhsa--gfx950"
.text
.globl {KNAME}
.p2align 8
.type {KNAME},@function
{KNAME}:
"""
tail = f"""
.section .rodata,"a"
.p2align 6
.amdhsa_kernel {KNAME}
  .amdhsa_next_free_vgpr 256
  .amdhsa_next_free_sgpr 102
  .amdhsa_accum_offset 256
  .amdhsa_group_segment_fixed_size 0
  .amdhsa_kernarg_size 88
  .amdhsa_user_sgpr_count 2
  .amdhsa_user_sgpr_kernarg_segment_ptr 1
  .amdhsa_system_sgpr_workgroup_id_x 1
  .amdhsa_float_denorm_mode_32 3
.end_amdhsa_kernel
"""
if OPT["diag"]:
    tail += f"; STAMPS0 {' '.join(slots[0])}\n"
sys.stdout.write(hdr + body + tail)
sys.stderr.write(f"pads {P.npad}\n")
```

```python
import sys, os, struct, math
from asmlib import Prog, v, s

KNAME = "recurrent_scan__linear_attn_block__dense_activation_gelu__prompt_kernel"
OPT = dict(diag=0, outaux="sc1", map1=81, spin=16, codepf=1, ldfirst=1, prio=1,
           nA9=3, nA10=7, nB10=8, mf=56, cprio=3, gx=36, n6=2, n7=1, kA=12, lag=8, sp=0, sp0=0, nost=0, slp=2, kvw=0, gprio=3, sA=4, xB=8, fast=1, nt1=2, trow=272, nosamp=0, e1B=4, iB2=2, e1A=20, gd=16, lB2=5, lB1=0, cw=1, tlb=0, fill=0, f1=0, f2=9, fo=0, wsoff=0, wprio=3, l1=9, fence=1, inl=1, w0=4, w1=6, w0c=4, quiet=0, nosig=0, noside=0, nt2=2, wb=0, lB=0, hk1=0, lA0=8, lA=0, kq=2, wbj=0, kA0=12, kA1=8, kA2=0, rotx=1, spx=0, pB=10, iB=0, ring=4, nods=0, lsl=0, yB=12, zB=4, yB1=2, zB1=4, aaux="sc1", ahot=0, g2=52, rot2=1, pace=0, pace1=0, dy=2, ys=1, w2=1, p2only=0, plain=0, stouch=0, nst=0, saux="sc1", csprio=3, early=0, map2=81, smp=28, noa=0, now=0, la=7, touch=0, ltouch=1, gl=0, eb=1, chl=0, preA=0, tl=1, xnt=0, snt=0, wnt=0, latem=0, lm=4, lateA=-1, lateB=-1, lsel=0, hack=0, rv=0, s1h=0, late=6, lw=0, r0=0, r1=0, r2=0, rall=0, chx=0, s1late=0, nostat=0, csd=0, gt=2, nar=1, seq=0, kslp=2, fsx=0, pg=0, fprio=1, f6=0, prime=4, cH1=4, cHA=12, cO=18, fl=4, ft=1, exprio=1, stdiag=0, p1only=0, nocomp=0, norot=0, noload=0, nocs=0)
for a in sys.argv[1:]:
    k, val = a.split("=")
    OPT[k] = val if not val.lstrip("-").isdigit() else int(val)
DIAG = OPT["diag"]
assert OPT["gx"] <= 36


def f2u(x):
    return struct.unpack("<I", struct.pack("<f", x))[0]


K = 1024
WS_STATS = 0x1000
FX = 5 if OPT["fsx"] else 0
LN = 128 << FX
WS_FLAGS = 0xA00000 if FX else 0x8000
FL_HB, FL_HA, FL_O, FL_H1 = 0, 64, 128, 192
WS_KVP = 0x10000
KVP_STR = 4352
WS_CS = 0xA0000
WS_HA = 0x140000 + OPT["wsoff"] * 0x100000
TB_STRIDE = 118 * K
WS_DIAG = 0x900000
WS_SIZE = (0xB00000 if FX else 0xA00000) + OPT["wsoff"] * 0x100000
def CH(q):
    return 96 * K + 8 * K * q if q < 7 else 88 * K
TBUF = 52 * K
TROW = OPT["trow"]
L_EX1 = 152 * K
L_CSX = 156 * K
L_RDY = 154 * K
L_PRG = L_RDY + 16
L_TAG = L_RDY + 32
L_FAST = L_RDY + 48
L_EX2 = 155 * K
L_KT = 156 * K
L_PQ = 72 * K
L_HS = 52 * K
L_XY = 112 * K
L_XS0, L_XS1 = 72 * K, 144 * K
def slot_of(p):
    if p < 18:
        return p * 4 * K
    if p < 34:
        return CH((p - 18) >> 1) + (p & 1) * 4 * K
    if p < 38:
        return 72 * K + (p - 34) * 4 * K
    return slot_of(p - 38)

rX, rP1, rP2, rWS, rW2, rWO, rA, rB = (s(n, 4) for n in (4, 8, 12, 16, 20, 24, 28, 32))
P_X, P_QKV, P_WO, P_W1, P_B1, P_W2, P_B2, P_OUT, P_WS = 36, 38, 40, 44, 46, 48, 50, 52, 56
NONCE, W, I_, J_, C_, TYPE, RHO, TB2, CT, RHO2 = (s(n) for n in range(58, 68))
T0, T1, T2, T3 = (s(n) for n in range(68, 72))

P = Prog()


class Q:
    def __init__(self, name, mx):
        self.q, self.name, self.mx = [], name, mx

    def room(self):
        if len(self.q) >= self.mx:
            P(f"s_waitcnt {self.name}({self.mx - 1})")
            self.q = self.q[len(self.q) - (self.mx - 1):]

    def add(self, tag=None):
        self.q.append(tag)

    def need(self, tag):
        if tag not in self.q:
            return ""
        idx = max(i for i, t in enumerate(self.q) if t == tag)
        n = len(self.q) - 1 - idx
        assert n <= self.mx, (self.name, n)
        self.q = self.q[idx + 1:]
        return f"{self.name}({n})"

    def wait(self, tag):
        t = self.need(tag)
        if t:
            P("s_waitcnt " + t)

    def drain(self, force=False):
        if self.q or force:
            P(f"s_waitcnt {self.name}(0)")
        self.q = []


slots = [{}, {}]
def stamp(role, name):
    if not DIAG:
        return
    want = str(OPT.get(f"st{role}", "")).split(",")
    if want != [""] and name not in want and name not in ("start", "end"):
        return
    n = slots[role].setdefault(name, len(slots[role]))
    if DIAG >= 3:
        assert n < 9, (role, name)
        P(f"{'s_memtime' if DIAG == 4 else 's_memrealtime'} s[{80 + 2 * n}:{81 + 2 * n}]")
        return
    assert n < 16, (role, name)
    P(f"{'s_memtime' if DIAG == 2 else 's_memrealtime'} s[96:97]\ns_waitcnt lgkmcnt(0)\ns_mov_b32 s{80 + n}, s96")


def sreg(r):
    return int(r[2:r.index(":")])


def srd(r, ptr, size):
    n = sreg(r)
    P(f"s_mov_b32 s{n}, s{ptr}\ns_mov_b32 s{n+1}, s{ptr+1}\ns_mov_b32 s{n+2}, 0x{size:x}\ns_mov_b32 s{n+3}, 0x20000")


def sel2(dst, a, b):
    P(f"s_mov_b32 {dst}, 0x{b:x}\ns_cmov_b32 {dst}, 0x{a:x}")


cold = []


def flush_cold():
    for t in cold:
        P(t)
    cold.clear()


def spin_text(lbl, load, check):
    t = f"s_mov_b32 {T3}, {1 << OPT['spin']}\n{lbl}:\n{load}\ns_waitcnt vmcnt(0)\n{check}\n"
    t += f"s_sub_u32 {T3}, {T3}, 1\ns_cbranch_scc1 {lbl}_x\ns_cbranch_vccz {lbl}_x\n"
    n = OPT["kslp"] if lbl in ("L_kv", "L_cs", "L_gr") else OPT["slp"]
    if n:
        t += f"s_sleep {n}\n"
    return t + f"s_branch {lbl}"


def spin(lbl, load, check):
    P(spin_text(lbl, load, check))
    P.label(lbl + "_x")


def retry(lbl, load, check):
    if OPT["inl"]:
        P(f"s_cbranch_vccz {lbl}_x")
        spin(lbl, load, check)
        return
    P(f"s_cbranch_vccnz {lbl}_s")
    P.label(lbl + "_x")
    cold.append(f"{lbl}_s:\n" + spin_text(lbl, load, check))


HX = "row"
FAR = "s46"
nrow = [0]
def row_store(text, nt=0):
    if not OPT["fast"] or nt == 2:
        P(text + " sc1")
        return
    nrow[0] += 1
    l = f"L_r{nrow[0]}"
    P(f"s_cmp_lg_u32 {FAR}, 0\ns_cbranch_scc1 {l}\n{text} {'nt' if nt else ''}\n{l}_x:")
    cold.append(f"{l}:\n{text} sc1\ns_branch {l}_x")


def flag_store(sreg_off, va=26, aux="sc1"):
    P(f"v_mov_b32 {v(va)}, {NONCE}\nv_mov_b32 {v(va+1)}, 0")
    P("s_mov_b64 exec, 1")
    if aux == "row":
        row_store(f"buffer_store_dword {v(va)}, {v(va+1)}, {rWS}, {sreg_off} offen")
    else:
        P(f"buffer_store_dword {v(va)}, {v(va+1)}, {rWS}, {sreg_off} offen {aux}")
    P("s_mov_b64 exec, -1")


def signal(vaddr, vtmp, k, fence=False):
    if fence and OPT["fence"]:
        lg.drain(force=True)
    P(f"v_mov_b32 {v(vtmp)}, {k}\ns_mov_b64 exec, 1\nds_write_b32 {v(vaddr)}, {v(vtmp)}\ns_mov_b64 exec, -1")
    lg.add(None)


nwait = [0]
def peek(vaddr, vd):
    lg.room()
    P(f"ds_read_b32 {v(vd)}, {v(vaddr)}")
    lg.add(("peek", vd))


def await_(vaddr, vd, k, peeked=False):
    nwait[0] += 1
    lbl = f"L_w{nwait[0]}"
    if not peeked:
        peek(vaddr, vd)
    lg.wait(("peek", vd))
    P(f"v_cmp_gt_u32 vcc, {k}, {v(vd)}")
    loop = (f"s_mov_b32 {T3}, {1 << 20}\n{lbl}:\nds_read_b32 {v(vd)}, {v(vaddr)}\ns_sub_u32 {T3}, {T3}, 1\ns_waitcnt lgkmcnt(0)\n"
            f"v_cmp_gt_u32 vcc, {k}, {v(vd)}\ns_cbranch_scc1 {lbl}_x\ns_cbranch_vccnz {lbl}")
    if OPT["inl"]:
        P(f"s_cbranch_vccz {lbl}_x\n{loop}")
    else:
        P(f"s_cbranch_vccnz {lbl}_s")
        cold.append(f"{lbl}_s:\n{loop}\ns_branch {lbl}_x")
    P.label(lbl + "_x")


def hblock2(dst):
    P(f"s_lshl_b32 {dst}, {C_}, 1\ns_add_u32 {T3}, {C_}, 3\ns_min_u32 {dst}, {dst}, {T3}\ns_add_u32 {dst}, {dst}, 32")


def waddr(dst, t1, t2, hshift):
    P(f"v_lshrrev_b32 {v(t1)}, 5, v0\nv_bfe_u32 {v(t2)}, v0, 2, 2\nv_lshl_add_u32 {v(t1)}, {v(t1)}, {hshift}, {v(t2)}")
    P(f"v_lshlrev_b32 {v(dst)}, 7, {v(t1)}")
    P(f"v_bfe_u32 {v(t1)}, v0, 3, 1\nv_lshl_or_b32 {v(dst)}, {v(t1)}, 6, {v(dst)}")
    P(f"v_bfe_u32 {v(t1)}, v0, 4, 1\nv_lshl_or_b32 {v(dst)}, {v(t1)}, 5, {v(dst)}")
    P(f"v_and_b32 {v(t1)}, 3, v0\nv_lshl_or_b32 {v(dst)}, {v(t1)}, 3, {v(dst)}")


def tr(dst, addr, off, tag):
    assert 0 <= off < 65536, off
    lg.room()
    P(f"ds_read_b64_tr_b16 {v(dst, 2)}, {v(addr)} offset:{off}")
    lg.add(tag)


def dump(role):
    if not DIAG:
        return
    P("s_waitcnt vmcnt(0)")
    stamp(role, "end")
    P("s_waitcnt lgkmcnt(0)")
    for n in range(16):
        P(f"v_mov_b32 {v(32 + n)}, {s(80 + n) if DIAG < 3 else (s(80 + 2 * n) if n < 10 else ('s100' if n == 15 else 0))}")
    if role == 1 and DIAG >= 3 and OPT.get("xcc"):
        P(f"s_getreg_b32 {T0}, hwreg(HW_REG_XCC_ID, 0, 4)\ns_min_u32 {T1}, s46, 1\ns_lshl4_add_u32 {T0}, {T1}, {T0}\nv_mov_b32 v45, {T0}")
    P(f"s_lshl_b32 {T0}, s2, 3\ns_add_u32 {T0}, {T0}, {W}\ns_lshl_b32 {T0}, {T0}, 6\ns_add_u32 {T0}, {T0}, 0x{WS_DIAG + role * 256:x}")
    P("v_mov_b32 v26, 0\ns_mov_b64 exec, 1")
    for n in range(4):
        P(f"buffer_store_dwordx4 {v(32 + 4 * n, 4)}, v26, {rWS}, {T0} offen offset:{16 * n}")


P("s_cmp_ge_u32 s2, 256")
P("s_cbranch_scc1 L_end")
if DIAG >= 3:
    P("s_memrealtime s[100:101]")
P("s_load_dwordx16 s[36:51], s[0:1], 0")
P("v_lshrrev_b32 v1, 6, v0")
P("v_and_b32 v0, 63, v0")
P(f"v_lshlrev_b32 v2, 2, v1\nv_add_u32 v2, 0x{L_RDY:x}, v2\nv_mov_b32 v3, 0\nds_write_b32 v2, v3")
if OPT["map1"] == 81:
    P(f"s_lshr_b32 {T3}, s2, 7\nv_readfirstlane_b32 {T2}, v1\ns_and_b32 {I_}, s2, 7\ns_bfe_u32 {J_}, s2, 0x40003")
    if OPT["rv"] == 1:
        P(f"s_and_b32 {T1}, s2, 3\ns_lshl1_add_u32 {I_}, {I_}, {T3}\ns_lshl2_add_u32 {RHO}, {T3}, {T1}")
    else:
        P(f"s_lshl2_add_u32 {RHO}, {T3}, {J_}\ns_and_b32 {T1}, s2, 3\ns_lshl1_add_u32 {I_}, {I_}, {T3}\ns_add_u32 {RHO}, {RHO}, {T1}\ns_and_b32 {RHO}, {RHO}, 7")
    if OPT["rv"] == 2:
        P(f"s_lshr_b32 {T1}, {J_}, 1\ns_sub_u32 {RHO}, {RHO}, {J_}\ns_add_u32 {RHO}, {RHO}, {T1}\ns_and_b32 {RHO}, {RHO}, 7")
elif OPT["map1"] == 24:
    P(f"s_lshr_b32 {T3}, s2, 5\nv_readfirstlane_b32 {T2}, v1\ns_and_b32 {I_}, s2, 4\ns_bfe_u32 {T1}, s2, 0x20003\ns_and_b32 {J_}, s2, 3")
    P(f"s_lshl1_add_u32 {I_}, {I_}, {T3}\ns_lshl2_add_u32 {J_}, {J_}, {T1}\ns_lshl1_add_u32 {RHO}, {T1}, {T3}\ns_and_b32 {T1}, s2, 1\ns_add_u32 {RHO}, {RHO}, {T1}\ns_and_b32 {RHO}, {RHO}, 7")
else:
    P(f"s_lshr_b32 {T3}, s2, 6\nv_readfirstlane_b32 {T2}, v1\ns_and_b32 {I_}, s2, 6\ns_bfe_u32 {T1}, s2, 0x30003\ns_and_b32 {J_}, s2, 1")
    P(f"s_lshl1_add_u32 {I_}, {I_}, {T3}\ns_lshl3_add_u32 {J_}, {J_}, {T1}\ns_lshl1_add_u32 {RHO}, {T3}, {T1}\ns_bfe_u32 {T1}, s2, 0x10001\ns_add_u32 {RHO}, {RHO}, {T1}\ns_and_b32 {RHO}, {RHO}, 7")
P(f"s_and_b32 {W}, {T2}, 3")
def late_args():
    P("s_load_dwordx4 s[52:55], s[0:1], 64")
    P("s_load_dwordx2 s[56:57], s[0:1], 80")
    P(f"s_lshr_b32 {C_}, {J_}, 1\ns_and_b32 {TYPE}, {J_}, 1")
def diag_init():
    if DIAG:
        for n in range(20):
            P(f"s_mov_b32 s{80 + n}, 0")


RHOS, RHOA = "s3", "s47"
def tile2():
    if OPT["map2"] == 42:
        P(f"s_lshr_b32 {T3}, s2, 5\ns_bfe_u32 {TB2}, s2, 0x20001\ns_lshl_b32 {TB2}, {TB2}, 3\ns_add_u32 {TB2}, {TB2}, {T3}")
        P(f"s_bfe_u32 {RHO2}, s2, 0x20003\ns_and_b32 {CT}, s2, 1\ns_lshl_b32 {CT}, {CT}, 2\ns_add_u32 {CT}, {CT}, {RHO2}")
        P(f"s_lshl_b32 {RHO2}, {RHO2}, 1\ns_add_u32 {RHO2}, {RHO2}, {T3}\ns_and_b32 {RHO2}, {RHO2}, 7")
        return
    P(f"s_lshr_b32 {T3}, s2, 6\ns_and_b32 {TB2}, s2, 7\ns_lshl_b32 {TB2}, {TB2}, 2\ns_add_u32 {TB2}, {TB2}, {T3}")
    P(f"s_bfe_u32 {CT}, s2, 0x30003\ns_lshl_b32 {RHO2}, {T3}, 1\ns_add_u32 {RHO2}, {RHO2}, {CT}\ns_and_b32 {RHO2}, {RHO2}, 7")
    P(f"s_add_u32 {RHOS}, {T3}, {CT}\ns_mul_i32 {RHOA}, {T3}, 3\ns_and_b32 {T3}, {CT}, 1\ns_add_u32 {RHOA}, {RHOA}, {T3}")
    if not OPT["rotx"]:
        P(f"s_mov_b32 {RHOS}, {RHO2}\ns_mov_b32 {RHOA}, 0")


P(f"s_cmp_lt_u32 {T2}, 4")
P("s_cbranch_scc1 L_loader")
late_args()
if OPT["codepf"]:
    P("s_getpc_b64 s[32:33]")
    P.label("L_pc")
    P("s_mov_b32 s34, L_codeend-L_pc\ns_mov_b32 s35, 0x20000")
    P(f"s_lshr_b32 {T0}, s2, 3\ns_lshl2_add_u32 {T1}, {T0}, {W}\ns_lshl_b32 {T1}, {T1}, 7\nv_and_b32 v4, 3, v0\nv_lshl_add_u32 v4, v4, 14, {T1}")
    P("buffer_load_dword v31, v4, s[32:35], 0 offen")
P("s_branch L_compute")
P.label("L_loader")

lg = Q("lgkmcnt", 15)
vm = Q("vmcnt", 63)
VX, VP1, VP2, VW2, VBI, LWA, LWB, VL16, SEL, CS, CS2 = 1, 2, 3, 4, 5, 6, 7, 8, 12, 16, 20
RS1, RS32, SX0, SW0, DCOL, SP20, SM, HB0L = (s(n) for n in range(72, 80))
if DIAG < 3:
    diag_init()
    stamp(1, "start")
P("v_lshrrev_b32 v24, 3, v0\nv_and_b32 v25, 7, v0\nv_lshrrev_b32 v26, 4, v0")
P(f"s_and_b32 {T0}, {W}, 1\ns_lshl_b32 {T0}, {T0}, 2\ns_lshl4_add_u32 {SX0}, {I_}, {W}")
P(f"v_add_u32 v27, {T0}, v26\nv_xor_b32 v27, v27, v25\nv_lshlrev_b32 v27, 4, v27\nv_lshl_or_b32 {v(VX)}, v24, 10, v27")
P(f"s_lshl_b32 {SX0}, {SX0}, 13\ns_lshl_b32 {SM}, {W}, 10")
P("s_mov_b32 s6, 0x200000\ns_mov_b32 s7, 0x20000")
SZQ, SZ1 = 512 * 3072, 512 * 2752


def wsetup():
    late_args()
    P(f"s_setprio {OPT['prio']}")
    P(f"s_lshl_b32 {T1}, {C_}, 7\ns_cmp_eq_u32 {TYPE}, 0")
    sel2(RS1, 3072, 2752)
    sel2(DCOL, 1024, 128)
    sel2("s10", SZQ, SZ1)
    P(f"s_cselect_b32 s8, s{P_QKV}, s{P_W1}\ns_cselect_b32 s9, s{P_QKV+1}, s{P_W1+1}\ns_mov_b32 s11, 0x20000")
    P(f"s_cselect_b32 {SW0}, 1024, {T1}\ns_add_u32 {SW0}, {SW0}, {T1}")
    P("v_and_b32 v27, 1, v26\nv_lshlrev_b32 v27, 2, v27\nv_xor_b32 v27, v27, v25\nv_lshlrev_b32 v27, 4, v27")
    P(f"v_mad_u32_u24 {v(VP1)}, v24, {RS1}, v27")
    P(f"s_lshl_b32 {T3}, {W}, 3\ns_mul_i32 {SP20}, {T3}, {RS1}\ns_add_u32 {SW0}, {SW0}, {SP20}\ns_lshl_b32 {RS32}, {RS1}, 5")


def wsetup2():
    hblock2(HB0L)
    P(f"s_lshl_b32 {T0}, {HB0L}, 6\ns_lshl_b32 {T1}, {C_}, 7\ns_cmp_eq_u32 {TYPE}, 0\ns_cselect_b32 {T0}, {T1}, {T0}\ns_add_u32 {SP20}, {SP20}, {T0}")
    P(f"v_lshl_or_b32 {v(VW2)}, v24, 10, v27")


def dma(voff, srdr, soff, tag, nt=False):
    if OPT["noload"]:
        return
    P(f"buffer_load_dwordx4 {v(voff)}, {srdr}, {soff} offen {'nt ' if nt else ''}lds")
    vm.add(tag)


def ks_reg(q):
    P(f"s_add_u32 {T0}, {RHO}, {q}\ns_and_b32 {T0}, {T0}, 7" if q else f"s_mov_b32 {T0}, {RHO}")


def stage(q, mid=None, pre=None):
    sl = (q % 3) * 32 * K
    ks_reg(q)
    P(f"s_lshl_b32 {T1}, {T0}, 7\ns_add_u32 {T1}, {T1}, {SX0}")
    for m in range(4):
        P(f"s_add_u32 m0, {SM}, {sl + 4 * K * m}")
        if m:
            P(f"s_add_u32 {T1}, {T1}, 32768")
        else:
            P(f"s_lshl_b32 {T0}, {T0}, 6")
            if pre:
                pre()
        dma(VX, rX, T1, ("st", q), q < OPT["xnt"])
    if mid:
        mid()
    P(f"s_mul_i32 {T0}, {T0}, {RS1}\ns_add_u32 {T0}, {T0}, {SW0}")
    for h in range(2):
        if h:
            P(f"s_add_u32 {T0}, {T0}, {RS32}")
        P(f"s_add_u32 m0, {SM}, {sl + 16 * K + 4 * K * h}")
        P(f"s_add_u32 {T1}, {T0}, {DCOL}")
        dma(VP1, rP1, T0, ("st", q), q >= 8 - OPT["wnt"])
        P(f"s_add_u32 m0, {SM}, {sl + 24 * K + 4 * K * h}")
        dma(VP1, rP1, T1, ("st", q), q >= 8 - OPT["wnt"])


def chunk(q, tag="ch"):
    ks_reg(q)
    P(f"s_lshl_b32 {T0}, {T0}, 6\ns_mul_i32 {T0}, {T0}, {RS1}")
    P(f"s_add_u32 m0, {SM}, {CH(q)}\ns_add_u32 {T0}, {T0}, {SP20}")
    dma(VP1, rP1, T0, tag)
    P(f"s_add_u32 m0, {SM}, {CH(q) + 4 * K}\ns_add_u32 {T0}, {T0}, {RS32}")
    dma(VP1, rP1, T0, tag)


LPA, LPL = "s48", "s49"
LPB, LGB, SCS = "s36", "s37", "s38"
CHR, MID, PQR, D0, D1 = 48, 104, 212, 32, 228


def page_addr(p):
    if p < 32:
        if p % 2 == 0 or page_addr.last != ("b", p >> 1):
            P(f"s_add_u32 {LGB}, {RHO2}, {(p >> 1) & 7}\ns_and_b32 {LGB}, {LGB}, 7\ns_lshl_b32 {LGB}, {LGB}, 17\ns_add_u32 {LGB}, {LGB}, {LPB}")
            page_addr.last = ("b", p >> 1)
        P(f"s_add_u32 {T0}, {LGB}, {(2 * (p >> 4) + (p & 1)) * 32768}")
        return rW2
    elif p < 44:
        P(f"s_add_u32 {T0}, {LPA}, {(p - 32) * 32768}\ns_cmp_ge_u32 {T0}, {LPL}\ns_cselect_b32 {T1}, {11 * 32768}, 0\ns_sub_u32 {T0}, {T0}, {T1}")
        return rW2
    else:
        g, mask, sr, add = (p - 44) >> 2, 3, rWO, 0
    if p % 4 == 0 or page_addr.last != (p >> 2):
        P(f"s_add_u32 {LGB}, {RHOS}, {g}\ns_and_b32 {LGB}, {LGB}, {mask}\ns_lshl_b32 {LGB}, {LGB}, 17\ns_add_u32 {LGB}, {LGB}, {LPB}")
        page_addr.last = p >> 2
    P(f"s_add_u32 {T0}, {LGB}, {(p % 4) * 32768}")
    return sr
page_addr.last = None


def page(p):
    P(f"s_add_u32 m0, {SM}, {slot_of(p)}")
    sr = page_addr(p)
    dma(VW2, sr, T0, ("pg", p))


def stg_reg(p):
    if p < 38:
        return MID + 4 * (p - 18)
    k = p - 38 if p < 43 else p - 39
    return CHR + 4 * k if k < 14 else 184 + 4 * (k - 14)


def lds16(a):
    return f"{v(VL16 + a // (64 * K))}", a % (64 * K)


VP2N = 23
def chunk_stage(q):
    if OPT["nar"] and q == 1:
        P(f"s_cmp_ge_u32 {C_}, 3\ns_cselect_b32 {T0}, {TYPE}, 0\ns_lshl_b32 {T0}, {T0}, 6\ns_not_b32 {T0}, {T0}")
        P(f"v_lshrrev_b32 v27, 3, v0\nv_mul_u32_u24 v27, {RS1}, v27\nv_sub_u32 v28, {v(VP1)}, v27\nv_and_b32 v28, {T0}, v28\nv_add_u32 {v(VP2N)}, v27, v28")
    ks_reg(q)
    P(f"s_lshl_b32 {T0}, {T0}, 6\ns_mul_i32 {T0}, {T0}, {RS1}\ns_add_u32 {T0}, {T0}, {SP20}\ns_add_u32 {T1}, {T0}, {RS32}")
    for h in range(2):
        P(f"buffer_load_dwordx4 {v(CHR + 8 * (q - 1) + 4 * h, 4)}, {v(VP2N if OPT['nar'] else VP1)}, {rP1}, {(T0, T1)[h]} offen")
        vm.add(("ch", q))


def chunk_write(q):
    vm.wait(("ch", q))
    for h in range(2):
        a, off = lds16(CH(q) + 4 * K * h)
        P(f"ds_write_b128 {a}, {v(CHR + 8 * (q - 1) + 4 * h, 4)} offset:{off}")


def page_stage(p):
    sr = page_addr(p)
    P(f"buffer_load_dwordx4 {v(stg_reg(p), 4)}, {v(VW2)}, {sr}, {T0} offen")
    vm.add(("pg", p))


def page_write(p, pace=0):
    so = slot_of(p)
    a, off = (VL16, so) if so < 64 * K else ((VL16 + 1, so - 64 * K) if so < 128 * K else (VL16 + 2, so - 128 * K))
    P(f"ds_write_b128 {v(a)}, {v(stg_reg(p), 4)} offset:{off}")
    if pace:
        P("s_waitcnt lgkmcnt(0)")


stage(0, wsetup, lambda: P(f"s_waitcnt lgkmcnt(0)\ns_mov_b32 s4, s{P_X}\ns_mov_b32 s5, s{P_X+1}"))
if DIAG >= 3:
    diag_init()
    stamp(1, "start")
stamp(1, "st0")
wsetup2()
if not OPT["chl"]:
    chunk(0, "ch0")
P("s_waitcnt lgkmcnt(0)")
P(f"s_load_dword {NONCE}, s[{P_WS}:{P_WS+1}], 0")
srd(rWS, P_WS, WS_SIZE)
srd(rW2, P_W2, 1376 * 1024)
srd(rWO, P_WO, 512 * 1024)
srd(rA, P_B1, 2752)
tile2()
waddr(LWA, 27, 28, 3)
P(f"s_and_b32 {T0}, {W}, 1\ns_lshl_b32 {T0}, {T0}, 6")
P(f"v_xor_b32 {v(LWA)}, {T0}, {v(LWA)}")
P(f"v_add_u32 {v(LWB)}, 0x{CH(0):x}, {v(LWA)}")
P(f"s_lshr_b32 {T0}, {W}, 1\ns_lshl_b32 {T0}, {T0}, 13\ns_add_u32 {T0}, {T0}, {16 * K}")
P(f"v_add_u32 {v(LWA)}, {T0}, {v(LWA)}")
P("v_and_b32 v27, 15, v0\nv_lshlrev_b32 v28, 2, v26\nv_cmp_eq_u32 vcc, v27, v28\nv_mov_b32 v27, 0x3f803f80")
for r in range(4):
    P(f"v_cndmask_b32 {v(SEL + r)}, 0, v27, vcc")
P(f"v_lshl_add_u32 {v(VL16)}, v0, 4, {SM}")
P(f"v_add_u32 {v(VL16+1)}, 0x10000, {v(VL16)}\nv_add_u32 {v(VL16+2)}, 0x20000, {v(VL16)}")
P(f"s_lshl_b32 {LPB}, {W}, 13\ns_lshl_b32 {T1}, {CT}, 7\ns_add_u32 {LPB}, {LPB}, {T1}")
P(f"s_lshl_b32 {LPA}, {RHOA}, 15\ns_add_u32 {LPA}, {LPA}, {LPB}\ns_add_u32 {LPA}, {LPA}, {32 * 32768}\ns_add_u32 {LPL}, {LPB}, {43 * 32768}")
P(f"s_lshl_b32 {SCS}, {J_}, 1\ns_lshr_b32 {T0}, {I_}, 3\ns_add_u32 {SCS}, {SCS}, {T0}\ns_lshl_b32 {SCS}, {SCS}, 2")
P(f"s_add_u32 {SCS}, {SCS}, {W}\ns_lshl_b32 {SCS}, {SCS}, 12\ns_add_u32 {SCS}, {SCS}, 0x{WS_CS:x}")
P(f"s_lshl_b32 {T0}, {C_}, 2\ns_add_u32 {T0}, {T0}, {W}\ns_lshl_b32 {T0}, {T0}, 6")
P(f"s_and_b32 {T1}, {W}, 1\ns_add_u32 {T1}, {T1}, {HB0L}\ns_lshl_b32 {T1}, {T1}, 6")
P(f"s_cmp_eq_u32 {TYPE}, 0\ns_cselect_b32 {T0}, 0x100000, {T0}\ns_cselect_b32 {T1}, 0x100000, {T1}")
P(f"v_mov_b32 v27, {T0}\nv_mov_b32 v28, {T1}\nv_cmp_gt_u32 vcc, 32, v0\nv_and_b32 v29, 31, v0")
P(f"v_cndmask_b32 v27, v28, v27, vcc\nv_lshl_add_u32 v30, v29, 1, v27")
VSIG, VPK = 11, 24
P(f"s_lshl_b32 {T0}, {W}, 2\ns_add_u32 {T0}, {T0}, 0x{L_RDY:x}\nv_mov_b32 {v(VSIG)}, {T0}")
P(f"v_and_b32 {v(VPK)}, 3, v0\nv_lshlrev_b32 {v(VPK)}, 2, {v(VPK)}\nv_add_u32 {v(VPK)}, 0x{L_PRG:x}, {v(VPK)}")
XRES, BRES, VO, SO = 244, 252, 19, "s45"
if OPT["eb"]:
    srd(rB, P_B2, 1024)
    P(f"buffer_load_ushort {v(VBI)}, v30, {rA}, 0 offen")
    P(f"v_and_b32 v28, 7, v0\nv_lshlrev_b32 v28, 4, v28\ns_lshl_b32 {T1}, {CT}, 7")
    P(f"buffer_load_dwordx4 {v(BRES, 4)}, v28, {rB}, {T1} offen")
    vm.add(None)
    vm.add(None)
stamp(1, "setup")
if not OPT["s1late"]:
    stage(1, (lambda: P(f"s_waitcnt vmcnt({OPT['s1h']})")) if OPT["s1h"] else None)
if OPT["chl"] and not OPT["chx"] and not OPT["s1late"]:
    chunk(0, ("st", 1))
stamp(1, "issued")
P(f"s_waitcnt lgkmcnt(0)\ns_add_u32 {NONCE}, {NONCE}, 1")
vm.wait("ch0")
vm.wait(("st", 0))
stamp(1, "land")
if OPT["p2only"]:
    P("s_waitcnt vmcnt(0)\ns_barrier")
    signal(VSIG, 27, 6)
    P("s_barrier\ns_barrier")
    dump(1)
    P("s_endpgm")
    lg.q = []
P("s_barrier ; b0")
stamp(1, "b0")
FR = 32


def cs_reads(a, f):
    for t in range(4):
        P(f"ds_read_b64_tr_b16 {v(f + 4 * t, 2)}, {v(a)} offset:{t * 2048}")
        P(f"ds_read_b64_tr_b16 {v(f + 4 * t + 2, 2)}, {v(a)} offset:{t * 2048 + 512}")


def cs_mfma(acc, f):
    for t in range(4):
        P(f"v_mfma_f32_16x16x32_bf16 {v(acc, 4)}, {v(SEL, 4)}, {v(f + 4 * t, 4)}, {'0' if t == 0 else v(acc, 4)}")


CSL = "\n".join(f"buffer_load_dwordx2 {v(32 + 2 * n, 2)}, v29, {rWS}, {SCS} offen offset:{512 * n} sc1" for n in range(8))
CSC = "\n".join([f"v_xor_b32 {v(228 + n)}, {NONCE}, {v(33 + 2 * n)}" for n in range(8)] +
                ["v_or3_b32 v228, v228, v229, v230", "v_or3_b32 v231, v231, v232, v233", "v_or3_b32 v228, v228, v234, v235",
                 "v_or_b32 v228, v228, v231", "v_cmp_ne_u32 vcc, 0, v228"])
nch = 1
for st in range(8):
    CL = OPT["chl"]
    def mid():
        if OPT["latem"] >> st & 1:
            P(f"s_waitcnt vmcnt({OPT['lm']})")
        if st == 0:
            P(f"s_setprio {OPT['csprio']}")
            P("s_waitcnt lgkmcnt(0)")
            if not CL:
                cs_reads(LWB, FR + 16)
            cs_mfma(CS, FR)
            if CL:
                P(f"s_setprio {OPT['prio']}")
    if st == 0:
        cs_reads(LWA, FR)
        if OPT["s1late"]:
            stage(1)
            if OPT["chl"]:
                chunk(0, ("st", 1))
    if OPT["chx"] and st == OPT["chx"]:
        chunk(0, None)
    if st == 1 and CL:
        cs_reads(LWB, FR + 16)
    if st <= 5:
        if OPT["lateA"] >= 0:
            a_, b_ = OPT["lateA"] >> st & 1, OPT["lateB"] >> st & 1
            if a_ and b_:
                P("s_waitcnt vmcnt(0)")
            elif a_ or b_:
                P(f"s_bitcmp1_b32 s2, {(3, 7, 0, 4)[OPT['lsel']]}\ns_cbranch_scc{1 if a_ else 0} L_lt{st}\ns_waitcnt vmcnt(0)\nL_lt{st}:")
        elif OPT["late"] >> st & 1:
            P(f"s_waitcnt vmcnt({OPT['lw']})")
        stage(st + 2, mid)
    if st == CL:
        P(f"s_setprio {OPT['csprio']}")
        P(f"s_lshl_b32 {T0}, {W}, 8\ns_add_u32 {T0}, {T0}, 0x{L_CSX:x}")
        P(f"v_lshl_add_u32 v27, v0, 2, {T0}")
        P("s_waitcnt lgkmcnt(0)")
        cs_mfma(CS2, FR + 16)
        P(f"v_permlane32_swap_b32 {v(CS)}, {v(CS2)}")
        P(f"v_add_f32 {v(CS)}, {v(CS)}, {v(CS2)}")
        P(f"ds_write_b32 v27, {v(CS)}")
        P(f"s_setprio {OPT['prio']}")
    if st == CL + 1:
        P("s_waitcnt lgkmcnt(0)")
    if OPT["fill"] == 3 and 1 <= st <= 6:
        if st == 1:
            P(f"s_lshl2_add_u32 s40, {I_}, {W}\ns_mul_i32 s40, s40, {TB_STRIDE}\ns_lshl_b32 {T0}, {J_}, 12\ns_add_u32 s40, s40, {T0}\ns_add_u32 s40, s40, 0x{WS_HA:x}")
        for t in range(6 * (st - 1), min(32, 6 * st)):
            P(f"s_buffer_load_dword s41, {rWS}, s40 offset:{128 * t}")
    if st == 6:
        P("v_lshlrev_b32 v29, 3, v0")
        P(CSL)
        for n in range(8):
            vm.add("cs")
        if OPT["ltouch"]:
            P(f"s_lshl2_add_u32 {T0}, s2, {W}\ns_mul_i32 {T1}, {T0}, {11 * 128}\ns_lshl_b32 {T0}, {T0}, 9")
            P(f"v_min_u32 v27, 10, v0\nv_lshlrev_b32 v27, 7, v27\nv_and_b32 v28, 0x180, v27")
            P(f"buffer_load_dword v20, v27, {rW2}, {T1} offen\nbuffer_load_dword v21, v28, {rWO}, {T0} offen")
            vm.add(None)
            vm.add(None)
        if OPT["f6"]:
            P(f"s_mul_i32 {T0}, {I_}, {4 * TB_STRIDE}\ns_lshl_b32 {T1}, {C_}, 12\ns_add_u32 {T1}, {T1}, {SM}\ns_add_u32 {T1}, {T1}, {86 * K}")
            P(f"s_mul_i32 {T2}, {W}, {TB_STRIDE}\ns_lshl_b32 {T3}, {HB0L}, 11\ns_add_u32 {T2}, {T2}, {T3}")
            P(f"s_cmp_lt_u32 {C_}, 3")
            sel2(T3, 3, 1)
            P(f"s_cmp_eq_u32 {TYPE}, 0\ns_cselect_b32 {T1}, {T1}, {T2}\ns_cselect_b32 {T3}, 3, {T3}")
            sel2(T2, TB_STRIDE, 1024)
            P(f"s_add_u32 {T0}, {T0}, {T1}\ns_add_u32 {T0}, {T0}, 0x{WS_HA:x}")
            P(f"v_lshrrev_b32 v27, 3, v0\nv_and_b32 v27, {T3}, v27\nv_mul_u32_u24 v27, {T2}, v27\nv_and_b32 v28, 7, v0\nv_lshl_add_u32 v27, v28, 7, v27")
            P(f"buffer_load_dword v23, v27, {rWS}, {T0} offen")
            vm.add(None)
        if OPT["ft"]:
            P(f"s_lshl2_add_u32 {T0}, {I_}, {W}\ns_lshl_b32 {T0}, {T0}, 7\ns_lshl_b32 {T1}, {I_}, 7\ns_add_u32 {T1}, {T1}, {FL_O * 128}")
            P(f"v_and_b32 v27, 3, v0\nv_lshl_add_u32 v28, v27, 13, {T0}\nv_mov_b32 v22, {T1}\nv_cmp_eq_u32 vcc, 2, v27\nv_cndmask_b32 v28, v28, v22, vcc")
            P(f"s_mov_b32 {T0}, 0x{WS_FLAGS:x}\nbuffer_load_dword v22, v28, {rWS}, {T0} offen sc1")
            vm.add(None)
    if st == 7:
        P(f"s_setprio {OPT['exprio']}")
        vm.wait("cs")
        stamp(1, "csin")
        P(CSC)
        retry("L_cs", CSL, CSC)
        stamp(1, "csok")
        P("v_add_f32 v32, v32, v34\nv_add_f32 v36, v36, v38\nv_add_f32 v40, v40, v42\nv_add_f32 v44, v44, v46")
        P("v_add_f32 v32, v32, v36\nv_add_f32 v40, v40, v44\nv_add_f32 v32, v32, v40")
        P("v_cvt_pk_bf16_f32 v33, v32, v32\nv_lshlrev_b32 v33, 16, v33\nv_sub_f32 v32, v32, v33\nv_cvt_pk_bf16_f32 v32, v33, v32")
        P("v_cmp_gt_u32 vcc, 32, v0")
        P(f"s_lshl_b32 {T0}, {W}, 9\ns_add_u32 {T0}, {T0}, 0x{L_EX1:x}")
        P(f"v_add_u32 v29, {T0}, v29")
        P(f"v_cndmask_b32 v34, 0, v32, vcc\nv_cndmask_b32 v35, 0, {v(VBI)}, vcc")
        P(f"v_cndmask_b32 v36, v32, 0, vcc\nv_cndmask_b32 v37, {v(VBI)}, 0, vcc")
        P(f"ds_write_b64 v29, v[34:35]\nds_write_b64 v29, v[36:37] offset:{L_EX2 - L_EX1}")
    if st == 7:
        P(f"s_setprio {OPT['prio']}")
    if st >= 6:
        for q in range(nch, nch + OPT[f"n{st}"]):
            chunk_stage(q)
        nch += OPT[f"n{st}"]
    if st < 7:
        vm.wait(("st", st + 1))
    if st == 7:
        P("s_waitcnt lgkmcnt(0)")
        stamp(1, "exw")
    P(f"s_barrier ; b{st + 1}")
    if "st1" in OPT and st < 7:
        stamp(1, f"b{st+1}")
stamp(1, "b8")
if OPT["p1only"]:
    dump(1)
    P("s_endpgm")
    DIAG = 0
for q in range(nch, 8):
    chunk_stage(q)
if not OPT["eb"]:
    srd(rB, P_B2, 1024)
srd(rP2, P_OUT, 2 * K * K)
P(f"v_and_b32 v28, 7, v0\nv_lshlrev_b32 v28, 4, v28\nv_lshrrev_b32 v29, 3, v0\nv_lshl_or_b32 {v(VO)}, v29, 10, v28")
P(f"s_lshl_b32 {SO}, {TB2}, 2\ns_add_u32 {SO}, {SO}, {W}\ns_lshl_b32 {SO}, {SO}, 14\ns_lshl_b32 {T1}, {CT}, 7\ns_add_u32 {SO}, {SO}, {T1}")
P(f"s_add_u32 {T2}, {SO}, 8192")
if not OPT["eb"]:
    P(f"buffer_load_dwordx4 {v(BRES, 4)}, v28, {rB}, {T1} offen")
    vm.add("res")
P(f"buffer_load_dwordx4 {v(XRES, 4)}, {v(VO)}, {rX}, {SO} offen")
P(f"buffer_load_dwordx4 {v(XRES + 4, 4)}, {v(VO)}, {rX}, {T2} offen")
for _ in range(2):
    vm.add("res")
vq8 = list(vm.q)


def stream(seq):
    for p in seq:
        (page if p < 18 else page_stage)(p)


LATE = list(range(38, 43)) + list(range(44, 60))
P(f"s_cmp_eq_u32 {TYPE}, 0")
P("s_cbranch_scc1 L_lA")
SH1, SH2, SF1 = "s4", "s5", "s6"
P(f"v_add_u32 v22, 16, {v(VSIG)}\nv_lshlrev_b32 v23, 4, v0")
P(f"s_lshl_b32 {T0}, {I_}, 2\ns_add_u32 {T0}, {T0}, {W}")
P(f"s_mul_i32 {SH1}, {T0}, {TB_STRIDE}\ns_add_u32 {SH1}, {SH1}, 0x{WS_HA:x}")
P(f"s_lshl_b32 {SH2}, {HB0L}, 11\ns_add_u32 {SH2}, {SH2}, {SH1}\ns_lshl_b32 {T1}, {C_}, 13\ns_add_u32 {SH1}, {SH1}, {T1}")
P(f"s_lshl_b32 {SF1}, {T0}, 5\ns_add_u32 {SF1}, {SF1}, {C_}\ns_lshl_b32 {SF1}, {SF1}, {2 + FX}\ns_add_u32 {SF1}, {SF1}, 0x{WS_FLAGS + FL_HB * LN:x}")


def far():
    P(f"ds_read_b32 v28, {v(VPK)} offset:{L_FAST - L_PRG}\ns_waitcnt lgkmcnt(0)\nv_cmp_ne_u32 vcc, 0, v28\ns_or_b32 {FAR}, vcc_lo, vcc_hi")


def wback(tag):
    if OPT["wbj"] == 0:
        P(f"s_cmp_lg_u32 {W}, 0")
    else:
        P(f"s_xor_b32 {T0}, {J_}, {OPT['wbj'] - 1}\ns_or_b32 {T0}, {T0}, {W}\ns_cmp_lg_u32 {T0}, 0")
    P(f"s_cbranch_scc1 L_wb{tag}\nbuffer_wbl2 sc1\nL_wb{tag}:")


def hstore(k, base, b, sh, tag):
    if k == 1:
        await_(VPK, 28, k)
        far()
    else:
        await_(22, 28, k)
    d = D0 + 8 * (b & 1)
    for u in range(2):
        a = base + (2 * b + u) * 4096
        P(f"ds_read_b128 {v(d + 4 * u, 4)}, {v(VL16 + a // (64 * K))} offset:{a % (64 * K)}")
    if b == 2:
        P(f"s_add_u32 {sh}, {sh}, 4096")
    for u in range(2):
        P(f"s_waitcnt lgkmcnt({1 - u})")
        row_store(f"buffer_store_dwordx4 {v(d + 4 * u, 4)}, v23, {rWS}, {sh} offen offset:{2048 * (b & 1) + 1024 * u}", OPT["nt1"] if tag != "h2" else OPT["nt2"])
        vm.add(tag)


if OPT["fill"] == 1:
    P("v_lshlrev_b32 v25, 7, v0\nv_and_b32 v27, 0xfff, v25")
    P(f"buffer_load_dword v20, v25, {rWS}, {SH1} offen\nbuffer_load_dword v21, v27, {rWS}, {SH2} offen")
    vm.add(None)
    vm.add(None)
mid = list(range(18, 38))
stream(mid[:OPT["e1B"]])
np_ = OPT["e1B"]
for q in range(1, 5):
    chunk_write(q)
hstore(1, L_HS, 0, SH1, "h")
for q in range(5, 8):
    chunk_write(q)
signal(VSIG, 26, 1, True)
for b in range(1, 4):
    stream(mid[np_:np_ + OPT["iB2"]])
    np_ += OPT["iB2"]
    hstore(b + 1, L_HS, b, SH1, "h" if b < 2 else "h1")
signal(VSIG, 26, 2)
stamp(1, "h_st")
vm.wait("h")
flag_store(SF1, aux=HX)
vm.add(None)
stamp(1, "hbflag")
P(f"s_add_u32 {SF1}, {SF1}, {(FL_H1 - FL_HB) * LN}")
stream(range(OPT["xB"]))
vm.wait("h1")
flag_store(SF1, aux=HX)
vm.add(None)
stamp(1, "h1flag")
stream(range(OPT["xB"], 18))
stream(mid[np_:])
P(f"s_sub_u32 {SF1}, {SF1}, {(FL_H1 - FL_HA) * LN}")
P(f"s_cmp_lt_u32 {C_}, 3")
P("s_cbranch_scc0 L_lB1")
vqB = list(vm.q)
restB = {}
for nb in (2, 1):
    if nb == 1:
        P.label("L_lB1")
        vm.q = list(vqB)
    page_addr.last = None
    pre = OPT["lB2"] if nb == 2 else OPT["lB1"]
    stream(LATE[:pre])
    vm.wait(("pg", 17))
    signal(VSIG, 26, 3)
    stamp(1, "staged")
    lg.q = []
    await_(VPK, 28, 8)
    marks = {OPT["w0"]: 0, OPT["w1"]: 1} if nb == 2 else {OPT["w0c"]: 0}
    for n, p in enumerate(range(18, 38)):
        if n in marks:
            lg.q = []
            hstore(9 + marks[n], L_PQ, marks[n], SH2, "h2")
            stamp(1, "h2_st")
        vm.wait(("pg", p))
        page_write(p)
    signal(VSIG, 26, 4, True)
    vm.wait("h2")
    flag_store(SF1, aux=HX)
    vm.add(None)
    stamp(1, "oflag")
    stream(LATE[pre:max(pre, OPT["l1"])])
    vm.wait(("pg", 42))
    restB[nb] = LATE[max(pre, OPT["l1"]):]
    P("s_branch L_l5")
P.label("L_lA")
vm.q = list(vq8)
lg.q = []
page_addr.last = None
SOB = "s44"
P(f"s_mul_i32 {SOB}, {I_}, {4 * TB_STRIDE}\ns_lshl_b32 {T1}, {C_}, 12\ns_add_u32 {SOB}, {SOB}, {T1}")
P(f"s_add_u32 {SOB}, {SOB}, {SM}\ns_add_u32 {SOB}, {SOB}, 0x{WS_HA + 86 * K:x}")
if OPT["fill"] == 1:
    P(f"v_bfe_u32 v25, v0, 3, 2\nv_mul_u32_u24 v25, {TB_STRIDE}, v25\nv_and_b32 v27, 7, v0\nv_lshl_add_u32 v25, v27, 7, v25")
    P(f"buffer_load_dword v20, v25, {rWS}, {SOB} offen")
    vm.add(None)
mid = list(range(18, 38))
stream(mid[:8])
for q in range(1, 8):
    chunk_write(q)
signal(VSIG, 26, 1, True)
if OPT["fill"] in (2, 3):
    P(f"s_lshl2_add_u32 {T0}, {I_}, {W}\ns_mul_i32 {T0}, {T0}, {TB_STRIDE}\ns_add_u32 {T0}, {T0}, 0x{WS_HA:x}")
    P("v_lshlrev_b32 v25, 7, v0")
    if OPT["fill"] == 2:
        P(f"s_lshl_b32 {T1}, {C_}, 13\ns_add_u32 {T1}, {T1}, {T0}")
        P(f"buffer_load_dword v20, v25, {rWS}, {T1} offen")
        vm.add(None)
    P(f"s_mul_i32 {T1}, {C_}, {54 * 128}\ns_add_u32 {T1}, {T1}, {T0}\ns_add_u32 {T1}, {T1}, {64 * K}\nv_min_u32 v25, {53 * 128}, v25")
    P(f"buffer_load_dword v21, v25, {rWS}, {T1} offen")
    vm.add(None)
stream(mid[8:OPT["e1A"]])
lg.q = []
await_(VPK, 28, 2)
far()
stream(range(18))
stream(mid[OPT["e1A"]:])
PREA = LATE[:OPT["preA"]] if OPT["gd"] == 8 else LATE[21 - min(5, OPT["preA"]):21]
stream(PREA)
SZL, SK0, SK1, SKE = "s4", "s5", "s6", "s7"
NB = [NONCE, "s39", "s42", "s43"]
P("v_and_b32 v23, 15, v0\nv_lshlrev_b32 v27, 4, v0")
P(f"v_lshrrev_b32 v22, 2, v0\nv_mul_u32_u24 v25, {KVP_STR}, v22\nv_and_b32 v26, 3, v0\nv_lshl_add_u32 v25, v26, 4, v25")
P(f"s_mul_i32 {SK0}, {C_}, {16 * KVP_STR}\ns_add_u32 {SK0}, {SK0}, 0x{WS_KVP:x}")
P(f"s_lshl_b32 {SZL}, {W}, 6\ns_add_u32 {SZL}, {SZL}, {SK0}\ns_add_u32 {SZL}, {SZL}, 4096")
P(f"s_add_u32 {SK0}, {SK0}, {SM}\ns_add_u32 {SKE}, {SK0}, {16 * KVP_STR}")
P(f"s_lshl_b32 {SK1}, {I_}, 1\ns_and_b32 {SK1}, {SK1}, 15\ns_mul_i32 {SK1}, {SK1}, {KVP_STR}\ns_add_u32 {SK1}, {SK1}, {SK0}")
P(f"s_add_u32 {T0}, {SM}, 0x{L_KT:x}")
P("v_and_b32 v40, 1, v26\nv_lshlrev_b32 v40, 4, v40\nv_lshrrev_b32 v26, 1, v26\nv_lshl_or_b32 v40, v26, 3, v40")
P(f"v_lshl_or_b32 v40, v22, 5, v40\nv_add_u32 v40, {T0}, v40")
P("v_bfe_u32 v41, v0, 4, 1\nv_lshlrev_b32 v41, 4, v41\nv_lshrrev_b32 v26, 5, v0\nv_lshl_or_b32 v41, v26, 3, v41")
P(f"v_lshl_or_b32 v41, v23, 5, v41\nv_add_u32 v41, {T0}, v41")
P(f"v_and_b32 v42, 31, v0\nv_lshlrev_b32 v42, 5, v42\nv_lshl_or_b32 v42, v26, 4, v42\nv_add_u32 v42, {T0}, v42")
P(f"s_lshr_b32 s39, {NONCE}, 8\ns_lshr_b32 s42, {NONCE}, 16\ns_lshr_b32 s43, {NONCE}, 24")
ZL = f"buffer_load_dwordx4 v[28:31], v25, {rWS}, {SZL} offen sc1"
ZC = "\n".join([f"v_xor_b32 v20, {NB[0]}, v28", f"v_xor_b32 v21, {NB[1]}, v29",
                f"v_bitop3_b32 v20, v20, v30, {NB[2]} bitop3:0xf6", f"v_bitop3_b32 v21, v21, v31, {NB[3]} bitop3:0xf6",
                "v_or_b32 v20, v20, v21", "v_and_b32 v20, 0xff, v20", "v_cmp_ne_u32 vcc, 0, v20"])
P(f"s_setprio {OPT['gprio']}")
P(f"s_mov_b32 {T2}, 32")
P.label("L_kvall")
spin("L_kv", ZL, ZC)
stamp(1, "kv_seen")
signal(VSIG, 26, 3)
P(f"s_mov_b32 {T1}, {SK1}")
GD = OPT["gd"]
GQ = [CHR + 4 * n for n in range(14)] + [184, 188] if GD == 16 else [PQR + 4 * n for n in range(8)]
def gload(n):
    P(f"buffer_load_dwordx4 {v(GQ[n % GD], 4)}, v27, {rWS}, {T1} offen sc1")
    if n < 15:
        P(f"s_add_u32 {T1}, {T1}, {KVP_STR}")
        if n % 2 == 1:
            P(f"s_cmp_eq_u32 {T1}, {SKE}\ns_cselect_b32 {T1}, {SK0}, {T1}")
for n in range(GD if not OPT["hack"] & 8 else 8):
    gload(n)
for n in range(4):
    P(f"v_and_b32 {v(28 + n)}, 0xffffff00, {v(28 + n)}")
for r in (4, 8):
    for n in range(4):
        P(f"v_add_f32_dpp {v(28 + n)}, {v(28 + n)}, {v(28 + n)} row_ror:{r} row_mask:0xf bank_mask:0xf")
for op in ("v_permlane16_swap_b32", "v_permlane32_swap_b32"):
    for n in range(4):
        P(f"v_mov_b32 {v(32 + n)}, {v(28 + n)}")
    for n in range(4):
        P(f"{op} {v(28 + n)}, {v(32 + n)}")
    for n in range(4):
        P(f"v_add_f32 {v(28 + n)}, {v(28 + n)}, {v(32 + n)}")
P("v_cvt_pk_bf16_f32 v28, v28, v29\nv_cvt_pk_bf16_f32 v29, v30, v31")
P("ds_write_b64 v40, v[28:29] offset:512")
for n in range(16 if not OPT["hack"] & 8 else 8):
    P(f"s_waitcnt vmcnt({min(GD - 1, 15 - n) if not OPT['hack'] & 8 else 7 - n})")
    for h in range(4):
        r = v(GQ[n % GD] + h)
        if n == 0:
            P(f"v_xor_b32 {v(36 + h)}, {NB[h]}, {r}\nv_and_b32 {v(32 + h)}, 0xffffff00, {r}")
        else:
            P(f"v_bitop3_b32 {v(36 + h)}, {v(36 + h)}, {r}, {NB[h]} bitop3:0xf6\nv_and_b32 {v(44 + h)}, 0xffffff00, {r}")
    if n + GD < 16:
        gload(n + GD)
    if n:
        for h in range(4):
            P(f"v_add_f32 {v(32 + h)}, {v(32 + h)}, {v(44 + h)}")
P("v_or3_b32 v36, v36, v37, v38\nv_or_b32 v36, v36, v39\nv_and_b32 v36, 0xff, v36\nv_cmp_ne_u32 vcc, 0, v36")
P(f"s_sub_u32 {T2}, {T2}, 1")
P("s_cbranch_scc1 L_kvok")
P("s_cbranch_vccnz L_kvall")
P.label("L_kvok")
stamp(1, "gath")
if DIAG >= 3 and "retry" in str(OPT.get("st1")):
    P(f"s_waitcnt lgkmcnt(0)\ns_sub_u32 s98, 32, {T2}\ns_mul_i32 s98, s98, 100\ns_add_u32 s98, s98, s100")
vm.q = []
page_addr.last = None
P("v_cvt_pk_bf16_f32 v32, v32, v33\nv_cvt_pk_bf16_f32 v33, v34, v35")
P("ds_write_b64 v41, v[32:33]")
lg.q = []
P("ds_read_b128 v[44:47], v42")
stream([p for p in LATE[:OPT["lA"]] if p not in PREA])
P(f"v_add_u32 v20, 0x{L_PQ:x}, {v(VL16)}")
P(f"s_mov_b32 s4, {SOB}")
stamp(1, "staged")
await_(VPK, 22, 10)
stamp(1, "g0")
for tb in range(4):
    P(f"ds_read_b128 {v(PQR + 4 * tb, 4)}, v20 offset:{tb * 4096}")
P("v_mov_b32 v28, v44\nv_mov_b32 v29, v45\nv_mov_b32 v30, v46\nv_mov_b32 v31, v47")
def o_mfma(tb):
    P(f"s_waitcnt lgkmcnt({3 - tb})")
    P(f"v_mfma_f32_32x32x16_bf16 {v((D0, D1)[tb & 1], 16)}, v[28:31], {v(PQR + 4 * tb, 4)}, 0")
o_mfma(0)
o_mfma(1)
for tb in range(4):
    d = (D0, D1)[tb & 1]
    P(f"v_add_f32 {v(d + 8)}, 0x{f2u(1e-6):x}, {v(d + 8)}")
    P(f"v_rcp_f32 {v(d + 8)}, {v(d + 8)}")
    for r in range(8):
        P(f"v_mul_f32 {v(d + r)}, {v(d + r)}, {v(d + 8)}")
    for p in range(4):
        P(f"v_cvt_pk_bf16_f32 {v(PQR + 4 * tb + p)}, {v(d + 2 * p)}, {v(d + 2 * p + 1)}")
    if tb < 2:
        o_mfma(tb + 2)
    row_store(f"buffer_store_dwordx4 {v(PQR + 4 * tb, 4)}, v27, {rWS}, s4 offen", OPT["nt2"])
    vm.add("o")
    if tb < 3:
        P(f"s_add_u32 s4, s4, {TB_STRIDE}")
stamp(1, "o_st")
P(f"s_setprio {OPT['prio']}")
for p in range(18, 38):
    page_write(p)
signal(VSIG, 26, 4, True)
vm.wait("o")
P(f"s_lshl_b32 {T0}, {I_}, 5\ns_lshl_b32 {T1}, {C_}, 2\ns_add_u32 {T0}, {T0}, {T1}\ns_add_u32 {T0}, {T0}, {W}")
P(f"s_lshl_b32 {T0}, {T0}, {2 + FX}\ns_add_u32 {T0}, {T0}, 0x{WS_FLAGS + FL_O * LN:x}")
flag_store(T0, aux=HX)
vm.add(None)
stamp(1, "oflag")
stream([p for p in LATE[OPT["lA"]:OPT["l1"]] if p not in PREA])
vm.wait(("pg", 42))
restA = [p for p in LATE[OPT["l1"]:] if p not in PREA]
P.label("L_l5")
lg.q = []
await_(VPK, 28, 11)
stamp(1, "gx")
nfree = 2 * ((OPT["gx"] - 7) // 4)
first = [p for p in list(range(38, 43)) + list(range(44, 60)) if p - 38 < nfree]
P(f"s_setprio {OPT['wprio']}")
for p in range(38, 43):
    page_write(p, OPT["pace"])
signal(VSIG, 26, 5, True)
for who, rest in (("A", restA), ("B2", restB[2]), ("B1", restB[1])):
    if who == "A":
        P(f"s_cmp_eq_u32 {TYPE}, 0\ns_cbranch_scc0 L_tB")
    elif who == "B2":
        P.label("L_tB")
        P(f"s_cmp_lt_u32 {C_}, 3\ns_cbranch_scc0 L_tB1")
    else:
        P.label("L_tB1")
    page_addr.last = None
    vm.q = [("pg", p) for p in LATE[5:] if p not in rest and not (who == "A" and p in PREA)]
    stream(rest)
    for p in first[5:]:
        vm.wait(("pg", p))
        page_write(p, OPT["pace"])
    vm.drain()
    if who != "B1":
        P("s_branch L_t2")
P.label("L_t2")
lg.q = []
P("s_waitcnt lgkmcnt(0)")
await_(VPK, 28, 12)
for p in range(44, 60):
    if p not in first:
        vm.wait(("pg", p))
        page_write(p, OPT["pace"])
signal(VSIG, 26, 6, True)
P(f"s_setprio {OPT['prio']}")
LOG2E = 1.4426950408889634
XRD, GG, XF, BF, YR = 22, 32, 48, 64, 72
P("v_lshrrev_b32 v26, 3, v0\nv_and_b32 v27, 7, v0\nv_lshlrev_b32 v27, 1, v27\nv_xor_b32 v27, v27, v26\nv_lshlrev_b32 v27, 4, v27\nv_lshl_or_b32 v26, v26, 8, v27")
P(f"s_lshl_b32 {T0}, {W}, 12\ns_add_u32 {T0}, {T0}, 0x{L_XS0:x}")
P(f"v_add_u32 {v(XRD)}, {T0}, v26\nv_xor_b32 {v(XRD + 1)}, 16, {v(XRD)}")
P(f"v_add_u32 {v(XRD + 2)}, 0x10000, {v(XRD)}\nv_add_u32 {v(XRD + 3)}, 0x10000, {v(XRD + 1)}")
P(f"s_add_u32 {T2}, {SO}, 8192")
P("s_waitcnt lgkmcnt(0)")


if OPT["wb"] in (2, 4):
    wback(2)
def unpack(dst, src, n):
    for r in range(n):
        P(f"v_lshlrev_b32 {v(dst + 2 * r)}, 16, {v(src + r)}\nv_and_b32 {v(dst + 2 * r + 1)}, 0xffff0000, {v(src + r)}")


def xread(dst, bases):
    for h in range(2):
        for kh in range(2):
            for j in range(2):
                P(f"ds_read_b128 {v(dst + 16 * kh + 8 * h + 4 * j, 4)}, {v(XRD + j + 2 * ((bases[kh] - L_XS0) >> 16))} offset:{((bases[kh] - L_XS0) & 0xffff) + 2048 * h}")


unpack(XF, XRES, 8)
unpack(BF, BRES, 4)
stamp(1, "rdy5")
P(f"s_setprio {OPT['fprio']}")
P("s_barrier ; dY")
if OPT["wb"] == 3:
    wback(3)
xread(YR, (L_XY, L_XY + 16 * K))
P("s_waitcnt lgkmcnt(0)")
for fmt in ("v_add_f32 {Y}, {Y}, {Z}", "v_add_f32 {Y}, {Y}, {B}", f"v_mul_f32 {{G}}, 0x{f2u(-LOG2E):x}, {{Y}}", "v_exp_f32 {G}, {G}",
            "v_add_f32 {G}, 1.0, {G}", "v_rcp_f32 {G}, {G}", "v_mul_f32 {G}, {G}, {Y}"):
    for r in range(16):
        P(fmt.format(Y=v(YR + r), Z=v(YR + 16 + r), B=v(BF + r % 8), G=v(GG + r)))
stamp(1, "gate")
P("s_barrier ; dS")
stamp(1, "dS")
xread(YR, (L_XS0, L_XS1))
for h in range(2):
    P(f"s_waitcnt lgkmcnt({4 - 4 * h})")
    for p in range(4 * h, 4 * h + 4):
        P(f"v_pk_add_f32 {v(YR + 2 * p, 2)}, {v(YR + 2 * p, 2)}, {v(YR + 16 + 2 * p, 2)}")
    for p in range(4 * h, 4 * h + 4):
        P(f"v_pk_fma_f32 {v(YR + 2 * p, 2)}, {v(YR + 2 * p, 2)}, {v(GG + 2 * p, 2)}, {v(XF + 2 * p, 2)}")
    for p in range(4 * h, 4 * h + 4):
        P(f"v_cvt_pk_bf16_f32 {v(BF + p)}, {v(YR + 2 * p)}, {v(YR + 2 * p + 1)}")
    P(f"buffer_store_dwordx4 {v(BF + 4 * h, 4)}, {v(VO)}, {rP2}, {(SO, T2)[h]} offen {OPT['outaux']}")
stamp(1, "outst")
dump(1)
P.label("L_end")
P("s_endpgm")
flush_cold()

P.label("L_compute")
DIAG = OPT["diag"]
assert OPT["gx"] <= 36
XR, ACC, WR = 128, 64, 32
VH, GR, XE, K1, K2, SD, RS, RL = 1, 2, 4, 6, 8, 10, 16, 18
XA, WA = 12, 20
HB0, SH, EPS2, SG, SFL1, SFL2, SCS2 = "s72", "s73", "s[74:75]", "s76", "s77", "s78", "s79"
lg = Q("lgkmcnt", 15)

diag_init()
stamp(0, "start")
P(f"s_setprio {OPT['cprio']}")
P(f"s_lshl_b32 {T0}, {I_}, 4\ns_add_u32 {T0}, {T0}, {J_}\ns_lshl_b32 {T0}, {T0}, 2\ns_add_u32 {T0}, {T0}, {W}\ns_lshl_b32 {T0}, {T0}, 1")
P(f"s_lshl_b32 {T1}, {T0}, 10")
P("v_lshrrev_b32 v26, 5, v0\nv_and_b32 v27, 31, v0\nv_lshlrev_b32 v28, 4, v27\nv_lshl_or_b32 v28, v26, 10, v28")
P("s_waitcnt lgkmcnt(0)")
srd(rX, P_X, 2 * K * K)
P(f"s_load_dword {NONCE}, s[{P_WS}:{P_WS+1}], 0")
if not OPT["nostat"]:
    P(f"buffer_load_dwordx4 v[32:35], v28, {rX}, {T1} offen {'nt' if OPT['snt'] else ''}")
    P(f"buffer_load_dwordx4 v[36:39], v28, {rX}, {T1} offen offset:512 {'nt' if OPT['snt'] else ''}")
srd(rWS, P_WS, WS_SIZE)
tile2()
P(f"v_lshlrev_b32 {v(VH)}, 4, v0")
waddr(WA, 29, 30, 3)
P(f"v_xor_b32 {v(WA + 1)}, 64, {v(WA)}")
for k, off in ((2, 64 * K), (4, 88 * K)):
    P(f"v_add_u32 {v(WA + k)}, 0x{off:x}, {v(WA)}\nv_add_u32 {v(WA + k + 1)}, 0x{off:x}, {v(WA + 1)}")
P("v_bfe_u32 v29, v0, 1, 3\nv_xor_b32 v29, v29, v26\nv_lshlrev_b32 v29, 4, v29\nv_lshl_or_b32 v29, v27, 7, v29")
P(f"s_lshl_b32 {T2}, {W}, 12")
P(f"v_add_u32 {v(XA)}, {T2}, v29")
for t in range(1, 4):
    P(f"v_xor_b32 {v(XA + t)}, {32 * t}, {v(XA)}")
for t in range(4):
    P(f"v_add_u32 {v(XA + 4 + t)}, 0x10000, {v(XA + t)}")
P(f"s_lshl_b32 {SG}, {I_}, 2\ns_add_u32 {SG}, {SG}, {W}")
if OPT["touch"]:
    srd(rW2, P_W2, 1376 * 1024)
    srd(rWO, P_WO, 512 * 1024)
    P(f"s_mul_i32 {T2}, s2, 43\ns_mul_i32 {T3}, {W}, 11\ns_add_u32 {T2}, {T2}, {T3}")
    P(f"v_add_u32 v6, {T2}, v0\nv_lshlrev_b32 v6, 7, v6\nv_mov_b32 v8, 0x7ff00000\nv_cmp_gt_u32 vcc, 11, v0")
    P(f"s_lshl_b32 {T2}, s2, 2\ns_add_u32 {T2}, {T2}, {W}\ns_lshl_b32 {T2}, {T2}, 2")
    P(f"v_cndmask_b32 v6, v8, v6, vcc\nv_add_u32 v7, {T2}, v0\nv_lshlrev_b32 v7, 7, v7\nv_cmp_gt_u32 vcc, 4, v0")
    P("v_cndmask_b32 v7, v8, v7, vcc")
    if OPT["touch"] == 9:
        P(f"buffer_load_dword v8, v6, {rW2}, 0 offen\nbuffer_load_dword v9, v7, {rWO}, 0 offen")
P(f"s_lshl_b32 {SG}, {SG}, 8\ns_add_u32 {SG}, {SG}, 0x{WS_STATS:x}")
P(f"s_lshl_b32 {SCS2}, {J_}, 1\ns_lshr_b32 {T2}, {I_}, 3\ns_add_u32 {SCS2}, {SCS2}, {T2}\ns_lshl_b32 {SCS2}, {SCS2}, 2")
P(f"s_add_u32 {SCS2}, {SCS2}, {W}\ns_lshl_b32 {SCS2}, {SCS2}, 3\ns_and_b32 {T2}, {I_}, 7\ns_add_u32 {SCS2}, {SCS2}, {T2}")
P(f"s_lshl_b32 {SCS2}, {SCS2}, 9\ns_add_u32 {SCS2}, {SCS2}, 0x{WS_CS:x}")
if OPT["pg"]:
    srd(rW2, P_W2, 1376 * 1024)
    srd(rWO, P_WO, 512 * 1024)
    srd(rA, P_OUT, 2 * K * K)
    P(f"v_lshlrev_b32 v46, 16, v0\ns_lshl_b32 {T3}, {W}, 22\ns_cmp_eq_u32 {W}, 3\ns_cbranch_scc1 L_pg3")
    P(f"buffer_load_dword v47, v46, {rWS}, {T3} offen sc1\ns_branch L_pgx\nL_pg3:")
    P(f"buffer_load_dword v47, v46, {rW2}, 0 offen\nbuffer_load_dword v47, v46, {rWO}, 0 offen\nbuffer_load_dword v47, v46, {rA}, 0 offen\nL_pgx:")
SFHB, SFO, KH, SFHA, PRIMED, SK12, SXW, SBASE = "s51", "s52", "s53", "s54", "s55", "s72", "s73", "s77"
P(f"s_lshr_b32 {KH}, {W}, 1\ns_lshl_b32 {SK12}, {KH}, 12\ns_mov_b32 {PRIMED}, 0")
P(f"s_lshl_b32 {T3}, {TB2}, 1\ns_and_b32 {T2}, {W}, 1\ns_add_u32 {T3}, {T3}, {T2}")
P(f"s_mul_i32 {SBASE}, {T3}, {TB_STRIDE}\ns_add_u32 {SBASE}, {SBASE}, 0x{WS_HA:x}")
if OPT["ahot"]:
    P(f"s_mov_b32 {SBASE}, 0x{WS_DIAG + 0x40000:x}")
P(f"s_lshl_b32 {SFHB}, {T3}, {7 + FX}\ns_add_u32 {SFHA}, {SFHB}, 0x{WS_FLAGS + FL_HA * LN:x}\ns_add_u32 s44, {SFHB}, 0x{WS_FLAGS + FL_H1 * LN:x}\ns_add_u32 {SFHB}, {SFHB}, 0x{WS_FLAGS + FL_HB * LN:x}")
P(f"s_lshr_b32 {SFO}, {TB2}, 1\ns_lshl_b32 {SFO}, {SFO}, {7 + FX}\ns_add_u32 {SFO}, {SFO}, 0x{WS_FLAGS + FL_O * LN:x}")
P(f"s_lshl_b32 {SXW}, {T2}, 13\ns_lshl_b32 {T3}, {KH}, 14\ns_add_u32 {SXW}, {SXW}, {T3}\ns_add_u32 {SXW}, {SXW}, 0x{L_XY:x}")
SXS = "s15"
P(f"s_cmp_eq_u32 {KH}, 0")
sel2(SXS, (L_XS0 - L_XY) & 0xffffffff, L_XS1 - L_XY - 16 * K)
if OPT["tlb"] == 2:
    P(f"buffer_load_dword v47, v0, {rWS}, {SBASE} offen sc1")
P(f"s_mov_b32 s14, {RHOA}")
for g in list(range(8)) + list(range(11, 15)):
    r = f"s{36 + g}"
    P(f"s_add_u32 {r}, {RHO2 if g < 8 else RHOS}, {g % 11}\ns_and_b32 {r}, {r}, {7 if g < 8 else 3}\ns_lshl_b32 {r}, {r}, 13\ns_add_u32 {r}, {r}, {SBASE}")
    if g >= 11:
        P(f"s_add_u32 {r}, {r}, {86 * K}")
P(f"s_add_u32 s14, s14, {KH}")
for n in range(16, 22):
    r = f"s{8 + n - 16}"
    P(f"s_add_u32 {r}, s14, {2 * (n - 16)}\ns_cmp_ge_u32 {r}, 11\ns_cselect_b32 {T3}, 11, 0\ns_sub_u32 {r}, {r}, {T3}")
    P(f"s_sub_u32 {r}, {r}, {KH}\ns_add_u32 {r}, {r}, {32 - 2 * (n % 2)}\ns_lshl_b32 {r}, {r}, 11\ns_add_u32 {r}, {r}, {SBASE}")
P(f"s_mov_b32 s74, 0x{f2u(1e-6):x}\ns_mov_b32 s75, 0x{f2u(1e-6):x}")
P(f"s_mov_b32 {T2}, 0x3f803f80")
P("v_mov_b32 v40, 0\nv_mov_b32 v41, 0\nv_mov_b32 v42, 0\nv_mov_b32 v43, 0")
stamp(0, "pre")
P("s_waitcnt vmcnt(2)" if OPT["touch"] == 9 else "s_waitcnt vmcnt(0)")
stamp(0, "xin")
for n in range(8):
    P(f"v_dot2_f32_bf16 {v(40 + (n & 1))}, {v(32 + n)}, {T2}, {v(40 + (n & 1))}")
    P(f"v_dot2_f32_bf16 {v(42 + (n & 1))}, {v(32 + n)}, {v(32 + n)}, {v(42 + (n & 1))}")
P("s_nop 2")
P("v_add_f32 v40, v40, v41\nv_add_f32 v42, v42, v43")
for r in (8, 4, 2, 1):
    P(f"v_add_f32_dpp v40, v40, v40 row_ror:{r} row_mask:0xf bank_mask:0xf")
    P(f"v_add_f32_dpp v42, v42, v42 row_ror:{r} row_mask:0xf bank_mask:0xf")
P("v_mov_b32 v41, v40\nv_mov_b32 v43, v42")
P("v_permlane16_swap_b32 v40, v41\nv_permlane16_swap_b32 v42, v43")
P("v_add_f32 v40, v40, v41\nv_add_f32 v42, v42, v43")
P(f"v_mul_f32 v40, 0x{f2u(1 / 512):x}, v40\nv_mul_f32 v42, 0x{f2u(1 / 512):x}, v42")
P("v_fma_f32 v42, -v40, v40, v42\nv_max_f32 v42, 0, v42")
P(f"v_cvt_pk_bf16_f32 v42, v42, v42\nv_and_b32 v42, 0xffff0000, v42\nv_add_f32 v42, 0x{f2u(1e-5):x}, v42")
P("v_cvt_pk_bf16_f32 v42, v42, v42\nv_and_b32 v42, 0xffff0000, v42\nv_sqrt_f32 v42, v42")
P("v_cvt_pk_bf16_f32 v44, v40, v42")
P("v_lshlrev_b32 v28, 3, v26")
P(f"s_lshl_b32 {T0}, {T0}, 3\ns_add_u32 {T0}, {T0}, 0x{WS_STATS:x}")
P("s_waitcnt lgkmcnt(0)")
P(f"s_add_u32 {NONCE}, {NONCE}, 1")
XTAG = "s78"
P(f"s_getreg_b32 {XTAG}, hwreg(HW_REG_XCC_ID, 0, 4)\ns_lshl_b32 {XTAG}, {XTAG}, 28\ns_xor_b32 {XTAG}, {XTAG}, {NONCE}")
P(f"v_mov_b32 v45, {XTAG}\nv_mov_b32 v5, {NONCE}")
P(f"s_mov_b32 s56, {T0}\nv_mov_b32 v2, v44\nv_mov_b32 v3, v45\nv_mov_b32 v25, v28")
P("v_lshlrev_b32 v26, 3, v27\nv_lshlrev_b32 v27, 3, v0")
P(f"s_lshl_b32 {T0}, {W}, 8\ns_add_u32 {T0}, {T0}, 0x{L_CSX:x}")
P(f"v_lshl_add_u32 v28, v0, 2, {T0}")
P(f"v_add_u32 v29, 0x{L_EX1:x}, v27")
GLOAD = f"buffer_load_dwordx2 {v(GR, 2)}, v26, {rWS}, {SG} offen sc1"
CSIG, CPK, CPC = 30, 31, 3
P(f"s_lshl_b32 {T0}, {W}, 2\ns_add_u32 {T0}, {T0}, 0x{L_PRG:x}\nv_mov_b32 {v(CSIG)}, {T0}")
P(f"v_and_b32 {v(CPK)}, 3, v0\nv_lshlrev_b32 {v(CPK)}, 2, {v(CPK)}\nv_add_u32 {v(CPK)}, 0x{L_RDY:x}, {v(CPK)}")
stamp(0, "stats")


def p1_x(st, t):
    if OPT["nocomp"]:
        return
    sl = st % 3
    P(f"ds_read_b128 {v(XR + 16 * st + 4 * t, 4)}, {v(XA + t + (4 if sl == 2 else 0))} offset:{(sl % 2) * 32 * K}")
    lg.add(("x", st, t))


def p1_w(st, t, b):
    if OPT["nocomp"]:
        return
    sl = st % 3
    a = WA + (b & 1) + (2 if sl == 2 else 0)
    off = (sl % 2) * 32 * K + 16 * K + (b >> 1) * 8 * K + t * 2048
    f = WR + ((t & 1) * 4 + b) * 4
    tr(f, a, off, None)
    tr(f + 2, a, off + 512, ("w", st, t, b))


def p1_m(st, t, b):
    if OPT["nocomp"]:
        return
    lg.wait(("w", st, t, b))
    assert ("x", st, t) not in lg.q
    f = WR + ((t & 1) * 4 + b) * 4
    c = "0" if (st == 0 and t == 0) else v(ACC + 16 * b, 16)
    P(f"v_mfma_f32_32x32x16_bf16 {v(ACC + 16 * b, 16)}, {v(f, 4)}, {v(XR + 16 * st + 4 * t, 4)}, {c}")
    r = OPT.get(f"r{st}", 0) or OPT["rall"]
    if r:
        P(f"s_nop {r - 1}")


P("s_barrier ; b0")
stamp(0, "b0")
if OPT["p2only"]:
    P("s_branch L_c2")
p1_x(0, 0)
for b in range(4):
    p1_w(0, 0, b)
P("s_mov_b32 exec_lo, 1\ns_mov_b32 exec_hi, 1")
P(f"buffer_store_dwordx2 v[2:3], v25, {rWS}, s56 offen sc1")
P("s_mov_b64 exec, -1")
P(f"v_add_u32 {v(WA + 5)}, 0x{88 * K:x}, {v(WA + 1)}")
LOG2E = 1.4426950408889634
C1 = -2 * LOG2E * math.sqrt(2 / math.pi)
C2 = C1 * 0.044715
GCHK = f"v_xor_b32 v27, {XTAG}, {v(GR + 1)}\nv_lshlrev_b32 v28, 4, v27\nv_cmp_ne_u32 vcc, 0, v28"
EXR = (22, 26)
side1 = [f"v_cmp_ne_u32 vcc, 0, v27", f"s_mov_b32 {T0}, 0x01000100", f"v_perm_b32 {v(XE)}, {v(GR)}, {v(GR)}, {T0}",
         "s_or_b32 s57, vcc_lo, vcc_hi", f"v_xor_b32 {v(XE)}, 0x80008000, {v(XE)}", f"v_lshrrev_b32 {v(XE + 1)}, 16, {v(GR)}",
         f"v_and_b32 {v(SD)}, 0xffff0000, {v(GR)}", f"v_rcp_f32 {v(RS)}, {v(SD)}", f"v_mov_b32 {v(SD + 1)}, {v(SD)}",
         f"v_mul_f32 {v(K1)}, 0x{f2u(C1):x}, {v(RS)}", f"v_mul_f32 {v(K2)}, {v(RS)}, {v(RS)}", f"v_mul_f32 {v(RL)}, 0x{f2u(LOG2E):x}, {v(RS)}",
         f"v_mul_f32 {v(K2)}, {v(K2)}, {v(RS)}", f"v_mov_b32 {v(RS + 1)}, {v(RS)}", f"v_mul_f32 {v(K2)}, 0x{f2u(C2):x}, {v(K2)}",
         f"v_mov_b32 {v(K1 + 1)}, {v(K1)}", f"v_mov_b32 {v(RL + 1)}, {v(RL)}", f"v_mov_b32 {v(K2 + 1)}, {v(K2)}"]
for st in range(8):
    for t in range(3):
        for b in range(4):
            p1_m(st, t, b)
            if st == 7 and t == OPT["gt"] and b == 0:
                P("s_waitcnt vmcnt(0)")
                P(GCHK)
                retry("L_gr", GLOAD, GCHK)
            elif st == 7 and t >= OPT["gt"]:
                for _ in range(3 if OPT["gt"] == 1 else 6):
                    if side1:
                        P(side1.pop(0))
            if b == 0:
                p1_x(st, t + 1)
            p1_w(st, t + 1, b)
    assert st < 7 or not side1
    p1_m(st, 3, 0)
    if st == 2 + OPT["chl"] + OPT["csd"]:
        P("ds_read_b32 v4, v28")
        lg.add(None)
    p1_m(st, 3, 1)
    if st == 5 + OPT["gl"]:
        P(GLOAD)
    lg.drain()
    if st == 7:
        stamp(0, "c8")
    P(f"s_barrier ; b{st + 1}")
    if st == 6:
        stamp(0, "b7")
    if st < 7:
        p1_x(st + 1, 0)
        p1_w(st + 1, 0, 0)
        p1_w(st + 1, 0, 1)
        p1_m(st, 3, 2)
        if st == 2 + OPT["chl"] + OPT["csd"] and not OPT["nst"] & 2:
            P(f"buffer_store_dwordx2 v[4:5], v27, {rWS}, {SCS2} offen {OPT['saux'] or ''}")
        if st == OPT["touch"] - 1:
            P(f"buffer_load_dword v8, v6, {rW2}, 0 offen\nbuffer_load_dword v9, v7, {rWO}, 0 offen")
        p1_w(st + 1, 0, 2)
        p1_w(st + 1, 0, 3)
        p1_m(st, 3, 3)
    else:
        P(f"v_mov_b32 v27, s57\ns_mov_b64 exec, 1\nds_write_b32 {v(CSIG)}, v27 offset:{L_FAST - L_PRG}\ns_mov_b64 exec, -1")
        lg.add(None)
        for b in range(4):
            P(f"ds_read_b64 {v(WR + 2 * b, 2)}, v29 offset:{512 * b}")
            lg.add(("ex", b))
        p1_m(st, 3, 2)
        p1_m(st, 3, 3)
        for b in range(4):
            lg.wait(("ex", b))
            P(f"v_mfma_f32_32x32x8bf16_1k {v(ACC + 16 * b, 16)}, {v(WR + 2 * b, 2)}, {v(XE, 2)}, {v(ACC + 16 * b, 16)}")
stamp(0, "b8")
if OPT["p1only"]:
    dump(0)
    P("s_endpgm")
    DIAG = 0
stamp(0, "ex1")

TT, UU = 32, 48


SKIP = [False]
def pairs(fmt, a):
    if SKIP[0]:
        return
    for p in range(8):
        P(fmt.format(T=v(TT + 2 * p, 2), A=v(a + 2 * p, 2)))


def singles(fmt):
    if SKIP[0]:
        return
    for r in range(16):
        P(fmt.format(T=v(TT + r)))


def cvt(dst, src=TT):
    for p in range(8):
        P(f"v_cvt_pk_bf16_f32 {v(dst + p)}, {v(src + 2 * p)}, {v(src + 2 * p + 1)}")


def epi_gelu(b, base, k, rdy=None, prev=None, last=True):
    a = ACC + 16 * b
    if rdy:
        peek(CPK, 28)
    pairs("v_pk_mul_f32 {T}, {A}, {A}", a)
    pairs("v_pk_fma_f32 {T}, {T}, %s, %s" % (v(K2, 2), v(K1, 2)), a)
    pairs("v_pk_mul_f32 {T}, {T}, {A}", a)
    if prev:
        signal(CSIG, 27, prev, True)
    singles("v_exp_f32 {T}, {T}")
    pairs("v_pk_fma_f32 {T}, {T}, %s, %s" % (v(SD, 2), v(SD, 2)), a)
    singles("v_rcp_f32 {T}, {T}")
    pairs("v_pk_mul_f32 {T}, {T}, {A}", a)
    cvt(a)
    if rdy:
        await_(CPK, 28, rdy, peeked=True)
    for h in range(2 if not OPT["nods"] else 0):
        P(f"ds_write_b128 v26, {v(a + 4 * h, 4)} offset:{base - L_HS + (2 * b + h) * 4096}")
        lg.add(None)
    if last:
        signal(CSIG, 27, k, True)


def epi_phi(b, dst):
    a = ACC + 16 * b
    pairs("v_pk_mul_f32 {T}, {A}, %s" % v(RL, 2), a)
    singles("v_exp_f32 {T}, {T}")
    pairs("v_pk_fma_f32 {A}, {A}, %s, 1.0 op_sel_hi:[1,1,0]" % v(RS, 2), a)
    for r in range(16):
        P(f"v_med3_f32 {v(TT + r)}, {v(TT + r)}, {v(a + r)}, 1.0")
    pairs("v_pk_add_f32 {T}, {T}, %s" % EPS2, a)
    cvt(dst)


def epi_lin(b, dst):
    a = ACC + 16 * b
    pairs("v_pk_mul_f32 {T}, {A}, %s" % v(RS, 2), a)
    cvt(dst)


AY, AS, AR = 64, 192, 128
RG = OPT["ring"]
NST = 30
WB, VA, FD, VF, XW, CPC2, TA, TB_, TC, XW2 = 96, 102, 104, 106, 108, 112, 113, 114, 115, 116
FHB = f"buffer_load_dword {v(FD)}, {v(VF)}, {rWS}, {SFHB} offen sc1"
FHA = f"buffer_load_dword {v(FD)}, {v(VF)}, {rWS}, {SFHA} offen sc1"
FH1 = f"buffer_load_dword {v(FD)}, {v(VF)}, {rWS}, s44 offen sc1"
FO = f"buffer_load_dword {v(FD + 1)}, {v(VF + 1)}, {rWS}, {SFO} offen sc1"
HBC = f"v_cmp_ne_u32 vcc, {NONCE}, {v(FD)}"
vm = Q("vmcnt", 63)


def aload(n, ks):
    if n >= NST or (OPT["noa"] and n >= RG):
        return
    P(f"buffer_load_dwordx4 {v(AR + 8 * (n % RG) + 4 * ks, 4)}, {v(VA + (n % 2 if n >= 16 else n >> 3))}, {rWS}, s{36 + (n & 7) if n < 16 else (8 + n - 16 if n < 22 else 36 + (n >> 1))} offen offset:{1024 * ks} {OPT['aaux'] or ''}")
    vm.add(("a", n, ks))


PRM = OPT["prime"]
def prime():
    for n in range(PRM):
        aload(n, 0)
        aload(n, 1)


nchk = [0]
def checkpoint():
    if not OPT["early"]:
        return
    nchk[0] += 1
    l = f"L_ck{nchk[0]}"
    P(f"s_getreg_b32 {T3}, hwreg(HW_REG_IB_STS, 0, 4)\ns_or_b32 {T3}, {T3}, {PRIMED}\ns_cbranch_scc1 {l}_x")
    P(f"s_waitcnt vmcnt(0)\n{HBC}\ns_cbranch_vccnz {l}_r")
    prime()
    P(f"s_mov_b32 {PRIMED}, 1")
    P.label(l + "_x")
    cold.append(f"{l}_r:\n{FHB}\ns_branch {l}_x")


def setup2():
    global P
    keep, P = P, Prog()
    P(f"v_and_b32 {v(VF + 1)}, 31, v0\nv_lshlrev_b32 {v(VF + 1)}, {2 + FX}, {v(VF + 1)}\nv_and_b32 {v(VF)}, {28 << FX}, {v(VF + 1)}")
    waddr(WB, TA, TB_, 2)
    P(f"v_add_u32 {v(WB)}, {SK12}, {v(WB)}\nv_xor_b32 {v(WB + 1)}, 64, {v(WB)}")
    for k in (1, 2):
        P(f"v_add_u32 {v(WB + 2 * k)}, 0x{64 * K * k:x}, {v(WB)}\nv_add_u32 {v(WB + 2 * k + 1)}, 0x{64 * K * k:x}, {v(WB + 1)}")
    P(f"v_lshrrev_b32 {v(TA)}, 1, {SK12}\nv_add_u32 {v(VA)}, {v(TA)}, {v(VH)}\nv_add_u32 {v(VA + 1)}, 0x1000, {v(VA)}")
    P(f"v_lshrrev_b32 {v(TA)}, 5, v0\nv_and_b32 {v(TB_)}, 7, v0\nv_xor_b32 {v(TA)}, {v(TA)}, {v(TB_)}\nv_lshlrev_b32 {v(TA)}, 4, {v(TA)}")
    P(f"v_and_b32 {v(TB_)}, 31, v0\nv_lshl_or_b32 {v(TA)}, {v(TB_)}, 8, {v(TA)}\nv_add_u32 {v(XW)}, {SXW}, {v(TA)}")
    for q in range(1, 4):
        P(f"v_xor_b32 {v(XW + q)}, {32 * q}, {v(XW)}")
    P(f"v_add_u32 {v(CPC2)}, 16, {v(CPK)}")
    for q in range(4):
        P(f"v_add_u32 {v(XW2 + q)}, {SXS}, {v(XW + q)}")
    lines, P = P.lines, keep
    return lines


def pass2(nb):
    side = setup2()
    n = 32 * nb
    def rd(m):
        if m >= n:
            return
        step, b = divmod(m, nb)
        off = CH(step >> 2) - 88 * K + (step & 3) * 2048
        f = WR + (m % 8) * 4
        tr(f, WA + 4 + b, off, None)
        tr(f + 2, WA + 4 + b, off + 512, ("p2", m))
    for m in range(7):
        rd(m)
    for m in range(n):
        step, b = divmod(m, nb)
        lg.wait(("p2", m))
        c = "0" if step == 0 else v(ACC + 16 * b, 16)
        P(f"v_mfma_f32_32x32x16_bf16 {v(ACC + 16 * b, 16)}, {v(WR + (m % 8) * 4, 4)}, {v(XR + 4 * step, 4)}, {c}")
        rd(m + 7)
        for _ in range(2 if nb == 1 else 1):
            if side and m >= 2 and not OPT["noside"]:
                P(side.pop(0))
        if m == max(6, n - OPT["smp"]) and not OPT["nosamp"]:
            P(FHB)
        if m == 5 and OPT["tlb"] == 1:
            P(f"buffer_load_dword {v(TC)}, {v(VF)}, {rWS}, {SBASE} offen sc1")
        if m == n - 6:
            if OPT["fill"] == 4:
                P("s_waitcnt vmcnt(0)" if OPT["nosamp"] else "s_waitcnt vmcnt(1)")
            for bb in range(nb):
                lg.room()
                P(f"ds_read_b64 {v(12 + 2 * bb, 2)}, v29 offset:{L_EX2 - L_EX1 + 512 * bb}")
                lg.add(("ex2", bb))
    while side:
        P(side.pop(0))
    checkpoint()
    lg.drain()
    signal(CSIG, 27, 8)
    for b in range(nb):
        P(f"v_mfma_f32_32x32x8bf16_1k {v(ACC + 16 * b, 16)}, {v(12 + 2 * b, 2)}, {v(XE, 2)}, {v(ACC + 16 * b, 16)}")


P(f"s_cmp_eq_u32 {TYPE}, 0")
P("s_cbranch_scc0 L_cB")
P(f"v_and_b32 v26, 31, v0\nv_lshrrev_b32 v27, 5, v0\ns_lshl_b32 {T0}, {W}, 5")
P(f"v_add_u32 v26, {T0}, v26\nv_mul_u32_u24 v26, {TROW}, v26\nv_lshl_add_u32 v26, v27, 3, v26\nv_add_u32 v26, 0x{TBUF:x}, v26")
for b in range(4):
    u = UU + 8 * (b & 1)
    SKIP[0] = bool(OPT["hack"] & 16) and b == 1
    (epi_phi if b < 2 else epi_lin)(b, u)
    SKIP[0] = False
    for q in range(4):
        P(f"ds_write_b64 v26, {v(u + 2 * q, 2)} offset:{64 * b + 16 * q}")
    if OPT["fill"] == 4 and b == OPT["fo"]:
        P(f"s_lshl2_add_u32 {T1}, {I_}, {W}\ns_mul_i32 {T1}, {T1}, {TB_STRIDE}\ns_lshl_b32 {T2}, {C_}, 12\ns_add_u32 {T1}, {T1}, {T2}\ns_add_u32 {T1}, {T1}, 0x{WS_HA + 86 * K:x}")
        P(f"v_lshlrev_b32 v16, 7, v0\nv_and_b32 v16, 0xfff, v16\nbuffer_load_dword v18, v16, {rWS}, {T1} offen")
    if "st0" in OPT:
        stamp(0, f"g{b}")
P(f"v_lshrrev_b32 v26, 2, v0\nv_mul_u32_u24 v26, {TROW}, v26\nv_and_b32 v27, 3, v0\nv_lshl_add_u32 v26, v27, 3, v26")
P(f"s_add_u32 {T0}, {T0}, 0x{TBUF:x}")
P(f"v_add_u32 v26, {T0}, v26")
for r in range(4):
    P(f"v_mov_b32 {v(104 + r)}, 0x3f803f80")
P(f"s_lshl_b32 {T0}, {C_}, 4\ns_add_u32 {T0}, {T0}, {I_}\ns_mul_i32 {T0}, {T0}, {KVP_STR}\ns_add_u32 {T0}, {T0}, 0x{WS_KVP:x}")
P(f"s_lshl_b32 {T1}, {W}, 10\ns_add_u32 {T1}, {T1}, {T0}")
P(f"s_lshl_b32 {T2}, {W}, 6\ns_add_u32 {T2}, {T2}, {T0}\ns_add_u32 {T2}, {T2}, 4096")
signal(CSIG, 27, 1, True)
P(f"v_add_u32 {v(CPC)}, 16, {v(CPK)}")
lg.q = []
await_(CPC, 27, 1)
stamp(0, "e1")
def kvm(mm):
    lg.wait(("kv", mm, 1))
    P(f"v_mfma_f32_16x16x32_bf16 v[96:99], {v(ACC + 8 * mm, 4)}, {v(ACC + 8 * mm + 4, 4)}, {'0' if mm == 0 else 'v[96:99]'}")
    P(f"v_mfma_f32_16x16x32_bf16 v[100:103], {v(ACC + 8 * mm, 4)}, v[104:107], {'0' if mm == 0 else 'v[100:103]'}")
for m in range(4):
    for o in range(2):
        f = ACC + 8 * m + 4 * o
        tr(f, 26, m * 32 * TROW + 128 * o, None)
        tr(f + 2, 26, (m * 32 + 16) * TROW + 128 * o, ("kv", m, o))
    if m >= 2:
        kvm(m - 2)
kvm(2)
kvm(3)
P(f"v_mov_b32 v104, {NONCE}")
for h in range(4):
    P(f"s_mov_b32 {T0}, 0x0706050{h}")
    P(f"v_perm_b32 {v(96 + h)}, {v(96 + h)}, v104, {T0}\nv_perm_b32 {v(100 + h)}, {v(100 + h)}, v104, {T0}")
P(f"buffer_store_dwordx4 v[96:99], {v(VH)}, {rWS}, {T1} offen sc1")
P("s_mov_b32 exec_lo, 0x00010001\ns_mov_b32 exec_hi, 0x00010001")
P(f"buffer_store_dwordx4 v[100:103], v0, {rWS}, {T2} offen sc1")
P("s_mov_b64 exec, -1")
signal(CSIG, 27, 2)
stamp(0, "kv")
await_(CPK, 27, 1)
stamp(0, "b10")
P("s_branch L_p2")
P.label("L_cB")
lg.q = []
P(f"s_lshl_b32 {T0}, {W}, 10\ns_add_u32 {T0}, {T0}, 0x{L_HS:x}")
P(f"v_add_u32 v26, {T0}, {v(VH)}")
if OPT["fill"] == 4:
    hblock2(T1)
    P(f"s_lshl2_add_u32 {T0}, {I_}, {W}\ns_mul_i32 {T0}, {T0}, {TB_STRIDE}\ns_add_u32 {T0}, {T0}, 0x{WS_HA:x}")
    P(f"s_lshl_b32 {T1}, {T1}, 11\ns_add_u32 {T1}, {T1}, {T0}\ns_lshl_b32 {T2}, {C_}, 13\ns_add_u32 {T0}, {T0}, {T2}")
    P(f"s_cmp_lt_u32 {C_}, 3")
    sel2(T2, 0xfff, 0x7ff)
    P(f"v_lshlrev_b32 v16, 7, v0\nv_and_b32 v17, {T2}, v16")
for b in range(4):
    SKIP[0] = bool(OPT["hack"] & 4) and b == 3
    epi_gelu(b, L_HS, b + 1, prev=b, last=(b == 3))
    SKIP[0] = False
    if OPT["fill"] == 4 and b == OPT["f1"]:
        P(f"buffer_load_dword v18, v16, {rWS}, {T0} offen")
    if OPT["fill"] == 4 and b == OPT["f2"]:
        P(f"buffer_load_dword v19, v17, {rWS}, {T1} offen")
    if "st0" in OPT:
        stamp(0, f"g{b}")
stamp(0, "e1")
await_(CPK, 28, 1)
stamp(0, "b10")
P(f"s_cmp_lt_u32 {C_}, 3")
P("s_cbranch_scc1 L_p2")
lg.q = [None] * 3
pass2(1)
stamp(0, "p2")
epi_gelu(0, L_PQ, 10, 2)
stamp(0, "e2")
P("s_branch L_c2")
P.label("L_p2")
lg.q = [None] * 3
pass2(2)
stamp(0, "p2")
P(f"s_cmp_eq_u32 {TYPE}, 0")
P("s_cbranch_scc0 L_cB2")
P(f"s_lshl_b32 {T0}, {W}, 12\ns_add_u32 {T0}, {T0}, 0x{L_PQ:x}")
P(f"v_add_u32 v26, {T0}, {v(VH)}")
lg.q = [None]
peek(CPC2, 28)
for b in range(2):
    SKIP[0] = bool(OPT["hack"] & 2) and b == 0
    epi_phi(b, UU + 8 * b)
    SKIP[0] = False
    if b == 0:
        await_(CPC2, 28, 2, peeked=True)
    for h in range(2):
        P(f"ds_write_b128 v26, {v(UU + 8 * b + 4 * h, 4)} offset:{(2 * b + h) * 1024}")
    if b == 0:
        checkpoint()
signal(CSIG, 27, 10, True)
stamp(0, "e2")
P("s_branch L_c2")
P.label("L_cB2")
lg.q = [None]
SKIP[0] = bool(OPT["hack"] & 1)
epi_gelu(0, L_PQ, 9, 2, last=False)
SKIP[0] = False
checkpoint()
epi_gelu(1, L_PQ, 10, prev=9)
stamp(0, "e2")
P.label("L_c2")
stamp(0, "c2")
stamp(0, "setup")
if OPT["quiet"]:
    dump(0)
    P("s_endpgm")
if OPT["nosamp"]:
    P(FHB)
P(f"s_cmp_lg_u32 {PRIMED}, 0\ns_cbranch_scc1 L_primed")
if not OPT["p2only"]:
    P(f"s_waitcnt vmcnt(0)\n{HBC}")
    retry("L_hb", FHB, HBC)
stamp(0, "hb_seen")
prime()
P.label("L_primed")
vm.q = [("a", n, ks) for n in range(PRM) for ks in range(2)]
gate = {8: OPT["cH1"], 16: OPT["cHA"], 22: OPT["cO"]}
nxt = [PRM, 0]
def aissue(n, k4):
    while nxt[0] < NST:
        nn, ks = nxt
        if nn in gate and (n, k4) < (gate[nn], 1):
            return
        if nn - RG > n or (nn - RG == n and k4 < 2 * ks + 1):
            return
        aload(nn, ks)
        nxt[:] = [nn, 1] if ks == 0 else [nn + 1, 0]
        return


def dec(m):
    if OPT["tl"] and m >= 4 * NST - 8:
        r = m - (4 * NST - 8)
        return NST - 2 + ((r >> 1) & 1), r & 1, r >> 2
    return m >> 2, (m >> 1) & 1, m & 1


def wrd(m):
    if m >= 4 * NST:
        return
    n, ks, ct = dec(m)
    ev = {OPT["gx"]: 4, 76: 5, 88: 6}
    if m + 5 in ev:
        peek(CPK, 20)
    if m == OPT["g2"]:
        signal(CSIG, 21, 12)
    if m == 72:
        signal(CSIG, 21, 13)
    if m == 93:
        peek(CPC2, 19)
    if m in ev:
        if m == OPT["gx"]:
            signal(CSIG, 21, 11)
        await_(CPK, 20, ev[m], peeked=True)
    so = slot_of(2 * n) + ks * 2048
    k = so // (64 * K)
    f = WR + (m % 8) * 4
    if OPT["now"] and m >= 8:
        return
    tr(f, WB + 2 * k + ct, so - 64 * K * k, None)
    tr(f + 2, WB + 2 * k + ct, so - 64 * K * k + 1024, ("w2", m))


def xwrite(acc, base, ct, q):
    lg.room()
    P(f"ds_write_b128 {v(base + q)}, {v(acc + 16 * ct + 4 * q, 4)} offset:{128 * ct}")
    lg.add(("xw", acc))


lg.q = []
stamp(0, "primed")
await_(CPK, 20, 3)
for m in range(7):
    wrd(m)
for n in range(NST):
    acc = AY if n < 22 else AS
    if n == 21:
        P(f"s_cmp_eq_u32 {KH}, 0")
    for k4 in range(4):
        m = 4 * n + k4
        na, ks, ct = dec(m)
        w = vm.need(("a", na, ks)) + " " + (lg.need(("w2", m | 1)) if OPT["w2"] else "") + lg.need(("w2", m))
        if w.strip():
            P("s_waitcnt " + w.strip())
        c = "0" if (n in (0, 22) and ks == 0) else v(acc + 16 * ct, 16)
        if n == 21:
            P(f"s_cbranch_scc0 L_null{k4}")
        P(f"v_mfma_f32_32x32x16_bf16 {v(acc + 16 * ct, 16)}, {v(WR + (m % 8) * 4, 4)}, {v(AR + 8 * (na % RG) + 4 * ks, 4)}, {c}")
        if OPT["tl"] and m >= 4 * NST - 2:
            for q in range(2):
                xwrite(AS, XW2, 0, 2 * (m & 1) + q)
        if n == 21:
            P.label(f"L_null{k4}")
        if k4 == 1:
            for nn, ld, fd, nm in ((8, FH1, FD, "h1"), (16, FHA, FD, "ha"), (22, FO, FD + 1, "o")):
                if n == max(0, gate[nn] - OPT["fl"]) and gate[nn] > 0:
                    P(ld)
                    vm.add("f" + nm)
                if n == gate[nn]:
                    vm.wait("f" + nm)
                    P(f"v_cmp_ne_u32 vcc, {NONCE}, {v(fd)}")
                    retry("L_" + nm, ld, f"v_cmp_ne_u32 vcc, {NONCE}, {v(fd)}")
                    stamp(0, nm + "_seen")
        aissue(n, k4)
        assert nxt[0] > n + 1 or nxt[0] == NST or (nxt[0] == n + 1 and k4 < 3), (n, k4, nxt)
        wrd(m + 7)
        if m == 91:
            await_(CPC2, 19, 13, peeked=True)
        if m >= 91 and (m - 91) % OPT["ys"] == 0 and (m - 91) // OPT["ys"] < 8:
            xwrite(AY, XW, ((m - 91) // OPT["ys"]) >> 2, ((m - 91) // OPT["ys"]) & 3)
        if m == 91 + 7 * OPT["ys"] + OPT["dy"]:
            lg.wait(("xw", AY))
            P("s_barrier ; dY")
    if "st0" in OPT:
        stamp(0, f"n{n}")
stamp(0, "sdone")
for ct in range(1 if OPT["tl"] else 0, 2):
    for q in range(4):
        xwrite(AS, XW2, ct, q)
P("s_setprio 0")
lg.drain()
P("s_barrier ; dS")
P(f"s_or_b32 {T0}, s2, {W}\ns_cmp_eq_u32 {T0}, 0")
P("s_cbranch_scc0 L_cend")
flag_store(T0)
P.label("L_cend")
dump(0)
P("s_endpgm")
flush_cold()
P.label("L_codeend")

body = P.finish()
hdr = f"""; out = x + (linear_attention(LN x) wo) * silu(gelu(LN x w1 + b1) w2 + b2), one launch, 256 workgroups (one per CU).
; Phase 1: workgroup (row block i of 128 tokens, column j).  Even j: k,v then q of four heads; odd j: 5-6 blocks of 32
;   hidden features.  x stays in registers as B fragments; LayerNorm is folded in exactly: the GEMM runs on raw x, one
;   read straight from d_ws behind per-producer flags; written through, so any placement works.  Flags go through the
;   die's L2 only when the producer has seen that its whole row block shares that die, else they are written through too.
; @launch grid=(256,1,1) block=(512,1,1) lds=163840
.amdgcn_target "amdgcn-amd-amdhsa--gfx950"
.text
.globl {KNAME}
.p2align 8
.type {KNAME},@function
{KNAME}:
"""
tail = f"""
.section .rodata,"a"
.p2align 6
.amdhsa_kernel {KNAME}
  .amdhsa_next_free_vgpr 256
  .amdhsa_next_free_sgpr 102
  .amdhsa_accum_offset 256
  .amdhsa_group_segment_fixed_size 0
  .amdhsa_kernarg_size 88
  .amdhsa_user_sgpr_count 2
  .amdhsa_user_sgpr_kernarg_segment_ptr 1
  .amdhsa_system_sgpr_workgroup_id_x 1
  .amdhsa_float_denorm_mode_32 3
.end_amdhsa_kernel
"""
if OPT["diag"]:
    tail += f"; STAMPS0 {' '.join(slots[0])}\n"
sys.stdout.write(hdr + body + tail)
sys.stderr.write(f"pads {P.npad}\n")
```

```python
import sys, os, struct, math
from asmlib import Prog, v, s

KNAME = "recurrent_scan__linear_attn_block__dense_activation_gelu__prompt_kernel"
OPT = dict(diag=0, outaux="sc1", map1=81, spin=16, codepf=1, ldfirst=1, prio=1,
           nA9=3, nA10=7, nB10=8, mf=56, cprio=3, gx=36, n6=2, n7=1, kA=12, lag=8, sp=0, sp0=0, nost=0, slp=2, kvw=0, gprio=3, sA=4, xB=8, fast=1, nt1=2, trow=272, nosamp=0, e1B=4, iB2=2, e1A=20, gd=16, lB2=5, lB1=0, cw=1, tlb=0, fill=0, f1=0, f2=9, fo=0, wsoff=0, wprio=3, l1=9, fence=1, inl=1, w0=4, w1=6, w0c=4, quiet=0, nosig=0, noside=0, nt2=2, wb=0, lB=0, hk1=0, lA0=8, lA=0, kq=2, wbj=0, kA0=12, kA1=8, kA2=0, rotx=1, spx=0, pB=10, iB=0, ring=4, nods=0, lsl=0, yB=12, zB=4, yB1=2, zB1=4, aaux="sc1", ahot=0, g2=52, rot2=1, pace=0, pace1=0, dy=2, ys=1, w2=1, p2only=0, plain=0, stouch=0, nst=0, saux="sc1", csprio=3, early=0, map2=81, smp=28, noa=0, now=0, la=7, touch=0, ltouch=1, gl=0, eb=1, chl=0, preA=0, tl=1, ac=-1, a1=-1, aB=-1, ap=-1, a2=-1, aw=3, aC=-1, aE=-1, aQ=-1, ra=0, rs=0, g0=-1, g8=-1, gA=-1, g5=-1, aq=-1, ab=-1, xnt=0, snt=0, wnt=0, latem=0, lm=4, lateA=-1, lateB=-1, lsel=0, hack=0, rv=0, s1h=0, late=6, lw=0, r0=0, r1=0, r2=0, rall=0, chx=0, s1late=0, nostat=0, csd=0, gt=2, nar=1, seq=0, kslp=2, fsx=0, pg=0, fprio=1, f6=0, prime=4, cH1=4, cHA=12, cO=18, fl=4, ft=1, exprio=1, stdiag=0, p1only=0, nocomp=0, norot=0, noload=0, nocs=0)
for a in sys.argv[1:]:
    k, val = a.split("=")
    OPT[k] = val if not val.lstrip("-").isdigit() else int(val)
DIAG = OPT["diag"]
assert OPT["gx"] <= 36


def f2u(x):
    return struct.unpack("<I", struct.pack("<f", x))[0]


K = 1024
WS_STATS = 0x1000
FX = 5 if OPT["fsx"] else 0
LN = 128 << FX
WS_FLAGS = 0xA00000 if FX else 0x8000
FL_HB, FL_HA, FL_O, FL_H1 = 0, 64, 128, 192
WS_KVP = 0x10000
KVP_STR = 4352
WS_CS = 0xA0000
WS_HA = 0x140000 + OPT["wsoff"] * 0x100000
TB_STRIDE = 118 * K
WS_DIAG = 0x900000
WS_SIZE = (0xB00000 if FX else 0xA00000) + OPT["wsoff"] * 0x100000
def CH(q):
    return 96 * K + 8 * K * q if q < 7 else 88 * K
TBUF = 52 * K
TROW = OPT["trow"]
L_EX1 = 152 * K
L_CSX = 156 * K
L_RDY = 154 * K
L_PRG = L_RDY + 16
L_TAG = L_RDY + 32
L_FAST = L_RDY + 48
L_EX2 = 155 * K
L_KT = 156 * K
L_PQ = 72 * K
L_HS = 52 * K
L_XY = 112 * K
L_XS0, L_XS1 = 72 * K, 144 * K
def slot_of(p):
    if p < 18:
        return p * 4 * K
    if p < 34:
        return CH((p - 18) >> 1) + (p & 1) * 4 * K
    if p < 38:
        return 72 * K + (p - 34) * 4 * K
    return slot_of(p - 38)

rX, rP1, rP2, rWS, rW2, rWO, rA, rB = (s(n, 4) for n in (4, 8, 12, 16, 20, 24, 28, 32))
P_X, P_QKV, P_WO, P_W1, P_B1, P_W2, P_B2, P_OUT, P_WS = 36, 38, 40, 44, 46, 48, 50, 52, 56
NONCE, W, I_, J_, C_, TYPE, RHO, TB2, CT, RHO2 = (s(n) for n in range(58, 68))
T0, T1, T2, T3 = (s(n) for n in range(68, 72))

P = Prog()


class Q:
    def __init__(self, name, mx):
        self.q, self.name, self.mx = [], name, mx

    def room(self):
        if len(self.q) >= self.mx:
            P(f"s_waitcnt {self.name}({self.mx - 1})")
            self.q = self.q[len(self.q) - (self.mx - 1):]

    def add(self, tag=None):
        self.q.append(tag)

    def need(self, tag):
        if tag not in self.q:
            return ""
        idx = max(i for i, t in enumerate(self.q) if t == tag)
        n = len(self.q) - 1 - idx
        assert n <= self.mx, (self.name, n)
        self.q = self.q[idx + 1:]
        return f"{self.name}({n})"

    def wait(self, tag):
        t = self.need(tag)
        if t:
            P("s_waitcnt " + t)

    def drain(self, force=False):
        if self.q or force:
            P(f"s_waitcnt {self.name}(0)")
        self.q = []


slots = [{}, {}]
def stamp(role, name):
    if not DIAG:
        return
    want = str(OPT.get(f"st{role}", "")).split(",")
    if want != [""] and name not in want and name not in ("start", "end"):
        return
    n = slots[role].setdefault(name, len(slots[role]))
    if DIAG >= 3:
        assert n < 9, (role, name)
        P(f"{'s_memtime' if DIAG == 4 else 's_memrealtime'} s[{80 + 2 * n}:{81 + 2 * n}]")
        return
    assert n < 16, (role, name)
    P(f"{'s_memtime' if DIAG == 2 else 's_memrealtime'} s[96:97]\ns_waitcnt lgkmcnt(0)\ns_mov_b32 s{80 + n}, s96")


def sreg(r):
    return int(r[2:r.index(":")])


def srd(r, ptr, size):
    n = sreg(r)
    P(f"s_mov_b32 s{n}, s{ptr}\ns_mov_b32 s{n+1}, s{ptr+1}\ns_mov_b32 s{n+2}, 0x{size:x}\ns_mov_b32 s{n+3}, 0x20000")


def sel2(dst, a, b):
    P(f"s_mov_b32 {dst}, 0x{b:x}\ns_cmov_b32 {dst}, 0x{a:x}")


cold = []


def align(key):
    if OPT[key] >= 0:
        P(f".p2align {OPT['aw']}")
        for _ in range(OPT[key]):
            P("s_nop 0")


def flush_cold():
    for t in cold:
        P(t)
    cold.clear()


def spin_text(lbl, load, check):
    t = f"s_mov_b32 {T3}, {1 << OPT['spin']}\n{lbl}:\n{load}\ns_waitcnt vmcnt(0)\n{check}\n"
    t += f"s_sub_u32 {T3}, {T3}, 1\ns_cbranch_scc1 {lbl}_x\ns_cbranch_vccz {lbl}_x\n"
    n = OPT["kslp"] if lbl in ("L_kv", "L_cs", "L_gr") else OPT["slp"]
    if n:
        t += f"s_sleep {n}\n"
    return t + f"s_branch {lbl}"


def spin(lbl, load, check):
    P(spin_text(lbl, load, check))
    P.label(lbl + "_x")


def retry(lbl, load, check):
    if OPT["inl"]:
        P(f"s_cbranch_vccz {lbl}_x")
        spin(lbl, load, check)
        return
    P(f"s_cbranch_vccnz {lbl}_s")
    P.label(lbl + "_x")
    cold.append(f"{lbl}_s:\n" + spin_text(lbl, load, check))


HX = "row"
FAR = "s46"
nrow = [0]
def row_store(text, nt=0):
    if not OPT["fast"] or nt == 2:
        P(text + " sc1")
        return
    nrow[0] += 1
    l = f"L_r{nrow[0]}"
    P(f"s_cmp_lg_u32 {FAR}, 0\ns_cbranch_scc1 {l}\n{text} {'nt' if nt else ''}\n{l}_x:")
    cold.append(f"{l}:\n{text} sc1\ns_branch {l}_x")


def flag_store(sreg_off, va=26, aux="sc1"):
    P(f"v_mov_b32 {v(va)}, {NONCE}\nv_mov_b32 {v(va+1)}, 0")
    P("s_mov_b64 exec, 1")
    if aux == "row":
        row_store(f"buffer_store_dword {v(va)}, {v(va+1)}, {rWS}, {sreg_off} offen")
    else:
        P(f"buffer_store_dword {v(va)}, {v(va+1)}, {rWS}, {sreg_off} offen {aux}")
    P("s_mov_b64 exec, -1")


def signal(vaddr, vtmp, k, fence=False):
    if fence and OPT["fence"]:
        lg.drain(force=True)
    P(f"v_mov_b32 {v(vtmp)}, {k}\ns_mov_b64 exec, 1\nds_write_b32 {v(vaddr)}, {v(vtmp)}\ns_mov_b64 exec, -1")
    lg.add(None)


nwait = [0]
def peek(vaddr, vd):
    lg.room()
    P(f"ds_read_b32 {v(vd)}, {v(vaddr)}")
    lg.add(("peek", vd))


def await_(vaddr, vd, k, peeked=False):
    nwait[0] += 1
    lbl = f"L_w{nwait[0]}"
    if not peeked:
        peek(vaddr, vd)
    lg.wait(("peek", vd))
    P(f"v_cmp_gt_u32 vcc, {k}, {v(vd)}")
    loop = (f"s_mov_b32 {T3}, {1 << 20}\n{lbl}:\nds_read_b32 {v(vd)}, {v(vaddr)}\ns_sub_u32 {T3}, {T3}, 1\ns_waitcnt lgkmcnt(0)\n"
            f"v_cmp_gt_u32 vcc, {k}, {v(vd)}\ns_cbranch_scc1 {lbl}_x\ns_cbranch_vccnz {lbl}")
    if OPT["inl"]:
        P(f"s_cbranch_vccz {lbl}_x\n{loop}")
    else:
        P(f"s_cbranch_vccnz {lbl}_s")
        cold.append(f"{lbl}_s:\n{loop}\ns_branch {lbl}_x")
    P.label(lbl + "_x")


def hblock2(dst):
    P(f"s_lshl_b32 {dst}, {C_}, 1\ns_add_u32 {T3}, {C_}, 3\ns_min_u32 {dst}, {dst}, {T3}\ns_add_u32 {dst}, {dst}, 32")


def waddr(dst, t1, t2, hshift):
    P(f"v_lshrrev_b32 {v(t1)}, 5, v0\nv_bfe_u32 {v(t2)}, v0, 2, 2\nv_lshl_add_u32 {v(t1)}, {v(t1)}, {hshift}, {v(t2)}")
    P(f"v_lshlrev_b32 {v(dst)}, 7, {v(t1)}")
    P(f"v_bfe_u32 {v(t1)}, v0, 3, 1\nv_lshl_or_b32 {v(dst)}, {v(t1)}, 6, {v(dst)}")
    P(f"v_bfe_u32 {v(t1)}, v0, 4, 1\nv_lshl_or_b32 {v(dst)}, {v(t1)}, 5, {v(dst)}")
    P(f"v_and_b32 {v(t1)}, 3, v0\nv_lshl_or_b32 {v(dst)}, {v(t1)}, 3, {v(dst)}")


def tr(dst, addr, off, tag):
    assert 0 <= off < 65536, off
    lg.room()
    P(f"ds_read_b64_tr_b16 {v(dst, 2)}, {v(addr)} offset:{off}")
    lg.add(tag)


def dump(role):
    if not DIAG:
        return
    P("s_waitcnt vmcnt(0)")
    stamp(role, "end")
    P("s_waitcnt lgkmcnt(0)")
    for n in range(16):
        P(f"v_mov_b32 {v(32 + n)}, {s(80 + n) if DIAG < 3 else (s(80 + 2 * n) if n < 10 else ('s100' if n == 15 else 0))}")
    if role == 1 and DIAG >= 3 and OPT.get("xcc"):
        P(f"s_getreg_b32 {T0}, hwreg(HW_REG_XCC_ID, 0, 4)\ns_min_u32 {T1}, s46, 1\ns_lshl4_add_u32 {T0}, {T1}, {T0}\nv_mov_b32 v45, {T0}")
    P(f"s_lshl_b32 {T0}, s2, 3\ns_add_u32 {T0}, {T0}, {W}\ns_lshl_b32 {T0}, {T0}, 6\ns_add_u32 {T0}, {T0}, 0x{WS_DIAG + role * 256:x}")
    P("v_mov_b32 v26, 0\ns_mov_b64 exec, 1")
    for n in range(4):
        P(f"buffer_store_dwordx4 {v(32 + 4 * n, 4)}, v26, {rWS}, {T0} offen offset:{16 * n}")


P("s_cmp_ge_u32 s2, 256")
P("s_cbranch_scc1 L_end")
if DIAG >= 3:
    P("s_memrealtime s[100:101]")
P("s_load_dwordx16 s[36:51], s[0:1], 0")
P("v_lshrrev_b32 v1, 6, v0")
P("v_and_b32 v0, 63, v0")
P(f"v_lshlrev_b32 v2, 2, v1\nv_add_u32 v2, 0x{L_RDY:x}, v2\nv_mov_b32 v3, 0\nds_write_b32 v2, v3")
if OPT["map1"] == 81:
    P(f"s_lshr_b32 {T3}, s2, 7\nv_readfirstlane_b32 {T2}, v1\ns_and_b32 {I_}, s2, 7\ns_bfe_u32 {J_}, s2, 0x40003")
    if OPT["rv"] == 1:
        P(f"s_and_b32 {T1}, s2, 3\ns_lshl1_add_u32 {I_}, {I_}, {T3}\ns_lshl2_add_u32 {RHO}, {T3}, {T1}")
    else:
        P(f"s_lshl2_add_u32 {RHO}, {T3}, {J_}\ns_and_b32 {T1}, s2, 3\ns_lshl1_add_u32 {I_}, {I_}, {T3}\ns_add_u32 {RHO}, {RHO}, {T1}\ns_and_b32 {RHO}, {RHO}, 7")
    if OPT["rv"] == 2:
        P(f"s_lshr_b32 {T1}, {J_}, 1\ns_sub_u32 {RHO}, {RHO}, {J_}\ns_add_u32 {RHO}, {RHO}, {T1}\ns_and_b32 {RHO}, {RHO}, 7")
elif OPT["map1"] == 24:
    P(f"s_lshr_b32 {T3}, s2, 5\nv_readfirstlane_b32 {T2}, v1\ns_and_b32 {I_}, s2, 4\ns_bfe_u32 {T1}, s2, 0x20003\ns_and_b32 {J_}, s2, 3")
    P(f"s_lshl1_add_u32 {I_}, {I_}, {T3}\ns_lshl2_add_u32 {J_}, {J_}, {T1}\ns_lshl1_add_u32 {RHO}, {T1}, {T3}\ns_and_b32 {T1}, s2, 1\ns_add_u32 {RHO}, {RHO}, {T1}\ns_and_b32 {RHO}, {RHO}, 7")
else:
    P(f"s_lshr_b32 {T3}, s2, 6\nv_readfirstlane_b32 {T2}, v1\ns_and_b32 {I_}, s2, 6\ns_bfe_u32 {T1}, s2, 0x30003\ns_and_b32 {J_}, s2, 1")
    P(f"s_lshl1_add_u32 {I_}, {I_}, {T3}\ns_lshl3_add_u32 {J_}, {J_}, {T1}\ns_lshl1_add_u32 {RHO}, {T3}, {T1}\ns_bfe_u32 {T1}, s2, 0x10001\ns_add_u32 {RHO}, {RHO}, {T1}\ns_and_b32 {RHO}, {RHO}, 7")
P(f"s_and_b32 {W}, {T2}, 3")
def late_args():
    P("s_load_dwordx4 s[52:55], s[0:1], 64")
    P("s_load_dwordx2 s[56:57], s[0:1], 80")
    P(f"s_lshr_b32 {C_}, {J_}, 1\ns_and_b32 {TYPE}, {J_}, 1")
def diag_init():
    if DIAG:
        for n in range(20):
            P(f"s_mov_b32 s{80 + n}, 0")


RHOS, RHOA = "s3", "s47"
def tile2():
    if OPT["map2"] == 42:
        P(f"s_lshr_b32 {T3}, s2, 5\ns_bfe_u32 {TB2}, s2, 0x20001\ns_lshl_b32 {TB2}, {TB2}, 3\ns_add_u32 {TB2}, {TB2}, {T3}")
        P(f"s_bfe_u32 {RHO2}, s2, 0x20003\ns_and_b32 {CT}, s2, 1\ns_lshl_b32 {CT}, {CT}, 2\ns_add_u32 {CT}, {CT}, {RHO2}")
        P(f"s_lshl_b32 {RHO2}, {RHO2}, 1\ns_add_u32 {RHO2}, {RHO2}, {T3}\ns_and_b32 {RHO2}, {RHO2}, 7")
        return
    P(f"s_lshr_b32 {T3}, s2, 6\ns_and_b32 {TB2}, s2, 7\ns_lshl_b32 {TB2}, {TB2}, 2\ns_add_u32 {TB2}, {TB2}, {T3}")
    P(f"s_bfe_u32 {CT}, s2, 0x30003\ns_lshl_b32 {RHO2}, {T3}, 1\ns_add_u32 {RHO2}, {RHO2}, {CT}\ns_and_b32 {RHO2}, {RHO2}, 7")
    P(f"s_add_u32 {RHOS}, {T3}, {CT}\ns_mul_i32 {RHOA}, {T3}, 3\ns_and_b32 {T3}, {CT}, 1\ns_add_u32 {RHOA}, {RHOA}, {T3}")
    if not OPT["rotx"]:
        P(f"s_mov_b32 {RHOS}, {RHO2}\ns_mov_b32 {RHOA}, 0")


P(f"s_cmp_lt_u32 {T2}, 4")
P("s_cbranch_scc1 L_loader")
late_args()
if OPT["codepf"]:
    P("s_getpc_b64 s[32:33]")
    P.label("L_pc")
    P("s_mov_b32 s34, L_codeend-L_pc\ns_mov_b32 s35, 0x20000")
    P(f"s_lshr_b32 {T0}, s2, 3\ns_lshl2_add_u32 {T1}, {T0}, {W}\ns_lshl_b32 {T1}, {T1}, 7\nv_and_b32 v4, 3, v0\nv_lshl_add_u32 v4, v4, 14, {T1}")
    P("buffer_load_dword v31, v4, s[32:35], 0 offen")
P("s_branch L_compute")
P.label("L_loader")

lg = Q("lgkmcnt", 15)
vm = Q("vmcnt", 63)
VX, VP1, VP2, VW2, VBI, LWA, LWB, VL16, SEL, CS, CS2 = 1, 2, 3, 4, 5, 6, 7, 8, 12, 16, 20
RS1, RS32, SX0, SW0, DCOL, SP20, SM, HB0L = (s(n) for n in range(72, 80))
if DIAG < 3:
    diag_init()
    stamp(1, "start")
P("v_lshrrev_b32 v24, 3, v0\nv_and_b32 v25, 7, v0\nv_lshrrev_b32 v26, 4, v0")
P(f"s_and_b32 {T0}, {W}, 1\ns_lshl_b32 {T0}, {T0}, 2\ns_lshl4_add_u32 {SX0}, {I_}, {W}")
P(f"v_add_u32 v27, {T0}, v26\nv_xor_b32 v27, v27, v25\nv_lshlrev_b32 v27, 4, v27\nv_lshl_or_b32 {v(VX)}, v24, 10, v27")
P(f"s_lshl_b32 {SX0}, {SX0}, 13\ns_lshl_b32 {SM}, {W}, 10")
P("s_mov_b32 s6, 0x200000\ns_mov_b32 s7, 0x20000")
SZQ, SZ1 = 512 * 3072, 512 * 2752


def wsetup():
    late_args()
    P(f"s_setprio {OPT['prio']}")
    P(f"s_lshl_b32 {T1}, {C_}, 7\ns_cmp_eq_u32 {TYPE}, 0")
    sel2(RS1, 3072, 2752)
    sel2(DCOL, 1024, 128)
    sel2("s10", SZQ, SZ1)
    P(f"s_cselect_b32 s8, s{P_QKV}, s{P_W1}\ns_cselect_b32 s9, s{P_QKV+1}, s{P_W1+1}\ns_mov_b32 s11, 0x20000")
    P(f"s_cselect_b32 {SW0}, 1024, {T1}\ns_add_u32 {SW0}, {SW0}, {T1}")
    P("v_and_b32 v27, 1, v26\nv_lshlrev_b32 v27, 2, v27\nv_xor_b32 v27, v27, v25\nv_lshlrev_b32 v27, 4, v27")
    P(f"v_mad_u32_u24 {v(VP1)}, v24, {RS1}, v27")
    P(f"s_lshl_b32 {T3}, {W}, 3\ns_mul_i32 {SP20}, {T3}, {RS1}\ns_add_u32 {SW0}, {SW0}, {SP20}\ns_lshl_b32 {RS32}, {RS1}, 5")


def wsetup2():
    hblock2(HB0L)
    P(f"s_lshl_b32 {T0}, {HB0L}, 6\ns_lshl_b32 {T1}, {C_}, 7\ns_cmp_eq_u32 {TYPE}, 0\ns_cselect_b32 {T0}, {T1}, {T0}\ns_add_u32 {SP20}, {SP20}, {T0}")
    P(f"v_lshl_or_b32 {v(VW2)}, v24, 10, v27")


def dma(voff, srdr, soff, tag, nt=False):
    if OPT["noload"]:
        return
    P(f"buffer_load_dwordx4 {v(voff)}, {srdr}, {soff} offen {'nt ' if nt else ''}lds")
    vm.add(tag)


def ks_reg(q):
    P(f"s_add_u32 {T0}, {RHO}, {q}\ns_and_b32 {T0}, {T0}, 7" if q else f"s_mov_b32 {T0}, {RHO}")


def stage(q, mid=None, pre=None):
    sl = (q % 3) * 32 * K
    ks_reg(q)
    P(f"s_lshl_b32 {T1}, {T0}, 7\ns_add_u32 {T1}, {T1}, {SX0}")
    for m in range(4):
        P(f"s_add_u32 m0, {SM}, {sl + 4 * K * m}")
        if m:
            P(f"s_add_u32 {T1}, {T1}, 32768")
        else:
            P(f"s_lshl_b32 {T0}, {T0}, 6")
            if pre:
                pre()
        dma(VX, rX, T1, ("st", q), q < OPT["xnt"])
    if mid:
        mid()
    P(f"s_mul_i32 {T0}, {T0}, {RS1}\ns_add_u32 {T0}, {T0}, {SW0}")
    for h in range(2):
        if h:
            P(f"s_add_u32 {T0}, {T0}, {RS32}")
        P(f"s_add_u32 m0, {SM}, {sl + 16 * K + 4 * K * h}")
        P(f"s_add_u32 {T1}, {T0}, {DCOL}")
        dma(VP1, rP1, T0, ("st", q), q >= 8 - OPT["wnt"])
        P(f"s_add_u32 m0, {SM}, {sl + 24 * K + 4 * K * h}")
        dma(VP1, rP1, T1, ("st", q), q >= 8 - OPT["wnt"])


def chunk(q, tag="ch"):
    ks_reg(q)
    P(f"s_lshl_b32 {T0}, {T0}, 6\ns_mul_i32 {T0}, {T0}, {RS1}")
    P(f"s_add_u32 m0, {SM}, {CH(q)}\ns_add_u32 {T0}, {T0}, {SP20}")
    dma(VP1, rP1, T0, tag)
    P(f"s_add_u32 m0, {SM}, {CH(q) + 4 * K}\ns_add_u32 {T0}, {T0}, {RS32}")
    dma(VP1, rP1, T0, tag)


LPA, LPL = "s48", "s49"
LPB, LGB, SCS = "s36", "s37", "s38"
CHR, MID, PQR, D0, D1 = 48, 104, 212, 32, 228


def page_addr(p):
    if p < 32:
        if p % 2 == 0 or page_addr.last != ("b", p >> 1):
            P(f"s_add_u32 {LGB}, {RHO2}, {(p >> 1) & 7}\ns_and_b32 {LGB}, {LGB}, 7\ns_lshl_b32 {LGB}, {LGB}, 17\ns_add_u32 {LGB}, {LGB}, {LPB}")
            page_addr.last = ("b", p >> 1)
        P(f"s_add_u32 {T0}, {LGB}, {(2 * (p >> 4) + (p & 1)) * 32768}")
        return rW2
    elif p < 44:
        P(f"s_add_u32 {T0}, {LPA}, {(p - 32) * 32768}\ns_cmp_ge_u32 {T0}, {LPL}\ns_cselect_b32 {T1}, {11 * 32768}, 0\ns_sub_u32 {T0}, {T0}, {T1}")
        return rW2
    else:
        g, mask, sr, add = (p - 44) >> 2, 3, rWO, 0
    if p % 4 == 0 or page_addr.last != (p >> 2):
        P(f"s_add_u32 {LGB}, {RHOS}, {g}\ns_and_b32 {LGB}, {LGB}, {mask}\ns_lshl_b32 {LGB}, {LGB}, 17\ns_add_u32 {LGB}, {LGB}, {LPB}")
        page_addr.last = p >> 2
    P(f"s_add_u32 {T0}, {LGB}, {(p % 4) * 32768}")
    return sr
page_addr.last = None


def page(p):
    P(f"s_add_u32 m0, {SM}, {slot_of(p)}")
    sr = page_addr(p)
    dma(VW2, sr, T0, ("pg", p))


def stg_reg(p):
    if p < 38:
        return MID + 4 * (p - 18)
    k = p - 38 if p < 43 else p - 39
    return CHR + 4 * k if k < 14 else 184 + 4 * (k - 14)


def lds16(a):
    return f"{v(VL16 + a // (64 * K))}", a % (64 * K)


VP2N = 23
def chunk_stage(q):
    if OPT["nar"] and q == 1:
        P(f"s_cmp_ge_u32 {C_}, 3\ns_cselect_b32 {T0}, {TYPE}, 0\ns_lshl_b32 {T0}, {T0}, 6\ns_not_b32 {T0}, {T0}")
        P(f"v_lshrrev_b32 v27, 3, v0\nv_mul_u32_u24 v27, {RS1}, v27\nv_sub_u32 v28, {v(VP1)}, v27\nv_and_b32 v28, {T0}, v28\nv_add_u32 {v(VP2N)}, v27, v28")
    ks_reg(q)
    P(f"s_lshl_b32 {T0}, {T0}, 6\ns_mul_i32 {T0}, {T0}, {RS1}\ns_add_u32 {T0}, {T0}, {SP20}\ns_add_u32 {T1}, {T0}, {RS32}")
    for h in range(2):
        P(f"buffer_load_dwordx4 {v(CHR + 8 * (q - 1) + 4 * h, 4)}, {v(VP2N if OPT['nar'] else VP1)}, {rP1}, {(T0, T1)[h]} offen")
        vm.add(("ch", q))


def chunk_write(q):
    vm.wait(("ch", q))
    for h in range(2):
        a, off = lds16(CH(q) + 4 * K * h)
        P(f"ds_write_b128 {a}, {v(CHR + 8 * (q - 1) + 4 * h, 4)} offset:{off}")


def page_stage(p):
    sr = page_addr(p)
    P(f"buffer_load_dwordx4 {v(stg_reg(p), 4)}, {v(VW2)}, {sr}, {T0} offen")
    vm.add(("pg", p))


def page_write(p, pace=0):
    so = slot_of(p)
    a, off = (VL16, so) if so < 64 * K else ((VL16 + 1, so - 64 * K) if so < 128 * K else (VL16 + 2, so - 128 * K))
    P(f"ds_write_b128 {v(a)}, {v(stg_reg(p), 4)} offset:{off}")
    if pace:
        P("s_waitcnt lgkmcnt(0)")


stage(0, wsetup, lambda: P(f"s_waitcnt lgkmcnt(0)\ns_mov_b32 s4, s{P_X}\ns_mov_b32 s5, s{P_X+1}"))
if DIAG >= 3:
    diag_init()
    stamp(1, "start")
stamp(1, "st0")
wsetup2()
if not OPT["chl"]:
    chunk(0, "ch0")
P("s_waitcnt lgkmcnt(0)")
P(f"s_load_dword {NONCE}, s[{P_WS}:{P_WS+1}], 0")
srd(rWS, P_WS, WS_SIZE)
srd(rW2, P_W2, 1376 * 1024)
srd(rWO, P_WO, 512 * 1024)
srd(rA, P_B1, 2752)
tile2()
waddr(LWA, 27, 28, 3)
P(f"s_and_b32 {T0}, {W}, 1\ns_lshl_b32 {T0}, {T0}, 6")
P(f"v_xor_b32 {v(LWA)}, {T0}, {v(LWA)}")
P(f"v_add_u32 {v(LWB)}, 0x{CH(0):x}, {v(LWA)}")
P(f"s_lshr_b32 {T0}, {W}, 1\ns_lshl_b32 {T0}, {T0}, 13\ns_add_u32 {T0}, {T0}, {16 * K}")
P(f"v_add_u32 {v(LWA)}, {T0}, {v(LWA)}")
P("v_and_b32 v27, 15, v0\nv_lshlrev_b32 v28, 2, v26\nv_cmp_eq_u32 vcc, v27, v28\nv_mov_b32 v27, 0x3f803f80")
for r in range(4):
    P(f"v_cndmask_b32 {v(SEL + r)}, 0, v27, vcc")
P(f"v_lshl_add_u32 {v(VL16)}, v0, 4, {SM}")
P(f"v_add_u32 {v(VL16+1)}, 0x10000, {v(VL16)}\nv_add_u32 {v(VL16+2)}, 0x20000, {v(VL16)}")
P(f"s_lshl_b32 {LPB}, {W}, 13\ns_lshl_b32 {T1}, {CT}, 7\ns_add_u32 {LPB}, {LPB}, {T1}")
P(f"s_lshl_b32 {LPA}, {RHOA}, 15\ns_add_u32 {LPA}, {LPA}, {LPB}\ns_add_u32 {LPA}, {LPA}, {32 * 32768}\ns_add_u32 {LPL}, {LPB}, {43 * 32768}")
P(f"s_lshl_b32 {SCS}, {J_}, 1\ns_lshr_b32 {T0}, {I_}, 3\ns_add_u32 {SCS}, {SCS}, {T0}\ns_lshl_b32 {SCS}, {SCS}, 2")
P(f"s_add_u32 {SCS}, {SCS}, {W}\ns_lshl_b32 {SCS}, {SCS}, 12\ns_add_u32 {SCS}, {SCS}, 0x{WS_CS:x}")
P(f"s_lshl_b32 {T0}, {C_}, 2\ns_add_u32 {T0}, {T0}, {W}\ns_lshl_b32 {T0}, {T0}, 6")
P(f"s_and_b32 {T1}, {W}, 1\ns_add_u32 {T1}, {T1}, {HB0L}\ns_lshl_b32 {T1}, {T1}, 6")
P(f"s_cmp_eq_u32 {TYPE}, 0\ns_cselect_b32 {T0}, 0x100000, {T0}\ns_cselect_b32 {T1}, 0x100000, {T1}")
P(f"v_mov_b32 v27, {T0}\nv_mov_b32 v28, {T1}\nv_cmp_gt_u32 vcc, 32, v0\nv_and_b32 v29, 31, v0")
P(f"v_cndmask_b32 v27, v28, v27, vcc\nv_lshl_add_u32 v30, v29, 1, v27")
VSIG, VPK = 11, 24
P(f"s_lshl_b32 {T0}, {W}, 2\ns_add_u32 {T0}, {T0}, 0x{L_RDY:x}\nv_mov_b32 {v(VSIG)}, {T0}")
P(f"v_and_b32 {v(VPK)}, 3, v0\nv_lshlrev_b32 {v(VPK)}, 2, {v(VPK)}\nv_add_u32 {v(VPK)}, 0x{L_PRG:x}, {v(VPK)}")
XRES, BRES, VO, SO = 244, 252, 19, "s45"
if OPT["eb"]:
    srd(rB, P_B2, 1024)
    P(f"buffer_load_ushort {v(VBI)}, v30, {rA}, 0 offen")
    P(f"v_and_b32 v28, 7, v0\nv_lshlrev_b32 v28, 4, v28\ns_lshl_b32 {T1}, {CT}, 7")
    P(f"buffer_load_dwordx4 {v(BRES, 4)}, v28, {rB}, {T1} offen")
    vm.add(None)
    vm.add(None)
stamp(1, "setup")
if not OPT["s1late"]:
    stage(1, (lambda: P(f"s_waitcnt vmcnt({OPT['s1h']})")) if OPT["s1h"] else None)
if OPT["chl"] and not OPT["chx"] and not OPT["s1late"]:
    chunk(0, ("st", 1))
stamp(1, "issued")
P(f"s_waitcnt lgkmcnt(0)\ns_add_u32 {NONCE}, {NONCE}, 1")
vm.wait("ch0")
vm.wait(("st", 0))
stamp(1, "land")
if OPT["p2only"]:
    P("s_waitcnt vmcnt(0)\ns_barrier")
    signal(VSIG, 27, 6)
    P("s_barrier\ns_barrier")
    dump(1)
    P("s_endpgm")
    lg.q = []
P("s_barrier ; b0")
stamp(1, "b0")
FR = 32


def cs_reads(a, f):
    for t in range(4):
        P(f"ds_read_b64_tr_b16 {v(f + 4 * t, 2)}, {v(a)} offset:{t * 2048}")
        P(f"ds_read_b64_tr_b16 {v(f + 4 * t + 2, 2)}, {v(a)} offset:{t * 2048 + 512}")


def cs_mfma(acc, f):
    for t in range(4):
        P(f"v_mfma_f32_16x16x32_bf16 {v(acc, 4)}, {v(SEL, 4)}, {v(f + 4 * t, 4)}, {'0' if t == 0 else v(acc, 4)}")


CSL = "\n".join(f"buffer_load_dwordx2 {v(32 + 2 * n, 2)}, v29, {rWS}, {SCS} offen offset:{512 * n} sc1" for n in range(8))
CSC = "\n".join([f"v_xor_b32 {v(228 + n)}, {NONCE}, {v(33 + 2 * n)}" for n in range(8)] +
                ["v_or3_b32 v228, v228, v229, v230", "v_or3_b32 v231, v231, v232, v233", "v_or3_b32 v228, v228, v234, v235",
                 "v_or_b32 v228, v228, v231", "v_cmp_ne_u32 vcc, 0, v228"])
nch = 1
align("g0")
for st in range(8):
    CL = OPT["chl"]
    def mid():
        if OPT["latem"] >> st & 1:
            P(f"s_waitcnt vmcnt({OPT['lm']})")
        if st == 0:
            P(f"s_setprio {OPT['csprio']}")
            P("s_waitcnt lgkmcnt(0)")
            if not CL:
                cs_reads(LWB, FR + 16)
            cs_mfma(CS, FR)
            if CL:
                P(f"s_setprio {OPT['prio']}")
    if st == 0:
        cs_reads(LWA, FR)
        if OPT["s1late"]:
            stage(1)
            if OPT["chl"]:
                chunk(0, ("st", 1))
    if OPT["chx"] and st == OPT["chx"]:
        chunk(0, None)
    if st == 1 and CL:
        cs_reads(LWB, FR + 16)
    if st <= 5:
        if OPT["lateA"] >= 0:
            a_, b_ = OPT["lateA"] >> st & 1, OPT["lateB"] >> st & 1
            if a_ and b_:
                P("s_waitcnt vmcnt(0)")
            elif a_ or b_:
                P(f"s_bitcmp1_b32 s2, {(3, 7, 0, 4)[OPT['lsel']]}\ns_cbranch_scc{1 if a_ else 0} L_lt{st}\ns_waitcnt vmcnt(0)\nL_lt{st}:")
        elif OPT["late"] >> st & 1:
            P(f"s_waitcnt vmcnt({OPT['lw']})")
        stage(st + 2, mid)
    if st == CL:
        P(f"s_setprio {OPT['csprio']}")
        P(f"s_lshl_b32 {T0}, {W}, 8\ns_add_u32 {T0}, {T0}, 0x{L_CSX:x}")
        P(f"v_lshl_add_u32 v27, v0, 2, {T0}")
        P("s_waitcnt lgkmcnt(0)")
        cs_mfma(CS2, FR + 16)
        P(f"v_permlane32_swap_b32 {v(CS)}, {v(CS2)}")
        P(f"v_add_f32 {v(CS)}, {v(CS)}, {v(CS2)}")
        P(f"ds_write_b32 v27, {v(CS)}")
        P(f"s_setprio {OPT['prio']}")
    if st == CL + 1:
        P("s_waitcnt lgkmcnt(0)")
    if OPT["fill"] == 3 and 1 <= st <= 6:
        if st == 1:
            P(f"s_lshl2_add_u32 s40, {I_}, {W}\ns_mul_i32 s40, s40, {TB_STRIDE}\ns_lshl_b32 {T0}, {J_}, 12\ns_add_u32 s40, s40, {T0}\ns_add_u32 s40, s40, 0x{WS_HA:x}")
        for t in range(6 * (st - 1), min(32, 6 * st)):
            P(f"s_buffer_load_dword s41, {rWS}, s40 offset:{128 * t}")
    if st == 6:
        P("v_lshlrev_b32 v29, 3, v0")
        P(CSL)
        for n in range(8):
            vm.add("cs")
        if OPT["ltouch"]:
            P(f"s_lshl2_add_u32 {T0}, s2, {W}\ns_mul_i32 {T1}, {T0}, {11 * 128}\ns_lshl_b32 {T0}, {T0}, 9")
            P(f"v_min_u32 v27, 10, v0\nv_lshlrev_b32 v27, 7, v27\nv_and_b32 v28, 0x180, v27")
            P(f"buffer_load_dword v20, v27, {rW2}, {T1} offen\nbuffer_load_dword v21, v28, {rWO}, {T0} offen")
            vm.add(None)
            vm.add(None)
        if OPT["f6"]:
            P(f"s_mul_i32 {T0}, {I_}, {4 * TB_STRIDE}\ns_lshl_b32 {T1}, {C_}, 12\ns_add_u32 {T1}, {T1}, {SM}\ns_add_u32 {T1}, {T1}, {86 * K}")
            P(f"s_mul_i32 {T2}, {W}, {TB_STRIDE}\ns_lshl_b32 {T3}, {HB0L}, 11\ns_add_u32 {T2}, {T2}, {T3}")
            P(f"s_cmp_lt_u32 {C_}, 3")
            sel2(T3, 3, 1)
            P(f"s_cmp_eq_u32 {TYPE}, 0\ns_cselect_b32 {T1}, {T1}, {T2}\ns_cselect_b32 {T3}, 3, {T3}")
            sel2(T2, TB_STRIDE, 1024)
            P(f"s_add_u32 {T0}, {T0}, {T1}\ns_add_u32 {T0}, {T0}, 0x{WS_HA:x}")
            P(f"v_lshrrev_b32 v27, 3, v0\nv_and_b32 v27, {T3}, v27\nv_mul_u32_u24 v27, {T2}, v27\nv_and_b32 v28, 7, v0\nv_lshl_add_u32 v27, v28, 7, v27")
            P(f"buffer_load_dword v25, v27, {rWS}, {T0} offen")
            vm.add(None)
        if OPT["ft"]:
            P(f"s_lshl2_add_u32 {T0}, {I_}, {W}\ns_lshl_b32 {T0}, {T0}, 7\ns_lshl_b32 {T1}, {I_}, 7\ns_add_u32 {T1}, {T1}, {FL_O * 128}")
            P(f"v_and_b32 v27, 3, v0\nv_lshl_add_u32 v28, v27, 13, {T0}\nv_mov_b32 v22, {T1}\nv_cmp_eq_u32 vcc, 2, v27\nv_cndmask_b32 v28, v28, v22, vcc")
            P(f"s_mov_b32 {T0}, 0x{WS_FLAGS:x}\nbuffer_load_dword v22, v28, {rWS}, {T0} offen sc1")
            vm.add(None)
    if st == 7:
        P(f"s_setprio {OPT['exprio']}")
        vm.wait("cs")
        stamp(1, "csin")
        P(CSC)
        retry("L_cs", CSL, CSC)
        stamp(1, "csok")
        P("v_add_f32 v32, v32, v34\nv_add_f32 v36, v36, v38\nv_add_f32 v40, v40, v42\nv_add_f32 v44, v44, v46")
        P("v_add_f32 v32, v32, v36\nv_add_f32 v40, v40, v44\nv_add_f32 v32, v32, v40")
        P("v_cvt_pk_bf16_f32 v33, v32, v32\nv_lshlrev_b32 v33, 16, v33\nv_sub_f32 v32, v32, v33\nv_cvt_pk_bf16_f32 v32, v33, v32")
        P("v_cmp_gt_u32 vcc, 32, v0")
        P(f"s_lshl_b32 {T0}, {W}, 9\ns_add_u32 {T0}, {T0}, 0x{L_EX1:x}")
        P(f"v_add_u32 v29, {T0}, v29")
        P(f"v_cndmask_b32 v34, 0, v32, vcc\nv_cndmask_b32 v35, 0, {v(VBI)}, vcc")
        P(f"v_cndmask_b32 v36, v32, 0, vcc\nv_cndmask_b32 v37, {v(VBI)}, 0, vcc")
        P(f"ds_write_b64 v29, v[34:35]\nds_write_b64 v29, v[36:37] offset:{L_EX2 - L_EX1}")
    if st == 7:
        P(f"s_setprio {OPT['prio']}")
    if st >= 6:
        for q in range(nch, nch + OPT[f"n{st}"]):
            chunk_stage(q)
        nch += OPT[f"n{st}"]
    if st < 7:
        vm.wait(("st", st + 1))
    if st == 7:
        P("s_waitcnt lgkmcnt(0)")
        stamp(1, "exw")
    P(f"s_barrier ; b{st + 1}")
    if "st1" in OPT and st < 7:
        stamp(1, f"b{st+1}")
stamp(1, "b8")
if OPT["p1only"]:
    dump(1)
    P("s_endpgm")
    DIAG = 0
align("g8")
for q in range(nch, 8):
    chunk_stage(q)
if not OPT["eb"]:
    srd(rB, P_B2, 1024)
srd(rP2, P_OUT, 2 * K * K)
P(f"v_and_b32 v28, 7, v0\nv_lshlrev_b32 v28, 4, v28\nv_lshrrev_b32 v29, 3, v0\nv_lshl_or_b32 {v(VO)}, v29, 10, v28")
P(f"s_lshl_b32 {SO}, {TB2}, 2\ns_add_u32 {SO}, {SO}, {W}\ns_lshl_b32 {SO}, {SO}, 14\ns_lshl_b32 {T1}, {CT}, 7\ns_add_u32 {SO}, {SO}, {T1}")
P(f"s_add_u32 {T2}, {SO}, 8192")
if not OPT["eb"]:
    P(f"buffer_load_dwordx4 {v(BRES, 4)}, v28, {rB}, {T1} offen")
    vm.add("res")
P(f"buffer_load_dwordx4 {v(XRES, 4)}, {v(VO)}, {rX}, {SO} offen")
P(f"buffer_load_dwordx4 {v(XRES + 4, 4)}, {v(VO)}, {rX}, {T2} offen")
for _ in range(2):
    vm.add("res")
vq8 = list(vm.q)


def stream(seq):
    for p in seq:
        (page if p < 18 else page_stage)(p)


LATE = list(range(38, 43)) + list(range(44, 60))
P(f"s_cmp_eq_u32 {TYPE}, 0")
P("s_cbranch_scc1 L_lA")
SH1, SH2, SF1 = "s4", "s5", "s6"
P(f"v_add_u32 v22, 16, {v(VSIG)}\nv_lshlrev_b32 v23, 4, v0")
P(f"s_lshl_b32 {T0}, {I_}, 2\ns_add_u32 {T0}, {T0}, {W}")
P(f"s_mul_i32 {SH1}, {T0}, {TB_STRIDE}\ns_add_u32 {SH1}, {SH1}, 0x{WS_HA:x}")
P(f"s_lshl_b32 {SH2}, {HB0L}, 11\ns_add_u32 {SH2}, {SH2}, {SH1}\ns_lshl_b32 {T1}, {C_}, 13\ns_add_u32 {SH1}, {SH1}, {T1}")
P(f"s_lshl_b32 {SF1}, {T0}, 5\ns_add_u32 {SF1}, {SF1}, {C_}\ns_lshl_b32 {SF1}, {SF1}, {2 + FX}\ns_add_u32 {SF1}, {SF1}, 0x{WS_FLAGS + FL_HB * LN:x}")


def far():
    P(f"ds_read_b32 v28, {v(VPK)} offset:{L_FAST - L_PRG}\ns_waitcnt lgkmcnt(0)\nv_cmp_ne_u32 vcc, 0, v28\ns_or_b32 {FAR}, vcc_lo, vcc_hi")


def wback(tag):
    if OPT["wbj"] == 0:
        P(f"s_cmp_lg_u32 {W}, 0")
    else:
        P(f"s_xor_b32 {T0}, {J_}, {OPT['wbj'] - 1}\ns_or_b32 {T0}, {T0}, {W}\ns_cmp_lg_u32 {T0}, 0")
    P(f"s_cbranch_scc1 L_wb{tag}\nbuffer_wbl2 sc1\nL_wb{tag}:")


def hstore(k, base, b, sh, tag):
    if k == 1:
        await_(VPK, 28, k)
        far()
    else:
        await_(22, 28, k)
    d = D0 + 8 * (b & 1)
    for u in range(2):
        a = base + (2 * b + u) * 4096
        P(f"ds_read_b128 {v(d + 4 * u, 4)}, {v(VL16 + a // (64 * K))} offset:{a % (64 * K)}")
    if b == 2:
        P(f"s_add_u32 {sh}, {sh}, 4096")
    for u in range(2):
        P(f"s_waitcnt lgkmcnt({1 - u})")
        row_store(f"buffer_store_dwordx4 {v(d + 4 * u, 4)}, v23, {rWS}, {sh} offen offset:{2048 * (b & 1) + 1024 * u}", OPT["nt1"] if tag != "h2" else OPT["nt2"])
        vm.add(tag)


if OPT["fill"] == 1:
    P("v_lshlrev_b32 v25, 7, v0\nv_and_b32 v27, 0xfff, v25")
    P(f"buffer_load_dword v20, v25, {rWS}, {SH1} offen\nbuffer_load_dword v21, v27, {rWS}, {SH2} offen")
    vm.add(None)
    vm.add(None)
mid = list(range(18, 38))
stream(mid[:OPT["e1B"]])
np_ = OPT["e1B"]
for q in range(1, 5):
    chunk_write(q)
hstore(1, L_HS, 0, SH1, "h")
for q in range(5, 8):
    chunk_write(q)
signal(VSIG, 26, 1, True)
for b in range(1, 4):
    stream(mid[np_:np_ + OPT["iB2"]])
    np_ += OPT["iB2"]
    hstore(b + 1, L_HS, b, SH1, "h" if b < 2 else "h1")
signal(VSIG, 26, 2)
stamp(1, "h_st")
vm.wait("h")
flag_store(SF1, aux=HX)
vm.add(None)
stamp(1, "hbflag")
P(f"s_add_u32 {SF1}, {SF1}, {(FL_H1 - FL_HB) * LN}")
stream(range(OPT["xB"]))
vm.wait("h1")
flag_store(SF1, aux=HX)
vm.add(None)
stamp(1, "h1flag")
stream(range(OPT["xB"], 18))
stream(mid[np_:])
P(f"s_sub_u32 {SF1}, {SF1}, {(FL_H1 - FL_HA) * LN}")
P(f"s_cmp_lt_u32 {C_}, 3")
P("s_cbranch_scc0 L_lB1")
vqB = list(vm.q)
restB = {}
for nb in (2, 1):
    if nb == 1:
        P.label("L_lB1")
        vm.q = list(vqB)
    page_addr.last = None
    pre = OPT["lB2"] if nb == 2 else OPT["lB1"]
    stream(LATE[:pre])
    vm.wait(("pg", 17))
    signal(VSIG, 26, 3)
    stamp(1, "staged")
    lg.q = []
    await_(VPK, 28, 8)
    marks = {OPT["w0"]: 0, OPT["w1"]: 1} if nb == 2 else {OPT["w0c"]: 0}
    for n, p in enumerate(range(18, 38)):
        if n in marks:
            lg.q = []
            hstore(9 + marks[n], L_PQ, marks[n], SH2, "h2")
            stamp(1, "h2_st")
        vm.wait(("pg", p))
        page_write(p)
    signal(VSIG, 26, 4, True)
    vm.wait("h2")
    flag_store(SF1, aux=HX)
    vm.add(None)
    stamp(1, "oflag")
    stream(LATE[pre:max(pre, OPT["l1"])])
    vm.wait(("pg", 42))
    restB[nb] = LATE[max(pre, OPT["l1"]):]
    P("s_branch L_l5")
align("gA")
P.label("L_lA")
vm.q = list(vq8)
lg.q = []
page_addr.last = None
SOB = "s44"
P(f"s_mul_i32 {SOB}, {I_}, {4 * TB_STRIDE}\ns_lshl_b32 {T1}, {C_}, 12\ns_add_u32 {SOB}, {SOB}, {T1}")
P(f"s_add_u32 {SOB}, {SOB}, {SM}\ns_add_u32 {SOB}, {SOB}, 0x{WS_HA + 86 * K:x}")
if OPT["fill"] == 1:
    P(f"v_bfe_u32 v25, v0, 3, 2\nv_mul_u32_u24 v25, {TB_STRIDE}, v25\nv_and_b32 v27, 7, v0\nv_lshl_add_u32 v25, v27, 7, v25")
    P(f"buffer_load_dword v20, v25, {rWS}, {SOB} offen")
    vm.add(None)
mid = list(range(18, 38))
stream(mid[:8])
for q in range(1, 8):
    chunk_write(q)
signal(VSIG, 26, 1, True)
if OPT["fill"] in (2, 3):
    P(f"s_lshl2_add_u32 {T0}, {I_}, {W}\ns_mul_i32 {T0}, {T0}, {TB_STRIDE}\ns_add_u32 {T0}, {T0}, 0x{WS_HA:x}")
    P("v_lshlrev_b32 v25, 7, v0")
    if OPT["fill"] == 2:
        P(f"s_lshl_b32 {T1}, {C_}, 13\ns_add_u32 {T1}, {T1}, {T0}")
        P(f"buffer_load_dword v20, v25, {rWS}, {T1} offen")
        vm.add(None)
    P(f"s_mul_i32 {T1}, {C_}, {54 * 128}\ns_add_u32 {T1}, {T1}, {T0}\ns_add_u32 {T1}, {T1}, {64 * K}\nv_min_u32 v25, {53 * 128}, v25")
    P(f"buffer_load_dword v21, v25, {rWS}, {T1} offen")
    vm.add(None)
stream(mid[8:OPT["e1A"]])
lg.q = []
await_(VPK, 28, 2)
far()
stream(range(18))
stream(mid[OPT["e1A"]:])
PREA = LATE[:OPT["preA"]] if OPT["gd"] == 8 else LATE[21 - min(5, OPT["preA"]):21]
stream(PREA)
SZL, SK0, SK1, SKE = "s4", "s5", "s6", "s7"
NB = [NONCE, "s39", "s42", "s43"]
P("v_and_b32 v23, 15, v0\nv_lshlrev_b32 v27, 4, v0")
P(f"v_lshrrev_b32 v22, 2, v0\nv_mul_u32_u24 v25, {KVP_STR}, v22\nv_and_b32 v26, 3, v0\nv_lshl_add_u32 v25, v26, 4, v25")
P(f"s_mul_i32 {SK0}, {C_}, {16 * KVP_STR}\ns_add_u32 {SK0}, {SK0}, 0x{WS_KVP:x}")
P(f"s_lshl_b32 {SZL}, {W}, 6\ns_add_u32 {SZL}, {SZL}, {SK0}\ns_add_u32 {SZL}, {SZL}, 4096")
P(f"s_add_u32 {SK0}, {SK0}, {SM}\ns_add_u32 {SKE}, {SK0}, {16 * KVP_STR}")
P(f"s_lshl_b32 {SK1}, {I_}, 1\ns_and_b32 {SK1}, {SK1}, 15\ns_mul_i32 {SK1}, {SK1}, {KVP_STR}\ns_add_u32 {SK1}, {SK1}, {SK0}")
P(f"s_add_u32 {T0}, {SM}, 0x{L_KT:x}")
P("v_and_b32 v40, 1, v26\nv_lshlrev_b32 v40, 4, v40\nv_lshrrev_b32 v26, 1, v26\nv_lshl_or_b32 v40, v26, 3, v40")
P(f"v_lshl_or_b32 v40, v22, 5, v40\nv_add_u32 v40, {T0}, v40")
P("v_bfe_u32 v41, v0, 4, 1\nv_lshlrev_b32 v41, 4, v41\nv_lshrrev_b32 v26, 5, v0\nv_lshl_or_b32 v41, v26, 3, v41")
P(f"v_lshl_or_b32 v41, v23, 5, v41\nv_add_u32 v41, {T0}, v41")
P(f"v_and_b32 v42, 31, v0\nv_lshlrev_b32 v42, 5, v42\nv_lshl_or_b32 v42, v26, 4, v42\nv_add_u32 v42, {T0}, v42")
P(f"s_lshr_b32 s39, {NONCE}, 8\ns_lshr_b32 s42, {NONCE}, 16\ns_lshr_b32 s43, {NONCE}, 24")
ZL = f"buffer_load_dwordx4 v[28:31], v25, {rWS}, {SZL} offen sc1"
ZC = "\n".join([f"v_xor_b32 v20, {NB[0]}, v28", f"v_xor_b32 v21, {NB[1]}, v29",
                f"v_bitop3_b32 v20, v20, v30, {NB[2]} bitop3:0xf6", f"v_bitop3_b32 v21, v21, v31, {NB[3]} bitop3:0xf6",
                "v_or_b32 v20, v20, v21", "v_and_b32 v20, 0xff, v20", "v_cmp_ne_u32 vcc, 0, v20"])
P(f"s_setprio {OPT['gprio']}")
P(f"s_mov_b32 {T2}, 32")
P.label("L_kvall")
spin("L_kv", ZL, ZC)
stamp(1, "kv_seen")
signal(VSIG, 26, 3)
P(f"s_mov_b32 {T1}, {SK1}")
GD = OPT["gd"]
GQ = [CHR + 4 * n for n in range(14)] + [184, 188] if GD == 16 else [PQR + 4 * n for n in range(8)]
def gload(n):
    P(f"buffer_load_dwordx4 {v(GQ[n % GD], 4)}, v27, {rWS}, {T1} offen sc1")
    if n < 15:
        P(f"s_add_u32 {T1}, {T1}, {KVP_STR}")
        if n % 2 == 1:
            P(f"s_cmp_eq_u32 {T1}, {SKE}\ns_cselect_b32 {T1}, {SK0}, {T1}")
for n in range(GD if not OPT["hack"] & 8 else 8):
    gload(n)
for n in range(4):
    P(f"v_and_b32 {v(28 + n)}, 0xffffff00, {v(28 + n)}")
for r in (4, 8):
    for n in range(4):
        P(f"v_add_f32_dpp {v(28 + n)}, {v(28 + n)}, {v(28 + n)} row_ror:{r} row_mask:0xf bank_mask:0xf")
for op in ("v_permlane16_swap_b32", "v_permlane32_swap_b32"):
    for n in range(4):
        P(f"v_mov_b32 {v(32 + n)}, {v(28 + n)}")
    for n in range(4):
        P(f"{op} {v(28 + n)}, {v(32 + n)}")
    for n in range(4):
        P(f"v_add_f32 {v(28 + n)}, {v(28 + n)}, {v(32 + n)}")
P("v_cvt_pk_bf16_f32 v28, v28, v29\nv_cvt_pk_bf16_f32 v29, v30, v31")
P("ds_write_b64 v40, v[28:29] offset:512")
for n in range(16 if not OPT["hack"] & 8 else 8):
    P(f"s_waitcnt vmcnt({min(GD - 1, 15 - n) if not OPT['hack'] & 8 else 7 - n})")
    for h in range(4):
        r = v(GQ[n % GD] + h)
        if n == 0:
            P(f"v_xor_b32 {v(36 + h)}, {NB[h]}, {r}\nv_and_b32 {v(32 + h)}, 0xffffff00, {r}")
        else:
            P(f"v_bitop3_b32 {v(36 + h)}, {v(36 + h)}, {r}, {NB[h]} bitop3:0xf6\nv_and_b32 {v(44 + h)}, 0xffffff00, {r}")
    if n + GD < 16:
        gload(n + GD)
    if n:
        for h in range(4):
            P(f"v_add_f32 {v(32 + h)}, {v(32 + h)}, {v(44 + h)}")
P("v_or3_b32 v36, v36, v37, v38\nv_or_b32 v36, v36, v39\nv_and_b32 v36, 0xff, v36\nv_cmp_ne_u32 vcc, 0, v36")
P(f"s_sub_u32 {T2}, {T2}, 1")
P("s_cbranch_scc1 L_kvok")
P("s_cbranch_vccnz L_kvall")
P.label("L_kvok")
stamp(1, "gath")
if DIAG >= 3 and "retry" in str(OPT.get("st1")):
    P(f"s_waitcnt lgkmcnt(0)\ns_sub_u32 s98, 32, {T2}\ns_mul_i32 s98, s98, 100\ns_add_u32 s98, s98, s100")
vm.q = []
page_addr.last = None
P("v_cvt_pk_bf16_f32 v32, v32, v33\nv_cvt_pk_bf16_f32 v33, v34, v35")
P("ds_write_b64 v41, v[32:33]")
lg.q = []
P("ds_read_b128 v[44:47], v42")
stream([p for p in LATE[:OPT["lA"]] if p not in PREA])
P(f"v_add_u32 v20, 0x{L_PQ:x}, {v(VL16)}")
P(f"s_mov_b32 s4, {SOB}")
stamp(1, "staged")
await_(VPK, 22, 10)
stamp(1, "g0")
for tb in range(4):
    P(f"ds_read_b128 {v(PQR + 4 * tb, 4)}, v20 offset:{tb * 4096}")
P("v_mov_b32 v28, v44\nv_mov_b32 v29, v45\nv_mov_b32 v30, v46\nv_mov_b32 v31, v47")
def o_mfma(tb):
    P(f"s_waitcnt lgkmcnt({3 - tb})")
    P(f"v_mfma_f32_32x32x16_bf16 {v((D0, D1)[tb & 1], 16)}, v[28:31], {v(PQR + 4 * tb, 4)}, 0")
o_mfma(0)
o_mfma(1)
for tb in range(4):
    d = (D0, D1)[tb & 1]
    P(f"v_add_f32 {v(d + 8)}, 0x{f2u(1e-6):x}, {v(d + 8)}")
    P(f"v_rcp_f32 {v(d + 8)}, {v(d + 8)}")
    for r in range(8):
        P(f"v_mul_f32 {v(d + r)}, {v(d + r)}, {v(d + 8)}")
    for p in range(4):
        P(f"v_cvt_pk_bf16_f32 {v(PQR + 4 * tb + p)}, {v(d + 2 * p)}, {v(d + 2 * p + 1)}")
    if tb < 2:
        o_mfma(tb + 2)
    row_store(f"buffer_store_dwordx4 {v(PQR + 4 * tb, 4)}, v27, {rWS}, s4 offen", OPT["nt2"])
    vm.add("o")
    if tb < 3:
        P(f"s_add_u32 s4, s4, {TB_STRIDE}")
stamp(1, "o_st")
P(f"s_setprio {OPT['prio']}")
for p in range(18, 38):
    page_write(p)
signal(VSIG, 26, 4, True)
vm.wait("o")
P(f"s_lshl_b32 {T0}, {I_}, 5\ns_lshl_b32 {T1}, {C_}, 2\ns_add_u32 {T0}, {T0}, {T1}\ns_add_u32 {T0}, {T0}, {W}")
P(f"s_lshl_b32 {T0}, {T0}, {2 + FX}\ns_add_u32 {T0}, {T0}, 0x{WS_FLAGS + FL_O * LN:x}")
flag_store(T0, aux=HX)
vm.add(None)
stamp(1, "oflag")
stream([p for p in LATE[OPT["lA"]:OPT["l1"]] if p not in PREA])
vm.wait(("pg", 42))
restA = [p for p in LATE[OPT["l1"]:] if p not in PREA]
align("g5")
P.label("L_l5")
lg.q = []
await_(VPK, 28, 11)
stamp(1, "gx")
nfree = 2 * ((OPT["gx"] - 7) // 4)
first = [p for p in list(range(38, 43)) + list(range(44, 60)) if p - 38 < nfree]
P(f"s_setprio {OPT['wprio']}")
for p in range(38, 43):
    page_write(p, OPT["pace"])
signal(VSIG, 26, 5, True)
for who, rest in (("A", restA), ("B2", restB[2]), ("B1", restB[1])):
    if who == "A":
        P(f"s_cmp_eq_u32 {TYPE}, 0\ns_cbranch_scc0 L_tB")
    elif who == "B2":
        P.label("L_tB")
        P(f"s_cmp_lt_u32 {C_}, 3\ns_cbranch_scc0 L_tB1")
    else:
        P.label("L_tB1")
    page_addr.last = None
    vm.q = [("pg", p) for p in LATE[5:] if p not in rest and not (who == "A" and p in PREA)]
    stream(rest)
    for p in first[5:]:
        vm.wait(("pg", p))
        page_write(p, OPT["pace"])
    vm.drain()
    if who != "B1":
        P("s_branch L_t2")
P.label("L_t2")
lg.q = []
P("s_waitcnt lgkmcnt(0)")
await_(VPK, 28, 12)
for p in range(44, 60):
    if p not in first:
        vm.wait(("pg", p))
        page_write(p, OPT["pace"])
signal(VSIG, 26, 6, True)
P(f"s_setprio {OPT['prio']}")
LOG2E = 1.4426950408889634
XRD, GG, XF, BF, YR = 22, 32, 48, 64, 72
P("v_lshrrev_b32 v26, 3, v0\nv_and_b32 v27, 7, v0\nv_lshlrev_b32 v27, 1, v27\nv_xor_b32 v27, v27, v26\nv_lshlrev_b32 v27, 4, v27\nv_lshl_or_b32 v26, v26, 8, v27")
P(f"s_lshl_b32 {T0}, {W}, 12\ns_add_u32 {T0}, {T0}, 0x{L_XS0:x}")
P(f"v_add_u32 {v(XRD)}, {T0}, v26\nv_xor_b32 {v(XRD + 1)}, 16, {v(XRD)}")
P(f"v_add_u32 {v(XRD + 2)}, 0x10000, {v(XRD)}\nv_add_u32 {v(XRD + 3)}, 0x10000, {v(XRD + 1)}")
P(f"s_add_u32 {T2}, {SO}, 8192")
P("s_waitcnt lgkmcnt(0)")


if OPT["wb"] in (2, 4):
    wback(2)
def unpack(dst, src, n):
    for r in range(n):
        P(f"v_lshlrev_b32 {v(dst + 2 * r)}, 16, {v(src + r)}\nv_and_b32 {v(dst + 2 * r + 1)}, 0xffff0000, {v(src + r)}")


def xread(dst, bases):
    for h in range(2):
        for kh in range(2):
            for j in range(2):
                P(f"ds_read_b128 {v(dst + 16 * kh + 8 * h + 4 * j, 4)}, {v(XRD + j + 2 * ((bases[kh] - L_XS0) >> 16))} offset:{((bases[kh] - L_XS0) & 0xffff) + 2048 * h}")


unpack(XF, XRES, 8)
unpack(BF, BRES, 4)
stamp(1, "rdy5")
P(f"s_setprio {OPT['fprio']}")
P("s_barrier ; dY")
if OPT["wb"] == 3:
    wback(3)
xread(YR, (L_XY, L_XY + 16 * K))
P("s_waitcnt lgkmcnt(0)")
for fmt in ("v_add_f32 {Y}, {Y}, {Z}", "v_add_f32 {Y}, {Y}, {B}", f"v_mul_f32 {{G}}, 0x{f2u(-LOG2E):x}, {{Y}}", "v_exp_f32 {G}, {G}",
            "v_add_f32 {G}, 1.0, {G}", "v_rcp_f32 {G}, {G}", "v_mul_f32 {G}, {G}, {Y}"):
    for r in range(16):
        P(fmt.format(Y=v(YR + r), Z=v(YR + 16 + r), B=v(BF + r % 8), G=v(GG + r)))
stamp(1, "gate")
P("s_barrier ; dS")
stamp(1, "dS")
xread(YR, (L_XS0, L_XS1))
for h in range(2):
    P(f"s_waitcnt lgkmcnt({4 - 4 * h})")
    for p in range(4 * h, 4 * h + 4):
        P(f"v_pk_add_f32 {v(YR + 2 * p, 2)}, {v(YR + 2 * p, 2)}, {v(YR + 16 + 2 * p, 2)}")
    for p in range(4 * h, 4 * h + 4):
        P(f"v_pk_fma_f32 {v(YR + 2 * p, 2)}, {v(YR + 2 * p, 2)}, {v(GG + 2 * p, 2)}, {v(XF + 2 * p, 2)}")
    for p in range(4 * h, 4 * h + 4):
        P(f"v_cvt_pk_bf16_f32 {v(BF + p)}, {v(YR + 2 * p)}, {v(YR + 2 * p + 1)}")
    P(f"buffer_store_dwordx4 {v(BF + 4 * h, 4)}, {v(VO)}, {rP2}, {(SO, T2)[h]} offen {OPT['outaux']}")
stamp(1, "outst")
dump(1)
P.label("L_end")
P("s_endpgm")
flush_cold()

align("ac")
P.label("L_compute")
DIAG = OPT["diag"]
assert OPT["gx"] <= 36
XR, ACC, WR = 128, 64, 32
VH, GR, XE, K1, K2, SD, RS, RL = 1, 2, 4, 6, 8, 10, 16, 18
XA, WA = 12, 20
HB0, SH, EPS2, SG, SFL1, SFL2, SCS2 = "s72", "s73", "s[74:75]", "s76", "s77", "s78", "s79"
lg = Q("lgkmcnt", 15)

diag_init()
stamp(0, "start")
P(f"s_setprio {OPT['cprio']}")
P(f"s_lshl_b32 {T0}, {I_}, 4\ns_add_u32 {T0}, {T0}, {J_}\ns_lshl_b32 {T0}, {T0}, 2\ns_add_u32 {T0}, {T0}, {W}\ns_lshl_b32 {T0}, {T0}, 1")
P(f"s_lshl_b32 {T1}, {T0}, 10")
P("v_lshrrev_b32 v26, 5, v0\nv_and_b32 v27, 31, v0\nv_lshlrev_b32 v28, 4, v27\nv_lshl_or_b32 v28, v26, 10, v28")
P("s_waitcnt lgkmcnt(0)")
srd(rX, P_X, 2 * K * K)
P(f"s_load_dword {NONCE}, s[{P_WS}:{P_WS+1}], 0")
if not OPT["nostat"]:
    P(f"buffer_load_dwordx4 v[32:35], v28, {rX}, {T1} offen {'nt' if OPT['snt'] else ''}")
    P(f"buffer_load_dwordx4 v[36:39], v28, {rX}, {T1} offen offset:512 {'nt' if OPT['snt'] else ''}")
srd(rWS, P_WS, WS_SIZE)
tile2()
P(f"v_lshlrev_b32 {v(VH)}, 4, v0")
waddr(WA, 29, 30, 3)
P(f"v_xor_b32 {v(WA + 1)}, 64, {v(WA)}")
for k, off in ((2, 64 * K), (4, 88 * K)):
    P(f"v_add_u32 {v(WA + k)}, 0x{off:x}, {v(WA)}\nv_add_u32 {v(WA + k + 1)}, 0x{off:x}, {v(WA + 1)}")
P("v_bfe_u32 v29, v0, 1, 3\nv_xor_b32 v29, v29, v26\nv_lshlrev_b32 v29, 4, v29\nv_lshl_or_b32 v29, v27, 7, v29")
P(f"s_lshl_b32 {T2}, {W}, 12")
P(f"v_add_u32 {v(XA)}, {T2}, v29")
for t in range(1, 4):
    P(f"v_xor_b32 {v(XA + t)}, {32 * t}, {v(XA)}")
for t in range(4):
    P(f"v_add_u32 {v(XA + 4 + t)}, 0x10000, {v(XA + t)}")
P(f"s_lshl_b32 {SG}, {I_}, 2\ns_add_u32 {SG}, {SG}, {W}")
if OPT["touch"]:
    srd(rW2, P_W2, 1376 * 1024)
    srd(rWO, P_WO, 512 * 1024)
    P(f"s_mul_i32 {T2}, s2, 43\ns_mul_i32 {T3}, {W}, 11\ns_add_u32 {T2}, {T2}, {T3}")
    P(f"v_add_u32 v6, {T2}, v0\nv_lshlrev_b32 v6, 7, v6\nv_mov_b32 v8, 0x7ff00000\nv_cmp_gt_u32 vcc, 11, v0")
    P(f"s_lshl_b32 {T2}, s2, 2\ns_add_u32 {T2}, {T2}, {W}\ns_lshl_b32 {T2}, {T2}, 2")
    P(f"v_cndmask_b32 v6, v8, v6, vcc\nv_add_u32 v7, {T2}, v0\nv_lshlrev_b32 v7, 7, v7\nv_cmp_gt_u32 vcc, 4, v0")
    P("v_cndmask_b32 v7, v8, v7, vcc")
    if OPT["touch"] == 9:
        P(f"buffer_load_dword v8, v6, {rW2}, 0 offen\nbuffer_load_dword v9, v7, {rWO}, 0 offen")
P(f"s_lshl_b32 {SG}, {SG}, 8\ns_add_u32 {SG}, {SG}, 0x{WS_STATS:x}")
P(f"s_lshl_b32 {SCS2}, {J_}, 1\ns_lshr_b32 {T2}, {I_}, 3\ns_add_u32 {SCS2}, {SCS2}, {T2}\ns_lshl_b32 {SCS2}, {SCS2}, 2")
P(f"s_add_u32 {SCS2}, {SCS2}, {W}\ns_lshl_b32 {SCS2}, {SCS2}, 3\ns_and_b32 {T2}, {I_}, 7\ns_add_u32 {SCS2}, {SCS2}, {T2}")
P(f"s_lshl_b32 {SCS2}, {SCS2}, 9\ns_add_u32 {SCS2}, {SCS2}, 0x{WS_CS:x}")
if OPT["pg"]:
    srd(rW2, P_W2, 1376 * 1024)
    srd(rWO, P_WO, 512 * 1024)
    srd(rA, P_OUT, 2 * K * K)
    P(f"v_lshlrev_b32 v46, 16, v0\ns_lshl_b32 {T3}, {W}, 22\ns_cmp_eq_u32 {W}, 3\ns_cbranch_scc1 L_pg3")
    P(f"buffer_load_dword v47, v46, {rWS}, {T3} offen sc1\ns_branch L_pgx\nL_pg3:")
    P(f"buffer_load_dword v47, v46, {rW2}, 0 offen\nbuffer_load_dword v47, v46, {rWO}, 0 offen\nbuffer_load_dword v47, v46, {rA}, 0 offen\nL_pgx:")
SFHB, SFO, KH, SFHA, PRIMED, SK12, SXW, SBASE = "s51", "s52", "s53", "s54", "s55", "s72", "s73", "s77"
P(f"s_lshr_b32 {KH}, {W}, 1\ns_lshl_b32 {SK12}, {KH}, 12\ns_mov_b32 {PRIMED}, 0")
P(f"s_lshl_b32 {T3}, {TB2}, 1\ns_and_b32 {T2}, {W}, 1\ns_add_u32 {T3}, {T3}, {T2}")
P(f"s_mul_i32 {SBASE}, {T3}, {TB_STRIDE}\ns_add_u32 {SBASE}, {SBASE}, 0x{WS_HA:x}")
if OPT["ahot"]:
    P(f"s_mov_b32 {SBASE}, 0x{WS_DIAG + 0x40000:x}")
P(f"s_lshl_b32 {SFHB}, {T3}, {7 + FX}\ns_add_u32 {SFHA}, {SFHB}, 0x{WS_FLAGS + FL_HA * LN:x}\ns_add_u32 s44, {SFHB}, 0x{WS_FLAGS + FL_H1 * LN:x}\ns_add_u32 {SFHB}, {SFHB}, 0x{WS_FLAGS + FL_HB * LN:x}")
P(f"s_lshr_b32 {SFO}, {TB2}, 1\ns_lshl_b32 {SFO}, {SFO}, {7 + FX}\ns_add_u32 {SFO}, {SFO}, 0x{WS_FLAGS + FL_O * LN:x}")
P(f"s_lshl_b32 {SXW}, {T2}, 13\ns_lshl_b32 {T3}, {KH}, 14\ns_add_u32 {SXW}, {SXW}, {T3}\ns_add_u32 {SXW}, {SXW}, 0x{L_XY:x}")
SXS = "s15"
P(f"s_cmp_eq_u32 {KH}, 0")
sel2(SXS, (L_XS0 - L_XY) & 0xffffffff, L_XS1 - L_XY - 16 * K)
if OPT["tlb"] == 2:
    P(f"buffer_load_dword v47, v0, {rWS}, {SBASE} offen sc1")
P(f"s_mov_b32 s14, {RHOA}")
for g in list(range(8)) + list(range(11, 15)):
    r = f"s{36 + g}"
    P(f"s_add_u32 {r}, {RHO2 if g < 8 else RHOS}, {g % 11}\ns_and_b32 {r}, {r}, {7 if g < 8 else 3}\ns_lshl_b32 {r}, {r}, 13\ns_add_u32 {r}, {r}, {SBASE}")
    if g >= 11:
        P(f"s_add_u32 {r}, {r}, {86 * K}")
P(f"s_add_u32 s14, s14, {KH}")
for n in range(16, 22):
    r = f"s{8 + n - 16}"
    P(f"s_add_u32 {r}, s14, {2 * (n - 16)}\ns_cmp_ge_u32 {r}, 11\ns_cselect_b32 {T3}, 11, 0\ns_sub_u32 {r}, {r}, {T3}")
    P(f"s_sub_u32 {r}, {r}, {KH}\ns_add_u32 {r}, {r}, {32 - 2 * (n % 2)}\ns_lshl_b32 {r}, {r}, 11\ns_add_u32 {r}, {r}, {SBASE}")
P(f"s_mov_b32 s74, 0x{f2u(1e-6):x}\ns_mov_b32 s75, 0x{f2u(1e-6):x}")
P(f"s_mov_b32 {T2}, 0x3f803f80")
P("v_mov_b32 v40, 0\nv_mov_b32 v41, 0\nv_mov_b32 v42, 0\nv_mov_b32 v43, 0")
stamp(0, "pre")
P("s_waitcnt vmcnt(2)" if OPT["touch"] == 9 else "s_waitcnt vmcnt(0)")
stamp(0, "xin")
for n in range(8):
    P(f"v_dot2_f32_bf16 {v(40 + (n & 1))}, {v(32 + n)}, {T2}, {v(40 + (n & 1))}")
    P(f"v_dot2_f32_bf16 {v(42 + (n & 1))}, {v(32 + n)}, {v(32 + n)}, {v(42 + (n & 1))}")
P("s_nop 2")
P("v_add_f32 v40, v40, v41\nv_add_f32 v42, v42, v43")
for r in (8, 4, 2, 1):
    P(f"v_add_f32_dpp v40, v40, v40 row_ror:{r} row_mask:0xf bank_mask:0xf")
    P(f"v_add_f32_dpp v42, v42, v42 row_ror:{r} row_mask:0xf bank_mask:0xf")
P("v_mov_b32 v41, v40\nv_mov_b32 v43, v42")
P("v_permlane16_swap_b32 v40, v41\nv_permlane16_swap_b32 v42, v43")
P("v_add_f32 v40, v40, v41\nv_add_f32 v42, v42, v43")
P(f"v_mul_f32 v40, 0x{f2u(1 / 512):x}, v40\nv_mul_f32 v42, 0x{f2u(1 / 512):x}, v42")
P("v_fma_f32 v42, -v40, v40, v42\nv_max_f32 v42, 0, v42")
P(f"v_cvt_pk_bf16_f32 v42, v42, v42\nv_and_b32 v42, 0xffff0000, v42\nv_add_f32 v42, 0x{f2u(1e-5):x}, v42")
P("v_cvt_pk_bf16_f32 v42, v42, v42\nv_and_b32 v42, 0xffff0000, v42\nv_sqrt_f32 v42, v42")
P("v_cvt_pk_bf16_f32 v44, v40, v42")
P("v_lshlrev_b32 v28, 3, v26")
P(f"s_lshl_b32 {T0}, {T0}, 3\ns_add_u32 {T0}, {T0}, 0x{WS_STATS:x}")
P("s_waitcnt lgkmcnt(0)")
P(f"s_add_u32 {NONCE}, {NONCE}, 1")
XTAG = "s78"
P(f"s_getreg_b32 {XTAG}, hwreg(HW_REG_XCC_ID, 0, 4)\ns_lshl_b32 {XTAG}, {XTAG}, 28\ns_xor_b32 {XTAG}, {XTAG}, {NONCE}")
P(f"v_mov_b32 v45, {XTAG}\nv_mov_b32 v5, {NONCE}")
P(f"s_mov_b32 s56, {T0}\nv_mov_b32 v2, v44\nv_mov_b32 v3, v45\nv_mov_b32 v25, v28")
P("v_lshlrev_b32 v26, 3, v27\nv_lshlrev_b32 v27, 3, v0")
P(f"s_lshl_b32 {T0}, {W}, 8\ns_add_u32 {T0}, {T0}, 0x{L_CSX:x}")
P(f"v_lshl_add_u32 v28, v0, 2, {T0}")
P(f"v_add_u32 v29, 0x{L_EX1:x}, v27")
GLOAD = f"buffer_load_dwordx2 {v(GR, 2)}, v26, {rWS}, {SG} offen sc1"
CSIG, CPK, CPC = 30, 31, 3
P(f"s_lshl_b32 {T0}, {W}, 2\ns_add_u32 {T0}, {T0}, 0x{L_PRG:x}\nv_mov_b32 {v(CSIG)}, {T0}")
P(f"v_and_b32 {v(CPK)}, 3, v0\nv_lshlrev_b32 {v(CPK)}, 2, {v(CPK)}\nv_add_u32 {v(CPK)}, 0x{L_RDY:x}, {v(CPK)}")
stamp(0, "stats")


def p1_x(st, t):
    if OPT["nocomp"]:
        return
    sl = st % 3
    P(f"ds_read_b128 {v(XR + 16 * st + 4 * t, 4)}, {v(XA + t + (4 if sl == 2 else 0))} offset:{(sl % 2) * 32 * K}")
    lg.add(("x", st, t))


def p1_w(st, t, b):
    if OPT["nocomp"]:
        return
    sl = st % 3
    a = WA + (b & 1) + (2 if sl == 2 else 0)
    off = (sl % 2) * 32 * K + 16 * K + (b >> 1) * 8 * K + t * 2048
    f = WR + ((t & 1) * 4 + b) * 4
    tr(f, a, off, None)
    tr(f + 2, a, off + 512, ("w", st, t, b))


def p1_m(st, t, b):
    if OPT["nocomp"]:
        return
    lg.wait(("w", st, t, b))
    assert ("x", st, t) not in lg.q
    f = WR + ((t & 1) * 4 + b) * 4
    c = "0" if (st == 0 and t == 0) else v(ACC + 16 * b, 16)
    P(f"v_mfma_f32_32x32x16_bf16 {v(ACC + 16 * b, 16)}, {v(f, 4)}, {v(XR + 16 * st + 4 * t, 4)}, {c}")
    r = OPT.get(f"r{st}", 0) or OPT["rall"]
    if r:
        P(f"s_nop {r - 1}")


P("s_barrier ; b0")
stamp(0, "b0")
if OPT["p2only"]:
    P("s_branch L_c2")
align("a1")
p1_x(0, 0)
for b in range(4):
    p1_w(0, 0, b)
P("s_mov_b32 exec_lo, 1\ns_mov_b32 exec_hi, 1")
P(f"buffer_store_dwordx2 v[2:3], v25, {rWS}, s56 offen sc1")
P("s_mov_b64 exec, -1")
P(f"v_add_u32 {v(WA + 5)}, 0x{88 * K:x}, {v(WA + 1)}")
LOG2E = 1.4426950408889634
C1 = -2 * LOG2E * math.sqrt(2 / math.pi)
C2 = C1 * 0.044715
GCHK = f"v_xor_b32 v27, {XTAG}, {v(GR + 1)}\nv_lshlrev_b32 v28, 4, v27\nv_cmp_ne_u32 vcc, 0, v28"
EXR = (22, 26)
side1 = [f"v_cmp_ne_u32 vcc, 0, v27", f"s_mov_b32 {T0}, 0x01000100", f"v_perm_b32 {v(XE)}, {v(GR)}, {v(GR)}, {T0}",
         "s_or_b32 s57, vcc_lo, vcc_hi", f"v_xor_b32 {v(XE)}, 0x80008000, {v(XE)}", f"v_lshrrev_b32 {v(XE + 1)}, 16, {v(GR)}",
         f"v_and_b32 {v(SD)}, 0xffff0000, {v(GR)}", f"v_rcp_f32 {v(RS)}, {v(SD)}", f"v_mov_b32 {v(SD + 1)}, {v(SD)}",
         f"v_mul_f32 {v(K1)}, 0x{f2u(C1):x}, {v(RS)}", f"v_mul_f32 {v(K2)}, {v(RS)}, {v(RS)}", f"v_mul_f32 {v(RL)}, 0x{f2u(LOG2E):x}, {v(RS)}",
         f"v_mul_f32 {v(K2)}, {v(K2)}, {v(RS)}", f"v_mov_b32 {v(RS + 1)}, {v(RS)}", f"v_mul_f32 {v(K2)}, 0x{f2u(C2):x}, {v(K2)}",
         f"v_mov_b32 {v(K1 + 1)}, {v(K1)}", f"v_mov_b32 {v(RL + 1)}, {v(RL)}", f"v_mov_b32 {v(K2 + 1)}, {v(K2)}"]
for st in range(8):
    for t in range(3):
        for b in range(4):
            p1_m(st, t, b)
            if st == 7 and t == OPT["gt"] and b == 0:
                P("s_waitcnt vmcnt(0)")
                P(GCHK)
                retry("L_gr", GLOAD, GCHK)
            elif st == 7 and t >= OPT["gt"]:
                for _ in range(3 if OPT["gt"] == 1 else 6):
                    if side1:
                        P(side1.pop(0))
            if b == 0:
                p1_x(st, t + 1)
            p1_w(st, t + 1, b)
    assert st < 7 or not side1
    p1_m(st, 3, 0)
    if st == 2 + OPT["chl"] + OPT["csd"]:
        P("ds_read_b32 v4, v28")
        lg.add(None)
    p1_m(st, 3, 1)
    if st == 5 + OPT["gl"]:
        P(GLOAD)
    lg.drain()
    if st == 7:
        stamp(0, "c8")
    P(f"s_barrier ; b{st + 1}")
    if st == 6:
        stamp(0, "b7")
    if st < 7:
        p1_x(st + 1, 0)
        p1_w(st + 1, 0, 0)
        p1_w(st + 1, 0, 1)
        p1_m(st, 3, 2)
        if st == 2 + OPT["chl"] + OPT["csd"] and not OPT["nst"] & 2:
            P(f"buffer_store_dwordx2 v[4:5], v27, {rWS}, {SCS2} offen {OPT['saux'] or ''}")
        if st == OPT["touch"] - 1:
            P(f"buffer_load_dword v8, v6, {rW2}, 0 offen\nbuffer_load_dword v9, v7, {rWO}, 0 offen")
        p1_w(st + 1, 0, 2)
        p1_w(st + 1, 0, 3)
        p1_m(st, 3, 3)
    else:
        P(f"v_mov_b32 v27, s57\ns_mov_b64 exec, 1\nds_write_b32 {v(CSIG)}, v27 offset:{L_FAST - L_PRG}\ns_mov_b64 exec, -1")
        lg.add(None)
        for b in range(4):
            P(f"ds_read_b64 {v(WR + 2 * b, 2)}, v29 offset:{512 * b}")
            lg.add(("ex", b))
        p1_m(st, 3, 2)
        p1_m(st, 3, 3)
        for b in range(4):
            lg.wait(("ex", b))
            P(f"v_mfma_f32_32x32x8bf16_1k {v(ACC + 16 * b, 16)}, {v(WR + 2 * b, 2)}, {v(XE, 2)}, {v(ACC + 16 * b, 16)}")
stamp(0, "b8")
if OPT["p1only"]:
    dump(0)
    P("s_endpgm")
    DIAG = 0
stamp(0, "ex1")

TT, UU = 32, 48


SKIP = [False]
def pairs(fmt, a):
    if SKIP[0]:
        return
    for p in range(8):
        P(fmt.format(T=v(TT + 2 * p, 2), A=v(a + 2 * p, 2)))


def singles(fmt):
    if SKIP[0]:
        return
    for r in range(16):
        P(fmt.format(T=v(TT + r)))


def cvt(dst, src=TT):
    for p in range(8):
        P(f"v_cvt_pk_bf16_f32 {v(dst + p)}, {v(src + 2 * p)}, {v(src + 2 * p + 1)}")


def epi_gelu(b, base, k, rdy=None, prev=None, last=True):
    a = ACC + 16 * b
    if rdy:
        peek(CPK, 28)
    pairs("v_pk_mul_f32 {T}, {A}, {A}", a)
    pairs("v_pk_fma_f32 {T}, {T}, %s, %s" % (v(K2, 2), v(K1, 2)), a)
    pairs("v_pk_mul_f32 {T}, {T}, {A}", a)
    if prev:
        signal(CSIG, 27, prev, True)
    singles("v_exp_f32 {T}, {T}")
    pairs("v_pk_fma_f32 {T}, {T}, %s, %s" % (v(SD, 2), v(SD, 2)), a)
    singles("v_rcp_f32 {T}, {T}")
    pairs("v_pk_mul_f32 {T}, {T}, {A}", a)
    cvt(a)
    if rdy:
        await_(CPK, 28, rdy, peeked=True)
    for h in range(2 if not OPT["nods"] else 0):
        P(f"ds_write_b128 v26, {v(a + 4 * h, 4)} offset:{base - L_HS + (2 * b + h) * 4096}")
        lg.add(None)
    if last:
        signal(CSIG, 27, k, True)


def epi_phi(b, dst):
    a = ACC + 16 * b
    pairs("v_pk_mul_f32 {T}, {A}, %s" % v(RL, 2), a)
    singles("v_exp_f32 {T}, {T}")
    pairs("v_pk_fma_f32 {A}, {A}, %s, 1.0 op_sel_hi:[1,1,0]" % v(RS, 2), a)
    for r in range(16):
        P(f"v_med3_f32 {v(TT + r)}, {v(TT + r)}, {v(a + r)}, 1.0")
    pairs("v_pk_add_f32 {T}, {T}, %s" % EPS2, a)
    cvt(dst)


def epi_lin(b, dst):
    a = ACC + 16 * b
    pairs("v_pk_mul_f32 {T}, {A}, %s" % v(RS, 2), a)
    cvt(dst)


AY, AS, AR = 64, 192, 128
RG = OPT["ring"]
NST = 30
WB, VA, FD, VF, XW, CPC2, TA, TB_, TC, XW2 = 96, 102, 104, 106, 108, 112, 113, 114, 115, 116
FHB = f"buffer_load_dword {v(FD)}, {v(VF)}, {rWS}, {SFHB} offen sc1"
FHA = f"buffer_load_dword {v(FD)}, {v(VF)}, {rWS}, {SFHA} offen sc1"
FH1 = f"buffer_load_dword {v(FD)}, {v(VF)}, {rWS}, s44 offen sc1"
FO = f"buffer_load_dword {v(FD + 1)}, {v(VF + 1)}, {rWS}, {SFO} offen sc1"
HBC = f"v_cmp_ne_u32 vcc, {NONCE}, {v(FD)}"
vm = Q("vmcnt", 63)


def aload(n, ks):
    if n >= NST or (OPT["noa"] and n >= RG):
        return
    P(f"buffer_load_dwordx4 {v(AR + 8 * (n % RG) + 4 * ks, 4)}, {v(VA + (n % 2 if n >= 16 else n >> 3))}, {rWS}, s{36 + (n & 7) if n < 16 else (8 + n - 16 if n < 22 else 36 + (n >> 1))} offen offset:{1024 * ks} {OPT['aaux'] or ''}")
    vm.add(("a", n, ks))


PRM = OPT["prime"]
def prime():
    for n in range(PRM):
        aload(n, 0)
        aload(n, 1)


nchk = [0]
def checkpoint():
    if not OPT["early"]:
        return
    nchk[0] += 1
    l = f"L_ck{nchk[0]}"
    P(f"s_getreg_b32 {T3}, hwreg(HW_REG_IB_STS, 0, 4)\ns_or_b32 {T3}, {T3}, {PRIMED}\ns_cbranch_scc1 {l}_x")
    P(f"s_waitcnt vmcnt(0)\n{HBC}\ns_cbranch_vccnz {l}_r")
    prime()
    P(f"s_mov_b32 {PRIMED}, 1")
    P.label(l + "_x")
    cold.append(f"{l}_r:\n{FHB}\ns_branch {l}_x")


def setup2():
    global P
    keep, P = P, Prog()
    P(f"v_and_b32 {v(VF + 1)}, 31, v0\nv_lshlrev_b32 {v(VF + 1)}, {2 + FX}, {v(VF + 1)}\nv_and_b32 {v(VF)}, {28 << FX}, {v(VF + 1)}")
    waddr(WB, TA, TB_, 2)
    P(f"v_add_u32 {v(WB)}, {SK12}, {v(WB)}\nv_xor_b32 {v(WB + 1)}, 64, {v(WB)}")
    for k in (1, 2):
        P(f"v_add_u32 {v(WB + 2 * k)}, 0x{64 * K * k:x}, {v(WB)}\nv_add_u32 {v(WB + 2 * k + 1)}, 0x{64 * K * k:x}, {v(WB + 1)}")
    P(f"v_lshrrev_b32 {v(TA)}, 1, {SK12}\nv_add_u32 {v(VA)}, {v(TA)}, {v(VH)}\nv_add_u32 {v(VA + 1)}, 0x1000, {v(VA)}")
    P(f"v_lshrrev_b32 {v(TA)}, 5, v0\nv_and_b32 {v(TB_)}, 7, v0\nv_xor_b32 {v(TA)}, {v(TA)}, {v(TB_)}\nv_lshlrev_b32 {v(TA)}, 4, {v(TA)}")
    P(f"v_and_b32 {v(TB_)}, 31, v0\nv_lshl_or_b32 {v(TA)}, {v(TB_)}, 8, {v(TA)}\nv_add_u32 {v(XW)}, {SXW}, {v(TA)}")
    for q in range(1, 4):
        P(f"v_xor_b32 {v(XW + q)}, {32 * q}, {v(XW)}")
    P(f"v_add_u32 {v(CPC2)}, 16, {v(CPK)}")
    for q in range(4):
        P(f"v_add_u32 {v(XW2 + q)}, {SXS}, {v(XW + q)}")
    lines, P = P.lines, keep
    return lines


def pass2(nb):
    side = setup2()
    n = 32 * nb
    def rd(m):
        if m >= n:
            return
        step, b = divmod(m, nb)
        off = CH(step >> 2) - 88 * K + (step & 3) * 2048
        f = WR + (m % 8) * 4
        tr(f, WA + 4 + b, off, None)
        tr(f + 2, WA + 4 + b, off + 512, ("p2", m))
    for m in range(7):
        rd(m)
    for m in range(n):
        step, b = divmod(m, nb)
        lg.wait(("p2", m))
        c = "0" if step == 0 else v(ACC + 16 * b, 16)
        P(f"v_mfma_f32_32x32x16_bf16 {v(ACC + 16 * b, 16)}, {v(WR + (m % 8) * 4, 4)}, {v(XR + 4 * step, 4)}, {c}")
        rd(m + 7)
        for _ in range(2 if nb == 1 else 1):
            if side and m >= 2 and not OPT["noside"]:
                P(side.pop(0))
        if m == max(6, n - OPT["smp"]) and not OPT["nosamp"]:
            P(FHB)
        if m == 5 and OPT["tlb"] == 1:
            P(f"buffer_load_dword {v(TC)}, {v(VF)}, {rWS}, {SBASE} offen sc1")
        if m == n - 6:
            if OPT["fill"] == 4:
                P("s_waitcnt vmcnt(0)" if OPT["nosamp"] else "s_waitcnt vmcnt(1)")
            for bb in range(nb):
                lg.room()
                P(f"ds_read_b64 {v(12 + 2 * bb, 2)}, v29 offset:{L_EX2 - L_EX1 + 512 * bb}")
                lg.add(("ex2", bb))
    while side:
        P(side.pop(0))
    checkpoint()
    lg.drain()
    signal(CSIG, 27, 8)
    for b in range(nb):
        P(f"v_mfma_f32_32x32x8bf16_1k {v(ACC + 16 * b, 16)}, {v(12 + 2 * b, 2)}, {v(XE, 2)}, {v(ACC + 16 * b, 16)}")


P(f"s_cmp_eq_u32 {TYPE}, 0")
P("s_cbranch_scc0 L_cB")
align("aq")
P(f"v_and_b32 v26, 31, v0\nv_lshrrev_b32 v27, 5, v0\ns_lshl_b32 {T0}, {W}, 5")
P(f"v_add_u32 v26, {T0}, v26\nv_mul_u32_u24 v26, {TROW}, v26\nv_lshl_add_u32 v26, v27, 3, v26\nv_add_u32 v26, 0x{TBUF:x}, v26")
for b in range(4):
    u = UU + 8 * (b & 1)
    SKIP[0] = bool(OPT["hack"] & 16) and b == 1
    (epi_phi if b < 2 else epi_lin)(b, u)
    SKIP[0] = False
    for q in range(4):
        P(f"ds_write_b64 v26, {v(u + 2 * q, 2)} offset:{64 * b + 16 * q}")
    if OPT["fill"] == 4 and b == OPT["fo"]:
        P(f"s_lshl2_add_u32 {T1}, {I_}, {W}\ns_mul_i32 {T1}, {T1}, {TB_STRIDE}\ns_lshl_b32 {T2}, {C_}, 12\ns_add_u32 {T1}, {T1}, {T2}\ns_add_u32 {T1}, {T1}, 0x{WS_HA + 86 * K:x}")
        P(f"v_lshlrev_b32 v16, 7, v0\nv_and_b32 v16, 0xfff, v16\nbuffer_load_dword v18, v16, {rWS}, {T1} offen")
    if "st0" in OPT:
        stamp(0, f"g{b}")
P(f"v_lshrrev_b32 v26, 2, v0\nv_mul_u32_u24 v26, {TROW}, v26\nv_and_b32 v27, 3, v0\nv_lshl_add_u32 v26, v27, 3, v26")
P(f"s_add_u32 {T0}, {T0}, 0x{TBUF:x}")
P(f"v_add_u32 v26, {T0}, v26")
for r in range(4):
    P(f"v_mov_b32 {v(104 + r)}, 0x3f803f80")
P(f"s_lshl_b32 {T0}, {C_}, 4\ns_add_u32 {T0}, {T0}, {I_}\ns_mul_i32 {T0}, {T0}, {KVP_STR}\ns_add_u32 {T0}, {T0}, 0x{WS_KVP:x}")
P(f"s_lshl_b32 {T1}, {W}, 10\ns_add_u32 {T1}, {T1}, {T0}")
P(f"s_lshl_b32 {T2}, {W}, 6\ns_add_u32 {T2}, {T2}, {T0}\ns_add_u32 {T2}, {T2}, 4096")
signal(CSIG, 27, 1, True)
P(f"v_add_u32 {v(CPC)}, 16, {v(CPK)}")
lg.q = []
await_(CPC, 27, 1)
stamp(0, "e1")
def kvm(mm):
    lg.wait(("kv", mm, 1))
    P(f"v_mfma_f32_16x16x32_bf16 v[96:99], {v(ACC + 8 * mm, 4)}, {v(ACC + 8 * mm + 4, 4)}, {'0' if mm == 0 else 'v[96:99]'}")
    P(f"v_mfma_f32_16x16x32_bf16 v[100:103], {v(ACC + 8 * mm, 4)}, v[104:107], {'0' if mm == 0 else 'v[100:103]'}")
for m in range(4):
    for o in range(2):
        f = ACC + 8 * m + 4 * o
        tr(f, 26, m * 32 * TROW + 128 * o, None)
        tr(f + 2, 26, (m * 32 + 16) * TROW + 128 * o, ("kv", m, o))
    if m >= 2:
        kvm(m - 2)
kvm(2)
kvm(3)
P(f"v_mov_b32 v104, {NONCE}")
for h in range(4):
    P(f"s_mov_b32 {T0}, 0x0706050{h}")
    P(f"v_perm_b32 {v(96 + h)}, {v(96 + h)}, v104, {T0}\nv_perm_b32 {v(100 + h)}, {v(100 + h)}, v104, {T0}")
P(f"buffer_store_dwordx4 v[96:99], {v(VH)}, {rWS}, {T1} offen sc1")
P("s_mov_b32 exec_lo, 0x00010001\ns_mov_b32 exec_hi, 0x00010001")
P(f"buffer_store_dwordx4 v[100:103], v0, {rWS}, {T2} offen sc1")
P("s_mov_b64 exec, -1")
signal(CSIG, 27, 2)
stamp(0, "kv")
await_(CPK, 27, 1)
stamp(0, "b10")
P("s_branch L_p2")
align("aB")
P.label("L_cB")
lg.q = []
P(f"s_lshl_b32 {T0}, {W}, 10\ns_add_u32 {T0}, {T0}, 0x{L_HS:x}")
P(f"v_add_u32 v26, {T0}, {v(VH)}")
if OPT["fill"] == 4:
    hblock2(T1)
    P(f"s_lshl2_add_u32 {T0}, {I_}, {W}\ns_mul_i32 {T0}, {T0}, {TB_STRIDE}\ns_add_u32 {T0}, {T0}, 0x{WS_HA:x}")
    P(f"s_lshl_b32 {T1}, {T1}, 11\ns_add_u32 {T1}, {T1}, {T0}\ns_lshl_b32 {T2}, {C_}, 13\ns_add_u32 {T0}, {T0}, {T2}")
    P(f"s_cmp_lt_u32 {C_}, 3")
    sel2(T2, 0xfff, 0x7ff)
    P(f"v_lshlrev_b32 v16, 7, v0\nv_and_b32 v17, {T2}, v16")
for b in range(4):
    SKIP[0] = bool(OPT["hack"] & 4) and b == 3
    epi_gelu(b, L_HS, b + 1, prev=b, last=(b == 3))
    SKIP[0] = False
    if OPT["fill"] == 4 and b == OPT["f1"]:
        P(f"buffer_load_dword v18, v16, {rWS}, {T0} offen")
    if OPT["fill"] == 4 and b == OPT["f2"]:
        P(f"buffer_load_dword v19, v17, {rWS}, {T1} offen")
    if "st0" in OPT:
        stamp(0, f"g{b}")
stamp(0, "e1")
await_(CPK, 28, 1)
stamp(0, "b10")
P(f"s_cmp_lt_u32 {C_}, 3")
P("s_cbranch_scc1 L_p2")
lg.q = [None] * 3
align("aC")
pass2(1)
stamp(0, "p2")
align("aE")
epi_gelu(0, L_PQ, 10, 2)
stamp(0, "e2")
P("s_branch L_c2")
align("ap")
P.label("L_p2")
lg.q = [None] * 3
pass2(2)
stamp(0, "p2")
P(f"s_cmp_eq_u32 {TYPE}, 0")
P("s_cbranch_scc0 L_cB2")
align("aQ")
P(f"s_lshl_b32 {T0}, {W}, 12\ns_add_u32 {T0}, {T0}, 0x{L_PQ:x}")
P(f"v_add_u32 v26, {T0}, {v(VH)}")
lg.q = [None]
peek(CPC2, 28)
for b in range(2):
    SKIP[0] = bool(OPT["hack"] & 2) and b == 0
    epi_phi(b, UU + 8 * b)
    SKIP[0] = False
    if b == 0:
        await_(CPC2, 28, 2, peeked=True)
    for h in range(2):
        P(f"ds_write_b128 v26, {v(UU + 8 * b + 4 * h, 4)} offset:{(2 * b + h) * 1024}")
    if b == 0:
        checkpoint()
signal(CSIG, 27, 10, True)
stamp(0, "e2")
P("s_branch L_c2")
align("ab")
P.label("L_cB2")
lg.q = [None]
SKIP[0] = bool(OPT["hack"] & 1)
epi_gelu(0, L_PQ, 9, 2, last=False)
SKIP[0] = False
checkpoint()
epi_gelu(1, L_PQ, 10, prev=9)
stamp(0, "e2")
P.label("L_c2")
stamp(0, "c2")
stamp(0, "setup")
if OPT["quiet"]:
    dump(0)
    P("s_endpgm")
if OPT["nosamp"]:
    P(FHB)
P(f"s_cmp_lg_u32 {PRIMED}, 0\ns_cbranch_scc1 L_primed")
if not OPT["p2only"]:
    P(f"s_waitcnt vmcnt(0)\n{HBC}")
    retry("L_hb", FHB, HBC)
stamp(0, "hb_seen")
prime()
P.label("L_primed")
align("a2")
vm.q = [("a", n, ks) for n in range(PRM) for ks in range(2)]
gate = {8: OPT["cH1"], 16: OPT["cHA"], 22: OPT["cO"]}
nxt = [PRM, 0]
def aissue(n, k4):
    while nxt[0] < NST:
        nn, ks = nxt
        if nn in gate and (n, k4) < (gate[nn], 1):
            return
        if nn - RG > n or (nn - RG == n and k4 < 2 * ks + 1):
            return
        aload(nn, ks)
        nxt[:] = [nn, 1] if ks == 0 else [nn + 1, 0]
        return


def dec(m):
    if OPT["tl"] and m >= 4 * NST - 8:
        r = m - (4 * NST - 8)
        return NST - 2 + ((r >> 1) & 1), r & 1, r >> 2
    return m >> 2, (m >> 1) & 1, m & 1


def wrd(m):
    if m >= 4 * NST:
        return
    n, ks, ct = dec(m)
    ev = {OPT["gx"]: 4, 76: 5, 88: 6}
    if m + 5 in ev:
        peek(CPK, 20)
    if m == OPT["g2"]:
        signal(CSIG, 21, 12)
    if m == 72:
        signal(CSIG, 21, 13)
    if m == 93:
        peek(CPC2, 19)
    if m in ev:
        if m == OPT["gx"]:
            signal(CSIG, 21, 11)
        await_(CPK, 20, ev[m], peeked=True)
    so = slot_of(2 * n) + ks * 2048
    k = so // (64 * K)
    f = WR + (m % 8) * 4
    if OPT["now"] and m >= 8:
        return
    tr(f, WB + 2 * k + ct, so - 64 * K * k, None)
    tr(f + 2, WB + 2 * k + ct, so - 64 * K * k + 1024, ("w2", m))


def xwrite(acc, base, ct, q):
    lg.room()
    P(f"ds_write_b128 {v(base + q)}, {v(acc + 16 * ct + 4 * q, 4)} offset:{128 * ct}")
    lg.add(("xw", acc))


lg.q = []
stamp(0, "primed")
await_(CPK, 20, 3)
for m in range(7):
    wrd(m)
for n in range(NST):
    acc = AY if n < 22 else AS
    if n == 21:
        P(f"s_cmp_eq_u32 {KH}, 0")
    for k4 in range(4):
        m = 4 * n + k4
        na, ks, ct = dec(m)
        w = vm.need(("a", na, ks)) + " " + (lg.need(("w2", m | 1)) if OPT["w2"] else "") + lg.need(("w2", m))
        if w.strip():
            P("s_waitcnt " + w.strip())
        c = "0" if (n in (0, 22) and ks == 0) else v(acc + 16 * ct, 16)
        if n == 21:
            P(f"s_cbranch_scc0 L_null{k4}")
        P(f"v_mfma_f32_32x32x16_bf16 {v(acc + 16 * ct, 16)}, {v(WR + (m % 8) * 4, 4)}, {v(AR + 8 * (na % RG) + 4 * ks, 4)}, {c}")
        if OPT["tl"] and m >= 4 * NST - 2:
            for q in range(2):
                xwrite(AS, XW2, 0, 2 * (m & 1) + q)
        if n == 21:
            P.label(f"L_null{k4}")
        if k4 == 1:
            for nn, ld, fd, nm in ((8, FH1, FD, "h1"), (16, FHA, FD, "ha"), (22, FO, FD + 1, "o")):
                if n == max(0, gate[nn] - OPT["fl"]) and gate[nn] > 0:
                    P(ld)
                    vm.add("f" + nm)
                if n == gate[nn]:
                    vm.wait("f" + nm)
                    P(f"v_cmp_ne_u32 vcc, {NONCE}, {v(fd)}")
                    retry("L_" + nm, ld, f"v_cmp_ne_u32 vcc, {NONCE}, {v(fd)}")
                    stamp(0, nm + "_seen")
        aissue(n, k4)
        assert nxt[0] > n + 1 or nxt[0] == NST or (nxt[0] == n + 1 and k4 < 3), (n, k4, nxt)
        wrd(m + 7)
        if m == 91:
            await_(CPC2, 19, 13, peeked=True)
        if m >= 91 and (m - 91) % OPT["ys"] == 0 and (m - 91) // OPT["ys"] < 8:
            xwrite(AY, XW, ((m - 91) // OPT["ys"]) >> 2, ((m - 91) // OPT["ys"]) & 3)
        if m == 91 + 7 * OPT["ys"] + OPT["dy"]:
            lg.wait(("xw", AY))
            P("s_barrier ; dY")
    if "st0" in OPT:
        stamp(0, f"n{n}")
stamp(0, "sdone")
for ct in range(1 if OPT["tl"] else 0, 2):
    for q in range(4):
        xwrite(AS, XW2, ct, q)
P("s_setprio 0")
lg.drain()
P("s_barrier ; dS")
P(f"s_or_b32 {T0}, s2, {W}\ns_cmp_eq_u32 {T0}, 0")
P("s_cbranch_scc0 L_cend")
flag_store(T0)
P.label("L_cend")
dump(0)
P("s_endpgm")
flush_cold()
P.label("L_codeend")

body = P.finish()
hdr = f"""; out = x + (linear_attention(LN x) wo) * silu(gelu(LN x w1 + b1) w2 + b2), one launch, 256 workgroups (one per CU).
; Phase 1: workgroup (row block i of 128 tokens, column j).  Even j: k,v then q of four heads; odd j: 5-6 blocks of 32
;   hidden features.  x stays in registers as B fragments; LayerNorm is folded in exactly: the GEMM runs on raw x, one
;   read straight from d_ws behind per-producer flags; written through, so any placement works.  Flags go through the
;   die's L2 only when the producer has seen that its whole row block shares that die, else they are written through too.
; @launch grid=(256,1,1) block=(512,1,1) lds=163840
.amdgcn_target "amdgcn-amd-amdhsa--gfx950"
.text
.globl {KNAME}
.p2align 8
.type {KNAME},@function
{KNAME}:
"""
tail = f"""
.section .rodata,"a"
.p2align 6
.amdhsa_kernel {KNAME}
  .amdhsa_next_free_vgpr 256
  .amdhsa_next_free_sgpr 102
  .amdhsa_accum_offset 256
  .amdhsa_group_segment_fixed_size 0
  .amdhsa_kernarg_size 88
  .amdhsa_user_sgpr_count 2
  .amdhsa_user_sgpr_kernarg_segment_ptr 1
  .amdhsa_system_sgpr_workgroup_id_x 1
  .amdhsa_float_denorm_mode_32 3
.end_amdhsa_kernel
"""
if OPT["ra"]:
    from realign import realign
    sel = None
    if OPT["rs"] == 1:
        sel = lambda lab, on: on or lab == "L_compute"
    body, nn, nw = realign(hdr, body, tail, OPT["ra"], sel)
    sys.stderr.write(f"realign: {nn} nops, {nw} widened\n")
if OPT["diag"]:
    tail += f"; STAMPS0 {' '.join(slots[0])}\n"
sys.stdout.write(hdr + body + tail)
sys.stderr.write(f"pads {P.npad}\n")
```
